```python
import torch

def _softmax(x, axis=-1):
    return torch.softmax(x, dim=axis)

def _gelu(x):
    return torch.nn.functional.gelu(x, approximate='tanh')

def _silu(x):
    return torch.nn.functional.silu(x)

def _sigmoid(x):
    return torch.sigmoid(x)

def _layernorm(x, axis=-1, eps=1e-05):
    m = x.mean(dim=axis, keepdim=True)
    v = x.var(dim=axis, keepdim=True, unbiased=False)
    return (x - m) / torch.sqrt(v + eps)

def _scatter_add(tgt, idx, src, axis=0):
    return tgt.clone().index_add_(axis, idx, src)

def _segment_sum(src, seg, n):
    out = torch.zeros((n,) + src.shape[1:], dtype=src.dtype)
    return out.index_add_(0, seg, src)

def _pad(x, pw):
    flat = tuple((v for pair in reversed(pw) for v in pair))
    return torch.nn.functional.pad(x, flat)
kernel_name = 'adaLN_cond__ssm_conv_h3__dense_activation_silu__prompt'

def setup_inputs():

    _w = lambda a: (lambda t: t.to(torch.bfloat16) if t.is_floating_point() else t)(torch.as_tensor(a))

    def _A_setup():
        B, S, D = (1, 2048, 512)
        ks = 4
        return {'q': _w((lambda *s: torch.randn(*s, dtype=torch.bfloat16) * 0.05)(B, S, D)), 'k': _w((lambda *s: torch.randn(*s, dtype=torch.bfloat16) * 0.8)(B, S, D)), 'v': _w((lambda *s: torch.randn(*s, dtype=torch.bfloat16) * 0.8)(B, S, D)), 'shift_k': _w((lambda *s: torch.randn(*s, dtype=torch.bfloat16) * 0.8)(D, ks) * 0.5), 'ssm_k': _w((lambda *s: torch.randn(*s, dtype=torch.bfloat16) * 0.8)(D, S) * (1.0 / S ** 0.5)), 'ssm_D': _w((lambda *s: torch.randn(*s, dtype=torch.bfloat16) * 0.8)(D))}
    _A_in = _A_setup()

    def _B_setup():
        B, S, D, F = (1, 2048, 512, 1792)
        return {'x': _w((lambda *s: torch.randn(*s, dtype=torch.bfloat16) * 0.05)(B, S, D)), 'w1': _w((lambda *s: torch.randn(*s, dtype=torch.bfloat16) * 3.2)(D, F) * D ** (-0.5)), 'w2': _w((lambda *s: torch.randn(*s, dtype=torch.bfloat16) * 0.8)(F, D) * F ** (-0.5))}
    _B_in = _B_setup()
    return {'A_q': _A_in['q'], 'A_k': _A_in['k'], 'A_v': _A_in['v'], 'A_shift_k': _A_in['shift_k'], 'A_ssm_k': _A_in['ssm_k'], 'A_ssm_D': _A_in['ssm_D'], 'B_x': _B_in['x'], 'B_w1': _B_in['w1'], 'B_w2': _B_in['w2'], 'c': _w((lambda *s: torch.randn(*s, dtype=torch.bfloat16) * 0.2)(1, 512) * 8.0), 'w_mod': _w((lambda *s: torch.randn(*s, dtype=torch.bfloat16) * 0.2)(512, 6 * 512) * 512 ** (-0.5) * 8.0)}

def reference(A_q, A_k, A_v, A_shift_k, A_ssm_k, A_ssm_D, B_x, B_w1, B_w2, c, w_mod):

    def _A_ref(q, k, v, shift_k, ssm_k, ssm_D):
        B, S, D = q.shape
        ks = shift_k.shape[-1]
        k_pad = _pad(k, ((0, 0), (ks - 1, 0), (0, 0)))
        k_shift = torch.zeros_like(k)
        for t in range(ks):
            k_shift = k_shift + k_pad[:, t:t + S, :] * shift_k[:, ks - 1 - t][None, None, :]
        kv = k_shift * v
        L = 2 * S
        kv_pad = _pad(kv, ((0, 0), (0, S), (0, 0)))
        kf_pad = _pad(ssm_k, ((0, 0), (0, S)))
        kv_f = (lambda x, axes=(-2, -1): torch.fft.rfft2(x.float(), dim=axes))(kv_pad[:, None, :, :], axes=(1, 2))
        kf_f = (lambda x, axes=(-2, -1): torch.fft.rfft2(x.float(), dim=axes))(kf_pad[:, None, :], axes=(1, 2))
        kf_f = (lambda x, *d: x.permute(*d))(kf_f, 1, 2, 0)
        y_f = kv_f * kf_f[None, :, :, :]
        y = (lambda x, s, axes=(-2, -1): torch.fft.irfft2(x, s=s, dim=axes).to(torch.bfloat16))(y_f, (1, L), axes=(1, 2))[:, 0, :S, :]
        y = y + kv * ssm_D[None, None, :]
        return q * y

    def _B_ref(x, w1, w2):
        h = torch.einsum('bsd,df->bsf', x, w1)
        h = _silu(h)
        out = torch.einsum('bsf,fd->bsd', h, w2)
        return out
    x = A_q
    mod = (_silu(c) @ w_mod).reshape(c.shape[0], 6, 1, -1)
    sa, ca, ga, sb, cb, gb = (mod[:, 0].clone(), mod[:, 1].clone(), mod[:, 2].clone(), mod[:, 3].clone(), mod[:, 4].clone(), mod[:, 5].clone())
    h = _layernorm(x, axis=-1) * (1 + ca) + sa
    x = x + ga * _A_ref(h, A_k, A_v, A_shift_k, A_ssm_k, A_ssm_D)
    h = _layernorm(x, axis=-1) * (1 + cb) + sb
    x = x + gb * _B_ref(h, B_w1, B_w2)
    return x
```

```python
import re

TRANS = ("v_exp_f32", "v_log_f32", "v_rcp_f32", "v_rsq_f32", "v_sqrt_f32", "v_sin_f32", "v_cos_f32", "v_rcp_iflag_f32")
REG_RE = re.compile(r"\b([vas])(\d+)\b|\b([vas])\[(\d+):(\d+)\]|\b(vcc|exec|m0)\b")

def regs_of(tok):
    out = set()
    for m in REG_RE.finditer(tok):
        if m.group(1): out.add((m.group(1), int(m.group(2))))
        elif m.group(3):
            for i in range(int(m.group(4)), int(m.group(5)) + 1): out.add((m.group(3), i))
        else: out.add((m.group(6), 0))
    return out

def split_ops(s):
    ops, depth, cur = [], 0, ""
    for ch in s:
        if ch == "[": depth += 1
        if ch == "]": depth -= 1
        if ch == "," and depth == 0: ops.append(cur.strip()); cur = ""
        else: cur += ch
    if cur.strip(): ops.append(cur.strip())
    return ops

class Ins:
    def __init__(self, text):
        self.text = text
        t = text.split(";")[0].strip()
        parts = t.split(None, 1)
        self.op = parts[0]
        ops = split_ops(parts[1]) if len(parts) > 1 else []
        self.ops = ops
        op = self.op
        self.kind = ("mfma" if op.startswith("v_mfma") else "valu" if op.startswith("v_") else
                     "vmem" if op.startswith(("buffer_", "global_")) else "ds" if op.startswith("ds_") else "salu")
        self.w, self.r = set(), set()
        self.srcc = set(); self.srcab = set(); self.sdata = set()
        self.states = 1
        R = [regs_of(o) for o in ops]
        if op == "s_nop": self.states = int(ops[0], 0) + 1
        if self.kind == "mfma":
            self.w = R[0]; self.srcab = R[1] | R[2]; self.srcc = R[3]; self.r = self.srcab | self.srcc
            self.passes = 8 if "32x32" in op else 4
        elif self.kind == "valu":
            base = op.replace("_e32", "").replace("_e64", "").replace("_dpp", "").replace("_sdwa", "")
            self.base = base
            if base.startswith(("v_swap", "v_permlane16_swap", "v_permlane32_swap")):
                self.w = R[0] | R[1]; self.r = R[0] | R[1]
            elif base.startswith("v_cmpx"):
                self.w = R[0] | {("exec", 0)}; self.r = set().union(*R[1:])
            elif base in ("v_add_co_u32", "v_sub_co_u32", "v_addc_co_u32", "v_subb_co_u32", "v_div_scale_f32", "v_mad_u64_u32"):
                self.w = R[0] | R[1]; self.r = set().union(*R[2:])
            else:
                self.w = R[0]; self.r = set().union(*R[1:]) if len(R) > 1 else set()
                if base.startswith(("v_fmac", "v_pk_fmac", "v_dot2c", "v_writelane")) or "dpp" in op or "row_" in t or "quad_perm" in t:
                    self.r |= R[0]
                if base.startswith("v_cndmask") and len(ops) == 3: self.r.add(("vcc", 0))
            self.trans = base in TRANS
            self.dpp = ("row_" in t or "quad_perm" in t or "wave_" in t)
            self.perm = base.startswith("v_permlane")
            self.rdlane = base in ("v_readfirstlane_b32", "v_readlane_b32")
        elif self.kind == "vmem":
            lds = bool(re.search(r"\blds\b", t))
            if "store" in op or "atomic" in op:
                if op.startswith("buffer_"): self.sdata = R[0]; self.r = set().union(*R)
                else: self.sdata = R[1]; self.r = set().union(*R)
                if "atomic" in op and "sc0" in t: self.w = R[0]
                self.wide = "x3" in op or "x4" in op
            elif lds:
                self.r = set().union(*R) | {("m0", 0)}
            else:
                self.w = R[0]; self.r = set().union(*R[1:])
        elif self.kind == "ds":
            if op.startswith(("ds_read", "ds_bpermute", "ds_permute", "ds_swizzle")):
                self.w = R[0]; self.r = set().union(*R[1:]) if len(R) > 1 else set()
            else:
                self.r = set().union(*R)
        else:
            if op.startswith(("s_cmp", "s_cbranch", "s_branch", "s_waitcnt", "s_barrier", "s_nop", "s_endpgm", "s_sleep", "s_setprio", "s_bitcmp")):
                self.r = set().union(*R) if R else set()
            else:
                self.w = R[0] if R else set(); self.r = set().union(*R[1:]) if len(R) > 1 else set()
                if "saveexec" in op: self.w |= {("exec", 0)}

def vregs(s): return {x for x in s if x[0] in ("v", "a")}
def sregs(s): return {x for x in s if x[0] in ("s", "vcc")}

def need(p, c):
    n = 0
    if p.kind == "valu":
        pv, ps = vregs(p.w), sregs(p.w)
        if c.kind == "mfma" and pv & c.r: n = max(n, 2)
        if c.kind == "valu":
            if (c.dpp or c.perm) and pv & c.r: n = max(n, 2)
            if c.rdlane and pv & c.r: n = max(n, 1)
            if p.trans and pv & c.r: n = max(n, 1)
            if ps & c.r: n = max(n, 2)
            if ("exec", 0) in p.w and (c.dpp): n = max(n, 5)
            if ("exec", 0) in p.w and (c.rdlane or c.perm): n = max(n, 4)
            if "op_sel" in p.text and not p.op.startswith("v_pk") and pv & c.r: n = max(n, 1)
            if "sdwa" in p.text and pv & c.r: n = max(n, 1)
        if c.kind == "vmem" and ps & c.r: n = max(n, 5)
        if c.kind == "mfma" and ("exec", 0) in p.w: n = max(n, 4)
        if c.kind == "salu" and ps & c.r: n = max(n, 1)
    if p.kind == "mfma":
        big = {4: 8, 8: 12}[p.passes]
        if c.kind == "mfma":
            if p.w & c.srcab: n = max(n, big)
            if p.w & c.srcc and not (p.w == c.srcc and p.passes == c.passes): n = max(n, big - 2)
            if p.w & c.w and not (p.w == c.w): n = max(n, big - 2)
        elif c.kind in ("valu", "vmem", "ds"):
            if p.w & (c.r | c.w): n = max(n, big)
            if c.kind == "valu" and p.srcc & c.w: n = max(n, {4: 3, 8: 7}[p.passes])
    if p.kind == "vmem" and p.sdata and getattr(p, "wide", False):
        if p.sdata & c.w: n = max(n, 2)
    if p.kind == "salu" and ("m0", 0) in p.w and ("m0", 0) in c.r and c.kind in ("vmem", "ds"): n = max(n, 1)
    return n

class Asm:
    def __init__(self):
        self.lines = []
        self.hist = []
        self.nops = 0
    def raw(self, text):
        self.lines.append(text)
    def label(self, name):
        self.lines.append(name + ":")
    def fence(self):
        self.hist = []
    def __call__(self, text):
        for ln in text.split("\n"):
            ln = ln.strip()
            if not ln or ln.startswith(";"): continue
            if ln.endswith(":"):
                self.lines.append(ln); continue
            ins = Ins(ln)
            dist, pad = 0, 0
            for p in reversed(self.hist):
                pad = max(pad, need(p, ins) - dist)
                dist += p.states
                if dist >= 20: break
            while pad > 0:
                k = min(pad, 16)
                nop = Ins(f"s_nop {k-1}")
                self.lines.append("    " + nop.text); self.hist.append(nop); self.nops += 1
                pad -= k
            self.lines.append("    " + ln)
            self.hist.append(ins)
            self.hist = self.hist[-24:]
    def text(self):
        return "\n".join(self.lines) + "\n"

def desc(name, vgpr=512, accum=256, sgpr=102):
    return f""".p2align 6
.amdhsa_kernel {name}
  .amdhsa_next_free_vgpr {vgpr}
  .amdhsa_next_free_sgpr {sgpr}
  .amdhsa_accum_offset {accum}
  .amdhsa_group_segment_fixed_size 0
  .amdhsa_kernarg_size 112
  .amdhsa_user_sgpr_count 2
  .amdhsa_user_sgpr_kernarg_segment_ptr 1
  .amdhsa_system_sgpr_workgroup_id_x 1
  .amdhsa_float_denorm_mode_32 3
  .amdhsa_float_denorm_mode_16_64 3
.end_amdhsa_kernel
"""
```

```python
import sys
from asmlib import Asm, desc

NAME = "adaLN_cond__ssm_conv_h3__dense_activation_silu__prompt"
MB = 1 << 20
WS_KVT, WS_QT, WS_X1, WS_H, WS_W2P = 0, 2 * MB, 4 * MB, 6 * MB, 14 * MB
WS_STAT, WS_MOD, WS_FLAG = 16 * MB, 16 * MB + 65536, 17 * MB
WS_SIZE = 32 * MB
LOG2E = 0x3fb8aa3b
NLOG2E = 0xbfb8aa3b

Q, K, V, SK, FK, SD, W1, W2, C, WM, OUT, WS = [f"s[{8+4*i}:{11+4*i}]" for i in range(12)]
SRD_INFO = [
    (8, 0, 2 * MB), (12, 8, 2 * MB), (16, 16, 2 * MB), (20, 24, 4096), (24, 32, 2 * MB), (28, 40, 1024),
    (32, 56, 512 * 1792 * 2), (36, 64, 512 * 1792 * 2), (40, 72, 1024), (44, 80, 512 * 3072 * 2),
    (48, 88, 2 * MB), (52, 104, WS_SIZE)]
sX, sM, sWV = "s3", "s4", "s5"

class G:
    def __init__(self, sc):
        self.a = Asm()
        self.sc = " sc1" if sc else ""

    def entry(self, name, srds):
        a = self.a
        a.raw(f".globl {name}\n.p2align 8\n.type {name},@function")
        a.label(name)
        a.fence()
        a(f"s_cmp_ge_u32 s2, 256\ns_cbranch_scc1 L_end_{name}")
        for i in srds:
            s, off, n = SRD_INFO[i]
            a(f"s_load_dwordx2 s[{s}:{s+1}], s[0:1], {off}")
        a("v_lshrrev_b32 v2, 6, v0\nv_and_b32 v1, 63, v0")
        for i in srds:
            s, off, n = SRD_INFO[i]
            a(f"s_mov_b32 s{s+2}, {n}\ns_mov_b32 s{s+3}, 0x00020000")
        a(f"v_readfirstlane_b32 {sWV}, v2")
        a(f"s_and_b32 {sX}, s2, 7\ns_lshr_b32 {sM}, s2, 3")
        a("s_waitcnt lgkmcnt(0)")

    def exit(self, name):
        self.a.label(f"L_end_{name}")
        self.a("s_endpgm")

    def p_loads(self):
        a = self.a
        a(f"""
        s_lshl_b32 s60, {sM}, 16
        s_lshl_b32 s61, {sX}, 7
        s_add_u32 s60, s60, s61
        s_lshl_b32 s61, {sWV}, 5
        s_add_u32 s60, s60, s61
        v_lshrrev_b32 v8, 3, v1
        v_and_b32 v9, 7, v1
        v_lshlrev_b32 v2, 13, v8
        v_lshl_add_u32 v2, v9, 2, v2
        v_add_u32 v2, s60, v2
        v_subrev_u32 v3, 3072, v2
        v_add_u32 v4, 4096, v2
        """)
        for j in range(11):
            base, off = ("v3", j * 1024) if j < 3 else ("v2", (j - 3) * 1024) if j < 7 else ("v4", (j - 7) * 1024)
            a(f"buffer_load_dword v{10+j}, {base}, {K}, 0 offen offset:{off}")
        for j in range(8):
            base, off = ("v2", j * 1024) if j < 4 else ("v4", (j - 4) * 1024)
            a(f"buffer_load_dword v{21+j}, {base}, {V}, 0 offen offset:{off}")
        a(f"""
        s_lshl_b32 s62, {sX}, 9
        s_lshl_b32 s63, {sWV}, 7
        s_add_u32 s62, s62, s63
        v_lshl_add_u32 v37, v9, 4, s62
        buffer_load_dwordx4 v[38:41], v37, {SK}, 0 offen
        """)
        for j in range(8):
            base, off = ("v2", j * 1024) if j < 4 else ("v4", (j - 4) * 1024)
            a(f"buffer_load_dword v{29+j}, {base}, {Q}, 0 offen offset:{off}")
        a(f"""
        s_lshl_b32 s60, s2, 13
        s_lshl_b32 s61, {sWV}, 11
        s_add_u32 s60, s60, s61
        v_lshrrev_b32 v5, 5, v1
        v_lshlrev_b32 v5, 10, v5
        v_and_b32 v42, 31, v1
        v_lshl_add_u32 v5, v42, 4, v5
        v_add_u32 v5, s60, v5
        buffer_load_dwordx4 v[44:47], v5, {Q}, 0 offen
        buffer_load_dwordx4 v[48:51], v5, {Q}, 0 offen offset:512
        """)
        a(f"""
        s_and_b32 s60, s2, 3
        s_lshl_b32 s60, s60, 7
        s_lshl_b32 s61, {sWV}, 5
        s_add_u32 s60, s60, s61
        v_add_u32 v42, s60, v8
        v_lshlrev_b32 v43, 1, v42
        s_movk_i32 s61, 6144
        v_mul_lo_u32 v6, v42, s61
        v_lshl_add_u32 v6, v9, 4, v6
        s_lshr_b32 s60, s2, 2
        s_lshl_b32 s60, s60, 7
        s_cmp_ge_u32 s2, 192
        s_cselect_b32 s60, 0x40000000, s60
        v_add_u32 v6, s60, v6
        s_mov_b32 s61, {8*6144}
        s_mov_b32 s62, {16*6144}
        s_mov_b32 s63, {24*6144}
        buffer_load_ushort v68, v43, {C}, 0 offen
        buffer_load_ushort v69, v43, {C}, 0 offen offset:16
        buffer_load_ushort v70, v43, {C}, 0 offen offset:32
        buffer_load_ushort v71, v43, {C}, 0 offen offset:48
        buffer_load_dwordx4 v[52:55], v6, {WM}, 0 offen
        buffer_load_dwordx4 v[56:59], v6, {WM}, s61 offen
        buffer_load_dwordx4 v[60:63], v6, {WM}, s62 offen
        buffer_load_dwordx4 v[64:67], v6, {WM}, s63 offen
        """)
        a(f"""
        s_lshr_b32 s60, {sWV}, 1
        s_lshl_b32 s61, s2, 1
        s_add_u32 s60, s60, s61
        s_lshr_b32 s64, s60, 3
        s_and_b32 s65, s60, 7
        s_mul_i32 s61, s64, 37
        s_lshr_b32 s61, s61, 8
        s_mul_i32 s62, s61, 7
        s_sub_u32 s62, s64, s62
        s_mul_i32 s61, s61, 224
        s_lshl_b32 s63, s62, 5
        s_add_u32 s66, s63, 16
        s_cmp_ge_u32 s62, 3
        s_cselect_b32 s63, s66, s63
        s_movk_i32 s66, {16*1024}
        s_cmp_eq_u32 s62, 6
        s_cselect_b32 s63, 96, s63
        s_cselect_b32 s66, {112*1024}, s66
        s_add_u32 s61, s61, s63
        s_and_b32 s62, {sWV}, 1
        s_lshl_b32 s62, s62, 3
        s_add_u32 s61, s61, s62
        s_lshl_b32 s61, s61, 10
        s_lshl_b32 s62, s65, 7
        s_add_u32 s61, s61, s62
        s_cmp_ge_u32 s60, 448
        s_cselect_b32 s61, 0x40000000, s61
        v_lshrrev_b32 v42, 5, v1
        v_lshlrev_b32 v42, 12, v42
        v_and_b32 v43, 31, v1
        v_lshl_add_u32 v7, v43, 2, v42
        v_add_u32 v7, s61, v7
        """)
        for e in range(8):
            so = "0" if e < 4 else "s66"
            a(f"buffer_load_dword v{72+e}, v7, {W2}, {so} offen offset:{(e&3)*1024}")

    def p_kv(self, later):
        a = self.a
        a(f"s_waitcnt vmcnt({later + 8 + 2 + 8 + 8})")
        for j in range(11):
            a(f"v_lshlrev_b32 v{80+2*j}, 16, v{10+j}\nv_and_b32 v{81+2*j}, 0xffff0000, v{10+j}")
        a("""
        v_lshlrev_b32 v102, 16, v38
        v_lshlrev_b32 v103, 16, v40
        v_and_b32 v104, 0xffff0000, v38
        v_and_b32 v105, 0xffff0000, v40
        v_lshlrev_b32 v106, 16, v39
        v_lshlrev_b32 v107, 16, v41
        v_and_b32 v108, 0xffff0000, v39
        v_and_b32 v109, 0xffff0000, v41
        """)
        for i in range(8):
            a(f"v_lshlrev_b32 v{126+2*i}, 16, v{21+i}\nv_and_b32 v{127+2*i}, 0xffff0000, v{21+i}")
        P = lambda r: f"v[{r}:{r+1}]"
        for i in range(8): a(f"v_pk_mul_f32 {P(110+2*i)}, {P(80+2*i)}, {P(108)}")
        for i in range(8): a(f"v_pk_fma_f32 {P(110+2*i)}, {P(82+2*i)}, {P(106)}, {P(110+2*i)}")
        for i in range(8): a(f"v_pk_fma_f32 {P(110+2*i)}, {P(84+2*i)}, {P(104)}, {P(110+2*i)}")
        for i in range(8): a(f"v_pk_fma_f32 {P(110+2*i)}, {P(86+2*i)}, {P(102)}, {P(110+2*i)}")
        for i in range(8): a(f"v_pk_mul_f32 {P(110+2*i)}, {P(110+2*i)}, {P(126+2*i)}")
        for j in range(4):
            a(f"v_cvt_pk_bf16_f32 v{144+j}, v{110+2*(7-2*j)}, v{110+2*(6-2*j)}")
            a(f"v_cvt_pk_bf16_f32 v{148+j}, v{111+2*(7-2*j)}, v{111+2*(6-2*j)}")
        a(f"""
        s_lshl_b32 s60, {sX}, 18
        s_lshl_b32 s61, {sWV}, 16
        s_add_u32 s60, s60, s61
        s_lshl_b32 s61, {sM}, 7
        v_lshlrev_b32 v142, 13, v9
        v_add_u32 v142, s60, v142
        v_lshl_add_u32 v143, v8, 4, s61
        v_add_u32 v152, v142, v143
        v_sub_u32 v142, v142, v143
        v_add_u32 v142, {WS_KVT + 4080}, v142
        v_add_u32 v152, {WS_QT}, v152
        s_movk_i32 s67, 4096
        buffer_store_dwordx4 v[144:147], v142, {WS}, 0 offen{self.sc}
        buffer_store_dwordx4 v[148:151], v142, {WS}, s67 offen{self.sc}
        """)

    def p_q(self, later):
        a = self.a
        a(f"s_waitcnt vmcnt({later + 2 + 8 + 8})")
        a("s_mov_b32 s60, 0x05040100\ns_mov_b32 s61, 0x07060302")
        for j in range(4):
            a(f"v_perm_b32 v{80+j}, v{30+2*j}, v{29+2*j}, s60")
            a(f"v_perm_b32 v{84+j}, v{30+2*j}, v{29+2*j}, s61")
        a(f"""
        buffer_store_dwordx4 v[80:83], v152, {WS}, 0 offen{self.sc}
        buffer_store_dwordx4 v[84:87], v152, {WS}, s67 offen{self.sc}
        """)

    def reduce32(self, r, t):
        a = self.a
        for n in (8, 4, 2, 1):
            a(f"v_add_f32_dpp v{r}, v{r}, v{r} row_ror:{n} row_mask:0xf bank_mask:0xf")
        a(f"v_mov_b32 v{t}, v{r}\nv_permlane16_swap_b32 v{r}, v{t}\nv_add_f32 v{r}, v{r}, v{t}")

    def p_stats(self, later):
        a = self.a
        a(f"s_waitcnt vmcnt({later + 8 + 8})")
        P = lambda r: f"v[{r}:{r+1}]"
        for j in range(8):
            a(f"v_lshlrev_b32 v{90+2*j}, 16, v{44+j}\nv_and_b32 v{91+2*j}, 0xffff0000, v{44+j}")
        for j in range(4): a(f"v_pk_add_f32 {P(110+2*j)}, {P(90+4*j)}, {P(92+4*j)}")
        a(f"v_pk_add_f32 {P(110)}, {P(110)}, {P(112)}\nv_pk_add_f32 {P(114)}, {P(114)}, {P(116)}\nv_pk_add_f32 {P(110)}, {P(110)}, {P(114)}")
        a("v_add_f32 v110, v110, v111")
        self.reduce32(110, 111)
        a("v_mul_f32 v118, 0xbb000000, v110\nv_mov_b32 v119, v118")
        for j in range(8): a(f"v_pk_add_f32 {P(90+2*j)}, {P(90+2*j)}, {P(118)}")
        a(f"v_pk_mul_f32 {P(110)}, {P(90)}, {P(90)}\nv_pk_mul_f32 {P(112)}, {P(92)}, {P(92)}")
        for j in range(2, 8): a(f"v_pk_fma_f32 {P(110+2*(j&1))}, {P(90+2*j)}, {P(90+2*j)}, {P(110+2*(j&1))}")
        a(f"v_pk_add_f32 {P(110)}, {P(110)}, {P(112)}\nv_add_f32 v110, v110, v111")
        self.reduce32(110, 111)
        a(f"""
        v_mov_b32 v111, 0x3727c5ac
        v_fmac_f32 v111, 0x3b000000, v110
        v_rsq_f32 v121, v111
        s_lshl_b32 s60, s2, 5
        s_lshl_b32 s61, {sWV}, 3
        s_add_u32 s60, s60, s61
        s_add_u32 s60, s60, {WS_STAT}
        v_mul_f32 v120, v118, v121
        v_lshrrev_b32 v112, 5, v1
        v_lshl_add_u32 v112, v112, 2, s60
        v_and_b32 v113, 1, v1
        v_lshl_add_u32 v112, v113, 13, v112
        v_cmp_eq_u32 vcc, 1, v113
        v_cndmask_b32 v121, v121, v120, vcc
        v_and_b32 v113, 30, v1
        v_cmp_eq_u32 vcc, 0, v113
        s_and_saveexec_b64 s[62:63], vcc
        buffer_store_dword v121, v112, {WS}, 0 offen{self.sc}
        s_mov_b64 exec, s[62:63]
        """)

    def p_gemv(self, later, lds):
        a = self.a
        a(f"s_waitcnt vmcnt({later + 8})")
        P = lambda r: f"v[{r}:{r+1}]"
        for j in range(4): a(f"v_lshlrev_b32 v{68+j}, 16, v{68+j}")
        for j in range(4): a(f"v_mul_f32 v{90+j}, {NLOG2E}, v{68+j}")
        for j in range(4): a(f"v_exp_f32 v{90+j}, v{90+j}")
        for j in range(4): a(f"v_add_f32 v{90+j}, 1.0, v{90+j}")
        for j in range(4): a(f"v_rcp_f32 v{90+j}, v{90+j}")
        for j in range(4): a(f"v_mul_f32 v{90+j}, v{68+j}, v{90+j}")
        for j in range(4): a(f"v_cvt_pk_bf16_f32 v{90+j}, v{90+j}, v{90+j}")
        for j in range(4): a(f"v_and_b32 v{94+2*j}, 0xffff0000, v{90+j}\nv_and_b32 v{95+2*j}, 0xffff0000, v{90+j}")
        for j in range(4):
            for e in range(4):
                a(f"v_lshlrev_b32 v{110+2*e}, 16, v{52+4*j+e}\nv_and_b32 v{111+2*e}, 0xffff0000, v{52+4*j+e}")
            for e in range(4):
                if j == 0: a(f"v_pk_mul_f32 {P(120+2*e)}, {P(110+2*e)}, {P(94)}")
                else: a(f"v_pk_fma_f32 {P(120+2*e)}, {P(110+2*e)}, {P(94+2*j)}, {P(120+2*e)}")
        for e in range(8):
            a(f"v_add_f32_dpp v{120+e}, v{120+e}, v{120+e} row_ror:8 row_mask:0xf bank_mask:0xf")
        a(f"""
        v_lshrrev_b32 v110, 4, v0
        v_lshlrev_b32 v110, 8, v110
        v_lshl_add_u32 v110, v9, 5, v110
        ds_write_b128 v110, v[120:123] offset:{lds}
        ds_write_b128 v110, v[124:127] offset:{lds+16}
        s_waitcnt lgkmcnt(0)
        s_barrier
        s_cmp_lg_u32 {sWV}, 0
        s_cbranch_scc1 L_gemv_done
        v_lshlrev_b32 v110, 2, v1
        """)
        for r in range(16): a(f"ds_read_b32 v{112+r}, v110 offset:{lds + 256*r}")
        a("s_waitcnt lgkmcnt(0)")
        for st in (8, 4, 2, 1):
            for r in range(st): a(f"v_add_f32 v{112+r}, v{112+r}, v{112+r+st}")
        a(f"""
        s_and_b32 s60, s2, 3
        s_mul_i32 s60, s60, 12288
        s_lshr_b32 s61, s2, 2
        s_lshl_b32 s61, s61, 8
        s_add_u32 s60, s60, s61
        s_add_u32 s60, s60, {WS_MOD}
        s_cmp_ge_u32 s2, 192
        s_cselect_b32 s60, 0x40000000, s60
        v_add_u32 v110, s60, v110
        buffer_store_dword v112, v110, {WS}, 0 offen{self.sc}
        L_gemv_done:
        """)

    def p_w2(self, later):
        a = self.a
        a(f"s_waitcnt vmcnt({later})")
        a("s_mov_b32 s60, 0x05040100\ns_mov_b32 s61, 0x07060302")
        for j in range(4):
            a(f"v_perm_b32 v{132+j}, v{73+2*j}, v{72+2*j}, s60")
            a(f"v_perm_b32 v{136+j}, v{73+2*j}, v{72+2*j}, s61")
        a(f"""
        s_mul_i32 s60, s65, 56
        s_add_u32 s60, s60, s64
        s_lshl_b32 s60, s60, 12
        s_and_b32 s61, {sWV}, 1
        s_lshl_b32 s61, s61, 9
        s_add_u32 s60, s60, s61
        s_add_u32 s60, s60, {WS_W2P}
        s_cmp_ge_u32 s64, 56
        s_cselect_b32 s60, 0x40000000, s60
        v_lshrrev_b32 v140, 5, v1
        v_lshlrev_b32 v140, 8, v140
        v_bfe_u32 v141, v1, 4, 1
        v_lshl_add_u32 v140, v141, 11, v140
        v_bfe_u32 v141, v1, 1, 1
        v_lshl_add_u32 v140, v141, 10, v140
        v_bfe_u32 v141, v1, 2, 2
        v_lshl_add_u32 v140, v141, 6, v140
        v_and_b32 v141, 1, v1
        v_lshl_add_u32 v140, v141, 5, v140
        v_add_u32 v140, s60, v140
        buffer_store_dwordx4 v[132:135], v140, {WS}, 0 offen{self.sc}
        buffer_store_dwordx4 v[136:139], v140, {WS}, 0 offen offset:16{self.sc}
        """)

    FSZ = 8320
    def c_ids(self):
        self.a(f"""
        s_lshr_b32 s70, {sM}, 1
        s_lshl_b32 s60, {sX}, 4
        s_add_u32 s70, s70, s60
        s_and_b32 s69, {sM}, 1
        s_lshl_b32 s68, s70, 2
        s_add_u32 s68, s68, {sWV}
        s_mov_b32 s71, s69
        s_sub_u32 s72, 3, s69
        """)

    def c_filter_load(self, r0):
        a = self.a
        a(f"s_lshl_b32 s60, s68, 12\nv_lshl_add_u32 v4, v1, 4, s60\nv_add_u32 v5, 2, v4")
        for i in range(4): a(f"buffer_load_dwordx4 v[{r0+4*i}:{r0+4*i+3}], v4, {FK}, 0 offen offset:{1024*i}")
        for i in range(4): a(f"buffer_load_dwordx4 v[{r0+16+4*i}:{r0+16+4*i+3}], v5, {FK}, 0 offen offset:{1024*i}")

    def Freg(self, n):
        return f"a[{4*n}:{4*n+3}]" if n < 64 else f"v[{176+4*(n-64)}:{179+4*(n-64)}]"
    def Fhalf(self, n, h):
        b = 4 * n + 2 * h
        return f"a[{b}:{b+1}]" if n < 64 else f"v[{176+b-256}:{177+b-256}]"

    def c_filter_prep(self, r0, fb, later):
        a = self.a
        a(f"""
        s_mul_i32 s73, {sWV}, {self.FSZ}
        s_add_u32 s73, s73, {fb}
        v_and_b32 v2, 15, v1
        v_lshrrev_b32 v3, 4, v1
        v_lshl_add_u32 v4, v1, 4, s73
        v_mov_b32 v6, 0
        v_mov_b32 v7, 0
        v_mov_b32 v8, 0
        v_mov_b32 v9, 0
        v_cmp_gt_u32 vcc, 4, v1
        s_and_saveexec_b64 s[62:63], vcc
        ds_write_b128 v4, v[6:9]
        ds_write_b128 v4, v[6:9] offset:4160
        s_mov_b64 exec, s[62:63]
        s_waitcnt vmcnt({later})
        """)
        for i in range(4): a(f"ds_write_b128 v4, v[{r0+4*i}:{r0+4*i+3}] offset:{64+1024*i}")
        for i in range(4): a(f"ds_write_b128 v4, v[{r0+16+4*i}:{r0+16+4*i+3}] offset:{4160+64+1024*i}")
        a(f"""
        v_cmp_eq_u32 vcc, 0, v1
        s_and_saveexec_b64 s[62:63], vcc
        ds_write_b16 v4, v{r0} offset:{4160+62}
        s_mov_b64 exec, s[62:63]
        v_and_b32 v5, 1, v2
        v_cmp_eq_u32 vcc, 1, v5
        v_mov_b32 v5, 4160
        v_cndmask_b32 v5, v5, 2, vcc
        v_lshl_add_u32 v5, v2, 1, v5
        v_and_b32 v10, 1, v3
        v_lshl_add_u32 v5, v10, 4, v5
        v_add_u32 v5, s73, v5
        v_lshrrev_b32 v10, 1, v3
        s_add_u32 s60, s71, 1
        s_lshl_b32 s60, s60, 9
        s_add_u32 s61, s72, 1
        s_lshl_b32 s61, s61, 9
        v_mad_u32_u24 v11, v10, s60, v5
        v_mad_u32_u24 v12, v10, s61, v5
        v_add_u32 v15, s60, v11
        v_mov_b32 v10, v11
        v_add_u32 v11, 512, v11
        s_cmp_eq_u32 s69, 0
        s_cselect_b64 vcc, -1, 0
        v_cndmask_b32 v11, v11, v12, vcc
        s_sub_u32 s61, 1024, s60
        v_add_u32 v12, s61, v12
        v_add_u32 v13, 512, v12
        v_add_u32 v14, 1024, v12
        """)
        for n in range(81):
            c = min(n // 16, 4)
            o = 8 * (n - 16 * c)
            a(f"ds_read2_b32 {self.Fhalf(n,0)}, v{10+c} offset0:{o} offset1:{o+1}")
            a(f"ds_read2_b32 {self.Fhalf(n,1)}, v{10+c} offset0:{o+2} offset1:{o+3}")
        a("ds_read2_b32 v[244:245], v15 offset0:0 offset1:1\nds_read2_b32 v[246:247], v15 offset0:2 offset1:3")
        a("ds_write_b128 v4, v[6:9] offset:6144\nds_write_b128 v4, v[6:9] offset:7168")
        a(f"""
        v_sub_u32 v5, 63, v2
        v_mul_u32_u24 v5, 96, v5
        v_add_u32 v5, s73, v5
        s_mul_i32 s60, s71, {16*96}
        s_mul_i32 s61, s72, {16*96}
        v_subrev_u32 v156, s60, v5
        v_subrev_u32 v157, s61, v5
        v_and_b32 v6, 1, v3
        v_lshlrev_b32 v6, 4, v6
        v_lshrrev_b32 v7, 1, v3
        s_add_u32 s60, s71, 1
        s_mul_i32 s60, s60, 768
        s_add_u32 s61, s72, 1
        s_mul_i32 s61, s61, 768
        v_mad_u32_u24 v80, v7, s60, v156
        v_mad_u32_u24 v82, v7, s61, v157
        v_add_u32 v80, v80, v6
        v_add_u32 v82, v82, v6
        v_subrev_u32 v82, s60, v82
        s_cmp_eq_u32 s69, 0
        s_cselect_b64 vcc, -1, 0
        v_cndmask_b32 v81, v80, v82, vcc
        v_lshlrev_b32 v6, 3, v3
        v_sub_u32 v6, 24, v6
        v_add_u32 v156, v156, v6
        v_add_u32 v157, v157, v6
        v_lshrrev_b32 v83, 2, v1
        v_mul_u32_u24 v83, 96, v83
        v_and_b32 v6, 3, v1
        v_lshl_add_u32 v83, v6, 4, v83
        v_add_u32 v83, s73, v83
        """)

    def c_u_load(self):
        a = self.a
        a(f"s_lshl_b32 s60, s68, 12\ns_add_u32 s60, s60, {WS_KVT}\nv_lshl_add_u32 v4, v1, 4, s60")
        for i in range(4): a(f"buffer_load_dwordx4 v[{16+4*i}:{19+4*i}], v4, {WS}, 0 offen offset:{1024*i}{self.sc}")

    def c_epi_load(self):
        a = self.a
        a(f"""
        v_lshlrev_b32 v5, 5, v2
        v_lshl_add_u32 v5, v3, 2, v5
        s_lshl_b32 s60, s68, 12
        s_add_u32 s60, s60, {WS_QT}
        v_lshl_add_u32 v6, v5, 1, s60
        v_lshlrev_b32 v7, 2, v5
        v_add_u32 v7, {WS_STAT}, v7
        v_add_u32 v8, 8192, v7
        s_lshl_b32 s60, s71, 10
        s_lshl_b32 s61, s72, 10
        s_lshl_b32 s62, s71, 11
        s_lshl_b32 s63, s72, 11
        v_and_b32 v9, 3, v1
        s_movk_i32 s64, 12288
        v_mul_u32_u24 v9, s64, v9
        v_bfe_u32 v5, v1, 2, 2
        v_lshl_add_u32 v9, v5, 11, v9
        s_lshl_b32 s64, s68, 2
        s_add_u32 s64, s64, {WS_MOD}
        v_add_u32 v9, s64, v9
        s_lshl_b32 s64, s68, 1
        v_mov_b32 v5, s64
        buffer_load_dword v148, v9, {WS}, 0 offen{self.sc}
        buffer_load_ushort v149, v5, {SD}, 0 offen
        """)
        for sl in range(2):
            for t in range(2):
                i = 2 * sl + t
                a(f"buffer_load_dwordx2 v[{100+2*i}:{101+2*i}], v6, {WS}, s{60+sl} offen offset:{32*t}{self.sc}")
                a(f"buffer_load_dwordx4 v[{108+4*i}:{111+4*i}], v7, {WS}, s{62+sl} offen offset:{64*t}{self.sc}")
                a(f"buffer_load_dwordx4 v[{124+4*i}:{127+4*i}], v8, {WS}, s{62+sl} offen offset:{64*t}{self.sc}")

    def c_main(self, later):
        a = self.a
        a(f"s_waitcnt vmcnt({later})")
        for i in range(4): a(f"ds_write_b128 v83, v[{16+4*i}:{19+4*i}] offset:{1536*i}")
        D = 6
        off = lambda n: 96 * (n >> 1) + 32 * (n & 1)
        base = lambda n: "v80" if n < 16 else "v81" if n < 32 else "v82"
        Br = lambda n: f"v[{48+4*(n%8)}:{51+4*(n%8)}]"
        def rd(n):
            if n < 80: a(f"ds_read_b128 {Br(n)}, {base(n)} offset:{off(n)}")
        def step(n, c0="v[84:87]", c1="v[88:91]", d0="v[84:87]", d1="v[88:91]", a1=None):
            rd(n + D)
            a(f"s_waitcnt lgkmcnt({min(D, 79 - n)})")
            a(f"v_mfma_f32_16x16x32_bf16 {d0}, {self.Freg(n)}, {Br(n)}, {c0}")
            a(f"v_mfma_f32_16x16x32_bf16 {d1}, {a1 or self.Freg(n+1)}, {Br(n)}, {c1}")
        for n in range(D): rd(n)
        def boundary(n, ty):
            a(f"s_cmp_eq_u32 s69, {ty}\ns_cbranch_scc0 L_cb{n}_no")
            h = list(a.hist)
            step(n, d0="v[92:95]", d1="v[96:99]", a1="v[244:247]")
            step(n + 1, c0="0", c1="0")
            a(f"s_branch L_cb{n}_done\nL_cb{n}_no:")
            a.hist = h
            step(n); step(n + 1)
            a(f"L_cb{n}_done:")
            a("s_nop 0")
        step(0, c0="0", c1="0")
        for n in range(1, 15): step(n)
        boundary(15, 0)
        for n in range(17, 31): step(n)
        boundary(31, 1)
        for n in range(33, 80): step(n)

    XI_RS = 2368
    def c_epilogue(self, xi):
        a = self.a
        P = lambda r: f"v[{r}:{r+1}]"
        for sl in range(2):
            for t in range(2):
                a(f"ds_read_b64 {P(140+4*sl+2*t)}, v{156+sl} offset:{32-32*t}")
        a("s_waitcnt vmcnt(0)")
        a("""
        v_add_f32_dpp v148, v148, v148 quad_perm:[1,0,3,2] row_mask:0xf bank_mask:0xf
        v_add_f32_dpp v148, v148, v148 quad_perm:[2,3,0,1] row_mask:0xf bank_mask:0xf
        v_cvt_pk_bf16_f32 v148, v148, v148
        v_and_b32 v148, 0xffff0000, v148
        v_readlane_b32 s60, v148, 0
        v_readlane_b32 s61, v148, 4
        v_readlane_b32 s62, v148, 8
        v_lshlrev_b32 v150, 16, v149
        v_mov_b32 v151, v150
        v_add_f32 v152, 1.0, s61
        v_cvt_pk_bf16_f32 v152, v152, v152
        v_and_b32 v152, 0xffff0000, v152
        v_mov_b32 v153, v152
        v_mov_b32 v154, s60
        v_mov_b32 v155, s60
        v_mov_b32 v148, s62
        v_mov_b32 v149, s62
        """)
        a(f"""
        s_mul_i32 s60, {sWV}, {self.XI_RS}
        s_add_u32 s60, s60, {xi}
        v_mul_u32_u24 v4, 144, v3
        v_lshl_add_u32 v4, v2, 3, v4
        v_add_u32 v4, s60, v4
        s_waitcnt lgkmcnt(0)
        """)
        for sl in range(2):
            for t in range(2):
                i = 2 * sl + t
                acc = (92 if sl == 0 else 84) + 4 * t
                kv, q, A, B = 140 + 2 * i, 100 + 2 * i, 108 + 4 * i, 124 + 4 * i
                a(f"""
                v_and_b32 v160, 0xffff0000, v{kv+1}
                v_lshlrev_b32 v161, 16, v{kv+1}
                v_and_b32 v162, 0xffff0000, v{kv}
                v_lshlrev_b32 v163, 16, v{kv}
                v_lshlrev_b32 v164, 16, v{q}
                v_and_b32 v165, 0xffff0000, v{q}
                v_lshlrev_b32 v166, 16, v{q+1}
                v_and_b32 v167, 0xffff0000, v{q+1}
                v_pk_fma_f32 {P(160)}, {P(160)}, {P(150)}, {P(acc)}
                v_pk_fma_f32 {P(162)}, {P(162)}, {P(150)}, {P(acc+2)}
                v_pk_fma_f32 {P(168)}, {P(164)}, {P(A)}, {P(B)}
                v_pk_fma_f32 {P(170)}, {P(166)}, {P(A+2)}, {P(B+2)}
                v_pk_mul_f32 {P(160)}, {P(160)}, {P(148)}
                v_pk_mul_f32 {P(162)}, {P(162)}, {P(148)}
                v_pk_fma_f32 {P(168)}, {P(168)}, {P(152)}, {P(154)}
                v_pk_fma_f32 {P(170)}, {P(170)}, {P(152)}, {P(154)}
                v_pk_fma_f32 {P(164)}, {P(168)}, {P(160)}, {P(164)}
                v_pk_fma_f32 {P(166)}, {P(170)}, {P(162)}, {P(166)}
                v_cvt_pk_bf16_f32 v{172+2*(i&1)}, v164, v165
                v_cvt_pk_bf16_f32 v{173+2*(i&1)}, v166, v167
                ds_write_b64 v4, {P(172+2*(i&1))} offset:{1152*sl + 576*t}
                """)
        a(f"""
        s_lshr_b32 s60, {sWV}, 1
        s_and_b32 s61, {sWV}, 1
        s_mul_i32 s62, s60, 1152
        s_lshl_b32 s63, s61, 6
        s_add_u32 s62, s62, s63
        s_add_u32 s62, s62, {xi}
        v_bfe_u32 v5, v1, 2, 2
        v_mul_u32_u24 v5, {self.XI_RS}, v5
        v_and_b32 v6, 3, v1
        v_mul_u32_u24 v6, 144, v6
        v_add3_u32 v5, v5, v6, s62
        v_lshl_add_u32 v5, v3, 3, v5
        s_cmp_eq_u32 s60, 0
        s_cselect_b32 s62, s71, s72
        s_lshl_b32 s62, s62, 4
        s_lshl_b32 s61, s61, 3
        s_add_u32 s62, s62, s61
        s_lshl_b32 s62, s62, 15
        s_lshl_b32 s63, s70, 8
        s_add_u32 s62, s62, s63
        s_add_u32 s62, s62, {WS_X1}
        v_lshlrev_b32 v6, 15, v3
        v_lshl_add_u32 v6, v2, 4, v6
        v_add_u32 v6, s62, v6
        s_mov_b32 s63, {4*32768}
        s_waitcnt lgkmcnt(0)
        s_barrier
        ds_read_b64_tr_b16 v[160:161], v5
        ds_read_b64_tr_b16 v[162:163], v5 offset:576
        ds_read_b64_tr_b16 v[164:165], v5 offset:32
        ds_read_b64_tr_b16 v[166:167], v5 offset:{576+32}
        s_waitcnt lgkmcnt(2)
        buffer_store_dwordx4 v[160:163], v6, {WS}, 0 offen{self.sc}
        s_waitcnt lgkmcnt(0)
        buffer_store_dwordx4 v[164:167], v6, {WS}, s63 offen{self.sc}
        """)

    WB = 49152
    def g1_ids(self):
        self.a(f"""
        s_lshr_b32 s74, {sM}, 4
        s_lshl_b32 s60, {sX}, 1
        s_add_u32 s74, s74, s60
        s_and_b32 s75, {sM}, 15
        """)

    def g1_rows(self, r0, scale, add):
        a = self.a
        a("s_movk_i32 s60, 4682")
        for i in range(7):
            a(f"v_add_u32 v{r0+7}, {64*i}, v1\nv_mul_u32_u24 v{r0+i}, s60, v{r0+7}\nv_lshrrev_b32 v{r0+i}, 16, v{r0+i}")
            if add:
                a(f"v_mul_u32_u24 v{r0+8}, 14, v{r0+i}\nv_sub_u32 v{r0+7}, v{r0+7}, v{r0+8}")
                a(f"v_mul_u32_u24 v{r0+i}, {scale}, v{r0+i}\nv_lshl_add_u32 v{r0+i}, v{r0+7}, 4, v{r0+i}")
            else:
                a(f"v_mul_u32_u24 v{r0+i}, {scale}, v{r0+i}")

    def g1_w1_load(self, r0):
        a = self.a
        self.g1_rows(r0, 3584, True)
        a(f"""
        s_mul_i32 s60, s75, 224
        s_mul_i32 s61, {sWV}, {4*32*3584}
        s_add_u32 s60, s60, s61
        s_mul_i32 s61, {sWV}, {28*1024}
        s_add_u32 m0, s61, {self.WB}
        """)
        for blk in range(4):
            for i in range(7):
                a(f"buffer_load_dwordx4 v{r0+i}, {W1}, s60 offen lds")
                if not (blk == 3 and i == 6): a("s_add_u32 m0, m0, 1024")
            if blk < 3: a(f"s_add_u32 s60, s60, {32*3584}")

    def g1_mod_load(self, r0):
        a = self.a
        a(f"v_lshlrev_b32 v4, 3, v0\nv_add_u32 v4, {WS_MOD + 3*2048}, v4")
        for k in range(4):
            a(f"s_mov_b32 s60, {12288*k}")
            a(f"buffer_load_dwordx2 v[{r0+4*k}:{r0+4*k+1}], v4, {WS}, s60 offen{self.sc}")
            a(f"buffer_load_dwordx2 v[{r0+4*k+2}:{r0+4*k+3}], v4, {WS}, s60 offen offset:2048{self.sc}")

    def g1_prep(self, r0, tb, later):
        a = self.a
        GT, GB, U = tb, tb + 2048, tb + 4096
        P = lambda r: f"v[{r}:{r+1}]"
        a(f"s_waitcnt vmcnt({later})")
        for h in range(2):
            a(f"v_pk_add_f32 {P(r0+2*h)}, {P(r0+2*h)}, {P(r0+4+2*h)}\nv_pk_add_f32 {P(r0+8+2*h)}, {P(r0+8+2*h)}, {P(r0+12+2*h)}")
        for h in range(2): a(f"v_pk_add_f32 {P(r0+2*h)}, {P(r0+2*h)}, {P(r0+8+2*h)}")
        a(f"""
        v_cvt_pk_bf16_f32 v{r0}, v{r0}, v{r0+1}
        v_cvt_pk_bf16_f32 v{r0+2}, v{r0+2}, v{r0+3}
        v_lshlrev_b32 v{r0+4}, 16, v{r0+2}
        v_and_b32 v{r0+5}, 0xffff0000, v{r0+2}
        v_add_f32 v{r0+4}, 1.0, v{r0+4}
        v_add_f32 v{r0+5}, 1.0, v{r0+5}
        v_cvt_pk_bf16_f32 v{r0+2}, v{r0+4}, v{r0+5}
        v_lshlrev_b32 v{r0+4}, 16, v{r0+2}
        v_and_b32 v{r0+5}, 0xffff0000, v{r0+2}
        v_lshlrev_b32 v4, 2, v0
        v_lshlrev_b32 v5, 3, v0
        ds_write_b64 v5, {P(r0+4)} offset:{GT}
        ds_write_b32 v4, v{r0+2} offset:{GB}
        ds_write_b32 v4, v{r0} offset:{GB+1024}
        v_and_b32 v2, 15, v1
        v_lshrrev_b32 v3, 4, v1
        v_lshrrev_b32 v6, 2, v1
        v_mul_u32_u24 v6, 224, v6
        v_and_b32 v7, 3, v1
        v_lshl_add_u32 v10, v7, 3, v6
        v_add_u32 v10, {self.WB}, v10
        v_add_u32 v11, 57344, v10
        v_and_b32 v6, 1, v1
        v_lshlrev_b32 v6, 10, v6
        v_lshl_add_u32 v6, v3, 3, v6
        s_lshl_b32 s60, {sWV}, 5
        v_add_u32 v8, s60, v10
        v_add_u32 v9, s60, v11
        s_waitcnt lgkmcnt(0)
        s_barrier
        """)
        for k in range(16):
            b = "v8" if k < 8 else "v9"
            o = (k % 8) * 7168
            s = 16 + 12 * (k % 2)
            a(f"""
            ds_read_b64 v[{s}:{s+1}], v6 offset:{GB + 64*k}
            ds_read_b64 v[{s+2}:{s+3}], v6 offset:{GB + 64*k + 32}
            ds_read_b64_tr_b16 v[{s+4}:{s+5}], {b} offset:{o}
            ds_read_b64_tr_b16 v[{s+6}:{s+7}], {b} offset:{o+3584}
            ds_read_b64_tr_b16 v[{s+8}:{s+9}], {b} offset:{o+128}
            ds_read_b64_tr_b16 v[{s+10}:{s+11}], {b} offset:{o+3584+128}
            """)
            if k > 0:
                p = 16 + 12 * ((k - 1) % 2)
                c0, c1 = ("0", "0") if k == 1 else ("v[40:43]", "v[44:47]")
                a(f"s_waitcnt lgkmcnt(6)\nv_mfma_f32_16x16x32_bf16 v[40:43], v[{p+4}:{p+7}], v[{p}:{p+3}], {c0}\nv_mfma_f32_16x16x32_bf16 v[44:47], v[{p+8}:{p+11}], v[{p}:{p+3}], {c1}")
        a("s_waitcnt lgkmcnt(0)\nv_mfma_f32_16x16x32_bf16 v[40:43], v[32:35], v[28:31], v[40:43]\nv_mfma_f32_16x16x32_bf16 v[44:47], v[36:39], v[28:31], v[44:47]")
        self.g1_rows(16, 4, False)
        a(f"""
        v_and_b32 v6, 1, v1
        v_mul_u32_u24 v6, 512, v6
        v_lshl_add_u32 v6, v3, 4, v6
        s_lshl_b32 s60, {sWV}, 6
        v_add_u32 v6, s60, v6
        ds_write_b128 v6, v[40:43] offset:{U}
        ds_write_b128 v6, v[44:47] offset:{U+256}
        s_mul_i32 s60, {sWV}, {28*1024}
        s_add_u32 s60, s60, {self.WB}
        v_lshl_add_u32 v7, v1, 4, s60
        s_lshl_b32 s60, {sWV}, 9
        """)
        for i in range(7): a(f"v_add_u32 v{16+i}, s60, v{16+i}")
        a("s_waitcnt lgkmcnt(0)\ns_barrier")
        NB = 4
        def rd(n):
            if n < 28:
                s = 24 + 8 * (n % NB)
                a(f"ds_read_b128 v[{s}:{s+3}], v7 offset:{1024*n}\nds_read_b32 v{s+4}, v{16+n%7} offset:{GT + 128*(n//7)}")
        for n in range(NB - 1): rd(n)
        for n in range(28):
            rd(n + NB - 1)
            s = 24 + 8 * (n % NB)
            left = min(NB - 1, 27 - n)
            a(f"s_waitcnt lgkmcnt({2*left})")
            for e in range(4): a(f"v_lshlrev_b32 v{56+2*e}, 16, v{s+e}\nv_and_b32 v{57+2*e}, 0xffff0000, v{s+e}")
            for e in range(4): a(f"v_pk_mul_f32 {P(56+2*e)}, {P(56+2*e)}, {P(s+4)} op_sel_hi:[1,0]")
            for e in range(4): a(f"v_cvt_pk_bf16_f32 v{s+e}, v{56+2*e}, v{57+2*e}")
            a(f"ds_write_b128 v7, v[{s}:{s+3}] offset:{1024*n}")
        a("s_waitcnt lgkmcnt(0)\ns_barrier")

    def g1_x_load(self):
        a = self.a
        a(f"""
        s_lshl_b32 s60, s74, 2
        s_add_u32 s60, s60, {sWV}
        s_lshl_b32 s60, s60, 15
        s_add_u32 s60, s60, {WS_X1}
        v_lshlrev_b32 v4, 4, v1
        """)
        for k in range(16):
            for h in range(2):
                a(f"buffer_load_dwordx4 v[{64+8*k+4*h}:{67+8*k+4*h}], v4, {WS}, s60 offen offset:{(2*k+h)%4*1024}{self.sc}")
            if k % 2 == 1 and k < 15: a("s_add_u32 s60, s60, 4096")

    def g1_main(self, later):
        a = self.a
        for r in range(12, 16): a(f"v_mov_b32 v{r}, 0x3f803f80")
        NR = 8
        Wr = lambda n: 16 + 4 * (n % NR)
        def rd(n):
            if n < 112:
                k, ft = divmod(n, 7)
                b = "v10" if k < 8 else "v11"
                o = (k % 8) * 7168 + 32 * ft
                a(f"ds_read_b64_tr_b16 v[{Wr(n)}:{Wr(n)+1}], {b} offset:{o}\nds_read_b64_tr_b16 v[{Wr(n)+2}:{Wr(n)+3}], {b} offset:{o+3584}")
        D = 6
        for n in range(D): rd(n)
        for k in range(16):
            x = 64 + 8 * k
            a(f"s_waitcnt vmcnt({later + 30 - 2*k})")
            a(f"v_swap_b32 v{x+2}, v{x+4}\nv_swap_b32 v{x+3}, v{x+5}")
            for ft in range(7):
                n = 7 * k + ft
                rd(n + D)
                a(f"s_waitcnt lgkmcnt({2*min(D, 111-n)})")
                for t in range(2):
                    d = 192 + 8 * ft + 4 * t
                    c = "0" if k == 0 else f"v[{d}:{d+3}]"
                    a(f"v_mfma_f32_16x16x32_bf16 v[{d}:{d+3}], v[{Wr(n)}:{Wr(n)+3}], v[{x+4*t}:{x+4*t+3}], {c}")
                if ft in (2, 4):
                    t = (ft - 2) // 2
                    for j, A in ((0, "v[12:15]"), (1, f"v[{x+4*t}:{x+4*t+3}]")):
                        d = 48 + 8 * t + 4 * j
                        c = "0" if k == 0 else f"v[{d}:{d+3}]"
                        a(f"v_mfma_f32_16x16x32_bf16 v[{d}:{d+3}], {A}, v[{x+4*t}:{x+4*t+3}], {c}")

    def g1_epilogue(self, tb):
        a = self.a
        U = tb + 4096
        P = lambda r: f"v[{r}:{r+1}]"
        a("v_lshlrev_b32 v4, 4, v3")
        for ft in range(7):
            a(f"ds_read_b128 v[{64+8*ft}:{67+8*ft}], v4 offset:{U + 64*ft}\nds_read_b128 v[{68+8*ft}:{71+8*ft}], v4 offset:{U + 512 + 64*ft}")
        a("""
        v_lshrrev_b32 v5, 2, v2
        v_lshl_add_u32 v5, v5, 4, v2
        v_lshlrev_b32 v5, 2, v5
        v_and_b32 v6, 3, v1
        v_cmp_eq_u32 s[60:61], 1, v6
        v_cmp_eq_u32 s[62:63], 2, v6
        v_cmp_eq_u32 s[64:65], 3, v6
        """)
        for t in range(2):
            g = 52 + 8 * t
            a(f"v_cndmask_b32 v{g}, v{g}, v{g+1}, s[60:61]\nv_cndmask_b32 v{g}, v{g}, v{g+2}, s[62:63]\nv_cndmask_b32 v{g}, v{g}, v{g+3}, s[64:65]")
            a(f"ds_bpermute_b32 v{g}, v5, v{g}")
        a("s_waitcnt lgkmcnt(0)")
        for t in range(2):
            sm, g, o = 48 + 8 * t, 52 + 8 * t, 16 + 4 * t
            a(f"""
            v_mul_f32 v{sm}, 0x3b000000, v{sm}
            v_mul_f32 v{sm+1}, v{sm}, v{sm}
            v_mov_b32 v{sm+2}, 0x3b000000
            v_fma_f32 v{g}, v{g}, v{sm+2}, -v{sm+1}
            v_max_f32 v{g}, 0, v{g}
            v_add_f32 v{g}, 0x3727c5ac, v{g}
            v_rsq_f32 v{o}, v{g}
            v_mul_f32 v{o+1}, v{sm}, v{o}
            v_sub_f32 v{o+1}, 0, v{o+1}
            """)
        a(f"""
        v_mov_b32 v24, {NLOG2E}
        v_mov_b32 v26, 1.0
        s_lshl_b32 s60, s74, 1
        s_lshr_b32 s61, {sWV}, 1
        s_add_u32 s60, s60, s61
        s_mul_i32 s60, s60, 56
        s_lshr_b32 s61, s75, 1
        s_mul_i32 s61, s61, 7
        s_add_u32 s60, s60, s61
        s_lshl_b32 s60, s60, 12
        s_and_b32 s61, {sWV}, 1
        s_lshl_b32 s61, s61, 11
        s_add_u32 s60, s60, s61
        s_add_u32 s60, s60, {WS_H}
        s_and_b32 s61, s75, 1
        s_mul_i32 s62, s61, {3*4096}
        s_add_u32 s62, s62, s60
        s_lshl_b32 s61, s61, 9
        s_add_u32 s61, s61, s60
        s_add_u32 s61, s61, {6*4096}
        v_lshlrev_b32 v4, 4, v1
        v_lshlrev_b32 v5, 3, v1
        """)
        for ft in range(7):
            for t in range(2):
                d, o = 192 + 8 * ft + 4 * t, 16 + 4 * t
                u1, u2 = 64 + 8 * ft, 68 + 8 * ft
                w = 28 + 8 * t
                dst = 128 + 8 * (ft // 2) + 4 * t + 2 * (ft % 2)
                for h in range(2): a(f"v_pk_fma_f32 {P(w+2*h)}, {P(u1+2*h)}, {P(o)}, {P(u2+2*h)} op_sel:[0,1,0] op_sel_hi:[1,1,1]")
                for h in range(2): a(f"v_pk_fma_f32 {P(d+2*h)}, {P(d+2*h)}, {P(o)}, {P(w+2*h)} op_sel_hi:[1,0,1]")
                for h in range(2): a(f"v_pk_mul_f32 {P(w+2*h)}, {P(d+2*h)}, {P(24)} op_sel_hi:[1,0]")
                for r in range(4): a(f"v_exp_f32 v{w+r}, v{w+r}")
                for h in range(2): a(f"v_pk_add_f32 {P(w+2*h)}, {P(w+2*h)}, {P(26)} op_sel_hi:[1,0]")
                for r in range(4): a(f"v_rcp_f32 v{w+r}, v{w+r}")
                for h in range(2): a(f"v_pk_mul_f32 {P(d+2*h)}, {P(d+2*h)}, {P(w+2*h)}")
                for h in range(2): a(f"v_cvt_pk_bf16_f32 v{dst+h}, v{d+2*h}, v{d+2*h+1}")
                if ft % 2 == 1:
                    b = dst - 2
                    a(f"buffer_store_dwordx4 v[{b}:{b+3}], v4, {WS}, s62 offen offset:{1024*t}{self.sc}")
                elif ft == 6:
                    a(f"buffer_store_dwordx2 v[{dst}:{dst+1}], v5, {WS}, s61 offen offset:{1024*t}{self.sc}")
            if ft in (1, 3): a("s_add_u32 s62, s62, 4096")

    def g2_ids(self):
        self.a(f"""
        s_lshr_b32 s76, {sM}, 3
        s_lshl_b32 s60, {sX}, 2
        s_add_u32 s76, s76, s60
        s_and_b32 s77, {sM}, 7
        """)

    def g2_w2_load(self, k0=0, k1=14):
        a = self.a
        a(f"""
        s_mul_i32 s60, s77, 56
        s_mul_i32 s61, {sWV}, 14
        s_add_u32 s60, s60, s61
        s_add_u32 s60, s60, {k0}
        s_lshl_b32 s60, s60, 12
        s_add_u32 s60, s60, {WS_W2P}
        v_lshlrev_b32 v4, 4, v1
        """)
        for k in range(k0, k1):
            for dt in range(4):
                a(f"buffer_load_dwordx4 a[{16*k+4*dt}:{16*k+4*dt+3}], v4, {WS}, s60 offen offset:{1024*dt}{self.sc}")
            if k < k1 - 1: a("s_add_u32 s60, s60, 4096")

    def g2_epi_load(self):
        a = self.a
        a(f"""
        s_lshl_b32 s60, s77, 8
        s_add_u32 s60, s60, {WS_MOD + 5*2048}
        v_lshl_add_u32 v5, v1, 2, s60
        s_mov_b32 s61, 12288
        s_mov_b32 s62, {2*12288}
        s_mov_b32 s63, {3*12288}
        buffer_load_dword v16, v5, {WS}, 0 offen{self.sc}
        buffer_load_dword v17, v5, {WS}, s61 offen{self.sc}
        buffer_load_dword v18, v5, {WS}, s62 offen{self.sc}
        buffer_load_dword v19, v5, {WS}, s63 offen{self.sc}
        s_lshl_b32 s60, s76, 1
        s_lshr_b32 s61, {sWV}, 1
        s_add_u32 s60, s60, s61
        s_lshl_b32 s60, s60, 15
        s_lshl_b32 s61, s77, 12
        s_add_u32 s60, s60, s61
        s_and_b32 s61, {sWV}, 1
        s_lshl_b32 s61, s61, 3
        s_add_u32 s60, s60, s61
        s_add_u32 s60, s60, {WS_X1}
        v_and_b32 v2, 15, v1
        v_lshrrev_b32 v3, 4, v1
        v_lshlrev_b32 v5, 9, v3
        v_lshl_add_u32 v5, v2, 4, v5
        """)
        for p in range(2):
            for h in range(2):
                a(f"buffer_load_dwordx2 v[{20+4*p+2*h}:{21+4*p+2*h}], v5, {WS}, s60 offen offset:{2048*p + 256*h}{self.sc}")

    HR = 10
    def g2_h_issue(self, k):
        a = self.a
        r = 32 + 16 * (k % self.HR)
        for st in range(4):
            if k % 7 == 6:
                a(f"buffer_load_dwordx2 v[{r+4*st}:{r+4*st+1}], v7, {WS}, s78 offen offset:{1024*st}{self.sc}")
                a(f"buffer_load_dwordx2 v[{r+4*st+2}:{r+4*st+3}], v7, {WS}, s78 offen offset:{1024*st+512}{self.sc}")
            else:
                a(f"buffer_load_dwordx4 v[{r+4*st}:{r+4*st+3}], v6, {WS}, s78 offen offset:{1024*st}{self.sc}")
        a("s_add_u32 s78, s78, 4096")

    def g2_main(self):
        a = self.a
        a(f"""
        s_mul_i32 s78, s76, 56
        s_mul_i32 s61, {sWV}, 14
        s_add_u32 s78, s78, s61
        s_lshl_b32 s78, s78, 12
        s_add_u32 s78, s78, {WS_H}
        v_lshlrev_b32 v6, 4, v1
        v_lshlrev_b32 v7, 3, v1
        """)
        cnt = lambda k: 8 if k % 7 == 6 else 4
        for k in range(self.HR): self.g2_h_issue(k)
        issued = self.HR
        for k in range(14):
            a(f"s_waitcnt vmcnt({sum(cnt(j) for j in range(k+1, issued))})")
            r = 32 + 16 * (k % self.HR)
            for st in range(4):
                for dt in range(4):
                    d = 192 + 16 * st + 4 * dt
                    c = "0" if k == 0 else f"v[{d}:{d+3}]"
                    a(f"v_mfma_f32_16x16x32_bf16 v[{d}:{d+3}], a[{16*k+4*dt}:{16*k+4*dt+3}], v[{r+4*st}:{r+4*st+3}], {c}")
            if issued < 14:
                self.g2_h_issue(issued); issued += 1

    def g2_epilogue(self, rb, tb):
        a = self.a
        P = lambda r: f"v[{r}:{r+1}]"
        a(f"""
        v_add_f32 v16, v16, v17
        v_add_f32 v18, v18, v19
        v_add_f32 v16, v16, v18
        v_cvt_pk_bf16_f32 v16, v16, v16
        v_and_b32 v16, 0xffff0000, v16
        s_lshl_b32 s60, {sWV}, 8
        s_add_u32 s60, s60, {tb}
        v_lshl_add_u32 v5, v1, 2, s60
        ds_write_b32 v5, v16
        v_lshl_add_u32 v5, v3, 5, s60
        s_lshl_b32 s60, {sWV}, 12
        s_add_u32 s60, s60, {rb}
        v_lshl_add_u32 v4, v1, 4, s60
        s_lshl_b32 s60, {sWV}, 14
        s_add_u32 s60, s60, {rb}
        v_lshl_add_u32 v6, v1, 4, s60
        """)
        for st in range(4):
            for dt in range(4):
                d = 192 + 16 * st + 4 * dt
                a(f"ds_write_b128 v4, v[{d}:{d+3}] offset:{16384*st + 1024*dt}")
        for p in range(2):
            for h in range(2):
                a(f"ds_read_b128 v[{32+8*p+4*h}:{35+8*p+4*h}], v5 offset:{128*p + 16*h}")
        a(f"""
        s_lshl_b32 s60, s76, 16
        s_lshl_b32 s61, {sWV}, 14
        s_add_u32 s60, s60, s61
        s_lshl_b32 s61, s77, 7
        s_add_u32 s60, s60, s61
        v_lshlrev_b32 v7, 10, v2
        v_lshl_add_u32 v7, v3, 4, v7
        s_waitcnt lgkmcnt(0)
        s_barrier
        """)
        for dt in range(4):
            for src in range(4):
                r = 64 + 16 * dt + 4 * src
                a(f"ds_read_b128 v[{r}:{r+3}], v6 offset:{4096*src + 1024*dt}")
        for dt in range(4):
            r = 64 + 16 * dt
            a(f"s_waitcnt lgkmcnt({12 - 4*dt})")
            for h in range(2): a(f"v_pk_add_f32 {P(r+2*h)}, {P(r+2*h)}, {P(r+4+2*h)}\nv_pk_add_f32 {P(r+8+2*h)}, {P(r+8+2*h)}, {P(r+12+2*h)}")
            x = 20 + 2 * dt
            a(f"""
            v_lshlrev_b32 v48, 16, v{x}
            v_and_b32 v49, 0xffff0000, v{x}
            v_lshlrev_b32 v50, 16, v{x+1}
            v_and_b32 v51, 0xffff0000, v{x+1}
            """)
            for h in range(2): a(f"v_pk_add_f32 {P(r+2*h)}, {P(r+2*h)}, {P(r+8+2*h)}")
            for h in range(2): a(f"v_pk_fma_f32 {P(r+2*h)}, {P(r+2*h)}, {P(32+4*dt+2*h)}, {P(48+2*h)}")
            for h in range(2): a(f"v_cvt_pk_bf16_f32 v{52+2*dt+h}, v{r+2*h}, v{r+2*h+1}")
            if dt % 2 == 1:
                b = 52 + 2 * (dt - 1)
                a(f"buffer_store_dwordx4 v[{b}:{b+3}], v7, {OUT}, s60 offen offset:{32*(dt-1)}")

def build_split():
    g = G(sc=False)
    a = g.a
    hdr = [f"; @launch kernel=k1_kernel grid=(256,1,1) block=(256,1,1) lds=4096"]
    a.raw('.amdgcn_target "amdgcn-amd-amdhsa--gfx950"\n.text')
    g.entry("k1_kernel", [0, 1, 2, 3, 7, 8, 9, 11])
    g.p_loads()
    g.p_kv(0)
    g.p_q(2)
    g.p_stats(4)
    g.p_gemv(5, 0)
    g.p_w2(0)
    g.exit("k1_kernel")
    hdr.append("; @launch kernel=k2_kernel grid=(256,1,1) block=(256,1,1) lds=49152")
    g.entry("k2_kernel", [4, 5, 11])
    g.c_ids()
    g.c_filter_load(16)
    g.c_filter_prep(16, 2048, 0)
    g.c_u_load()
    g.c_epi_load()
    g.c_main(14)
    g.c_epilogue(2048 + 4 * G.FSZ)
    g.exit("k2_kernel")
    hdr.append("; @launch kernel=k3_kernel grid=(256,1,1) block=(256,1,1) lds=163840")
    g.entry("k3_kernel", [6, 11])
    g.g1_ids()
    g.g1_w1_load(16)
    g.g1_mod_load(32)
    a("s_waitcnt vmcnt(0)")
    g.g1_x_load()
    g.g1_prep(32, 0, 32)
    g.g1_main(0)
    g.g1_epilogue(0)
    g.exit("k3_kernel")
    hdr.append("; @launch kernel=k4_kernel grid=(256,1,1) block=(256,1,1) lds=66560")
    g.entry("k4_kernel", [10, 11])
    g.g2_ids()
    g.g2_epi_load()
    g.g2_w2_load(0, 13)
    a("s_waitcnt vmcnt(40)")
    g.g2_w2_load(13, 14)
    a("s_waitcnt vmcnt(16)")
    g.g2_main()
    g.g2_epilogue(0, 65536)
    g.exit("k4_kernel")
    a.raw('.section .rodata,"a"')
    a.raw(desc("k1_kernel", 160, 160))
    a.raw(desc("k2_kernel", 512, 256))
    a.raw(desc("k3_kernel", 256, 256))
    a.raw(desc("k4_kernel", 512, 256))
    return "\n".join(hdr) + "\n" + a.text()

if __name__ == "__main__":
    open(sys.argv[1], "w").write(build_split())
```

```python
import sys
from asmlib import Asm, desc

NAME = "adaLN_cond__ssm_conv_h3__dense_activation_silu__prompt"
MB = 1 << 20
WS_KVT, WS_QT, WS_X1, WS_H, WS_W2P = 0, 2 * MB, 4 * MB, 6 * MB, 14 * MB
WS_STAT, WS_MOD, WS_FLAG = 16 * MB, 16 * MB + 65536, 17 * MB
WS_SIZE = 32 * MB
LOG2E = 0x3fb8aa3b
NLOG2E = 0xbfb8aa3b

Q, K, V, SK, FK, SD, W1, W2, C, WM, OUT, WS, DBG = [f"s[{8+4*i}:{11+4*i}]" for i in range(13)]
SPIN = 1 << 21
SRD_INFO = [
    (8, 0, 2 * MB), (12, 8, 2 * MB), (16, 16, 2 * MB), (20, 24, 4096), (24, 32, 2 * MB), (28, 40, 1024),
    (32, 56, 512 * 1792 * 2), (36, 64, 512 * 1792 * 2), (40, 72, 1024), (44, 80, 512 * 3072 * 2),
    (48, 88, 2 * MB), (52, 104, WS_SIZE), (56, 96, 256)]
sX, sM, sWV = "s3", "s4", "s5"

WS_DIAG = 24 * MB
class G:
    def __init__(self, sc, diag=False):
        self.a = Asm()
        self.sc = " sc1" if sc else ""
        self.diag = diag
        self.nst = 0
        self.kidx = 0

    def stamp(self):
        if not self.diag: return
        assert self.nst < 16
        op = "s_memtime" if self.diag == "cyc" else "s_memrealtime"
        self.a(f"{op} s[98:99]\ns_waitcnt lgkmcnt(0)\ns_mov_b32 s{82+self.nst}, s98")
        self.nst += 1

    def flush_stamps(self):
        if not self.diag: return
        a = self.a
        self.stamp()
        a(f"s_waitcnt vmcnt(0)")
        self.stamp()
        a(f"s_lshl_b32 s60, s2, 2\ns_add_u32 s60, s60, {sWV}\ns_lshl_b32 s60, s60, 6\ns_add_u32 s60, s60, {WS_DIAG + self.kidx*65536}\nv_mov_b32 v4, s60")
        for i in range(self.nst): a(f"v_mov_b32 v5, s{82+i}\nbuffer_store_dword v5, v4, {WS}, 0 offen offset:{4*i}")
        self.nst = 0; self.kidx += 1

    def entry(self, name, srds):
        a = self.a
        a.raw(f".globl {name}\n.p2align 8\n.type {name},@function")
        a.label(name)
        a.fence()
        a(f"s_cmp_ge_u32 s2, 256\ns_cbranch_scc1 L_end_{name}")
        self.stamp()
        for i in srds:
            s, off, n = SRD_INFO[i]
            a(f"s_load_dwordx2 s[{s}:{s+1}], s[0:1], {off}")
        a("v_lshrrev_b32 v2, 6, v0\nv_and_b32 v1, 63, v0")
        for i in srds:
            s, off, n = SRD_INFO[i]
            a(f"s_mov_b32 s{s+2}, {n}\ns_mov_b32 s{s+3}, 0x00020000")
        a(f"v_readfirstlane_b32 {sWV}, v2")
        a(f"s_and_b32 {sX}, s2, 7\ns_lshr_b32 {sM}, s2, 3")
        a("s_waitcnt lgkmcnt(0)")
        self.stamp()

    def exit(self, name):
        self.flush_stamps()
        self.a.label(f"L_end_{name}")
        self.a("s_endpgm")

    def nonce_start(self):
        a = self.a
        a(f"""
        s_or_b32 s60, s2, {sWV}
        s_cmp_lg_u32 s60, 0
        s_cbranch_scc1 L_nonce_skip
        s_memrealtime s[60:61]
        s_waitcnt lgkmcnt(0)
        s_or_b32 s61, s61, 0x40000000
        v_mov_b32 v4, 0
        v_mov_b32 v6, s60
        v_mov_b32 v7, s61
        s_mov_b64 s[62:63], exec
        s_mov_b64 exec, 1
        buffer_store_dwordx2 v[6:7], v4, {DBG}, 0 offen sc1
        s_mov_b64 exec, s[62:63]
        s_waitcnt vmcnt(0)
        L_nonce_skip:
        """)

    def nonce_get(self):
        a = self.a
        a(f"""
        v_mov_b32 v4, 0
        s_mov_b32 s62, 0
        L_nonce_poll:
        buffer_load_dwordx2 v[6:7], v4, {DBG}, 0 offen sc1
        s_add_u32 s62, s62, 1
        s_waitcnt vmcnt(0)
        v_readfirstlane_b32 s80, v6
        v_readfirstlane_b32 s81, v7
        s_cmp_gt_u32 s62, {SPIN}
        s_cbranch_scc1 L_nonce_ok
        s_cmp_eq_u32 s81, 0
        s_cbranch_scc1 L_nonce_poll
        L_nonce_ok:
        """)

    def signal(self, ph, replicas):
        a = self.a
        a(f"""
        s_waitcnt vmcnt(0)
        s_barrier
        s_cmp_lg_u32 {sWV}, 0
        s_cbranch_scc1 L_sig{ph}_skip
        s_lshl_b32 s60, s2, 3
        s_add_u32 s60, s60, {WS_FLAG + ph*65536}
        v_lshl_add_u32 v4, v1, 11, s60
        v_mov_b32 v6, s80
        v_mov_b32 v7, s81
        s_mov_b64 s[62:63], exec
        s_mov_b64 exec, {(1 << replicas) - 1}
        buffer_store_dwordx2 v[6:7], v4, {WS}, 0 offen sc1
        s_mov_b64 exec, s[62:63]
        L_sig{ph}_skip:
        """)

    def wait_all(self, ph):
        a = self.a
        a(f"""
        s_lshl_b32 s60, {sX}, 11
        s_add_u32 s60, s60, {WS_FLAG + ph*65536}
        v_lshl_add_u32 v4, v0, 3, s60
        """)
        self._poll(ph)

    def wait_group16(self, ph):
        a = self.a
        a(f"""
        s_lshr_b32 s60, {sM}, 4
        s_lshl_b32 s60, s60, 7
        s_add_u32 s60, s60, {sX}
        s_lshl_b32 s60, s60, 3
        s_add_u32 s60, s60, {WS_FLAG + ph*65536}
        v_and_b32 v4, 15, v1
        v_lshl_add_u32 v4, v4, 6, s60
        """)
        self._poll(ph)

    def _poll(self, ph):
        a = self.a
        a(f"""
        s_mov_b32 s62, 0
        L_poll{ph}:
        buffer_load_dwordx2 v[6:7], v4, {WS}, 0 offen sc1
        s_add_u32 s62, s62, 1
        s_waitcnt vmcnt(0)
        v_cmp_ne_u64 vcc, s[80:81], v[6:7]
        s_cmp_gt_u32 s62, {SPIN}
        s_cbranch_scc1 L_poll{ph}_ok
        s_cbranch_vccz L_poll{ph}_ok
        s_sleep 1
        s_branch L_poll{ph}
        L_poll{ph}_ok:
        s_barrier
        """)

    def p_loads(self):
        a = self.a
        a(f"""
        s_lshl_b32 s60, {sM}, 16
        s_lshl_b32 s61, {sX}, 7
        s_add_u32 s60, s60, s61
        s_lshl_b32 s61, {sWV}, 5
        s_add_u32 s60, s60, s61
        v_lshrrev_b32 v8, 3, v1
        v_and_b32 v9, 7, v1
        v_lshlrev_b32 v2, 13, v8
        v_lshl_add_u32 v2, v9, 2, v2
        v_add_u32 v2, s60, v2
        v_subrev_u32 v3, 3072, v2
        v_add_u32 v4, 4096, v2
        """)
        for j in range(11):
            base, off = ("v3", j * 1024) if j < 3 else ("v2", (j - 3) * 1024) if j < 7 else ("v4", (j - 7) * 1024)
            a(f"buffer_load_dword v{10+j}, {base}, {K}, 0 offen offset:{off}")
        for j in range(8):
            base, off = ("v2", j * 1024) if j < 4 else ("v4", (j - 4) * 1024)
            a(f"buffer_load_dword v{21+j}, {base}, {V}, 0 offen offset:{off}")
        a(f"""
        s_lshl_b32 s62, {sX}, 9
        s_lshl_b32 s63, {sWV}, 7
        s_add_u32 s62, s62, s63
        v_lshl_add_u32 v37, v9, 4, s62
        buffer_load_dwordx4 v[38:41], v37, {SK}, 0 offen
        """)
        for j in range(8):
            base, off = ("v2", j * 1024) if j < 4 else ("v4", (j - 4) * 1024)
            a(f"buffer_load_dword v{29+j}, {base}, {Q}, 0 offen offset:{off}")
        a(f"""
        s_lshl_b32 s60, s2, 13
        s_lshl_b32 s61, {sWV}, 11
        s_add_u32 s60, s60, s61
        v_lshrrev_b32 v5, 5, v1
        v_lshlrev_b32 v5, 10, v5
        v_and_b32 v42, 31, v1
        v_lshl_add_u32 v5, v42, 4, v5
        v_add_u32 v5, s60, v5
        buffer_load_dwordx4 v[44:47], v5, {Q}, 0 offen
        buffer_load_dwordx4 v[48:51], v5, {Q}, 0 offen offset:512
        """)
        a(f"""
        s_and_b32 s60, s2, 3
        s_lshl_b32 s60, s60, 7
        s_lshl_b32 s61, {sWV}, 5
        s_add_u32 s60, s60, s61
        v_add_u32 v42, s60, v8
        v_lshlrev_b32 v43, 1, v42
        s_movk_i32 s61, 6144
        v_mul_lo_u32 v6, v42, s61
        v_lshl_add_u32 v6, v9, 4, v6
        s_lshr_b32 s60, s2, 2
        s_lshl_b32 s60, s60, 7
        s_cmp_ge_u32 s2, 192
        s_cselect_b32 s60, 0x40000000, s60
        v_add_u32 v6, s60, v6
        s_mov_b32 s61, {8*6144}
        s_mov_b32 s62, {16*6144}
        s_mov_b32 s63, {24*6144}
        buffer_load_ushort v68, v43, {C}, 0 offen
        buffer_load_ushort v69, v43, {C}, 0 offen offset:16
        buffer_load_ushort v70, v43, {C}, 0 offen offset:32
        buffer_load_ushort v71, v43, {C}, 0 offen offset:48
        buffer_load_dwordx4 v[52:55], v6, {WM}, 0 offen
        buffer_load_dwordx4 v[56:59], v6, {WM}, s61 offen
        buffer_load_dwordx4 v[60:63], v6, {WM}, s62 offen
        buffer_load_dwordx4 v[64:67], v6, {WM}, s63 offen
        """)
        a(f"""
        s_lshr_b32 s60, {sWV}, 1
        s_lshl_b32 s61, s2, 1
        s_add_u32 s60, s60, s61
        s_lshr_b32 s64, s60, 3
        s_and_b32 s65, s60, 7
        s_mul_i32 s61, s64, 37
        s_lshr_b32 s61, s61, 8
        s_mul_i32 s62, s61, 7
        s_sub_u32 s62, s64, s62
        s_mul_i32 s61, s61, 224
        s_lshl_b32 s63, s62, 5
        s_add_u32 s66, s63, 16
        s_cmp_ge_u32 s62, 3
        s_cselect_b32 s63, s66, s63
        s_movk_i32 s66, {16*1024}
        s_cmp_eq_u32 s62, 6
        s_cselect_b32 s63, 96, s63
        s_cselect_b32 s66, {112*1024}, s66
        s_add_u32 s61, s61, s63
        s_and_b32 s62, {sWV}, 1
        s_lshl_b32 s62, s62, 3
        s_add_u32 s61, s61, s62
        s_lshl_b32 s61, s61, 10
        s_lshl_b32 s62, s65, 7
        s_add_u32 s61, s61, s62
        s_cmp_ge_u32 s60, 448
        s_cselect_b32 s61, 0x40000000, s61
        v_lshrrev_b32 v42, 5, v1
        v_lshlrev_b32 v42, 12, v42
        v_and_b32 v43, 31, v1
        v_lshl_add_u32 v7, v43, 2, v42
        v_add_u32 v7, s61, v7
        """)
        for e in range(8):
            so = "0" if e < 4 else "s66"
            a(f"buffer_load_dword v{72+e}, v7, {W2}, {so} offen offset:{(e&3)*1024}")

    def p_kv(self, later):
        a = self.a
        a(f"s_waitcnt vmcnt({later + 8 + 2 + 8 + 8})")
        for j in range(11):
            a(f"v_lshlrev_b32 v{80+2*j}, 16, v{10+j}\nv_and_b32 v{81+2*j}, 0xffff0000, v{10+j}")
        a("""
        v_lshlrev_b32 v102, 16, v38
        v_lshlrev_b32 v103, 16, v40
        v_and_b32 v104, 0xffff0000, v38
        v_and_b32 v105, 0xffff0000, v40
        v_lshlrev_b32 v106, 16, v39
        v_lshlrev_b32 v107, 16, v41
        v_and_b32 v108, 0xffff0000, v39
        v_and_b32 v109, 0xffff0000, v41
        """)
        for i in range(8):
            a(f"v_lshlrev_b32 v{126+2*i}, 16, v{21+i}\nv_and_b32 v{127+2*i}, 0xffff0000, v{21+i}")
        P = lambda r: f"v[{r}:{r+1}]"
        for i in range(8): a(f"v_pk_mul_f32 {P(110+2*i)}, {P(80+2*i)}, {P(108)}")
        for i in range(8): a(f"v_pk_fma_f32 {P(110+2*i)}, {P(82+2*i)}, {P(106)}, {P(110+2*i)}")
        for i in range(8): a(f"v_pk_fma_f32 {P(110+2*i)}, {P(84+2*i)}, {P(104)}, {P(110+2*i)}")
        for i in range(8): a(f"v_pk_fma_f32 {P(110+2*i)}, {P(86+2*i)}, {P(102)}, {P(110+2*i)}")
        for i in range(8): a(f"v_pk_mul_f32 {P(110+2*i)}, {P(110+2*i)}, {P(126+2*i)}")
        for j in range(4):
            a(f"v_cvt_pk_bf16_f32 v{144+j}, v{110+2*(7-2*j)}, v{110+2*(6-2*j)}")
            a(f"v_cvt_pk_bf16_f32 v{148+j}, v{111+2*(7-2*j)}, v{111+2*(6-2*j)}")
        a(f"""
        s_lshl_b32 s60, {sX}, 18
        s_lshl_b32 s61, {sWV}, 16
        s_add_u32 s60, s60, s61
        s_lshl_b32 s61, {sM}, 7
        v_lshlrev_b32 v142, 13, v9
        v_add_u32 v142, s60, v142
        v_lshl_add_u32 v143, v8, 4, s61
        v_add_u32 v152, v142, v143
        v_sub_u32 v142, v142, v143
        v_add_u32 v142, {WS_KVT + 4080}, v142
        v_add_u32 v152, {WS_QT}, v152
        s_movk_i32 s67, 4096
        buffer_store_dwordx4 v[144:147], v142, {WS}, 0 offen{self.sc}
        buffer_store_dwordx4 v[148:151], v142, {WS}, s67 offen{self.sc}
        """)

    def p_q(self, later):
        a = self.a
        a(f"s_waitcnt vmcnt({later + 2 + 8 + 8})")
        a("s_mov_b32 s60, 0x05040100\ns_mov_b32 s61, 0x07060302")
        for j in range(4):
            a(f"v_perm_b32 v{80+j}, v{30+2*j}, v{29+2*j}, s60")
            a(f"v_perm_b32 v{84+j}, v{30+2*j}, v{29+2*j}, s61")
        a(f"""
        buffer_store_dwordx4 v[80:83], v152, {WS}, 0 offen{self.sc}
        buffer_store_dwordx4 v[84:87], v152, {WS}, s67 offen{self.sc}
        """)

    def reduce32(self, r, t):
        a = self.a
        for n in (8, 4, 2, 1):
            a(f"v_add_f32_dpp v{r}, v{r}, v{r} row_ror:{n} row_mask:0xf bank_mask:0xf")
        a(f"v_mov_b32 v{t}, v{r}\nv_permlane16_swap_b32 v{r}, v{t}\nv_add_f32 v{r}, v{r}, v{t}")

    def p_stats(self, later):
        a = self.a
        a(f"s_waitcnt vmcnt({later + 8 + 8})")
        P = lambda r: f"v[{r}:{r+1}]"
        for j in range(8):
            a(f"v_lshlrev_b32 v{90+2*j}, 16, v{44+j}\nv_and_b32 v{91+2*j}, 0xffff0000, v{44+j}")
        for j in range(4): a(f"v_pk_add_f32 {P(110+2*j)}, {P(90+4*j)}, {P(92+4*j)}")
        a(f"v_pk_add_f32 {P(110)}, {P(110)}, {P(112)}\nv_pk_add_f32 {P(114)}, {P(114)}, {P(116)}\nv_pk_add_f32 {P(110)}, {P(110)}, {P(114)}")
        a("v_add_f32 v110, v110, v111")
        self.reduce32(110, 111)
        a("v_mul_f32 v118, 0xbb000000, v110\nv_mov_b32 v119, v118")
        for j in range(8): a(f"v_pk_add_f32 {P(90+2*j)}, {P(90+2*j)}, {P(118)}")
        a(f"v_pk_mul_f32 {P(110)}, {P(90)}, {P(90)}\nv_pk_mul_f32 {P(112)}, {P(92)}, {P(92)}")
        for j in range(2, 8): a(f"v_pk_fma_f32 {P(110+2*(j&1))}, {P(90+2*j)}, {P(90+2*j)}, {P(110+2*(j&1))}")
        a(f"v_pk_add_f32 {P(110)}, {P(110)}, {P(112)}\nv_add_f32 v110, v110, v111")
        self.reduce32(110, 111)
        a(f"""
        v_mov_b32 v111, 0x3727c5ac
        v_fmac_f32 v111, 0x3b000000, v110
        v_rsq_f32 v121, v111
        s_lshl_b32 s60, s2, 5
        s_lshl_b32 s61, {sWV}, 3
        s_add_u32 s60, s60, s61
        s_add_u32 s60, s60, {WS_STAT}
        v_mul_f32 v120, v118, v121
        v_lshrrev_b32 v112, 5, v1
        v_lshl_add_u32 v112, v112, 2, s60
        v_and_b32 v113, 1, v1
        v_lshl_add_u32 v112, v113, 13, v112
        v_cmp_eq_u32 vcc, 1, v113
        v_cndmask_b32 v121, v121, v120, vcc
        v_and_b32 v113, 30, v1
        v_cmp_eq_u32 vcc, 0, v113
        s_and_saveexec_b64 s[62:63], vcc
        buffer_store_dword v121, v112, {WS}, 0 offen{self.sc}
        s_mov_b64 exec, s[62:63]
        """)

    def p_gemv(self, later, lds):
        a = self.a
        a(f"s_waitcnt vmcnt({later + 8})")
        P = lambda r: f"v[{r}:{r+1}]"
        for j in range(4): a(f"v_lshlrev_b32 v{68+j}, 16, v{68+j}")
        for j in range(4): a(f"v_mul_f32 v{90+j}, {NLOG2E}, v{68+j}")
        for j in range(4): a(f"v_exp_f32 v{90+j}, v{90+j}")
        for j in range(4): a(f"v_add_f32 v{90+j}, 1.0, v{90+j}")
        for j in range(4): a(f"v_rcp_f32 v{90+j}, v{90+j}")
        for j in range(4): a(f"v_mul_f32 v{90+j}, v{68+j}, v{90+j}")
        for j in range(4): a(f"v_cvt_pk_bf16_f32 v{90+j}, v{90+j}, v{90+j}")
        for j in range(4): a(f"v_and_b32 v{94+2*j}, 0xffff0000, v{90+j}\nv_and_b32 v{95+2*j}, 0xffff0000, v{90+j}")
        for j in range(4):
            for e in range(4):
                a(f"v_lshlrev_b32 v{110+2*e}, 16, v{52+4*j+e}\nv_and_b32 v{111+2*e}, 0xffff0000, v{52+4*j+e}")
            for e in range(4):
                if j == 0: a(f"v_pk_mul_f32 {P(120+2*e)}, {P(110+2*e)}, {P(94)}")
                else: a(f"v_pk_fma_f32 {P(120+2*e)}, {P(110+2*e)}, {P(94+2*j)}, {P(120+2*e)}")
        for e in range(8):
            a(f"v_add_f32_dpp v{120+e}, v{120+e}, v{120+e} row_ror:8 row_mask:0xf bank_mask:0xf")
        a(f"""
        v_lshrrev_b32 v110, 4, v0
        v_lshlrev_b32 v110, 8, v110
        v_lshl_add_u32 v110, v9, 5, v110
        ds_write_b128 v110, v[120:123] offset:{lds}
        ds_write_b128 v110, v[124:127] offset:{lds+16}
        s_waitcnt lgkmcnt(0)
        s_barrier
        s_cmp_lg_u32 {sWV}, 0
        s_cbranch_scc1 L_gemv_done
        v_lshlrev_b32 v110, 2, v1
        """)
        for r in range(16): a(f"ds_read_b32 v{112+r}, v110 offset:{lds + 256*r}")
        a("s_waitcnt lgkmcnt(0)")
        for st in (8, 4, 2, 1):
            for r in range(st): a(f"v_add_f32 v{112+r}, v{112+r}, v{112+r+st}")
        a(f"""
        s_and_b32 s60, s2, 3
        s_mul_i32 s60, s60, 12288
        s_lshr_b32 s61, s2, 2
        s_lshl_b32 s61, s61, 8
        s_add_u32 s60, s60, s61
        s_add_u32 s60, s60, {WS_MOD}
        s_cmp_ge_u32 s2, 192
        s_cselect_b32 s60, 0x40000000, s60
        v_add_u32 v110, s60, v110
        buffer_store_dword v112, v110, {WS}, 0 offen{self.sc}
        L_gemv_done:
        """)

    def p_w2(self, later):
        a = self.a
        a(f"s_waitcnt vmcnt({later})")
        a("s_mov_b32 s60, 0x05040100\ns_mov_b32 s61, 0x07060302")
        for j in range(4):
            a(f"v_perm_b32 v{132+j}, v{73+2*j}, v{72+2*j}, s60")
            a(f"v_perm_b32 v{136+j}, v{73+2*j}, v{72+2*j}, s61")
        a(f"""
        s_mul_i32 s60, s65, 56
        s_add_u32 s60, s60, s64
        s_lshl_b32 s60, s60, 12
        s_and_b32 s61, {sWV}, 1
        s_lshl_b32 s61, s61, 9
        s_add_u32 s60, s60, s61
        s_add_u32 s60, s60, {WS_W2P}
        s_cmp_ge_u32 s64, 56
        s_cselect_b32 s60, 0x40000000, s60
        v_lshrrev_b32 v140, 5, v1
        v_lshlrev_b32 v140, 8, v140
        v_bfe_u32 v141, v1, 4, 1
        v_lshl_add_u32 v140, v141, 11, v140
        v_bfe_u32 v141, v1, 1, 1
        v_lshl_add_u32 v140, v141, 10, v140
        v_bfe_u32 v141, v1, 2, 2
        v_lshl_add_u32 v140, v141, 6, v140
        v_and_b32 v141, 1, v1
        v_lshl_add_u32 v140, v141, 5, v140
        v_add_u32 v140, s60, v140
        buffer_store_dwordx4 v[132:135], v140, {WS}, 0 offen{self.sc}
        buffer_store_dwordx4 v[136:139], v140, {WS}, 0 offen offset:16{self.sc}
        """)

    FSZ = 8320
    def c_ids(self):
        self.a(f"""
        s_lshr_b32 s70, {sM}, 1
        s_lshl_b32 s60, {sX}, 4
        s_add_u32 s70, s70, s60
        s_and_b32 s69, {sM}, 1
        s_lshl_b32 s68, s70, 2
        s_add_u32 s68, s68, {sWV}
        s_mov_b32 s71, s69
        s_sub_u32 s72, 3, s69
        """)

    def c_filter_load(self, r0):
        a = self.a
        a(f"s_lshl_b32 s60, s68, 12\nv_lshl_add_u32 v4, v1, 4, s60\nv_add_u32 v5, 2, v4")
        for i in range(4): a(f"buffer_load_dwordx4 v[{r0+4*i}:{r0+4*i+3}], v4, {FK}, 0 offen offset:{1024*i}")
        for i in range(4): a(f"buffer_load_dwordx4 v[{r0+16+4*i}:{r0+16+4*i+3}], v5, {FK}, 0 offen offset:{1024*i}")

    def Freg(self, n):
        return f"a[{4*n}:{4*n+3}]" if n < 64 else f"v[{176+4*(n-64)}:{179+4*(n-64)}]"
    def Fhalf(self, n, h):
        b = 4 * n + 2 * h
        return f"a[{b}:{b+1}]" if n < 64 else f"v[{176+b-256}:{177+b-256}]"

    def c_filter_prep(self, r0, fb, later):
        a = self.a
        a(f"""
        s_mul_i32 s73, {sWV}, {self.FSZ}
        s_add_u32 s73, s73, {fb}
        v_and_b32 v2, 15, v1
        v_lshrrev_b32 v3, 4, v1
        v_lshl_add_u32 v4, v1, 4, s73
        v_mov_b32 v6, 0
        v_mov_b32 v7, 0
        v_mov_b32 v8, 0
        v_mov_b32 v9, 0
        v_cmp_gt_u32 vcc, 4, v1
        s_and_saveexec_b64 s[62:63], vcc
        ds_write_b128 v4, v[6:9]
        ds_write_b128 v4, v[6:9] offset:4160
        s_mov_b64 exec, s[62:63]
        s_waitcnt vmcnt({later})
        """)
        for i in range(4): a(f"ds_write_b128 v4, v[{r0+4*i}:{r0+4*i+3}] offset:{64+1024*i}")
        for i in range(4): a(f"ds_write_b128 v4, v[{r0+16+4*i}:{r0+16+4*i+3}] offset:{4160+64+1024*i}")
        a(f"""
        v_cmp_eq_u32 vcc, 0, v1
        s_and_saveexec_b64 s[62:63], vcc
        ds_write_b16 v4, v{r0} offset:{4160+62}
        s_mov_b64 exec, s[62:63]
        v_and_b32 v5, 1, v2
        v_cmp_eq_u32 vcc, 1, v5
        v_mov_b32 v5, 4160
        v_cndmask_b32 v5, v5, 2, vcc
        v_lshl_add_u32 v5, v2, 1, v5
        v_and_b32 v10, 1, v3
        v_lshl_add_u32 v5, v10, 4, v5
        v_add_u32 v5, s73, v5
        v_lshrrev_b32 v10, 1, v3
        s_add_u32 s60, s71, 1
        s_lshl_b32 s60, s60, 9
        s_add_u32 s61, s72, 1
        s_lshl_b32 s61, s61, 9
        v_mad_u32_u24 v11, v10, s60, v5
        v_mad_u32_u24 v12, v10, s61, v5
        v_add_u32 v15, s60, v11
        v_mov_b32 v10, v11
        v_add_u32 v11, 512, v11
        s_cmp_eq_u32 s69, 0
        s_cselect_b64 vcc, -1, 0
        v_cndmask_b32 v11, v11, v12, vcc
        s_sub_u32 s61, 1024, s60
        v_add_u32 v12, s61, v12
        v_add_u32 v13, 512, v12
        v_add_u32 v14, 1024, v12
        """)
        for n in range(81):
            c = min(n // 16, 4)
            o = 8 * (n - 16 * c)
            a(f"ds_read2_b32 {self.Fhalf(n,0)}, v{10+c} offset0:{o} offset1:{o+1}")
            a(f"ds_read2_b32 {self.Fhalf(n,1)}, v{10+c} offset0:{o+2} offset1:{o+3}")
        a("ds_read2_b32 v[244:245], v15 offset0:0 offset1:1\nds_read2_b32 v[246:247], v15 offset0:2 offset1:3")
        a("ds_write_b128 v4, v[6:9] offset:6144\nds_write_b128 v4, v[6:9] offset:7168")
        a(f"""
        v_sub_u32 v5, 63, v2
        v_mul_u32_u24 v5, 96, v5
        v_add_u32 v5, s73, v5
        s_mul_i32 s60, s71, {16*96}
        s_mul_i32 s61, s72, {16*96}
        v_subrev_u32 v156, s60, v5
        v_subrev_u32 v157, s61, v5
        v_and_b32 v6, 1, v3
        v_lshlrev_b32 v6, 4, v6
        v_lshrrev_b32 v7, 1, v3
        s_add_u32 s60, s71, 1
        s_mul_i32 s60, s60, 768
        s_add_u32 s61, s72, 1
        s_mul_i32 s61, s61, 768
        v_mad_u32_u24 v80, v7, s60, v156
        v_mad_u32_u24 v82, v7, s61, v157
        v_add_u32 v80, v80, v6
        v_add_u32 v82, v82, v6
        v_subrev_u32 v82, s60, v82
        s_cmp_eq_u32 s69, 0
        s_cselect_b64 vcc, -1, 0
        v_cndmask_b32 v81, v80, v82, vcc
        v_lshlrev_b32 v6, 3, v3
        v_sub_u32 v6, 24, v6
        v_add_u32 v156, v156, v6
        v_add_u32 v157, v157, v6
        v_lshrrev_b32 v83, 2, v1
        v_mul_u32_u24 v83, 96, v83
        v_and_b32 v6, 3, v1
        v_lshl_add_u32 v83, v6, 4, v83
        v_add_u32 v83, s73, v83
        """)

    def c_u_load(self):
        a = self.a
        a(f"s_lshl_b32 s60, s68, 12\ns_add_u32 s60, s60, {WS_KVT}\nv_lshl_add_u32 v4, v1, 4, s60")
        for i in range(4): a(f"buffer_load_dwordx4 v[{16+4*i}:{19+4*i}], v4, {WS}, 0 offen offset:{1024*i}{self.sc}")

    def c_epi_load(self):
        a = self.a
        a(f"""
        v_lshlrev_b32 v5, 5, v2
        v_lshl_add_u32 v5, v3, 2, v5
        s_lshl_b32 s60, s68, 12
        s_add_u32 s60, s60, {WS_QT}
        v_lshl_add_u32 v6, v5, 1, s60
        v_lshlrev_b32 v7, 2, v5
        v_add_u32 v7, {WS_STAT}, v7
        v_add_u32 v8, 8192, v7
        s_lshl_b32 s60, s71, 10
        s_lshl_b32 s61, s72, 10
        s_lshl_b32 s62, s71, 11
        s_lshl_b32 s63, s72, 11
        v_and_b32 v9, 3, v1
        s_movk_i32 s64, 12288
        v_mul_u32_u24 v9, s64, v9
        v_bfe_u32 v5, v1, 2, 2
        v_lshl_add_u32 v9, v5, 11, v9
        s_lshl_b32 s64, s68, 2
        s_add_u32 s64, s64, {WS_MOD}
        v_add_u32 v9, s64, v9
        s_lshl_b32 s64, s68, 1
        v_mov_b32 v5, s64
        buffer_load_dword v148, v9, {WS}, 0 offen{self.sc}
        buffer_load_ushort v149, v5, {SD}, 0 offen
        """)
        for sl in range(2):
            for t in range(2):
                i = 2 * sl + t
                a(f"buffer_load_dwordx2 v[{100+2*i}:{101+2*i}], v6, {WS}, s{60+sl} offen offset:{32*t}{self.sc}")
                a(f"buffer_load_dwordx4 v[{108+4*i}:{111+4*i}], v7, {WS}, s{62+sl} offen offset:{64*t}{self.sc}")
                a(f"buffer_load_dwordx4 v[{124+4*i}:{127+4*i}], v8, {WS}, s{62+sl} offen offset:{64*t}{self.sc}")

    def c_main(self, later, hook=None):
        a = self.a
        a(f"s_waitcnt vmcnt({later})")
        for i in range(4): a(f"ds_write_b128 v83, v[{16+4*i}:{19+4*i}] offset:{1536*i}")
        D = 6
        off = lambda n: 96 * (n >> 1) + 32 * (n & 1)
        base = lambda n: "v80" if n < 16 else "v81" if n < 32 else "v82"
        Br = lambda n: f"v[{48+4*(n%8)}:{51+4*(n%8)}]"
        def rd(n):
            if n < 80: a(f"ds_read_b128 {Br(n)}, {base(n)} offset:{off(n)}")
        def step(n, c0="v[84:87]", c1="v[88:91]", d0="v[84:87]", d1="v[88:91]", a1=None):
            rd(n + D)
            a(f"s_waitcnt lgkmcnt({min(D, 79 - n)})")
            a(f"v_mfma_f32_16x16x32_bf16 {d0}, {self.Freg(n)}, {Br(n)}, {c0}")
            a(f"v_mfma_f32_16x16x32_bf16 {d1}, {a1 or self.Freg(n+1)}, {Br(n)}, {c1}")
            if hook: hook(n)
        for n in range(D): rd(n)
        def boundary(n, ty):
            a(f"s_cmp_eq_u32 s69, {ty}\ns_cbranch_scc0 L_cb{n}_no")
            h = list(a.hist)
            step(n, d0="v[92:95]", d1="v[96:99]", a1="v[244:247]")
            step(n + 1, c0="0", c1="0")
            a(f"s_branch L_cb{n}_done\nL_cb{n}_no:")
            a.hist = h
            step(n); step(n + 1)
            a(f"L_cb{n}_done:")
            a("s_nop 0")
        step(0, c0="0", c1="0")
        for n in range(1, 15): step(n)
        boundary(15, 0)
        for n in range(17, 31): step(n)
        boundary(31, 1)
        for n in range(33, 80): step(n)

    XI_RS = 2368
    def c_epilogue(self, xi, wait=True):
        a = self.a
        P = lambda r: f"v[{r}:{r+1}]"
        for sl in range(2):
            for t in range(2):
                a(f"ds_read_b64 {P(140+4*sl+2*t)}, v{156+sl} offset:{32-32*t}")
        if wait: a("s_waitcnt vmcnt(0)")
        a("""
        v_add_f32_dpp v148, v148, v148 quad_perm:[1,0,3,2] row_mask:0xf bank_mask:0xf
        v_add_f32_dpp v148, v148, v148 quad_perm:[2,3,0,1] row_mask:0xf bank_mask:0xf
        v_cvt_pk_bf16_f32 v148, v148, v148
        v_and_b32 v148, 0xffff0000, v148
        v_readlane_b32 s60, v148, 0
        v_readlane_b32 s61, v148, 4
        v_readlane_b32 s62, v148, 8
        v_lshlrev_b32 v150, 16, v149
        v_mov_b32 v151, v150
        v_add_f32 v152, 1.0, s61
        v_cvt_pk_bf16_f32 v152, v152, v152
        v_and_b32 v152, 0xffff0000, v152
        v_mov_b32 v153, v152
        v_mov_b32 v154, s60
        v_mov_b32 v155, s60
        v_mov_b32 v148, s62
        v_mov_b32 v149, s62
        """)
        a(f"""
        s_mul_i32 s60, {sWV}, {self.XI_RS}
        s_add_u32 s60, s60, {xi}
        v_mul_u32_u24 v4, 144, v3
        v_lshl_add_u32 v4, v2, 3, v4
        v_add_u32 v4, s60, v4
        s_waitcnt lgkmcnt(0)
        """)
        for sl in range(2):
            for t in range(2):
                i = 2 * sl + t
                acc = (92 if sl == 0 else 84) + 4 * t
                kv, q, A, B = 140 + 2 * i, 100 + 2 * i, 108 + 4 * i, 124 + 4 * i
                a(f"""
                v_and_b32 v160, 0xffff0000, v{kv+1}
                v_lshlrev_b32 v161, 16, v{kv+1}
                v_and_b32 v162, 0xffff0000, v{kv}
                v_lshlrev_b32 v163, 16, v{kv}
                v_lshlrev_b32 v164, 16, v{q}
                v_and_b32 v165, 0xffff0000, v{q}
                v_lshlrev_b32 v166, 16, v{q+1}
                v_and_b32 v167, 0xffff0000, v{q+1}
                v_pk_fma_f32 {P(160)}, {P(160)}, {P(150)}, {P(acc)}
                v_pk_fma_f32 {P(162)}, {P(162)}, {P(150)}, {P(acc+2)}
                v_pk_fma_f32 {P(168)}, {P(164)}, {P(A)}, {P(B)}
                v_pk_fma_f32 {P(170)}, {P(166)}, {P(A+2)}, {P(B+2)}
                v_pk_mul_f32 {P(160)}, {P(160)}, {P(148)}
                v_pk_mul_f32 {P(162)}, {P(162)}, {P(148)}
                v_pk_fma_f32 {P(168)}, {P(168)}, {P(152)}, {P(154)}
                v_pk_fma_f32 {P(170)}, {P(170)}, {P(152)}, {P(154)}
                v_pk_fma_f32 {P(164)}, {P(168)}, {P(160)}, {P(164)}
                v_pk_fma_f32 {P(166)}, {P(170)}, {P(162)}, {P(166)}
                v_cvt_pk_bf16_f32 v{172+2*(i&1)}, v164, v165
                v_cvt_pk_bf16_f32 v{173+2*(i&1)}, v166, v167
                ds_write_b64 v4, {P(172+2*(i&1))} offset:{1152*sl + 576*t}
                """)
        a(f"""
        s_lshr_b32 s60, {sWV}, 1
        s_and_b32 s61, {sWV}, 1
        s_mul_i32 s62, s60, 1152
        s_lshl_b32 s63, s61, 6
        s_add_u32 s62, s62, s63
        s_add_u32 s62, s62, {xi}
        v_bfe_u32 v5, v1, 2, 2
        v_mul_u32_u24 v5, {self.XI_RS}, v5
        v_and_b32 v6, 3, v1
        v_mul_u32_u24 v6, 144, v6
        v_add3_u32 v5, v5, v6, s62
        v_lshl_add_u32 v5, v3, 3, v5
        s_cmp_eq_u32 s60, 0
        s_cselect_b32 s62, s71, s72
        s_lshl_b32 s62, s62, 4
        s_lshl_b32 s61, s61, 3
        s_add_u32 s62, s62, s61
        s_lshl_b32 s62, s62, 15
        s_lshl_b32 s63, s70, 8
        s_add_u32 s62, s62, s63
        s_add_u32 s62, s62, {WS_X1}
        v_lshlrev_b32 v6, 15, v3
        v_lshl_add_u32 v6, v2, 4, v6
        v_add_u32 v6, s62, v6
        s_mov_b32 s63, {4*32768}
        s_waitcnt lgkmcnt(0)
        s_barrier
        ds_read_b64_tr_b16 v[160:161], v5
        ds_read_b64_tr_b16 v[162:163], v5 offset:576
        ds_read_b64_tr_b16 v[164:165], v5 offset:32
        ds_read_b64_tr_b16 v[166:167], v5 offset:{576+32}
        s_waitcnt lgkmcnt(2)
        buffer_store_dwordx4 v[160:163], v6, {WS}, 0 offen{self.sc}
        s_waitcnt lgkmcnt(0)
        buffer_store_dwordx4 v[164:167], v6, {WS}, s63 offen{self.sc}
        """)

    WB = 49152
    def g1_ids(self):
        self.a(f"""
        s_lshr_b32 s74, {sM}, 4
        s_lshl_b32 s60, {sX}, 1
        s_add_u32 s74, s74, s60
        s_and_b32 s75, {sM}, 15
        """)

    def g1_rows(self, r0, scale, add):
        a = self.a
        a("s_movk_i32 s60, 4682")
        for i in range(7):
            a(f"v_add_u32 v{r0+7}, {64*i}, v1\nv_mul_u32_u24 v{r0+i}, s60, v{r0+7}\nv_lshrrev_b32 v{r0+i}, 16, v{r0+i}")
            if add:
                a(f"v_mul_u32_u24 v{r0+8}, 14, v{r0+i}\nv_sub_u32 v{r0+7}, v{r0+7}, v{r0+8}")
                a(f"v_mul_u32_u24 v{r0+i}, {scale}, v{r0+i}\nv_lshl_add_u32 v{r0+i}, v{r0+7}, 4, v{r0+i}")
            else:
                a(f"v_mul_u32_u24 v{r0+i}, {scale}, v{r0+i}")

    def g1_w1_load(self, r0):
        a = self.a
        self.g1_rows(r0, 3584, True)
        a(f"""
        s_mul_i32 s60, s75, 224
        s_mul_i32 s61, {sWV}, {4*32*3584}
        s_add_u32 s60, s60, s61
        s_mul_i32 s61, {sWV}, {28*1024}
        s_add_u32 m0, s61, {self.WB}
        """)
        for blk in range(4):
            for i in range(7):
                a(f"buffer_load_dwordx4 v{r0+i}, {W1}, s60 offen lds")
                if not (blk == 3 and i == 6): a("s_add_u32 m0, m0, 1024")
            if blk < 3: a(f"s_add_u32 s60, s60, {32*3584}")

    def g1_mod_load(self, r0):
        a = self.a
        a(f"v_lshlrev_b32 v4, 3, v0\nv_add_u32 v4, {WS_MOD + 3*2048}, v4")
        for k in range(4):
            a(f"s_mov_b32 s60, {12288*k}")
            a(f"buffer_load_dwordx2 v[{r0+4*k}:{r0+4*k+1}], v4, {WS}, s60 offen{self.sc}")
            a(f"buffer_load_dwordx2 v[{r0+4*k+2}:{r0+4*k+3}], v4, {WS}, s60 offen offset:2048{self.sc}")

    def g1_prep(self, r0, tb, later):
        a = self.a
        GT, GB, U = tb, tb + 2048, tb + 4096
        P = lambda r: f"v[{r}:{r+1}]"
        a(f"s_waitcnt vmcnt({later})")
        for h in range(2):
            a(f"v_pk_add_f32 {P(r0+2*h)}, {P(r0+2*h)}, {P(r0+4+2*h)}\nv_pk_add_f32 {P(r0+8+2*h)}, {P(r0+8+2*h)}, {P(r0+12+2*h)}")
        for h in range(2): a(f"v_pk_add_f32 {P(r0+2*h)}, {P(r0+2*h)}, {P(r0+8+2*h)}")
        a(f"""
        v_cvt_pk_bf16_f32 v{r0}, v{r0}, v{r0+1}
        v_cvt_pk_bf16_f32 v{r0+2}, v{r0+2}, v{r0+3}
        v_lshlrev_b32 v{r0+4}, 16, v{r0+2}
        v_and_b32 v{r0+5}, 0xffff0000, v{r0+2}
        v_add_f32 v{r0+4}, 1.0, v{r0+4}
        v_add_f32 v{r0+5}, 1.0, v{r0+5}
        v_cvt_pk_bf16_f32 v{r0+2}, v{r0+4}, v{r0+5}
        v_lshlrev_b32 v{r0+4}, 16, v{r0+2}
        v_and_b32 v{r0+5}, 0xffff0000, v{r0+2}
        v_lshlrev_b32 v4, 2, v0
        v_lshlrev_b32 v5, 3, v0
        ds_write_b64 v5, {P(r0+4)} offset:{GT}
        ds_write_b32 v4, v{r0+2} offset:{GB}
        ds_write_b32 v4, v{r0} offset:{GB+1024}
        v_and_b32 v2, 15, v1
        v_lshrrev_b32 v3, 4, v1
        v_lshrrev_b32 v6, 2, v1
        v_mul_u32_u24 v6, 224, v6
        v_and_b32 v7, 3, v1
        v_lshl_add_u32 v10, v7, 3, v6
        v_add_u32 v10, {self.WB}, v10
        v_add_u32 v11, 57344, v10
        v_and_b32 v6, 1, v1
        v_lshlrev_b32 v6, 10, v6
        v_lshl_add_u32 v6, v3, 3, v6
        s_lshl_b32 s60, {sWV}, 5
        v_add_u32 v8, s60, v10
        v_add_u32 v9, s60, v11
        s_waitcnt lgkmcnt(0)
        s_barrier
        """)
        for k in range(16):
            b = "v8" if k < 8 else "v9"
            o = (k % 8) * 7168
            s = 16 + 12 * (k % 2)
            a(f"""
            ds_read_b64 v[{s}:{s+1}], v6 offset:{GB + 64*k}
            ds_read_b64 v[{s+2}:{s+3}], v6 offset:{GB + 64*k + 32}
            ds_read_b64_tr_b16 v[{s+4}:{s+5}], {b} offset:{o}
            ds_read_b64_tr_b16 v[{s+6}:{s+7}], {b} offset:{o+3584}
            ds_read_b64_tr_b16 v[{s+8}:{s+9}], {b} offset:{o+128}
            ds_read_b64_tr_b16 v[{s+10}:{s+11}], {b} offset:{o+3584+128}
            """)
            if k > 0:
                p = 16 + 12 * ((k - 1) % 2)
                c0, c1 = ("0", "0") if k == 1 else ("v[40:43]", "v[44:47]")
                a(f"s_waitcnt lgkmcnt(6)\nv_mfma_f32_16x16x32_bf16 v[40:43], v[{p+4}:{p+7}], v[{p}:{p+3}], {c0}\nv_mfma_f32_16x16x32_bf16 v[44:47], v[{p+8}:{p+11}], v[{p}:{p+3}], {c1}")
        a("s_waitcnt lgkmcnt(0)\nv_mfma_f32_16x16x32_bf16 v[40:43], v[32:35], v[28:31], v[40:43]\nv_mfma_f32_16x16x32_bf16 v[44:47], v[36:39], v[28:31], v[44:47]")
        self.g1_rows(16, 4, False)
        a(f"""
        v_and_b32 v6, 1, v1
        v_mul_u32_u24 v6, 512, v6
        v_lshl_add_u32 v6, v3, 4, v6
        s_lshl_b32 s60, {sWV}, 6
        v_add_u32 v6, s60, v6
        ds_write_b128 v6, v[40:43] offset:{U}
        ds_write_b128 v6, v[44:47] offset:{U+256}
        s_mul_i32 s60, {sWV}, {28*1024}
        s_add_u32 s60, s60, {self.WB}
        v_lshl_add_u32 v7, v1, 4, s60
        s_lshl_b32 s60, {sWV}, 9
        """)
        for i in range(7): a(f"v_add_u32 v{16+i}, s60, v{16+i}")
        a("s_waitcnt lgkmcnt(0)\ns_barrier")
        NB = 4
        def rd(n):
            if n < 28:
                s = 24 + 8 * (n % NB)
                a(f"ds_read_b128 v[{s}:{s+3}], v7 offset:{1024*n}\nds_read_b32 v{s+4}, v{16+n%7} offset:{GT + 128*(n//7)}")
        for n in range(NB - 1): rd(n)
        for n in range(28):
            rd(n + NB - 1)
            s = 24 + 8 * (n % NB)
            left = min(NB - 1, 27 - n)
            a(f"s_waitcnt lgkmcnt({2*left})")
            for e in range(4): a(f"v_lshlrev_b32 v{56+2*e}, 16, v{s+e}\nv_and_b32 v{57+2*e}, 0xffff0000, v{s+e}")
            for e in range(4): a(f"v_pk_mul_f32 {P(56+2*e)}, {P(56+2*e)}, {P(s+4)} op_sel_hi:[1,0]")
            for e in range(4): a(f"v_cvt_pk_bf16_f32 v{s+e}, v{56+2*e}, v{57+2*e}")
            a(f"ds_write_b128 v7, v[{s}:{s+3}] offset:{1024*n}")
        a("s_waitcnt lgkmcnt(0)\ns_barrier")

    def g1_x_load(self):
        a = self.a
        a(f"""
        s_lshl_b32 s60, s74, 2
        s_add_u32 s60, s60, {sWV}
        s_lshl_b32 s60, s60, 15
        s_add_u32 s60, s60, {WS_X1}
        v_lshlrev_b32 v4, 4, v1
        """)
        for k in range(16):
            for h in range(2):
                a(f"buffer_load_dwordx4 v[{64+8*k+4*h}:{67+8*k+4*h}], v4, {WS}, s60 offen offset:{(2*k+h)%4*1024}{self.sc}")
            if k % 2 == 1 and k < 15: a("s_add_u32 s60, s60, 4096")

    def g1_main(self, later):
        a = self.a
        for r in range(12, 16): a(f"v_mov_b32 v{r}, 0x3f803f80")
        NR = 8
        Wr = lambda n: 16 + 4 * (n % NR)
        def rd(n):
            if n < 112:
                k, ft = divmod(n, 7)
                b = "v10" if k < 8 else "v11"
                o = (k % 8) * 7168 + 32 * ft
                a(f"ds_read_b64_tr_b16 v[{Wr(n)}:{Wr(n)+1}], {b} offset:{o}\nds_read_b64_tr_b16 v[{Wr(n)+2}:{Wr(n)+3}], {b} offset:{o+3584}")
        D = 6
        for n in range(D): rd(n)
        for k in range(16):
            x = 64 + 8 * k
            a(f"s_waitcnt vmcnt({later + 30 - 2*k})")
            a(f"v_swap_b32 v{x+2}, v{x+4}\nv_swap_b32 v{x+3}, v{x+5}")
            for ft in range(7):
                n = 7 * k + ft
                rd(n + D)
                a(f"s_waitcnt lgkmcnt({2*min(D, 111-n)})")
                for t in range(2):
                    d = 192 + 8 * ft + 4 * t
                    c = "0" if k == 0 else f"v[{d}:{d+3}]"
                    a(f"v_mfma_f32_16x16x32_bf16 v[{d}:{d+3}], v[{Wr(n)}:{Wr(n)+3}], v[{x+4*t}:{x+4*t+3}], {c}")
                if ft in (2, 4):
                    t = (ft - 2) // 2
                    for j, A in ((0, "v[12:15]"), (1, f"v[{x+4*t}:{x+4*t+3}]")):
                        d = 48 + 8 * t + 4 * j
                        c = "0" if k == 0 else f"v[{d}:{d+3}]"
                        a(f"v_mfma_f32_16x16x32_bf16 v[{d}:{d+3}], {A}, v[{x+4*t}:{x+4*t+3}], {c}")

    def g1_epilogue(self, tb):
        a = self.a
        U = tb + 4096
        P = lambda r: f"v[{r}:{r+1}]"
        a("v_lshlrev_b32 v4, 4, v3")
        for ft in range(7):
            a(f"ds_read_b128 v[{64+8*ft}:{67+8*ft}], v4 offset:{U + 64*ft}\nds_read_b128 v[{68+8*ft}:{71+8*ft}], v4 offset:{U + 512 + 64*ft}")
        a("""
        v_lshrrev_b32 v5, 2, v2
        v_lshl_add_u32 v5, v5, 4, v2
        v_lshlrev_b32 v5, 2, v5
        v_and_b32 v6, 3, v1
        v_cmp_eq_u32 s[60:61], 1, v6
        v_cmp_eq_u32 s[62:63], 2, v6
        v_cmp_eq_u32 s[64:65], 3, v6
        """)
        for t in range(2):
            g = 52 + 8 * t
            a(f"v_cndmask_b32 v{g}, v{g}, v{g+1}, s[60:61]\nv_cndmask_b32 v{g}, v{g}, v{g+2}, s[62:63]\nv_cndmask_b32 v{g}, v{g}, v{g+3}, s[64:65]")
            a(f"ds_bpermute_b32 v{g}, v5, v{g}")
        a("s_waitcnt lgkmcnt(0)")
        for t in range(2):
            sm, g, o = 48 + 8 * t, 52 + 8 * t, 16 + 4 * t
            a(f"""
            v_mul_f32 v{sm}, 0x3b000000, v{sm}
            v_mul_f32 v{sm+1}, v{sm}, v{sm}
            v_mov_b32 v{sm+2}, 0x3b000000
            v_fma_f32 v{g}, v{g}, v{sm+2}, -v{sm+1}
            v_max_f32 v{g}, 0, v{g}
            v_add_f32 v{g}, 0x3727c5ac, v{g}
            v_rsq_f32 v{o}, v{g}
            v_mul_f32 v{o+1}, v{sm}, v{o}
            v_sub_f32 v{o+1}, 0, v{o+1}
            """)
        a(f"""
        v_mov_b32 v24, {NLOG2E}
        v_mov_b32 v26, 1.0
        s_lshl_b32 s60, s74, 1
        s_lshr_b32 s61, {sWV}, 1
        s_add_u32 s60, s60, s61
        s_mul_i32 s60, s60, 56
        s_lshr_b32 s61, s75, 1
        s_mul_i32 s61, s61, 7
        s_add_u32 s60, s60, s61
        s_lshl_b32 s60, s60, 12
        s_and_b32 s61, {sWV}, 1
        s_lshl_b32 s61, s61, 11
        s_add_u32 s60, s60, s61
        s_add_u32 s60, s60, {WS_H}
        s_and_b32 s61, s75, 1
        s_mul_i32 s62, s61, {3*4096}
        s_add_u32 s62, s62, s60
        s_lshl_b32 s61, s61, 9
        s_add_u32 s61, s61, s60
        s_add_u32 s61, s61, {6*4096}
        v_lshlrev_b32 v4, 4, v1
        v_lshlrev_b32 v5, 3, v1
        """)
        for ft in range(7):
            for t in range(2):
                d, o = 192 + 8 * ft + 4 * t, 16 + 4 * t
                u1, u2 = 64 + 8 * ft, 68 + 8 * ft
                w = 28 + 8 * t
                dst = 128 + 8 * (ft // 2) + 4 * t + 2 * (ft % 2)
                for h in range(2): a(f"v_pk_fma_f32 {P(w+2*h)}, {P(u1+2*h)}, {P(o)}, {P(u2+2*h)} op_sel:[0,1,0] op_sel_hi:[1,1,1]")
                for h in range(2): a(f"v_pk_fma_f32 {P(d+2*h)}, {P(d+2*h)}, {P(o)}, {P(w+2*h)} op_sel_hi:[1,0,1]")
                for h in range(2): a(f"v_pk_mul_f32 {P(w+2*h)}, {P(d+2*h)}, {P(24)} op_sel_hi:[1,0]")
                for r in range(4): a(f"v_exp_f32 v{w+r}, v{w+r}")
                for h in range(2): a(f"v_pk_add_f32 {P(w+2*h)}, {P(w+2*h)}, {P(26)} op_sel_hi:[1,0]")
                for r in range(4): a(f"v_rcp_f32 v{w+r}, v{w+r}")
                for h in range(2): a(f"v_pk_mul_f32 {P(d+2*h)}, {P(d+2*h)}, {P(w+2*h)}")
                for h in range(2): a(f"v_cvt_pk_bf16_f32 v{dst+h}, v{d+2*h}, v{d+2*h+1}")
                if ft % 2 == 1:
                    b = dst - 2
                    a(f"buffer_store_dwordx4 v[{b}:{b+3}], v4, {WS}, s62 offen offset:{1024*t}{self.sc}")
                elif ft == 6:
                    a(f"buffer_store_dwordx2 v[{dst}:{dst+1}], v5, {WS}, s61 offen offset:{1024*t}{self.sc}")
            if ft in (1, 3): a("s_add_u32 s62, s62, 4096")

    def g2_ids(self):
        self.a(f"""
        s_lshr_b32 s76, {sM}, 3
        s_lshl_b32 s60, {sX}, 2
        s_add_u32 s76, s76, s60
        s_and_b32 s77, {sM}, 7
        """)

    def g2_w2_load(self, k0=0, k1=14):
        a = self.a
        a(f"""
        s_mul_i32 s60, s77, 56
        s_mul_i32 s61, {sWV}, 14
        s_add_u32 s60, s60, s61
        s_add_u32 s60, s60, {k0}
        s_lshl_b32 s60, s60, 12
        s_add_u32 s60, s60, {WS_W2P}
        v_lshlrev_b32 v4, 4, v1
        """)
        for k in range(k0, k1):
            for dt in range(4):
                a(f"buffer_load_dwordx4 a[{16*k+4*dt}:{16*k+4*dt+3}], v4, {WS}, s60 offen offset:{1024*dt}{self.sc}")
            if k < k1 - 1: a("s_add_u32 s60, s60, 4096")

    def g2_w2_addr(self, k0):
        self.a(f"""
        s_mul_i32 s79, s77, 56
        s_mul_i32 s61, {sWV}, 14
        s_add_u32 s79, s79, s61
        s_lshl_b32 s79, s79, 12
        s_add_u32 s79, s79, {WS_W2P + 4096*k0}
        v_lshlrev_b32 v9, 4, v1
        """)

    def g2_w2_one(self, i, v="v9"):
        self.a(f"buffer_load_dwordx4 a[{4*i}:{4*i+3}], {v}, {WS}, s79 offen offset:{1024*(i%4)}{self.sc}")
        if i % 4 == 3: self.a("s_add_u32 s79, s79, 4096")

    def g2_epi_load(self):
        a = self.a
        a(f"""
        s_lshl_b32 s60, s77, 8
        s_add_u32 s60, s60, {WS_MOD + 5*2048}
        v_lshl_add_u32 v5, v1, 2, s60
        s_mov_b32 s61, 12288
        s_mov_b32 s62, {2*12288}
        s_mov_b32 s63, {3*12288}
        buffer_load_dword v16, v5, {WS}, 0 offen{self.sc}
        buffer_load_dword v17, v5, {WS}, s61 offen{self.sc}
        buffer_load_dword v18, v5, {WS}, s62 offen{self.sc}
        buffer_load_dword v19, v5, {WS}, s63 offen{self.sc}
        s_lshl_b32 s60, s76, 1
        s_lshr_b32 s61, {sWV}, 1
        s_add_u32 s60, s60, s61
        s_lshl_b32 s60, s60, 15
        s_lshl_b32 s61, s77, 12
        s_add_u32 s60, s60, s61
        s_and_b32 s61, {sWV}, 1
        s_lshl_b32 s61, s61, 3
        s_add_u32 s60, s60, s61
        s_add_u32 s60, s60, {WS_X1}
        v_and_b32 v2, 15, v1
        v_lshrrev_b32 v3, 4, v1
        v_lshlrev_b32 v5, 9, v3
        v_lshl_add_u32 v5, v2, 4, v5
        """)
        for p in range(2):
            for h in range(2):
                a(f"buffer_load_dwordx2 v[{20+4*p+2*h}:{21+4*p+2*h}], v5, {WS}, s60 offen offset:{2048*p + 256*h}{self.sc}")

    HR = 10
    def g2_h_issue(self, k):
        a = self.a
        r = 32 + 16 * (k % self.HR)
        for st in range(4):
            if k % 7 == 6:
                a(f"buffer_load_dwordx2 v[{r+4*st}:{r+4*st+1}], v7, {WS}, s78 offen offset:{1024*st}{self.sc}")
                a(f"buffer_load_dwordx2 v[{r+4*st+2}:{r+4*st+3}], v7, {WS}, s78 offen offset:{1024*st+512}{self.sc}")
            else:
                a(f"buffer_load_dwordx4 v[{r+4*st}:{r+4*st+3}], v6, {WS}, s78 offen offset:{1024*st}{self.sc}")
        a("s_add_u32 s78, s78, 4096")

    def g2_main(self):
        a = self.a
        a(f"""
        s_mul_i32 s78, s76, 56
        s_mul_i32 s61, {sWV}, 14
        s_add_u32 s78, s78, s61
        s_lshl_b32 s78, s78, 12
        s_add_u32 s78, s78, {WS_H}
        v_lshlrev_b32 v6, 4, v1
        v_lshlrev_b32 v7, 3, v1
        """)
        cnt = lambda k: 8 if k % 7 == 6 else 4
        for k in range(self.HR): self.g2_h_issue(k)
        issued = self.HR
        for k in range(14):
            a(f"s_waitcnt vmcnt({sum(cnt(j) for j in range(k+1, issued))})")
            r = 32 + 16 * (k % self.HR)
            for st in range(4):
                for dt in range(4):
                    d = 192 + 16 * st + 4 * dt
                    c = "0" if k == 0 else f"v[{d}:{d+3}]"
                    a(f"v_mfma_f32_16x16x32_bf16 v[{d}:{d+3}], a[{16*k+4*dt}:{16*k+4*dt+3}], v[{r+4*st}:{r+4*st+3}], {c}")
            if issued < 14:
                self.g2_h_issue(issued); issued += 1

    def g2_epilogue(self, rb, tb):
        a = self.a
        P = lambda r: f"v[{r}:{r+1}]"
        a(f"""
        v_add_f32 v16, v16, v17
        v_add_f32 v18, v18, v19
        v_add_f32 v16, v16, v18
        v_cvt_pk_bf16_f32 v16, v16, v16
        v_and_b32 v16, 0xffff0000, v16
        s_lshl_b32 s60, {sWV}, 8
        s_add_u32 s60, s60, {tb}
        v_lshl_add_u32 v5, v1, 2, s60
        ds_write_b32 v5, v16
        v_lshl_add_u32 v5, v3, 5, s60
        s_lshl_b32 s60, {sWV}, 12
        s_add_u32 s60, s60, {rb}
        v_lshl_add_u32 v4, v1, 4, s60
        s_lshl_b32 s60, {sWV}, 14
        s_add_u32 s60, s60, {rb}
        v_lshl_add_u32 v6, v1, 4, s60
        """)
        for st in range(4):
            for dt in range(4):
                d = 192 + 16 * st + 4 * dt
                a(f"ds_write_b128 v4, v[{d}:{d+3}] offset:{16384*st + 1024*dt}")
        for p in range(2):
            for h in range(2):
                a(f"ds_read_b128 v[{32+8*p+4*h}:{35+8*p+4*h}], v5 offset:{128*p + 16*h}")
        a(f"""
        s_lshl_b32 s60, s76, 16
        s_lshl_b32 s61, {sWV}, 14
        s_add_u32 s60, s60, s61
        s_lshl_b32 s61, s77, 7
        s_add_u32 s60, s60, s61
        v_lshlrev_b32 v7, 10, v2
        v_lshl_add_u32 v7, v3, 4, v7
        s_waitcnt lgkmcnt(0)
        s_barrier
        """)
        for dt in range(4):
            for src in range(4):
                r = 64 + 16 * dt + 4 * src
                a(f"ds_read_b128 v[{r}:{r+3}], v6 offset:{4096*src + 1024*dt}")
        for dt in range(4):
            r = 64 + 16 * dt
            a(f"s_waitcnt lgkmcnt({12 - 4*dt})")
            for h in range(2): a(f"v_pk_add_f32 {P(r+2*h)}, {P(r+2*h)}, {P(r+4+2*h)}\nv_pk_add_f32 {P(r+8+2*h)}, {P(r+8+2*h)}, {P(r+12+2*h)}")
            x = 20 + 2 * dt
            a(f"""
            v_lshlrev_b32 v48, 16, v{x}
            v_and_b32 v49, 0xffff0000, v{x}
            v_lshlrev_b32 v50, 16, v{x+1}
            v_and_b32 v51, 0xffff0000, v{x+1}
            """)
            for h in range(2): a(f"v_pk_add_f32 {P(r+2*h)}, {P(r+2*h)}, {P(r+8+2*h)}")
            for h in range(2): a(f"v_pk_fma_f32 {P(r+2*h)}, {P(r+2*h)}, {P(32+4*dt+2*h)}, {P(48+2*h)}")
            for h in range(2): a(f"v_cvt_pk_bf16_f32 v{52+2*dt+h}, v{r+2*h}, v{r+2*h+1}")
            if dt % 2 == 1:
                b = 52 + 2 * (dt - 1)
                a(f"buffer_store_dwordx4 v[{b}:{b+3}], v7, {OUT}, s60 offen offset:{32*(dt-1)}")

def build_split(diag=False):
    g = G(sc=False, diag=diag)
    a = g.a
    S = g.stamp
    hdr = [f"; @launch kernel=k1_kernel grid=(256,1,1) block=(256,1,1) lds=4096"]
    a.raw('.amdgcn_target "amdgcn-amd-amdhsa--gfx950"\n.text')
    g.entry("k1_kernel", [0, 1, 2, 3, 7, 8, 9, 11])
    g.p_loads(); S()
    g.p_kv(0); S()
    g.p_q(2); S()
    g.p_stats(4); S()
    g.p_gemv(5, 0); S()
    g.p_w2(0)
    g.exit("k1_kernel")
    hdr.append("; @launch kernel=k2_kernel grid=(256,1,1) block=(256,1,1) lds=49152")
    g.entry("k2_kernel", [4, 5, 11])
    g.c_ids()
    g.c_filter_load(16); S()
    g.c_filter_prep(16, 2048, 0); S()
    g.c_u_load()
    g.c_epi_load(); S()
    a("s_waitcnt vmcnt(14)"); S()
    g.c_main(14); S()
    g.c_epilogue(2048 + 4 * G.FSZ)
    g.exit("k2_kernel")
    hdr.append("; @launch kernel=k3_kernel grid=(256,1,1) block=(256,1,1) lds=163840")
    g.entry("k3_kernel", [6, 11])
    g.g1_ids()
    g.g1_w1_load(16)
    g.g1_mod_load(32); S()
    a("s_waitcnt vmcnt(0)"); S()
    g.g1_x_load(); S()
    g.g1_prep(32, 0, 32); S()
    g.g1_main(0); S()
    g.g1_epilogue(0)
    g.exit("k3_kernel")
    hdr.append("; @launch kernel=k4_kernel grid=(256,1,1) block=(256,1,1) lds=66560")
    g.entry("k4_kernel", [10, 11])
    g.g2_ids()
    g.g2_epi_load()
    g.g2_w2_load(0, 13)
    a("s_waitcnt vmcnt(40)")
    g.g2_w2_load(13, 14); S()
    a("s_waitcnt vmcnt(16)"); S()
    g.g2_main(); S()
    g.g2_epilogue(0, 65536)
    g.exit("k4_kernel")
    a.raw('.section .rodata,"a"')
    a.raw(desc("k1_kernel", 160, 160))
    a.raw(desc("k2_kernel", 512, 256))
    a.raw(desc("k3_kernel", 256, 256))
    a.raw(desc("k4_kernel", 512, 256))
    return "\n".join(hdr) + "\n" + a.text()

def build_fused(diag=False):
    g = G(sc=True, diag=diag)
    a = g.a
    S = g.stamp
    kn = NAME + "_kernel"
    hdr = ["; @launch grid=(256,1,1) block=(256,1,1) lds=163840"]
    a.raw('.amdgcn_target "amdgcn-amd-amdhsa--gfx950"\n.text')
    TB, FB = 0, 5376
    XI = FB + 4 * G.FSZ
    g.entry(kn, list(range(13)))
    g.nonce_start()
    g.p_loads()
    g.c_ids(); g.g1_ids(); g.g2_ids()
    g.c_filter_load(160); S()
    g.p_kv(8)
    g.p_q(8 + 2)
    g.p_stats(8 + 4)
    g.p_gemv(8 + 5, XI)
    g.p_w2(0); S()
    g.nonce_get()
    g.signal(0, 8); S()
    g.g1_w1_load(100)
    g.c_filter_prep(160, FB, 63); S()
    g.wait_all(0); S()
    g.c_u_load()
    g.c_epi_load()
    NW, K0 = 7, 12
    def hook(n):
        if n == K0 - 1:
            a("s_waitcnt vmcnt(0)")
            g.g2_w2_addr(0)
        if K0 <= n < K0 + 8 * NW and (n - K0) % 2 == 0:
            g.g2_w2_one((n - K0) // 2)
    g.c_main(14, hook); S()
    g.c_epilogue(XI, wait=False)
    g.signal(1, 8); S()
    g.g1_mod_load(32)
    for i in range(4 * NW, 56): g.g2_w2_one(i, "v9")
    g.g1_prep(32, TB, 56 - 4 * NW); S()
    g.wait_all(1); S()
    g.g1_x_load()
    g.g1_main(0); S()
    g.g1_epilogue(TB)
    g.signal(2, 1); S()
    g.g2_epi_load()
    g.wait_group16(2); S()
    g.g2_main(); S()
    g.g2_epilogue(G.WB, 0)
    g.exit(kn)
    a.raw('.section .rodata,"a"')
    a.raw(desc(kn, 512, 256))
    return "\n".join(hdr) + "\n" + a.text()

if __name__ == "__main__":
    mode = sys.argv[2] if len(sys.argv) > 2 else "split"
    diag = sys.argv[3] if len(sys.argv) > 3 else False
    open(sys.argv[1], "w").write(globals()["build_" + mode](diag))
```

```python
import re

TRANS = ("v_exp_f32", "v_log_f32", "v_rcp_f32", "v_rsq_f32", "v_sqrt_f32", "v_sin_f32", "v_cos_f32", "v_rcp_iflag_f32")
REG_RE = re.compile(r"\b([vas])(\d+)\b|\b([vas])\[(\d+):(\d+)\]|\b(vcc|exec|m0)\b")

def regs_of(tok):
    out = set()
    for m in REG_RE.finditer(tok):
        if m.group(1): out.add((m.group(1), int(m.group(2))))
        elif m.group(3):
            for i in range(int(m.group(4)), int(m.group(5)) + 1): out.add((m.group(3), i))
        else: out.add((m.group(6), 0))
    return out

def split_ops(s):
    ops, depth, cur = [], 0, ""
    for ch in s:
        if ch == "[": depth += 1
        if ch == "]": depth -= 1
        if ch == "," and depth == 0: ops.append(cur.strip()); cur = ""
        else: cur += ch
    if cur.strip(): ops.append(cur.strip())
    return ops

class Ins:
    def __init__(self, text):
        self.text = text
        t = text.split(";")[0].strip()
        parts = t.split(None, 1)
        self.op = parts[0]
        ops = split_ops(parts[1]) if len(parts) > 1 else []
        self.ops = ops
        op = self.op
        self.kind = ("mfma" if op.startswith("v_mfma") else "valu" if op.startswith("v_") else
                     "vmem" if op.startswith(("buffer_", "global_")) else "ds" if op.startswith("ds_") else "salu")
        self.w, self.r = set(), set()
        self.srcc = set(); self.srcab = set(); self.sdata = set()
        self.states = 1
        R = [regs_of(o) for o in ops]
        if op == "s_nop": self.states = int(ops[0], 0) + 1
        if self.kind == "mfma":
            self.w = R[0]; self.srcab = R[1] | R[2]; self.srcc = R[3]; self.r = self.srcab | self.srcc
            self.passes = 8 if "32x32" in op else 4
        elif self.kind == "valu":
            base = op.replace("_e32", "").replace("_e64", "").replace("_dpp", "").replace("_sdwa", "")
            self.base = base
            if base.startswith(("v_swap", "v_permlane16_swap", "v_permlane32_swap")):
                self.w = R[0] | R[1]; self.r = R[0] | R[1]
            elif base.startswith("v_cmpx"):
                self.w = R[0] | {("exec", 0)}; self.r = set().union(*R[1:])
            elif base in ("v_add_co_u32", "v_sub_co_u32", "v_addc_co_u32", "v_subb_co_u32", "v_div_scale_f32", "v_mad_u64_u32"):
                self.w = R[0] | R[1]; self.r = set().union(*R[2:])
            else:
                self.w = R[0]; self.r = set().union(*R[1:]) if len(R) > 1 else set()
                if base.startswith(("v_fmac", "v_pk_fmac", "v_dot2c", "v_writelane")) or "dpp" in op or "row_" in t or "quad_perm" in t:
                    self.r |= R[0]
                if base.startswith("v_cndmask") and len(ops) == 3: self.r.add(("vcc", 0))
            self.trans = base in TRANS
            self.dpp = ("row_" in t or "quad_perm" in t or "wave_" in t)
            self.perm = base.startswith("v_permlane")
            self.rdlane = base in ("v_readfirstlane_b32", "v_readlane_b32")
        elif self.kind == "vmem":
            lds = bool(re.search(r"\blds\b", t))
            if "store" in op or "atomic" in op:
                if op.startswith("buffer_"): self.sdata = R[0]; self.r = set().union(*R)
                else: self.sdata = R[1]; self.r = set().union(*R)
                if "atomic" in op and "sc0" in t: self.w = R[0]
                self.wide = "x3" in op or "x4" in op
            elif lds:
                self.r = set().union(*R) | {("m0", 0)}
            else:
                self.w = R[0]; self.r = set().union(*R[1:])
        elif self.kind == "ds":
            if op.startswith(("ds_read", "ds_bpermute", "ds_permute", "ds_swizzle")):
                self.w = R[0]; self.r = set().union(*R[1:]) if len(R) > 1 else set()
            else:
                self.r = set().union(*R)
        else:
            if op.startswith(("s_cmp", "s_cbranch", "s_branch", "s_waitcnt", "s_barrier", "s_nop", "s_endpgm", "s_sleep", "s_setprio", "s_bitcmp")):
                self.r = set().union(*R) if R else set()
            else:
                self.w = R[0] if R else set(); self.r = set().union(*R[1:]) if len(R) > 1 else set()
                if "saveexec" in op: self.w |= {("exec", 0)}

def vregs(s): return {x for x in s if x[0] in ("v", "a")}
def sregs(s): return {x for x in s if x[0] in ("s", "vcc")}

def need(p, c):
    n = 0
    if p.kind == "valu":
        pv, ps = vregs(p.w), sregs(p.w)
        if c.kind == "mfma" and pv & c.r: n = max(n, 2)
        if c.kind == "valu":
            if (c.dpp or c.perm) and pv & c.r: n = max(n, 2)
            if c.rdlane and pv & c.r: n = max(n, 1)
            if p.trans and pv & c.r: n = max(n, 1)
            if ps & c.r: n = max(n, 2)
            if ("exec", 0) in p.w and (c.dpp): n = max(n, 5)
            if ("exec", 0) in p.w and (c.rdlane or c.perm): n = max(n, 4)
            if "op_sel" in p.text and not p.op.startswith("v_pk") and pv & c.r: n = max(n, 1)
            if "sdwa" in p.text and pv & c.r: n = max(n, 1)
            if p.op.startswith("v_dot") and pv & (c.r | c.w): n = max(n, 3)
        if c.kind == "vmem" and ps & c.r: n = max(n, 5)
        if c.kind == "mfma" and ("exec", 0) in p.w: n = max(n, 4)
        if c.kind == "salu" and ps & c.r: n = max(n, 1)
    if p.kind == "mfma":
        big = {4: 8, 8: 12}[p.passes]
        if c.kind == "mfma":
            if p.w & c.srcab: n = max(n, big)
            if p.w & c.srcc and not (p.w == c.srcc and p.passes == c.passes): n = max(n, big - 2)
            if p.w & c.w and not (p.w == c.w): n = max(n, big - 2)
        elif c.kind in ("valu", "vmem", "ds"):
            if p.w & (c.r | c.w): n = max(n, big)
            if c.kind == "valu" and p.srcc & c.w: n = max(n, {4: 3, 8: 7}[p.passes])
    if p.kind == "vmem" and p.sdata and getattr(p, "wide", False):
        if p.sdata & c.w: n = max(n, 2)
    if p.kind == "salu" and ("m0", 0) in p.w and ("m0", 0) in c.r and c.kind in ("vmem", "ds"): n = max(n, 1)
    return n

class Asm:
    def __init__(self):
        self.lines = []
        self.hist = []
        self.nops = 0
    def raw(self, text):
        self.lines.append(text)
    def label(self, name):
        self.lines.append(name + ":")
    def fence(self):
        self.hist = []
    def __call__(self, text):
        for ln in text.split("\n"):
            ln = ln.strip()
            if not ln or ln.startswith(";"): continue
            if ln.endswith(":"):
                self.lines.append(ln); continue
            ins = Ins(ln)
            dist, pad = 0, 0
            for p in reversed(self.hist):
                pad = max(pad, need(p, ins) - dist)
                dist += p.states
                if dist >= 20: break
            while pad > 0:
                k = min(pad, 16)
                nop = Ins(f"s_nop {k-1}")
                self.lines.append("    " + nop.text); self.hist.append(nop); self.nops += 1
                pad -= k
            self.lines.append("    " + ln)
            self.hist.append(ins)
            self.hist = self.hist[-24:]
    def region(self, name):
        self.lines.append(f";@region {name}")
    def text(self):
        return "\n".join(self.lines) + "\n"

def add_pads(text, spacing=256, ret="L_warm_ret"):
    import subprocess, tempfile, os
    lines = text.split("\n")
    stub = []
    for ln in lines:
        stub.append((f"L_reg_{ln.split()[1]}:" if ln.split()[1] != "end" else "") if ln.startswith(";@region") else ln)
    with tempfile.TemporaryDirectory() as d:
        open(d + "/a.s", "w").write("\n".join(stub))
        r = subprocess.run(["clang", "-x", "assembler", "-target", "amdgcn-amd-amdhsa", "-mcpu=gfx950", "-c", d + "/a.s", "-o", d + "/a.o"], capture_output=True, text=True)
        assert r.returncode == 0, r.stderr[:2000]
        dis = subprocess.run(["llvm-objdump", "-d", "--mcpu=gfx950", d + "/a.o"], capture_output=True, text=True).stdout
    sizes = [4 * len(m.group(1).split()) for m in re.finditer(r"// [0-9A-F]{12}: ((?:[0-9A-F]{8} ?)+)", dis)]
    out, i, off, last, cur, npad = [], 0, 0, 0, None, 0
    dark = False
    pads = []
    for ln in lines:
        if ln.startswith(";@region"):
            assert not dark, "region boundary inside an EXEC=0 span"
            cur = ln.split()[1]
            if cur == "end": cur = None; continue
            out.append(f"L_reg_{cur}:"); out.append(None); pads.append((len(out) - 1, cur, None)); off += 4; last = off
            continue
        if ln.startswith("    "):
            if cur is not None and off - last >= spacing and not dark:
                out.append(f"L_pad_{npad}:"); out.append(None); pads.append((len(out) - 1, cur, npad)); npad += 1; off += 4; last = off
            off += sizes[i]; i += 1
            if ln.strip() == "s_mov_b64 exec, 0": dark = True
            elif dark and ln.strip().startswith("s_mov_b64 exec,"): dark = False
        out.append(ln)
    assert i == len(sizes), (i, len(sizes))
    for k, (idx, reg, _) in enumerate(pads):
        nxt = pads[k + 1] if k + 1 < len(pads) else None
        out[idx] = f"    s_cbranch_execz " + (f"L_pad_{nxt[2]}" if nxt and nxt[1] == reg else ret)
    dark = False
    for ln in out:
        t = ln.strip()
        assert not (dark and t.startswith("s_cbranch_execz")), "pad inside an EXEC=0 span"
        if t == "s_mov_b64 exec, 0": dark = True
        elif dark and t.startswith("s_mov_b64 exec,"): dark = False
    return "\n".join(out), off

def desc(name, vgpr=512, accum=256, sgpr=102):
    return f""".p2align 6
.amdhsa_kernel {name}
  .amdhsa_next_free_vgpr {vgpr}
  .amdhsa_next_free_sgpr {sgpr}
  .amdhsa_accum_offset {accum}
  .amdhsa_group_segment_fixed_size 0
  .amdhsa_kernarg_size 112
  .amdhsa_user_sgpr_count 2
  .amdhsa_user_sgpr_kernarg_segment_ptr 1
  .amdhsa_system_sgpr_workgroup_id_x 1
  .amdhsa_float_denorm_mode_32 3
  .amdhsa_float_denorm_mode_16_64 3
.end_amdhsa_kernel
"""
```

```python
import sys
from asmlib import Asm, desc

NAME = "adaLN_cond__ssm_conv_h3__dense_activation_silu__prompt"
MB = 1 << 20
WS_KVT, WS_QT, WS_X1, WS_H, WS_W2P = 0, 2 * MB, 4 * MB, 6 * MB, 14 * MB
WS_STAT, WS_MOD, WS_FLAG = 16 * MB, 16 * MB + 65536, 17 * MB
WS_SIZE = 32 * MB
LOG2E = 0x3fb8aa3b
NLOG2E = 0xbfb8aa3b

Q, K, V, SK, FK, SD, W1, W2, C, WM, OUT, WS, DBG = [f"s[{8+4*i}:{11+4*i}]" for i in range(13)]
SPIN = 1 << 17
SRD_INFO = [
    (8, 0, 2 * MB), (12, 8, 2 * MB), (16, 16, 2 * MB), (20, 24, 4096), (24, 32, 2 * MB), (28, 40, 1024),
    (32, 56, 512 * 1792 * 2), (36, 64, 512 * 1792 * 2), (40, 72, 1024), (44, 80, 512 * 3072 * 2),
    (48, 88, 2 * MB), (52, 104, WS_SIZE), (56, 96, 256)]
sX, sM, sWV = "s3", "s4", "s5"

WS_DIAG = 24 * MB
class G:
    def __init__(self, sc, diag=False):
        self.a = Asm()
        self.sc = " sc1" if sc else ""
        self.diag = diag
        self.nst = 0
        self.kidx = 0

    def stamp(self, tag="m"):
        import os
        if not self.diag or (tag not in os.environ.get("TAGS", "m") and tag != "*"): return
        assert self.nst < 17
        op = "s_memtime" if self.diag == "cyc" else "s_memrealtime"
        self.a(f"{op} s[98:99]\ns_waitcnt lgkmcnt(0)\ns_mov_b32 s{82+self.nst if self.nst < 15 else 85+self.nst}, s98")
        self.nst += 1

    def flush_stamps(self):
        if not self.diag: return
        a = self.a
        a(f"s_waitcnt vmcnt(0)")
        self.stamp("*")
        a(f"s_lshl_b32 s60, s2, 2\ns_add_u32 s60, s60, {sWV}\ns_lshl_b32 s60, s60, 7\ns_add_u32 s60, s60, {WS_DIAG + self.kidx*131072}\nv_mov_b32 v4, s60")
        for i in range(self.nst): a(f"v_mov_b32 v5, s{82+i if i < 15 else 85+i}\nbuffer_store_dword v5, v4, {WS}, 0 offen offset:{4*i}")
        self.nst = 0; self.kidx += 1

    def entry(self, name, srds, pre=None):
        a = self.a
        a.raw(f".globl {name}\n.p2align 8\n.type {name},@function")
        a.label(name)
        a.fence()
        a(f"s_cmp_ge_u32 s2, 256\ns_cbranch_scc1 L_end_{name}")
        self.stamp("*")
        for i in srds:
            s, off, n = SRD_INFO[i]
            a(f"s_load_dwordx2 s[{s}:{s+1}], s[0:1], {off}")
        if pre: pre()
        a("v_lshrrev_b32 v2, 6, v0\nv_and_b32 v1, 63, v0")
        for i in srds:
            s, off, n = SRD_INFO[i]
            a(f"s_mov_b32 s{s+2}, {n}\ns_mov_b32 s{s+3}, 0x00020000")
        a(f"v_readfirstlane_b32 {sWV}, v2")
        a(f"s_and_b32 {sX}, s2, 7\ns_lshr_b32 {sM}, s2, 3")
        a("s_waitcnt lgkmcnt(0)")
        self.stamp("s")

    def exit(self, name):
        self.flush_stamps()
        self.a.label(f"L_end_{name}")
        self.a("s_endpgm")

    def nonce_start(self):
        a = self.a
        a(f"""
        s_or_b32 s60, s2, {sWV}
        s_cmp_lg_u32 s60, 0
        s_cbranch_scc1 L_nonce_skip
        s_memrealtime s[60:61]
        s_waitcnt lgkmcnt(0)
        s_or_b32 s61, s61, 0x40000000
        v_mov_b32 v4, 0
        v_mov_b32 v6, s60
        v_mov_b32 v7, s61
        s_mov_b64 s[62:63], exec
        s_mov_b64 exec, 1
        buffer_store_dwordx2 v[6:7], v4, {DBG}, 0 offen sc1
        s_mov_b64 exec, s[62:63]
        L_nonce_skip:
        """)

    def nonce_get(self):
        a = self.a
        a(f"""
        v_mov_b32 v4, 0
        s_mov_b32 s62, 0
        L_nonce_poll:
        buffer_load_dwordx2 v[6:7], v4, {DBG}, 0 offen sc1
        s_add_u32 s62, s62, 1
        s_waitcnt vmcnt(0)
        v_readfirstlane_b32 s80, v6
        v_readfirstlane_b32 s81, v7
        s_cmp_gt_u32 s62, {SPIN}
        s_cbranch_scc1 L_nonce_ok
        s_cmp_eq_u32 s81, 0
        s_cbranch_scc1 L_nonce_poll
        L_nonce_ok:
        """)

    def signal(self, ph, replicas):
        a = self.a
        a(f"""
        s_waitcnt vmcnt(0)
        s_barrier
        s_cmp_lg_u32 {sWV}, 0
        s_cbranch_scc1 L_sig{ph}_skip
        s_lshl_b32 s60, s2, 3
        s_add_u32 s60, s60, {WS_FLAG + ph*65536}
        v_lshl_add_u32 v4, v1, 11, s60
        v_mov_b32 v6, s80
        v_mov_b32 v7, s81
        s_mov_b64 s[62:63], exec
        s_mov_b64 exec, {(1 << replicas) - 1}
        buffer_store_dwordx2 v[6:7], v4, {WS}, 0 offen sc1
        s_mov_b64 exec, s[62:63]
        L_sig{ph}_skip:
        """)

    def wait_all(self, ph):
        a = self.a
        a(f"""
        s_lshl_b32 s60, {sX}, 11
        s_add_u32 s60, s60, {WS_FLAG + ph*65536}
        v_lshl_add_u32 v4, v0, 3, s60
        """)
        self._poll(ph)

    def wait_group16(self, ph):
        a = self.a
        a(f"""
        s_lshr_b32 s60, {sM}, 4
        s_lshl_b32 s60, s60, 7
        s_add_u32 s60, s60, {sX}
        s_lshl_b32 s60, s60, 3
        s_add_u32 s60, s60, {WS_FLAG + ph*65536}
        v_and_b32 v4, 15, v1
        v_lshl_add_u32 v4, v4, 6, s60
        """)
        self._poll(ph)

    def _poll(self, ph):
        a = self.a
        a(f"""
        s_mov_b32 s62, 0
        L_poll{ph}:
        buffer_load_dwordx2 v[6:7], v4, {WS}, 0 offen sc1
        s_add_u32 s62, s62, 1
        s_waitcnt vmcnt(0)
        v_cmp_ne_u64 vcc, s[80:81], v[6:7]
        s_cmp_gt_u32 s62, {SPIN}
        s_cbranch_scc1 L_poll{ph}_ok
        s_cbranch_vccz L_poll{ph}_ok
        s_sleep 1
        s_branch L_poll{ph}
        L_poll{ph}_ok:
        s_barrier
        """)

    def p_loads(self):
        a = self.a
        a(f"""
        s_lshl_b32 s60, {sM}, 16
        s_lshl_b32 s61, {sX}, 7
        s_add_u32 s60, s60, s61
        s_lshl_b32 s61, {sWV}, 5
        s_add_u32 s60, s60, s61
        v_lshrrev_b32 v8, 3, v1
        v_and_b32 v9, 7, v1
        v_lshlrev_b32 v2, 13, v8
        v_lshl_add_u32 v2, v9, 2, v2
        v_add_u32 v2, s60, v2
        v_subrev_u32 v3, 3072, v2
        v_add_u32 v4, 4096, v2
        """)
        for j in range(11):
            base, off = ("v3", j * 1024) if j < 3 else ("v2", (j - 3) * 1024) if j < 7 else ("v4", (j - 7) * 1024)
            a(f"buffer_load_dword v{10+j}, {base}, {K}, 0 offen offset:{off}")
        for j in range(8):
            base, off = ("v2", j * 1024) if j < 4 else ("v4", (j - 4) * 1024)
            a(f"buffer_load_dword v{21+j}, {base}, {V}, 0 offen offset:{off}")
        a(f"""
        s_lshl_b32 s62, {sX}, 9
        s_lshl_b32 s63, {sWV}, 7
        s_add_u32 s62, s62, s63
        v_lshl_add_u32 v37, v9, 4, s62
        buffer_load_dwordx4 v[38:41], v37, {SK}, 0 offen
        """)
        for j in range(8):
            base, off = ("v2", j * 1024) if j < 4 else ("v4", (j - 4) * 1024)
            a(f"buffer_load_dword v{29+j}, {base}, {Q}, 0 offen offset:{off}")
        a(f"""
        s_lshl_b32 s60, s2, 13
        s_lshl_b32 s61, {sWV}, 11
        s_add_u32 s60, s60, s61
        v_lshrrev_b32 v5, 5, v1
        v_lshlrev_b32 v5, 10, v5
        v_and_b32 v42, 31, v1
        v_lshl_add_u32 v5, v42, 4, v5
        v_add_u32 v5, s60, v5
        buffer_load_dwordx4 v[44:47], v5, {Q}, 0 offen
        buffer_load_dwordx4 v[48:51], v5, {Q}, 0 offen offset:512
        """)
        a(f"""
        s_and_b32 s60, s2, 3
        s_lshl_b32 s60, s60, 7
        s_lshl_b32 s61, {sWV}, 5
        s_add_u32 s60, s60, s61
        v_add_u32 v42, s60, v8
        v_lshlrev_b32 v43, 1, v42
        s_movk_i32 s61, 6144
        v_mul_lo_u32 v6, v42, s61
        v_lshl_add_u32 v6, v9, 4, v6
        s_lshr_b32 s60, s2, 2
        s_lshl_b32 s60, s60, 7
        s_cmp_ge_u32 s2, 192
        s_cselect_b32 s60, 0x40000000, s60
        v_add_u32 v6, s60, v6
        s_mov_b32 s61, {8*6144}
        s_mov_b32 s62, {16*6144}
        s_mov_b32 s63, {24*6144}
        buffer_load_ushort v68, v43, {C}, 0 offen
        buffer_load_ushort v69, v43, {C}, 0 offen offset:16
        buffer_load_ushort v70, v43, {C}, 0 offen offset:32
        buffer_load_ushort v71, v43, {C}, 0 offen offset:48
        buffer_load_dwordx4 v[52:55], v6, {WM}, 0 offen
        buffer_load_dwordx4 v[56:59], v6, {WM}, s61 offen
        buffer_load_dwordx4 v[60:63], v6, {WM}, s62 offen
        buffer_load_dwordx4 v[64:67], v6, {WM}, s63 offen
        """)
        a(f"""
        s_lshr_b32 s60, {sWV}, 1
        s_lshl_b32 s61, s2, 1
        s_add_u32 s60, s60, s61
        s_lshr_b32 s64, s60, 3
        s_and_b32 s65, s60, 7
        s_mul_i32 s61, s64, 37
        s_lshr_b32 s61, s61, 8
        s_mul_i32 s62, s61, 7
        s_sub_u32 s62, s64, s62
        s_mul_i32 s61, s61, 224
        s_lshl_b32 s63, s62, 5
        s_add_u32 s66, s63, 16
        s_cmp_ge_u32 s62, 3
        s_cselect_b32 s63, s66, s63
        s_movk_i32 s66, {16*1024}
        s_cmp_eq_u32 s62, 6
        s_cselect_b32 s63, 96, s63
        s_cselect_b32 s66, {112*1024}, s66
        s_add_u32 s61, s61, s63
        s_and_b32 s62, {sWV}, 1
        s_lshl_b32 s62, s62, 3
        s_add_u32 s61, s61, s62
        s_lshl_b32 s61, s61, 10
        s_lshl_b32 s62, s65, 7
        s_add_u32 s61, s61, s62
        s_cmp_ge_u32 s60, 448
        s_cselect_b32 s61, 0x40000000, s61
        v_lshrrev_b32 v42, 5, v1
        v_lshlrev_b32 v42, 12, v42
        v_and_b32 v43, 31, v1
        v_lshl_add_u32 v7, v43, 2, v42
        v_add_u32 v7, s61, v7
        """)
        for e in range(8):
            so = "0" if e < 4 else "s66"
            a(f"buffer_load_dword v{72+e}, v7, {W2}, {so} offen offset:{(e&3)*1024}")

    def p_kv(self, later):
        a = self.a
        a(f"s_waitcnt vmcnt({later + 8 + 2 + 8 + 8})")
        for j in range(11):
            a(f"v_lshlrev_b32 v{80+2*j}, 16, v{10+j}\nv_and_b32 v{81+2*j}, 0xffff0000, v{10+j}")
        a("""
        v_lshlrev_b32 v102, 16, v38
        v_lshlrev_b32 v103, 16, v40
        v_and_b32 v104, 0xffff0000, v38
        v_and_b32 v105, 0xffff0000, v40
        v_lshlrev_b32 v106, 16, v39
        v_lshlrev_b32 v107, 16, v41
        v_and_b32 v108, 0xffff0000, v39
        v_and_b32 v109, 0xffff0000, v41
        """)
        for i in range(8):
            a(f"v_lshlrev_b32 v{126+2*i}, 16, v{21+i}\nv_and_b32 v{127+2*i}, 0xffff0000, v{21+i}")
        P = lambda r: f"v[{r}:{r+1}]"
        for i in range(8): a(f"v_pk_mul_f32 {P(110+2*i)}, {P(80+2*i)}, {P(108)}")
        for i in range(8): a(f"v_pk_fma_f32 {P(110+2*i)}, {P(82+2*i)}, {P(106)}, {P(110+2*i)}")
        for i in range(8): a(f"v_pk_fma_f32 {P(110+2*i)}, {P(84+2*i)}, {P(104)}, {P(110+2*i)}")
        for i in range(8): a(f"v_pk_fma_f32 {P(110+2*i)}, {P(86+2*i)}, {P(102)}, {P(110+2*i)}")
        for i in range(8): a(f"v_pk_mul_f32 {P(110+2*i)}, {P(110+2*i)}, {P(126+2*i)}")
        for j in range(4):
            a(f"v_cvt_pk_bf16_f32 v{144+j}, v{110+2*(7-2*j)}, v{110+2*(6-2*j)}")
            a(f"v_cvt_pk_bf16_f32 v{148+j}, v{111+2*(7-2*j)}, v{111+2*(6-2*j)}")
        a(f"""
        s_lshl_b32 s60, {sX}, 18
        s_lshl_b32 s61, {sWV}, 16
        s_add_u32 s60, s60, s61
        s_lshl_b32 s61, {sM}, 7
        v_lshlrev_b32 v142, 13, v9
        v_add_u32 v142, s60, v142
        v_lshl_add_u32 v143, v8, 4, s61
        v_add_u32 v152, v142, v143
        v_sub_u32 v142, v142, v143
        v_add_u32 v142, {WS_KVT + 4080}, v142
        v_add_u32 v152, {WS_QT}, v152
        s_movk_i32 s67, 4096
        buffer_store_dwordx4 v[144:147], v142, {WS}, 0 offen{self.sc}
        buffer_store_dwordx4 v[148:151], v142, {WS}, s67 offen{self.sc}
        """)

    def p_q(self, later):
        a = self.a
        a(f"s_waitcnt vmcnt({later + 2 + 8 + 8})")
        a("s_mov_b32 s60, 0x05040100\ns_mov_b32 s61, 0x07060302")
        for j in range(4):
            a(f"v_perm_b32 v{80+j}, v{30+2*j}, v{29+2*j}, s60")
            a(f"v_perm_b32 v{84+j}, v{30+2*j}, v{29+2*j}, s61")
        a(f"""
        buffer_store_dwordx4 v[80:83], v152, {WS}, 0 offen{self.sc}
        buffer_store_dwordx4 v[84:87], v152, {WS}, s67 offen{self.sc}
        """)

    def reduce32(self, r, t):
        a = self.a
        for n in (8, 4, 2, 1):
            a(f"v_add_f32_dpp v{r}, v{r}, v{r} row_ror:{n} row_mask:0xf bank_mask:0xf")
        a(f"v_mov_b32 v{t}, v{r}\nv_permlane16_swap_b32 v{r}, v{t}\nv_add_f32 v{r}, v{r}, v{t}")

    def p_stats(self, later):
        a = self.a
        a(f"s_waitcnt vmcnt({later + 8 + 8})")
        P = lambda r: f"v[{r}:{r+1}]"
        for j in range(8):
            a(f"v_lshlrev_b32 v{90+2*j}, 16, v{44+j}\nv_and_b32 v{91+2*j}, 0xffff0000, v{44+j}")
        for j in range(4): a(f"v_pk_add_f32 {P(110+2*j)}, {P(90+4*j)}, {P(92+4*j)}")
        a(f"v_pk_add_f32 {P(110)}, {P(110)}, {P(112)}\nv_pk_add_f32 {P(114)}, {P(114)}, {P(116)}\nv_pk_add_f32 {P(110)}, {P(110)}, {P(114)}")
        a("v_add_f32 v110, v110, v111")
        self.reduce32(110, 111)
        a("v_mul_f32 v118, 0xbb000000, v110\nv_mov_b32 v119, v118")
        for j in range(8): a(f"v_pk_add_f32 {P(90+2*j)}, {P(90+2*j)}, {P(118)}")
        a(f"v_pk_mul_f32 {P(110)}, {P(90)}, {P(90)}\nv_pk_mul_f32 {P(112)}, {P(92)}, {P(92)}")
        for j in range(2, 8): a(f"v_pk_fma_f32 {P(110+2*(j&1))}, {P(90+2*j)}, {P(90+2*j)}, {P(110+2*(j&1))}")
        a(f"v_pk_add_f32 {P(110)}, {P(110)}, {P(112)}\nv_add_f32 v110, v110, v111")
        self.reduce32(110, 111)
        a(f"""
        v_mov_b32 v111, 0x3727c5ac
        v_fmac_f32 v111, 0x3b000000, v110
        v_rsq_f32 v121, v111
        s_lshl_b32 s60, s2, 5
        s_lshl_b32 s61, {sWV}, 3
        s_add_u32 s60, s60, s61
        s_add_u32 s60, s60, {WS_STAT}
        v_mul_f32 v120, v118, v121
        v_lshrrev_b32 v112, 5, v1
        v_lshl_add_u32 v112, v112, 2, s60
        v_and_b32 v113, 1, v1
        v_lshl_add_u32 v112, v113, 13, v112
        v_cmp_eq_u32 vcc, 1, v113
        v_cndmask_b32 v121, v121, v120, vcc
        v_and_b32 v113, 30, v1
        v_cmp_eq_u32 vcc, 0, v113
        s_and_saveexec_b64 s[62:63], vcc
        buffer_store_dword v121, v112, {WS}, 0 offen{self.sc}
        s_mov_b64 exec, s[62:63]
        """)

    def p_gemv(self, later, lds):
        a = self.a
        a(f"s_waitcnt vmcnt({later + 8})")
        P = lambda r: f"v[{r}:{r+1}]"
        for j in range(4): a(f"v_lshlrev_b32 v{68+j}, 16, v{68+j}")
        for j in range(4): a(f"v_mul_f32 v{90+j}, {NLOG2E}, v{68+j}")
        for j in range(4): a(f"v_exp_f32 v{90+j}, v{90+j}")
        for j in range(4): a(f"v_add_f32 v{90+j}, 1.0, v{90+j}")
        for j in range(4): a(f"v_rcp_f32 v{90+j}, v{90+j}")
        for j in range(4): a(f"v_mul_f32 v{90+j}, v{68+j}, v{90+j}")
        for j in range(4): a(f"v_cvt_pk_bf16_f32 v{90+j}, v{90+j}, v{90+j}")
        for j in range(4): a(f"v_and_b32 v{94+2*j}, 0xffff0000, v{90+j}\nv_and_b32 v{95+2*j}, 0xffff0000, v{90+j}")
        for j in range(4):
            for e in range(4):
                a(f"v_lshlrev_b32 v{110+2*e}, 16, v{52+4*j+e}\nv_and_b32 v{111+2*e}, 0xffff0000, v{52+4*j+e}")
            for e in range(4):
                if j == 0: a(f"v_pk_mul_f32 {P(120+2*e)}, {P(110+2*e)}, {P(94)}")
                else: a(f"v_pk_fma_f32 {P(120+2*e)}, {P(110+2*e)}, {P(94+2*j)}, {P(120+2*e)}")
        for e in range(8):
            a(f"v_add_f32_dpp v{120+e}, v{120+e}, v{120+e} row_ror:8 row_mask:0xf bank_mask:0xf")
        a(f"""
        v_lshrrev_b32 v110, 4, v0
        v_lshlrev_b32 v110, 8, v110
        v_lshl_add_u32 v110, v9, 5, v110
        ds_write_b128 v110, v[120:123] offset:{lds}
        ds_write_b128 v110, v[124:127] offset:{lds+16}
        s_waitcnt lgkmcnt(0)
        s_barrier
        s_cmp_lg_u32 {sWV}, 0
        s_cbranch_scc1 L_gemv_done
        v_lshlrev_b32 v110, 2, v1
        """)
        for r in range(16): a(f"ds_read_b32 v{112+r}, v110 offset:{lds + 256*r}")
        a("s_waitcnt lgkmcnt(0)")
        for st in (8, 4, 2, 1):
            for r in range(st): a(f"v_add_f32 v{112+r}, v{112+r}, v{112+r+st}")
        a(f"""
        s_and_b32 s60, s2, 3
        s_mul_i32 s60, s60, 12288
        s_lshr_b32 s61, s2, 2
        s_lshl_b32 s61, s61, 8
        s_add_u32 s60, s60, s61
        s_add_u32 s60, s60, {WS_MOD}
        s_cmp_ge_u32 s2, 192
        s_cselect_b32 s60, 0x40000000, s60
        v_add_u32 v110, s60, v110
        buffer_store_dword v112, v110, {WS}, 0 offen{self.sc}
        L_gemv_done:
        """)

    def p_w2(self, later):
        a = self.a
        a(f"s_waitcnt vmcnt({later})")
        a("s_mov_b32 s60, 0x05040100\ns_mov_b32 s61, 0x07060302")
        for j in range(4):
            a(f"v_perm_b32 v{132+j}, v{73+2*j}, v{72+2*j}, s60")
            a(f"v_perm_b32 v{136+j}, v{73+2*j}, v{72+2*j}, s61")
        a(f"""
        s_mul_i32 s60, s65, 56
        s_add_u32 s60, s60, s64
        s_lshl_b32 s60, s60, 12
        s_and_b32 s61, {sWV}, 1
        s_lshl_b32 s61, s61, 9
        s_add_u32 s60, s60, s61
        s_add_u32 s60, s60, {WS_W2P}
        s_cmp_ge_u32 s64, 56
        s_cselect_b32 s60, 0x40000000, s60
        v_lshrrev_b32 v140, 5, v1
        v_lshlrev_b32 v140, 8, v140
        v_bfe_u32 v141, v1, 4, 1
        v_lshl_add_u32 v140, v141, 11, v140
        v_bfe_u32 v141, v1, 1, 1
        v_lshl_add_u32 v140, v141, 10, v140
        v_bfe_u32 v141, v1, 2, 2
        v_lshl_add_u32 v140, v141, 6, v140
        v_and_b32 v141, 1, v1
        v_lshl_add_u32 v140, v141, 5, v140
        v_add_u32 v140, s60, v140
        buffer_store_dwordx4 v[132:135], v140, {WS}, 0 offen{self.sc}
        buffer_store_dwordx4 v[136:139], v140, {WS}, 0 offen offset:16{self.sc}
        """)

    FSZ = 8320
    def c_ids(self):
        self.a(f"""
        s_lshr_b32 s70, {sM}, 1
        s_lshl_b32 s60, {sX}, 4
        s_add_u32 s70, s70, s60
        s_and_b32 s69, {sM}, 1
        s_lshl_b32 s68, s70, 2
        s_add_u32 s68, s68, {sWV}
        s_mov_b32 s71, s69
        s_sub_u32 s72, 3, s69
        """)

    def c_filter_load(self, r0):
        a = self.a
        a(f"s_lshl_b32 s60, s68, 12\nv_lshl_add_u32 v4, v1, 4, s60\nv_add_u32 v5, 2, v4")
        for i in range(4): a(f"buffer_load_dwordx4 v[{r0+4*i}:{r0+4*i+3}], v4, {FK}, 0 offen offset:{1024*i}")
        for i in range(4): a(f"buffer_load_dwordx4 v[{r0+16+4*i}:{r0+16+4*i+3}], v5, {FK}, 0 offen offset:{1024*i}")

    def Freg(self, n):
        return f"a[{4*n}:{4*n+3}]" if n < 64 else f"v[{176+4*(n-64)}:{179+4*(n-64)}]"
    def Fhalf(self, n, h):
        b = 4 * n + 2 * h
        return f"a[{b}:{b+1}]" if n < 64 else f"v[{176+b-256}:{177+b-256}]"

    def c_filter_prep(self, r0, fb, later):
        a = self.a
        a(f"""
        s_mul_i32 s73, {sWV}, {self.FSZ}
        s_add_u32 s73, s73, {fb}
        v_and_b32 v2, 15, v1
        v_lshrrev_b32 v3, 4, v1
        v_lshl_add_u32 v4, v1, 4, s73
        v_mov_b32 v6, 0
        v_mov_b32 v7, 0
        v_mov_b32 v8, 0
        v_mov_b32 v9, 0
        v_cmp_gt_u32 vcc, 4, v1
        s_and_saveexec_b64 s[62:63], vcc
        ds_write_b128 v4, v[6:9]
        ds_write_b128 v4, v[6:9] offset:4160
        s_mov_b64 exec, s[62:63]
        s_waitcnt vmcnt({later})
        """)
        for i in range(4): a(f"ds_write_b128 v4, v[{r0+4*i}:{r0+4*i+3}] offset:{64+1024*i}")
        for i in range(4): a(f"ds_write_b128 v4, v[{r0+16+4*i}:{r0+16+4*i+3}] offset:{4160+64+1024*i}")
        a(f"""
        v_cmp_eq_u32 vcc, 0, v1
        s_and_saveexec_b64 s[62:63], vcc
        ds_write_b16 v4, v{r0} offset:{4160+62}
        s_mov_b64 exec, s[62:63]
        v_and_b32 v5, 1, v2
        v_cmp_eq_u32 vcc, 1, v5
        v_mov_b32 v5, 4160
        v_cndmask_b32 v5, v5, 2, vcc
        v_lshl_add_u32 v5, v2, 1, v5
        v_and_b32 v10, 1, v3
        v_lshl_add_u32 v5, v10, 4, v5
        v_add_u32 v5, s73, v5
        v_lshrrev_b32 v10, 1, v3
        s_add_u32 s60, s71, 1
        s_lshl_b32 s60, s60, 9
        s_add_u32 s61, s72, 1
        s_lshl_b32 s61, s61, 9
        v_mad_u32_u24 v11, v10, s60, v5
        v_mad_u32_u24 v12, v10, s61, v5
        v_add_u32 v15, s60, v11
        v_mov_b32 v10, v11
        v_add_u32 v11, 512, v11
        s_cmp_eq_u32 s69, 0
        s_cselect_b64 vcc, -1, 0
        v_cndmask_b32 v11, v11, v12, vcc
        s_sub_u32 s61, 1024, s60
        v_add_u32 v12, s61, v12
        v_add_u32 v13, 512, v12
        v_add_u32 v14, 1024, v12
        """)
        for n in range(81):
            c = min(n // 16, 4)
            o = 8 * (n - 16 * c)
            a(f"ds_read2_b32 {self.Fhalf(n,0)}, v{10+c} offset0:{o} offset1:{o+1}")
            a(f"ds_read2_b32 {self.Fhalf(n,1)}, v{10+c} offset0:{o+2} offset1:{o+3}")
        a("ds_read2_b32 v[244:245], v15 offset0:0 offset1:1\nds_read2_b32 v[246:247], v15 offset0:2 offset1:3")
        a("ds_write_b128 v4, v[6:9] offset:6144\nds_write_b128 v4, v[6:9] offset:7168")
        a(f"""
        v_sub_u32 v5, 63, v2
        v_mul_u32_u24 v5, 96, v5
        v_add_u32 v5, s73, v5
        s_mul_i32 s60, s71, {16*96}
        s_mul_i32 s61, s72, {16*96}
        v_subrev_u32 v156, s60, v5
        v_subrev_u32 v157, s61, v5
        v_and_b32 v6, 1, v3
        v_lshlrev_b32 v6, 4, v6
        v_lshrrev_b32 v7, 1, v3
        s_add_u32 s60, s71, 1
        s_mul_i32 s60, s60, 768
        s_add_u32 s61, s72, 1
        s_mul_i32 s61, s61, 768
        v_mad_u32_u24 v80, v7, s60, v156
        v_mad_u32_u24 v82, v7, s61, v157
        v_add_u32 v80, v80, v6
        v_add_u32 v82, v82, v6
        v_subrev_u32 v82, s60, v82
        s_cmp_eq_u32 s69, 0
        s_cselect_b64 vcc, -1, 0
        v_cndmask_b32 v81, v80, v82, vcc
        v_lshlrev_b32 v6, 3, v3
        v_sub_u32 v6, 24, v6
        v_add_u32 v156, v156, v6
        v_add_u32 v157, v157, v6
        v_lshrrev_b32 v83, 2, v1
        v_mul_u32_u24 v83, 96, v83
        v_and_b32 v6, 3, v1
        v_lshl_add_u32 v83, v6, 4, v83
        v_add_u32 v83, s73, v83
        """)

    def c_u_load(self):
        a = self.a
        a(f"s_lshl_b32 s60, s68, 12\ns_add_u32 s60, s60, {WS_KVT}\nv_lshl_add_u32 v4, v1, 4, s60")
        for i in range(4): a(f"buffer_load_dwordx4 v[{16+4*i}:{19+4*i}], v4, {WS}, 0 offen offset:{1024*i}{self.sc}")

    def c_epi_load(self):
        a = self.a
        a(f"""
        v_lshlrev_b32 v5, 5, v2
        v_lshl_add_u32 v5, v3, 2, v5
        s_lshl_b32 s60, s68, 12
        s_add_u32 s60, s60, {WS_QT}
        v_lshl_add_u32 v6, v5, 1, s60
        v_lshlrev_b32 v7, 2, v5
        v_add_u32 v7, {WS_STAT}, v7
        v_add_u32 v8, 8192, v7
        s_lshl_b32 s60, s71, 10
        s_lshl_b32 s61, s72, 10
        s_lshl_b32 s62, s71, 11
        s_lshl_b32 s63, s72, 11
        v_and_b32 v9, 3, v1
        s_movk_i32 s64, 12288
        v_mul_u32_u24 v9, s64, v9
        v_bfe_u32 v5, v1, 2, 2
        v_lshl_add_u32 v9, v5, 11, v9
        s_lshl_b32 s64, s68, 2
        s_add_u32 s64, s64, {WS_MOD}
        v_add_u32 v9, s64, v9
        s_lshl_b32 s64, s68, 1
        v_mov_b32 v5, s64
        buffer_load_dword v148, v9, {WS}, 0 offen{self.sc}
        buffer_load_ushort v149, v5, {SD}, 0 offen
        """)
        for sl in range(2):
            for t in range(2):
                i = 2 * sl + t
                a(f"buffer_load_dwordx2 v[{100+2*i}:{101+2*i}], v6, {WS}, s{60+sl} offen offset:{32*t}{self.sc}")
                a(f"buffer_load_dwordx4 v[{108+4*i}:{111+4*i}], v7, {WS}, s{62+sl} offen offset:{64*t}{self.sc}")
                a(f"buffer_load_dwordx4 v[{124+4*i}:{127+4*i}], v8, {WS}, s{62+sl} offen offset:{64*t}{self.sc}")

    def c_main(self, later, hook=None):
        a = self.a
        a(f"s_waitcnt vmcnt({later})")
        for i in range(4): a(f"ds_write_b128 v83, v[{16+4*i}:{19+4*i}] offset:{1536*i}")
        D = 6
        off = lambda n: 96 * (n >> 1) + 32 * (n & 1)
        base = lambda n: "v80" if n < 16 else "v81" if n < 32 else "v82"
        Br = lambda n: f"v[{48+4*(n%8)}:{51+4*(n%8)}]"
        def rd(n):
            if n < 80: a(f"ds_read_b128 {Br(n)}, {base(n)} offset:{off(n)}")
        def step(n, c0="v[84:87]", c1="v[88:91]", d0="v[84:87]", d1="v[88:91]", a1=None):
            rd(n + D)
            a(f"s_waitcnt lgkmcnt({min(D, 79 - n)})")
            a(f"v_mfma_f32_16x16x32_bf16 {d0}, {self.Freg(n)}, {Br(n)}, {c0}")
            a(f"v_mfma_f32_16x16x32_bf16 {d1}, {a1 or self.Freg(n+1)}, {Br(n)}, {c1}")
            if hook: hook(n)
        for n in range(D): rd(n)
        def boundary(n, ty):
            a(f"s_cmp_eq_u32 s69, {ty}\ns_cbranch_scc0 L_cb{n}_no")
            h = list(a.hist)
            step(n, d0="v[92:95]", d1="v[96:99]", a1="v[244:247]")
            step(n + 1, c0="0", c1="0")
            a(f"s_branch L_cb{n}_done\nL_cb{n}_no:")
            a.hist = h
            step(n); step(n + 1)
            a(f"L_cb{n}_done:")
            a("s_nop 0")
        step(0, c0="0", c1="0")
        for n in range(1, 15): step(n)
        boundary(15, 0)
        for n in range(17, 31): step(n)
        boundary(31, 1)
        for n in range(33, 80): step(n)

    XI_RS = 2368
    def c_epilogue(self, xi, wait=True):
        a = self.a
        P = lambda r: f"v[{r}:{r+1}]"
        for sl in range(2):
            for t in range(2):
                a(f"ds_read_b64 {P(140+4*sl+2*t)}, v{156+sl} offset:{32-32*t}")
        if wait: a("s_waitcnt vmcnt(0)")
        a("""
        v_add_f32_dpp v148, v148, v148 quad_perm:[1,0,3,2] row_mask:0xf bank_mask:0xf
        v_add_f32_dpp v148, v148, v148 quad_perm:[2,3,0,1] row_mask:0xf bank_mask:0xf
        v_cvt_pk_bf16_f32 v148, v148, v148
        v_and_b32 v148, 0xffff0000, v148
        v_readlane_b32 s60, v148, 0
        v_readlane_b32 s61, v148, 4
        v_readlane_b32 s62, v148, 8
        v_lshlrev_b32 v150, 16, v149
        v_mov_b32 v151, v150
        v_add_f32 v152, 1.0, s61
        v_cvt_pk_bf16_f32 v152, v152, v152
        v_and_b32 v152, 0xffff0000, v152
        v_mov_b32 v153, v152
        v_mov_b32 v154, s60
        v_mov_b32 v155, s60
        v_mov_b32 v148, s62
        v_mov_b32 v149, s62
        """)
        a(f"""
        s_mul_i32 s60, {sWV}, {self.XI_RS}
        s_add_u32 s60, s60, {xi}
        v_mul_u32_u24 v4, 144, v3
        v_lshl_add_u32 v4, v2, 3, v4
        v_add_u32 v4, s60, v4
        s_waitcnt lgkmcnt(0)
        """)
        for sl in range(2):
            for t in range(2):
                i = 2 * sl + t
                acc = (92 if sl == 0 else 84) + 4 * t
                kv, q, A, B = 140 + 2 * i, 100 + 2 * i, 108 + 4 * i, 124 + 4 * i
                a(f"""
                v_and_b32 v160, 0xffff0000, v{kv+1}
                v_lshlrev_b32 v161, 16, v{kv+1}
                v_and_b32 v162, 0xffff0000, v{kv}
                v_lshlrev_b32 v163, 16, v{kv}
                v_lshlrev_b32 v164, 16, v{q}
                v_and_b32 v165, 0xffff0000, v{q}
                v_lshlrev_b32 v166, 16, v{q+1}
                v_and_b32 v167, 0xffff0000, v{q+1}
                v_pk_fma_f32 {P(160)}, {P(160)}, {P(150)}, {P(acc)}
                v_pk_fma_f32 {P(162)}, {P(162)}, {P(150)}, {P(acc+2)}
                v_pk_fma_f32 {P(168)}, {P(164)}, {P(A)}, {P(B)}
                v_pk_fma_f32 {P(170)}, {P(166)}, {P(A+2)}, {P(B+2)}
                v_pk_mul_f32 {P(160)}, {P(160)}, {P(148)}
                v_pk_mul_f32 {P(162)}, {P(162)}, {P(148)}
                v_pk_fma_f32 {P(168)}, {P(168)}, {P(152)}, {P(154)}
                v_pk_fma_f32 {P(170)}, {P(170)}, {P(152)}, {P(154)}
                v_pk_fma_f32 {P(164)}, {P(168)}, {P(160)}, {P(164)}
                v_pk_fma_f32 {P(166)}, {P(170)}, {P(162)}, {P(166)}
                v_cvt_pk_bf16_f32 v{172+2*(i&1)}, v164, v165
                v_cvt_pk_bf16_f32 v{173+2*(i&1)}, v166, v167
                ds_write_b64 v4, {P(172+2*(i&1))} offset:{1152*sl + 576*t}
                """)
        a(f"""
        s_lshr_b32 s60, {sWV}, 1
        s_and_b32 s61, {sWV}, 1
        s_mul_i32 s62, s60, 1152
        s_lshl_b32 s63, s61, 6
        s_add_u32 s62, s62, s63
        s_add_u32 s62, s62, {xi}
        v_bfe_u32 v5, v1, 2, 2
        v_mul_u32_u24 v5, {self.XI_RS}, v5
        v_and_b32 v6, 3, v1
        v_mul_u32_u24 v6, 144, v6
        v_add3_u32 v5, v5, v6, s62
        v_lshl_add_u32 v5, v3, 3, v5
        s_cmp_eq_u32 s60, 0
        s_cselect_b32 s62, s71, s72
        s_lshl_b32 s62, s62, 4
        s_lshl_b32 s61, s61, 3
        s_add_u32 s62, s62, s61
        s_lshl_b32 s62, s62, 15
        s_lshl_b32 s63, s70, 8
        s_add_u32 s62, s62, s63
        s_add_u32 s62, s62, {WS_X1}
        v_lshlrev_b32 v6, 15, v3
        v_lshl_add_u32 v6, v2, 4, v6
        v_add_u32 v6, s62, v6
        s_mov_b32 s63, {4*32768}
        s_waitcnt lgkmcnt(0)
        s_barrier
        ds_read_b64_tr_b16 v[160:161], v5
        ds_read_b64_tr_b16 v[162:163], v5 offset:576
        ds_read_b64_tr_b16 v[164:165], v5 offset:32
        ds_read_b64_tr_b16 v[166:167], v5 offset:{576+32}
        s_waitcnt lgkmcnt(2)
        buffer_store_dwordx4 v[160:163], v6, {WS}, 0 offen{self.sc}
        s_waitcnt lgkmcnt(0)
        buffer_store_dwordx4 v[164:167], v6, {WS}, s63 offen{self.sc}
        """)

    WB = 49152
    def g1_ids(self):
        self.a(f"""
        s_lshr_b32 s74, {sM}, 4
        s_lshl_b32 s60, {sX}, 1
        s_add_u32 s74, s74, s60
        s_and_b32 s75, {sM}, 15
        """)

    def g1_rows(self, r0, scale, add):
        a = self.a
        a("s_movk_i32 s60, 4682")
        for i in range(7):
            a(f"v_add_u32 v{r0+7}, {64*i}, v1\nv_mul_u32_u24 v{r0+i}, s60, v{r0+7}\nv_lshrrev_b32 v{r0+i}, 16, v{r0+i}")
            if add:
                a(f"v_mul_u32_u24 v{r0+8}, 14, v{r0+i}\nv_sub_u32 v{r0+7}, v{r0+7}, v{r0+8}")
                a(f"v_mul_u32_u24 v{r0+i}, {scale}, v{r0+i}\nv_lshl_add_u32 v{r0+i}, v{r0+7}, 4, v{r0+i}")
            else:
                a(f"v_mul_u32_u24 v{r0+i}, {scale}, v{r0+i}")

    def g1_w1_load(self, r0):
        a = self.a
        self.g1_rows(r0, 3584, True)
        a(f"""
        s_mul_i32 s60, s75, 224
        s_mul_i32 s61, {sWV}, {4*32*3584}
        s_add_u32 s60, s60, s61
        s_mul_i32 s61, {sWV}, {28*1024}
        s_add_u32 m0, s61, {self.WB}
        """)
        for blk in range(4):
            for i in range(7):
                a(f"buffer_load_dwordx4 v{r0+i}, {W1}, s60 offen lds")
                if not (blk == 3 and i == 6): a("s_add_u32 m0, m0, 1024")
            if blk < 3: a(f"s_add_u32 s60, s60, {32*3584}")

    def g1_mod_load(self, r0):
        a = self.a
        a(f"v_lshlrev_b32 v4, 3, v0\nv_add_u32 v4, {WS_MOD + 3*2048}, v4")
        for k in range(4):
            a(f"s_mov_b32 s60, {12288*k}")
            a(f"buffer_load_dwordx2 v[{r0+4*k}:{r0+4*k+1}], v4, {WS}, s60 offen{self.sc}")
            a(f"buffer_load_dwordx2 v[{r0+4*k+2}:{r0+4*k+3}], v4, {WS}, s60 offen offset:2048{self.sc}")

    def g1_prep(self, r0, tb, later):
        a = self.a
        GT, GB, U = tb, tb + 2048, tb + 4096
        P = lambda r: f"v[{r}:{r+1}]"
        a(f"s_waitcnt vmcnt({later})")
        for h in range(2):
            a(f"v_pk_add_f32 {P(r0+2*h)}, {P(r0+2*h)}, {P(r0+4+2*h)}\nv_pk_add_f32 {P(r0+8+2*h)}, {P(r0+8+2*h)}, {P(r0+12+2*h)}")
        for h in range(2): a(f"v_pk_add_f32 {P(r0+2*h)}, {P(r0+2*h)}, {P(r0+8+2*h)}")
        a(f"""
        v_cvt_pk_bf16_f32 v{r0}, v{r0}, v{r0+1}
        v_cvt_pk_bf16_f32 v{r0+2}, v{r0+2}, v{r0+3}
        v_lshlrev_b32 v{r0+4}, 16, v{r0+2}
        v_and_b32 v{r0+5}, 0xffff0000, v{r0+2}
        v_add_f32 v{r0+4}, 1.0, v{r0+4}
        v_add_f32 v{r0+5}, 1.0, v{r0+5}
        v_cvt_pk_bf16_f32 v{r0+2}, v{r0+4}, v{r0+5}
        v_lshlrev_b32 v{r0+4}, 16, v{r0+2}
        v_and_b32 v{r0+5}, 0xffff0000, v{r0+2}
        v_lshlrev_b32 v4, 2, v0
        v_lshlrev_b32 v5, 3, v0
        ds_write_b64 v5, {P(r0+4)} offset:{GT}
        ds_write_b32 v4, v{r0+2} offset:{GB}
        ds_write_b32 v4, v{r0} offset:{GB+1024}
        v_and_b32 v2, 15, v1
        v_lshrrev_b32 v3, 4, v1
        v_lshrrev_b32 v6, 2, v1
        v_mul_u32_u24 v6, 224, v6
        v_and_b32 v7, 3, v1
        v_lshl_add_u32 v10, v7, 3, v6
        v_add_u32 v10, {self.WB}, v10
        v_add_u32 v11, 57344, v10
        v_and_b32 v6, 1, v1
        v_lshlrev_b32 v6, 10, v6
        v_lshl_add_u32 v6, v3, 3, v6
        s_lshl_b32 s60, {sWV}, 5
        v_add_u32 v8, s60, v10
        v_add_u32 v9, s60, v11
        s_waitcnt lgkmcnt(0)
        s_barrier
        """)
        for k in range(16):
            b = "v8" if k < 8 else "v9"
            o = (k % 8) * 7168
            s = 16 + 12 * (k % 2)
            a(f"""
            ds_read_b64 v[{s}:{s+1}], v6 offset:{GB + 64*k}
            ds_read_b64 v[{s+2}:{s+3}], v6 offset:{GB + 64*k + 32}
            ds_read_b64_tr_b16 v[{s+4}:{s+5}], {b} offset:{o}
            ds_read_b64_tr_b16 v[{s+6}:{s+7}], {b} offset:{o+3584}
            ds_read_b64_tr_b16 v[{s+8}:{s+9}], {b} offset:{o+128}
            ds_read_b64_tr_b16 v[{s+10}:{s+11}], {b} offset:{o+3584+128}
            """)
            if k > 0:
                p = 16 + 12 * ((k - 1) % 2)
                c0, c1 = ("0", "0") if k == 1 else ("v[40:43]", "v[44:47]")
                a(f"s_waitcnt lgkmcnt(6)\nv_mfma_f32_16x16x32_bf16 v[40:43], v[{p+4}:{p+7}], v[{p}:{p+3}], {c0}\nv_mfma_f32_16x16x32_bf16 v[44:47], v[{p+8}:{p+11}], v[{p}:{p+3}], {c1}")
        a("s_waitcnt lgkmcnt(0)\nv_mfma_f32_16x16x32_bf16 v[40:43], v[32:35], v[28:31], v[40:43]\nv_mfma_f32_16x16x32_bf16 v[44:47], v[36:39], v[28:31], v[44:47]")
        self.g1_rows(16, 4, False)
        a(f"""
        v_and_b32 v6, 1, v1
        v_mul_u32_u24 v6, 512, v6
        v_lshl_add_u32 v6, v3, 4, v6
        s_lshl_b32 s60, {sWV}, 6
        v_add_u32 v6, s60, v6
        ds_write_b128 v6, v[40:43] offset:{U}
        ds_write_b128 v6, v[44:47] offset:{U+256}
        s_mul_i32 s60, {sWV}, {28*1024}
        s_add_u32 s60, s60, {self.WB}
        v_lshl_add_u32 v7, v1, 4, s60
        s_lshl_b32 s60, {sWV}, 9
        """)
        for i in range(7): a(f"v_add_u32 v{16+i}, s60, v{16+i}")
        a("s_waitcnt lgkmcnt(0)\ns_barrier")
        NB = 4
        def rd(n):
            if n < 28:
                s = 24 + 8 * (n % NB)
                a(f"ds_read_b128 v[{s}:{s+3}], v7 offset:{1024*n}\nds_read_b32 v{s+4}, v{16+n%7} offset:{GT + 128*(n//7)}")
        for n in range(NB - 1): rd(n)
        for n in range(28):
            rd(n + NB - 1)
            s = 24 + 8 * (n % NB)
            left = min(NB - 1, 27 - n)
            a(f"s_waitcnt lgkmcnt({2*left})")
            for e in range(4): a(f"v_lshlrev_b32 v{56+2*e}, 16, v{s+e}\nv_and_b32 v{57+2*e}, 0xffff0000, v{s+e}")
            for e in range(4): a(f"v_pk_mul_f32 {P(56+2*e)}, {P(56+2*e)}, {P(s+4)} op_sel_hi:[1,0]")
            for e in range(4): a(f"v_cvt_pk_bf16_f32 v{s+e}, v{56+2*e}, v{57+2*e}")
            a(f"ds_write_b128 v7, v[{s}:{s+3}] offset:{1024*n}")
        a("s_waitcnt lgkmcnt(0)\ns_barrier")

    def g1_x_load(self):
        a = self.a
        a(f"""
        s_lshl_b32 s60, s74, 2
        s_add_u32 s60, s60, {sWV}
        s_lshl_b32 s60, s60, 15
        s_add_u32 s60, s60, {WS_X1}
        v_lshlrev_b32 v4, 4, v1
        """)
        for k in range(16):
            for h in range(2):
                a(f"buffer_load_dwordx4 v[{64+8*k+4*h}:{67+8*k+4*h}], v4, {WS}, s60 offen offset:{(2*k+h)%4*1024}{self.sc}")
            if k % 2 == 1 and k < 15: a("s_add_u32 s60, s60, 4096")

    def g1_main(self, later):
        a = self.a
        for r in range(12, 16): a(f"v_mov_b32 v{r}, 0x3f803f80")
        NR = 8
        Wr = lambda n: 16 + 4 * (n % NR)
        def rd(n):
            if n < 112:
                k, ft = divmod(n, 7)
                b = "v10" if k < 8 else "v11"
                o = (k % 8) * 7168 + 32 * ft
                a(f"ds_read_b64_tr_b16 v[{Wr(n)}:{Wr(n)+1}], {b} offset:{o}\nds_read_b64_tr_b16 v[{Wr(n)+2}:{Wr(n)+3}], {b} offset:{o+3584}")
        D = 6
        for n in range(D): rd(n)
        for k in range(16):
            x = 64 + 8 * k
            a(f"s_waitcnt vmcnt({later + 30 - 2*k})")
            a(f"v_swap_b32 v{x+2}, v{x+4}\nv_swap_b32 v{x+3}, v{x+5}")
            for ft in range(7):
                n = 7 * k + ft
                rd(n + D)
                a(f"s_waitcnt lgkmcnt({2*min(D, 111-n)})")
                for t in range(2):
                    d = 192 + 8 * ft + 4 * t
                    c = "0" if k == 0 else f"v[{d}:{d+3}]"
                    a(f"v_mfma_f32_16x16x32_bf16 v[{d}:{d+3}], v[{Wr(n)}:{Wr(n)+3}], v[{x+4*t}:{x+4*t+3}], {c}")
                if ft in (2, 4):
                    t = (ft - 2) // 2
                    for j, A in ((0, "v[12:15]"), (1, f"v[{x+4*t}:{x+4*t+3}]")):
                        d = 48 + 8 * t + 4 * j
                        c = "0" if k == 0 else f"v[{d}:{d+3}]"
                        a(f"v_mfma_f32_16x16x32_bf16 v[{d}:{d+3}], {A}, v[{x+4*t}:{x+4*t+3}], {c}")

    def g1_epilogue(self, tb):
        a = self.a
        U = tb + 4096
        P = lambda r: f"v[{r}:{r+1}]"
        a("v_lshlrev_b32 v4, 4, v3")
        for ft in range(7):
            a(f"ds_read_b128 v[{64+8*ft}:{67+8*ft}], v4 offset:{U + 64*ft}\nds_read_b128 v[{68+8*ft}:{71+8*ft}], v4 offset:{U + 512 + 64*ft}")
        a("""
        v_lshrrev_b32 v5, 2, v2
        v_lshl_add_u32 v5, v5, 4, v2
        v_lshlrev_b32 v5, 2, v5
        v_and_b32 v6, 3, v1
        v_cmp_eq_u32 s[60:61], 1, v6
        v_cmp_eq_u32 s[62:63], 2, v6
        v_cmp_eq_u32 s[64:65], 3, v6
        """)
        for t in range(2):
            g = 52 + 8 * t
            a(f"v_cndmask_b32 v{g}, v{g}, v{g+1}, s[60:61]\nv_cndmask_b32 v{g}, v{g}, v{g+2}, s[62:63]\nv_cndmask_b32 v{g}, v{g}, v{g+3}, s[64:65]")
            a(f"ds_bpermute_b32 v{g}, v5, v{g}")
        a("s_waitcnt lgkmcnt(0)")
        for t in range(2):
            sm, g, o = 48 + 8 * t, 52 + 8 * t, 16 + 4 * t
            a(f"""
            v_mul_f32 v{sm}, 0x3b000000, v{sm}
            v_mul_f32 v{sm+1}, v{sm}, v{sm}
            v_mov_b32 v{sm+2}, 0x3b000000
            v_fma_f32 v{g}, v{g}, v{sm+2}, -v{sm+1}
            v_max_f32 v{g}, 0, v{g}
            v_add_f32 v{g}, 0x3727c5ac, v{g}
            v_rsq_f32 v{o}, v{g}
            v_mul_f32 v{o+1}, v{sm}, v{o}
            v_sub_f32 v{o+1}, 0, v{o+1}
            """)
        a(f"""
        v_mov_b32 v24, {NLOG2E}
        v_mov_b32 v26, 1.0
        s_lshl_b32 s60, s74, 1
        s_lshr_b32 s61, {sWV}, 1
        s_add_u32 s60, s60, s61
        s_mul_i32 s60, s60, 56
        s_lshr_b32 s61, s75, 1
        s_mul_i32 s61, s61, 7
        s_add_u32 s60, s60, s61
        s_lshl_b32 s60, s60, 12
        s_and_b32 s61, {sWV}, 1
        s_lshl_b32 s61, s61, 11
        s_add_u32 s60, s60, s61
        s_add_u32 s60, s60, {WS_H}
        s_and_b32 s61, s75, 1
        s_mul_i32 s62, s61, {3*4096}
        s_add_u32 s62, s62, s60
        s_lshl_b32 s61, s61, 9
        s_add_u32 s61, s61, s60
        s_add_u32 s61, s61, {6*4096}
        v_lshlrev_b32 v4, 4, v1
        v_and_b32 v5, 1, v3
        v_lshlrev_b32 v5, 10, v5
        v_lshl_add_u32 v5, v2, 4, v5
        v_lshrrev_b32 v6, 1, v3
        v_lshl_add_u32 v5, v6, 8, v5
        """)
        for ft in range(7):
            if ft == 3: a.region("g1e1")
            for t in range(2):
                d, o = 192 + 8 * ft + 4 * t, 16 + 4 * t
                u1, u2 = 64 + 8 * ft, 68 + 8 * ft
                w = 28 + 8 * t
                dst = 128 + 8 * (ft // 2) + 4 * t + 2 * (ft % 2) if ft < 6 else 152 + 2 * t
                for h in range(2): a(f"v_pk_fma_f32 {P(w+2*h)}, {P(u1+2*h)}, {P(o)}, {P(u2+2*h)} op_sel:[0,1,0] op_sel_hi:[1,1,1]")
                for h in range(2): a(f"v_pk_fma_f32 {P(d+2*h)}, {P(d+2*h)}, {P(o)}, {P(w+2*h)} op_sel_hi:[1,0,1]")
                for h in range(2): a(f"v_pk_mul_f32 {P(w+2*h)}, {P(d+2*h)}, {P(24)} op_sel_hi:[1,0]")
                for r in range(4): a(f"v_exp_f32 v{w+r}, v{w+r}")
                for h in range(2): a(f"v_pk_add_f32 {P(w+2*h)}, {P(w+2*h)}, {P(26)} op_sel_hi:[1,0]")
                for r in range(4): a(f"v_rcp_f32 v{w+r}, v{w+r}")
                for h in range(2): a(f"v_pk_mul_f32 {P(d+2*h)}, {P(d+2*h)}, {P(w+2*h)}")
                for h in range(2): a(f"v_cvt_pk_bf16_f32 v{dst+h}, v{d+2*h}, v{d+2*h+1}")
                if ft % 2 == 1:
                    b = dst - 2
                    a(f"buffer_store_dwordx4 v[{b}:{b+3}], v4, {WS}, s62 offen offset:{1024*t}{self.sc}")
                elif ft == 6 and t == 1:
                    a("v_permlane16_swap_b32 v152, v154\nv_permlane16_swap_b32 v153, v155")
                    a(f"buffer_store_dwordx4 v[152:155], v5, {WS}, s61 offen{self.sc}")
            if ft in (1, 3): a("s_add_u32 s62, s62, 4096")

    def g2_ids(self):
        self.a(f"""
        s_lshr_b32 s76, {sM}, 3
        s_lshl_b32 s60, {sX}, 2
        s_add_u32 s76, s76, s60
        s_and_b32 s77, {sM}, 7
        """)

    def g2_w2_load(self, k0=0, k1=14):
        a = self.a
        a(f"""
        s_mul_i32 s60, s77, 56
        s_mul_i32 s61, {sWV}, 14
        s_add_u32 s60, s60, s61
        s_add_u32 s60, s60, {k0}
        s_lshl_b32 s60, s60, 12
        s_add_u32 s60, s60, {WS_W2P}
        v_lshlrev_b32 v4, 4, v1
        """)
        for k in range(k0, k1):
            for dt in range(4):
                a(f"buffer_load_dwordx4 a[{16*k+4*dt}:{16*k+4*dt+3}], v4, {WS}, s60 offen offset:{1024*dt}{self.sc}")
            if k < k1 - 1: a("s_add_u32 s60, s60, 4096")

    def g2_w2_addr(self, k0):
        self.a(f"""
        s_mul_i32 s79, s77, 56
        s_mul_i32 s61, {sWV}, 14
        s_add_u32 s79, s79, s61
        s_lshl_b32 s79, s79, 12
        s_add_u32 s79, s79, {WS_W2P + 4096*k0}
        v_lshlrev_b32 v9, 4, v1
        """)

    def g2_w2_one(self, i, v="v9"):
        self.a(f"buffer_load_dwordx4 a[{4*i}:{4*i+3}], {v}, {WS}, s79 offen offset:{1024*(i%4)}{self.sc}")
        if i % 4 == 3: self.a("s_add_u32 s79, s79, 4096")

    def g2_epi_load(self):
        a = self.a
        a(f"""
        s_lshl_b32 s60, s77, 8
        s_add_u32 s60, s60, {WS_MOD + 5*2048}
        v_lshl_add_u32 v5, v1, 2, s60
        s_mov_b32 s61, 12288
        s_mov_b32 s62, {2*12288}
        s_mov_b32 s63, {3*12288}
        buffer_load_dword v16, v5, {WS}, 0 offen{self.sc}
        buffer_load_dword v17, v5, {WS}, s61 offen{self.sc}
        buffer_load_dword v18, v5, {WS}, s62 offen{self.sc}
        buffer_load_dword v19, v5, {WS}, s63 offen{self.sc}
        s_lshl_b32 s60, s76, 1
        s_lshr_b32 s61, {sWV}, 1
        s_add_u32 s60, s60, s61
        s_lshl_b32 s60, s60, 15
        s_lshl_b32 s61, s77, 12
        s_add_u32 s60, s60, s61
        s_and_b32 s61, {sWV}, 1
        s_lshl_b32 s61, s61, 3
        s_add_u32 s60, s60, s61
        s_add_u32 s60, s60, {WS_X1}
        v_and_b32 v2, 15, v1
        v_lshrrev_b32 v3, 4, v1
        v_lshlrev_b32 v5, 9, v3
        v_lshl_add_u32 v5, v2, 4, v5
        """)
        for p in range(2):
            for h in range(2):
                a(f"buffer_load_dwordx2 v[{20+4*p+2*h}:{21+4*p+2*h}], v5, {WS}, s60 offen offset:{2048*p + 256*h}{self.sc}")

    HR = 10
    def g2_h_issue(self, k):
        a = self.a
        r = 32 + 16 * (k % self.HR)
        for st in range(4):
            if k % 7 == 6:
                a(f"buffer_load_dwordx2 v[{r+4*st}:{r+4*st+1}], v7, {WS}, s78 offen offset:{1024*st}{self.sc}")
                a(f"buffer_load_dwordx2 v[{r+4*st+2}:{r+4*st+3}], v7, {WS}, s78 offen offset:{1024*st+512}{self.sc}")
            else:
                a(f"buffer_load_dwordx4 v[{r+4*st}:{r+4*st+3}], v6, {WS}, s78 offen offset:{1024*st}{self.sc}")
        a("s_add_u32 s78, s78, 4096")

    def g2_main(self):
        a = self.a
        a(f"""
        s_mul_i32 s78, s76, 56
        s_mul_i32 s61, {sWV}, 14
        s_add_u32 s78, s78, s61
        s_lshl_b32 s78, s78, 12
        s_add_u32 s78, s78, {WS_H}
        v_lshlrev_b32 v6, 4, v1
        v_lshlrev_b32 v7, 3, v1
        """)
        cnt = lambda k: 8 if k % 7 == 6 else 4
        for k in range(self.HR): self.g2_h_issue(k)
        issued = self.HR
        for k in range(14):
            a(f"s_waitcnt vmcnt({sum(cnt(j) for j in range(k+1, issued))})")
            r = 32 + 16 * (k % self.HR)
            for st in range(4):
                for dt in range(4):
                    d = 192 + 16 * st + 4 * dt
                    c = "0" if k == 0 else f"v[{d}:{d+3}]"
                    a(f"v_mfma_f32_16x16x32_bf16 v[{d}:{d+3}], a[{16*k+4*dt}:{16*k+4*dt+3}], v[{r+4*st}:{r+4*st+3}], {c}")
            if issued < 14:
                self.g2_h_issue(issued); issued += 1

    def g2_epilogue(self, rb, tb):
        a = self.a
        P = lambda r: f"v[{r}:{r+1}]"
        a(f"""
        v_add_f32 v16, v16, v17
        v_add_f32 v18, v18, v19
        v_add_f32 v16, v16, v18
        v_cvt_pk_bf16_f32 v16, v16, v16
        v_and_b32 v16, 0xffff0000, v16
        s_lshl_b32 s60, {sWV}, 8
        s_add_u32 s60, s60, {tb}
        v_lshl_add_u32 v5, v1, 2, s60
        ds_write_b32 v5, v16
        v_lshl_add_u32 v5, v3, 5, s60
        s_lshl_b32 s60, {sWV}, 12
        s_add_u32 s60, s60, {rb}
        v_lshl_add_u32 v4, v1, 4, s60
        s_lshl_b32 s60, {sWV}, 14
        s_add_u32 s60, s60, {rb}
        v_lshl_add_u32 v6, v1, 4, s60
        """)
        for st in range(4):
            for dt in range(4):
                d = 192 + 16 * st + 4 * dt
                a(f"ds_write_b128 v4, v[{d}:{d+3}] offset:{16384*st + 1024*dt}")
        for p in range(2):
            for h in range(2):
                a(f"ds_read_b128 v[{32+8*p+4*h}:{35+8*p+4*h}], v5 offset:{128*p + 16*h}")
        a(f"""
        s_lshl_b32 s60, s76, 16
        s_lshl_b32 s61, {sWV}, 14
        s_add_u32 s60, s60, s61
        s_lshl_b32 s61, s77, 7
        s_add_u32 s60, s60, s61
        v_lshlrev_b32 v7, 10, v2
        v_lshl_add_u32 v7, v3, 4, v7
        s_waitcnt lgkmcnt(0)
        s_barrier
        """)
        for dt in range(4):
            for src in range(4):
                r = 64 + 16 * dt + 4 * src
                a(f"ds_read_b128 v[{r}:{r+3}], v6 offset:{4096*src + 1024*dt}")
        for dt in range(4):
            r = 64 + 16 * dt
            a(f"s_waitcnt lgkmcnt({12 - 4*dt})")
            for h in range(2): a(f"v_pk_add_f32 {P(r+2*h)}, {P(r+2*h)}, {P(r+4+2*h)}\nv_pk_add_f32 {P(r+8+2*h)}, {P(r+8+2*h)}, {P(r+12+2*h)}")
            x = 20 + 2 * dt
            a(f"""
            v_lshlrev_b32 v48, 16, v{x}
            v_and_b32 v49, 0xffff0000, v{x}
            v_lshlrev_b32 v50, 16, v{x+1}
            v_and_b32 v51, 0xffff0000, v{x+1}
            """)
            for h in range(2): a(f"v_pk_add_f32 {P(r+2*h)}, {P(r+2*h)}, {P(r+8+2*h)}")
            for h in range(2): a(f"v_pk_fma_f32 {P(r+2*h)}, {P(r+2*h)}, {P(32+4*dt+2*h)}, {P(48+2*h)}")
            for h in range(2): a(f"v_cvt_pk_bf16_f32 v{52+2*dt+h}, v{r+2*h}, v{r+2*h+1}")
            if dt % 2 == 1:
                b = 52 + 2 * (dt - 1)
                a(f"buffer_store_dwordx4 v[{b}:{b+3}], v7, {OUT}, s60 offen offset:{32*(dt-1)}")

def build_split(diag=False):
    g = G(sc=False, diag=diag)
    a = g.a
    S = g.stamp
    hdr = [f"; @launch kernel=k1_kernel grid=(256,1,1) block=(256,1,1) lds=4096"]
    a.raw('.amdgcn_target "amdgcn-amd-amdhsa--gfx950"\n.text')
    g.entry("k1_kernel", [0, 1, 2, 3, 7, 8, 9, 11])
    g.p_loads(); S()
    g.p_kv(0); S()
    g.p_q(2); S()
    g.p_stats(4); S()
    g.p_gemv(5, 0); S()
    g.p_w2(0)
    g.exit("k1_kernel")
    hdr.append("; @launch kernel=k2_kernel grid=(256,1,1) block=(256,1,1) lds=49152")
    g.entry("k2_kernel", [4, 5, 11])
    g.c_ids()
    g.c_filter_load(16); S()
    g.c_filter_prep(16, 2048, 0); S()
    g.c_u_load()
    g.c_epi_load(); S()
    a("s_waitcnt vmcnt(14)"); S()
    g.c_main(14); S()
    g.c_epilogue(2048 + 4 * G.FSZ)
    g.exit("k2_kernel")
    hdr.append("; @launch kernel=k3_kernel grid=(256,1,1) block=(256,1,1) lds=163840")
    g.entry("k3_kernel", [6, 11])
    g.g1_ids()
    g.g1_w1_load(16)
    g.g1_mod_load(32); S()
    a("s_waitcnt vmcnt(0)"); S()
    g.g1_x_load(); S()
    g.g1_prep(32, 0, 32); S()
    g.g1_main(0); S()
    g.g1_epilogue(0)
    g.exit("k3_kernel")
    hdr.append("; @launch kernel=k4_kernel grid=(256,1,1) block=(256,1,1) lds=66560")
    g.entry("k4_kernel", [10, 11])
    g.g2_ids()
    g.g2_epi_load()
    g.g2_w2_load(0, 13)
    a("s_waitcnt vmcnt(40)")
    g.g2_w2_load(13, 14); S()
    a("s_waitcnt vmcnt(16)"); S()
    g.g2_main(); S()
    g.g2_epilogue(0, 65536)
    g.exit("k4_kernel")
    a.raw('.section .rodata,"a"')
    a.raw(desc("k1_kernel", 160, 160))
    a.raw(desc("k2_kernel", 512, 256))
    a.raw(desc("k3_kernel", 256, 256))
    a.raw(desc("k4_kernel", 512, 256))
    return "\n".join(hdr) + "\n" + a.text()

def build_fused(diag=False):
    g = G(sc=True, diag=diag)
    a = g.a
    S = g.stamp
    kn = NAME + "_kernel"
    hdr = ["; @launch grid=(256,1,1) block=(256,1,1) lds=163840"]
    a.raw('.amdgcn_target "amdgcn-amd-amdhsa--gfx950"\n.text')
    TB, FB = 0, 5376
    XI = FB + 4 * G.FSZ
    g.entry(kn, list(range(13)))
    g.nonce_start()
    g.p_loads()
    g.c_ids(); g.g1_ids(); g.g2_ids()
    g.c_filter_load(160); S()
    g.p_kv(8)
    g.p_q(8 + 2)
    g.p_stats(8 + 4)
    g.p_gemv(8 + 5, XI)
    g.p_w2(0); S()
    g.nonce_get()
    g.signal(0, 8); S()
    g.g1_w1_load(100)
    g.c_filter_prep(160, FB, 63); S()
    g.wait_all(0); S()
    g.c_u_load()
    g.c_epi_load()
    NW, K0 = 7, 12
    def hook(n):
        if n == K0 - 1:
            a("s_waitcnt vmcnt(0)")
            g.g2_w2_addr(0)
        if K0 <= n < K0 + 8 * NW and (n - K0) % 2 == 0:
            g.g2_w2_one((n - K0) // 2)
    g.c_main(14, hook); S()
    g.c_epilogue(XI, wait=False)
    g.signal(1, 8); S()
    g.g1_mod_load(32)
    for i in range(4 * NW, 56): g.g2_w2_one(i, "v9")
    g.g1_prep(32, TB, 56 - 4 * NW); S()
    g.wait_all(1); S()
    g.g1_x_load()
    g.g1_main(0); S()
    g.g1_epilogue(TB)
    g.signal(2, 1); S()
    g.g2_epi_load()
    g.wait_group16(2); S()
    g.g2_main(); S()
    g.g2_epilogue(G.WB, 0)
    g.exit(kn)
    a.raw('.section .rodata,"a"')
    a.raw(desc(kn, 512, 256))
    return "\n".join(hdr) + "\n" + a.text()

if __name__ == "__main__":
    mode = sys.argv[2] if len(sys.argv) > 2 else "split"
    diag = sys.argv[3] if len(sys.argv) > 3 else False
    open(sys.argv[1], "w").write(globals()["build_" + mode](diag))
```

```python
import sys, os
OPT = dict(kv.split('=') for kv in os.environ.get('OPT', '').split(',') if kv)
opt = lambda k, d: int(OPT.get(k, d))
from asmlib import Asm, desc, add_pads
from gen import *

FLAG_A, FLAG_B, FLAG_2, FLAG_3 = WS_FLAG, WS_FLAG + MB, WS_FLAG + 2 * MB, WS_FLAG + 3 * MB
FL = opt('fl', 7)
P = lambda r: f"v[{r}:{r+1}]"
Q4 = lambda r: f"v[{r}:{r+3}]"

class G2(G):
    NT = " nt"
    NTF = " nt" if opt('ntf', 1) else ""
    NTQ = " nt" if opt('ntq', 1) else ""
    NTW1 = " nt" if opt('ntw1', 0) else ""
    FB, FSZ, WB = 1536, 7584, 32768
    XI, XI_RS = 1536, 7616
    T_GB, T_U, T_UP = 1536 + 2560, 1536 + 4608, 1536 + 7584 + 2560

    def code_prefetch(self):
        self.a("""
        s_getpc_b64 s[60:61]
        L_pc:
        v_lshlrev_b32 v4, 7, v0
        v_min_u32 v4, L_warm_ret-L_pc, v4
        v_mov_b32 v5, s61
        v_add_co_u32 v4, vcc, s60, v4
        v_addc_co_u32 v5, vcc, 0, v5, vcc
        global_load_dword v253, v[4:5], off
        """)

    def warm(self, *plans):
        if not opt('warm', 1): return
        a = self.a
        self.nwarm = getattr(self, 'nwarm', 0) + 1
        a("s_mov_b64 exec, 0")
        for w, regs in plans:
            lab = f"L_w{self.nwarm}_{w}"
            a(f"s_cmp_lg_u32 {sWV}, {w}\ns_cbranch_scc1 {lab}")
            for r in regs: a(f"s_call_b64 s[98:99], L_reg_{r}")
            a(f"{lab}:")
        a("s_mov_b64 exec, -1")

    def nonce_issue(self, b):
        self.a(f"v_mov_b32 v{b+2}, 0\nbuffer_load_dwordx2 v[{b}:{b+1}], v{b+2}, {DBG}, 0 offen sc1")

    def nonce_finish(self, tag, b):
        self.a(f"""
        s_mov_b32 s62, 0
        L_nonce_{tag}:
        s_waitcnt vmcnt(0)
        v_readfirstlane_b32 s80, v{b}
        v_readfirstlane_b32 s81, v{b+1}
        s_add_u32 s62, s62, 1
        s_cmp_lg_u32 s81, 0
        s_cbranch_scc1 L_nonce_{tag}_ok
        s_cmp_gt_u32 s62, {SPIN}
        s_cbranch_scc1 L_nonce_{tag}_ok
        v_mov_b32 v{b+2}, 0
        buffer_load_dwordx2 v[{b}:{b+1}], v{b+2}, {DBG}, 0 offen sc1
        s_branch L_nonce_{tag}
        L_nonce_{tag}_ok:
        """)

    def flag_store(self, soff, replicas, rstride_log2, b=4):
        self.a(f"""
        v_lshl_add_u32 v{b+2}, v1, {rstride_log2}, {soff}
        v_mov_b32 v{b}, s80
        v_mov_b32 v{b+1}, s81
        s_mov_b64 exec, {(1 << replicas) - 1}
        buffer_store_dwordx2 v[{b}:{b+1}], v{b+2}, {WS}, 0 offen sc1
        s_mov_b64 exec, -1
        """)

    def wide_flag_load(self, va, vd):
        return (f"buffer_load_dwordx2 v[{vd}:{vd+1}], {va}, {WS}, 0 offen sc1\n"
                f"buffer_load_dwordx2 v[{vd+2}:{vd+3}], {va}, {WS}, 0 offen offset:{1 << FL} sc1")

    def poll(self, tag, wide=False, first_issued=False, va="v4", vd=6, later=0):
        a = self.a
        ld = (self.wide_flag_load(va, vd) if wide else
              f"buffer_load_dwordx2 v[{vd}:{vd+1}], {va}, {WS}, 0 offen sc1")
        a("s_mov_b32 s62, 0")
        if first_issued:
            a(f"s_waitcnt vmcnt({later})\ns_branch L_poll_{tag}_chk")
        a(f"L_poll_{tag}:\n{ld}\ns_waitcnt vmcnt(0)\nL_poll_{tag}_chk:")
        a(f"v_cmp_ne_u64 vcc, s[80:81], v[{vd}:{vd+1}]")
        if wide:
            a(f"v_cmp_ne_u64 s[60:61], s[80:81], v[{vd+2}:{vd+3}]\ns_or_b64 vcc, vcc, s[60:61]")
        a(f"""
        s_add_u32 s62, s62, 1
        s_cbranch_vccz L_poll_{tag}_ok
        s_cmp_gt_u32 s62, {SPIN}
        s_cbranch_scc1 L_poll_{tag}_ok
        s_sleep {opt('sleep', 4)}
        s_branch L_poll_{tag}
        L_poll_{tag}_ok:
        """)

    def tile_off(self, h):
        self.a(f"""
        s_lshl_b32 s60, {sM}, 16
        s_lshl_b32 s61, {sX}, 7
        s_add_u32 s60, s60, s61
        s_lshl_b32 s61, {h}, 15
        s_add_u32 s60, s60, s61
        v_lshrrev_b32 v8, 4, v1
        v_and_b32 v9, 15, v1
        v_lshlrev_b32 v2, 13, v8
        v_lshl_add_u32 v2, v9, 3, v2
        v_add_u32 v2, s60, v2
        v_add_u32 v5, 4096, v2
        """)

    def role_a(self):
        a = self.a
        self.tile_off(sWV)
        a(f"""
        v_subrev_u32 v3, 3072, v2
        s_lshl_b32 s62, {sX}, 9
        v_lshl_add_u32 v56, v9, 5, s62
        buffer_load_dwordx4 v[48:51], v56, {SK}, 0 offen
        buffer_load_dwordx4 v[52:55], v56, {SK}, 0 offen offset:16
        """)
        self.stamp("s")
        for j in range(11):
            base, off = ("v3", j * 1024) if j < 3 else ("v2", (j - 3) * 1024) if j < 7 else ("v5", (j - 7) * 1024)
            a(f"buffer_load_dwordx2 {P(10+2*j)}, {base}, {K}, 0 offen offset:{off}{self.NT}")
        for j in range(8):
            base, off = ("v2", j * 1024) if j < 4 else ("v5", (j - 4) * 1024)
            a(f"buffer_load_dwordx2 {P(32+2*j)}, {base}, {V}, 0 offen offset:{off}{self.NT}")
        self.stamp("s")
        a(f"""
        s_lshl_b32 s60, {sX}, 18
        s_lshl_b32 s61, {sM}, 7
        s_sub_u32 s60, s60, s61
        s_lshl_b32 s61, {sWV}, 6
        s_sub_u32 s60, s60, s61
        s_add_u32 s60, s60, {WS_KVT + 4080}
        v_lshlrev_b32 v142, 14, v9
        v_lshlrev_b32 v143, 4, v8
        v_sub_u32 v142, v142, v143
        v_add_u32 v142, s60, v142
        s_movk_i32 s64, 4096
        s_movk_i32 s65, 8192
        s_movk_i32 s66, 12288
        """)
        self.c_ids(); self.g1_ids(); self.g2_ids()
        self.stamp("s")
        self.warm((0, ["kv0", "fprep", "ufetch", "conv0"]), (1, ["kv1", "addr", "conv1"]))
        self.stamp(); self.stamp("s")
        a("s_waitcnt vmcnt(0)")
        self.stamp(); self.stamp("s")
        for p in range(2):
            a.region(f"kv{p}")
            s0, s1 = 48 + 4 * p, 50 + 4 * p
            a(f"""
            v_lshlrev_b32 v102, 16, v{s0}
            v_lshlrev_b32 v103, 16, v{s1}
            v_and_b32 v104, 0xffff0000, v{s0}
            v_and_b32 v105, 0xffff0000, v{s1}
            v_lshlrev_b32 v106, 16, v{s0+1}
            v_lshlrev_b32 v107, 16, v{s1+1}
            v_and_b32 v108, 0xffff0000, v{s0+1}
            v_and_b32 v109, 0xffff0000, v{s1+1}
            """)
            for j in range(11):
                a(f"v_lshlrev_b32 v{80+2*j}, 16, v{10+2*j+p}\nv_and_b32 v{81+2*j}, 0xffff0000, v{10+2*j+p}")
            for i in range(8):
                a(f"v_lshlrev_b32 v{126+2*i}, 16, v{32+2*i+p}\nv_and_b32 v{127+2*i}, 0xffff0000, v{32+2*i+p}")
            for i in range(8): a(f"v_pk_mul_f32 {P(110+2*i)}, {P(80+2*i)}, {P(108)}")
            for i in range(8): a(f"v_pk_fma_f32 {P(110+2*i)}, {P(82+2*i)}, {P(106)}, {P(110+2*i)}")
            for i in range(8): a(f"v_pk_fma_f32 {P(110+2*i)}, {P(84+2*i)}, {P(104)}, {P(110+2*i)}")
            for i in range(8): a(f"v_pk_fma_f32 {P(110+2*i)}, {P(86+2*i)}, {P(102)}, {P(110+2*i)}")
            for i in range(8): a(f"v_pk_mul_f32 {P(110+2*i)}, {P(110+2*i)}, {P(126+2*i)}")
            o = 144 + 8 * p
            for j in range(4):
                a(f"v_cvt_pk_bf16_f32 v{o+j}, v{110+2*(7-2*j)}, v{110+2*(6-2*j)}")
                a(f"v_cvt_pk_bf16_f32 v{o+4+j}, v{111+2*(7-2*j)}, v{111+2*(6-2*j)}")
            so = ("0", "s64") if p == 0 else ("s65", "s66")
            a(f"buffer_store_dwordx4 {Q4(o)}, v142, {WS}, {so[0]} offen sc1\nbuffer_store_dwordx4 {Q4(o+4)}, v142, {WS}, {so[1]} offen sc1")
        self.nonce_issue(250)
        self.stamp()

    def w1_touch(self, j):
        self.a(f"""
        s_lshl_b32 s60, {sM}, 1
        s_add_u32 s60, s60, {sWV}
        s_mul_i32 s60, s60, {8*3584}
        s_and_b32 s61, {sX}, 1
        s_mul_i32 s61, s61, 1792
        s_add_u32 s60, s60, s61
        s_movk_i32 s61, 4682
        v_add_u32 v250, {64*j}, v1
        v_min_u32 v250, 111, v250
        v_mul_u32_u24 v251, s61, v250
        v_lshrrev_b32 v251, 16, v251
        v_mul_u32_u24 v251, {3584 - 14*128}, v251
        v_lshl_add_u32 v251, v250, 7, v251
        buffer_load_dword v{248+j}, v251, {W1}, s60 offen{self.NTW1}
        """)

    def flag_a(self):
        a = self.a
        self.nonce_finish("a", 250)
        a(f"""
        s_lshl_b32 s60, {sX}, 5
        s_add_u32 s60, s60, {sM}
        s_lshl_b32 s60, s60, 1
        s_add_u32 s60, s60, {sWV}
        s_lshl_b32 s60, s60, {self.FA_LOG}
        s_add_u32 s60, s60, {FLAG_A}
        """)
        self.flag_store("s60", 1, 3, 250)
    FA_LOG = FL

    def role_b_loads(self):
        a = self.a
        a(f"s_sub_u32 s6, {sWV}, 2")
        self.c_ids()
        a(f"""
        s_lshl_b32 s60, s70, 2
        s_lshl_b32 s61, s6, 1
        s_add_u32 s60, s60, s61
        s_lshl_b32 s60, s60, 12
        v_lshl_add_u32 v4, v1, 4, s60
        s_movk_i32 s62, 4096
        """)
        for cc in range(2):
            for i in range(4):
                r = 176 + 8 * (4 * cc + i)
                so = "0" if cc == 0 else "s62"
                a(f"buffer_load_dwordx4 {Q4(r)}, v4, {FK}, {so} offen offset:{1024*i}{self.NTF}")
                a(f"buffer_load_dwordx2 {P(r+4)}, v4, {FK}, {so} offen offset:{1024*i+16}{self.NTF}")
        self.g1_ids(); self.g2_ids()

    def role_b_loads_gemv(self):
        a = self.a
        a(f"""
        v_lshrrev_b32 v8, 2, v1
        v_and_b32 v14, 3, v1
        s_and_b32 s60, s2, 3
        s_lshl_b32 s60, s60, 7
        v_lshl_add_u32 v2, v8, 3, s60
        v_lshlrev_b32 v3, 1, v2
        buffer_load_dwordx4 v[168:171], v3, {C}, 0 offen
        s_movk_i32 s61, 6144
        v_mul_lo_u32 v3, v2, s61
        v_lshl_add_u32 v3, v14, 4, v3
        s_lshr_b32 s60, s2, 2
        s_lshl_b32 s60, s60, 7
        s_lshl_b32 s61, s6, 6
        s_add_u32 s60, s60, s61
        s_cmp_ge_u32 s2, 192
        s_cselect_b32 s60, 0x40000000, s60
        """)
        for j in range(8):
            a(f"buffer_load_dwordx4 {Q4(16+4*j)}, v3, {WM}, s60 offen{self.NT}")
            if j < 7: a("s_add_u32 s60, s60, 6144")

    def role_b_loads2(self):
        a = self.a
        a(f"""
        s_lshl_b32 s60, s2, 13
        s_lshl_b32 s61, s6, 12
        s_add_u32 s60, s60, s61
        v_lshrrev_b32 v3, 4, v1
        v_lshlrev_b32 v3, 10, v3
        v_and_b32 v4, 15, v1
        v_lshl_add_u32 v3, v4, 4, v3
        """)
        for j in range(4): a(f"buffer_load_dwordx4 {Q4(48+4*j)}, v3, {Q}, s60 offen offset:{256*j}{self.NTQ}")
        self.tile_off("s6")
        for j in range(8):
            base, off = ("v2", j * 1024) if j < 4 else ("v5", (j - 4) * 1024)
            a(f"buffer_load_dwordx2 {P(64+2*j)}, {base}, {Q}, 0 offen offset:{off}{self.NTQ}")

    def role_b_loads3(self):
        a = self.a
        a("v_and_b32 v102, 7, v1")
        a(f"""
        s_lshl_b32 s61, s2, 1
        s_add_u32 s60, s6, s61
        s_lshr_b32 s64, s60, 3
        s_and_b32 s65, s60, 7
        s_mul_i32 s61, s64, 37
        s_lshr_b32 s61, s61, 8
        s_mul_i32 s62, s61, 7
        s_sub_u32 s62, s64, s62
        s_mul_i32 s61, s61, 224
        s_lshl_b32 s63, s62, 5
        s_add_u32 s66, s63, 16
        s_cmp_ge_u32 s62, 3
        s_cselect_b32 s63, s66, s63
        s_movk_i32 s66, {16*1024}
        s_cmp_eq_u32 s62, 6
        s_cselect_b32 s63, 96, s63
        s_cselect_b32 s66, {112*1024}, s66
        s_add_u32 s61, s61, s63
        s_lshl_b32 s61, s61, 10
        s_lshl_b32 s62, s65, 7
        s_add_u32 s61, s61, s62
        s_cmp_ge_u32 s60, 448
        s_cselect_b32 s61, 0x40000000, s61
        v_lshrrev_b32 v100, 3, v1
        v_lshlrev_b32 v100, 10, v100
        v_lshl_add_u32 v100, v102, 4, v100
        v_add_u32 v100, s61, v100
        s_lshl_b32 s61, s6, 12
        s_add_u32 s67, s66, 8192
        s_movk_i32 s63, 8192
        """)
        for e, so in enumerate(("0", "s63", "s66", "s67")):
            a(f"s_add_u32 m0, s61, {self.W2S + 1024*e}")
            a(f"buffer_load_dwordx4 v100, {W2}, {so} offen{self.NT} lds")

    CSZ = 4160
    W2S = 32768 + 120832
    GVS = 32768 + 129024
    def filter_copies(self):
        a = self.a
        a(f"""
        s_mul_i32 s60, s6, {8*self.CSZ}
        s_add_u32 s60, s60, {self.WB}
        v_lshl_add_u32 v4, v1, 4, s60
        v_mov_b32 v100, 0
        v_mov_b32 v101, 0
        v_mov_b32 v102, 0
        v_mov_b32 v103, 0
        s_mov_b64 s[62:63], exec
        s_mov_b64 exec, 15
        """)
        for c in range(8): a(f"ds_write_b128 v4, v[100:103] offset:{c*self.CSZ}")
        a("s_mov_b64 exec, s[62:63]")
        for cc in range(2):
            for i in range(4):
                r = 176 + 8 * (4 * cc + i)
                t = 104 + 12 * (i % 2)
                o = cc * 4 * self.CSZ + 64 + 1024 * i
                pass
                a(f"ds_write_b128 v4, {Q4(r)} offset:{o}")
                for j in range(4): a(f"v_alignbit_b32 v{t+j}, v{r+j+1}, v{r+j}, 16")
                for j in range(4): a(f"v_mov_b32 v{t+4+j}, v{r+j+1}")
                for j in range(4): a(f"v_alignbit_b32 v{t+8+j}, v{r+j+2}, v{r+j+1}, 16")
                for k in range(3): a(f"ds_write_b128 v4, {Q4(t+4*k)} offset:{o + (k+1)*self.CSZ}")
                if i == 0:
                    a(f"""
                    v_lshlrev_b32 v128, 16, v{r}
                    s_mov_b64 exec, 1
                    ds_write_b32 v4, v128 offset:{o + self.CSZ - 4}
                    ds_write_b32 v4, v{r} offset:{o + 2*self.CSZ - 4}
                    ds_write_b32 v4, v128 offset:{o + 3*self.CSZ - 8}
                    ds_write_b32 v4, v{t} offset:{o + 3*self.CSZ - 4}
                    s_mov_b64 exec, s[62:63]
                    """)

    def role_b_rest(self, later):
        a = self.a
        a(f"s_waitcnt vmcnt({later + 20})")
        for j in range(4): a(f"v_lshlrev_b32 v{100+2*j}, 16, v{168+j}\nv_and_b32 v{101+2*j}, 0xffff0000, v{168+j}")
        for j in range(8): a(f"v_mul_f32 v{108+j}, {NLOG2E}, v{100+j}")
        for j in range(8): a(f"v_exp_f32 v{108+j}, v{108+j}")
        for j in range(8): a(f"v_add_f32 v{108+j}, 1.0, v{108+j}")
        for j in range(8): a(f"v_rcp_f32 v{108+j}, v{108+j}")
        for j in range(8): a(f"v_mul_f32 v{108+j}, v{100+j}, v{108+j}")
        for j in range(4): a(f"v_cvt_pk_bf16_f32 v{100+j}, v{108+2*j}, v{109+2*j}")
        for j in range(4): a(f"v_lshlrev_b32 v{108+2*j}, 16, v{100+j}\nv_and_b32 v{109+2*j}, 0xffff0000, v{100+j}")
        a(f"s_waitcnt vmcnt({later})")
        for j in range(8):
            for e in range(4):
                a(f"v_lshlrev_b32 v{116+2*e}, 16, v{16+4*j+e}\nv_and_b32 v{117+2*e}, 0xffff0000, v{16+4*j+e}")
            sel = "op_sel_hi:[1,0,1]" if j % 2 == 0 else "op_sel:[0,1,0] op_sel_hi:[1,1,1]"
            for e in range(4):
                if j == 0: a(f"v_pk_mul_f32 {P(124+2*e)}, {P(116+2*e)}, {P(108)} op_sel_hi:[1,0]")
                else: a(f"v_pk_fma_f32 {P(124+2*e)}, {P(116+2*e)}, {P(108+2*(j//2))}, {P(124+2*e)} {sel}")
        for n in (4, 8):
            for e in range(8): a(f"v_add_f32_dpp v{124+e}, v{124+e}, v{124+e} row_ror:{n} row_mask:0xf bank_mask:0xf")
        a(f"""
        s_lshl_b32 s60, s6, 9
        s_add_u32 s60, s60, {self.GVS}
        v_lshl_add_u32 v116, v3, 7, s60
        v_and_b32 v117, 3, v1
        v_lshl_add_u32 v116, v117, 5, v116
        ds_write_b128 v116, v[124:127]
        ds_write_b128 v116, v[128:131] offset:16
        v_and_b32 v117, 31, v1
        v_lshlrev_b32 v117, 2, v117
        v_add_u32 v116, s60, v117
        ds_read_b32 v120, v116
        ds_read_b32 v121, v116 offset:128
        ds_read_b32 v122, v116 offset:256
        ds_read_b32 v123, v116 offset:384
        s_and_b32 s60, s2, 3
        s_mul_i32 s60, s60, 12288
        s_lshr_b32 s61, s2, 2
        s_lshl_b32 s61, s61, 8
        s_add_u32 s60, s60, s61
        s_lshl_b32 s61, s6, 7
        s_add_u32 s60, s60, s61
        s_add_u32 s60, s60, {WS_MOD}
        s_cmp_ge_u32 s2, 192
        s_cselect_b32 s60, 0x40000000, s60
        s_waitcnt lgkmcnt(0)
        v_add_f32 v120, v120, v121
        v_add_f32 v122, v122, v123
        v_add_f32 v120, v120, v122
        s_mov_b32 exec_hi, 0
        buffer_store_dword v120, v117, {WS}, s60 offen sc1
        s_mov_b32 exec_hi, -1
        """)
        a.region("brest1")
        self.role_b_tail()

    def role_b_w2_reads(self):
        a = self.a
        a(f"""
        s_lshl_b32 s60, s6, 12
        s_add_u32 s60, s60, {self.W2S}
        v_lshrrev_b32 v132, 2, v1
        v_lshl_add_u32 v133, v3, 2, v132
        s_cmp_eq_u32 s66, {112*1024}
        s_cselect_b64 vcc, -1, 0
        s_movk_i32 s61, 2048
        s_cselect_b32 s61, 512, s61
        v_cndmask_b32 v132, v132, v133, vcc
        v_lshlrev_b32 v132, 7, v132
        v_and_b32 v133, 3, v1
        v_lshl_add_u32 v132, v133, 4, v132
        v_add_u32 v132, s60, v132
        v_add_u32 v133, s61, v132
        """)
        for dt in range(4):
            o = 64 * (dt >> 1) + 8 * (dt & 1)
            a(f"ds_read_b64_tr_b16 {P(84+4*dt)}, v132 offset:{o}\nds_read_b64_tr_b16 {P(86+4*dt)}, v133 offset:{o}")

    def role_b_tail(self):
        a = self.a
        for j in range(16): a(f"v_lshlrev_b32 v{100+2*j}, 16, v{48+j}\nv_and_b32 v{101+2*j}, 0xffff0000, v{48+j}")
        for j in range(8): a(f"v_pk_add_f32 {P(132+2*j)}, {P(100+4*j)}, {P(102+4*j)}")
        for st in (4, 2, 1):
            for j in range(st): a(f"v_pk_add_f32 {P(132+2*j)}, {P(132+2*j)}, {P(132+2*(j+st))}")
        a("v_add_f32 v132, v132, v133")
        for n in (8, 4, 2, 1): a(f"v_add_f32_dpp v132, v132, v132 row_ror:{n} row_mask:0xf bank_mask:0xf")
        a("v_mul_f32 v148, 0xbb000000, v132")
        for j in range(16): a(f"v_pk_add_f32 {P(100+2*j)}, {P(100+2*j)}, {P(148)} op_sel_hi:[1,0]")
        for j in range(4): a(f"v_pk_mul_f32 {P(132+2*j)}, {P(100+2*j)}, {P(100+2*j)}")
        for j in range(4, 16): a(f"v_pk_fma_f32 {P(132+2*(j&3))}, {P(100+2*j)}, {P(100+2*j)}, {P(132+2*(j&3))}")
        a(f"v_pk_add_f32 {P(132)}, {P(132)}, {P(134)}\nv_pk_add_f32 {P(136)}, {P(136)}, {P(138)}\nv_pk_add_f32 {P(132)}, {P(132)}, {P(136)}\nv_add_f32 v132, v132, v133")
        for n in (8, 4, 2, 1): a(f"v_add_f32_dpp v132, v132, v132 row_ror:{n} row_mask:0xf bank_mask:0xf")
        a(f"""
        v_mov_b32 v133, 0x3727c5ac
        v_fmac_f32 v133, 0x3b000000, v132
        v_rsq_f32 v134, v133
        s_lshl_b32 s60, s2, 5
        s_lshl_b32 s61, s6, 4
        s_add_u32 s60, s60, s61
        s_add_u32 s60, s60, {WS_STAT}
        v_mul_f32 v135, v148, v134
        v_and_b32 v136, 1, v1
        v_lshlrev_b32 v137, 13, v136
        v_lshl_add_u32 v137, v3, 2, v137
        v_cmp_eq_u32 vcc, 1, v136
        v_cndmask_b32 v134, v134, v135, vcc
        v_cmp_gt_u32 vcc, 2, v2
        s_and_saveexec_b64 s[62:63], vcc
        buffer_store_dword v134, v137, {WS}, s60 offen sc1
        s_mov_b64 exec, s[62:63]
        s_mov_b32 s60, 0x05040100
        s_mov_b32 s61, 0x07060302
        """)
        for c in range(4):
            for j in range(4):
                a(f"v_perm_b32 v{100+4*c+j}, v{66+4*j+(c>>1)}, v{64+4*j+(c>>1)}, s{60+(c&1)}")
        a(f"""
        s_lshl_b32 s60, {sX}, 18
        s_lshl_b32 s61, {sM}, 7
        s_add_u32 s60, s60, s61
        s_lshl_b32 s61, s6, 6
        s_add_u32 s60, s60, s61
        s_add_u32 s60, s60, {WS_QT}
        v_lshlrev_b32 v132, 14, v2
        v_lshl_add_u32 v132, v3, 4, v132
        """)
        for c in range(4):
            a(f"buffer_store_dwordx4 {Q4(100+4*c)}, v132, {WS}, s60 offen sc1")
            if c < 3: a("s_add_u32 s60, s60, 4096")
        self.nonce_issue(250)
        a("s_waitcnt vmcnt(7)")
        self.role_b_w2_reads()
        a(f"""
        s_mul_i32 s60, s65, 56
        s_add_u32 s60, s60, s64
        s_lshl_b32 s60, s60, 12
        s_add_u32 s60, s60, {WS_W2P}
        s_cmp_ge_u32 s64, 56
        s_cselect_b32 s60, 0x40000000, s60
        v_lshlrev_b32 v133, 4, v1
        s_waitcnt lgkmcnt(0)
        """)
        for c in range(4): a(f"buffer_store_dwordx4 {Q4(84+4*c)}, v133, {WS}, s60 offen offset:{1024*c} sc1")

    def flag_b(self, later):
        a = self.a
        a(f"""
        s_waitcnt vmcnt({later + 4})
        v_readfirstlane_b32 s80, v250
        v_readfirstlane_b32 s81, v251
        s_cmp_lg_u32 s81, 0
        s_cbranch_scc1 L_nonce_b_ok
        """)
        self.nonce_finish("b", 250)
        a(f"""
        s_lshl_b32 s60, s2, 1
        s_add_u32 s60, s60, s6
        s_lshl_b32 s60, s60, {FL}
        s_add_u32 s60, s60, {FLAG_B}
        """)
        self.flag_store("s60", 8, 9 + FL, 250)

    def filter_prep(self, mid):
        a = self.a
        a(f"""
        s_mul_i32 s73, {sWV}, {self.FSZ}
        s_add_u32 s73, s73, {self.FB}
        v_and_b32 v2, 15, v1
        v_lshrrev_b32 v3, 4, v1
        v_lshl_add_u32 v4, v1, 4, s73
        v_mov_b32 v6, 0
        v_mov_b32 v7, 0
        v_mov_b32 v8, 0
        v_mov_b32 v9, 0
        v_add_u32 v5, 1, v2
        v_and_b32 v10, 3, v5
        v_mul_u32_u24 v10, {self.CSZ}, v10
        v_and_b32 v5, 28, v5
        v_lshl_add_u32 v5, v5, 1, v10
        v_and_b32 v10, 1, v3
        v_lshl_add_u32 v5, v10, 4, v5
        s_mul_i32 s60, {sWV}, {4*self.CSZ}
        s_add_u32 s60, s60, {self.WB}
        v_add_u32 v5, s60, v5
        v_lshrrev_b32 v10, 1, v3
        s_add_u32 s60, s71, 1
        s_lshl_b32 s60, s60, 9
        s_add_u32 s61, s72, 1
        s_lshl_b32 s61, s61, 9
        v_mad_u32_u24 v11, v10, s60, v5
        v_mad_u32_u24 v12, v10, s61, v5
        v_add_u32 v15, s60, v11
        v_subrev_u32 v12, s60, v12
        s_cmp_eq_u32 s69, 0
        s_cselect_b64 vcc, -1, 0
        v_cndmask_b32 v13, v11, v12, vcc
        """)
        for n in range(81):
            if n == opt('fa', 20): mid()
            b = "v11" if n < 16 else "v13" if n < 32 else "v12"
            a(f"ds_read_b64 {self.Fhalf(n,0)}, {b} offset:{32*n}")
            a(f"ds_read_b64 {self.Fhalf(n,1)}, {b} offset:{32*n+8}")
        a("ds_read_b64 v[244:245], v15\nds_read_b64 v[246:247], v15 offset:8")
        a(f"ds_write_b128 v4, v[6:9] offset:6144\ns_mov_b64 exec, {(1 << 26) - 1}\nds_write_b128 v4, v[6:9] offset:7168\ns_mov_b64 exec, -1")
        a(f"""
        v_sub_u32 v5, 63, v2
        v_mul_u32_u24 v5, 96, v5
        v_add_u32 v5, s73, v5
        s_mul_i32 s60, s71, {16*96}
        s_mul_i32 s61, s72, {16*96}
        v_subrev_u32 v156, s60, v5
        v_subrev_u32 v157, s61, v5
        v_and_b32 v6, 1, v3
        v_lshlrev_b32 v6, 4, v6
        v_lshrrev_b32 v7, 1, v3
        s_add_u32 s60, s71, 1
        s_mul_i32 s60, s60, 768
        s_add_u32 s61, s72, 1
        s_mul_i32 s61, s61, 768
        v_mad_u32_u24 v80, v7, s60, v156
        v_mad_u32_u24 v82, v7, s61, v157
        v_add_u32 v80, v80, v6
        v_add_u32 v82, v82, v6
        v_subrev_u32 v82, s60, v82
        s_cmp_eq_u32 s69, 0
        s_cselect_b64 vcc, -1, 0
        v_cndmask_b32 v81, v80, v82, vcc
        v_lshlrev_b32 v6, 3, v3
        v_sub_u32 v6, 24, v6
        v_add_u32 v156, v156, v6
        v_add_u32 v157, v157, v6
        """)

    def u_fetch(self, early):
        a = self.a
        a("s_movk_i32 s60, 10923")
        for j in range(3):
            a(f"""
            v_add_u32 v10, {64*j}, v1
            v_mul_u32_u24 v11, s60, v10
            v_lshrrev_b32 v11, 16, v11
            v_mul_u32_u24 v12, 6, v11
            v_sub_u32 v10, v10, v12
            v_min_u32 v10, 3, v10
            v_lshlrev_b32 v10, 4, v10
            v_lshl_add_u32 v{16+j}, v11, 6, v10
            """)
        a(f"""
        s_lshl_b32 s60, {sX}, {6 + self.FA_LOG}
        s_add_u32 s60, s60, {FLAG_A}
        v_lshl_add_u32 v4, v1, {self.FA_LOG}, s60
        s_lshl_b32 s64, s70, 2
        s_lshl_b32 s61, {sWV}, 1
        s_add_u32 s64, s64, s61
        s_lshl_b32 s64, s64, 12
        s_add_u32 s64, s64, {WS_KVT}
        s_mul_i32 s65, {sWV}, {2*self.FSZ}
        s_add_u32 s65, s65, {self.FB}
        """)
        for half in range(2):
            for n in range(early):
                a(f"s_add_u32 m0, s78, {65536*half + 1024*n}")
                a(f"s_add_u32 s60, s7, {half*256*3584 + n*4*3584}")
                a(f"buffer_load_dwordx4 v{164 + n%2}, {W1}, s60 offen lds")
        self.poll("A")
        self.stamp()
        for cc in range(2):
            for j in range(6):
                a(f"s_add_u32 m0, s65, {cc*self.FSZ + 1024*j}")
                a(f"buffer_load_dwordx4 v{16 + j%3}, {WS}, s64 offen sc1 lds")
                if j % 3 == 2: a("s_add_u32 s64, s64, 2048")
        a("s_waitcnt vmcnt(0)")

    def conv_main(self, hook):
        a = self.a
        D = 6
        off = lambda n: 96 * (n >> 1) + 32 * (n & 1)
        base = lambda n: "v80" if n < 16 else "v81" if n < 32 else "v82"
        Br = lambda n: Q4(48 + 4 * (n % 8))
        def rd(n):
            if n < 80: a(f"ds_read_b128 {Br(n)}, {base(n)} offset:{off(n)}")
        def step(n, c0="v[84:87]", c1="v[88:91]", d0="v[84:87]", d1="v[88:91]", a1=None):
            rd(n + D)
            a(f"s_waitcnt lgkmcnt({min(D, 79 - n)})")
            a(f"v_mfma_f32_16x16x32_bf16 {d0}, {self.Freg(n)}, {Br(n)}, {c0}")
            a(f"v_mfma_f32_16x16x32_bf16 {d1}, {a1 or self.Freg(n+1)}, {Br(n)}, {c1}")
        for n in range(D): rd(n)
        def boundary(n, ty):
            a(f"s_cmp_eq_u32 s69, {ty}\ns_cbranch_scc0 L_cb{n}_no")
            h = list(a.hist)
            step(n, d0="v[92:95]", d1="v[96:99]", a1="v[244:247]")
            step(n + 1, c0="0", c1="0")
            a(f"s_branch L_cb{n}_done\nL_cb{n}_no:")
            a.hist = h
            step(n); step(n + 1)
            a(f"L_cb{n}_done:")
            hook(n); hook(n + 1)
        step(0, c0="0", c1="0"); hook(0)
        for n in range(1, 15): step(n); hook(n)
        boundary(15, 0)
        for n in range(17, 31): step(n); hook(n)
        boundary(31, 1)
        for n in range(33, 80): step(n); hook(n)

    def epi_addr(self):
        self.a(f"""
        v_lshlrev_b32 v5, 5, v2
        v_lshl_add_u32 v5, v3, 2, v5
        s_lshl_b32 s60, s68, 12
        s_add_u32 s60, s60, {WS_QT}
        v_lshl_add_u32 v158, v5, 1, s60
        v_lshlrev_b32 v159, 2, v5
        v_add_u32 v159, {WS_STAT}, v159
        v_add_u32 v160, 8192, v159
        s_lshl_b32 s64, s71, 10
        s_lshl_b32 s65, s72, 10
        s_lshl_b32 s66, s71, 11
        s_lshl_b32 s67, s72, 11
        v_and_b32 v161, 3, v1
        s_movk_i32 s60, 12288
        v_mul_u32_u24 v161, s60, v161
        v_bfe_u32 v5, v1, 2, 2
        v_lshl_add_u32 v161, v5, 11, v161
        s_lshl_b32 s60, s68, 2
        s_add_u32 s60, s60, {WS_MOD}
        v_add_u32 v161, s60, v161
        s_lshl_b32 s60, s68, 1
        v_mov_b32 v162, s60
        s_lshl_b32 s60, {sX}, {9 + FL}
        s_add_u32 s60, s60, {FLAG_B}
        v_lshl_add_u32 v163, v0, {FL + 1}, s60
        """)

    def epi_load_list(self):
        L = [f"buffer_load_dword v148, v161, {WS}, 0 offen sc1", f"buffer_load_ushort v149, v162, {SD}, 0 offen"]
        for sl in range(2):
            for t in range(2):
                i = 2 * sl + t
                L.append(f"buffer_load_dwordx2 {P(100+2*i)}, v158, {WS}, s{64+sl} offen offset:{32*t} sc1")
                L.append(f"buffer_load_dwordx4 {Q4(108+4*i)}, v159, {WS}, s{66+sl} offen offset:{64*t} sc1")
                L.append(f"buffer_load_dwordx4 {Q4(124+4*i)}, v160, {WS}, s{66+sl} offen offset:{64*t} sc1")
        return L

    def g1_ids(self):
        self.a(f"""
        s_lshr_b32 s74, {sX}, 1
        s_lshl_b32 s74, s74, 2
        s_lshr_b32 s60, {sM}, 3
        s_add_u32 s74, s74, s60
        s_and_b32 s75, {sX}, 1
        s_lshl_b32 s75, s75, 3
        s_and_b32 s60, {sM}, 7
        s_add_u32 s75, s75, s60
        """)

    def w1_addr(self, r0):
        self.a(f"""
        v_mul_u32_u24 v5, 3584, v3
        v_lshlrev_b32 v6, 1, v3
        v_xor_b32 v6, v6, v2
        v_lshl_add_u32 v{r0}, v6, 4, v5
        v_xor_b32 v6, 8, v6
        v_lshl_add_u32 v{r0+1}, v6, 4, v5
        s_mul_i32 s7, s75, 224
        s_and_b32 s7, s7, -64
        s_and_b32 s16, {sM}, 7
        s_lshl_b32 s16, s16, 1
        s_lshr_b32 s61, {sM}, 3
        s_lshl_b32 s61, s61, 2
        s_add_u32 s16, s16, s61
        s_mul_i32 s16, s16, {opt('rot1', 0)}
        s_and_b32 s16, s16, 15
        s_add_u32 s17, s7, {512*3584}
        s_lshl_b32 s61, {sWV}, 2
        s_add_u32 s61, s61, s16
        s_and_b32 s61, s61, 15
        s_mul_i32 s61, s61, {32*3584}
        s_add_u32 s7, s7, s61
        s_lshl_b32 s78, {sWV}, 15
        s_add_u32 s78, s78, {self.WB}
        """)

    def w1_one(self, r0, n):
        a = self.a
        a(f"s_add_u32 m0, s78, {1024*n}")
        a(f"buffer_load_dwordx4 v{r0 + n%2}, {W1}, s7 offen lds")
        a(f"s_add_u32 s7, s7, {4*3584}")
        if n % 8 == 7: a(f"s_cmp_eq_u32 s7, s17\ns_cselect_b32 s60, {512*3584}, 0\ns_sub_u32 s7, s7, s60")

    def w2_touch(self, j):
        self.a(f"buffer_load_dword v{248+j}, v250, {WS}, 0 offen sc1" if j == 0 else
               f"buffer_load_dword v{248+j}, v251, {WS}, 0 offen sc1")

    def w2_touch_addr(self):
        self.a(f"""
        s_lshl_b32 s60, {sM}, 2
        s_add_u32 s60, s60, {sWV}
        s_mul_i32 s60, s60, {112*128}
        s_add_u32 s60, s60, {WS_W2P}
        v_lshl_add_u32 v250, v1, 7, s60
        v_add_u32 v5, 64, v1
        v_min_u32 v5, 111, v5
        v_lshl_add_u32 v251, v5, 7, s60
        """)

    def mod_addr(self):
        self.a(f"""
        s_lshl_b32 s60, {sWV}, 2
        s_add_u32 s60, s60, s16
        s_lshl_b32 s60, s60, 3
        v_and_b32 v168, 31, v1
        v_add_u32 v168, s60, v168
        v_and_b32 v168, 127, v168
        v_lshlrev_b32 v168, 4, v168
        v_lshrrev_b32 v5, 5, v1
        v_lshl_add_u32 v168, v5, 11, v168
        v_add_u32 v168, {WS_MOD + 3*2048}, v168
        s_movk_i32 s12, 12288
        s_mov_b32 s13, {2*12288}
        s_mov_b32 s14, {3*12288}
        """)

    def mod_load_list(self, r0):
        L = []
        for k, so in enumerate(("0", "s12", "s13", "s14")):
            L.append(f"buffer_load_dwordx4 {Q4(r0+4*k)}, v168, {WS}, {so} offen sc1")
        return L

    def g2_w2_addr(self, k0):
        self.a(f"""
        s_mul_i32 s79, s77, 56
        s_mul_i32 s61, {sWV}, 14
        s_add_u32 s79, s79, s61
        s_lshl_b32 s79, s79, 12
        s_add_u32 s79, s79, {WS_W2P}
        s_add_u32 s97, s79, {14*4096}
        s_lshl_b32 s18, s77, 1
        s_lshr_b32 s61, {sM}, 3
        s_mul_i32 s61, s61, 7
        s_lshr_b32 s61, s61, 1
        s_add_u32 s18, s18, s61
        s_mul_i32 s18, s18, {opt('rot2', 0)}
        s_cmp_ge_u32 s18, 14
        s_cselect_b32 s60, 14, 0
        s_sub_u32 s18, s18, s60
        s_lshl_b32 s18, s18, 12
        s_add_u32 s79, s79, s18
        v_lshlrev_b32 v9, 4, v1
        """)

    def g2_w2_one(self, i, v="v9"):
        self.a(f"buffer_load_dwordx4 a[{4*i}:{4*i+3}], {v}, {WS}, s79 offen offset:{1024*(i%4)} sc1")
        if i % 4 == 3:
            self.a(f"s_add_u32 s79, s79, 4096\ns_cmp_eq_u32 s79, s97\ns_cselect_b32 s60, {14*4096}, 0\ns_sub_u32 s79, s79, s60")

    def signal_all(self, base, replicas, tag):
        a = self.a
        a(f"""
        s_waitcnt vmcnt(0)
        s_barrier
        s_cmp_lg_u32 {sWV}, 0
        s_cbranch_scc1 L_sig{tag}_skip
        s_lshl_b32 s60, s2, {FL}
        s_add_u32 s60, s60, {base}
        """)
        self.flag_store("s60", replicas, 8 + FL)
        a(f"L_sig{tag}_skip:")

    def prep_setup(self, r0):
        a = self.a
        GB = self.T_GB
        for h in range(2):
            a(f"v_pk_add_f32 {P(r0+2*h)}, {P(r0+2*h)}, {P(r0+4+2*h)}\nv_pk_add_f32 {P(r0+8+2*h)}, {P(r0+8+2*h)}, {P(r0+12+2*h)}")
        for h in range(2): a(f"v_pk_add_f32 {P(r0+2*h)}, {P(r0+2*h)}, {P(r0+8+2*h)}")
        a(f"""
        v_cvt_pk_bf16_f32 v{r0}, v{r0}, v{r0+1}
        v_cvt_pk_bf16_f32 v{r0+1}, v{r0+2}, v{r0+3}
        v_lshlrev_b32 v{r0+4}, 16, v{r0}
        v_and_b32 v{r0+5}, 0xffff0000, v{r0}
        v_lshlrev_b32 v{r0+6}, 16, v{r0+1}
        v_and_b32 v{r0+7}, 0xffff0000, v{r0+1}
        v_lshrrev_b32 v6, 5, v1
        v_cvt_f32_u32 v7, v6
        v_add_f32 v{r0+4}, v7, v{r0+4}
        v_add_f32 v{r0+5}, v7, v{r0+5}
        v_add_f32 v{r0+6}, v7, v{r0+6}
        v_add_f32 v{r0+7}, v7, v{r0+7}
        v_cvt_pk_bf16_f32 v{r0}, v{r0+4}, v{r0+5}
        v_cvt_pk_bf16_f32 v{r0+1}, v{r0+6}, v{r0+7}
        v_xor_b32 v6, 1, v6
        v_lshlrev_b32 v6, 10, v6
        v_and_b32 v7, 31, v1
        v_lshl_add_u32 v6, v7, 3, v6
        s_lshl_b32 s60, {sWV}, 8
        v_add_u32 v6, s60, v6
        ds_write_b64 v6, {P(r0)} offset:{GB}
        v_lshlrev_b32 v8, 2, v0
        s_lshl_b32 s60, {sWV}, 15
        s_add_u32 s60, s60, {self.WB}
        v_lshl_add_u32 v13, v1, 4, s60
        v_lshrrev_b32 v6, 2, v1
        v_lshl_add_u32 v7, v6, 8, s60
        v_and_b32 v12, 3, v1
        v_lshl_add_u32 v7, v12, 3, v7
        v_and_b32 v6, 7, v6
        s_and_b32 s61, s75, 1
        """)
        for ft in range(7):
            a(f"s_add_u32 s60, s61, {ft}\nv_xor_b32 v12, s60, v6\nv_lshl_add_u32 v{176+ft}, v12, 5, v7")
        a(f"""
        v_lshlrev_b32 v10, 4, v1
        v_add_u32 v10, {self.WB}, v10
        v_add_u32 v11, 65536, v10
        s_lshl_b32 s60, {sWV}, 8
        v_lshl_add_u32 v14, v3, 3, s60
        v_and_b32 v15, 1, v1
        v_lshl_add_u32 v15, v15, 10, v14
        """)
        for t in self.prep_reads(0): a(t)

    def prep_reads(self, k):
        if k >= 4: return []
        GB = self.T_GB
        r = 64 + 36 * (k % 2)
        L = [f"ds_read_b64 {P(r+28)}, v15 offset:{GB + 64*k}", f"ds_read_b64 {P(r+30)}, v15 offset:{GB + 64*k + 32}",
             f"ds_read_b64 {P(r+32)}, v14 offset:{GB + 64*k}", f"ds_read_b64 {P(r+34)}, v14 offset:{GB + 64*k + 32}"]
        for ft in range(7):
            L.append(f"ds_read_b64_tr_b16 {P(r+4*ft)}, v{176+ft} offset:{8192*k}")
            L.append(f"ds_read_b64_tr_b16 {P(r+4*ft+2)}, v{176+ft} offset:{8192*k + 4096}")
        return L

    def prep_step(self, k):
        a = self.a
        a.region(f"scale{k}")
        r = 64 + 36 * (k % 2)
        a("s_waitcnt lgkmcnt(0)")
        for ft in range(7):
            d = 144 + 4 * ft
            a(f"v_mfma_f32_16x16x32_bf16 {Q4(d)}, {Q4(r+4*ft)}, {Q4(r+28)}, {'0' if k == 0 else Q4(d)}")
            if ft < 4: a(f"v_and_b32 v{16+2*ft}, 0xffff, v{r+32+ft}\nv_and_b32 v{17+2*ft}, 0xffff0000, v{r+32+ft}")
        nxt = self.prep_reads(k + 1)
        for ft in range(7):
            t = 24 + 12 * (ft % 2)
            for e in range(4):
                a(f"v_dot2_f32_bf16 v{t+2*e}, v{r+4*ft+e}, v{16+2*e}, 0\nv_dot2_f32_bf16 v{t+2*e+1}, v{r+4*ft+e}, v{17+2*e}, 0")
                if nxt and e < 3: a(nxt.pop(0))
            for e in range(4): a(f"v_cvt_pk_bf16_f32 v{t+8+e}, v{t+2*e}, v{t+2*e+1}")
            a(f"ds_write_b128 v13, {Q4(t+8)} offset:{8192*k + 1024*ft}")
        assert not nxt

    def prep_finish(self):
        a = self.a
        UP, U = self.T_UP, self.T_U
        a(f"""
        v_and_b32 v6, 1, v1
        v_lshlrev_b32 v6, 9, v6
        v_lshl_add_u32 v6, v3, 4, v6
        s_lshl_b32 s60, {sWV}, 10
        v_add_u32 v6, s60, v6
        """)
        for ft in range(7): a(f"ds_write_b128 v6, {Q4(144+4*ft)} offset:{UP + 64*ft}")
        a(f"""
        s_waitcnt lgkmcnt(0)
        s_barrier
        ds_read_b32 v16, v8 offset:{UP}
        ds_read_b32 v17, v8 offset:{UP+1024}
        ds_read_b32 v18, v8 offset:{UP+2048}
        ds_read_b32 v19, v8 offset:{UP+3072}
        s_waitcnt lgkmcnt(0)
        v_add_f32 v16, v16, v17
        v_add_f32 v18, v18, v19
        v_add_f32 v16, v16, v18
        ds_write_b32 v8, v16 offset:{U}
        s_waitcnt lgkmcnt(0)
        """)

    def g1_run(self, side, nside):
        a = self.a
        a(f"""
        s_lshl_b32 s64, s74, 2
        s_add_u32 s64, s64, {sWV}
        s_lshl_b32 s64, s64, 15
        s_add_u32 s64, s64, {WS_X1}
        s_add_u32 s65, s64, 32768
        s_lshl_b32 s60, s16, 11
        s_add_u32 s64, s64, s60
        v_lshlrev_b32 v8, 4, v1
        """)
        issued = []
        def xl(i):
            a(f"buffer_load_dwordx4 {Q4(64+4*i)}, v8, {WS}, s64 offen offset:{i%4*1024} sc1")
            if i % 4 == 3: a("s_add_u32 s64, s64, 4096\ns_cmp_eq_u32 s64, s65\ns_cselect_b32 s60, 32768, 0\ns_sub_u32 s64, s64, s60")
            issued.append(i)
        AH = opt('ah', 7)
        for i in range(2 * AH): xl(i)
        for r in range(12, 16): a(f"v_mov_b32 v{r}, 0x3f803f80")
        NR, D = 8, 7
        Wr = lambda n: 16 + 4 * (n % NR)
        def rd(n):
            if n < 112:
                k, ft = divmod(n, 7)
                a(f"ds_read_b128 {Q4(Wr(n))}, {'v10' if k < 8 else 'v11'} offset:{(k % 8) * 8192 + 1024 * ft}")
        for n in range(D): rd(n)
        left = [nside]
        def swaps(k):
            x = 64 + 8 * k
            a(f"s_waitcnt vmcnt({len(issued) - 1 - issued.index(2*k + 1)})")
            a(f"v_swap_b32 v{x+2}, v{x+4}\nv_swap_b32 v{x+3}, v{x+5}")
        swaps(0)
        for k in range(16):
            x = 64 + 8 * k
            if k in (4, 8, 12): a.region("g1" + "abcd"[k // 4])
            for ft in range(7):
                n = 7 * k + ft
                a(f"s_waitcnt lgkmcnt({min(D - 1, 111 - n)})")
                d = 192 + 8 * ft
                a(f"v_mfma_f32_16x16x32_bf16 {Q4(d)}, {Q4(Wr(n))}, {Q4(x)}, {'0' if k == 0 else Q4(d)}")
                if ft in (1, 5) and k + AH < 16: xl(2 * (k + AH) + (ft == 5))
                elif (ft in (3, 6) or (ft in (1, 5) and k + AH >= 16)) and left[0] > 0 and k < 14:
                    side(); left[0] -= 1; issued.append('w')
                a(f"v_mfma_f32_16x16x32_bf16 {Q4(d+4)}, {Q4(Wr(n))}, {Q4(x+4)}, {'0' if k == 0 else Q4(d+4)}")
                rd(n + D)
                if ft in (2, 4):
                    t = (ft - 2) // 2
                    for j, A in ((0, "v[12:15]"), (1, Q4(x + 4 * t))):
                        d = 48 + 8 * t + 4 * j
                        a(f"v_mfma_f32_16x16x32_bf16 {Q4(d)}, {A}, {Q4(x+4*t)}, {'0' if k == 0 else Q4(d)}")
                        if ft == 4 and j == 0 and k < 15: swaps(k + 1)
        assert left[0] == 0

    def g2_run(self):
        a = self.a
        a(f"""
        s_mul_i32 s78, s76, 56
        s_mul_i32 s61, {sWV}, 14
        s_add_u32 s78, s78, s61
        s_lshl_b32 s78, s78, 12
        s_add_u32 s78, s78, {WS_H}
        s_add_u32 s19, s78, {14*4096}
        s_add_u32 s78, s78, s18
        v_lshlrev_b32 v8, 4, v1
        """)

    def g2_body(self):
        a = self.a
        HR = 10
        loads = []
        for k in range(14):
            r = 32 + 16 * (k % HR)
            for st in range(4):
                loads.append((k, f"buffer_load_dwordx4 {Q4(r+4*st)}, v8, {WS}, s78 offen offset:{1024*st} sc1"))
        pos = [0]
        def issue(maxk):
            if pos[0] < len(loads) and loads[pos[0]][0] <= maxk:
                k, t = loads[pos[0]]
                a(t); pos[0] += 1
                if pos[0] == len(loads) or loads[pos[0]][0] != k: a(f"s_add_u32 s78, s78, 4096\ns_cmp_eq_u32 s78, s19\ns_cselect_b32 s60, {14*4096}, 0\ns_sub_u32 s78, s78, s60")
                return True
            return False
        G2A = opt('g2a', 5)
        while loads[pos[0]][0] < G2A: issue(G2A - 1)
        for k in range(14):
            if k in (5, 10): a.region("g2" + "abc"[k // 5])
            self.stamp("g")
            r = 32 + 16 * (k % HR)
            for st in range(4):
                need = max(i for i, (kk, t) in enumerate(loads) if kk == k and (f"v[{r+4*st}:" in t or f"v[{r+4*st+2}:" in t))
                while pos[0] <= need: issue(13)
                a(f"s_waitcnt vmcnt({pos[0] - need - 1})")
                for dt in range(4):
                    d = 192 + 16 * st + 4 * dt
                    a(f"v_mfma_f32_16x16x32_bf16 {Q4(d)}, a[{16*k+4*dt}:{16*k+4*dt+3}], {Q4(r+4*st)}, {'0' if k == 0 else Q4(d)}")
                    if dt == 1: issue(k + HR - 1)

def build_fused2(diag=False):
    g = G2(sc=True, diag=diag)
    a = g.a
    S = g.stamp
    kn = NAME + "_kernel"
    hdr = ["; @launch grid=(256,1,1) block=(256,1,1) lds=163840"]
    a.raw('.amdgcn_target "amdgcn-amd-amdhsa--gfx950"\n.text')
    g.entry(kn, list(range(13)), pre=g.code_prefetch if opt('cpf', 1) else None)
    g.nonce_start()
    a(f"s_cmp_ge_u32 {sWV}, 2\ns_cbranch_scc1 L_role_b")
    n0 = g.nst
    g.role_a()
    g.warm((0, ["scale0", "scale1", "g1a"]), (1, ["scale2", "scale3", "g1b"]))
    if opt('fa', 20) < 0: g.flag_a()
    a("s_branch L_join1\nL_role_b:")
    a.fence()
    g.nst = n0
    a.region("end")
    g.role_b_loads(); S("s")
    g.warm((2, ["bload", "bcopy", "brest0"]), (3, ["brest1", "cepi", "prep1"])); S(); S("s")
    a.region("bload")
    a("s_waitcnt vmcnt(0)"); S()
    g.role_b_loads_gemv()
    g.role_b_loads2()
    a.region("bcopy")
    g.filter_copies(); S()
    a("s_waitcnt lgkmcnt(0)\nL_join1:")
    a.fence()
    a.region("fprep")
    a("s_barrier"); S()
    def mid():
        a(f"s_cmp_ge_u32 {sWV}, 2\ns_cbranch_scc1 L_skip_fa")
        g.flag_a()
        if opt('w1t', 1) >= 1: g.w1_touch(0)
        if opt('w1t', 1) == 2: g.w1_touch(1)
        a("L_skip_fa:")
    g.filter_prep(mid); S()
    a.region("ufetch")
    st = dict(w1=0, since=0, after=0)
    a(f"s_cmp_ge_u32 {sWV}, 2\ns_cbranch_scc1 L_role_b2")
    n0 = g.nst
    NE = 0
    if opt('w1t', 1) == 1: g.w1_touch(1)
    g.u_fetch(NE)
    a("s_branch L_join2\nL_role_b2:")
    a.fence()
    g.nst = n0
    a.region("brest0")
    g.role_b_loads3()
    g.role_b_rest(4)
    g.flag_b(-4); S()
    a("L_join2:")
    a.region("addr")
    a.fence()
    g.w1_addr(164)
    g.epi_addr()
    g.g2_w2_addr(0)
    g.mod_addr()
    a(f"s_add_u32 s7, s7, {NE*4*3584}")
    st['w1'] = NE
    S()
    S("c")
    a("s_waitcnt lgkmcnt(0)\ns_barrier")
    epi = g.epi_load_list() + g.mod_load_list(32)
    PB = opt('pb', 36)
    FBN = opt('fbn', 9)
    NW1 = 32
    w2 = dict(n=0, lim=56)
    def side():
        g.g2_w2_one(w2['n']); w2['n'] += 1
    a.region("conv0")
    def hook(n):
        if n == 40: a.region("conv1")
        if n in (0, 8, 16, 24, PB - 1, PB + 1, 50, 60, 70, 79): S("c")
        if n == PB - 13: a(g.wide_flag_load("v163", 4)); st['since'] = 0
        if n == PB:
            g.poll("B", wide=True, first_issued=True, va="v163", vd=4, later=st['since'])
            a("s_barrier")
        if n % 2 == 0 or n % 6 == 5:
            if n >= PB and st['q']:
                t = st['q'].pop(0)
                a(t) if isinstance(t, str) else t()
            elif st['w1'] < NW1:
                g.w1_one(164, st['w1']); st['w1'] += 1; st['since'] += 1
                if n > PB: st['after'] += 1
    st['q'] = list(epi)
    g.conv_main(hook); S()
    assert not st['q']
    a.region("cepi")
    a(f"s_waitcnt vmcnt({st['after'] + 4})")
    S("c")
    g.c_epilogue(G2.XI, wait=False); S("c")
    while st['w1'] < NW1:
        assert False
    a.region("prep1")
    a("s_waitcnt vmcnt(2)"); S("c")
    g.prep_setup(32)
    g.prep_step(0)
    if opt('prep2', 1): g.prep_step(1)
    g.signal_all(FLAG_2, 8, 2); S()
    if not opt('prep2', 1): g.prep_step(1)
    g.prep_step(2); g.prep_step(3)
    g.prep_finish()
    g.warm((0, ["g1c"]), (1, ["g1d"]), (2, ["g1e0"]), (3, ["g1e1"])); S()
    a(f"""
    s_lshl_b32 s60, {sX}, {8 + FL}
    s_add_u32 s60, s60, {FLAG_2}
    v_lshl_add_u32 v4, v0, {FL}, s60
    """)
    a.region("g1a")
    g.poll("2")
    a("s_barrier"); S()
    g.g1_run(side, opt('w2g1', 38)); S()
    a.region("g1e0")
    g.g1_epilogue(G2.T_U - 4096)
    g.signal_all(FLAG_3, 1, 3); S()
    while w2['n'] < 56: side()
    g.g2_epi_load()
    g.g2_run()
    a(f"""
    s_lshr_b32 s60, s76, 3
    s_lshl_b32 s60, s60, 1
    s_lshr_b32 s61, s76, 1
    s_and_b32 s61, s61, 3
    s_lshl_b32 s61, s61, 6
    s_add_u32 s60, s60, s61
    s_lshr_b32 s61, {sWV}, 1
    s_add_u32 s60, s60, s61
    s_and_b32 s61, {sWV}, 1
    s_lshl_b32 s61, s61, 5
    s_add_u32 s60, s60, s61
    s_lshl_b32 s60, s60, {FL}
    s_add_u32 s60, s60, {FLAG_3}
    v_and_b32 v4, 3, v1
    v_lshl_add_u32 v4, v4, {3 + FL}, s60
    """)
    g.warm((0, ["g2a"]), (1, ["g2b"]), (2, ["g2c"]), (3, ["g2e"]))
    a.region("g2a")
    g.poll("3"); S(); S("g")
    g.g2_body(); S()
    a.region("g2e")
    g.g2_epilogue(G2.WB, 0)
    a.region("end")
    g.exit(kn)
    a("L_warm_ret:\ns_setpc_b64 s[98:99]")
    a.raw('.section .rodata,"a"')
    a.raw(desc(kn, 512, 256))
    txt, size = add_pads(a.text(), opt('pad', 256))
    print("code bytes", size, file=sys.stderr)
    return "\n".join(hdr) + "\n" + txt

if __name__ == "__main__":
    diag = sys.argv[2] if len(sys.argv) > 2 else False
    open(sys.argv[1], "w").write(build_fused2(diag))
```

```python
import sys
from asmlib import Asm, desc

NAME = "adaLN_cond__ssm_conv_h3__dense_activation_silu__prompt"
MB = 1 << 20
WS_KVT, WS_QT, WS_X1, WS_H, WS_W2P = 0, 2 * MB, 4 * MB, 6 * MB, 14 * MB
WS_STAT, WS_MOD, WS_FLAG = 16 * MB, 16 * MB + 65536, 17 * MB
WS_SIZE = 32 * MB
LOG2E = 0x3fb8aa3b
NLOG2E = 0xbfb8aa3b

Q, K, V, SK, FK, SD, W1, W2, C, WM, OUT, WS, DBG = [f"s[{8+4*i}:{11+4*i}]" for i in range(13)]
SPIN = 1 << 17
SRD_INFO = [
    (8, 0, 2 * MB), (12, 8, 2 * MB), (16, 16, 2 * MB), (20, 24, 4096), (24, 32, 2 * MB), (28, 40, 1024),
    (32, 56, 512 * 1792 * 2), (36, 64, 512 * 1792 * 2), (40, 72, 1024), (44, 80, 512 * 3072 * 2),
    (48, 88, 2 * MB), (52, 104, WS_SIZE), (56, 96, 256)]
sX, sM, sWV = "s3", "s4", "s5"

WS_DIAG = 24 * MB
class G:
    def __init__(self, sc, diag=False):
        self.a = Asm()
        self.sc = " sc1" if sc else ""
        self.diag = diag
        self.nst = 0
        self.kidx = 0

    def stamp(self, tag="m"):
        import os
        if not self.diag or (tag not in os.environ.get("TAGS", "m") and tag != "*"): return
        assert self.nst < 17
        op = "s_memtime" if self.diag == "cyc" else "s_memrealtime"
        self.a(f"{op} s[98:99]\ns_waitcnt lgkmcnt(0)\ns_mov_b32 s{82+self.nst if self.nst < 15 else 85+self.nst}, s98")
        self.nst += 1

    def flush_stamps(self):
        if not self.diag: return
        a = self.a
        a(f"s_waitcnt vmcnt(0)")
        self.stamp("*")
        if self.diag == "dbg":
            reg = lambda i: 82 + i if i < 15 else 85 + i
            a(f"s_cmp_lg_u32 s2, 100\ns_cbranch_scc1 L_nodbg\ns_cmp_lg_u32 {sWV}, 0\ns_cbranch_scc1 L_nodbg\nv_mov_b32 v4, 0")
            sel = list(range(self.nst))[-14:]
            for j, i in enumerate(sel):
                a(f"s_sub_u32 s60, s{reg(i)}, s82\nv_mov_b32 v5, s60\nbuffer_store_dword v5, v4, {DBG}, 0 offen offset:{8+4*j}")
            a("L_nodbg:")
            self.nst = 0
            return
        a(f"s_lshl_b32 s60, s2, 2\ns_add_u32 s60, s60, {sWV}\ns_lshl_b32 s60, s60, 7\ns_add_u32 s60, s60, {WS_DIAG + self.kidx*131072}\nv_mov_b32 v4, s60")
        for i in range(self.nst): a(f"v_mov_b32 v5, s{82+i if i < 15 else 85+i}\nbuffer_store_dword v5, v4, {WS}, 0 offen offset:{4*i}")
        self.nst = 0; self.kidx += 1

    def entry(self, name, srds, pre=None):
        a = self.a
        a.raw(f".globl {name}\n.p2align 8\n.type {name},@function")
        a.label(name)
        a.fence()
        a(f"s_cmp_ge_u32 s2, 256\ns_cbranch_scc1 L_end_{name}")
        self.stamp("*")
        for i in srds:
            s, off, n = SRD_INFO[i]
            a(f"s_load_dwordx2 s[{s}:{s+1}], s[0:1], {off}")
        if pre: pre()
        a("v_lshrrev_b32 v2, 6, v0\nv_and_b32 v1, 63, v0")
        for i in srds:
            s, off, n = SRD_INFO[i]
            a(f"s_mov_b32 s{s+2}, {n}\ns_mov_b32 s{s+3}, 0x00020000")
        a(f"v_readfirstlane_b32 {sWV}, v2")
        a(f"s_and_b32 {sX}, s2, 7\ns_lshr_b32 {sM}, s2, 3")
        a("s_waitcnt lgkmcnt(0)")
        self.stamp("s")

    def exit(self, name):
        self.flush_stamps()
        self.a.label(f"L_end_{name}")
        self.a("s_endpgm")

    def nonce_start(self):
        a = self.a
        a(f"""
        s_or_b32 s60, s2, {sWV}
        s_cmp_lg_u32 s60, 0
        s_cbranch_scc1 L_nonce_skip
        s_memrealtime s[60:61]
        s_waitcnt lgkmcnt(0)
        s_or_b32 s61, s61, 0x40000000
        v_mov_b32 v4, 0
        v_mov_b32 v6, s60
        v_mov_b32 v7, s61
        s_mov_b64 s[62:63], exec
        s_mov_b64 exec, 1
        buffer_store_dwordx2 v[6:7], v4, {DBG}, 0 offen sc1
        s_mov_b64 exec, s[62:63]
        L_nonce_skip:
        """)

    def nonce_get(self):
        a = self.a
        a(f"""
        v_mov_b32 v4, 0
        s_mov_b32 s62, 0
        L_nonce_poll:
        buffer_load_dwordx2 v[6:7], v4, {DBG}, 0 offen sc1
        s_add_u32 s62, s62, 1
        s_waitcnt vmcnt(0)
        v_readfirstlane_b32 s80, v6
        v_readfirstlane_b32 s81, v7
        s_cmp_gt_u32 s62, {SPIN}
        s_cbranch_scc1 L_nonce_ok
        s_cmp_eq_u32 s81, 0
        s_cbranch_scc1 L_nonce_poll
        L_nonce_ok:
        """)

    def signal(self, ph, replicas):
        a = self.a
        a(f"""
        s_waitcnt vmcnt(0)
        s_barrier
        s_cmp_lg_u32 {sWV}, 0
        s_cbranch_scc1 L_sig{ph}_skip
        s_lshl_b32 s60, s2, 3
        s_add_u32 s60, s60, {WS_FLAG + ph*65536}
        v_lshl_add_u32 v4, v1, 11, s60
        v_mov_b32 v6, s80
        v_mov_b32 v7, s81
        s_mov_b64 s[62:63], exec
        s_mov_b64 exec, {(1 << replicas) - 1}
        buffer_store_dwordx2 v[6:7], v4, {WS}, 0 offen sc1
        s_mov_b64 exec, s[62:63]
        L_sig{ph}_skip:
        """)

    def wait_all(self, ph):
        a = self.a
        a(f"""
        s_lshl_b32 s60, {sX}, 11
        s_add_u32 s60, s60, {WS_FLAG + ph*65536}
        v_lshl_add_u32 v4, v0, 3, s60
        """)
        self._poll(ph)

    def wait_group16(self, ph):
        a = self.a
        a(f"""
        s_lshr_b32 s60, {sM}, 4
        s_lshl_b32 s60, s60, 7
        s_add_u32 s60, s60, {sX}
        s_lshl_b32 s60, s60, 3
        s_add_u32 s60, s60, {WS_FLAG + ph*65536}
        v_and_b32 v4, 15, v1
        v_lshl_add_u32 v4, v4, 6, s60
        """)
        self._poll(ph)

    def _poll(self, ph):
        a = self.a
        a(f"""
        s_mov_b32 s62, 0
        L_poll{ph}:
        buffer_load_dwordx2 v[6:7], v4, {WS}, 0 offen sc1
        s_add_u32 s62, s62, 1
        s_waitcnt vmcnt(0)
        v_cmp_ne_u64 vcc, s[80:81], v[6:7]
        s_cmp_gt_u32 s62, {SPIN}
        s_cbranch_scc1 L_poll{ph}_ok
        s_cbranch_vccz L_poll{ph}_ok
        s_sleep 1
        s_branch L_poll{ph}
        L_poll{ph}_ok:
        s_barrier
        """)

    def p_loads(self):
        a = self.a
        a(f"""
        s_lshl_b32 s60, {sM}, 16
        s_lshl_b32 s61, {sX}, 7
        s_add_u32 s60, s60, s61
        s_lshl_b32 s61, {sWV}, 5
        s_add_u32 s60, s60, s61
        v_lshrrev_b32 v8, 3, v1
        v_and_b32 v9, 7, v1
        v_lshlrev_b32 v2, 13, v8
        v_lshl_add_u32 v2, v9, 2, v2
        v_add_u32 v2, s60, v2
        v_subrev_u32 v3, 3072, v2
        v_add_u32 v4, 4096, v2
        """)
        for j in range(11):
            base, off = ("v3", j * 1024) if j < 3 else ("v2", (j - 3) * 1024) if j < 7 else ("v4", (j - 7) * 1024)
            a(f"buffer_load_dword v{10+j}, {base}, {K}, 0 offen offset:{off}")
        for j in range(8):
            base, off = ("v2", j * 1024) if j < 4 else ("v4", (j - 4) * 1024)
            a(f"buffer_load_dword v{21+j}, {base}, {V}, 0 offen offset:{off}")
        a(f"""
        s_lshl_b32 s62, {sX}, 9
        s_lshl_b32 s63, {sWV}, 7
        s_add_u32 s62, s62, s63
        v_lshl_add_u32 v37, v9, 4, s62
        buffer_load_dwordx4 v[38:41], v37, {SK}, 0 offen
        """)
        for j in range(8):
            base, off = ("v2", j * 1024) if j < 4 else ("v4", (j - 4) * 1024)
            a(f"buffer_load_dword v{29+j}, {base}, {Q}, 0 offen offset:{off}")
        a(f"""
        s_lshl_b32 s60, s2, 13
        s_lshl_b32 s61, {sWV}, 11
        s_add_u32 s60, s60, s61
        v_lshrrev_b32 v5, 5, v1
        v_lshlrev_b32 v5, 10, v5
        v_and_b32 v42, 31, v1
        v_lshl_add_u32 v5, v42, 4, v5
        v_add_u32 v5, s60, v5
        buffer_load_dwordx4 v[44:47], v5, {Q}, 0 offen
        buffer_load_dwordx4 v[48:51], v5, {Q}, 0 offen offset:512
        """)
        a(f"""
        s_and_b32 s60, s2, 3
        s_lshl_b32 s60, s60, 7
        s_lshl_b32 s61, {sWV}, 5
        s_add_u32 s60, s60, s61
        v_add_u32 v42, s60, v8
        v_lshlrev_b32 v43, 1, v42
        s_movk_i32 s61, 6144
        v_mul_lo_u32 v6, v42, s61
        v_lshl_add_u32 v6, v9, 4, v6
        s_lshr_b32 s60, s2, 2
        s_lshl_b32 s60, s60, 7
        s_cmp_ge_u32 s2, 192
        s_cselect_b32 s60, 0x40000000, s60
        v_add_u32 v6, s60, v6
        s_mov_b32 s61, {8*6144}
        s_mov_b32 s62, {16*6144}
        s_mov_b32 s63, {24*6144}
        buffer_load_ushort v68, v43, {C}, 0 offen
        buffer_load_ushort v69, v43, {C}, 0 offen offset:16
        buffer_load_ushort v70, v43, {C}, 0 offen offset:32
        buffer_load_ushort v71, v43, {C}, 0 offen offset:48
        buffer_load_dwordx4 v[52:55], v6, {WM}, 0 offen
        buffer_load_dwordx4 v[56:59], v6, {WM}, s61 offen
        buffer_load_dwordx4 v[60:63], v6, {WM}, s62 offen
        buffer_load_dwordx4 v[64:67], v6, {WM}, s63 offen
        """)
        a(f"""
        s_lshr_b32 s60, {sWV}, 1
        s_lshl_b32 s61, s2, 1
        s_add_u32 s60, s60, s61
        s_lshr_b32 s64, s60, 3
        s_and_b32 s65, s60, 7
        s_mul_i32 s61, s64, 37
        s_lshr_b32 s61, s61, 8
        s_mul_i32 s62, s61, 7
        s_sub_u32 s62, s64, s62
        s_mul_i32 s61, s61, 224
        s_lshl_b32 s63, s62, 5
        s_add_u32 s66, s63, 16
        s_cmp_ge_u32 s62, 3
        s_cselect_b32 s63, s66, s63
        s_movk_i32 s66, {16*1024}
        s_cmp_eq_u32 s62, 6
        s_cselect_b32 s63, 96, s63
        s_cselect_b32 s66, {112*1024}, s66
        s_add_u32 s61, s61, s63
        s_and_b32 s62, {sWV}, 1
        s_lshl_b32 s62, s62, 3
        s_add_u32 s61, s61, s62
        s_lshl_b32 s61, s61, 10
        s_lshl_b32 s62, s65, 7
        s_add_u32 s61, s61, s62
        s_cmp_ge_u32 s60, 448
        s_cselect_b32 s61, 0x40000000, s61
        v_lshrrev_b32 v42, 5, v1
        v_lshlrev_b32 v42, 12, v42
        v_and_b32 v43, 31, v1
        v_lshl_add_u32 v7, v43, 2, v42
        v_add_u32 v7, s61, v7
        """)
        for e in range(8):
            so = "0" if e < 4 else "s66"
            a(f"buffer_load_dword v{72+e}, v7, {W2}, {so} offen offset:{(e&3)*1024}")

    def p_kv(self, later):
        a = self.a
        a(f"s_waitcnt vmcnt({later + 8 + 2 + 8 + 8})")
        for j in range(11):
            a(f"v_lshlrev_b32 v{80+2*j}, 16, v{10+j}\nv_and_b32 v{81+2*j}, 0xffff0000, v{10+j}")
        a("""
        v_lshlrev_b32 v102, 16, v38
        v_lshlrev_b32 v103, 16, v40
        v_and_b32 v104, 0xffff0000, v38
        v_and_b32 v105, 0xffff0000, v40
        v_lshlrev_b32 v106, 16, v39
        v_lshlrev_b32 v107, 16, v41
        v_and_b32 v108, 0xffff0000, v39
        v_and_b32 v109, 0xffff0000, v41
        """)
        for i in range(8):
            a(f"v_lshlrev_b32 v{126+2*i}, 16, v{21+i}\nv_and_b32 v{127+2*i}, 0xffff0000, v{21+i}")
        P = lambda r: f"v[{r}:{r+1}]"
        for i in range(8): a(f"v_pk_mul_f32 {P(110+2*i)}, {P(80+2*i)}, {P(108)}")
        for i in range(8): a(f"v_pk_fma_f32 {P(110+2*i)}, {P(82+2*i)}, {P(106)}, {P(110+2*i)}")
        for i in range(8): a(f"v_pk_fma_f32 {P(110+2*i)}, {P(84+2*i)}, {P(104)}, {P(110+2*i)}")
        for i in range(8): a(f"v_pk_fma_f32 {P(110+2*i)}, {P(86+2*i)}, {P(102)}, {P(110+2*i)}")
        for i in range(8): a(f"v_pk_mul_f32 {P(110+2*i)}, {P(110+2*i)}, {P(126+2*i)}")
        for j in range(4):
            a(f"v_cvt_pk_bf16_f32 v{144+j}, v{110+2*(7-2*j)}, v{110+2*(6-2*j)}")
            a(f"v_cvt_pk_bf16_f32 v{148+j}, v{111+2*(7-2*j)}, v{111+2*(6-2*j)}")
        a(f"""
        s_lshl_b32 s60, {sX}, 18
        s_lshl_b32 s61, {sWV}, 16
        s_add_u32 s60, s60, s61
        s_lshl_b32 s61, {sM}, 7
        v_lshlrev_b32 v142, 13, v9
        v_add_u32 v142, s60, v142
        v_lshl_add_u32 v143, v8, 4, s61
        v_add_u32 v152, v142, v143
        v_sub_u32 v142, v142, v143
        v_add_u32 v142, {WS_KVT + 4080}, v142
        v_add_u32 v152, {WS_QT}, v152
        s_movk_i32 s67, 4096
        buffer_store_dwordx4 v[144:147], v142, {WS}, 0 offen{self.sc}
        buffer_store_dwordx4 v[148:151], v142, {WS}, s67 offen{self.sc}
        """)

    def p_q(self, later):
        a = self.a
        a(f"s_waitcnt vmcnt({later + 2 + 8 + 8})")
        a("s_mov_b32 s60, 0x05040100\ns_mov_b32 s61, 0x07060302")
        for j in range(4):
            a(f"v_perm_b32 v{80+j}, v{30+2*j}, v{29+2*j}, s60")
            a(f"v_perm_b32 v{84+j}, v{30+2*j}, v{29+2*j}, s61")
        a(f"""
        buffer_store_dwordx4 v[80:83], v152, {WS}, 0 offen{self.sc}
        buffer_store_dwordx4 v[84:87], v152, {WS}, s67 offen{self.sc}
        """)

    def reduce32(self, r, t):
        a = self.a
        for n in (8, 4, 2, 1):
            a(f"v_add_f32_dpp v{r}, v{r}, v{r} row_ror:{n} row_mask:0xf bank_mask:0xf")
        a(f"v_mov_b32 v{t}, v{r}\nv_permlane16_swap_b32 v{r}, v{t}\nv_add_f32 v{r}, v{r}, v{t}")

    def p_stats(self, later):
        a = self.a
        a(f"s_waitcnt vmcnt({later + 8 + 8})")
        P = lambda r: f"v[{r}:{r+1}]"
        for j in range(8):
            a(f"v_lshlrev_b32 v{90+2*j}, 16, v{44+j}\nv_and_b32 v{91+2*j}, 0xffff0000, v{44+j}")
        for j in range(4): a(f"v_pk_add_f32 {P(110+2*j)}, {P(90+4*j)}, {P(92+4*j)}")
        a(f"v_pk_add_f32 {P(110)}, {P(110)}, {P(112)}\nv_pk_add_f32 {P(114)}, {P(114)}, {P(116)}\nv_pk_add_f32 {P(110)}, {P(110)}, {P(114)}")
        a("v_add_f32 v110, v110, v111")
        self.reduce32(110, 111)
        a("v_mul_f32 v118, 0xbb000000, v110\nv_mov_b32 v119, v118")
        for j in range(8): a(f"v_pk_add_f32 {P(90+2*j)}, {P(90+2*j)}, {P(118)}")
        a(f"v_pk_mul_f32 {P(110)}, {P(90)}, {P(90)}\nv_pk_mul_f32 {P(112)}, {P(92)}, {P(92)}")
        for j in range(2, 8): a(f"v_pk_fma_f32 {P(110+2*(j&1))}, {P(90+2*j)}, {P(90+2*j)}, {P(110+2*(j&1))}")
        a(f"v_pk_add_f32 {P(110)}, {P(110)}, {P(112)}\nv_add_f32 v110, v110, v111")
        self.reduce32(110, 111)
        a(f"""
        v_mov_b32 v111, 0x3727c5ac
        v_fmac_f32 v111, 0x3b000000, v110
        v_rsq_f32 v121, v111
        s_lshl_b32 s60, s2, 5
        s_lshl_b32 s61, {sWV}, 3
        s_add_u32 s60, s60, s61
        s_add_u32 s60, s60, {WS_STAT}
        v_mul_f32 v120, v118, v121
        v_lshrrev_b32 v112, 5, v1
        v_lshl_add_u32 v112, v112, 2, s60
        v_and_b32 v113, 1, v1
        v_lshl_add_u32 v112, v113, 13, v112
        v_cmp_eq_u32 vcc, 1, v113
        v_cndmask_b32 v121, v121, v120, vcc
        v_and_b32 v113, 30, v1
        v_cmp_eq_u32 vcc, 0, v113
        s_and_saveexec_b64 s[62:63], vcc
        buffer_store_dword v121, v112, {WS}, 0 offen{self.sc}
        s_mov_b64 exec, s[62:63]
        """)

    def p_gemv(self, later, lds):
        a = self.a
        a(f"s_waitcnt vmcnt({later + 8})")
        P = lambda r: f"v[{r}:{r+1}]"
        for j in range(4): a(f"v_lshlrev_b32 v{68+j}, 16, v{68+j}")
        for j in range(4): a(f"v_mul_f32 v{90+j}, {NLOG2E}, v{68+j}")
        for j in range(4): a(f"v_exp_f32 v{90+j}, v{90+j}")
        for j in range(4): a(f"v_add_f32 v{90+j}, 1.0, v{90+j}")
        for j in range(4): a(f"v_rcp_f32 v{90+j}, v{90+j}")
        for j in range(4): a(f"v_mul_f32 v{90+j}, v{68+j}, v{90+j}")
        for j in range(4): a(f"v_cvt_pk_bf16_f32 v{90+j}, v{90+j}, v{90+j}")
        for j in range(4): a(f"v_and_b32 v{94+2*j}, 0xffff0000, v{90+j}\nv_and_b32 v{95+2*j}, 0xffff0000, v{90+j}")
        for j in range(4):
            for e in range(4):
                a(f"v_lshlrev_b32 v{110+2*e}, 16, v{52+4*j+e}\nv_and_b32 v{111+2*e}, 0xffff0000, v{52+4*j+e}")
            for e in range(4):
                if j == 0: a(f"v_pk_mul_f32 {P(120+2*e)}, {P(110+2*e)}, {P(94)}")
                else: a(f"v_pk_fma_f32 {P(120+2*e)}, {P(110+2*e)}, {P(94+2*j)}, {P(120+2*e)}")
        for e in range(8):
            a(f"v_add_f32_dpp v{120+e}, v{120+e}, v{120+e} row_ror:8 row_mask:0xf bank_mask:0xf")
        a(f"""
        v_lshrrev_b32 v110, 4, v0
        v_lshlrev_b32 v110, 8, v110
        v_lshl_add_u32 v110, v9, 5, v110
        ds_write_b128 v110, v[120:123] offset:{lds}
        ds_write_b128 v110, v[124:127] offset:{lds+16}
        s_waitcnt lgkmcnt(0)
        s_barrier
        s_cmp_lg_u32 {sWV}, 0
        s_cbranch_scc1 L_gemv_done
        v_lshlrev_b32 v110, 2, v1
        """)
        for r in range(16): a(f"ds_read_b32 v{112+r}, v110 offset:{lds + 256*r}")
        a("s_waitcnt lgkmcnt(0)")
        for st in (8, 4, 2, 1):
            for r in range(st): a(f"v_add_f32 v{112+r}, v{112+r}, v{112+r+st}")
        a(f"""
        s_and_b32 s60, s2, 3
        s_mul_i32 s60, s60, 12288
        s_lshr_b32 s61, s2, 2
        s_lshl_b32 s61, s61, 8
        s_add_u32 s60, s60, s61
        s_add_u32 s60, s60, {WS_MOD}
        s_cmp_ge_u32 s2, 192
        s_cselect_b32 s60, 0x40000000, s60
        v_add_u32 v110, s60, v110
        buffer_store_dword v112, v110, {WS}, 0 offen{self.sc}
        L_gemv_done:
        """)

    def p_w2(self, later):
        a = self.a
        a(f"s_waitcnt vmcnt({later})")
        a("s_mov_b32 s60, 0x05040100\ns_mov_b32 s61, 0x07060302")
        for j in range(4):
            a(f"v_perm_b32 v{132+j}, v{73+2*j}, v{72+2*j}, s60")
            a(f"v_perm_b32 v{136+j}, v{73+2*j}, v{72+2*j}, s61")
        a(f"""
        s_mul_i32 s60, s65, 56
        s_add_u32 s60, s60, s64
        s_lshl_b32 s60, s60, 12
        s_and_b32 s61, {sWV}, 1
        s_lshl_b32 s61, s61, 9
        s_add_u32 s60, s60, s61
        s_add_u32 s60, s60, {WS_W2P}
        s_cmp_ge_u32 s64, 56
        s_cselect_b32 s60, 0x40000000, s60
        v_lshrrev_b32 v140, 5, v1
        v_lshlrev_b32 v140, 8, v140
        v_bfe_u32 v141, v1, 4, 1
        v_lshl_add_u32 v140, v141, 11, v140
        v_bfe_u32 v141, v1, 1, 1
        v_lshl_add_u32 v140, v141, 10, v140
        v_bfe_u32 v141, v1, 2, 2
        v_lshl_add_u32 v140, v141, 6, v140
        v_and_b32 v141, 1, v1
        v_lshl_add_u32 v140, v141, 5, v140
        v_add_u32 v140, s60, v140
        buffer_store_dwordx4 v[132:135], v140, {WS}, 0 offen{self.sc}
        buffer_store_dwordx4 v[136:139], v140, {WS}, 0 offen offset:16{self.sc}
        """)

    FSZ = 8320
    def c_ids(self):
        self.a(f"""
        s_lshr_b32 s70, {sM}, 1
        s_lshl_b32 s60, {sX}, 4
        s_add_u32 s70, s70, s60
        s_and_b32 s69, {sM}, 1
        s_lshl_b32 s68, s70, 2
        s_add_u32 s68, s68, {sWV}
        s_mov_b32 s71, s69
        s_sub_u32 s72, 3, s69
        """)

    def c_filter_load(self, r0):
        a = self.a
        a(f"s_lshl_b32 s60, s68, 12\nv_lshl_add_u32 v4, v1, 4, s60\nv_add_u32 v5, 2, v4")
        for i in range(4): a(f"buffer_load_dwordx4 v[{r0+4*i}:{r0+4*i+3}], v4, {FK}, 0 offen offset:{1024*i}")
        for i in range(4): a(f"buffer_load_dwordx4 v[{r0+16+4*i}:{r0+16+4*i+3}], v5, {FK}, 0 offen offset:{1024*i}")

    def Freg(self, n):
        return f"a[{4*n}:{4*n+3}]" if n < 64 else f"v[{176+4*(n-64)}:{179+4*(n-64)}]"
    def Fhalf(self, n, h):
        b = 4 * n + 2 * h
        return f"a[{b}:{b+1}]" if n < 64 else f"v[{176+b-256}:{177+b-256}]"

    def c_filter_prep(self, r0, fb, later):
        a = self.a
        a(f"""
        s_mul_i32 s73, {sWV}, {self.FSZ}
        s_add_u32 s73, s73, {fb}
        v_and_b32 v2, 15, v1
        v_lshrrev_b32 v3, 4, v1
        v_lshl_add_u32 v4, v1, 4, s73
        v_mov_b32 v6, 0
        v_mov_b32 v7, 0
        v_mov_b32 v8, 0
        v_mov_b32 v9, 0
        v_cmp_gt_u32 vcc, 4, v1
        s_and_saveexec_b64 s[62:63], vcc
        ds_write_b128 v4, v[6:9]
        ds_write_b128 v4, v[6:9] offset:4160
        s_mov_b64 exec, s[62:63]
        s_waitcnt vmcnt({later})
        """)
        for i in range(4): a(f"ds_write_b128 v4, v[{r0+4*i}:{r0+4*i+3}] offset:{64+1024*i}")
        for i in range(4): a(f"ds_write_b128 v4, v[{r0+16+4*i}:{r0+16+4*i+3}] offset:{4160+64+1024*i}")
        a(f"""
        v_cmp_eq_u32 vcc, 0, v1
        s_and_saveexec_b64 s[62:63], vcc
        ds_write_b16 v4, v{r0} offset:{4160+62}
        s_mov_b64 exec, s[62:63]
        v_and_b32 v5, 1, v2
        v_cmp_eq_u32 vcc, 1, v5
        v_mov_b32 v5, 4160
        v_cndmask_b32 v5, v5, 2, vcc
        v_lshl_add_u32 v5, v2, 1, v5
        v_and_b32 v10, 1, v3
        v_lshl_add_u32 v5, v10, 4, v5
        v_add_u32 v5, s73, v5
        v_lshrrev_b32 v10, 1, v3
        s_add_u32 s60, s71, 1
        s_lshl_b32 s60, s60, 9
        s_add_u32 s61, s72, 1
        s_lshl_b32 s61, s61, 9
        v_mad_u32_u24 v11, v10, s60, v5
        v_mad_u32_u24 v12, v10, s61, v5
        v_add_u32 v15, s60, v11
        v_mov_b32 v10, v11
        v_add_u32 v11, 512, v11
        s_cmp_eq_u32 s69, 0
        s_cselect_b64 vcc, -1, 0
        v_cndmask_b32 v11, v11, v12, vcc
        s_sub_u32 s61, 1024, s60
        v_add_u32 v12, s61, v12
        v_add_u32 v13, 512, v12
        v_add_u32 v14, 1024, v12
        """)
        for n in range(81):
            c = min(n // 16, 4)
            o = 8 * (n - 16 * c)
            a(f"ds_read2_b32 {self.Fhalf(n,0)}, v{10+c} offset0:{o} offset1:{o+1}")
            a(f"ds_read2_b32 {self.Fhalf(n,1)}, v{10+c} offset0:{o+2} offset1:{o+3}")
        a("ds_read2_b32 v[244:245], v15 offset0:0 offset1:1\nds_read2_b32 v[246:247], v15 offset0:2 offset1:3")
        a("ds_write_b128 v4, v[6:9] offset:6144\nds_write_b128 v4, v[6:9] offset:7168")
        a(f"""
        v_sub_u32 v5, 63, v2
        v_mul_u32_u24 v5, 96, v5
        v_add_u32 v5, s73, v5
        s_mul_i32 s60, s71, {16*96}
        s_mul_i32 s61, s72, {16*96}
        v_subrev_u32 v156, s60, v5
        v_subrev_u32 v157, s61, v5
        v_and_b32 v6, 1, v3
        v_lshlrev_b32 v6, 4, v6
        v_lshrrev_b32 v7, 1, v3
        s_add_u32 s60, s71, 1
        s_mul_i32 s60, s60, 768
        s_add_u32 s61, s72, 1
        s_mul_i32 s61, s61, 768
        v_mad_u32_u24 v80, v7, s60, v156
        v_mad_u32_u24 v82, v7, s61, v157
        v_add_u32 v80, v80, v6
        v_add_u32 v82, v82, v6
        v_subrev_u32 v82, s60, v82
        s_cmp_eq_u32 s69, 0
        s_cselect_b64 vcc, -1, 0
        v_cndmask_b32 v81, v80, v82, vcc
        v_lshlrev_b32 v6, 3, v3
        v_sub_u32 v6, 24, v6
        v_add_u32 v156, v156, v6
        v_add_u32 v157, v157, v6
        v_lshrrev_b32 v83, 2, v1
        v_mul_u32_u24 v83, 96, v83
        v_and_b32 v6, 3, v1
        v_lshl_add_u32 v83, v6, 4, v83
        v_add_u32 v83, s73, v83
        """)

    def c_u_load(self):
        a = self.a
        a(f"s_lshl_b32 s60, s68, 12\ns_add_u32 s60, s60, {WS_KVT}\nv_lshl_add_u32 v4, v1, 4, s60")
        for i in range(4): a(f"buffer_load_dwordx4 v[{16+4*i}:{19+4*i}], v4, {WS}, 0 offen offset:{1024*i}{self.sc}")

    def c_epi_load(self):
        a = self.a
        a(f"""
        v_lshlrev_b32 v5, 5, v2
        v_lshl_add_u32 v5, v3, 2, v5
        s_lshl_b32 s60, s68, 12
        s_add_u32 s60, s60, {WS_QT}
        v_lshl_add_u32 v6, v5, 1, s60
        v_lshlrev_b32 v7, 2, v5
        v_add_u32 v7, {WS_STAT}, v7
        v_add_u32 v8, 8192, v7
        s_lshl_b32 s60, s71, 10
        s_lshl_b32 s61, s72, 10
        s_lshl_b32 s62, s71, 11
        s_lshl_b32 s63, s72, 11
        v_and_b32 v9, 3, v1
        s_movk_i32 s64, 12288
        v_mul_u32_u24 v9, s64, v9
        v_bfe_u32 v5, v1, 2, 2
        v_lshl_add_u32 v9, v5, 11, v9
        s_lshl_b32 s64, s68, 2
        s_add_u32 s64, s64, {WS_MOD}
        v_add_u32 v9, s64, v9
        s_lshl_b32 s64, s68, 1
        v_mov_b32 v5, s64
        buffer_load_dword v148, v9, {WS}, 0 offen{self.sc}
        buffer_load_ushort v149, v5, {SD}, 0 offen
        """)
        for sl in range(2):
            for t in range(2):
                i = 2 * sl + t
                a(f"buffer_load_dwordx2 v[{100+2*i}:{101+2*i}], v6, {WS}, s{60+sl} offen offset:{32*t}{self.sc}")
                a(f"buffer_load_dwordx4 v[{108+4*i}:{111+4*i}], v7, {WS}, s{62+sl} offen offset:{64*t}{self.sc}")
                a(f"buffer_load_dwordx4 v[{124+4*i}:{127+4*i}], v8, {WS}, s{62+sl} offen offset:{64*t}{self.sc}")

    def c_main(self, later, hook=None):
        a = self.a
        a(f"s_waitcnt vmcnt({later})")
        for i in range(4): a(f"ds_write_b128 v83, v[{16+4*i}:{19+4*i}] offset:{1536*i}")
        D = 6
        off = lambda n: 96 * (n >> 1) + 32 * (n & 1)
        base = lambda n: "v80" if n < 16 else "v81" if n < 32 else "v82"
        Br = lambda n: f"v[{48+4*(n%8)}:{51+4*(n%8)}]"
        def rd(n):
            if n < 80: a(f"ds_read_b128 {Br(n)}, {base(n)} offset:{off(n)}")
        def step(n, c0="v[84:87]", c1="v[88:91]", d0="v[84:87]", d1="v[88:91]", a1=None):
            rd(n + D)
            a(f"s_waitcnt lgkmcnt({min(D, 79 - n)})")
            a(f"v_mfma_f32_16x16x32_bf16 {d0}, {self.Freg(n)}, {Br(n)}, {c0}")
            a(f"v_mfma_f32_16x16x32_bf16 {d1}, {a1 or self.Freg(n+1)}, {Br(n)}, {c1}")
            if hook: hook(n)
        for n in range(D): rd(n)
        def boundary(n, ty):
            a(f"s_cmp_eq_u32 s69, {ty}\ns_cbranch_scc0 L_cb{n}_no")
            h = list(a.hist)
            step(n, d0="v[92:95]", d1="v[96:99]", a1="v[244:247]")
            step(n + 1, c0="0", c1="0")
            a(f"s_branch L_cb{n}_done\nL_cb{n}_no:")
            a.hist = h
            step(n); step(n + 1)
            a(f"L_cb{n}_done:")
            a("s_nop 0")
        step(0, c0="0", c1="0")
        for n in range(1, 15): step(n)
        boundary(15, 0)
        for n in range(17, 31): step(n)
        boundary(31, 1)
        for n in range(33, 80): step(n)

    XI_RS = 2368
    def c_epilogue(self, xi, wait=True):
        a = self.a
        P = lambda r: f"v[{r}:{r+1}]"
        for sl in range(2):
            for t in range(2):
                a(f"ds_read_b64 {P(140+4*sl+2*t)}, v{156+sl} offset:{32-32*t}")
        if wait: a("s_waitcnt vmcnt(0)")
        a("""
        v_add_f32_dpp v148, v148, v148 quad_perm:[1,0,3,2] row_mask:0xf bank_mask:0xf
        v_add_f32_dpp v148, v148, v148 quad_perm:[2,3,0,1] row_mask:0xf bank_mask:0xf
        v_cvt_pk_bf16_f32 v148, v148, v148
        v_and_b32 v148, 0xffff0000, v148
        v_readlane_b32 s60, v148, 0
        v_readlane_b32 s61, v148, 4
        v_readlane_b32 s62, v148, 8
        v_lshlrev_b32 v150, 16, v149
        v_mov_b32 v151, v150
        v_add_f32 v152, 1.0, s61
        v_cvt_pk_bf16_f32 v152, v152, v152
        v_and_b32 v152, 0xffff0000, v152
        v_mov_b32 v153, v152
        v_mov_b32 v154, s60
        v_mov_b32 v155, s60
        v_mov_b32 v148, s62
        v_mov_b32 v149, s62
        """)
        a(f"""
        s_mul_i32 s60, {sWV}, {self.XI_RS}
        s_add_u32 s60, s60, {xi}
        v_mul_u32_u24 v4, 144, v3
        v_lshl_add_u32 v4, v2, 3, v4
        v_add_u32 v4, s60, v4
        s_waitcnt lgkmcnt(0)
        """)
        for sl in range(2):
            for t in range(2):
                i = 2 * sl + t
                acc = (92 if sl == 0 else 84) + 4 * t
                kv, q, A, B = 140 + 2 * i, 100 + 2 * i, 108 + 4 * i, 124 + 4 * i
                a(f"""
                v_and_b32 v160, 0xffff0000, v{kv+1}
                v_lshlrev_b32 v161, 16, v{kv+1}
                v_and_b32 v162, 0xffff0000, v{kv}
                v_lshlrev_b32 v163, 16, v{kv}
                v_lshlrev_b32 v164, 16, v{q}
                v_and_b32 v165, 0xffff0000, v{q}
                v_lshlrev_b32 v166, 16, v{q+1}
                v_and_b32 v167, 0xffff0000, v{q+1}
                v_pk_fma_f32 {P(160)}, {P(160)}, {P(150)}, {P(acc)}
                v_pk_fma_f32 {P(162)}, {P(162)}, {P(150)}, {P(acc+2)}
                v_pk_fma_f32 {P(168)}, {P(164)}, {P(A)}, {P(B)}
                v_pk_fma_f32 {P(170)}, {P(166)}, {P(A+2)}, {P(B+2)}
                v_pk_mul_f32 {P(160)}, {P(160)}, {P(148)}
                v_pk_mul_f32 {P(162)}, {P(162)}, {P(148)}
                v_pk_fma_f32 {P(168)}, {P(168)}, {P(152)}, {P(154)}
                v_pk_fma_f32 {P(170)}, {P(170)}, {P(152)}, {P(154)}
                v_pk_fma_f32 {P(164)}, {P(168)}, {P(160)}, {P(164)}
                v_pk_fma_f32 {P(166)}, {P(170)}, {P(162)}, {P(166)}
                v_cvt_pk_bf16_f32 v{172+2*(i&1)}, v164, v165
                v_cvt_pk_bf16_f32 v{173+2*(i&1)}, v166, v167
                ds_write_b64 v4, {P(172+2*(i&1))} offset:{1152*sl + 576*t}
                """)
        a(f"""
        s_lshr_b32 s60, {sWV}, 1
        s_and_b32 s61, {sWV}, 1
        s_mul_i32 s62, s60, 1152
        s_lshl_b32 s63, s61, 6
        s_add_u32 s62, s62, s63
        s_add_u32 s62, s62, {xi}
        v_bfe_u32 v5, v1, 2, 2
        v_mul_u32_u24 v5, {self.XI_RS}, v5
        v_and_b32 v6, 3, v1
        v_mul_u32_u24 v6, 144, v6
        v_add3_u32 v5, v5, v6, s62
        v_lshl_add_u32 v5, v3, 3, v5
        s_cmp_eq_u32 s60, 0
        s_cselect_b32 s62, s71, s72
        s_lshl_b32 s62, s62, 4
        s_lshl_b32 s61, s61, 3
        s_add_u32 s62, s62, s61
        s_lshl_b32 s62, s62, 15
        s_lshl_b32 s63, s70, 8
        s_add_u32 s62, s62, s63
        s_add_u32 s62, s62, {WS_X1}
        v_lshlrev_b32 v6, 15, v3
        v_lshl_add_u32 v6, v2, 4, v6
        v_add_u32 v6, s62, v6
        s_mov_b32 s63, {4*32768}
        s_waitcnt lgkmcnt(0)
        s_barrier
        ds_read_b64_tr_b16 v[160:161], v5
        ds_read_b64_tr_b16 v[162:163], v5 offset:576
        ds_read_b64_tr_b16 v[164:165], v5 offset:32
        ds_read_b64_tr_b16 v[166:167], v5 offset:{576+32}
        s_waitcnt lgkmcnt(2)
        buffer_store_dwordx4 v[160:163], v6, {WS}, 0 offen{self.sc}
        s_waitcnt lgkmcnt(0)
        buffer_store_dwordx4 v[164:167], v6, {WS}, s63 offen{self.sc}
        """)

    WB = 49152
    def g1_ids(self):
        self.a(f"""
        s_lshr_b32 s74, {sM}, 4
        s_lshl_b32 s60, {sX}, 1
        s_add_u32 s74, s74, s60
        s_and_b32 s75, {sM}, 15
        """)

    def g1_rows(self, r0, scale, add):
        a = self.a
        a("s_movk_i32 s60, 4682")
        for i in range(7):
            a(f"v_add_u32 v{r0+7}, {64*i}, v1\nv_mul_u32_u24 v{r0+i}, s60, v{r0+7}\nv_lshrrev_b32 v{r0+i}, 16, v{r0+i}")
            if add:
                a(f"v_mul_u32_u24 v{r0+8}, 14, v{r0+i}\nv_sub_u32 v{r0+7}, v{r0+7}, v{r0+8}")
                a(f"v_mul_u32_u24 v{r0+i}, {scale}, v{r0+i}\nv_lshl_add_u32 v{r0+i}, v{r0+7}, 4, v{r0+i}")
            else:
                a(f"v_mul_u32_u24 v{r0+i}, {scale}, v{r0+i}")

    def g1_w1_load(self, r0):
        a = self.a
        self.g1_rows(r0, 3584, True)
        a(f"""
        s_mul_i32 s60, s75, 224
        s_mul_i32 s61, {sWV}, {4*32*3584}
        s_add_u32 s60, s60, s61
        s_mul_i32 s61, {sWV}, {28*1024}
        s_add_u32 m0, s61, {self.WB}
        """)
        for blk in range(4):
            for i in range(7):
                a(f"buffer_load_dwordx4 v{r0+i}, {W1}, s60 offen lds")
                if not (blk == 3 and i == 6): a("s_add_u32 m0, m0, 1024")
            if blk < 3: a(f"s_add_u32 s60, s60, {32*3584}")

    def g1_mod_load(self, r0):
        a = self.a
        a(f"v_lshlrev_b32 v4, 3, v0\nv_add_u32 v4, {WS_MOD + 3*2048}, v4")
        for k in range(4):
            a(f"s_mov_b32 s60, {12288*k}")
            a(f"buffer_load_dwordx2 v[{r0+4*k}:{r0+4*k+1}], v4, {WS}, s60 offen{self.sc}")
            a(f"buffer_load_dwordx2 v[{r0+4*k+2}:{r0+4*k+3}], v4, {WS}, s60 offen offset:2048{self.sc}")

    def g1_prep(self, r0, tb, later):
        a = self.a
        GT, GB, U = tb, tb + 2048, tb + 4096
        P = lambda r: f"v[{r}:{r+1}]"
        a(f"s_waitcnt vmcnt({later})")
        for h in range(2):
            a(f"v_pk_add_f32 {P(r0+2*h)}, {P(r0+2*h)}, {P(r0+4+2*h)}\nv_pk_add_f32 {P(r0+8+2*h)}, {P(r0+8+2*h)}, {P(r0+12+2*h)}")
        for h in range(2): a(f"v_pk_add_f32 {P(r0+2*h)}, {P(r0+2*h)}, {P(r0+8+2*h)}")
        a(f"""
        v_cvt_pk_bf16_f32 v{r0}, v{r0}, v{r0+1}
        v_cvt_pk_bf16_f32 v{r0+2}, v{r0+2}, v{r0+3}
        v_lshlrev_b32 v{r0+4}, 16, v{r0+2}
        v_and_b32 v{r0+5}, 0xffff0000, v{r0+2}
        v_add_f32 v{r0+4}, 1.0, v{r0+4}
        v_add_f32 v{r0+5}, 1.0, v{r0+5}
        v_cvt_pk_bf16_f32 v{r0+2}, v{r0+4}, v{r0+5}
        v_lshlrev_b32 v{r0+4}, 16, v{r0+2}
        v_and_b32 v{r0+5}, 0xffff0000, v{r0+2}
        v_lshlrev_b32 v4, 2, v0
        v_lshlrev_b32 v5, 3, v0
        ds_write_b64 v5, {P(r0+4)} offset:{GT}
        ds_write_b32 v4, v{r0+2} offset:{GB}
        ds_write_b32 v4, v{r0} offset:{GB+1024}
        v_and_b32 v2, 15, v1
        v_lshrrev_b32 v3, 4, v1
        v_lshrrev_b32 v6, 2, v1
        v_mul_u32_u24 v6, 224, v6
        v_and_b32 v7, 3, v1
        v_lshl_add_u32 v10, v7, 3, v6
        v_add_u32 v10, {self.WB}, v10
        v_add_u32 v11, 57344, v10
        v_and_b32 v6, 1, v1
        v_lshlrev_b32 v6, 10, v6
        v_lshl_add_u32 v6, v3, 3, v6
        s_lshl_b32 s60, {sWV}, 5
        v_add_u32 v8, s60, v10
        v_add_u32 v9, s60, v11
        s_waitcnt lgkmcnt(0)
        s_barrier
        """)
        for k in range(16):
            b = "v8" if k < 8 else "v9"
            o = (k % 8) * 7168
            s = 16 + 12 * (k % 2)
            a(f"""
            ds_read_b64 v[{s}:{s+1}], v6 offset:{GB + 64*k}
            ds_read_b64 v[{s+2}:{s+3}], v6 offset:{GB + 64*k + 32}
            ds_read_b64_tr_b16 v[{s+4}:{s+5}], {b} offset:{o}
            ds_read_b64_tr_b16 v[{s+6}:{s+7}], {b} offset:{o+3584}
            ds_read_b64_tr_b16 v[{s+8}:{s+9}], {b} offset:{o+128}
            ds_read_b64_tr_b16 v[{s+10}:{s+11}], {b} offset:{o+3584+128}
            """)
            if k > 0:
                p = 16 + 12 * ((k - 1) % 2)
                c0, c1 = ("0", "0") if k == 1 else ("v[40:43]", "v[44:47]")
                a(f"s_waitcnt lgkmcnt(6)\nv_mfma_f32_16x16x32_bf16 v[40:43], v[{p+4}:{p+7}], v[{p}:{p+3}], {c0}\nv_mfma_f32_16x16x32_bf16 v[44:47], v[{p+8}:{p+11}], v[{p}:{p+3}], {c1}")
        a("s_waitcnt lgkmcnt(0)\nv_mfma_f32_16x16x32_bf16 v[40:43], v[32:35], v[28:31], v[40:43]\nv_mfma_f32_16x16x32_bf16 v[44:47], v[36:39], v[28:31], v[44:47]")
        self.g1_rows(16, 4, False)
        a(f"""
        v_and_b32 v6, 1, v1
        v_mul_u32_u24 v6, 512, v6
        v_lshl_add_u32 v6, v3, 4, v6
        s_lshl_b32 s60, {sWV}, 6
        v_add_u32 v6, s60, v6
        ds_write_b128 v6, v[40:43] offset:{U}
        ds_write_b128 v6, v[44:47] offset:{U+256}
        s_mul_i32 s60, {sWV}, {28*1024}
        s_add_u32 s60, s60, {self.WB}
        v_lshl_add_u32 v7, v1, 4, s60
        s_lshl_b32 s60, {sWV}, 9
        """)
        for i in range(7): a(f"v_add_u32 v{16+i}, s60, v{16+i}")
        a("s_waitcnt lgkmcnt(0)\ns_barrier")
        NB = 4
        def rd(n):
            if n < 28:
                s = 24 + 8 * (n % NB)
                a(f"ds_read_b128 v[{s}:{s+3}], v7 offset:{1024*n}\nds_read_b32 v{s+4}, v{16+n%7} offset:{GT + 128*(n//7)}")
        for n in range(NB - 1): rd(n)
        for n in range(28):
            rd(n + NB - 1)
            s = 24 + 8 * (n % NB)
            left = min(NB - 1, 27 - n)
            a(f"s_waitcnt lgkmcnt({2*left})")
            for e in range(4): a(f"v_lshlrev_b32 v{56+2*e}, 16, v{s+e}\nv_and_b32 v{57+2*e}, 0xffff0000, v{s+e}")
            for e in range(4): a(f"v_pk_mul_f32 {P(56+2*e)}, {P(56+2*e)}, {P(s+4)} op_sel_hi:[1,0]")
            for e in range(4): a(f"v_cvt_pk_bf16_f32 v{s+e}, v{56+2*e}, v{57+2*e}")
            a(f"ds_write_b128 v7, v[{s}:{s+3}] offset:{1024*n}")
        a("s_waitcnt lgkmcnt(0)\ns_barrier")

    def g1_x_load(self):
        a = self.a
        a(f"""
        s_lshl_b32 s60, s74, 2
        s_add_u32 s60, s60, {sWV}
        s_lshl_b32 s60, s60, 15
        s_add_u32 s60, s60, {WS_X1}
        v_lshlrev_b32 v4, 4, v1
        """)
        for k in range(16):
            for h in range(2):
                a(f"buffer_load_dwordx4 v[{64+8*k+4*h}:{67+8*k+4*h}], v4, {WS}, s60 offen offset:{(2*k+h)%4*1024}{self.sc}")
            if k % 2 == 1 and k < 15: a("s_add_u32 s60, s60, 4096")

    def g1_main(self, later):
        a = self.a
        for r in range(12, 16): a(f"v_mov_b32 v{r}, 0x3f803f80")
        NR = 8
        Wr = lambda n: 16 + 4 * (n % NR)
        def rd(n):
            if n < 112:
                k, ft = divmod(n, 7)
                b = "v10" if k < 8 else "v11"
                o = (k % 8) * 7168 + 32 * ft
                a(f"ds_read_b64_tr_b16 v[{Wr(n)}:{Wr(n)+1}], {b} offset:{o}\nds_read_b64_tr_b16 v[{Wr(n)+2}:{Wr(n)+3}], {b} offset:{o+3584}")
        D = 6
        for n in range(D): rd(n)
        for k in range(16):
            x = 64 + 8 * k
            a(f"s_waitcnt vmcnt({later + 30 - 2*k})")
            a(f"v_swap_b32 v{x+2}, v{x+4}\nv_swap_b32 v{x+3}, v{x+5}")
            for ft in range(7):
                n = 7 * k + ft
                rd(n + D)
                a(f"s_waitcnt lgkmcnt({2*min(D, 111-n)})")
                for t in range(2):
                    d = 192 + 8 * ft + 4 * t
                    c = "0" if k == 0 else f"v[{d}:{d+3}]"
                    a(f"v_mfma_f32_16x16x32_bf16 v[{d}:{d+3}], v[{Wr(n)}:{Wr(n)+3}], v[{x+4*t}:{x+4*t+3}], {c}")
                if ft in (2, 4):
                    t = (ft - 2) // 2
                    for j, A in ((0, "v[12:15]"), (1, f"v[{x+4*t}:{x+4*t+3}]")):
                        d = 48 + 8 * t + 4 * j
                        c = "0" if k == 0 else f"v[{d}:{d+3}]"
                        a(f"v_mfma_f32_16x16x32_bf16 v[{d}:{d+3}], {A}, v[{x+4*t}:{x+4*t+3}], {c}")

    def g1_epilogue(self, tb):
        a = self.a
        U = tb + 4096
        P = lambda r: f"v[{r}:{r+1}]"
        a("v_lshlrev_b32 v4, 4, v3")
        for ft in range(7):
            a(f"ds_read_b128 v[{64+8*ft}:{67+8*ft}], v4 offset:{U + 64*ft}\nds_read_b128 v[{68+8*ft}:{71+8*ft}], v4 offset:{U + 512 + 64*ft}")
        a("""
        v_lshrrev_b32 v5, 2, v2
        v_lshl_add_u32 v5, v5, 4, v2
        v_lshlrev_b32 v5, 2, v5
        v_and_b32 v6, 3, v1
        v_cmp_eq_u32 s[60:61], 1, v6
        v_cmp_eq_u32 s[62:63], 2, v6
        v_cmp_eq_u32 s[64:65], 3, v6
        """)
        for t in range(2):
            g = 52 + 8 * t
            a(f"v_cndmask_b32 v{g}, v{g}, v{g+1}, s[60:61]\nv_cndmask_b32 v{g}, v{g}, v{g+2}, s[62:63]\nv_cndmask_b32 v{g}, v{g}, v{g+3}, s[64:65]")
            a(f"ds_bpermute_b32 v{g}, v5, v{g}")
        a("s_waitcnt lgkmcnt(0)")
        for t in range(2):
            sm, g, o = 48 + 8 * t, 52 + 8 * t, 16 + 4 * t
            a(f"""
            v_mul_f32 v{sm}, 0x3b000000, v{sm}
            v_mul_f32 v{sm+1}, v{sm}, v{sm}
            v_mov_b32 v{sm+2}, 0x3b000000
            v_fma_f32 v{g}, v{g}, v{sm+2}, -v{sm+1}
            v_max_f32 v{g}, 0, v{g}
            v_add_f32 v{g}, 0x3727c5ac, v{g}
            v_rsq_f32 v{o}, v{g}
            v_mul_f32 v{o+1}, v{sm}, v{o}
            v_sub_f32 v{o+1}, 0, v{o+1}
            """)
        a(f"""
        v_mov_b32 v24, {NLOG2E}
        v_mov_b32 v26, 1.0
        s_lshl_b32 s60, s74, 1
        s_lshr_b32 s61, {sWV}, 1
        s_add_u32 s60, s60, s61
        s_mul_i32 s60, s60, 56
        s_lshr_b32 s61, s75, 1
        s_mul_i32 s61, s61, 7
        s_add_u32 s60, s60, s61
        s_lshl_b32 s60, s60, 12
        s_and_b32 s61, {sWV}, 1
        s_lshl_b32 s61, s61, 11
        s_add_u32 s60, s60, s61
        s_add_u32 s60, s60, {WS_H}
        s_and_b32 s61, s75, 1
        s_mul_i32 s62, s61, {3*4096}
        s_add_u32 s62, s62, s60
        s_lshl_b32 s61, s61, 9
        s_add_u32 s61, s61, s60
        s_add_u32 s61, s61, {6*4096}
        v_lshlrev_b32 v4, 4, v1
        v_and_b32 v5, 1, v3
        v_lshlrev_b32 v5, 10, v5
        v_lshl_add_u32 v5, v2, 4, v5
        v_lshrrev_b32 v6, 1, v3
        v_lshl_add_u32 v5, v6, 8, v5
        """)
        for ft in range(7):
            if ft == 3: a.region("g1e1")
            for t in range(2):
                d, o = 192 + 8 * ft + 4 * t, 16 + 4 * t
                u1, u2 = 64 + 8 * ft, 68 + 8 * ft
                w = 28 + 8 * t
                dst = 128 + 8 * (ft // 2) + 4 * t + 2 * (ft % 2) if ft < 6 else 152 + 2 * t
                for h in range(2): a(f"v_pk_fma_f32 {P(w+2*h)}, {P(u1+2*h)}, {P(o)}, {P(u2+2*h)} op_sel:[0,1,0] op_sel_hi:[1,1,1]")
                for h in range(2): a(f"v_pk_fma_f32 {P(d+2*h)}, {P(d+2*h)}, {P(o)}, {P(w+2*h)} op_sel_hi:[1,0,1]")
                for h in range(2): a(f"v_pk_mul_f32 {P(w+2*h)}, {P(d+2*h)}, {P(24)} op_sel_hi:[1,0]")
                for r in range(4): a(f"v_exp_f32 v{w+r}, v{w+r}")
                for h in range(2): a(f"v_pk_add_f32 {P(w+2*h)}, {P(w+2*h)}, {P(26)} op_sel_hi:[1,0]")
                for r in range(4): a(f"v_rcp_f32 v{w+r}, v{w+r}")
                for h in range(2): a(f"v_pk_mul_f32 {P(d+2*h)}, {P(d+2*h)}, {P(w+2*h)}")
                for h in range(2): a(f"v_cvt_pk_bf16_f32 v{dst+h}, v{d+2*h}, v{d+2*h+1}")
                if ft % 2 == 1:
                    b = dst - 2
                    a(f"buffer_store_dwordx4 v[{b}:{b+3}], v4, {WS}, s62 offen offset:{1024*t}{self.sc}")
                elif ft == 6 and t == 1:
                    a("v_permlane16_swap_b32 v152, v154\nv_permlane16_swap_b32 v153, v155")
                    a(f"buffer_store_dwordx4 v[152:155], v5, {WS}, s61 offen{self.sc}")
            if ft in (1, 3): a("s_add_u32 s62, s62, 4096")

    def g2_ids(self):
        self.a(f"""
        s_lshr_b32 s76, {sM}, 3
        s_lshl_b32 s60, {sX}, 2
        s_add_u32 s76, s76, s60
        s_and_b32 s77, {sM}, 7
        """)

    def g2_w2_load(self, k0=0, k1=14):
        a = self.a
        a(f"""
        s_mul_i32 s60, s77, 56
        s_mul_i32 s61, {sWV}, 14
        s_add_u32 s60, s60, s61
        s_add_u32 s60, s60, {k0}
        s_lshl_b32 s60, s60, 12
        s_add_u32 s60, s60, {WS_W2P}
        v_lshlrev_b32 v4, 4, v1
        """)
        for k in range(k0, k1):
            for dt in range(4):
                a(f"buffer_load_dwordx4 a[{16*k+4*dt}:{16*k+4*dt+3}], v4, {WS}, s60 offen offset:{1024*dt}{self.sc}")
            if k < k1 - 1: a("s_add_u32 s60, s60, 4096")

    def g2_w2_addr(self, k0):
        self.a(f"""
        s_mul_i32 s79, s77, 56
        s_mul_i32 s61, {sWV}, 14
        s_add_u32 s79, s79, s61
        s_lshl_b32 s79, s79, 12
        s_add_u32 s79, s79, {WS_W2P + 4096*k0}
        v_lshlrev_b32 v9, 4, v1
        """)

    def g2_w2_one(self, i, v="v9"):
        self.a(f"buffer_load_dwordx4 a[{4*i}:{4*i+3}], {v}, {WS}, s79 offen offset:{1024*(i%4)}{self.sc}")
        if i % 4 == 3: self.a("s_add_u32 s79, s79, 4096")

    def g2_epi_load(self):
        a = self.a
        a(f"""
        s_lshl_b32 s60, s77, 8
        s_add_u32 s60, s60, {WS_MOD + 5*2048}
        v_lshl_add_u32 v5, v1, 2, s60
        s_mov_b32 s61, 12288
        s_mov_b32 s62, {2*12288}
        s_mov_b32 s63, {3*12288}
        buffer_load_dword v16, v5, {WS}, 0 offen{self.sc}
        buffer_load_dword v17, v5, {WS}, s61 offen{self.sc}
        buffer_load_dword v18, v5, {WS}, s62 offen{self.sc}
        buffer_load_dword v19, v5, {WS}, s63 offen{self.sc}
        s_lshl_b32 s60, s76, 1
        s_lshr_b32 s61, {sWV}, 1
        s_add_u32 s60, s60, s61
        s_lshl_b32 s60, s60, 15
        s_lshl_b32 s61, s77, 12
        s_add_u32 s60, s60, s61
        s_and_b32 s61, {sWV}, 1
        s_lshl_b32 s61, s61, 3
        s_add_u32 s60, s60, s61
        s_add_u32 s60, s60, {WS_X1}
        v_and_b32 v2, 15, v1
        v_lshrrev_b32 v3, 4, v1
        v_lshlrev_b32 v5, 9, v3
        v_lshl_add_u32 v5, v2, 4, v5
        """)
        for p in range(2):
            for h in range(2):
                a(f"buffer_load_dwordx2 v[{20+4*p+2*h}:{21+4*p+2*h}], v5, {WS}, s60 offen offset:{2048*p + 256*h}{self.sc}")

    HR = 10
    def g2_h_issue(self, k):
        a = self.a
        r = 32 + 16 * (k % self.HR)
        for st in range(4):
            if k % 7 == 6:
                a(f"buffer_load_dwordx2 v[{r+4*st}:{r+4*st+1}], v7, {WS}, s78 offen offset:{1024*st}{self.sc}")
                a(f"buffer_load_dwordx2 v[{r+4*st+2}:{r+4*st+3}], v7, {WS}, s78 offen offset:{1024*st+512}{self.sc}")
            else:
                a(f"buffer_load_dwordx4 v[{r+4*st}:{r+4*st+3}], v6, {WS}, s78 offen offset:{1024*st}{self.sc}")
        a("s_add_u32 s78, s78, 4096")

    def g2_main(self):
        a = self.a
        a(f"""
        s_mul_i32 s78, s76, 56
        s_mul_i32 s61, {sWV}, 14
        s_add_u32 s78, s78, s61
        s_lshl_b32 s78, s78, 12
        s_add_u32 s78, s78, {WS_H}
        v_lshlrev_b32 v6, 4, v1
        v_lshlrev_b32 v7, 3, v1
        """)
        cnt = lambda k: 8 if k % 7 == 6 else 4
        for k in range(self.HR): self.g2_h_issue(k)
        issued = self.HR
        for k in range(14):
            a(f"s_waitcnt vmcnt({sum(cnt(j) for j in range(k+1, issued))})")
            r = 32 + 16 * (k % self.HR)
            for st in range(4):
                for dt in range(4):
                    d = 192 + 16 * st + 4 * dt
                    c = "0" if k == 0 else f"v[{d}:{d+3}]"
                    a(f"v_mfma_f32_16x16x32_bf16 v[{d}:{d+3}], a[{16*k+4*dt}:{16*k+4*dt+3}], v[{r+4*st}:{r+4*st+3}], {c}")
            if issued < 14:
                self.g2_h_issue(issued); issued += 1

    def g2_epilogue(self, rb, tb):
        a = self.a
        P = lambda r: f"v[{r}:{r+1}]"
        a(f"""
        v_add_f32 v16, v16, v17
        v_add_f32 v18, v18, v19
        v_add_f32 v16, v16, v18
        v_cvt_pk_bf16_f32 v16, v16, v16
        v_and_b32 v16, 0xffff0000, v16
        s_lshl_b32 s60, {sWV}, 8
        s_add_u32 s60, s60, {tb}
        v_lshl_add_u32 v5, v1, 2, s60
        ds_write_b32 v5, v16
        v_lshl_add_u32 v5, v3, 5, s60
        s_lshl_b32 s60, {sWV}, 12
        s_add_u32 s60, s60, {rb}
        v_lshl_add_u32 v4, v1, 4, s60
        s_lshl_b32 s60, {sWV}, 14
        s_add_u32 s60, s60, {rb}
        v_lshl_add_u32 v6, v1, 4, s60
        """)
        for st in range(4):
            for dt in range(4):
                d = 192 + 16 * st + 4 * dt
                a(f"ds_write_b128 v4, v[{d}:{d+3}] offset:{16384*st + 1024*dt}")
        for p in range(2):
            for h in range(2):
                a(f"ds_read_b128 v[{32+8*p+4*h}:{35+8*p+4*h}], v5 offset:{128*p + 16*h}")
        a(f"""
        s_lshl_b32 s60, s76, 16
        s_lshl_b32 s61, {sWV}, 14
        s_add_u32 s60, s60, s61
        s_lshl_b32 s61, s77, 7
        s_add_u32 s60, s60, s61
        v_lshlrev_b32 v7, 10, v2
        v_lshl_add_u32 v7, v3, 4, v7
        s_waitcnt lgkmcnt(0)
        s_barrier
        """)
        for dt in range(4):
            for src in range(4):
                r = 64 + 16 * dt + 4 * src
                a(f"ds_read_b128 v[{r}:{r+3}], v6 offset:{4096*src + 1024*dt}")
        for dt in range(4):
            r = 64 + 16 * dt
            a(f"s_waitcnt lgkmcnt({12 - 4*dt})")
            for h in range(2): a(f"v_pk_add_f32 {P(r+2*h)}, {P(r+2*h)}, {P(r+4+2*h)}\nv_pk_add_f32 {P(r+8+2*h)}, {P(r+8+2*h)}, {P(r+12+2*h)}")
            x = 20 + 2 * dt
            a(f"""
            v_lshlrev_b32 v48, 16, v{x}
            v_and_b32 v49, 0xffff0000, v{x}
            v_lshlrev_b32 v50, 16, v{x+1}
            v_and_b32 v51, 0xffff0000, v{x+1}
            """)
            for h in range(2): a(f"v_pk_add_f32 {P(r+2*h)}, {P(r+2*h)}, {P(r+8+2*h)}")
            for h in range(2): a(f"v_pk_fma_f32 {P(r+2*h)}, {P(r+2*h)}, {P(32+4*dt+2*h)}, {P(48+2*h)}")
            for h in range(2): a(f"v_cvt_pk_bf16_f32 v{52+2*dt+h}, v{r+2*h}, v{r+2*h+1}")
            if dt % 2 == 1:
                b = 52 + 2 * (dt - 1)
                a(f"buffer_store_dwordx4 v[{b}:{b+3}], v7, {OUT}, s60 offen offset:{32*(dt-1)}")

def build_split(diag=False):
    g = G(sc=False, diag=diag)
    a = g.a
    S = g.stamp
    hdr = [f"; @launch kernel=k1_kernel grid=(256,1,1) block=(256,1,1) lds=4096"]
    a.raw('.amdgcn_target "amdgcn-amd-amdhsa--gfx950"\n.text')
    g.entry("k1_kernel", [0, 1, 2, 3, 7, 8, 9, 11])
    g.p_loads(); S()
    g.p_kv(0); S()
    g.p_q(2); S()
    g.p_stats(4); S()
    g.p_gemv(5, 0); S()
    g.p_w2(0)
    g.exit("k1_kernel")
    hdr.append("; @launch kernel=k2_kernel grid=(256,1,1) block=(256,1,1) lds=49152")
    g.entry("k2_kernel", [4, 5, 11])
    g.c_ids()
    g.c_filter_load(16); S()
    g.c_filter_prep(16, 2048, 0); S()
    g.c_u_load()
    g.c_epi_load(); S()
    a("s_waitcnt vmcnt(14)"); S()
    g.c_main(14); S()
    g.c_epilogue(2048 + 4 * G.FSZ)
    g.exit("k2_kernel")
    hdr.append("; @launch kernel=k3_kernel grid=(256,1,1) block=(256,1,1) lds=163840")
    g.entry("k3_kernel", [6, 11])
    g.g1_ids()
    g.g1_w1_load(16)
    g.g1_mod_load(32); S()
    a("s_waitcnt vmcnt(0)"); S()
    g.g1_x_load(); S()
    g.g1_prep(32, 0, 32); S()
    g.g1_main(0); S()
    g.g1_epilogue(0)
    g.exit("k3_kernel")
    hdr.append("; @launch kernel=k4_kernel grid=(256,1,1) block=(256,1,1) lds=66560")
    g.entry("k4_kernel", [10, 11])
    g.g2_ids()
    g.g2_epi_load()
    g.g2_w2_load(0, 13)
    a("s_waitcnt vmcnt(40)")
    g.g2_w2_load(13, 14); S()
    a("s_waitcnt vmcnt(16)"); S()
    g.g2_main(); S()
    g.g2_epilogue(0, 65536)
    g.exit("k4_kernel")
    a.raw('.section .rodata,"a"')
    a.raw(desc("k1_kernel", 160, 160))
    a.raw(desc("k2_kernel", 512, 256))
    a.raw(desc("k3_kernel", 256, 256))
    a.raw(desc("k4_kernel", 512, 256))
    return "\n".join(hdr) + "\n" + a.text()

def build_fused(diag=False):
    g = G(sc=True, diag=diag)
    a = g.a
    S = g.stamp
    kn = NAME + "_kernel"
    hdr = ["; @launch grid=(256,1,1) block=(256,1,1) lds=163840"]
    a.raw('.amdgcn_target "amdgcn-amd-amdhsa--gfx950"\n.text')
    TB, FB = 0, 5376
    XI = FB + 4 * G.FSZ
    g.entry(kn, list(range(13)))
    g.nonce_start()
    g.p_loads()
    g.c_ids(); g.g1_ids(); g.g2_ids()
    g.c_filter_load(160); S()
    g.p_kv(8)
    g.p_q(8 + 2)
    g.p_stats(8 + 4)
    g.p_gemv(8 + 5, XI)
    g.p_w2(0); S()
    g.nonce_get()
    g.signal(0, 8); S()
    g.g1_w1_load(100)
    g.c_filter_prep(160, FB, 63); S()
    g.wait_all(0); S()
    g.c_u_load()
    g.c_epi_load()
    NW, K0 = 7, 12
    def hook(n):
        if n == K0 - 1:
            a("s_waitcnt vmcnt(0)")
            g.g2_w2_addr(0)
        if K0 <= n < K0 + 8 * NW and (n - K0) % 2 == 0:
            g.g2_w2_one((n - K0) // 2)
    g.c_main(14, hook); S()
    g.c_epilogue(XI, wait=False)
    g.signal(1, 8); S()
    g.g1_mod_load(32)
    for i in range(4 * NW, 56): g.g2_w2_one(i, "v9")
    g.g1_prep(32, TB, 56 - 4 * NW); S()
    g.wait_all(1); S()
    g.g1_x_load()
    g.g1_main(0); S()
    g.g1_epilogue(TB)
    g.signal(2, 1); S()
    g.g2_epi_load()
    g.wait_group16(2); S()
    g.g2_main(); S()
    g.g2_epilogue(G.WB, 0)
    g.exit(kn)
    a.raw('.section .rodata,"a"')
    a.raw(desc(kn, 512, 256))
    return "\n".join(hdr) + "\n" + a.text()

if __name__ == "__main__":
    mode = sys.argv[2] if len(sys.argv) > 2 else "split"
    diag = sys.argv[3] if len(sys.argv) > 3 else False
    open(sys.argv[1], "w").write(globals()["build_" + mode](diag))
```

```python
import sys
from asmlib import Asm, desc

NAME = "adaLN_cond__ssm_conv_h3__dense_activation_silu__prompt"
MB = 1 << 20
WS_KVT, WS_QT, WS_X1, WS_H, WS_W2P = 0, 2 * MB, 4 * MB, 6 * MB, 14 * MB
WS_STAT, WS_MOD, WS_FLAG = 16 * MB, 16 * MB + 65536, 17 * MB
WS_SIZE = 32 * MB
LOG2E = 0x3fb8aa3b
NLOG2E = 0xbfb8aa3b

Q, K, V, SK, FK, SD, W1, W2, C, WM, OUT, WS, DBG = [f"s[{8+4*i}:{11+4*i}]" for i in range(13)]
SPIN = 1 << 20
SRD_INFO = [
    (8, 0, 2 * MB), (12, 8, 2 * MB), (16, 16, 2 * MB), (20, 24, 4096), (24, 32, 2 * MB), (28, 40, 1024),
    (32, 56, 512 * 1792 * 2), (36, 64, 512 * 1792 * 2), (40, 72, 1024), (44, 80, 512 * 3072 * 2),
    (48, 88, 2 * MB), (52, 104, WS_SIZE), (56, 96, 256)]
sX, sM, sWV = "s3", "s4", "s5"

WS_DIAG = 24 * MB
class G:
    def __init__(self, sc, diag=False):
        self.a = Asm()
        self.sc = " sc1" if sc else ""
        self.diag = diag
        self.nst = 0
        self.kidx = 0

    def stamp(self, tag="m"):
        import os
        if not self.diag or (tag not in os.environ.get("TAGS", "m") and tag != "*"): return
        assert self.nst < 17
        op = "s_memtime" if self.diag == "cyc" else "s_memrealtime"
        self.a(f"{op} s[98:99]\ns_waitcnt lgkmcnt(0)\ns_mov_b32 s{82+self.nst if self.nst < 15 else 85+self.nst}, s98")
        self.nst += 1

    def flush_stamps(self):
        if not self.diag: return
        a = self.a
        a(f"s_waitcnt vmcnt(0)")
        self.stamp("*")
        if self.diag == "dbg":
            reg = lambda i: 82 + i if i < 15 else 85 + i
            a(f"s_cmp_lg_u32 s2, 100\ns_cbranch_scc1 L_nodbg\ns_cmp_lg_u32 {sWV}, 0\ns_cbranch_scc1 L_nodbg\nv_mov_b32 v4, 0")
            sel = list(range(self.nst))[-14:]
            for j, i in enumerate(sel):
                a(f"s_sub_u32 s60, s{reg(i)}, s82\nv_mov_b32 v5, s60\nbuffer_store_dword v5, v4, {DBG}, 0 offen offset:{8+4*j}")
            a("L_nodbg:")
            self.nst = 0
            return
        a(f"s_lshl_b32 s60, s2, 2\ns_add_u32 s60, s60, {sWV}\ns_lshl_b32 s60, s60, 7\ns_add_u32 s60, s60, {WS_DIAG + self.kidx*131072}\nv_mov_b32 v4, s60")
        for i in range(self.nst): a(f"v_mov_b32 v5, s{82+i if i < 15 else 85+i}\nbuffer_store_dword v5, v4, {WS}, 0 offen offset:{4*i}")
        self.nst = 0; self.kidx += 1

    def entry(self, name, srds, pre=None):
        a = self.a
        a.raw(f".globl {name}\n.p2align 8\n.type {name},@function")
        a.label(name)
        a.fence()
        a(f"s_cmp_ge_u32 s2, 256\ns_cbranch_scc1 L_end_{name}")
        self.stamp("*")
        for i in srds:
            s, off, n = SRD_INFO[i]
            a(f"s_load_dwordx2 s[{s}:{s+1}], s[0:1], {off}")
        if pre: pre()
        a("v_lshrrev_b32 v2, 6, v0\nv_and_b32 v1, 63, v0")
        for i in srds:
            s, off, n = SRD_INFO[i]
            a(f"s_mov_b32 s{s+2}, {n}\ns_mov_b32 s{s+3}, 0x00020000")
        a(f"v_readfirstlane_b32 {sWV}, v2")
        a(f"s_and_b32 {sX}, s2, 7\ns_lshr_b32 {sM}, s2, 3")
        a("s_waitcnt lgkmcnt(0)")
        self.stamp("s")

    def exit(self, name):
        self.flush_stamps()
        self.a.label(f"L_end_{name}")
        self.a("s_endpgm")

    def nonce_start(self):
        a = self.a
        a(f"""
        s_or_b32 s60, s2, {sWV}
        s_cmp_lg_u32 s60, 0
        s_cbranch_scc1 L_nonce_skip
        s_memrealtime s[60:61]
        s_waitcnt lgkmcnt(0)
        s_or_b32 s61, s61, 0x40000000
        v_mov_b32 v4, 0
        v_mov_b32 v6, s60
        v_mov_b32 v7, s61
        s_mov_b64 s[62:63], exec
        s_mov_b64 exec, 1
        buffer_store_dwordx2 v[6:7], v4, {DBG}, 0 offen sc1
        s_mov_b64 exec, s[62:63]
        L_nonce_skip:
        """)

    def nonce_get(self):
        a = self.a
        a(f"""
        v_mov_b32 v4, 0
        s_mov_b32 s62, 0
        L_nonce_poll:
        buffer_load_dwordx2 v[6:7], v4, {DBG}, 0 offen sc1
        s_add_u32 s62, s62, 1
        s_waitcnt vmcnt(0)
        v_readfirstlane_b32 s80, v6
        v_readfirstlane_b32 s81, v7
        s_cmp_gt_u32 s62, {SPIN}
        s_cbranch_scc1 L_nonce_ok
        s_cmp_eq_u32 s81, 0
        s_cbranch_scc1 L_nonce_poll
        L_nonce_ok:
        """)

    def signal(self, ph, replicas):
        a = self.a
        a(f"""
        s_waitcnt vmcnt(0)
        s_barrier
        s_cmp_lg_u32 {sWV}, 0
        s_cbranch_scc1 L_sig{ph}_skip
        s_lshl_b32 s60, s2, 3
        s_add_u32 s60, s60, {WS_FLAG + ph*65536}
        v_lshl_add_u32 v4, v1, 11, s60
        v_mov_b32 v6, s80
        v_mov_b32 v7, s81
        s_mov_b64 s[62:63], exec
        s_mov_b64 exec, {(1 << replicas) - 1}
        buffer_store_dwordx2 v[6:7], v4, {WS}, 0 offen sc1
        s_mov_b64 exec, s[62:63]
        L_sig{ph}_skip:
        """)

    def wait_all(self, ph):
        a = self.a
        a(f"""
        s_lshl_b32 s60, {sX}, 11
        s_add_u32 s60, s60, {WS_FLAG + ph*65536}
        v_lshl_add_u32 v4, v0, 3, s60
        """)
        self._poll(ph)

    def wait_group16(self, ph):
        a = self.a
        a(f"""
        s_lshr_b32 s60, {sM}, 4
        s_lshl_b32 s60, s60, 7
        s_add_u32 s60, s60, {sX}
        s_lshl_b32 s60, s60, 3
        s_add_u32 s60, s60, {WS_FLAG + ph*65536}
        v_and_b32 v4, 15, v1
        v_lshl_add_u32 v4, v4, 6, s60
        """)
        self._poll(ph)

    def _poll(self, ph):
        a = self.a
        a(f"""
        s_mov_b32 s62, 0
        L_poll{ph}:
        buffer_load_dwordx2 v[6:7], v4, {WS}, 0 offen sc1
        s_add_u32 s62, s62, 1
        s_waitcnt vmcnt(0)
        v_cmp_ne_u64 vcc, s[80:81], v[6:7]
        s_cmp_gt_u32 s62, {SPIN}
        s_cbranch_scc1 L_poll{ph}_ok
        s_cbranch_vccz L_poll{ph}_ok
        s_sleep 1
        s_branch L_poll{ph}
        L_poll{ph}_ok:
        s_barrier
        """)

    def p_loads(self):
        a = self.a
        a(f"""
        s_lshl_b32 s60, {sM}, 16
        s_lshl_b32 s61, {sX}, 7
        s_add_u32 s60, s60, s61
        s_lshl_b32 s61, {sWV}, 5
        s_add_u32 s60, s60, s61
        v_lshrrev_b32 v8, 3, v1
        v_and_b32 v9, 7, v1
        v_lshlrev_b32 v2, 13, v8
        v_lshl_add_u32 v2, v9, 2, v2
        v_add_u32 v2, s60, v2
        v_subrev_u32 v3, 3072, v2
        v_add_u32 v4, 4096, v2
        """)
        for j in range(11):
            base, off = ("v3", j * 1024) if j < 3 else ("v2", (j - 3) * 1024) if j < 7 else ("v4", (j - 7) * 1024)
            a(f"buffer_load_dword v{10+j}, {base}, {K}, 0 offen offset:{off}")
        for j in range(8):
            base, off = ("v2", j * 1024) if j < 4 else ("v4", (j - 4) * 1024)
            a(f"buffer_load_dword v{21+j}, {base}, {V}, 0 offen offset:{off}")
        a(f"""
        s_lshl_b32 s62, {sX}, 9
        s_lshl_b32 s63, {sWV}, 7
        s_add_u32 s62, s62, s63
        v_lshl_add_u32 v37, v9, 4, s62
        buffer_load_dwordx4 v[38:41], v37, {SK}, 0 offen
        """)
        for j in range(8):
            base, off = ("v2", j * 1024) if j < 4 else ("v4", (j - 4) * 1024)
            a(f"buffer_load_dword v{29+j}, {base}, {Q}, 0 offen offset:{off}")
        a(f"""
        s_lshl_b32 s60, s2, 13
        s_lshl_b32 s61, {sWV}, 11
        s_add_u32 s60, s60, s61
        v_lshrrev_b32 v5, 5, v1
        v_lshlrev_b32 v5, 10, v5
        v_and_b32 v42, 31, v1
        v_lshl_add_u32 v5, v42, 4, v5
        v_add_u32 v5, s60, v5
        buffer_load_dwordx4 v[44:47], v5, {Q}, 0 offen
        buffer_load_dwordx4 v[48:51], v5, {Q}, 0 offen offset:512
        """)
        a(f"""
        s_and_b32 s60, s2, 3
        s_lshl_b32 s60, s60, 7
        s_lshl_b32 s61, {sWV}, 5
        s_add_u32 s60, s60, s61
        v_add_u32 v42, s60, v8
        v_lshlrev_b32 v43, 1, v42
        s_movk_i32 s61, 6144
        v_mul_lo_u32 v6, v42, s61
        v_lshl_add_u32 v6, v9, 4, v6
        s_lshr_b32 s60, s2, 2
        s_lshl_b32 s60, s60, 7
        s_cmp_ge_u32 s2, 192
        s_cselect_b32 s60, 0x40000000, s60
        v_add_u32 v6, s60, v6
        s_mov_b32 s61, {8*6144}
        s_mov_b32 s62, {16*6144}
        s_mov_b32 s63, {24*6144}
        buffer_load_ushort v68, v43, {C}, 0 offen
        buffer_load_ushort v69, v43, {C}, 0 offen offset:16
        buffer_load_ushort v70, v43, {C}, 0 offen offset:32
        buffer_load_ushort v71, v43, {C}, 0 offen offset:48
        buffer_load_dwordx4 v[52:55], v6, {WM}, 0 offen
        buffer_load_dwordx4 v[56:59], v6, {WM}, s61 offen
        buffer_load_dwordx4 v[60:63], v6, {WM}, s62 offen
        buffer_load_dwordx4 v[64:67], v6, {WM}, s63 offen
        """)
        a(f"""
        s_lshr_b32 s60, {sWV}, 1
        s_lshl_b32 s61, s2, 1
        s_add_u32 s60, s60, s61
        s_lshr_b32 s64, s60, 3
        s_and_b32 s65, s60, 7
        s_mul_i32 s61, s64, 37
        s_lshr_b32 s61, s61, 8
        s_mul_i32 s62, s61, 7
        s_sub_u32 s62, s64, s62
        s_mul_i32 s61, s61, 224
        s_lshl_b32 s63, s62, 5
        s_add_u32 s66, s63, 16
        s_cmp_ge_u32 s62, 3
        s_cselect_b32 s63, s66, s63
        s_movk_i32 s66, {16*1024}
        s_cmp_eq_u32 s62, 6
        s_cselect_b32 s63, 96, s63
        s_cselect_b32 s66, {112*1024}, s66
        s_add_u32 s61, s61, s63
        s_and_b32 s62, {sWV}, 1
        s_lshl_b32 s62, s62, 3
        s_add_u32 s61, s61, s62
        s_lshl_b32 s61, s61, 10
        s_lshl_b32 s62, s65, 7
        s_add_u32 s61, s61, s62
        s_cmp_ge_u32 s60, 448
        s_cselect_b32 s61, 0x40000000, s61
        v_lshrrev_b32 v42, 5, v1
        v_lshlrev_b32 v42, 12, v42
        v_and_b32 v43, 31, v1
        v_lshl_add_u32 v7, v43, 2, v42
        v_add_u32 v7, s61, v7
        """)
        for e in range(8):
            so = "0" if e < 4 else "s66"
            a(f"buffer_load_dword v{72+e}, v7, {W2}, {so} offen offset:{(e&3)*1024}")

    def p_kv(self, later):
        a = self.a
        a(f"s_waitcnt vmcnt({later + 8 + 2 + 8 + 8})")
        for j in range(11):
            a(f"v_lshlrev_b32 v{80+2*j}, 16, v{10+j}\nv_and_b32 v{81+2*j}, 0xffff0000, v{10+j}")
        a("""
        v_lshlrev_b32 v102, 16, v38
        v_lshlrev_b32 v103, 16, v40
        v_and_b32 v104, 0xffff0000, v38
        v_and_b32 v105, 0xffff0000, v40
        v_lshlrev_b32 v106, 16, v39
        v_lshlrev_b32 v107, 16, v41
        v_and_b32 v108, 0xffff0000, v39
        v_and_b32 v109, 0xffff0000, v41
        """)
        for i in range(8):
            a(f"v_lshlrev_b32 v{126+2*i}, 16, v{21+i}\nv_and_b32 v{127+2*i}, 0xffff0000, v{21+i}")
        P = lambda r: f"v[{r}:{r+1}]"
        for i in range(8): a(f"v_pk_mul_f32 {P(110+2*i)}, {P(80+2*i)}, {P(108)}")
        for i in range(8): a(f"v_pk_fma_f32 {P(110+2*i)}, {P(82+2*i)}, {P(106)}, {P(110+2*i)}")
        for i in range(8): a(f"v_pk_fma_f32 {P(110+2*i)}, {P(84+2*i)}, {P(104)}, {P(110+2*i)}")
        for i in range(8): a(f"v_pk_fma_f32 {P(110+2*i)}, {P(86+2*i)}, {P(102)}, {P(110+2*i)}")
        for i in range(8): a(f"v_pk_mul_f32 {P(110+2*i)}, {P(110+2*i)}, {P(126+2*i)}")
        for j in range(4):
            a(f"v_cvt_pk_bf16_f32 v{144+j}, v{110+2*(7-2*j)}, v{110+2*(6-2*j)}")
            a(f"v_cvt_pk_bf16_f32 v{148+j}, v{111+2*(7-2*j)}, v{111+2*(6-2*j)}")
        a(f"""
        s_lshl_b32 s60, {sX}, 18
        s_lshl_b32 s61, {sWV}, 16
        s_add_u32 s60, s60, s61
        s_lshl_b32 s61, {sM}, 7
        v_lshlrev_b32 v142, 13, v9
        v_add_u32 v142, s60, v142
        v_lshl_add_u32 v143, v8, 4, s61
        v_add_u32 v152, v142, v143
        v_sub_u32 v142, v142, v143
        v_add_u32 v142, {WS_KVT + 4080}, v142
        v_add_u32 v152, {WS_QT}, v152
        s_movk_i32 s67, 4096
        buffer_store_dwordx4 v[144:147], v142, {WS}, 0 offen{self.sc}
        buffer_store_dwordx4 v[148:151], v142, {WS}, s67 offen{self.sc}
        """)

    def p_q(self, later):
        a = self.a
        a(f"s_waitcnt vmcnt({later + 2 + 8 + 8})")
        a("s_mov_b32 s60, 0x05040100\ns_mov_b32 s61, 0x07060302")
        for j in range(4):
            a(f"v_perm_b32 v{80+j}, v{30+2*j}, v{29+2*j}, s60")
            a(f"v_perm_b32 v{84+j}, v{30+2*j}, v{29+2*j}, s61")
        a(f"""
        buffer_store_dwordx4 v[80:83], v152, {WS}, 0 offen{self.sc}
        buffer_store_dwordx4 v[84:87], v152, {WS}, s67 offen{self.sc}
        """)

    def reduce32(self, r, t):
        a = self.a
        for n in (8, 4, 2, 1):
            a(f"v_add_f32_dpp v{r}, v{r}, v{r} row_ror:{n} row_mask:0xf bank_mask:0xf")
        a(f"v_mov_b32 v{t}, v{r}\nv_permlane16_swap_b32 v{r}, v{t}\nv_add_f32 v{r}, v{r}, v{t}")

    def p_stats(self, later):
        a = self.a
        a(f"s_waitcnt vmcnt({later + 8 + 8})")
        P = lambda r: f"v[{r}:{r+1}]"
        for j in range(8):
            a(f"v_lshlrev_b32 v{90+2*j}, 16, v{44+j}\nv_and_b32 v{91+2*j}, 0xffff0000, v{44+j}")
        for j in range(4): a(f"v_pk_add_f32 {P(110+2*j)}, {P(90+4*j)}, {P(92+4*j)}")
        a(f"v_pk_add_f32 {P(110)}, {P(110)}, {P(112)}\nv_pk_add_f32 {P(114)}, {P(114)}, {P(116)}\nv_pk_add_f32 {P(110)}, {P(110)}, {P(114)}")
        a("v_add_f32 v110, v110, v111")
        self.reduce32(110, 111)
        a("v_mul_f32 v118, 0xbb000000, v110\nv_mov_b32 v119, v118")
        for j in range(8): a(f"v_pk_add_f32 {P(90+2*j)}, {P(90+2*j)}, {P(118)}")
        a(f"v_pk_mul_f32 {P(110)}, {P(90)}, {P(90)}\nv_pk_mul_f32 {P(112)}, {P(92)}, {P(92)}")
        for j in range(2, 8): a(f"v_pk_fma_f32 {P(110+2*(j&1))}, {P(90+2*j)}, {P(90+2*j)}, {P(110+2*(j&1))}")
        a(f"v_pk_add_f32 {P(110)}, {P(110)}, {P(112)}\nv_add_f32 v110, v110, v111")
        self.reduce32(110, 111)
        a(f"""
        v_mov_b32 v111, 0x3727c5ac
        v_fmac_f32 v111, 0x3b000000, v110
        v_rsq_f32 v121, v111
        s_lshl_b32 s60, s2, 5
        s_lshl_b32 s61, {sWV}, 3
        s_add_u32 s60, s60, s61
        s_add_u32 s60, s60, {WS_STAT}
        v_mul_f32 v120, v118, v121
        v_lshrrev_b32 v112, 5, v1
        v_lshl_add_u32 v112, v112, 2, s60
        v_and_b32 v113, 1, v1
        v_lshl_add_u32 v112, v113, 13, v112
        v_cmp_eq_u32 vcc, 1, v113
        v_cndmask_b32 v121, v121, v120, vcc
        v_and_b32 v113, 30, v1
        v_cmp_eq_u32 vcc, 0, v113
        s_and_saveexec_b64 s[62:63], vcc
        buffer_store_dword v121, v112, {WS}, 0 offen{self.sc}
        s_mov_b64 exec, s[62:63]
        """)

    def p_gemv(self, later, lds):
        a = self.a
        a(f"s_waitcnt vmcnt({later + 8})")
        P = lambda r: f"v[{r}:{r+1}]"
        for j in range(4): a(f"v_lshlrev_b32 v{68+j}, 16, v{68+j}")
        for j in range(4): a(f"v_mul_f32 v{90+j}, {NLOG2E}, v{68+j}")
        for j in range(4): a(f"v_exp_f32 v{90+j}, v{90+j}")
        for j in range(4): a(f"v_add_f32 v{90+j}, 1.0, v{90+j}")
        for j in range(4): a(f"v_rcp_f32 v{90+j}, v{90+j}")
        for j in range(4): a(f"v_mul_f32 v{90+j}, v{68+j}, v{90+j}")
        for j in range(4): a(f"v_cvt_pk_bf16_f32 v{90+j}, v{90+j}, v{90+j}")
        for j in range(4): a(f"v_and_b32 v{94+2*j}, 0xffff0000, v{90+j}\nv_and_b32 v{95+2*j}, 0xffff0000, v{90+j}")
        for j in range(4):
            for e in range(4):
                a(f"v_lshlrev_b32 v{110+2*e}, 16, v{52+4*j+e}\nv_and_b32 v{111+2*e}, 0xffff0000, v{52+4*j+e}")
            for e in range(4):
                if j == 0: a(f"v_pk_mul_f32 {P(120+2*e)}, {P(110+2*e)}, {P(94)}")
                else: a(f"v_pk_fma_f32 {P(120+2*e)}, {P(110+2*e)}, {P(94+2*j)}, {P(120+2*e)}")
        for e in range(8):
            a(f"v_add_f32_dpp v{120+e}, v{120+e}, v{120+e} row_ror:8 row_mask:0xf bank_mask:0xf")
        a(f"""
        v_lshrrev_b32 v110, 4, v0
        v_lshlrev_b32 v110, 8, v110
        v_lshl_add_u32 v110, v9, 5, v110
        ds_write_b128 v110, v[120:123] offset:{lds}
        ds_write_b128 v110, v[124:127] offset:{lds+16}
        s_waitcnt lgkmcnt(0)
        s_barrier
        s_cmp_lg_u32 {sWV}, 0
        s_cbranch_scc1 L_gemv_done
        v_lshlrev_b32 v110, 2, v1
        """)
        for r in range(16): a(f"ds_read_b32 v{112+r}, v110 offset:{lds + 256*r}")
        a("s_waitcnt lgkmcnt(0)")
        for st in (8, 4, 2, 1):
            for r in range(st): a(f"v_add_f32 v{112+r}, v{112+r}, v{112+r+st}")
        a(f"""
        s_and_b32 s60, s2, 3
        s_mul_i32 s60, s60, 12288
        s_lshr_b32 s61, s2, 2
        s_lshl_b32 s61, s61, 8
        s_add_u32 s60, s60, s61
        s_add_u32 s60, s60, {WS_MOD}
        s_cmp_ge_u32 s2, 192
        s_cselect_b32 s60, 0x40000000, s60
        v_add_u32 v110, s60, v110
        buffer_store_dword v112, v110, {WS}, 0 offen{self.sc}
        L_gemv_done:
        """)

    def p_w2(self, later):
        a = self.a
        a(f"s_waitcnt vmcnt({later})")
        a("s_mov_b32 s60, 0x05040100\ns_mov_b32 s61, 0x07060302")
        for j in range(4):
            a(f"v_perm_b32 v{132+j}, v{73+2*j}, v{72+2*j}, s60")
            a(f"v_perm_b32 v{136+j}, v{73+2*j}, v{72+2*j}, s61")
        a(f"""
        s_mul_i32 s60, s65, 56
        s_add_u32 s60, s60, s64
        s_lshl_b32 s60, s60, 12
        s_and_b32 s61, {sWV}, 1
        s_lshl_b32 s61, s61, 9
        s_add_u32 s60, s60, s61
        s_add_u32 s60, s60, {WS_W2P}
        s_cmp_ge_u32 s64, 56
        s_cselect_b32 s60, 0x40000000, s60
        v_lshrrev_b32 v140, 5, v1
        v_lshlrev_b32 v140, 8, v140
        v_bfe_u32 v141, v1, 4, 1
        v_lshl_add_u32 v140, v141, 11, v140
        v_bfe_u32 v141, v1, 1, 1
        v_lshl_add_u32 v140, v141, 10, v140
        v_bfe_u32 v141, v1, 2, 2
        v_lshl_add_u32 v140, v141, 6, v140
        v_and_b32 v141, 1, v1
        v_lshl_add_u32 v140, v141, 5, v140
        v_add_u32 v140, s60, v140
        buffer_store_dwordx4 v[132:135], v140, {WS}, 0 offen{self.sc}
        buffer_store_dwordx4 v[136:139], v140, {WS}, 0 offen offset:16{self.sc}
        """)

    FSZ = 8320
    def c_ids(self):
        self.a(f"""
        s_lshr_b32 s70, {sM}, 1
        s_lshl_b32 s60, {sX}, 4
        s_add_u32 s70, s70, s60
        s_and_b32 s69, {sM}, 1
        s_lshl_b32 s68, s70, 2
        s_add_u32 s68, s68, {sWV}
        s_mov_b32 s71, s69
        s_sub_u32 s72, 3, s69
        """)

    def c_filter_load(self, r0):
        a = self.a
        a(f"s_lshl_b32 s60, s68, 12\nv_lshl_add_u32 v4, v1, 4, s60\nv_add_u32 v5, 2, v4")
        for i in range(4): a(f"buffer_load_dwordx4 v[{r0+4*i}:{r0+4*i+3}], v4, {FK}, 0 offen offset:{1024*i}")
        for i in range(4): a(f"buffer_load_dwordx4 v[{r0+16+4*i}:{r0+16+4*i+3}], v5, {FK}, 0 offen offset:{1024*i}")

    def Freg(self, n):
        return f"a[{4*n}:{4*n+3}]" if n < 64 else f"v[{176+4*(n-64)}:{179+4*(n-64)}]"
    def Fhalf(self, n, h):
        b = 4 * n + 2 * h
        return f"a[{b}:{b+1}]" if n < 64 else f"v[{176+b-256}:{177+b-256}]"

    def c_filter_prep(self, r0, fb, later):
        a = self.a
        a(f"""
        s_mul_i32 s73, {sWV}, {self.FSZ}
        s_add_u32 s73, s73, {fb}
        v_and_b32 v2, 15, v1
        v_lshrrev_b32 v3, 4, v1
        v_lshl_add_u32 v4, v1, 4, s73
        v_mov_b32 v6, 0
        v_mov_b32 v7, 0
        v_mov_b32 v8, 0
        v_mov_b32 v9, 0
        v_cmp_gt_u32 vcc, 4, v1
        s_and_saveexec_b64 s[62:63], vcc
        ds_write_b128 v4, v[6:9]
        ds_write_b128 v4, v[6:9] offset:4160
        s_mov_b64 exec, s[62:63]
        s_waitcnt vmcnt({later})
        """)
        for i in range(4): a(f"ds_write_b128 v4, v[{r0+4*i}:{r0+4*i+3}] offset:{64+1024*i}")
        for i in range(4): a(f"ds_write_b128 v4, v[{r0+16+4*i}:{r0+16+4*i+3}] offset:{4160+64+1024*i}")
        a(f"""
        v_cmp_eq_u32 vcc, 0, v1
        s_and_saveexec_b64 s[62:63], vcc
        ds_write_b16 v4, v{r0} offset:{4160+62}
        s_mov_b64 exec, s[62:63]
        v_and_b32 v5, 1, v2
        v_cmp_eq_u32 vcc, 1, v5
        v_mov_b32 v5, 4160
        v_cndmask_b32 v5, v5, 2, vcc
        v_lshl_add_u32 v5, v2, 1, v5
        v_and_b32 v10, 1, v3
        v_lshl_add_u32 v5, v10, 4, v5
        v_add_u32 v5, s73, v5
        v_lshrrev_b32 v10, 1, v3
        s_add_u32 s60, s71, 1
        s_lshl_b32 s60, s60, 9
        s_add_u32 s61, s72, 1
        s_lshl_b32 s61, s61, 9
        v_mad_u32_u24 v11, v10, s60, v5
        v_mad_u32_u24 v12, v10, s61, v5
        v_add_u32 v15, s60, v11
        v_mov_b32 v10, v11
        v_add_u32 v11, 512, v11
        s_cmp_eq_u32 s69, 0
        s_cselect_b64 vcc, -1, 0
        v_cndmask_b32 v11, v11, v12, vcc
        s_sub_u32 s61, 1024, s60
        v_add_u32 v12, s61, v12
        v_add_u32 v13, 512, v12
        v_add_u32 v14, 1024, v12
        """)
        for n in range(81):
            c = min(n // 16, 4)
            o = 8 * (n - 16 * c)
            a(f"ds_read2_b32 {self.Fhalf(n,0)}, v{10+c} offset0:{o} offset1:{o+1}")
            a(f"ds_read2_b32 {self.Fhalf(n,1)}, v{10+c} offset0:{o+2} offset1:{o+3}")
        a("ds_read2_b32 v[244:245], v15 offset0:0 offset1:1\nds_read2_b32 v[246:247], v15 offset0:2 offset1:3")
        a("ds_write_b128 v4, v[6:9] offset:6144\nds_write_b128 v4, v[6:9] offset:7168")
        a(f"""
        v_sub_u32 v5, 63, v2
        v_mul_u32_u24 v5, 96, v5
        v_add_u32 v5, s73, v5
        s_mul_i32 s60, s71, {16*96}
        s_mul_i32 s61, s72, {16*96}
        v_subrev_u32 v156, s60, v5
        v_subrev_u32 v157, s61, v5
        v_and_b32 v6, 1, v3
        v_lshlrev_b32 v6, 4, v6
        v_lshrrev_b32 v7, 1, v3
        s_add_u32 s60, s71, 1
        s_mul_i32 s60, s60, 768
        s_add_u32 s61, s72, 1
        s_mul_i32 s61, s61, 768
        v_mad_u32_u24 v80, v7, s60, v156
        v_mad_u32_u24 v82, v7, s61, v157
        v_add_u32 v80, v80, v6
        v_add_u32 v82, v82, v6
        v_subrev_u32 v82, s60, v82
        s_cmp_eq_u32 s69, 0
        s_cselect_b64 vcc, -1, 0
        v_cndmask_b32 v81, v80, v82, vcc
        v_lshlrev_b32 v6, 3, v3
        v_sub_u32 v6, 24, v6
        v_add_u32 v156, v156, v6
        v_add_u32 v157, v157, v6
        v_lshrrev_b32 v83, 2, v1
        v_mul_u32_u24 v83, 96, v83
        v_and_b32 v6, 3, v1
        v_lshl_add_u32 v83, v6, 4, v83
        v_add_u32 v83, s73, v83
        """)

    def c_u_load(self):
        a = self.a
        a(f"s_lshl_b32 s60, s68, 12\ns_add_u32 s60, s60, {WS_KVT}\nv_lshl_add_u32 v4, v1, 4, s60")
        for i in range(4): a(f"buffer_load_dwordx4 v[{16+4*i}:{19+4*i}], v4, {WS}, 0 offen offset:{1024*i}{self.sc}")

    def c_epi_load(self):
        a = self.a
        a(f"""
        v_lshlrev_b32 v5, 5, v2
        v_lshl_add_u32 v5, v3, 2, v5
        s_lshl_b32 s60, s68, 12
        s_add_u32 s60, s60, {WS_QT}
        v_lshl_add_u32 v6, v5, 1, s60
        v_lshlrev_b32 v7, 2, v5
        v_add_u32 v7, {WS_STAT}, v7
        v_add_u32 v8, 8192, v7
        s_lshl_b32 s60, s71, 10
        s_lshl_b32 s61, s72, 10
        s_lshl_b32 s62, s71, 11
        s_lshl_b32 s63, s72, 11
        v_and_b32 v9, 3, v1
        s_movk_i32 s64, 12288
        v_mul_u32_u24 v9, s64, v9
        v_bfe_u32 v5, v1, 2, 2
        v_lshl_add_u32 v9, v5, 11, v9
        s_lshl_b32 s64, s68, 2
        s_add_u32 s64, s64, {WS_MOD}
        v_add_u32 v9, s64, v9
        s_lshl_b32 s64, s68, 1
        v_mov_b32 v5, s64
        buffer_load_dword v148, v9, {WS}, 0 offen{self.sc}
        buffer_load_ushort v149, v5, {SD}, 0 offen
        """)
        for sl in range(2):
            for t in range(2):
                i = 2 * sl + t
                a(f"buffer_load_dwordx2 v[{100+2*i}:{101+2*i}], v6, {WS}, s{60+sl} offen offset:{32*t}{self.sc}")
                a(f"buffer_load_dwordx4 v[{108+4*i}:{111+4*i}], v7, {WS}, s{62+sl} offen offset:{64*t}{self.sc}")
                a(f"buffer_load_dwordx4 v[{124+4*i}:{127+4*i}], v8, {WS}, s{62+sl} offen offset:{64*t}{self.sc}")

    def c_main(self, later, hook=None):
        a = self.a
        a(f"s_waitcnt vmcnt({later})")
        for i in range(4): a(f"ds_write_b128 v83, v[{16+4*i}:{19+4*i}] offset:{1536*i}")
        D = 6
        off = lambda n: 96 * (n >> 1) + 32 * (n & 1)
        base = lambda n: "v80" if n < 16 else "v81" if n < 32 else "v82"
        Br = lambda n: f"v[{48+4*(n%8)}:{51+4*(n%8)}]"
        def rd(n):
            if n < 80: a(f"ds_read_b128 {Br(n)}, {base(n)} offset:{off(n)}")
        def step(n, c0="v[84:87]", c1="v[88:91]", d0="v[84:87]", d1="v[88:91]", a1=None):
            rd(n + D)
            a(f"s_waitcnt lgkmcnt({min(D, 79 - n)})")
            a(f"v_mfma_f32_16x16x32_bf16 {d0}, {self.Freg(n)}, {Br(n)}, {c0}")
            a(f"v_mfma_f32_16x16x32_bf16 {d1}, {a1 or self.Freg(n+1)}, {Br(n)}, {c1}")
            if hook: hook(n)
        for n in range(D): rd(n)
        def boundary(n, ty):
            a(f"s_cmp_eq_u32 s69, {ty}\ns_cbranch_scc0 L_cb{n}_no")
            h = list(a.hist)
            step(n, d0="v[92:95]", d1="v[96:99]", a1="v[244:247]")
            step(n + 1, c0="0", c1="0")
            a(f"s_branch L_cb{n}_done\nL_cb{n}_no:")
            a.hist = h
            step(n); step(n + 1)
            a(f"L_cb{n}_done:")
            a("s_nop 0")
        step(0, c0="0", c1="0")
        for n in range(1, 15): step(n)
        boundary(15, 0)
        for n in range(17, 31): step(n)
        boundary(31, 1)
        for n in range(33, 80): step(n)

    XI_RS = 2368
    def c_epilogue(self, xi, wait=True, pre_barrier=None, post_barrier=None):
        a = self.a
        P = lambda r: f"v[{r}:{r+1}]"
        for sl in range(2):
            for t in range(2):
                a(f"ds_read_b64 {P(140+4*sl+2*t)}, v{156+sl} offset:{32-32*t}")
        if wait: a("s_waitcnt vmcnt(0)")
        a("""
        v_add_f32_dpp v148, v148, v148 quad_perm:[1,0,3,2] row_mask:0xf bank_mask:0xf
        v_add_f32_dpp v148, v148, v148 quad_perm:[2,3,0,1] row_mask:0xf bank_mask:0xf
        v_cvt_pk_bf16_f32 v148, v148, v148
        v_and_b32 v148, 0xffff0000, v148
        v_readlane_b32 s60, v148, 0
        v_readlane_b32 s61, v148, 4
        v_readlane_b32 s62, v148, 8
        v_lshlrev_b32 v150, 16, v149
        v_mov_b32 v151, v150
        v_add_f32 v152, 1.0, s61
        v_cvt_pk_bf16_f32 v152, v152, v152
        v_and_b32 v152, 0xffff0000, v152
        v_mov_b32 v153, v152
        v_mov_b32 v154, s60
        v_mov_b32 v155, s60
        v_mov_b32 v148, s62
        v_mov_b32 v149, s62
        """)
        a(f"""
        s_mul_i32 s60, {sWV}, {self.XI_RS}
        s_add_u32 s60, s60, {xi}
        v_mul_u32_u24 v4, 144, v3
        v_lshl_add_u32 v4, v2, 3, v4
        v_add_u32 v4, s60, v4
        s_waitcnt lgkmcnt(0)
        """)
        for sl in range(2):
            for t in range(2):
                i = 2 * sl + t
                acc = (92 if sl == 0 else 84) + 4 * t
                kv, q, A, B = 140 + 2 * i, 100 + 2 * i, 108 + 4 * i, 124 + 4 * i
                a(f"""
                v_and_b32 v160, 0xffff0000, v{kv+1}
                v_lshlrev_b32 v161, 16, v{kv+1}
                v_and_b32 v162, 0xffff0000, v{kv}
                v_lshlrev_b32 v163, 16, v{kv}
                v_lshlrev_b32 v164, 16, v{q}
                v_and_b32 v165, 0xffff0000, v{q}
                v_lshlrev_b32 v166, 16, v{q+1}
                v_and_b32 v167, 0xffff0000, v{q+1}
                v_pk_fma_f32 {P(160)}, {P(160)}, {P(150)}, {P(acc)}
                v_pk_fma_f32 {P(162)}, {P(162)}, {P(150)}, {P(acc+2)}
                v_pk_fma_f32 {P(168)}, {P(164)}, {P(A)}, {P(B)}
                v_pk_fma_f32 {P(170)}, {P(166)}, {P(A+2)}, {P(B+2)}
                v_pk_mul_f32 {P(160)}, {P(160)}, {P(148)}
                v_pk_mul_f32 {P(162)}, {P(162)}, {P(148)}
                v_pk_fma_f32 {P(168)}, {P(168)}, {P(152)}, {P(154)}
                v_pk_fma_f32 {P(170)}, {P(170)}, {P(152)}, {P(154)}
                v_pk_fma_f32 {P(164)}, {P(168)}, {P(160)}, {P(164)}
                v_pk_fma_f32 {P(166)}, {P(170)}, {P(162)}, {P(166)}
                v_cvt_pk_bf16_f32 v{172+2*(i&1)}, v164, v165
                v_cvt_pk_bf16_f32 v{173+2*(i&1)}, v166, v167
                ds_write_b64 v4, {P(172+2*(i&1))} offset:{1152*sl + 576*t}
                """)
        a(f"""
        s_lshr_b32 s60, {sWV}, 1
        s_and_b32 s61, {sWV}, 1
        s_mul_i32 s62, s60, 1152
        s_lshl_b32 s63, s61, 6
        s_add_u32 s62, s62, s63
        s_add_u32 s62, s62, {xi}
        v_bfe_u32 v5, v1, 2, 2
        v_mul_u32_u24 v5, {self.XI_RS}, v5
        v_and_b32 v6, 3, v1
        v_mul_u32_u24 v6, 144, v6
        v_add3_u32 v5, v5, v6, s62
        v_lshl_add_u32 v5, v3, 3, v5
        s_cmp_eq_u32 s60, 0
        s_cselect_b32 s62, s71, s72
        s_lshl_b32 s62, s62, 4
        s_lshl_b32 s61, s61, 3
        s_add_u32 s62, s62, s61
        s_lshl_b32 s62, s62, 15
        s_lshl_b32 s63, s70, 8
        s_add_u32 s62, s62, s63
        s_add_u32 s62, s62, {WS_X1}
        v_lshlrev_b32 v6, 15, v3
        v_lshl_add_u32 v6, v2, 4, v6
        v_add_u32 v6, s62, v6
        s_mov_b32 s63, {4*32768}
        s_waitcnt lgkmcnt(0)
        """)
        if pre_barrier: a(pre_barrier)
        a(f"""
        s_barrier
        ds_read_b64_tr_b16 v[160:161], v5
        ds_read_b64_tr_b16 v[162:163], v5 offset:576
        ds_read_b64_tr_b16 v[164:165], v5 offset:32
        ds_read_b64_tr_b16 v[166:167], v5 offset:{576+32}
        """)
        if post_barrier: post_barrier()
        a(f"""
        s_waitcnt lgkmcnt(2)
        buffer_store_dwordx4 v[160:163], v6, {WS}, 0 offen{self.sc}
        s_waitcnt lgkmcnt(0)
        buffer_store_dwordx4 v[164:167], v6, {WS}, s63 offen{self.sc}
        """)

    WB = 49152
    def g1_ids(self):
        self.a(f"""
        s_lshr_b32 s74, {sM}, 4
        s_lshl_b32 s60, {sX}, 1
        s_add_u32 s74, s74, s60
        s_and_b32 s75, {sM}, 15
        """)

    def g1_rows(self, r0, scale, add):
        a = self.a
        a("s_movk_i32 s60, 4682")
        for i in range(7):
            a(f"v_add_u32 v{r0+7}, {64*i}, v1\nv_mul_u32_u24 v{r0+i}, s60, v{r0+7}\nv_lshrrev_b32 v{r0+i}, 16, v{r0+i}")
            if add:
                a(f"v_mul_u32_u24 v{r0+8}, 14, v{r0+i}\nv_sub_u32 v{r0+7}, v{r0+7}, v{r0+8}")
                a(f"v_mul_u32_u24 v{r0+i}, {scale}, v{r0+i}\nv_lshl_add_u32 v{r0+i}, v{r0+7}, 4, v{r0+i}")
            else:
                a(f"v_mul_u32_u24 v{r0+i}, {scale}, v{r0+i}")

    def g1_w1_load(self, r0):
        a = self.a
        self.g1_rows(r0, 3584, True)
        a(f"""
        s_mul_i32 s60, s75, 224
        s_mul_i32 s61, {sWV}, {4*32*3584}
        s_add_u32 s60, s60, s61
        s_mul_i32 s61, {sWV}, {28*1024}
        s_add_u32 m0, s61, {self.WB}
        """)
        for blk in range(4):
            for i in range(7):
                a(f"buffer_load_dwordx4 v{r0+i}, {W1}, s60 offen lds")
                if not (blk == 3 and i == 6): a("s_add_u32 m0, m0, 1024")
            if blk < 3: a(f"s_add_u32 s60, s60, {32*3584}")

    def g1_mod_load(self, r0):
        a = self.a
        a(f"v_lshlrev_b32 v4, 3, v0\nv_add_u32 v4, {WS_MOD + 3*2048}, v4")
        for k in range(4):
            a(f"s_mov_b32 s60, {12288*k}")
            a(f"buffer_load_dwordx2 v[{r0+4*k}:{r0+4*k+1}], v4, {WS}, s60 offen{self.sc}")
            a(f"buffer_load_dwordx2 v[{r0+4*k+2}:{r0+4*k+3}], v4, {WS}, s60 offen offset:2048{self.sc}")

    def g1_prep(self, r0, tb, later):
        a = self.a
        GT, GB, U = tb, tb + 2048, tb + 4096
        P = lambda r: f"v[{r}:{r+1}]"
        a(f"s_waitcnt vmcnt({later})")
        for h in range(2):
            a(f"v_pk_add_f32 {P(r0+2*h)}, {P(r0+2*h)}, {P(r0+4+2*h)}\nv_pk_add_f32 {P(r0+8+2*h)}, {P(r0+8+2*h)}, {P(r0+12+2*h)}")
        for h in range(2): a(f"v_pk_add_f32 {P(r0+2*h)}, {P(r0+2*h)}, {P(r0+8+2*h)}")
        a(f"""
        v_cvt_pk_bf16_f32 v{r0}, v{r0}, v{r0+1}
        v_cvt_pk_bf16_f32 v{r0+2}, v{r0+2}, v{r0+3}
        v_lshlrev_b32 v{r0+4}, 16, v{r0+2}
        v_and_b32 v{r0+5}, 0xffff0000, v{r0+2}
        v_add_f32 v{r0+4}, 1.0, v{r0+4}
        v_add_f32 v{r0+5}, 1.0, v{r0+5}
        v_cvt_pk_bf16_f32 v{r0+2}, v{r0+4}, v{r0+5}
        v_lshlrev_b32 v{r0+4}, 16, v{r0+2}
        v_and_b32 v{r0+5}, 0xffff0000, v{r0+2}
        v_lshlrev_b32 v4, 2, v0
        v_lshlrev_b32 v5, 3, v0
        ds_write_b64 v5, {P(r0+4)} offset:{GT}
        ds_write_b32 v4, v{r0+2} offset:{GB}
        ds_write_b32 v4, v{r0} offset:{GB+1024}
        v_and_b32 v2, 15, v1
        v_lshrrev_b32 v3, 4, v1
        v_lshrrev_b32 v6, 2, v1
        v_mul_u32_u24 v6, 224, v6
        v_and_b32 v7, 3, v1
        v_lshl_add_u32 v10, v7, 3, v6
        v_add_u32 v10, {self.WB}, v10
        v_add_u32 v11, 57344, v10
        v_and_b32 v6, 1, v1
        v_lshlrev_b32 v6, 10, v6
        v_lshl_add_u32 v6, v3, 3, v6
        s_lshl_b32 s60, {sWV}, 5
        v_add_u32 v8, s60, v10
        v_add_u32 v9, s60, v11
        s_waitcnt lgkmcnt(0)
        s_barrier
        """)
        for k in range(16):
            b = "v8" if k < 8 else "v9"
            o = (k % 8) * 7168
            s = 16 + 12 * (k % 2)
            a(f"""
            ds_read_b64 v[{s}:{s+1}], v6 offset:{GB + 64*k}
            ds_read_b64 v[{s+2}:{s+3}], v6 offset:{GB + 64*k + 32}
            ds_read_b64_tr_b16 v[{s+4}:{s+5}], {b} offset:{o}
            ds_read_b64_tr_b16 v[{s+6}:{s+7}], {b} offset:{o+3584}
            ds_read_b64_tr_b16 v[{s+8}:{s+9}], {b} offset:{o+128}
            ds_read_b64_tr_b16 v[{s+10}:{s+11}], {b} offset:{o+3584+128}
            """)
            if k > 0:
                p = 16 + 12 * ((k - 1) % 2)
                c0, c1 = ("0", "0") if k == 1 else ("v[40:43]", "v[44:47]")
                a(f"s_waitcnt lgkmcnt(6)\nv_mfma_f32_16x16x32_bf16 v[40:43], v[{p+4}:{p+7}], v[{p}:{p+3}], {c0}\nv_mfma_f32_16x16x32_bf16 v[44:47], v[{p+8}:{p+11}], v[{p}:{p+3}], {c1}")
        a("s_waitcnt lgkmcnt(0)\nv_mfma_f32_16x16x32_bf16 v[40:43], v[32:35], v[28:31], v[40:43]\nv_mfma_f32_16x16x32_bf16 v[44:47], v[36:39], v[28:31], v[44:47]")
        self.g1_rows(16, 4, False)
        a(f"""
        v_and_b32 v6, 1, v1
        v_mul_u32_u24 v6, 512, v6
        v_lshl_add_u32 v6, v3, 4, v6
        s_lshl_b32 s60, {sWV}, 6
        v_add_u32 v6, s60, v6
        ds_write_b128 v6, v[40:43] offset:{U}
        ds_write_b128 v6, v[44:47] offset:{U+256}
        s_mul_i32 s60, {sWV}, {28*1024}
        s_add_u32 s60, s60, {self.WB}
        v_lshl_add_u32 v7, v1, 4, s60
        s_lshl_b32 s60, {sWV}, 9
        """)
        for i in range(7): a(f"v_add_u32 v{16+i}, s60, v{16+i}")
        a("s_waitcnt lgkmcnt(0)\ns_barrier")
        NB = 4
        def rd(n):
            if n < 28:
                s = 24 + 8 * (n % NB)
                a(f"ds_read_b128 v[{s}:{s+3}], v7 offset:{1024*n}\nds_read_b32 v{s+4}, v{16+n%7} offset:{GT + 128*(n//7)}")
        for n in range(NB - 1): rd(n)
        for n in range(28):
            rd(n + NB - 1)
            s = 24 + 8 * (n % NB)
            left = min(NB - 1, 27 - n)
            a(f"s_waitcnt lgkmcnt({2*left})")
            for e in range(4): a(f"v_lshlrev_b32 v{56+2*e}, 16, v{s+e}\nv_and_b32 v{57+2*e}, 0xffff0000, v{s+e}")
            for e in range(4): a(f"v_pk_mul_f32 {P(56+2*e)}, {P(56+2*e)}, {P(s+4)} op_sel_hi:[1,0]")
            for e in range(4): a(f"v_cvt_pk_bf16_f32 v{s+e}, v{56+2*e}, v{57+2*e}")
            a(f"ds_write_b128 v7, v[{s}:{s+3}] offset:{1024*n}")
        a("s_waitcnt lgkmcnt(0)\ns_barrier")

    def g1_x_load(self):
        a = self.a
        a(f"""
        s_lshl_b32 s60, s74, 2
        s_add_u32 s60, s60, {sWV}
        s_lshl_b32 s60, s60, 15
        s_add_u32 s60, s60, {WS_X1}
        v_lshlrev_b32 v4, 4, v1
        """)
        for k in range(16):
            for h in range(2):
                a(f"buffer_load_dwordx4 v[{64+8*k+4*h}:{67+8*k+4*h}], v4, {WS}, s60 offen offset:{(2*k+h)%4*1024}{self.sc}")
            if k % 2 == 1 and k < 15: a("s_add_u32 s60, s60, 4096")

    def g1_main(self, later):
        a = self.a
        for r in range(12, 16): a(f"v_mov_b32 v{r}, 0x3f803f80")
        NR = 8
        Wr = lambda n: 16 + 4 * (n % NR)
        def rd(n):
            if n < 112:
                k, ft = divmod(n, 7)
                b = "v10" if k < 8 else "v11"
                o = (k % 8) * 7168 + 32 * ft
                a(f"ds_read_b64_tr_b16 v[{Wr(n)}:{Wr(n)+1}], {b} offset:{o}\nds_read_b64_tr_b16 v[{Wr(n)+2}:{Wr(n)+3}], {b} offset:{o+3584}")
        D = 6
        for n in range(D): rd(n)
        for k in range(16):
            x = 64 + 8 * k
            a(f"s_waitcnt vmcnt({later + 30 - 2*k})")
            a(f"v_swap_b32 v{x+2}, v{x+4}\nv_swap_b32 v{x+3}, v{x+5}")
            for ft in range(7):
                n = 7 * k + ft
                rd(n + D)
                a(f"s_waitcnt lgkmcnt({2*min(D, 111-n)})")
                for t in range(2):
                    d = 192 + 8 * ft + 4 * t
                    c = "0" if k == 0 else f"v[{d}:{d+3}]"
                    a(f"v_mfma_f32_16x16x32_bf16 v[{d}:{d+3}], v[{Wr(n)}:{Wr(n)+3}], v[{x+4*t}:{x+4*t+3}], {c}")
                if ft in (2, 4):
                    t = (ft - 2) // 2
                    for j, A in ((0, "v[12:15]"), (1, f"v[{x+4*t}:{x+4*t+3}]")):
                        d = 48 + 8 * t + 4 * j
                        c = "0" if k == 0 else f"v[{d}:{d+3}]"
                        a(f"v_mfma_f32_16x16x32_bf16 v[{d}:{d+3}], {A}, v[{x+4*t}:{x+4*t+3}], {c}")

    def g1_epilogue(self, tb):
        a = self.a
        U = tb + 4096
        P = lambda r: f"v[{r}:{r+1}]"
        a("v_lshlrev_b32 v4, 4, v3")
        for ft in range(7):
            a(f"ds_read_b128 v[{64+8*ft}:{67+8*ft}], v4 offset:{U + 64*ft}\nds_read_b128 v[{68+8*ft}:{71+8*ft}], v4 offset:{U + 512 + 64*ft}")
        a("""
        v_lshrrev_b32 v5, 2, v2
        v_lshl_add_u32 v5, v5, 4, v2
        v_lshlrev_b32 v5, 2, v5
        v_and_b32 v6, 3, v1
        v_cmp_eq_u32 s[60:61], 1, v6
        v_cmp_eq_u32 s[62:63], 2, v6
        v_cmp_eq_u32 s[64:65], 3, v6
        """)
        for t in range(2):
            g = 52 + 8 * t
            a(f"v_cndmask_b32 v{g}, v{g}, v{g+1}, s[60:61]\nv_cndmask_b32 v{g}, v{g}, v{g+2}, s[62:63]\nv_cndmask_b32 v{g}, v{g}, v{g+3}, s[64:65]")
            a(f"ds_bpermute_b32 v{g}, v5, v{g}")
        a("s_waitcnt lgkmcnt(0)")
        for t in range(2):
            sm, g, o = 48 + 8 * t, 52 + 8 * t, 16 + 4 * t
            a(f"""
            v_mul_f32 v{sm}, 0x3b000000, v{sm}
            v_mul_f32 v{sm+1}, v{sm}, v{sm}
            v_mov_b32 v{sm+2}, 0x3b000000
            v_fma_f32 v{g}, v{g}, v{sm+2}, -v{sm+1}
            v_max_f32 v{g}, 0, v{g}
            v_add_f32 v{g}, 0x3727c5ac, v{g}
            v_rsq_f32 v{o}, v{g}
            v_mul_f32 v{o+1}, v{sm}, v{o}
            v_sub_f32 v{o+1}, 0, v{o+1}
            """)
        a(f"""
        v_mov_b32 v24, {NLOG2E}
        v_mov_b32 v26, 1.0
        s_lshl_b32 s60, s74, 1
        s_lshr_b32 s61, {sWV}, 1
        s_add_u32 s60, s60, s61
        s_mul_i32 s60, s60, 56
        s_lshr_b32 s61, s75, 1
        s_mul_i32 s61, s61, 7
        s_add_u32 s60, s60, s61
        s_lshl_b32 s60, s60, 12
        s_and_b32 s61, {sWV}, 1
        s_lshl_b32 s61, s61, 11
        s_add_u32 s60, s60, s61
        s_add_u32 s60, s60, {WS_H}
        s_and_b32 s61, s75, 1
        s_mul_i32 s62, s61, {3*4096}
        s_add_u32 s62, s62, s60
        s_lshl_b32 s61, s61, 9
        s_add_u32 s61, s61, s60
        s_add_u32 s61, s61, {6*4096}
        v_lshlrev_b32 v4, 4, v1
        v_and_b32 v5, 1, v3
        v_lshlrev_b32 v5, 10, v5
        v_lshl_add_u32 v5, v2, 4, v5
        v_lshrrev_b32 v6, 1, v3
        v_lshl_add_u32 v5, v6, 8, v5
        """)
        for ft in range(7):
            if ft == 3: a.region("g1e1")
            for t in range(2):
                d, o = 192 + 8 * ft + 4 * t, 16 + 4 * t
                u1, u2 = 64 + 8 * ft, 68 + 8 * ft
                w = 28 + 8 * t
                dst = 128 + 8 * (ft // 2) + 4 * t + 2 * (ft % 2) if ft < 6 else 152 + 2 * t
                for h in range(2): a(f"v_pk_fma_f32 {P(w+2*h)}, {P(u1+2*h)}, {P(o)}, {P(u2+2*h)} op_sel:[0,1,0] op_sel_hi:[1,1,1]")
                for h in range(2): a(f"v_pk_fma_f32 {P(d+2*h)}, {P(d+2*h)}, {P(o)}, {P(w+2*h)} op_sel_hi:[1,0,1]")
                for h in range(2): a(f"v_pk_mul_f32 {P(w+2*h)}, {P(d+2*h)}, {P(24)} op_sel_hi:[1,0]")
                for r in range(4): a(f"v_exp_f32 v{w+r}, v{w+r}")
                for h in range(2): a(f"v_pk_add_f32 {P(w+2*h)}, {P(w+2*h)}, {P(26)} op_sel_hi:[1,0]")
                for r in range(4): a(f"v_rcp_f32 v{w+r}, v{w+r}")
                for h in range(2): a(f"v_pk_mul_f32 {P(d+2*h)}, {P(d+2*h)}, {P(w+2*h)}")
                for h in range(2): a(f"v_cvt_pk_bf16_f32 v{dst+h}, v{d+2*h}, v{d+2*h+1}")
                if ft % 2 == 1:
                    b = dst - 2
                    a(f"buffer_store_dwordx4 v[{b}:{b+3}], v4, {WS}, s62 offen offset:{1024*t}{self.sc}")
                elif ft == 6 and t == 1:
                    a("v_permlane16_swap_b32 v152, v154\nv_permlane16_swap_b32 v153, v155")
                    a(f"buffer_store_dwordx4 v[152:155], v5, {WS}, s61 offen{self.sc}")
            if ft in (1, 3): a("s_add_u32 s62, s62, 4096")

    def g2_ids(self):
        self.a(f"""
        s_lshr_b32 s76, {sM}, 3
        s_lshl_b32 s60, {sX}, 2
        s_add_u32 s76, s76, s60
        s_and_b32 s77, {sM}, 7
        """)

    def g2_w2_load(self, k0=0, k1=14):
        a = self.a
        a(f"""
        s_mul_i32 s60, s77, 56
        s_mul_i32 s61, {sWV}, 14
        s_add_u32 s60, s60, s61
        s_add_u32 s60, s60, {k0}
        s_lshl_b32 s60, s60, 12
        s_add_u32 s60, s60, {WS_W2P}
        v_lshlrev_b32 v4, 4, v1
        """)
        for k in range(k0, k1):
            for dt in range(4):
                a(f"buffer_load_dwordx4 a[{16*k+4*dt}:{16*k+4*dt+3}], v4, {WS}, s60 offen offset:{1024*dt}{self.sc}")
            if k < k1 - 1: a("s_add_u32 s60, s60, 4096")

    def g2_w2_addr(self, k0):
        self.a(f"""
        s_mul_i32 s79, s77, 56
        s_mul_i32 s61, {sWV}, 14
        s_add_u32 s79, s79, s61
        s_lshl_b32 s79, s79, 12
        s_add_u32 s79, s79, {WS_W2P + 4096*k0}
        v_lshlrev_b32 v9, 4, v1
        """)

    def g2_w2_one(self, i, v="v9"):
        self.a(f"buffer_load_dwordx4 a[{4*i}:{4*i+3}], {v}, {WS}, s79 offen offset:{1024*(i%4)}{self.sc}")
        if i % 4 == 3: self.a("s_add_u32 s79, s79, 4096")

    def g2_epi_load(self):
        a = self.a
        a(f"""
        s_lshl_b32 s60, s77, 8
        s_add_u32 s60, s60, {WS_MOD + 5*2048}
        v_lshl_add_u32 v5, v1, 2, s60
        s_mov_b32 s61, 12288
        s_mov_b32 s62, {2*12288}
        s_mov_b32 s63, {3*12288}
        buffer_load_dword v16, v5, {WS}, 0 offen{self.sc}
        buffer_load_dword v17, v5, {WS}, s61 offen{self.sc}
        buffer_load_dword v18, v5, {WS}, s62 offen{self.sc}
        buffer_load_dword v19, v5, {WS}, s63 offen{self.sc}
        s_lshl_b32 s60, s76, 1
        s_lshr_b32 s61, {sWV}, 1
        s_add_u32 s60, s60, s61
        s_lshl_b32 s60, s60, 15
        s_lshl_b32 s61, s77, 12
        s_add_u32 s60, s60, s61
        s_and_b32 s61, {sWV}, 1
        s_lshl_b32 s61, s61, 3
        s_add_u32 s60, s60, s61
        s_add_u32 s60, s60, {WS_X1}
        v_and_b32 v2, 15, v1
        v_lshrrev_b32 v3, 4, v1
        v_lshlrev_b32 v5, 9, v3
        v_lshl_add_u32 v5, v2, 4, v5
        """)
        for p in range(2):
            for h in range(2):
                a(f"buffer_load_dwordx2 v[{20+4*p+2*h}:{21+4*p+2*h}], v5, {WS}, s60 offen offset:{2048*p + 256*h}{self.sc}")

    HR = 10
    def g2_h_issue(self, k):
        a = self.a
        r = 32 + 16 * (k % self.HR)
        for st in range(4):
            if k % 7 == 6:
                a(f"buffer_load_dwordx2 v[{r+4*st}:{r+4*st+1}], v7, {WS}, s78 offen offset:{1024*st}{self.sc}")
                a(f"buffer_load_dwordx2 v[{r+4*st+2}:{r+4*st+3}], v7, {WS}, s78 offen offset:{1024*st+512}{self.sc}")
            else:
                a(f"buffer_load_dwordx4 v[{r+4*st}:{r+4*st+3}], v6, {WS}, s78 offen offset:{1024*st}{self.sc}")
        a("s_add_u32 s78, s78, 4096")

    def g2_main(self):
        a = self.a
        a(f"""
        s_mul_i32 s78, s76, 56
        s_mul_i32 s61, {sWV}, 14
        s_add_u32 s78, s78, s61
        s_lshl_b32 s78, s78, 12
        s_add_u32 s78, s78, {WS_H}
        v_lshlrev_b32 v6, 4, v1
        v_lshlrev_b32 v7, 3, v1
        """)
        cnt = lambda k: 8 if k % 7 == 6 else 4
        for k in range(self.HR): self.g2_h_issue(k)
        issued = self.HR
        for k in range(14):
            a(f"s_waitcnt vmcnt({sum(cnt(j) for j in range(k+1, issued))})")
            r = 32 + 16 * (k % self.HR)
            for st in range(4):
                for dt in range(4):
                    d = 192 + 16 * st + 4 * dt
                    c = "0" if k == 0 else f"v[{d}:{d+3}]"
                    a(f"v_mfma_f32_16x16x32_bf16 v[{d}:{d+3}], a[{16*k+4*dt}:{16*k+4*dt+3}], v[{r+4*st}:{r+4*st+3}], {c}")
            if issued < 14:
                self.g2_h_issue(issued); issued += 1

    def g2_epi_pre(self, tb):
        a = self.a
        a(f"""
        v_add_f32 v16, v16, v17
        v_add_f32 v18, v18, v19
        v_add_f32 v16, v16, v18
        v_cvt_pk_bf16_f32 v16, v16, v16
        v_and_b32 v16, 0xffff0000, v16
        s_lshl_b32 s60, {sWV}, 8
        s_add_u32 s60, s60, {tb}
        v_lshl_add_u32 v5, v1, 2, s60
        ds_write_b32 v5, v16
        v_lshl_add_u32 v5, v3, 5, s60
        """)
        for p in range(2):
            for h in range(2):
                a(f"ds_read_b128 a[{224+8*p+4*h}:{227+8*p+4*h}], v5 offset:{128*p + 16*h}")
        a("s_waitcnt lgkmcnt(0)")

    def g2_epilogue(self, rb, tb):
        a = self.a
        P = lambda r: f"v[{r}:{r+1}]"
        for j in range(1, 4):
            a(f"s_add_u32 s60, {sWV}, {j}\ns_and_b32 s60, s60, 3\ns_mul_i32 s60, s60, 12288\ns_add_u32 s60, s60, {rb + 4096*(j-1)}\nv_lshl_add_u32 v{9+j}, v1, 4, s60")
        a(f"""
        s_mul_i32 s60, {sWV}, 12288
        s_add_u32 s60, s60, {rb}
        v_lshl_add_u32 v6, v1, 4, s60
        """)
        for j in range(1, 4):
            for dt in range(4):
                d = 192 + 16 * j + 4 * dt
                a(f"ds_write_b128 v{9+j}, v[{d}:{d+3}] offset:{1024*dt}")
        for i in range(16): a(f"v_accvgpr_read_b32 v{32+i}, a{224+i}")
        for dt in range(4):
            x = 20 + 2 * dt
            a(f"""
            v_lshlrev_b32 v{48+4*dt}, 16, v{x}
            v_and_b32 v{49+4*dt}, 0xffff0000, v{x}
            v_lshlrev_b32 v{50+4*dt}, 16, v{x+1}
            v_and_b32 v{51+4*dt}, 0xffff0000, v{x+1}
            """)
        a(f"""
        s_lshl_b32 s60, s76, 16
        s_lshl_b32 s61, {sWV}, 14
        s_add_u32 s60, s60, s61
        s_lshl_b32 s61, s77, 7
        s_add_u32 s60, s60, s61
        v_lshlrev_b32 v7, 10, v2
        v_lshl_add_u32 v7, v3, 4, v7
        s_waitcnt lgkmcnt(0)
        s_barrier
        """)
        for dt in range(4):
            for src in range(3):
                r = 64 + 12 * dt + 4 * src
                a(f"ds_read_b128 v[{r}:{r+3}], v6 offset:{4096*src + 1024*dt}")
        for dt in range(4):
            r, o = 64 + 12 * dt, 192 + 4 * dt
            a(f"s_waitcnt lgkmcnt({9 - 3*dt})")
            for h in range(2): a(f"v_pk_add_f32 {P(r+2*h)}, {P(r+2*h)}, {P(r+4+2*h)}\nv_pk_add_f32 {P(o+2*h)}, {P(o+2*h)}, {P(r+8+2*h)}")
            for h in range(2): a(f"v_pk_add_f32 {P(r+2*h)}, {P(r+2*h)}, {P(o+2*h)}")
            for h in range(2): a(f"v_pk_fma_f32 {P(r+2*h)}, {P(r+2*h)}, {P(32+4*dt+2*h)}, {P(48+4*dt+2*h)}")
            for h in range(2): a(f"v_cvt_pk_bf16_f32 v{112+2*dt+h}, v{r+2*h}, v{r+2*h+1}")
            if dt % 2 == 1:
                b = 112 + 2 * (dt - 1)
                a(f"buffer_store_dwordx4 v[{b}:{b+3}], v7, {OUT}, s60 offen offset:{32*(dt-1)}{getattr(self, 'OUTM', '')}")

def build_split(diag=False):
    g = G(sc=False, diag=diag)
    a = g.a
    S = g.stamp
    hdr = [f"; @launch kernel=k1_kernel grid=(256,1,1) block=(256,1,1) lds=4096"]
    a.raw('.amdgcn_target "amdgcn-amd-amdhsa--gfx950"\n.text')
    g.entry("k1_kernel", [0, 1, 2, 3, 7, 8, 9, 11])
    g.p_loads(); S()
    g.p_kv(0); S()
    g.p_q(2); S()
    g.p_stats(4); S()
    g.p_gemv(5, 0); S()
    g.p_w2(0)
    g.exit("k1_kernel")
    hdr.append("; @launch kernel=k2_kernel grid=(256,1,1) block=(256,1,1) lds=49152")
    g.entry("k2_kernel", [4, 5, 11])
    g.c_ids()
    g.c_filter_load(16); S()
    g.c_filter_prep(16, 2048, 0); S()
    g.c_u_load()
    g.c_epi_load(); S()
    a("s_waitcnt vmcnt(14)"); S()
    g.c_main(14); S()
    g.c_epilogue(2048 + 4 * G.FSZ)
    g.exit("k2_kernel")
    hdr.append("; @launch kernel=k3_kernel grid=(256,1,1) block=(256,1,1) lds=163840")
    g.entry("k3_kernel", [6, 11])
    g.g1_ids()
    g.g1_w1_load(16)
    g.g1_mod_load(32); S()
    a("s_waitcnt vmcnt(0)"); S()
    g.g1_x_load(); S()
    g.g1_prep(32, 0, 32); S()
    g.g1_main(0); S()
    g.g1_epilogue(0)
    g.exit("k3_kernel")
    hdr.append("; @launch kernel=k4_kernel grid=(256,1,1) block=(256,1,1) lds=66560")
    g.entry("k4_kernel", [10, 11])
    g.g2_ids()
    g.g2_epi_load()
    g.g2_w2_load(0, 13)
    a("s_waitcnt vmcnt(40)")
    g.g2_w2_load(13, 14); S()
    a("s_waitcnt vmcnt(16)"); S()
    g.g2_main(); S()
    g.g2_epilogue(0, 65536)
    g.exit("k4_kernel")
    a.raw('.section .rodata,"a"')
    a.raw(desc("k1_kernel", 160, 160))
    a.raw(desc("k2_kernel", 512, 256))
    a.raw(desc("k3_kernel", 256, 256))
    a.raw(desc("k4_kernel", 512, 256))
    return "\n".join(hdr) + "\n" + a.text()

def build_fused(diag=False):
    g = G(sc=True, diag=diag)
    a = g.a
    S = g.stamp
    kn = NAME + "_kernel"
    hdr = ["; @launch grid=(256,1,1) block=(256,1,1) lds=163840"]
    a.raw('.amdgcn_target "amdgcn-amd-amdhsa--gfx950"\n.text')
    TB, FB = 0, 5376
    XI = FB + 4 * G.FSZ
    g.entry(kn, list(range(13)))
    g.nonce_start()
    g.p_loads()
    g.c_ids(); g.g1_ids(); g.g2_ids()
    g.c_filter_load(160); S()
    g.p_kv(8)
    g.p_q(8 + 2)
    g.p_stats(8 + 4)
    g.p_gemv(8 + 5, XI)
    g.p_w2(0); S()
    g.nonce_get()
    g.signal(0, 8); S()
    g.g1_w1_load(100)
    g.c_filter_prep(160, FB, 63); S()
    g.wait_all(0); S()
    g.c_u_load()
    g.c_epi_load()
    NW, K0 = 7, 12
    def hook(n):
        if n == K0 - 1:
            a("s_waitcnt vmcnt(0)")
            g.g2_w2_addr(0)
        if K0 <= n < K0 + 8 * NW and (n - K0) % 2 == 0:
            g.g2_w2_one((n - K0) // 2)
    g.c_main(14, hook); S()
    g.c_epilogue(XI, wait=False)
    g.signal(1, 8); S()
    g.g1_mod_load(32)
    for i in range(4 * NW, 56): g.g2_w2_one(i, "v9")
    g.g1_prep(32, TB, 56 - 4 * NW); S()
    g.wait_all(1); S()
    g.g1_x_load()
    g.g1_main(0); S()
    g.g1_epilogue(TB)
    g.signal(2, 1); S()
    g.g2_epi_load()
    g.wait_group16(2); S()
    g.g2_main(); S()
    g.g2_epilogue(G.WB, 0)
    g.exit(kn)
    a.raw('.section .rodata,"a"')
    a.raw(desc(kn, 512, 256))
    return "\n".join(hdr) + "\n" + a.text()

if __name__ == "__main__":
    mode = sys.argv[2] if len(sys.argv) > 2 else "split"
    diag = sys.argv[3] if len(sys.argv) > 3 else False
    open(sys.argv[1], "w").write(globals()["build_" + mode](diag))
```

```python
import sys, os
OPT = dict(kv.split('=') for kv in os.environ.get('OPT', '').split(',') if kv)
opt = lambda k, d: int(OPT.get(k, d))
from asmlib import Asm, desc, add_pads
from gen import *

WS_W1P, WS_UP = 21 * MB, 23 * MB
WS_HC, WS_HM, WS_TAG = 26 * MB, 27 * MB, 28 * MB
MODP = 3072 * 8
FLAG_A, FLAG_B, FLAG_2, FLAG_3 = WS_FLAG, WS_FLAG + MB, WS_FLAG + 2 * MB, WS_FLAG + 3 * MB
FLAG_W = 25 * MB
HINT = opt('hint', 0)
FL = opt('fl', 7)
P = lambda r: f"v[{r}:{r+1}]"
Q4 = lambda r: f"v[{r}:{r+3}]"

class G2(G):
    NT = " nt" if opt('nt', 1) else ""
    NTF = " nt" if opt('ntf', 1) else ""
    NTQ = " nt" if opt('ntq', 0) else ""
    NTW1 = " nt" if opt('ntw1', 0) else ""
    FB, FSZ, WB = 1536, 7584, 32768
    XI, XI_RS = 1536, 7616
    T_GB, T_U, T_UP = 1536 + 2560, 1536 + 4608, 1536 + 7584 + 2560

    def code_prefetch(self):
        self.a("""
        s_getpc_b64 s[60:61]
        L_pc:
        v_lshlrev_b32 v4, 7, v0
        v_min_u32 v4, L_warm_ret-L_pc, v4
        v_mov_b32 v5, s61
        v_add_co_u32 v4, vcc, s60, v4
        v_addc_co_u32 v5, vcc, 0, v5, vcc
        global_load_dword v253, v[4:5], off
        """)

    def warm(self, *plans):
        if not opt('warm', 1): return
        a = self.a
        self.nwarm = getattr(self, 'nwarm', 0) + 1
        a("s_mov_b64 exec, 0")
        for w, regs in plans:
            lab = f"L_w{self.nwarm}_{w}"
            a(f"s_cmp_lg_u32 {sWV}, {w}\ns_cbranch_scc1 {lab}")
            for r in regs: a(f"s_call_b64 s[98:99], L_reg_{r}")
            a(f"{lab}:")
        a("s_mov_b64 exec, -1")

    def tag_ready(self):
        self.a("s_waitcnt lgkmcnt(0)\ns_add_u32 s80, s80, 0x9e3779b9\ns_add_u32 s81, s81, 0x7f4a7c15")

    def tag_update(self):
        self.a(f"""
        s_or_b32 s60, s2, {sWV}
        s_cmp_lg_u32 s60, 0
        s_cbranch_scc1 L_tag_done
        v_mov_b32 v4, {WS_TAG}
        v_mov_b32 v6, s80
        v_mov_b32 v7, s81
        s_mov_b64 exec, 1
        buffer_store_dwordx2 v[6:7], v4, {WS}, 0 offen
        L_tag_done:
        """)

    def nonce_issue(self, b):
        self.a(f"v_mov_b32 v{b+2}, 0\nbuffer_load_dwordx2 v[{b}:{b+1}], v{b+2}, {DBG}, 0 offen sc1")

    def nonce_finish(self, tag, b):
        self.a(f"""
        s_mov_b32 s62, 0
        L_nonce_{tag}:
        s_waitcnt vmcnt(0)
        v_readfirstlane_b32 s80, v{b}
        v_readfirstlane_b32 s81, v{b+1}
        s_add_u32 s62, s62, 1
        s_cmp_lg_u32 s81, 0
        s_cbranch_scc1 L_nonce_{tag}_ok
        s_cmp_gt_u32 s62, {SPIN}
        s_cbranch_scc1 L_nonce_{tag}_ok
        v_mov_b32 v{b+2}, 0
        buffer_load_dwordx2 v[{b}:{b+1}], v{b+2}, {DBG}, 0 offen sc1
        s_branch L_nonce_{tag}
        L_nonce_{tag}_ok:
        """)

    def flag_store(self, soff, replicas, rstride_log2, b=4):
        self.a(f"""
        v_lshl_add_u32 v{b+2}, v1, {rstride_log2}, {soff}
        v_mov_b32 v{b}, s80
        v_mov_b32 v{b+1}, s81
        s_mov_b64 exec, {(1 << replicas) - 1}
        buffer_store_dwordx2 v[{b}:{b+1}], v{b+2}, {WS}, 0 offen sc1
        s_mov_b64 exec, -1
        """)

    def wide_flag_load(self, va, vd):
        return (f"buffer_load_dwordx2 v[{vd}:{vd+1}], {va}, {WS}, 0 offen sc1\n"
                f"buffer_load_dwordx2 v[{vd+2}:{vd+3}], {va}, {WS}, 0 offen offset:{1 << FL} sc1")

    def verify(self, name, tags, t0, reload):
        a = self.a
        a(f"s_mov_b32 s62, 0\nL_ver_{name}:")
        for op, d in (("max", t0), ("min", t0 + 1)):
            rest = list(tags)
            cur = rest.pop(0)
            while rest:
                if len(rest) >= 2: a(f"v_{op}3_u32 v{d}, v{cur}, v{rest.pop(0)}, v{rest.pop(0)}")
                else: a(f"v_{op}_u32 v{d}, v{cur}, v{rest.pop(0)}")
                cur = d
            if cur != d: a(f"v_mov_b32 v{d}, v{cur}")
        a(f"""
        v_cmp_ne_u32 vcc, s80, v{t0}
        v_cmp_ne_u32 s[60:61], s80, v{t0+1}
        s_or_b64 vcc, vcc, s[60:61]
        s_cbranch_vccz L_ver_{name}_ok
        s_add_u32 s62, s62, 1
        s_cmp_gt_u32 s62, {SPIN}
        s_cbranch_scc1 L_ver_{name}_ok
        """)
        for t in reload: a(t)
        a(f"s_waitcnt vmcnt(0)\ns_branch L_ver_{name}\nL_ver_{name}_ok:")

    def poll(self, tag, wide=False, first_issued=False, va="v4", vd=6, later=0):
        a = self.a
        ld = (self.wide_flag_load(va, vd) if wide else
              f"buffer_load_dwordx2 v[{vd}:{vd+1}], {va}, {WS}, 0 offen sc1")
        a("s_mov_b32 s62, 0")
        if first_issued:
            a(f"s_waitcnt vmcnt({later})\ns_branch L_poll_{tag}_chk")
        a(f"L_poll_{tag}:\n{ld}\ns_waitcnt vmcnt(0)\nL_poll_{tag}_chk:")
        a(f"v_cmp_ne_u64 vcc, s[80:81], v[{vd}:{vd+1}]")
        if wide:
            a(f"v_cmp_ne_u64 s[60:61], s[80:81], v[{vd+2}:{vd+3}]\ns_or_b64 vcc, vcc, s[60:61]")
        a(f"""
        s_add_u32 s62, s62, 1
        s_cbranch_vccz L_poll_{tag}_ok
        s_cmp_gt_u32 s62, {SPIN}
        s_cbranch_scc1 L_poll_{tag}_ok
        s_sleep {opt('sleep', 4)}
        s_branch L_poll_{tag}
        L_poll_{tag}_ok:
        """)

    def tile_off(self, h):
        self.a(f"""
        s_lshl_b32 s60, {sM}, 16
        s_lshl_b32 s61, {sX}, 7
        s_add_u32 s60, s60, s61
        s_lshl_b32 s61, {h}, 15
        s_add_u32 s60, s60, s61
        v_lshrrev_b32 v8, 4, v1
        v_and_b32 v9, 15, v1
        v_lshlrev_b32 v2, 13, v8
        v_lshl_add_u32 v2, v9, 3, v2
        v_add_u32 v2, s60, v2
        v_add_u32 v5, 4096, v2
        """)

    def role_a(self):
        a = self.a
        self.tile_off(sWV)
        a(f"""
        v_subrev_u32 v3, 3072, v2
        s_lshl_b32 s62, {sX}, 9
        v_lshl_add_u32 v56, v9, 5, s62
        buffer_load_dwordx4 v[48:51], v56, {SK}, 0 offen
        buffer_load_dwordx4 v[52:55], v56, {SK}, 0 offen offset:16
        """)
        self.stamp("s")
        for j in range(11):
            base, off = ("v3", j * 1024) if j < 3 else ("v2", (j - 3) * 1024) if j < 7 else ("v5", (j - 7) * 1024)
            a(f"buffer_load_dwordx2 {P(10+2*j)}, {base}, {K}, 0 offen offset:{off}{self.NT}")
        for j in range(8):
            base, off = ("v2", j * 1024) if j < 4 else ("v5", (j - 4) * 1024)
            a(f"buffer_load_dwordx2 {P(32+2*j)}, {base}, {V}, 0 offen offset:{off}{self.NT}")
        self.stamp("s")
        a(f"""
        s_lshl_b32 s60, {sX}, {18 + HINT}
        s_lshl_b32 s61, {sM}, {7 + HINT}
        s_sub_u32 s60, s60, s61
        s_lshl_b32 s61, {sWV}, {6 + HINT}
        s_sub_u32 s60, s60, s61
        s_add_u32 s60, s60, {WS_KVT + 63*(64 << HINT)}
        v_lshlrev_b32 v142, {14 + HINT}, v9
        v_add_u32 v142, s60, v142
        v_sub_u32 v56, 3, v8
        v_lshl_add_u32 v142, v56, 4, v142
        s_movk_i32 s64, {4096 << HINT}
        s_movk_i32 s65, {8192 << HINT}
        s_movk_i32 s66, {12288 << HINT}
        """)
        self.c_ids()
        self.filter_load()
        self.g1_ids(); self.g2_ids()
        self.tag_ready()
        self.stamp("s")
        self.warm((0, ["kv0", "fprep", "ufetch", "conv0"]), (1, ["kv1", "addr", "conv1"]))
        self.stamp(); self.stamp("s")
        a("s_waitcnt vmcnt(8)")
        self.stamp(); self.stamp("s")
        for p in range(2):
            a.region(f"kv{p}")
            s0, s1 = 48 + 4 * p, 50 + 4 * p
            a(f"""
            v_lshlrev_b32 v102, 16, v{s0}
            v_lshlrev_b32 v103, 16, v{s1}
            v_and_b32 v104, 0xffff0000, v{s0}
            v_and_b32 v105, 0xffff0000, v{s1}
            v_lshlrev_b32 v106, 16, v{s0+1}
            v_lshlrev_b32 v107, 16, v{s1+1}
            v_and_b32 v108, 0xffff0000, v{s0+1}
            v_and_b32 v109, 0xffff0000, v{s1+1}
            """)
            for j in range(11):
                a(f"v_lshlrev_b32 v{80+2*j}, 16, v{10+2*j+p}\nv_and_b32 v{81+2*j}, 0xffff0000, v{10+2*j+p}")
            for i in range(8):
                a(f"v_lshlrev_b32 v{126+2*i}, 16, v{32+2*i+p}\nv_and_b32 v{127+2*i}, 0xffff0000, v{32+2*i+p}")
            for i in range(8): a(f"v_pk_mul_f32 {P(110+2*i)}, {P(80+2*i)}, {P(108)}")
            for i in range(8): a(f"v_pk_fma_f32 {P(110+2*i)}, {P(82+2*i)}, {P(106)}, {P(110+2*i)}")
            for i in range(8): a(f"v_pk_fma_f32 {P(110+2*i)}, {P(84+2*i)}, {P(104)}, {P(110+2*i)}")
            for i in range(8): a(f"v_pk_fma_f32 {P(110+2*i)}, {P(86+2*i)}, {P(102)}, {P(110+2*i)}")
            for i in range(8): a(f"v_pk_mul_f32 {P(110+2*i)}, {P(110+2*i)}, {P(126+2*i)}")
            o = 144 + 8 * p
            for j in range(4):
                a(f"v_cvt_pk_bf16_f32 v{o+j}, v{110+2*(7-2*j)}, v{110+2*(6-2*j)}")
                a(f"v_cvt_pk_bf16_f32 v{o+4+j}, v{111+2*(7-2*j)}, v{111+2*(6-2*j)}")
            so = ("0", "s64") if p == 0 else ("s65", "s66")
            a(f"buffer_store_dwordx4 {Q4(o)}, v142, {WS}, {so[0]} offen sc1\nbuffer_store_dwordx4 {Q4(o+4)}, v142, {WS}, {so[1]} offen sc1")
            for c in range(2 * HINT):
                r, x = o + 4 * c, 56 + 2 * p + c
                a(f"v_bitop3_b32 v{x}, v{r}, v{r+1}, v{r+2} bitop3:0x96\nv_xor_b32 v{x}, v{x}, v{r+3}")
        for sw in (("16", "32") if HINT else ()):
            for c in range(4): a(f"v_mov_b32 v{60+c}, v{56+c}")
            for c in range(4): a(f"v_permlane{sw}_swap_b32 v{56+c}, v{60+c}")
            for c in range(4): a(f"v_xor_b32 v{56+c}, v{56+c}, v{60+c}" if sw == "16" else f"v_bitop3_b32 v{56+c}, v{56+c}, v{60+c}, s80 bitop3:0x96")
        for so in (("0", "s64", "s65", "s66") if HINT else ()): a(f"buffer_store_dwordx4 v[56:59], v142, {WS}, {so} offen offset:64 sc1")
        self.stamp()

    def w1_touch(self, j):
        self.a(f"""
        s_lshl_b32 s60, {sM}, 1
        s_add_u32 s60, s60, {sWV}
        s_mul_i32 s60, s60, {8*3584}
        s_and_b32 s61, {sX}, 1
        s_mul_i32 s61, s61, 1792
        s_add_u32 s60, s60, s61
        s_movk_i32 s61, 4682
        v_add_u32 v250, {64*j}, v1
        v_min_u32 v250, 111, v250
        v_mul_u32_u24 v251, s61, v250
        v_lshrrev_b32 v251, 16, v251
        v_mul_u32_u24 v251, {3584 - 14*128}, v251
        v_lshl_add_u32 v251, v250, 7, v251
        buffer_load_dword v{248+j}, v251, {W1}, s60 offen{self.NTW1}
        """)

    def flag_a(self):
        a = self.a
        a(f"""
        s_lshl_b32 s60, {sX}, 5
        s_add_u32 s60, s60, {sM}
        s_lshl_b32 s60, s60, 1
        s_add_u32 s60, s60, {sWV}
        s_lshl_b32 s60, s60, {self.FA_LOG}
        s_add_u32 s60, s60, {FLAG_A}
        """)
        self.flag_store("s60", 1, 3, 250)
    FA_LOG = FL

    def filter_load(self):
        a = self.a
        a("s_lshl_b32 s60, s68, 12\nv_lshl_add_u32 v4, v1, 4, s60")
        for i in range(4):
            r = 176 + 8 * i
            a(f"buffer_load_dwordx4 {Q4(r)}, v4, {FK}, 0 offen offset:{1024*i}{self.NTF}")
            a(f"buffer_load_dwordx2 {P(r+4)}, v4, {FK}, 0 offen offset:{1024*i+16}{self.NTF}")

    def role_b_loads(self):
        a = self.a
        a(f"s_sub_u32 s6, {sWV}, 2")
        self.c_ids()
        self.filter_load()
        self.g1_ids(); self.g2_ids()

    def role_b_loads_gemv(self):
        a = self.a
        a(f"""
        v_lshrrev_b32 v8, 2, v1
        v_and_b32 v14, 3, v1
        s_and_b32 s60, s2, 3
        s_lshl_b32 s60, s60, 7
        v_lshl_add_u32 v2, v8, 3, s60
        v_lshlrev_b32 v3, 1, v2
        buffer_load_dwordx4 v[168:171], v3, {C}, 0 offen
        s_movk_i32 s61, 6144
        v_mul_lo_u32 v3, v2, s61
        v_lshl_add_u32 v3, v14, 4, v3
        s_lshr_b32 s60, s2, 2
        s_lshl_b32 s60, s60, 7
        s_lshl_b32 s61, s6, 6
        s_add_u32 s60, s60, s61
        s_cmp_ge_u32 s2, 192
        s_cselect_b32 s60, 0x40000000, s60
        """)
        for j in range(8):
            a(f"buffer_load_dwordx4 {Q4(16+4*j)}, v3, {WM}, s60 offen{self.NT}")
            if j < 7: a("s_add_u32 s60, s60, 6144")

    def role_b_loads2(self):
        a = self.a
        a(f"""
        s_lshl_b32 s60, s2, 13
        s_lshl_b32 s61, s6, 12
        s_add_u32 s60, s60, s61
        v_lshrrev_b32 v3, 4, v1
        v_lshlrev_b32 v3, 10, v3
        v_and_b32 v4, 15, v1
        v_lshl_add_u32 v3, v4, 4, v3
        """)
        for j in range(4): a(f"buffer_load_dwordx4 {Q4(48+4*j)}, v3, {Q}, s60 offen offset:{256*j}{self.NTQ}")

    def unit_addr(self):
        self.a(f"""
        s_lshl_b32 s61, s2, 1
        s_and_b32 s60, {sWV}, 1
        s_add_u32 s60, s60, s61
        s_lshr_b32 s20, s60, 3
        s_and_b32 s21, s60, 7
        s_mul_i32 s61, s20, 37
        s_lshr_b32 s61, s61, 8
        s_mul_i32 s62, s61, 7
        s_sub_u32 s62, s20, s62
        s_mul_i32 s61, s61, 224
        s_lshl_b32 s63, s62, 5
        s_add_u32 s22, s63, 16
        s_cmp_ge_u32 s62, 3
        s_cselect_b32 s63, s22, s63
        s_movk_i32 s22, {16*1024}
        s_cmp_eq_u32 s62, 6
        s_cselect_b32 s63, 96, s63
        s_cselect_b32 s22, {112*1024}, s22
        s_add_u32 s61, s61, s63
        s_lshl_b32 s61, s61, 10
        s_lshl_b32 s62, s21, 7
        s_add_u32 s61, s61, s62
        s_cmp_ge_u32 s60, 448
        s_cselect_b32 s23, 0x40000000, s61
        v_lshrrev_b32 v169, 2, v1
        v_lshlrev_b32 v169, 10, v169
        v_and_b32 v5, 3, v1
        v_lshl_add_u32 v169, v5, 4, v169
        """)

    def q_rows(self):
        a = self.a
        a(f"""
        s_cmp_eq_u32 {sWV}, 0
        s_cselect_b32 s60, s71, s72
        s_lshl_b32 s60, s60, 19
        s_lshr_b32 s61, s70, 1
        s_lshl_b32 s61, s61, 4
        s_add_u32 s60, s60, s61
        s_lshl_b32 s61, {sWV}, 13
        v_lshlrev_b32 v5, 10, v1
        """)
        for i in range(8):
            a(f"s_add_u32 m0, s61, {self.QS + 1024*i}")
            a(f"buffer_load_dwordx4 v5, {Q}, s60 offen lds")
            if i < 7: a("s_add_u32 s60, s60, 65536")

    def side_inputs(self):
        a = self.a
        a(f"""
        v_lshrrev_b32 v5, 1, v1
        v_mul_u32_u24 v5, 3584, v5
        v_and_b32 v6, 1, v1
        v_lshl_add_u32 v5, v6, 4, v5
        s_and_b32 s60, s2, 15
        s_mul_i32 s60, s60, 224
        s_lshr_b32 s61, s2, 4
        s_mul_i32 s61, s61, {32*3584}
        s_add_u32 s60, s60, s61
        s_lshl_b32 s61, {sWV}, 5
        s_add_u32 s60, s60, s61
        s_lshl_b32 s61, {sWV}, 11
        s_add_u32 m0, s61, {self.W1S}
        buffer_load_dwordx4 v5, {W1}, s60 offen{self.NTW1} lds
        s_add_u32 m0, s61, {self.W1S + 1024 - 128}
        buffer_load_dwordx4 v5, {W1}, s60 offen offset:128{self.NTW1} lds
        s_cmp_lt_u32 {sWV}, 2
        s_cselect_b32 s60, s71, s72
        s_lshl_b32 s60, s60, 4
        s_and_b32 s61, {sWV}, 1
        s_lshl_b32 s61, s61, 3
        s_add_u32 s43, s60, s61
        s_lshl_b32 s60, s43, 5
        v_lshl_add_u32 v5, v3, 5, v2
        v_add_u32 v5, s60, v5
        v_lshlrev_b32 v159, 4, v5
        v_add_u32 v159, {WS_STAT}, v159
        s_lshl_b32 s60, s68, 1
        v_mov_b32 v5, s60
        buffer_load_ushort v126, v5, {SD}, 0 offen
        """)

    def w2_unit_load(self):
        a = self.a
        self.unit_addr()
        a(f"s_lshl_b32 s61, s6, 12\ns_add_u32 s62, s23, s22")
        for c in range(2):
            for i in range(2):
                a(f"s_add_u32 m0, s61, {self.W2S + 2048*c + 1024*i - 64*c}")
                a(f"buffer_load_dwordx4 v169, {W2}, {'s23' if i == 0 else 's62'} offen offset:{64*c}{self.NT} lds")

    def w2_unit_pack(self, later):
        a = self.a
        a(f"""
        s_lshl_b32 s61, s6, 12
        s_add_u32 s60, s61, {self.W2S}
        v_lshrrev_b32 v10, 2, v1
        v_lshl_add_u32 v11, v3, 2, v10
        s_cmp_eq_u32 s22, {112*1024}
        s_cselect_b64 vcc, -1, 0
        s_movk_i32 s61, 1024
        s_cselect_b32 s61, 256, s61
        v_cndmask_b32 v10, v10, v11, vcc
        v_lshlrev_b32 v10, 6, v10
        v_and_b32 v11, 3, v1
        v_lshl_add_u32 v10, v11, 4, v10
        v_add_u32 v10, s60, v10
        v_add_u32 v11, s61, v10
        v_lshlrev_b32 v12, 4, v1
        s_mul_i32 s63, s21, 56
        s_add_u32 s63, s63, s20
        s_lshl_b32 s63, s63, 12
        s_add_u32 s63, s63, {WS_W2P}
        s_cmp_ge_u32 s20, 56
        s_cselect_b32 s63, 0x40000000, s63
        s_waitcnt vmcnt({later})
        """)
        for dt in range(4):
            o = 2048 * (dt >> 1) + 8 * (dt & 1)
            a(f"ds_read_b64_tr_b16 {P(16+4*dt)}, v10 offset:{o}\nds_read_b64_tr_b16 {P(18+4*dt)}, v11 offset:{o}")
        a("s_waitcnt lgkmcnt(0)")
        for dt in range(4): a(f"buffer_store_dwordx4 {Q4(16+4*dt)}, v12, {WS}, s63 offen offset:{1024*dt} sc1")

    CSZ = 4160
    QS = 32768 + 69632
    W1S = 32768 + 112640
    W2S = 32768 + 120832
    GVS = 32768 + 129024
    def filter_copies(self):
        a = self.a
        a(f"""
        s_mul_i32 s60, {sWV}, {4*self.CSZ}
        s_add_u32 s60, s60, {self.WB}
        v_lshl_add_u32 v4, v1, 4, s60
        v_mov_b32 v100, 0
        v_mov_b32 v101, 0
        v_mov_b32 v102, 0
        v_mov_b32 v103, 0
        s_mov_b64 s[62:63], exec
        s_mov_b64 exec, 15
        """)
        for c in range(4): a(f"ds_write_b128 v4, v[100:103] offset:{c*self.CSZ}")
        a("s_mov_b64 exec, s[62:63]")
        for cc in range(1):
            for i in range(4):
                r = 176 + 8 * (4 * cc + i)
                t = 104 + 12 * (i % 2)
                o = cc * 4 * self.CSZ + 64 + 1024 * i
                pass
                a(f"ds_write_b128 v4, {Q4(r)} offset:{o}")
                for j in range(4): a(f"v_alignbit_b32 v{t+j}, v{r+j+1}, v{r+j}, 16")
                for j in range(4): a(f"v_mov_b32 v{t+4+j}, v{r+j+1}")
                for j in range(4): a(f"v_alignbit_b32 v{t+8+j}, v{r+j+2}, v{r+j+1}, 16")
                for k in range(3): a(f"ds_write_b128 v4, {Q4(t+4*k)} offset:{o + (k+1)*self.CSZ}")
                if i == 0:
                    a(f"""
                    v_lshlrev_b32 v128, 16, v{r}
                    s_mov_b64 exec, 1
                    ds_write_b32 v4, v128 offset:{o + self.CSZ - 4}
                    ds_write_b32 v4, v{r} offset:{o + 2*self.CSZ - 4}
                    ds_write_b32 v4, v128 offset:{o + 3*self.CSZ - 8}
                    ds_write_b32 v4, v{t} offset:{o + 3*self.CSZ - 4}
                    s_mov_b64 exec, s[62:63]
                    """)

    def role_b_rest(self, later, after_wait=None):
        a = self.a
        self.stamp("b")
        a(f"s_waitcnt vmcnt({later + 12})")
        for j in range(4): a(f"v_lshlrev_b32 v{100+2*j}, 16, v{168+j}\nv_and_b32 v{101+2*j}, 0xffff0000, v{168+j}")
        for j in range(8): a(f"v_mul_f32 v{108+j}, {NLOG2E}, v{100+j}")
        for j in range(8): a(f"v_exp_f32 v{108+j}, v{108+j}")
        for j in range(8): a(f"v_add_f32 v{108+j}, 1.0, v{108+j}")
        for j in range(8): a(f"v_rcp_f32 v{108+j}, v{108+j}")
        for j in range(8): a(f"v_mul_f32 v{108+j}, v{100+j}, v{108+j}")
        for j in range(4): a(f"v_cvt_pk_bf16_f32 v{100+j}, v{108+2*j}, v{109+2*j}")
        for j in range(4): a(f"v_lshlrev_b32 v{108+2*j}, 16, v{100+j}\nv_and_b32 v{109+2*j}, 0xffff0000, v{100+j}")
        self.stamp("b")
        a(f"s_waitcnt vmcnt({later + 4})")
        if after_wait: after_wait()
        self.stamp("b")
        for j in range(8):
            for e in range(4):
                a(f"v_lshlrev_b32 v{116+2*e}, 16, v{16+4*j+e}\nv_and_b32 v{117+2*e}, 0xffff0000, v{16+4*j+e}")
            sel = "op_sel_hi:[1,0,1]" if j % 2 == 0 else "op_sel:[0,1,0] op_sel_hi:[1,1,1]"
            for e in range(4):
                if j == 0: a(f"v_pk_mul_f32 {P(124+2*e)}, {P(116+2*e)}, {P(108)} op_sel_hi:[1,0]")
                else: a(f"v_pk_fma_f32 {P(124+2*e)}, {P(116+2*e)}, {P(108+2*(j//2))}, {P(124+2*e)} {sel}")
        for n in (4, 8):
            for e in range(8): a(f"v_add_f32_dpp v{124+e}, v{124+e}, v{124+e} row_ror:{n} row_mask:0xf bank_mask:0xf")
        a(f"""
        s_lshl_b32 s60, s6, 9
        s_add_u32 s60, s60, {self.GVS}
        v_lshl_add_u32 v116, v3, 7, s60
        v_and_b32 v117, 3, v1
        v_lshl_add_u32 v116, v117, 5, v116
        ds_write_b128 v116, v[124:127]
        ds_write_b128 v116, v[128:131] offset:16
        v_and_b32 v117, 31, v1
        v_lshlrev_b32 v117, 2, v117
        v_add_u32 v116, s60, v117
        ds_read_b32 v120, v116
        ds_read_b32 v121, v116 offset:128
        ds_read_b32 v122, v116 offset:256
        ds_read_b32 v123, v116 offset:384
        s_waitcnt vmcnt({self.n_after})
        s_and_b32 s60, s2, 3
        s_mul_i32 s60, s60, {MODP}
        s_lshr_b32 s61, s2, 2
        s_lshl_b32 s61, s61, 9
        s_add_u32 s60, s60, s61
        s_lshl_b32 s61, s6, 8
        s_add_u32 s60, s60, s61
        s_add_u32 s60, s60, {WS_MOD}
        s_cmp_ge_u32 s2, 192
        s_cselect_b32 s60, 0x40000000, s60
        v_lshlrev_b32 v117, 1, v117
        s_waitcnt lgkmcnt(0)
        v_add_f32 v120, v120, v121
        v_add_f32 v122, v122, v123
        v_add_f32 v120, v120, v122
        v_mov_b32 v121, s80
        s_mov_b32 exec_hi, 0
        buffer_store_dwordx2 v[120:121], v117, {WS}, s60 offen sc1
        s_mov_b32 exec_hi, -1
        """)
        self.stamp("b")
        a.region("brest1")
        self.role_b_tail()

    def role_b_tail(self):
        a = self.a
        for j in range(16): a(f"v_lshlrev_b32 v{100+2*j}, 16, v{48+j}\nv_and_b32 v{101+2*j}, 0xffff0000, v{48+j}")
        for j in range(8): a(f"v_pk_add_f32 {P(132+2*j)}, {P(100+4*j)}, {P(102+4*j)}")
        for st in (4, 2, 1):
            for j in range(st): a(f"v_pk_add_f32 {P(132+2*j)}, {P(132+2*j)}, {P(132+2*(j+st))}")
        a("v_add_f32 v132, v132, v133")
        for n in (8, 4, 2, 1): a(f"v_add_f32_dpp v132, v132, v132 row_ror:{n} row_mask:0xf bank_mask:0xf")
        a("v_mul_f32 v148, 0xbb000000, v132")
        for j in range(16): a(f"v_pk_add_f32 {P(100+2*j)}, {P(100+2*j)}, {P(148)} op_sel_hi:[1,0]")
        for j in range(4): a(f"v_pk_mul_f32 {P(132+2*j)}, {P(100+2*j)}, {P(100+2*j)}")
        for j in range(4, 16): a(f"v_pk_fma_f32 {P(132+2*(j&3))}, {P(100+2*j)}, {P(100+2*j)}, {P(132+2*(j&3))}")
        a(f"v_pk_add_f32 {P(132)}, {P(132)}, {P(134)}\nv_pk_add_f32 {P(136)}, {P(136)}, {P(138)}\nv_pk_add_f32 {P(132)}, {P(132)}, {P(136)}\nv_add_f32 v132, v132, v133")
        for n in (8, 4, 2, 1): a(f"v_add_f32_dpp v132, v132, v132 row_ror:{n} row_mask:0xf bank_mask:0xf")
        a(f"""
        v_mov_b32 v133, 0x3727c5ac
        v_fmac_f32 v133, 0x3b000000, v132
        v_rsq_f32 v136, v133
        s_lshl_b32 s60, s2, 7
        s_lshl_b32 s61, s6, 6
        s_add_u32 s60, s60, s61
        s_add_u32 s60, s60, {WS_STAT}
        v_mov_b32 v137, s80
        v_mov_b32 v139, s80
        v_mul_f32 v138, v148, v136
        v_lshlrev_b32 v134, 4, v3
        s_mov_b32 exec_lo, 0x00010001
        s_mov_b32 exec_hi, 0x00010001
        buffer_store_dwordx4 v[136:139], v134, {WS}, s60 offen sc1
        s_mov_b64 exec, -1
        """)

    def flag_m(self, later):
        a = self.a
        a(f"""
        s_waitcnt vmcnt({later})
        s_lshl_b32 s60, s2, 1
        s_add_u32 s60, s60, s6
        s_lshl_b32 s60, s60, {FL}
        s_add_u32 s60, s60, {FLAG_B}
        """)
        self.flag_store("s60", 8, 9 + FL, 250)

    def filter_prep(self, mid):
        a = self.a
        a(f"""
        s_mul_i32 s73, {sWV}, {self.FSZ}
        s_add_u32 s73, s73, {self.FB}
        v_and_b32 v2, 15, v1
        v_lshrrev_b32 v3, 4, v1
        v_lshl_add_u32 v4, v1, 4, s73
        v_mov_b32 v6, 0
        v_mov_b32 v7, 0
        v_mov_b32 v8, 0
        v_mov_b32 v9, 0
        v_add_u32 v5, 1, v2
        v_and_b32 v10, 3, v5
        v_mul_u32_u24 v10, {self.CSZ}, v10
        v_and_b32 v5, 28, v5
        v_lshl_add_u32 v5, v5, 1, v10
        v_and_b32 v10, 1, v3
        v_lshl_add_u32 v5, v10, 4, v5
        s_mul_i32 s60, {sWV}, {4*self.CSZ}
        s_add_u32 s60, s60, {self.WB}
        v_add_u32 v5, s60, v5
        v_lshrrev_b32 v10, 1, v3
        s_add_u32 s60, s71, 1
        s_lshl_b32 s60, s60, 9
        s_add_u32 s61, s72, 1
        s_lshl_b32 s61, s61, 9
        v_mad_u32_u24 v11, v10, s60, v5
        v_mad_u32_u24 v12, v10, s61, v5
        v_add_u32 v15, s60, v11
        v_subrev_u32 v12, s60, v12
        s_cmp_eq_u32 s69, 0
        s_cselect_b64 vcc, -1, 0
        v_cndmask_b32 v13, v11, v12, vcc
        """)
        for n in range(81):
            if n == opt('fa', 10): mid()
            b = "v11" if n < 16 else "v13" if n < 32 else "v12"
            a(f"ds_read_b64 {self.Fhalf(n,0)}, {b} offset:{32*n}")
            a(f"ds_read_b64 {self.Fhalf(n,1)}, {b} offset:{32*n+8}")
        a("ds_read_b64 v[244:245], v15\nds_read_b64 v[246:247], v15 offset:8")
        a(f"ds_write_b128 v4, v[6:9] offset:6144\ns_mov_b64 exec, {(1 << 26) - 1}\nds_write_b128 v4, v[6:9] offset:7168\ns_mov_b64 exec, -1")
        a(f"""
        v_sub_u32 v5, 63, v2
        v_mul_u32_u24 v5, 96, v5
        v_add_u32 v5, s73, v5
        s_mul_i32 s60, s71, {16*96}
        s_mul_i32 s61, s72, {16*96}
        v_subrev_u32 v156, s60, v5
        v_subrev_u32 v157, s61, v5
        v_and_b32 v6, 1, v3
        v_lshlrev_b32 v6, 4, v6
        v_lshrrev_b32 v7, 1, v3
        s_add_u32 s60, s71, 1
        s_mul_i32 s60, s60, 768
        s_add_u32 s61, s72, 1
        s_mul_i32 s61, s61, 768
        v_mad_u32_u24 v80, v7, s60, v156
        v_mad_u32_u24 v82, v7, s61, v157
        v_add_u32 v80, v80, v6
        v_add_u32 v82, v82, v6
        v_subrev_u32 v82, s60, v82
        s_cmp_eq_u32 s69, 0
        s_cselect_b64 vcc, -1, 0
        v_cndmask_b32 v81, v80, v82, vcc
        v_lshlrev_b32 v6, 3, v3
        v_sub_u32 v6, 24, v6
        v_add_u32 v156, v156, v6
        v_add_u32 v157, v157, v6
        """)

    def u_fetch(self, early):
        a = self.a
        a("s_movk_i32 s60, 10923")
        for j in range(3):
            a(f"""
            v_add_u32 v10, {64*j}, v1
            v_mul_u32_u24 v11, s60, v10
            v_lshrrev_b32 v11, 16, v11
            v_mul_u32_u24 v12, 6, v11
            v_sub_u32 v10, v10, v12
            v_min_u32 v10, {3 + HINT}, v10
            v_lshlrev_b32 v10, 4, v10
            v_lshl_add_u32 v{16+j}, v11, {6 + HINT}, v10
            """)
        a(f"""
        s_lshl_b32 s64, s70, 2
        s_lshl_b32 s61, {sWV}, 1
        s_add_u32 s64, s64, s61
        s_lshl_b32 s64, s64, {12 + HINT}
        s_add_u32 s64, s64, {WS_KVT}
        s_mul_i32 s65, {sWV}, {2*self.FSZ}
        s_add_u32 s65, s65, {self.FB}
        v_mul_u32_u24 v19, 96, v1
        v_add_u32 v19, s65, v19
        s_lshl_b32 s61, {sWV}, 3
        v_add_u32 v15, s61, v19
        s_mov_b32 s67, 0
        """)
        def dma():
            for cc in range(2):
                for j in range(6):
                    if j % 3 == 0: a(f"s_add_u32 s66, s64, {(4096*cc + 2048*(j//3)) << HINT}")
                    a(f"s_add_u32 m0, s65, {cc*self.FSZ + 1024*j}")
                    a(f"buffer_load_dwordx4 v{16 + j%3}, {WS}, s66 offen sc1 lds")
        for i in range(opt('psa', 0)): a("s_sleep 4")
        QF = opt('qfirst', 1)
        if opt('qp', 2) == 2: self.q_rows()
        a(f"""
        s_lshl_b32 s60, {sX}, {6 + self.FA_LOG}
        s_add_u32 s60, s60, {FLAG_A}
        v_lshl_add_u32 v4, v1, {self.FA_LOG}, s60
        """)
        self.poll("A")
        self.stamp()
        dma()
        self.side_inputs()
        if not QF: self.q_rows()
        a(f"s_waitcnt vmcnt({3 if QF else 11})")
        if not HINT: return
        a("L_u_check:")
        for cc in range(2):
            for j in range(4): a(f"ds_read_b128 {Q4(20+20*cc+4*j)}, v19 offset:{cc*self.FSZ + 16*j}")
            a(f"ds_read_b32 v{36+20*cc}, v15 offset:{cc*self.FSZ + 64 + 4*cc}")
        for cc in range(2):
            a(f"s_waitcnt lgkmcnt({5 - 5*cc})")
            r = 20 + 20 * cc
            a(f"v_bitop3_b32 v{10+cc}, v{r}, v{r+1}, v{r+2} bitop3:0x96")
            for j in range(7): a(f"v_bitop3_b32 v{10+cc}, v{10+cc}, v{r+3+2*j}, v{r+4+2*j} bitop3:0x96")
        a(f"""
        v_cmp_ne_u32 vcc, s80, v10
        v_cmp_ne_u32 s[60:61], s80, v11
        s_or_b64 vcc, vcc, s[60:61]
        s_cbranch_vccz L_u_ok
        s_add_u32 s67, s67, 1
        s_cmp_gt_u32 s67, {SPIN}
        s_cbranch_scc1 L_u_ok
        """)
        dma()
        a("s_waitcnt vmcnt(0)\ns_branch L_u_check\nL_u_ok:")

    def conv_main(self, hook):
        a = self.a
        D = 6
        off = lambda n: 96 * (n >> 1) + 32 * (n & 1)
        base = lambda n: "v80" if n < 16 else "v81" if n < 32 else "v82"
        Br = lambda n: Q4(48 + 4 * (n % 8))
        def rd(n):
            if n < 80: a(f"ds_read_b128 {Br(n)}, {base(n)} offset:{off(n)}")
        def step(n, c0="v[84:87]", c1="v[88:91]", d0="v[84:87]", d1="v[88:91]", a1=None):
            rd(n + D)
            a(f"s_waitcnt lgkmcnt({min(D, 79 - n)})")
            a(f"v_mfma_f32_16x16x32_bf16 {d0}, {self.Freg(n)}, {Br(n)}, {c0}")
            a(f"v_mfma_f32_16x16x32_bf16 {d1}, {a1 or self.Freg(n+1)}, {Br(n)}, {c1}")
        for n in range(D): rd(n)
        def boundary(n, ty):
            a(f"s_cmp_eq_u32 s69, {ty}\ns_cbranch_scc0 L_cb{n}_no")
            h = list(a.hist)
            step(n, d0="v[92:95]", d1="v[96:99]", a1="v[244:247]")
            step(n + 1, c0="0", c1="0")
            a(f"s_branch L_cb{n}_done\nL_cb{n}_no:")
            a.hist = h
            step(n); step(n + 1)
            a(f"L_cb{n}_done:")
            hook(n); hook(n + 1)
        step(0, c0="0", c1="0"); hook(0)
        for n in range(1, 15): step(n); hook(n)
        boundary(15, 0)
        for n in range(17, 31): step(n); hook(n)
        boundary(31, 1)
        for n in range(33, 80): step(n); hook(n)

    def epi_addr(self):
        self.a(f"""
        v_and_b32 v161, 3, v1
        s_movk_i32 s60, {MODP}
        v_mul_u32_u24 v161, s60, v161
        v_bfe_u32 v5, v1, 2, 2
        v_lshl_add_u32 v161, v5, 12, v161
        v_lshl_add_u32 v161, v3, 3, v161
        s_lshl_b32 s60, s70, 5
        s_add_u32 s60, s60, {WS_MOD}
        v_add_u32 v161, s60, v161
        s_lshl_b32 s60, {sX}, 9
        s_mul_i32 s61, {sWV}, 112
        s_add_u32 s60, s60, s61
        s_add_u32 s60, s60, s77
        s_lshl_b32 s60, s60, {FL}
        s_add_u32 s60, s60, {FLAG_B}
        v_min_u32 v5, 13, v1
        v_lshl_add_u32 v248, v5, {FL + 3}, s60
        """)

    def epi_load_list(self):
        L = [f"buffer_load_dwordx2 v[124:125], v161, {WS}, 0 offen sc1"]
        for i in range(4):
            L.append(f"buffer_load_dwordx4 {Q4(108+4*i)}, v159, {WS}, 0 offen offset:{2048*(i>>1) + 256*(i&1)} sc1")
        return L

    def conv_epilogue(self):
        a = self.a
        xi, RS = self.XI, self.XI_RS
        for sl in range(2):
            for t in range(2):
                a(f"ds_read_b64 {P(140+4*sl+2*t)}, v{156+sl} offset:{32-32*t}")
        self.verify("e", [125] + [109 + 2*i for i in range(8)], 150, self.epi_load_list())
        a(f"""
        v_add_f32_dpp v124, v124, v124 quad_perm:[1,0,3,2] row_mask:0xf bank_mask:0xf
        v_add_f32_dpp v124, v124, v124 quad_perm:[2,3,0,1] row_mask:0xf bank_mask:0xf
        s_lshl_b32 s60, {sWV}, 4
        s_add_u32 s60, s60, 8
        v_cvt_pk_bf16_f32 v124, v124, v124
        v_and_b32 v124, 0xffff0000, v124
        v_add_f32 v125, 1.0, v124
        v_cvt_pk_bf16_f32 v125, v125, v125
        v_and_b32 v125, 0xffff0000, v125
        v_readlane_b32 s61, v124, s60
        v_lshlrev_b32 v148, 16, v126
        s_mul_i32 s60, {sWV}, {RS}
        s_add_u32 s60, s60, {xi}
        v_mul_u32_u24 v4, 144, v3
        v_lshl_add_u32 v4, v2, 3, v4
        v_add_u32 v4, s60, v4
        v_mov_b32 v149, s61
        s_waitcnt lgkmcnt(0)
        """)
        for sl in range(2):
            for t in range(2):
                i = 2 * sl + t
                acc = (92 if sl == 0 else 84) + 4 * t
                kv, w = 140 + 2 * i, 160 + 4 * (i & 1)
                a(f"""
                v_and_b32 v{w}, 0xffff0000, v{kv+1}
                v_lshlrev_b32 v{w+1}, 16, v{kv+1}
                v_and_b32 v{w+2}, 0xffff0000, v{kv}
                v_lshlrev_b32 v{w+3}, 16, v{kv}
                v_pk_fma_f32 {P(w)}, {P(w)}, {P(148)}, {P(acc)} op_sel_hi:[1,0,1]
                v_pk_fma_f32 {P(w+2)}, {P(w+2)}, {P(148)}, {P(acc+2)} op_sel_hi:[1,0,1]
                v_pk_mul_f32 {P(w)}, {P(w)}, {P(148)} op_sel:[0,1] op_sel_hi:[1,1]
                v_pk_mul_f32 {P(w+2)}, {P(w+2)}, {P(148)} op_sel:[0,1] op_sel_hi:[1,1]
                v_cvt_pk_bf16_f32 v{168+2*(i&1)}, v{w}, v{w+1}
                v_cvt_pk_bf16_f32 v{169+2*(i&1)}, v{w+2}, v{w+3}
                ds_write_b64 v4, {P(168+2*(i&1))} offset:{1152*sl + 576*t}
                """)
        a(f"""
        s_lshr_b32 s60, {sWV}, 1
        s_and_b32 s61, {sWV}, 1
        s_mul_i32 s62, s60, 1152
        s_lshl_b32 s63, s61, 6
        s_add_u32 s62, s62, s63
        s_add_u32 s62, s62, {xi}
        v_bfe_u32 v5, v1, 2, 2
        v_mul_u32_u24 v5, {RS}, v5
        v_and_b32 v6, 3, v1
        v_mul_u32_u24 v6, 144, v6
        v_add3_u32 v5, v5, v6, s62
        v_lshl_add_u32 v5, v3, 3, v5
        s_lshl_b32 s60, {sWV}, 12
        s_and_b32 s61, s70, 1
        s_lshl_b32 s61, s61, 3
        s_add_u32 s60, s60, s61
        s_add_u32 s60, s60, {self.QS}
        v_lshl_add_u32 v6, v3, 5, v2
        v_lshl_add_u32 v6, v6, 4, s60
        s_waitcnt lgkmcnt(0)
        s_barrier
        ds_read_b64 v[100:101], v6
        ds_read_b64 v[102:103], v6 offset:256
        ds_read_b64 v[104:105], v6 offset:2048
        ds_read_b64 v[106:107], v6 offset:2304
        ds_read_b64_tr_b16 v[160:161], v5
        ds_read_b64_tr_b16 v[162:163], v5 offset:576
        ds_read_b64_tr_b16 v[164:165], v5 offset:32
        ds_read_b64_tr_b16 v[166:167], v5 offset:{576+32}
        """)
        for c in range(4):
            a(f"v_readlane_b32 s{60+c}, v125, {16*c+4}")
            a(f"v_readlane_b32 s{64+c}, v124, {16*c}")
        for c in range(4): a(f"v_mov_b32 v{128+c}, s{60+c}\nv_mov_b32 v{132+c}, s{64+c}")
        a("s_waitcnt lgkmcnt(4)")
        for i in range(4):
            q, A, u = 100 + 2 * i, 108 + 4 * i, 64 + 8 * i
            a(f"""
            v_lshlrev_b32 v{u}, 16, v{q}
            v_and_b32 v{u+1}, 0xffff0000, v{q}
            v_lshlrev_b32 v{u+2}, 16, v{q+1}
            v_and_b32 v{u+3}, 0xffff0000, v{q+1}
            v_pk_fma_f32 {P(u+4)}, {P(u)}, {P(A)}, {P(A+2)} op_sel_hi:[1,0,0]
            v_pk_fma_f32 {P(u+6)}, {P(u+2)}, {P(A)}, {P(A+2)} op_sel_hi:[1,0,0]
            v_pk_fma_f32 {P(u+4)}, {P(u+4)}, {P(128)}, {P(132)}
            v_pk_fma_f32 {P(u+6)}, {P(u+6)}, {P(130)}, {P(134)}
            """)
        a(f"""
        s_lshl_b32 s62, s43, 15
        s_lshl_b32 s63, s70, 8
        s_add_u32 s62, s62, s63
        s_add_u32 s62, s62, {WS_X1}
        s_add_u32 s63, s62, {4*32768}
        v_lshlrev_b32 v6, 15, v3
        v_lshl_add_u32 v6, v2, 4, v6
        """)
        for i in range(4):
            y, u, w = 160 + 2 * i, 64 + 8 * i, 140 + 4 * (i & 1)
            a(f"""
            s_waitcnt lgkmcnt({3-i})
            v_lshlrev_b32 v{w}, 16, v{y}
            v_and_b32 v{w+1}, 0xffff0000, v{y}
            v_lshlrev_b32 v{w+2}, 16, v{y+1}
            v_and_b32 v{w+3}, 0xffff0000, v{y+1}
            v_pk_fma_f32 {P(u)}, {P(u+4)}, {P(w)}, {P(u)}
            v_pk_fma_f32 {P(u+2)}, {P(u+6)}, {P(w+2)}, {P(u+2)}
            v_cvt_pk_bf16_f32 v{y}, v{u}, v{u+1}
            v_cvt_pk_bf16_f32 v{y+1}, v{u+2}, v{u+3}
            """)
            if i & 1: a(f"buffer_store_dwordx4 {Q4(y-2)}, v6, {WS}, s{62 + (i>>1)} offen sc1")

    def g2_epi_load(self):
        a = self.a
        a(f"""
        s_lshl_b32 s60, s77, 9
        s_add_u32 s60, s60, {WS_MOD + 5*4096}
        v_lshl_add_u32 v18, v1, 3, s60
        """)
        self.gb_loads = [f"buffer_load_dwordx2 {P(10+2*k)}, v18, {WS}, {so} offen sc1" for k, so in enumerate(("0", "s12", "s13", "s14"))]
        for t in self.gb_loads: a(t)
        a(f"""
        s_lshl_b32 s60, s76, 1
        s_lshr_b32 s61, {sWV}, 1
        s_add_u32 s60, s60, s61
        s_lshl_b32 s60, s60, 15
        s_lshl_b32 s61, s77, 12
        s_add_u32 s60, s60, s61
        s_and_b32 s61, {sWV}, 1
        s_lshl_b32 s61, s61, 3
        s_add_u32 s60, s60, s61
        s_add_u32 s60, s60, {WS_X1}
        v_lshlrev_b32 v19, 9, v3
        v_lshl_add_u32 v19, v2, 4, v19
        """)
        for p in range(2):
            for h in range(2):
                a(f"buffer_load_dwordx2 {P(20+4*p+2*h)}, v19, {WS}, s60 offen offset:{2048*p + 256*h} sc1")

    def g2_epi_pre(self, tb):
        a = self.a
        self.verify("g", [11, 13, 15, 17], 6, self.gb_loads)
        a(f"""
        v_add_f32 v6, v10, v12
        v_add_f32 v7, v14, v16
        v_add_f32 v6, v6, v7
        v_cvt_pk_bf16_f32 v6, v6, v6
        v_and_b32 v6, 0xffff0000, v6
        s_lshl_b32 s60, {sWV}, 8
        s_add_u32 s60, s60, {tb}
        v_lshl_add_u32 v5, v1, 2, s60
        ds_write_b32 v5, v6
        v_lshl_add_u32 v5, v3, 5, s60
        """)
        for p in range(2):
            for h in range(2):
                a(f"ds_read_b128 a[{224+8*p+4*h}:{227+8*p+4*h}], v5 offset:{128*p + 16*h}")
        a("s_waitcnt lgkmcnt(0)")

    def g1_ids(self):
        self.a(f"""
        s_lshr_b32 s74, {sX}, 1
        s_lshl_b32 s74, s74, 2
        s_lshr_b32 s60, {sM}, 3
        s_add_u32 s74, s74, s60
        s_and_b32 s75, {sX}, 1
        s_lshl_b32 s75, s75, 3
        s_and_b32 s60, {sM}, 7
        s_add_u32 s75, s75, s60
        """)

    def w1_addr(self, r0):
        self.a(f"""
        v_mul_u32_u24 v5, 3584, v3
        v_lshlrev_b32 v6, 1, v3
        v_xor_b32 v6, v6, v2
        v_lshl_add_u32 v{r0}, v6, 4, v5
        v_xor_b32 v6, 8, v6
        v_lshl_add_u32 v{r0+1}, v6, 4, v5
        s_mul_i32 s7, s75, 224
        s_and_b32 s7, s7, -64
        s_and_b32 s16, {sM}, 7
        s_lshl_b32 s16, s16, 1
        s_lshr_b32 s61, {sM}, 3
        s_lshl_b32 s61, s61, 2
        s_add_u32 s16, s16, s61
        s_mul_i32 s16, s16, {opt('rot1', 0)}
        s_and_b32 s16, s16, 15
        s_add_u32 s17, s7, {512*3584}
        s_lshl_b32 s61, {sWV}, 2
        s_add_u32 s61, s61, s16
        s_and_b32 s61, s61, 15
        s_mul_i32 s61, s61, {32*3584}
        s_add_u32 s7, s7, s61
        s_lshl_b32 s78, {sWV}, 15
        s_add_u32 s78, s78, {self.WB}
        """)

    def w1_one(self, r0, n):
        a = self.a
        a(f"s_add_u32 m0, s78, {1024*n}")
        a(f"buffer_load_dwordx4 v{r0 + n%2}, {W1}, s7 offen lds")
        a(f"s_add_u32 s7, s7, {4*3584}")
        if n % 8 == 7: a(f"s_cmp_eq_u32 s7, s17\ns_cselect_b32 s60, {512*3584}, 0\ns_sub_u32 s7, s7, s60")

    def w2_touch(self, j):
        self.a(f"buffer_load_dword v{248+j}, v250, {WS}, 0 offen sc1" if j == 0 else
               f"buffer_load_dword v{248+j}, v251, {WS}, 0 offen sc1")

    def w2_touch_addr(self):
        self.a(f"""
        s_lshl_b32 s60, {sM}, 2
        s_add_u32 s60, s60, {sWV}
        s_mul_i32 s60, s60, {112*128}
        s_add_u32 s60, s60, {WS_W2P}
        v_lshl_add_u32 v250, v1, 7, s60
        v_add_u32 v5, 64, v1
        v_min_u32 v5, 111, v5
        v_lshl_add_u32 v251, v5, 7, s60
        """)

    def mod_addr(self):
        self.a(f"""
        s_lshr_b32 s60, s2, 4
        s_lshl_b32 s60, s60, 8
        s_add_u32 s60, s60, {WS_MOD + 3*4096}
        v_lshl_add_u32 v172, v2, 4, s60
        v_and_b32 v5, 1, v3
        v_lshl_add_u32 v172, v5, 12, v172
        s_movk_i32 s12, {MODP}
        s_mov_b32 s13, {2*MODP}
        s_mov_b32 s14, {3*MODP}
        """)

    def mod_load_list(self, r0):
        L = []
        for k, so in enumerate(("0", "s12", "s13", "s14")):
            L.append(f"buffer_load_dwordx4 {Q4(r0+4*k)}, v172, {WS}, {so} offen sc1")
        return L

    def g2_w2_addr(self, k0):
        self.a(f"""
        s_mul_i32 s79, s77, 56
        s_mul_i32 s61, {sWV}, 14
        s_add_u32 s79, s79, s61
        s_lshl_b32 s79, s79, 12
        s_add_u32 s79, s79, {WS_W2P}
        s_add_u32 s97, s79, {14*4096}
        s_lshl_b32 s18, s77, 1
        s_lshr_b32 s61, {sM}, 3
        s_mul_i32 s61, s61, 7
        s_lshr_b32 s61, s61, 1
        s_add_u32 s18, s18, s61
        s_mul_i32 s18, s18, {opt('rot2', 0)}
        s_cmp_ge_u32 s18, 14
        s_cselect_b32 s60, 14, 0
        s_sub_u32 s18, s18, s60
        s_lshl_b32 s18, s18, 12
        s_add_u32 s79, s79, s18
        v_lshlrev_b32 v9, 4, v1
        """)

    def g2_w2_one(self, i, v="v9"):
        self.a(f"buffer_load_dwordx4 a[{4*i}:{4*i+3}], {v}, {WS}, s79 offen offset:{1024*(i%4)} sc1")
        if i % 4 == 3:
            self.a(f"s_add_u32 s79, s79, 4096\ns_cmp_eq_u32 s79, s97\ns_cselect_b32 s60, {14*4096}, 0\ns_sub_u32 s79, s79, s60")

    def signal_all(self, base, replicas, tag):
        a = self.a
        a(f"""
        s_waitcnt vmcnt(0)
        s_barrier
        s_cmp_lg_u32 {sWV}, 0
        s_cbranch_scc1 L_sig{tag}_skip
        s_lshl_b32 s60, s2, {FL}
        s_add_u32 s60, s60, {base}
        """)
        self.flag_store("s60", replicas, 8 + FL)
        a(f"L_sig{tag}_skip:")

    def w_stream(self, r0, mod_wait):
        T = f"""
        v_lshrrev_b32 v14, 2, v1
        v_lshlrev_b32 v15, 5, v14
        v_and_b32 v12, 3, v1
        v_lshl_add_u32 v15, v12, 3, v15
        s_lshl_b32 s61, {sWV}, 11
        s_add_u32 s61, s61, {self.W1S}
        v_add_u32 v173, s61, v15
        v_and_b32 v10, 1, v3
        v_cvt_f32_u32 v11, v10
        v_xor_b32 v10, 1, v10
        v_lshlrev_b32 v10, 6, v10
        v_lshl_add_u32 v10, v2, 2, v10
        s_lshl_b32 s61, {sWV}, 7
        v_add_u32 v10, s61, v10
        v_lshl_add_u32 v14, v3, 3, s61
        v_and_b32 v15, 1, v1
        v_lshl_add_u32 v15, v15, 6, v14
        v_and_b32 v13, 1, v1
        v_lshlrev_b32 v13, 9, v13
        v_lshl_add_u32 v13, v3, 4, v13
        s_and_b32 s40, s2, 15
        s_lshl_b32 s40, s40, 4
        s_lshr_b32 s61, s2, 4
        s_add_u32 s40, s40, s61
        s_lshl_b32 s42, s40, 10
        s_lshl_b32 s61, {sWV}, 6
        s_add_u32 s42, s42, s61
        s_add_u32 s42, s42, {WS_UP}
        s_mul_i32 s40, s40, 7168
        s_lshl_b32 s61, {sWV}, 10
        s_add_u32 s40, s40, s61
        s_add_u32 s40, s40, {WS_W1P}
        s_add_u32 s41, s40, 4096
        s_cmp_eq_u32 {sWV}, 3 | s_cselect_b32 s41, 0x40000000, s41
        WAIT
        """
        L = [x.strip() for x in T.split("\n") if x.strip()]
        L += ["ds_read_b64_tr_b16 v[16:17], v173", "ds_read_b64_tr_b16 v[18:19], v173 offset:512",
              "ds_read_b64_tr_b16 v[20:21], v173 offset:1024", "ds_read_b64_tr_b16 v[22:23], v173 offset:1536", "VERIFY"]
        for e in (0, 2): L += [f"v_add_f32 v{r0+e}, v{r0+e}, v{r0+4+e}", f"v_add_f32 v{r0+8+e}, v{r0+8+e}, v{r0+12+e}"]
        for e in (0, 2): L.append(f"v_add_f32 v{r0+e}, v{r0+e}, v{r0+8+e}")
        L += [f"v_cvt_pk_bf16_f32 v{r0}, v{r0}, v{r0+2}",
              f"v_lshlrev_b32 v{r0+4}, 16, v{r0}", f"v_and_b32 v{r0+5}, 0xffff0000, v{r0}",
              f"v_add_f32 v{r0+4}, v11, v{r0+4}", f"v_add_f32 v{r0+5}, v11, v{r0+5}",
              f"v_cvt_pk_bf16_f32 v{r0}, v{r0+4}, v{r0+5}",
              f"ds_write_b32 v10, v{r0}",
              "ds_read_b64 v[24:25], v15", "ds_read_b64 v[26:27], v15 offset:32",
              "ds_read_b64 v[28:29], v14", "ds_read_b64 v[30:31], v14 offset:32", "GAP",
              "v_mfma_f32_16x16x32_bf16 v[164:167], v[16:19], v[24:27], 0",
              "v_mfma_f32_16x16x32_bf16 v[168:171], v[20:23], v[24:27], 0"]
        for e in range(4): L += [f"v_lshlrev_b32 v{r0+2*e}, 16, v{28+e}", f"v_and_b32 v{r0+2*e+1}, 0xffff0000, v{28+e}"]
        for f in range(2):
            for e in range(4):
                w = 16 + 4 * f + e
                t = r0 + 8 + 2 * (e % 2)
                L += [f"v_lshlrev_b32 v{t}, 16, v{w}", f"v_and_b32 v{t+1}, 0xffff0000, v{w}",
                      f"v_mul_f32 v{t}, v{t}, v{r0+2*e}", f"v_mul_f32 v{t+1}, v{t+1}, v{r0+2*e+1}",
                      f"v_cvt_pk_bf16_f32 v{w}, v{t}, v{t+1}"]
            L.append(f"buffer_store_dwordx4 {Q4(16+4*f)}, v9, {WS}, s{40+f} offen sc1")
        L.append(f"s_mov_b32 exec_lo, 0x00030003 | s_mov_b32 exec_hi, 0x00030003 | buffer_store_dwordx4 v[164:167], v13, {WS}, s42 offen sc1 | buffer_store_dwordx4 v[168:171], v13, {WS}, s42 offen offset:256 sc1 | s_mov_b64 exec, -1")
        return L

    UPS = 32768 + 114688
    def g1_addr(self):
        self.a(f"""
        s_lshl_b32 s64, s74, 2
        s_add_u32 s64, s64, {sWV}
        s_lshl_b32 s64, s64, 15
        s_add_u32 s64, s64, {WS_X1}
        s_lshl_b32 s65, s75, 4
        s_add_u32 s65, s65, {sWV}
        s_mul_i32 s65, s65, 7168
        s_add_u32 s65, s65, {WS_W1P}
        s_mul_i32 s66, {sWV}, 7168
        s_add_u32 s66, s66, {self.WB}
        s_lshl_b32 s67, s75, 2
        s_add_u32 s67, s67, {sWV}
        s_lshl_b32 s67, s67, 12
        s_add_u32 s67, s67, {WS_UP}
        s_mov_b32 s44, s64
        s_mul_i32 s45, s75, {16*7168}
        s_add_u32 s45, s45, {WS_W1P}
        v_lshlrev_b32 v8, 4, v1
        v_add_u32 v10, {self.WB}, v8
        v_add_u32 v11, 57344, v10
        v_lshlrev_b32 v248, 2, v0
        v_add_u32 v249, {self.UPS}, v248
        """)
        for r in range(12, 16): self.a(f"v_mov_b32 v{r}, 0x3f803f80")

    def g1_run(self, side=None, nside=0, early=False):
        a = self.a
        ops = []
        def X(i):
            def f():
                a(f"buffer_load_dwordx4 {Q4(64+4*i)}, v8, {WS}, s64 offen offset:{i%4*1024} sc1")
                if i % 4 == 3: a("s_add_u32 s64, s64, 4096")
            return (("x", i), f)
        def W(gm, j):
            def f():
                if j % 4 == 0: a(f"s_add_u32 m0, s66, {gm*4*7168 + 1024*j}\ns_add_u32 s60, s65, {gm*4*7168 + 1024*j}")
                a(f"buffer_load_dwordx4 v8, {WS}, s60 offen offset:{1024*(j%4)} sc1 lds")
            return (("w", gm, j), f)
        def UPl(j):
            def f():
                if j == 0: a(f"s_lshl_b32 s60, {sWV}, 12\ns_add_u32 m0, s60, {self.UPS}")
                a(f"buffer_load_dwordx4 v8, {WS}, s67 offen offset:{1024*j} sc1 lds")
            return (("u", j), f)
        if early == "weights":
            for gm in range(4):
                for j in range(7): W(gm, j)[1]()
            for j in range(4): UPl(j)[1]()
            return
        AH = opt('ah', 14)
        if early:
            ops += [X(i) for i in range(AH)]
            xi, sd = AH, 0
            while xi < 32 or sd < nside:
                if xi < 32: ops.append(X(xi)); xi += 1
                if sd < nside: ops.append((("s", sd), side)); sd += 1
        else:
            for gm in range(4):
                ops += [W(gm, j) for j in range(7)]
                if gm == 3: ops += [UPl(j) for j in range(4)]
                ops += [X(i) for i in range(8 * gm, 8 * gm + 8)]
        keys = [k for k, _ in ops]
        pos = [0]
        def issue(n=1):
            for _ in range(n):
                if pos[0] < len(ops): ops[pos[0]][1](); pos[0] += 1
        def wait(key):
            i = keys.index(key)
            while pos[0] <= i: issue()
            a(f"s_waitcnt vmcnt({pos[0] - 1 - i})")
        if opt('gt', 0):
            nt = opt('gt', 0) - 1
            issue(nt)
            a(f"""
            s_and_b32 s61, {sM}, 7
            s_lshl_b32 s61, s61, 12
            v_and_b32 v6, 31, v1
            v_lshl_add_u32 v6, v6, 7, s61
            s_lshr_b32 s61, {sM}, 3
            s_lshl_b32 s61, s61, 2
            s_add_u32 s61, s61, {sWV}
            s_mul_i32 s61, s61, {56*128}
            v_min_u32 v7, 55, v1
            v_lshl_add_u32 v7, v7, 7, s61
            buffer_load_dword v5, v7, {WS}, s45 offen sc1
            buffer_load_dword v4, v6, {WS}, s44 offen sc1
            """)
            for _ in range(2):
                ops.insert(pos[0], (("t", pos[0]), None)); keys.insert(pos[0], ("t", pos[0])); pos[0] += 1
        issue((AH if early else opt('g1pre', 22)) - (opt('gt', 0) - 1 if opt('gt', 0) else 0))
        NR, D = 8, 7
        Wr = lambda n: 16 + 4 * (n % NR)
        def rd(n):
            if n < 112:
                k, ft = divmod(n, 7)
                if ft == 0 and k % 4 == 0 and not early:
                    wait(("w", k // 4, 6) if k < 12 else ("u", 3))
                    a("s_barrier")
                a(f"ds_read_b128 {Q4(Wr(n))}, {'v10' if k < 8 else 'v11'} offset:{(k % 8) * 7168 + 1024 * ft}")
        def swaps(k):
            x = 64 + 8 * k
            wait(("x", 2 * k + 1))
            a(f"v_swap_b32 v{x+2}, v{x+4}\nv_swap_b32 v{x+3}, v{x+5}")
        for n in range(D): rd(n)
        swaps(0)
        tail = self.g1_tail_setup()
        for k in range(16):
            x = 64 + 8 * k
            if k in (4, 8, 12): a.region("g1" + "abcd"[k // 4])
            if k % 2 == 0: self.stamp("h")
            for ft in range(7):
                n = 7 * k + ft
                a(f"s_waitcnt lgkmcnt({min(D - 1, 111 - n)})")
                d = 192 + 8 * ft
                a(f"v_mfma_f32_16x16x32_bf16 {Q4(d)}, {Q4(Wr(n))}, {Q4(x)}, {'0' if k == 0 else Q4(d)}")
                if ft in (0, 2, 4, 6): issue()
                a(f"v_mfma_f32_16x16x32_bf16 {Q4(d+4)}, {Q4(Wr(n))}, {Q4(x+4)}, {'0' if k == 0 else Q4(d+4)}")
                if k == 12 and ft < 4:
                    for j in range(4): a(f"ds_read_b32 v{64+4*ft+j}, v249 offset:{1024*(4*ft+j)}")
                if k == 13 and ft >= 2:
                    st = {2: 8, 3: 4, 4: 2, 5: 1}.get(ft)
                    if st:
                        for j in range(st): a(f"v_add_f32 v{64+j}, v{64+j}, v{64+j+st}")
                    if ft == 6: a(f"v_mul_f32 v64, {NLOG2E}, v64\nds_write_b32 v248, v64 offset:{self.T_U}")
                if k == 15 and ft == 0: a("s_barrier")
                if k == 15:
                    a(f"ds_read_b128 {Q4(64+8*ft)}, v4 offset:{self.T_U + 64*ft}\nds_read_b128 {Q4(68+8*ft)}, v4 offset:{self.T_U + 512 + 64*ft}")
                if k >= 10:
                    for _ in range(2):
                        if tail: a(tail.pop(0))
                rd(n + D)
                if ft in (2, 4):
                    t = (ft - 2) // 2
                    for j, A in ((0, "v[12:15]"), (1, Q4(x + 4 * t))):
                        d = 48 + 8 * t + 4 * j
                        a(f"v_mfma_f32_16x16x32_bf16 {Q4(d)}, {A}, {Q4(x+4*t)}, {'0' if k == 0 else Q4(d)}")
                        if ft == 4 and j == 0 and k < 15: swaps(k + 1)
        assert pos[0] == len(ops) and not tail

    def g1_tail_setup(self):
        T = f"""
        v_lshlrev_b32 v4, 4, v3
        v_lshrrev_b32 v5, 2, v2
        v_lshl_add_u32 v5, v5, 4, v2
        v_lshlrev_b32 v5, 2, v5
        v_and_b32 v6, 3, v1
        v_cmp_eq_u32 s[20:21], 1, v6
        v_cmp_eq_u32 s[22:23], 2, v6
        v_cmp_eq_u32 s[40:41], 3, v6
        s_lshl_b32 s44, s74, 1
        s_lshr_b32 s61, {sWV}, 1
        s_add_u32 s44, s44, s61
        s_lshl_b32 s46, s44, 4
        s_add_u32 s46, s46, s75
        s_lshr_b32 s47, s46, 1
        s_and_b32 s62, {sWV}, 1
        s_lshl_b32 s46, s46, 1
        s_add_u32 s46, s46, s62
        s_lshl_b32 s46, s46, 10
        s_add_u32 s46, s46, {WS_HC}
        s_lshl_b32 s47, s47, 1
        s_add_u32 s47, s47, s62
        s_lshl_b32 s47, s47, 9
        s_and_b32 s63, s75, 1
        s_lshl_b32 s61, s63, 8
        s_add_u32 s47, s47, s61
        s_add_u32 s47, s47, {WS_HM}
        s_mul_i32 s44, s44, 56
        s_lshr_b32 s61, s75, 1
        s_mul_i32 s61, s61, 7
        s_add_u32 s44, s44, s61
        s_lshl_b32 s44, s44, 12
        s_lshl_b32 s61, s62, 11
        s_add_u32 s44, s44, s61
        s_add_u32 s44, s44, {WS_H}
        s_lshl_b32 s61, s63, 9
        s_add_u32 s45, s44, s61
        s_add_u32 s45, s45, {6*4096}
        s_mul_i32 s61, s63, {3*4096}
        s_add_u32 s44, s44, s61
        v_and_b32 v6, 1, v3
        v_lshlrev_b32 v7, 10, v6
        v_lshl_add_u32 v7, v2, 4, v7
        v_lshrrev_b32 v250, 1, v3
        v_lshl_add_u32 v7, v250, 8, v7
        v_lshlrev_b32 v250, 7, v250
        v_lshl_add_u32 v250, v2, 3, v250
        v_lshl_add_u32 v250, v6, 2, v250
        s_lshl_b32 s61, s62, 4
        s_add_u32 s61, s61, 3
        v_mad_u32_u24 v6, v6, 5, s61
        v_alignbit_b32 v251, s80, s80, v6
        s_mul_i32 s61, s62, 13
        v_mov_b32 v6, s61
        v_alignbit_b32 v252, s80, s80, v6
        v_mov_b32 v254, {NLOG2E}
        """
        return [x.strip() for x in T.split("\n") if x.strip()]

    def g1_epilogue(self, tb):
        a = self.a
        for t in range(2):
            g = 52 + 8 * t
            a(f"v_cndmask_b32 v{g}, v{g}, v{g+1}, s[20:21]\nv_cndmask_b32 v{g}, v{g}, v{g+2}, s[22:23]\nv_cndmask_b32 v{g}, v{g}, v{g+3}, s[40:41]")
            a(f"ds_bpermute_b32 v{g}, v5, v{g}")
        for t in range(2):
            sm = 48 + 8 * t
            a(f"v_mul_f32 v{sm}, 0x3b000000, v{sm}\nv_mul_f32 v{sm+1}, v{sm}, v{sm}\nv_mov_b32 v{sm+2}, 0x3b000000")
        a("s_waitcnt lgkmcnt(0)")
        for t in range(2):
            sm, g, o = 48 + 8 * t, 52 + 8 * t, 44 + 2 * t
            a(f"""
            v_fma_f32 v{g}, v{g}, v{sm+2}, -v{sm+1}
            v_max_f32 v{g}, 0, v{g}
            v_add_f32 v{g}, 0x3727c5ac, v{g}
            v_rsq_f32 v{o}, v{g}
            v_mul_f32 v{o+1}, v{sm}, v{o}
            v_sub_f32 v{o+1}, 0, v{o+1}
            v_mul_f32 v{o}, v254, v{o}
            """)
        for ft in (6, 0, 1, 2, 3, 4, 5):
            if ft == 2: a.region("g1e1")
            for t in range(2):
                d, o = 192 + 8 * ft + 4 * t, 44 + 2 * t
                u1, u2 = 64 + 8 * ft, 68 + 8 * ft
                w = 28 + 8 * t
                dst = 128 + 8 * (ft // 2) + 4 * t + 2 * (ft % 2) if ft < 6 else 152 + 2 * t
                for h in range(2): a(f"v_pk_fma_f32 {P(w+2*h)}, {P(u1+2*h)}, {P(o)}, {P(u2+2*h)} op_sel:[0,1,0] op_sel_hi:[1,1,1]")
                for h in range(2): a(f"v_pk_fma_f32 {P(d+2*h)}, {P(d+2*h)}, {P(o)}, {P(w+2*h)} op_sel_hi:[1,0,1]")
                for r in range(4): a(f"v_exp_f32 v{w+r}, v{d+r}")
                for h in range(2): a(f"v_pk_fma_f32 {P(w+2*h)}, {P(w+2*h)}, {P(254)}, {P(254)} op_sel_hi:[1,0,0]")
                for r in range(4): a(f"v_rcp_f32 v{w+r}, v{w+r}")
                for h in range(2): a(f"v_pk_mul_f32 {P(d+2*h)}, {P(d+2*h)}, {P(w+2*h)}")
                for h in range(2): a(f"v_cvt_pk_bf16_f32 v{dst+h}, v{d+2*h}, v{d+2*h+1}")
                if ft % 2 == 1:
                    b = dst - 2
                    a(f"buffer_store_dwordx4 {Q4(b)}, v8, {WS}, s44 offen offset:{1024*t} sc1")
                    c = 156 + ft // 2
                    a(f"v_bitop3_b32 v{c}, v{252 if t == 0 else c}, v{b}, v{b+1} bitop3:0x96\nv_bitop3_b32 v{c}, v{c}, v{b+2}, v{b+3} bitop3:0x96")
                elif ft == 6 and t == 1:
                    a("v_permlane16_swap_b32 v152, v154\nv_permlane16_swap_b32 v153, v155")
                    a(f"buffer_store_dwordx4 v[152:155], v7, {WS}, s45 offen sc1")
                    a("v_bitop3_b32 v251, v251, v152, v153 bitop3:0x96\nv_bitop3_b32 v251, v251, v154, v155 bitop3:0x96")
                    a(f"buffer_store_dword v251, v250, {WS}, s47 offen sc1")
            if ft in (1, 3): a("s_add_u32 s44, s44, 4096")
        a(f"v_mov_b32 v159, v252\nbuffer_store_dwordx4 v[156:159], v8, {WS}, s46 offen sc1")

    def g2_run(self):
        a = self.a
        a(f"""
        s_mul_i32 s78, s76, 56
        s_mul_i32 s61, {sWV}, 14
        s_add_u32 s78, s78, s61
        s_lshl_b32 s78, s78, 12
        s_add_u32 s78, s78, {WS_H}
        s_lshl_b32 s44, s76, 2
        s_add_u32 s44, s44, {sWV}
        s_lshl_b32 s45, s44, 11
        s_add_u32 s45, s45, {WS_HM}
        s_lshl_b32 s44, s44, 13
        s_add_u32 s44, s44, {WS_HC}
        s_add_u32 s43, s44, 4096
        s_mov_b32 s60, s80
        s_mov_b32 s61, s80
        s_lshr_b64 s[62:63], s[60:61], 13
        s_xor_b32 s46, s80, s62
        s_lshr_b64 s[62:63], s[60:61], 3
        s_mov_b32 s47, s62
        s_lshr_b64 s[62:63], s[60:61], 8
        s_xor_b32 s47, s47, s62
        s_lshr_b64 s[62:63], s[60:61], 19
        s_xor_b32 s47, s47, s62
        s_lshr_b64 s[62:63], s[60:61], 24
        s_xor_b32 s47, s47, s62
        v_lshlrev_b32 v8, 4, v1
        s_lshl_b32 s60, {sWV}, 10
        v_add_u32 v28, s60, v8
        v_add_u32 v29, 1024, v28
        v_add_u32 v30, 2048, v28
        v_add_u32 v31, 3072, v28
        v_and_b32 v29, 4095, v29
        v_and_b32 v30, 4095, v30
        v_and_b32 v31, 4095, v31
        v_lshlrev_b32 v9, 3, v1
        s_mov_b32 s19, 0
        """)

    def g2_body(self):
        a = self.a
        HR = 8
        slot = {k: 32 + 16 * (k % HR) for k in range(14)}
        loads = []
        chk = {}
        for k in range(14):
            pr, j = divmod(k, 7)
            if j == 6:
                c = 184 + 4 * pr
                chk[k] = [c, c + 1, c + 2, c + 3]
                for h in range(2):
                    loads.append((k, ("c", k, h), f"buffer_load_dwordx2 {P(c+2*h)}, v9, {WS}, s45 offen offset:{1024*pr + 512*h} sc1"))
            else:
                cb = 2 * pr + j // 3
                c = 160 + 8 * (cb % 3)
                chk[k] = [c + j % 3, c + 4 + j % 3]
                if j % 3 == 0:
                    for h in range(2):
                        loads.append((k, ("c", k, h), f"buffer_load_dwordx4 {Q4(c+4*h)}, v8, {WS}, {'s44' if cb < 2 else 's43'} offen offset:{2048*(cb%2) + 1024*h} sc1"))
            for st in range(4):
                pre = f"s_add_u32 s18, s78, {4096*k}\n" if st == 0 else ""
                loads.append((k, ("h", k, st), pre + f"buffer_load_dwordx4 {Q4(slot[k]+4*st)}, v{28+st}, {WS}, s18 offen sc1"))
        keys = [l[1] for l in loads]
        pos = [0]
        def issue(maxk):
            if pos[0] < len(loads) and loads[pos[0]][0] <= maxk:
                a(loads[pos[0]][2]); pos[0] += 1
        def wait(key):
            i = keys.index(key)
            while pos[0] <= i: issue(99)
            a(f"s_waitcnt vmcnt({pos[0] - 1 - i})")
        def vsteps(k):
            x, c = 4 + k % 2, chk[k]
            L = [("w", ("h", k, 3))]
            regs = list(c) + [slot[k] + i for i in range(16)]
            L.append(f"v_bitop3_b32 v{x}, v{regs[0]}, v{regs[1]}, v{regs[2]} bitop3:0x96")
            rest = regs[3:]
            while len(rest) >= 2: L.append(f"v_bitop3_b32 v{x}, v{x}, v{rest.pop(0)}, v{rest.pop(0)} bitop3:0x96")
            if rest: L.append(f"v_xor_b32 v{x}, v{x}, v{rest.pop(0)}")
            L.append(f"v_cmp_ne_u32 vcc, {'s47' if len(c) == 4 else 's46'}, v{x}\ns_cbranch_vccnz L_g2_retry")
            return L
        def run(t):
            if isinstance(t, tuple): wait(t[1])
            else: a(t)
        a("L_g2_start:")
        a.fence()
        for _ in range(opt('g2pre', 18)): issue(99)
        a(f"s_waitcnt vmcnt({9 + opt('w2e3', 14) + pos[0]})")
        self.g2_epi_pre(0)
        for t in vsteps(0): run(t)
        for k in range(14):
            nxt = vsteps(k + 1) if k < 13 else []
            if k in (5, 10): a.region("g2" + "abc"[k // 5])
            self.stamp("g")
            for st in range(4):
                for dt in range(4):
                    d = 192 + 16 * st + 4 * dt
                    a(f"v_mfma_f32_16x16x32_bf16 {Q4(d)}, a[{16*k+4*dt}:{16*k+4*dt+3}], {Q4(slot[k]+4*st)}, {'0' if k == 0 else Q4(d)}")
                    i = 4 * st + dt
                    if i % 3 == 0 and i < 13: issue(k + HR - 1)
                    if i >= 9:
                        for _ in range(2):
                            if nxt: run(nxt.pop(0))
            assert not nxt
        assert pos[0] == len(loads)

    def g2_retry(self):
        self.a(f"""
        L_g2_retry:
        s_waitcnt vmcnt(0)
        s_add_u32 s19, s19, 1
        s_cmp_gt_u32 s19, {SPIN}
        s_cbranch_scc1 L_g2_giveup
        s_sleep {opt('g2sleep', 2)}
        s_branch L_g2_start
        """)

def build_fused2(diag=False):
    g = G2(sc=True, diag=diag)
    a = g.a
    S = g.stamp
    kn = NAME + "_kernel"
    hdr = ["; @launch grid=(256,1,1) block=(256,1,1) lds=163840"]
    a.raw('.amdgcn_target "amdgcn-amd-amdhsa--gfx950"\n.text')
    g.entry(kn, list(range(13)), pre=g.code_prefetch if opt('cpf', 1) else None)
    a(f"s_add_u32 s60, s52, {WS_TAG}\ns_addc_u32 s61, s53, 0\ns_load_dwordx2 s[80:81], s[60:61], 0")
    a(f"s_cmp_ge_u32 {sWV}, 2\ns_cbranch_scc1 L_role_b")
    n0 = g.nst
    g.role_a()
    if HINT: g.flag_a()
    QP = opt('qp', 2)
    if QP == 0: g.q_rows()
    a(f"s_waitcnt vmcnt({(9 if HINT else 4) + (8 if QP == 0 else 0)})\ns_branch L_join1\nL_role_b:")
    a.fence()
    g.nst = n0
    a.region("end")
    a(f"s_sub_u32 s6, {sWV}, 2")
    g.role_b_loads_gemv()
    g.role_b_loads2()
    g.c_ids(); g.g1_ids(); g.g2_ids()
    g.tag_ready()
    g.warm((2, ["brest0", "g1a"]), (3, ["brest1", "cepi", "prep1", "g1b"])); S()
    a("v_and_b32 v2, 15, v1\nv_lshrrev_b32 v3, 4, v1")
    a.region("brest0")
    g.n_after = 12
    def after():
        g.filter_load(); g.w2_unit_load()
    g.role_b_rest(0, after_wait=after); S()
    a("s_waitcnt vmcnt(6)"); S()
    a("L_join1:")
    a.fence()
    a.region("fprep")
    g.filter_copies(); S()
    def mid():
        if HINT: return
        a(f"s_cmp_ge_u32 {sWV}, 2\ns_cbranch_scc1 L_mid_b\ns_waitcnt vmcnt({8 if QP == 0 else 0})")
        g.flag_a()
        if QP == 1:
            a("v_mov_b32 v250, v5")
            g.q_rows()
            a("v_mov_b32 v5, v250")
        a("L_mid_b:")
    g.filter_prep(mid); S()
    a.region("ufetch")
    st = dict()
    a(f"s_cmp_ge_u32 {sWV}, 2\ns_cbranch_scc1 L_role_b2")
    n0 = g.nst
    g.u_fetch(0)
    a("s_mov_b32 s17, s67")
    a("s_branch L_join2\nL_role_b2:\ns_mov_b32 s17, 0")
    a.fence()
    g.nst = n0
    g.w2_unit_pack(2)
    g.side_inputs(); S()
    a("L_join2:")
    a.region("addr")
    a.fence()
    g.epi_addr()
    g.g2_w2_addr(0)
    g.mod_addr()
    S(); S("c")
    a("s_waitcnt lgkmcnt(0)\ns_barrier")
    w2 = dict(n=0)
    def side():
        g.g2_w2_one(w2['n']); w2['n'] += 1
    a.region("conv0")
    log = []
    younger = lambda tag: len(log) - 1 - max(i for i, t in enumerate(log) if t == tag)
    modl = g.mod_load_list(32)
    st.update(hold=0, w=g.w_stream(32, 0), q=[('m', t) for t in modl] + [('e', t) for t in g.epi_load_list()])
    Q0 = opt('q0', 2)
    def hook(n):
        if n == 40: a.region("conv1")
        if n in (0, 8, 16, 24, 32, 40, 50, 60, 70, 79): S("c")
        if n >= Q0 and n % 2 == 0 and st['q']:
            tg, t = st['q'].pop(0)
            log.append(tg); a(t)
        for _ in range(3):
            if not st['w'] or st['hold'] > n: break
            t = st['w'][0]
            if t == "WAIT":
                if n < Q0 + opt('ww', 34): break
                a(f"s_waitcnt vmcnt({younger('m')})")
            elif t == "VERIFY":
                g.verify("w", [33 + 2*i for i in range(8)], 24, modl)
            elif t == "GAP":
                assert n <= 64
                st['hold'] = n + 8
            else:
                a(t.replace(" | ", "\n")); log.extend('s' * t.count("buffer_store"))
            st['w'].pop(0)
        if n == opt('fm', 1):
            a(f"s_cmp_lt_u32 {sWV}, 2\ns_cbranch_scc1 L_skip_m")
            g.flag_m(len(log) + 3)
            a("L_skip_m:")
        WM = opt('wm', 44)
        if n == WM - 14:
            a(f"buffer_load_dwordx2 v[252:253], v248, {WS}, 0 offen sc1"); log.append('f')
        if n == WM: g.poll("M", first_issued=True, va="v248", vd=252, later=younger('f'))
        if n >= WM and n % 2 == 1 and w2['n'] < opt('w2conv', 14):
            side(); log.append('w')
    g.conv_main(hook); S()
    assert not st['q']
    a.region("cepi")
    print("w_stream left after conv:", len(st['w']), file=sys.stderr)
    for t in st['w']:
        assert t not in ("WAIT", "GAP", "VERIFY")
        a(t.replace(" | ", "\n")); log.extend('s' * t.count("buffer_store"))
    a(f"s_waitcnt vmcnt({younger('e')})"); S("c")
    g.conv_epilogue(); S("c")
    a.region("prep1")
    EARLY = opt('early', 0)
    if EARLY:
        a(f"""
        s_and_b32 s60, s2, 15
        s_lshl_b32 s60, s60, 4
        s_lshr_b32 s61, s2, 4
        s_add_u32 s60, s60, s61
        s_lshl_b32 s60, s60, 2
        s_add_u32 s60, s60, {sWV}
        s_lshl_b32 s60, s60, {FL}
        s_add_u32 s60, s60, {FLAG_W}
        s_and_b32 s61, s2, 8
        s_lshl_b32 s61, s61, {7 + FL}
        s_add_u32 s60, s60, s61
        s_waitcnt vmcnt(2)
        """)
        g.flag_store("s60", 4, 11 + FL, 4)
    g.signal_all(FLAG_2, 8, 2); S()
    g.g1_addr()
    if EARLY:
        a(f"""
        s_lshl_b32 s60, {sX}, 4
        s_add_u32 s60, s60, s75
        s_lshl_b32 s60, s60, {6 + FL}
        s_add_u32 s60, s60, {FLAG_W}
        v_lshl_add_u32 v4, v1, {FL}, s60
        """)
        g.poll("W")
        g.g1_run(early="weights")
    else:
        while w2['n'] < 56 - opt('w2e3', 14): side()
    g.warm((0, ["g1c"]), (1, ["g1d"]), (2, ["g1e0", "g2a", "g2b"]), (3, ["g1e1", "g2c", "g2e"])); S()
    a(f"""
    s_lshl_b32 s60, {sX}, {8 + FL}
    s_add_u32 s60, s60, {FLAG_2}
    v_lshl_add_u32 v4, v0, {FL}, s60
    """)
    a.region("g1a")
    g.poll("2")
    a("s_barrier"); S(); S("h")
    g.g1_run(side, 56 - opt('w2e3', 18), True) if EARLY else g.g1_run()
    S()
    S("h")
    a.region("g1e0")
    g.g2_epi_load()
    g.g1_epilogue(G2.T_U - 4096)
    S("h")
    a("s_barrier"); S()
    while w2['n'] < 56: side()
    g.g2_run()
    a.region("g2a")
    for i in range(opt('g2d', 1)): a("s_sleep 4")
    S(); S("g"); S("h")
    g.g2_body(); S(); S("h")
    a("L_g2_giveup:")
    if diag and opt('cnt', 0):
        a(f"s_lshl_b32 s60, s2, 2\ns_add_u32 s60, s60, {sWV}\ns_lshl_b32 s60, s60, 7\ns_add_u32 s60, s60, {WS_DIAG + 124}\nv_mov_b32 v4, s60\nv_mov_b32 v5, s17\nbuffer_store_dword v5, v4, {WS}, 0 offen")
    a.region("g2e")
    g.g2_epilogue(G2.WB, 0)
    a.region("end")
    g.tag_update()
    g.exit(kn)
    g.g2_retry()
    a("L_warm_ret:\ns_setpc_b64 s[98:99]")
    a.raw('.section .rodata,"a"')
    a.raw(desc(kn, 512, 256))
    txt, size = add_pads(a.text(), opt('pad', 256))
    print("code bytes", size, file=sys.stderr)
    return "\n".join(hdr) + "\n" + txt

if __name__ == "__main__":
    diag = sys.argv[2] if len(sys.argv) > 2 else False
    open(sys.argv[1], "w").write(build_fused2(diag))
```

```python
import sys, os
OPT = dict(kv.split('=') for kv in os.environ.get('OPT', '').split(',') if kv)
opt = lambda k, d: int(OPT.get(k, d))
from asmlib import Asm, desc, add_pads
from gen import *

WS_W1P, WS_UP = 21 * MB, 23 * MB
WS_HC, WS_HM, WS_TAG = 26 * MB, 27 * MB, 28 * MB
MODP = 3072 * 8
FLAG_A, FLAG_B, FLAG_2, FLAG_3 = WS_FLAG, WS_FLAG + MB, WS_FLAG + 2 * MB, WS_FLAG + 3 * MB
FLAG_W = 25 * MB
HINT = opt('hint', 0)
FL = opt('fl', 7)
P = lambda r: f"v[{r}:{r+1}]"
Q4 = lambda r: f"v[{r}:{r+3}]"

class G2(G):
    NT = " nt" if opt('nt', 1) else ""
    OUTM = ["", " sc1", " nt", " sc0 sc1"][opt('outm', 0)]
    NTF = " nt" if opt('ntf', 1) else ""
    NTQ = " nt" if opt('ntq', 0) else ""
    NTW1 = " nt" if opt('ntw1', 0) else ""
    FB, FSZ, WB = 1536, 7584, 32768
    XI, XI_RS = 1536, 7616
    T_GB, T_U, T_UP = 1536 + 2560, 1536 + 4608, 1536 + 7584 + 2560

    def code_prefetch(self):
        self.a("""
        s_getpc_b64 s[60:61]
        L_pc:
        v_lshlrev_b32 v4, 7, v0
        v_min_u32 v4, L_warm_ret-L_pc, v4
        v_mov_b32 v5, s61
        v_add_co_u32 v4, vcc, s60, v4
        v_addc_co_u32 v5, vcc, 0, v5, vcc
        global_load_dword v253, v[4:5], off
        """)

    def warm(self, *plans):
        if not opt('warm', 1): return
        a = self.a
        self.nwarm = getattr(self, 'nwarm', 0) + 1
        a("s_mov_b64 exec, 0")
        for w, regs in plans:
            lab = f"L_w{self.nwarm}_{w}"
            a(f"s_cmp_lg_u32 {sWV}, {w}\ns_cbranch_scc1 {lab}")
            for r in regs: a(f"s_call_b64 s[98:99], L_reg_{r}")
            a(f"{lab}:")
        a("s_mov_b64 exec, -1")

    def tag_ready(self):
        self.a("s_waitcnt lgkmcnt(0)\ns_add_u32 s80, s80, 0x9e3779b9\ns_add_u32 s81, s81, 0x7f4a7c15")

    def tag_update(self):
        self.a(f"""
        s_or_b32 s60, s2, {sWV}
        s_cmp_lg_u32 s60, 0
        s_cbranch_scc1 L_tag_done
        v_mov_b32 v4, {WS_TAG}
        v_mov_b32 v6, s80
        v_mov_b32 v7, s81
        s_mov_b64 exec, 1
        buffer_store_dwordx2 v[6:7], v4, {WS}, 0 offen
        L_tag_done:
        """)

    def nonce_issue(self, b):
        self.a(f"v_mov_b32 v{b+2}, 0\nbuffer_load_dwordx2 v[{b}:{b+1}], v{b+2}, {DBG}, 0 offen sc1")

    def nonce_finish(self, tag, b):
        self.a(f"""
        s_mov_b32 s62, 0
        L_nonce_{tag}:
        s_waitcnt vmcnt(0)
        v_readfirstlane_b32 s80, v{b}
        v_readfirstlane_b32 s81, v{b+1}
        s_add_u32 s62, s62, 1
        s_cmp_lg_u32 s81, 0
        s_cbranch_scc1 L_nonce_{tag}_ok
        s_cmp_gt_u32 s62, {SPIN}
        s_cbranch_scc1 L_nonce_{tag}_ok
        v_mov_b32 v{b+2}, 0
        buffer_load_dwordx2 v[{b}:{b+1}], v{b+2}, {DBG}, 0 offen sc1
        s_branch L_nonce_{tag}
        L_nonce_{tag}_ok:
        """)

    def flag_store(self, soff, replicas, rstride_log2, b=4):
        self.a(f"""
        v_lshl_add_u32 v{b+2}, v1, {rstride_log2}, {soff}
        v_mov_b32 v{b}, s80
        v_mov_b32 v{b+1}, s81
        s_mov_b64 exec, {(1 << replicas) - 1}
        buffer_store_dwordx2 v[{b}:{b+1}], v{b+2}, {WS}, 0 offen sc1
        s_mov_b64 exec, -1
        """)

    def wide_flag_load(self, va, vd):
        return (f"buffer_load_dwordx2 v[{vd}:{vd+1}], {va}, {WS}, 0 offen sc1\n"
                f"buffer_load_dwordx2 v[{vd+2}:{vd+3}], {va}, {WS}, 0 offen offset:{1 << FL} sc1")

    def verify(self, name, tags, t0, reload):
        a = self.a
        a(f"s_mov_b32 s62, 0\nL_ver_{name}:")
        for op, d in (("max", t0), ("min", t0 + 1)):
            rest = list(tags)
            cur = rest.pop(0)
            while rest:
                if len(rest) >= 2: a(f"v_{op}3_u32 v{d}, v{cur}, v{rest.pop(0)}, v{rest.pop(0)}")
                else: a(f"v_{op}_u32 v{d}, v{cur}, v{rest.pop(0)}")
                cur = d
            if cur != d: a(f"v_mov_b32 v{d}, v{cur}")
        a(f"""
        v_cmp_ne_u32 vcc, s80, v{t0}
        v_cmp_ne_u32 s[60:61], s80, v{t0+1}
        s_or_b64 vcc, vcc, s[60:61]
        s_cbranch_vccz L_ver_{name}_ok
        s_add_u32 s62, s62, 1
        s_cmp_gt_u32 s62, {SPIN}
        s_cbranch_scc1 L_ver_{name}_ok
        """)
        for t in reload: a(t)
        a(f"s_waitcnt vmcnt(0)\ns_branch L_ver_{name}\nL_ver_{name}_ok:")

    def poll(self, tag, wide=False, first_issued=False, va="v4", vd=6, later=0):
        a = self.a
        ld = (self.wide_flag_load(va, vd) if wide else
              f"buffer_load_dwordx2 v[{vd}:{vd+1}], {va}, {WS}, 0 offen sc1")
        a("s_mov_b32 s62, 0")
        if first_issued:
            a(f"s_waitcnt vmcnt({later})\ns_branch L_poll_{tag}_chk")
        a(f"L_poll_{tag}:\n{ld}\ns_waitcnt vmcnt(0)\nL_poll_{tag}_chk:")
        a(f"v_cmp_ne_u64 vcc, s[80:81], v[{vd}:{vd+1}]")
        if wide:
            a(f"v_cmp_ne_u64 s[60:61], s[80:81], v[{vd+2}:{vd+3}]\ns_or_b64 vcc, vcc, s[60:61]")
        a(f"""
        s_add_u32 s62, s62, 1
        s_cbranch_vccz L_poll_{tag}_ok
        s_cmp_gt_u32 s62, {SPIN}
        s_cbranch_scc1 L_poll_{tag}_ok
        s_sleep {opt('sleep', 4)}
        s_branch L_poll_{tag}
        L_poll_{tag}_ok:
        """)

    def tile_off(self, h):
        self.a(f"""
        s_lshl_b32 s60, {sM}, 16
        s_lshl_b32 s61, {sX}, 7
        s_add_u32 s60, s60, s61
        s_lshl_b32 s61, {h}, 15
        s_add_u32 s60, s60, s61
        v_lshrrev_b32 v8, 4, v1
        v_and_b32 v9, 15, v1
        v_lshlrev_b32 v2, 13, v8
        v_lshl_add_u32 v2, v9, 3, v2
        v_add_u32 v2, s60, v2
        v_add_u32 v5, 4096, v2
        """)

    def role_a(self):
        a = self.a
        self.tile_off(sWV)
        a(f"""
        v_subrev_u32 v3, 3072, v2
        s_lshl_b32 s62, {sX}, 9
        v_lshl_add_u32 v56, v9, 5, s62
        buffer_load_dwordx4 v[48:51], v56, {SK}, 0 offen
        buffer_load_dwordx4 v[52:55], v56, {SK}, 0 offen offset:16
        """)
        self.stamp("s")
        for j in range(11):
            base, off = ("v3", j * 1024) if j < 3 else ("v2", (j - 3) * 1024) if j < 7 else ("v5", (j - 7) * 1024)
            a(f"buffer_load_dwordx2 {P(10+2*j)}, {base}, {K}, 0 offen offset:{off}{self.NT}")
        for j in range(8):
            base, off = ("v2", j * 1024) if j < 4 else ("v5", (j - 4) * 1024)
            a(f"buffer_load_dwordx2 {P(32+2*j)}, {base}, {V}, 0 offen offset:{off}{self.NT}")
        self.stamp("s")
        a(f"""
        s_lshl_b32 s60, {sX}, {18 + HINT}
        s_lshl_b32 s61, {sM}, {7 + HINT}
        s_sub_u32 s60, s60, s61
        s_lshl_b32 s61, {sWV}, {6 + HINT}
        s_sub_u32 s60, s60, s61
        s_add_u32 s60, s60, {WS_KVT + 63*(64 << HINT)}
        v_lshlrev_b32 v142, {14 + HINT}, v9
        v_add_u32 v142, s60, v142
        v_sub_u32 v56, 3, v8
        v_lshl_add_u32 v142, v56, 4, v142
        s_movk_i32 s64, {4096 << HINT}
        s_movk_i32 s65, {8192 << HINT}
        s_movk_i32 s66, {12288 << HINT}
        """)
        self.c_ids()
        self.filter_load()
        self.g1_ids(); self.g2_ids()
        self.tag_ready()
        self.stamp("s")
        self.warm((0, ["kv0", "fprep", "ufetch", "conv0"]), (1, ["kv1", "addr", "conv1"]))
        self.stamp(); self.stamp("s")
        a("s_waitcnt vmcnt(8)")
        self.stamp(); self.stamp("s")
        for p in range(2):
            a.region(f"kv{p}")
            s0, s1 = 48 + 4 * p, 50 + 4 * p
            a(f"""
            v_lshlrev_b32 v102, 16, v{s0}
            v_lshlrev_b32 v103, 16, v{s1}
            v_and_b32 v104, 0xffff0000, v{s0}
            v_and_b32 v105, 0xffff0000, v{s1}
            v_lshlrev_b32 v106, 16, v{s0+1}
            v_lshlrev_b32 v107, 16, v{s1+1}
            v_and_b32 v108, 0xffff0000, v{s0+1}
            v_and_b32 v109, 0xffff0000, v{s1+1}
            """)
            for j in range(11):
                a(f"v_lshlrev_b32 v{80+2*j}, 16, v{10+2*j+p}\nv_and_b32 v{81+2*j}, 0xffff0000, v{10+2*j+p}")
            for i in range(8):
                a(f"v_lshlrev_b32 v{126+2*i}, 16, v{32+2*i+p}\nv_and_b32 v{127+2*i}, 0xffff0000, v{32+2*i+p}")
            for i in range(8): a(f"v_pk_mul_f32 {P(110+2*i)}, {P(80+2*i)}, {P(108)}")
            for i in range(8): a(f"v_pk_fma_f32 {P(110+2*i)}, {P(82+2*i)}, {P(106)}, {P(110+2*i)}")
            for i in range(8): a(f"v_pk_fma_f32 {P(110+2*i)}, {P(84+2*i)}, {P(104)}, {P(110+2*i)}")
            for i in range(8): a(f"v_pk_fma_f32 {P(110+2*i)}, {P(86+2*i)}, {P(102)}, {P(110+2*i)}")
            for i in range(8): a(f"v_pk_mul_f32 {P(110+2*i)}, {P(110+2*i)}, {P(126+2*i)}")
            o = 144 + 8 * p
            for j in range(4):
                a(f"v_cvt_pk_bf16_f32 v{o+j}, v{110+2*(7-2*j)}, v{110+2*(6-2*j)}")
                a(f"v_cvt_pk_bf16_f32 v{o+4+j}, v{111+2*(7-2*j)}, v{111+2*(6-2*j)}")
            so = ("0", "s64") if p == 0 else ("s65", "s66")
            a(f"buffer_store_dwordx4 {Q4(o)}, v142, {WS}, {so[0]} offen sc1\nbuffer_store_dwordx4 {Q4(o+4)}, v142, {WS}, {so[1]} offen sc1")
            for c in range(2 * HINT):
                r, x = o + 4 * c, 56 + 2 * p + c
                a(f"v_bitop3_b32 v{x}, v{r}, v{r+1}, v{r+2} bitop3:0x96\nv_xor_b32 v{x}, v{x}, v{r+3}")
        for sw in (("16", "32") if HINT else ()):
            for c in range(4): a(f"v_mov_b32 v{60+c}, v{56+c}")
            for c in range(4): a(f"v_permlane{sw}_swap_b32 v{56+c}, v{60+c}")
            for c in range(4): a(f"v_xor_b32 v{56+c}, v{56+c}, v{60+c}" if sw == "16" else f"v_bitop3_b32 v{56+c}, v{56+c}, v{60+c}, s80 bitop3:0x96")
        for so in (("0", "s64", "s65", "s66") if HINT else ()): a(f"buffer_store_dwordx4 v[56:59], v142, {WS}, {so} offen offset:64 sc1")
        self.stamp()

    def w1_touch(self, j):
        self.a(f"""
        s_lshl_b32 s60, {sM}, 1
        s_add_u32 s60, s60, {sWV}
        s_mul_i32 s60, s60, {8*3584}
        s_and_b32 s61, {sX}, 1
        s_mul_i32 s61, s61, 1792
        s_add_u32 s60, s60, s61
        s_movk_i32 s61, 4682
        v_add_u32 v250, {64*j}, v1
        v_min_u32 v250, 111, v250
        v_mul_u32_u24 v251, s61, v250
        v_lshrrev_b32 v251, 16, v251
        v_mul_u32_u24 v251, {3584 - 14*128}, v251
        v_lshl_add_u32 v251, v250, 7, v251
        buffer_load_dword v{248+j}, v251, {W1}, s60 offen{self.NTW1}
        """)

    def flag_a(self):
        a = self.a
        a(f"""
        s_lshl_b32 s60, {sX}, 5
        s_add_u32 s60, s60, {sM}
        s_lshl_b32 s60, s60, 1
        s_add_u32 s60, s60, {sWV}
        s_lshl_b32 s60, s60, {self.FA_LOG}
        s_add_u32 s60, s60, {FLAG_A}
        """)
        self.flag_store("s60", 1, 3, 250)
    FA_LOG = FL

    def filter_load(self):
        a = self.a
        a("s_lshl_b32 s60, s68, 12\nv_lshl_add_u32 v4, v1, 4, s60")
        for i in range(4):
            r = 176 + 8 * i
            a(f"buffer_load_dwordx4 {Q4(r)}, v4, {FK}, 0 offen offset:{1024*i}{self.NTF}")
            a(f"buffer_load_dwordx2 {P(r+4)}, v4, {FK}, 0 offen offset:{1024*i+16}{self.NTF}")

    def role_b_loads(self):
        a = self.a
        a(f"s_sub_u32 s6, {sWV}, 2")
        self.c_ids()
        self.filter_load()
        self.g1_ids(); self.g2_ids()

    def role_b_loads_gemv(self):
        a = self.a
        a(f"""
        v_lshrrev_b32 v8, 2, v1
        v_and_b32 v14, 3, v1
        s_and_b32 s60, s2, 3
        s_lshl_b32 s60, s60, 7
        v_lshl_add_u32 v2, v8, 3, s60
        v_lshlrev_b32 v3, 1, v2
        buffer_load_dwordx4 v[168:171], v3, {C}, 0 offen
        s_movk_i32 s61, 6144
        v_mul_lo_u32 v3, v2, s61
        v_lshl_add_u32 v3, v14, 4, v3
        s_lshr_b32 s60, s2, 2
        s_lshl_b32 s60, s60, 7
        s_lshl_b32 s61, s6, 6
        s_add_u32 s60, s60, s61
        s_cmp_ge_u32 s2, 192
        s_cselect_b32 s60, 0x40000000, s60
        """)
        for j in range(8):
            a(f"buffer_load_dwordx4 {Q4(16+4*j)}, v3, {WM}, s60 offen{self.NT}")
            if j < 7: a("s_add_u32 s60, s60, 6144")

    def role_b_loads2(self):
        a = self.a
        a(f"""
        s_lshl_b32 s60, s2, 13
        s_lshl_b32 s61, s6, 12
        s_add_u32 s60, s60, s61
        v_lshrrev_b32 v3, 4, v1
        v_lshlrev_b32 v3, 10, v3
        v_and_b32 v4, 15, v1
        v_lshl_add_u32 v3, v4, 4, v3
        """)
        for j in range(4): a(f"buffer_load_dwordx4 {Q4(48+4*j)}, v3, {Q}, s60 offen offset:{256*j}{self.NTQ}")

    def unit_addr(self):
        self.a(f"""
        s_lshl_b32 s61, s2, 1
        s_and_b32 s60, {sWV}, 1
        s_add_u32 s60, s60, s61
        s_lshr_b32 s20, s60, 3
        s_and_b32 s21, s60, 7
        s_mul_i32 s61, s20, 37
        s_lshr_b32 s61, s61, 8
        s_mul_i32 s62, s61, 7
        s_sub_u32 s62, s20, s62
        s_mul_i32 s61, s61, 224
        s_lshl_b32 s63, s62, 5
        s_add_u32 s22, s63, 16
        s_cmp_ge_u32 s62, 3
        s_cselect_b32 s63, s22, s63
        s_movk_i32 s22, {16*1024}
        s_cmp_eq_u32 s62, 6
        s_cselect_b32 s63, 96, s63
        s_cselect_b32 s22, {112*1024}, s22
        s_add_u32 s61, s61, s63
        s_lshl_b32 s61, s61, 10
        s_lshl_b32 s62, s21, 7
        s_add_u32 s61, s61, s62
        s_cmp_ge_u32 s60, 448
        s_cselect_b32 s23, 0x40000000, s61
        v_lshrrev_b32 v169, 2, v1
        v_lshlrev_b32 v169, 10, v169
        v_and_b32 v5, 3, v1
        v_lshl_add_u32 v169, v5, 4, v169
        """)

    def q_rows(self):
        a = self.a
        a(f"""
        s_cmp_eq_u32 {sWV}, 0
        s_cselect_b32 s60, s71, s72
        s_lshl_b32 s60, s60, 19
        s_lshr_b32 s61, s70, 1
        s_lshl_b32 s61, s61, 4
        s_add_u32 s60, s60, s61
        s_lshl_b32 s61, {sWV}, 13
        v_lshlrev_b32 v5, 10, v1
        """)
        for i in range(8):
            a(f"s_add_u32 m0, s61, {self.QS + 1024*i}")
            a(f"buffer_load_dwordx4 v5, {Q}, s60 offen lds")
            if i < 7: a("s_add_u32 s60, s60, 65536")

    def side_inputs(self):
        a = self.a
        a(f"""
        v_lshrrev_b32 v5, 1, v1
        v_mul_u32_u24 v5, 3584, v5
        v_and_b32 v6, 1, v1
        v_lshl_add_u32 v5, v6, 4, v5
        s_and_b32 s60, s2, 15
        s_mul_i32 s60, s60, 224
        s_lshr_b32 s61, s2, 4
        s_mul_i32 s61, s61, {32*3584}
        s_add_u32 s60, s60, s61
        s_lshl_b32 s61, {sWV}, 5
        s_add_u32 s60, s60, s61
        s_lshl_b32 s61, {sWV}, 11
        s_add_u32 m0, s61, {self.W1S}
        buffer_load_dwordx4 v5, {W1}, s60 offen{self.NTW1} lds
        s_add_u32 m0, s61, {self.W1S + 1024 - 128}
        buffer_load_dwordx4 v5, {W1}, s60 offen offset:128{self.NTW1} lds
        s_cmp_lt_u32 {sWV}, 2
        s_cselect_b32 s60, s71, s72
        s_lshl_b32 s60, s60, 4
        s_and_b32 s61, {sWV}, 1
        s_lshl_b32 s61, s61, 3
        s_add_u32 s43, s60, s61
        s_lshl_b32 s60, s43, 5
        v_lshl_add_u32 v5, v3, 5, v2
        v_add_u32 v5, s60, v5
        v_lshlrev_b32 v159, 4, v5
        v_add_u32 v159, {WS_STAT}, v159
        s_lshl_b32 s60, s68, 1
        v_mov_b32 v5, s60
        buffer_load_ushort v126, v5, {SD}, 0 offen
        """)

    def w2_unit_load(self):
        a = self.a
        self.unit_addr()
        a(f"s_lshl_b32 s61, s6, 12\ns_add_u32 s62, s23, s22")
        for c in range(2):
            for i in range(2):
                a(f"s_add_u32 m0, s61, {self.W2S + 2048*c + 1024*i - 64*c}")
                a(f"buffer_load_dwordx4 v169, {W2}, {'s23' if i == 0 else 's62'} offen offset:{64*c}{self.NT} lds")

    def w2_unit_pack(self, later):
        a = self.a
        a(f"""
        s_lshl_b32 s61, s6, 12
        s_add_u32 s60, s61, {self.W2S}
        v_lshrrev_b32 v10, 2, v1
        v_lshl_add_u32 v11, v3, 2, v10
        s_cmp_eq_u32 s22, {112*1024}
        s_cselect_b64 vcc, -1, 0
        s_movk_i32 s61, 1024
        s_cselect_b32 s61, 256, s61
        v_cndmask_b32 v10, v10, v11, vcc
        v_lshlrev_b32 v10, 6, v10
        v_and_b32 v11, 3, v1
        v_lshl_add_u32 v10, v11, 4, v10
        v_add_u32 v10, s60, v10
        v_add_u32 v11, s61, v10
        v_lshlrev_b32 v12, 4, v1
        s_mul_i32 s63, s21, 56
        s_add_u32 s63, s63, s20
        s_lshl_b32 s63, s63, 12
        s_add_u32 s63, s63, {WS_W2P}
        s_cmp_ge_u32 s20, 56
        s_cselect_b32 s63, 0x40000000, s63
        s_waitcnt vmcnt({later})
        """)
        for dt in range(4):
            o = 2048 * (dt >> 1) + 8 * (dt & 1)
            a(f"ds_read_b64_tr_b16 {P(16+4*dt)}, v10 offset:{o}\nds_read_b64_tr_b16 {P(18+4*dt)}, v11 offset:{o}")
        a("s_waitcnt lgkmcnt(0)")
        for dt in range(4): a(f"buffer_store_dwordx4 {Q4(16+4*dt)}, v12, {WS}, s63 offen offset:{1024*dt} sc1")

    CSZ = 4160
    QS = 32768 + 69632
    W1S = 32768 + 112640
    W2S = 32768 + 120832
    GVS = 32768 + 129024
    def filter_copies(self):
        a = self.a
        a(f"""
        s_mul_i32 s60, {sWV}, {4*self.CSZ}
        s_add_u32 s60, s60, {self.WB}
        v_lshl_add_u32 v4, v1, 4, s60
        v_mov_b32 v100, 0
        v_mov_b32 v101, 0
        v_mov_b32 v102, 0
        v_mov_b32 v103, 0
        s_mov_b64 s[62:63], exec
        s_mov_b64 exec, 15
        """)
        for c in range(4): a(f"ds_write_b128 v4, v[100:103] offset:{c*self.CSZ}")
        a("s_mov_b64 exec, s[62:63]")
        for cc in range(1):
            for i in range(4):
                r = 176 + 8 * (4 * cc + i)
                t = 104 + 12 * (i % 2)
                o = cc * 4 * self.CSZ + 64 + 1024 * i
                pass
                a(f"ds_write_b128 v4, {Q4(r)} offset:{o}")
                for j in range(4): a(f"v_alignbit_b32 v{t+j}, v{r+j+1}, v{r+j}, 16")
                for j in range(4): a(f"v_mov_b32 v{t+4+j}, v{r+j+1}")
                for j in range(4): a(f"v_alignbit_b32 v{t+8+j}, v{r+j+2}, v{r+j+1}, 16")
                for k in range(3): a(f"ds_write_b128 v4, {Q4(t+4*k)} offset:{o + (k+1)*self.CSZ}")
                if i == 0:
                    a(f"""
                    v_lshlrev_b32 v128, 16, v{r}
                    s_mov_b64 exec, 1
                    ds_write_b32 v4, v128 offset:{o + self.CSZ - 4}
                    ds_write_b32 v4, v{r} offset:{o + 2*self.CSZ - 4}
                    ds_write_b32 v4, v128 offset:{o + 3*self.CSZ - 8}
                    ds_write_b32 v4, v{t} offset:{o + 3*self.CSZ - 4}
                    s_mov_b64 exec, s[62:63]
                    """)

    def role_b_rest(self, later, after_wait=None):
        a = self.a
        self.stamp("b")
        a(f"s_waitcnt vmcnt({later + 12})")
        for j in range(4): a(f"v_lshlrev_b32 v{100+2*j}, 16, v{168+j}\nv_and_b32 v{101+2*j}, 0xffff0000, v{168+j}")
        for j in range(8): a(f"v_mul_f32 v{108+j}, {NLOG2E}, v{100+j}")
        for j in range(8): a(f"v_exp_f32 v{108+j}, v{108+j}")
        for j in range(8): a(f"v_add_f32 v{108+j}, 1.0, v{108+j}")
        for j in range(8): a(f"v_rcp_f32 v{108+j}, v{108+j}")
        for j in range(8): a(f"v_mul_f32 v{108+j}, v{100+j}, v{108+j}")
        for j in range(4): a(f"v_cvt_pk_bf16_f32 v{100+j}, v{108+2*j}, v{109+2*j}")
        for j in range(4): a(f"v_lshlrev_b32 v{108+2*j}, 16, v{100+j}\nv_and_b32 v{109+2*j}, 0xffff0000, v{100+j}")
        self.stamp("b")
        a(f"s_waitcnt vmcnt({later + 4})")
        if after_wait: after_wait()
        self.stamp("b")
        for j in range(8):
            for e in range(4):
                a(f"v_lshlrev_b32 v{116+2*e}, 16, v{16+4*j+e}\nv_and_b32 v{117+2*e}, 0xffff0000, v{16+4*j+e}")
            sel = "op_sel_hi:[1,0,1]" if j % 2 == 0 else "op_sel:[0,1,0] op_sel_hi:[1,1,1]"
            for e in range(4):
                if j == 0: a(f"v_pk_mul_f32 {P(124+2*e)}, {P(116+2*e)}, {P(108)} op_sel_hi:[1,0]")
                else: a(f"v_pk_fma_f32 {P(124+2*e)}, {P(116+2*e)}, {P(108+2*(j//2))}, {P(124+2*e)} {sel}")
        for n in (4, 8):
            for e in range(8): a(f"v_add_f32_dpp v{124+e}, v{124+e}, v{124+e} row_ror:{n} row_mask:0xf bank_mask:0xf")
        a(f"""
        s_lshl_b32 s60, s6, 9
        s_add_u32 s60, s60, {self.GVS}
        v_lshl_add_u32 v116, v3, 7, s60
        v_and_b32 v117, 3, v1
        v_lshl_add_u32 v116, v117, 5, v116
        ds_write_b128 v116, v[124:127]
        ds_write_b128 v116, v[128:131] offset:16
        v_and_b32 v117, 31, v1
        v_lshlrev_b32 v117, 2, v117
        v_add_u32 v116, s60, v117
        ds_read_b32 v120, v116
        ds_read_b32 v121, v116 offset:128
        ds_read_b32 v122, v116 offset:256
        ds_read_b32 v123, v116 offset:384
        s_waitcnt vmcnt({self.n_after})
        s_and_b32 s60, s2, 3
        s_mul_i32 s60, s60, {MODP}
        s_lshr_b32 s61, s2, 2
        s_lshl_b32 s61, s61, 9
        s_add_u32 s60, s60, s61
        s_lshl_b32 s61, s6, 8
        s_add_u32 s60, s60, s61
        s_add_u32 s60, s60, {WS_MOD}
        s_cmp_ge_u32 s2, 192
        s_cselect_b32 s60, 0x40000000, s60
        v_lshlrev_b32 v117, 1, v117
        s_waitcnt lgkmcnt(0)
        v_add_f32 v120, v120, v121
        v_add_f32 v122, v122, v123
        v_add_f32 v120, v120, v122
        v_mov_b32 v121, s80
        s_mov_b32 exec_hi, 0
        buffer_store_dwordx2 v[120:121], v117, {WS}, s60 offen sc1
        s_mov_b32 exec_hi, -1
        """)
        self.stamp("b")
        a.region("brest1")
        self.role_b_tail()

    def role_b_tail(self):
        a = self.a
        for j in range(16): a(f"v_lshlrev_b32 v{100+2*j}, 16, v{48+j}\nv_and_b32 v{101+2*j}, 0xffff0000, v{48+j}")
        for j in range(8): a(f"v_pk_add_f32 {P(132+2*j)}, {P(100+4*j)}, {P(102+4*j)}")
        for st in (4, 2, 1):
            for j in range(st): a(f"v_pk_add_f32 {P(132+2*j)}, {P(132+2*j)}, {P(132+2*(j+st))}")
        a("v_add_f32 v132, v132, v133")
        for n in (8, 4, 2, 1): a(f"v_add_f32_dpp v132, v132, v132 row_ror:{n} row_mask:0xf bank_mask:0xf")
        a("v_mul_f32 v148, 0xbb000000, v132")
        for j in range(16): a(f"v_pk_add_f32 {P(100+2*j)}, {P(100+2*j)}, {P(148)} op_sel_hi:[1,0]")
        for j in range(4): a(f"v_pk_mul_f32 {P(132+2*j)}, {P(100+2*j)}, {P(100+2*j)}")
        for j in range(4, 16): a(f"v_pk_fma_f32 {P(132+2*(j&3))}, {P(100+2*j)}, {P(100+2*j)}, {P(132+2*(j&3))}")
        a(f"v_pk_add_f32 {P(132)}, {P(132)}, {P(134)}\nv_pk_add_f32 {P(136)}, {P(136)}, {P(138)}\nv_pk_add_f32 {P(132)}, {P(132)}, {P(136)}\nv_add_f32 v132, v132, v133")
        for n in (8, 4, 2, 1): a(f"v_add_f32_dpp v132, v132, v132 row_ror:{n} row_mask:0xf bank_mask:0xf")
        a(f"""
        v_mov_b32 v133, 0x3727c5ac
        v_fmac_f32 v133, 0x3b000000, v132
        v_rsq_f32 v136, v133
        s_lshl_b32 s60, s2, 7
        s_lshl_b32 s61, s6, 6
        s_add_u32 s60, s60, s61
        s_add_u32 s60, s60, {WS_STAT}
        v_mov_b32 v137, s80
        v_mov_b32 v139, s80
        v_mul_f32 v138, v148, v136
        v_lshlrev_b32 v134, 4, v3
        s_mov_b32 exec_lo, 0x00010001
        s_mov_b32 exec_hi, 0x00010001
        buffer_store_dwordx4 v[136:139], v134, {WS}, s60 offen sc1
        s_mov_b64 exec, -1
        """)

    def flag_m(self, later):
        a = self.a
        a(f"""
        s_waitcnt vmcnt({later})
        s_lshl_b32 s60, s2, 1
        s_add_u32 s60, s60, s6
        s_lshl_b32 s60, s60, {FL}
        s_add_u32 s60, s60, {FLAG_B}
        """)
        self.flag_store("s60", 8, 9 + FL, 250)

    def filter_prep(self, mid):
        a = self.a
        a(f"""
        s_mul_i32 s73, {sWV}, {self.FSZ}
        s_add_u32 s73, s73, {self.FB}
        v_and_b32 v2, 15, v1
        v_lshrrev_b32 v3, 4, v1
        v_lshl_add_u32 v4, v1, 4, s73
        v_mov_b32 v6, 0
        v_mov_b32 v7, 0
        v_mov_b32 v8, 0
        v_mov_b32 v9, 0
        v_add_u32 v5, 1, v2
        v_and_b32 v10, 3, v5
        v_mul_u32_u24 v10, {self.CSZ}, v10
        v_and_b32 v5, 28, v5
        v_lshl_add_u32 v5, v5, 1, v10
        v_and_b32 v10, 1, v3
        v_lshl_add_u32 v5, v10, 4, v5
        s_mul_i32 s60, {sWV}, {4*self.CSZ}
        s_add_u32 s60, s60, {self.WB}
        v_add_u32 v5, s60, v5
        v_lshrrev_b32 v10, 1, v3
        s_add_u32 s60, s71, 1
        s_lshl_b32 s60, s60, 9
        s_add_u32 s61, s72, 1
        s_lshl_b32 s61, s61, 9
        v_mad_u32_u24 v11, v10, s60, v5
        v_mad_u32_u24 v12, v10, s61, v5
        v_add_u32 v15, s60, v11
        v_subrev_u32 v12, s60, v12
        s_cmp_eq_u32 s69, 0
        s_cselect_b64 vcc, -1, 0
        v_cndmask_b32 v13, v11, v12, vcc
        """)
        for n in range(81):
            if n == opt('fa', 10): mid()
            b = "v11" if n < 16 else "v13" if n < 32 else "v12"
            a(f"ds_read_b64 {self.Fhalf(n,0)}, {b} offset:{32*n}")
            a(f"ds_read_b64 {self.Fhalf(n,1)}, {b} offset:{32*n+8}")
        a("ds_read_b64 v[244:245], v15\nds_read_b64 v[246:247], v15 offset:8")
        a(f"ds_write_b128 v4, v[6:9] offset:6144\ns_mov_b64 exec, {(1 << 26) - 1}\nds_write_b128 v4, v[6:9] offset:7168\ns_mov_b64 exec, -1")
        a(f"""
        v_sub_u32 v5, 63, v2
        v_mul_u32_u24 v5, 96, v5
        v_add_u32 v5, s73, v5
        s_mul_i32 s60, s71, {16*96}
        s_mul_i32 s61, s72, {16*96}
        v_subrev_u32 v156, s60, v5
        v_subrev_u32 v157, s61, v5
        v_and_b32 v6, 1, v3
        v_lshlrev_b32 v6, 4, v6
        v_lshrrev_b32 v7, 1, v3
        s_add_u32 s60, s71, 1
        s_mul_i32 s60, s60, 768
        s_add_u32 s61, s72, 1
        s_mul_i32 s61, s61, 768
        v_mad_u32_u24 v80, v7, s60, v156
        v_mad_u32_u24 v82, v7, s61, v157
        v_add_u32 v80, v80, v6
        v_add_u32 v82, v82, v6
        v_subrev_u32 v82, s60, v82
        s_cmp_eq_u32 s69, 0
        s_cselect_b64 vcc, -1, 0
        v_cndmask_b32 v81, v80, v82, vcc
        v_lshlrev_b32 v6, 3, v3
        v_sub_u32 v6, 24, v6
        v_add_u32 v156, v156, v6
        v_add_u32 v157, v157, v6
        """)

    def u_fetch(self, early):
        a = self.a
        a("s_movk_i32 s60, 10923")
        for j in range(3):
            a(f"""
            v_add_u32 v10, {64*j}, v1
            v_mul_u32_u24 v11, s60, v10
            v_lshrrev_b32 v11, 16, v11
            v_mul_u32_u24 v12, 6, v11
            v_sub_u32 v10, v10, v12
            v_min_u32 v10, {3 + HINT}, v10
            v_lshlrev_b32 v10, 4, v10
            v_lshl_add_u32 v{16+j}, v11, {6 + HINT}, v10
            """)
        a(f"""
        s_lshl_b32 s64, s70, 2
        s_lshl_b32 s61, {sWV}, 1
        s_add_u32 s64, s64, s61
        s_lshl_b32 s64, s64, {12 + HINT}
        s_add_u32 s64, s64, {WS_KVT}
        s_mul_i32 s65, {sWV}, {2*self.FSZ}
        s_add_u32 s65, s65, {self.FB}
        v_mul_u32_u24 v19, 96, v1
        v_add_u32 v19, s65, v19
        s_lshl_b32 s61, {sWV}, 3
        v_add_u32 v15, s61, v19
        s_mov_b32 s67, 0
        """)
        def dma():
            for cc in range(2):
                for j in range(6):
                    if j % 3 == 0: a(f"s_add_u32 s66, s64, {(4096*cc + 2048*(j//3)) << HINT}")
                    a(f"s_add_u32 m0, s65, {cc*self.FSZ + 1024*j}")
                    a(f"buffer_load_dwordx4 v{16 + j%3}, {WS}, s66 offen sc1 lds")
        for i in range(opt('psa', 0)): a("s_sleep 4")
        QF = opt('qfirst', 1)
        if opt('qp', 2) == 2: self.q_rows()
        a(f"""
        s_lshl_b32 s60, {sX}, {6 + self.FA_LOG}
        s_add_u32 s60, s60, {FLAG_A}
        v_lshl_add_u32 v4, v1, {self.FA_LOG}, s60
        """)
        self.poll("A")
        self.stamp()
        dma()
        self.side_inputs()
        if not QF: self.q_rows()
        a(f"s_waitcnt vmcnt({3 if QF else 11})")
        if not HINT: return
        a("L_u_check:")
        for cc in range(2):
            for j in range(4): a(f"ds_read_b128 {Q4(20+20*cc+4*j)}, v19 offset:{cc*self.FSZ + 16*j}")
            a(f"ds_read_b32 v{36+20*cc}, v15 offset:{cc*self.FSZ + 64 + 4*cc}")
        for cc in range(2):
            a(f"s_waitcnt lgkmcnt({5 - 5*cc})")
            r = 20 + 20 * cc
            a(f"v_bitop3_b32 v{10+cc}, v{r}, v{r+1}, v{r+2} bitop3:0x96")
            for j in range(7): a(f"v_bitop3_b32 v{10+cc}, v{10+cc}, v{r+3+2*j}, v{r+4+2*j} bitop3:0x96")
        a(f"""
        v_cmp_ne_u32 vcc, s80, v10
        v_cmp_ne_u32 s[60:61], s80, v11
        s_or_b64 vcc, vcc, s[60:61]
        s_cbranch_vccz L_u_ok
        s_add_u32 s67, s67, 1
        s_cmp_gt_u32 s67, {SPIN}
        s_cbranch_scc1 L_u_ok
        """)
        dma()
        a("s_waitcnt vmcnt(0)\ns_branch L_u_check\nL_u_ok:")

    def conv_main(self, hook):
        a = self.a
        D = 6
        off = lambda n: 96 * (n >> 1) + 32 * (n & 1)
        base = lambda n: "v80" if n < 16 else "v81" if n < 32 else "v82"
        Br = lambda n: Q4(48 + 4 * (n % 8))
        def rd(n):
            if n < 80: a(f"ds_read_b128 {Br(n)}, {base(n)} offset:{off(n)}")
        def step(n, c0="v[84:87]", c1="v[88:91]", d0="v[84:87]", d1="v[88:91]", a1=None):
            rd(n + D)
            a(f"s_waitcnt lgkmcnt({min(D, 79 - n)})")
            a(f"v_mfma_f32_16x16x32_bf16 {d0}, {self.Freg(n)}, {Br(n)}, {c0}")
            a(f"v_mfma_f32_16x16x32_bf16 {d1}, {a1 or self.Freg(n+1)}, {Br(n)}, {c1}")
        for n in range(D): rd(n)
        def boundary(n, ty):
            a(f"s_cmp_eq_u32 s69, {ty}\ns_cbranch_scc0 L_cb{n}_no")
            h = list(a.hist)
            step(n, d0="v[92:95]", d1="v[96:99]", a1="v[244:247]")
            step(n + 1, c0="0", c1="0")
            a(f"s_branch L_cb{n}_done\nL_cb{n}_no:")
            a.hist = h
            step(n); step(n + 1)
            a(f"L_cb{n}_done:")
            hook(n); hook(n + 1)
        step(0, c0="0", c1="0"); hook(0)
        for n in range(1, 15): step(n); hook(n)
        boundary(15, 0)
        for n in range(17, 31): step(n); hook(n)
        boundary(31, 1)
        for n in range(33, 80): step(n); hook(n)

    def epi_addr(self):
        self.a(f"""
        v_and_b32 v161, 3, v1
        s_movk_i32 s60, {MODP}
        v_mul_u32_u24 v161, s60, v161
        v_bfe_u32 v5, v1, 2, 2
        v_lshl_add_u32 v161, v5, 12, v161
        v_lshl_add_u32 v161, v3, 3, v161
        s_lshl_b32 s60, s70, 5
        s_add_u32 s60, s60, {WS_MOD}
        v_add_u32 v161, s60, v161
        s_lshl_b32 s60, {sX}, 9
        s_mul_i32 s61, {sWV}, 112
        s_add_u32 s60, s60, s61
        s_add_u32 s60, s60, s77
        s_lshl_b32 s60, s60, {FL}
        s_add_u32 s60, s60, {FLAG_B}
        v_min_u32 v5, 13, v1
        v_lshl_add_u32 v248, v5, {FL + 3}, s60
        """)

    def epi_load_list(self):
        L = [f"buffer_load_dwordx2 v[124:125], v161, {WS}, 0 offen sc1"]
        for i in range(4):
            L.append(f"buffer_load_dwordx4 {Q4(108+4*i)}, v159, {WS}, 0 offen offset:{2048*(i>>1) + 256*(i&1)} sc1")
        return L

    def conv_epilogue(self):
        a = self.a
        xi, RS = self.XI, self.XI_RS
        for sl in range(2):
            for t in range(2):
                a(f"ds_read_b64 {P(140+4*sl+2*t)}, v{156+sl} offset:{32-32*t}")
        self.verify("e", [125] + [109 + 2*i for i in range(8)], 150, self.epi_load_list())
        a(f"""
        v_add_f32_dpp v124, v124, v124 quad_perm:[1,0,3,2] row_mask:0xf bank_mask:0xf
        v_add_f32_dpp v124, v124, v124 quad_perm:[2,3,0,1] row_mask:0xf bank_mask:0xf
        s_lshl_b32 s60, {sWV}, 4
        s_add_u32 s60, s60, 8
        v_cvt_pk_bf16_f32 v124, v124, v124
        v_and_b32 v124, 0xffff0000, v124
        v_add_f32 v125, 1.0, v124
        v_cvt_pk_bf16_f32 v125, v125, v125
        v_and_b32 v125, 0xffff0000, v125
        v_readlane_b32 s61, v124, s60
        v_lshlrev_b32 v148, 16, v126
        s_mul_i32 s60, {sWV}, {RS}
        s_add_u32 s60, s60, {xi}
        v_mul_u32_u24 v4, 144, v3
        v_lshl_add_u32 v4, v2, 3, v4
        v_add_u32 v4, s60, v4
        v_mov_b32 v149, s61
        s_waitcnt lgkmcnt(0)
        """)
        for sl in range(2):
            for t in range(2):
                i = 2 * sl + t
                acc = (92 if sl == 0 else 84) + 4 * t
                kv, w = 140 + 2 * i, 160 + 4 * (i & 1)
                a(f"""
                v_and_b32 v{w}, 0xffff0000, v{kv+1}
                v_lshlrev_b32 v{w+1}, 16, v{kv+1}
                v_and_b32 v{w+2}, 0xffff0000, v{kv}
                v_lshlrev_b32 v{w+3}, 16, v{kv}
                v_pk_fma_f32 {P(w)}, {P(w)}, {P(148)}, {P(acc)} op_sel_hi:[1,0,1]
                v_pk_fma_f32 {P(w+2)}, {P(w+2)}, {P(148)}, {P(acc+2)} op_sel_hi:[1,0,1]
                v_pk_mul_f32 {P(w)}, {P(w)}, {P(148)} op_sel:[0,1] op_sel_hi:[1,1]
                v_pk_mul_f32 {P(w+2)}, {P(w+2)}, {P(148)} op_sel:[0,1] op_sel_hi:[1,1]
                v_cvt_pk_bf16_f32 v{168+2*(i&1)}, v{w}, v{w+1}
                v_cvt_pk_bf16_f32 v{169+2*(i&1)}, v{w+2}, v{w+3}
                ds_write_b64 v4, {P(168+2*(i&1))} offset:{1152*sl + 576*t}
                """)
        a(f"""
        s_lshr_b32 s60, {sWV}, 1
        s_and_b32 s61, {sWV}, 1
        s_mul_i32 s62, s60, 1152
        s_lshl_b32 s63, s61, 6
        s_add_u32 s62, s62, s63
        s_add_u32 s62, s62, {xi}
        v_bfe_u32 v5, v1, 2, 2
        v_mul_u32_u24 v5, {RS}, v5
        v_and_b32 v6, 3, v1
        v_mul_u32_u24 v6, 144, v6
        v_add3_u32 v5, v5, v6, s62
        v_lshl_add_u32 v5, v3, 3, v5
        s_lshl_b32 s60, {sWV}, 12
        s_and_b32 s61, s70, 1
        s_lshl_b32 s61, s61, 3
        s_add_u32 s60, s60, s61
        s_add_u32 s60, s60, {self.QS}
        v_lshl_add_u32 v6, v3, 5, v2
        v_lshl_add_u32 v6, v6, 4, s60
        s_waitcnt lgkmcnt(0)
        s_barrier
        ds_read_b64 v[100:101], v6
        ds_read_b64 v[102:103], v6 offset:256
        ds_read_b64 v[104:105], v6 offset:2048
        ds_read_b64 v[106:107], v6 offset:2304
        ds_read_b64_tr_b16 v[160:161], v5
        ds_read_b64_tr_b16 v[162:163], v5 offset:576
        ds_read_b64_tr_b16 v[164:165], v5 offset:32
        ds_read_b64_tr_b16 v[166:167], v5 offset:{576+32}
        """)
        for c in range(4):
            a(f"v_readlane_b32 s{60+c}, v125, {16*c+4}")
            a(f"v_readlane_b32 s{64+c}, v124, {16*c}")
        for c in range(4): a(f"v_mov_b32 v{128+c}, s{60+c}\nv_mov_b32 v{132+c}, s{64+c}")
        a("s_waitcnt lgkmcnt(4)")
        for i in range(4):
            q, A, u = 100 + 2 * i, 108 + 4 * i, 64 + 8 * i
            a(f"""
            v_lshlrev_b32 v{u}, 16, v{q}
            v_and_b32 v{u+1}, 0xffff0000, v{q}
            v_lshlrev_b32 v{u+2}, 16, v{q+1}
            v_and_b32 v{u+3}, 0xffff0000, v{q+1}
            v_pk_fma_f32 {P(u+4)}, {P(u)}, {P(A)}, {P(A+2)} op_sel_hi:[1,0,0]
            v_pk_fma_f32 {P(u+6)}, {P(u+2)}, {P(A)}, {P(A+2)} op_sel_hi:[1,0,0]
            v_pk_fma_f32 {P(u+4)}, {P(u+4)}, {P(128)}, {P(132)}
            v_pk_fma_f32 {P(u+6)}, {P(u+6)}, {P(130)}, {P(134)}
            """)
        a(f"""
        s_lshl_b32 s62, s43, 15
        s_lshl_b32 s63, s70, 8
        s_add_u32 s62, s62, s63
        s_add_u32 s62, s62, {WS_X1}
        s_add_u32 s63, s62, {4*32768}
        v_lshlrev_b32 v6, 15, v3
        v_lshl_add_u32 v6, v2, 4, v6
        """)
        for i in range(4):
            y, u, w = 160 + 2 * i, 64 + 8 * i, 140 + 4 * (i & 1)
            a(f"""
            s_waitcnt lgkmcnt({3-i})
            v_lshlrev_b32 v{w}, 16, v{y}
            v_and_b32 v{w+1}, 0xffff0000, v{y}
            v_lshlrev_b32 v{w+2}, 16, v{y+1}
            v_and_b32 v{w+3}, 0xffff0000, v{y+1}
            v_pk_fma_f32 {P(u)}, {P(u+4)}, {P(w)}, {P(u)}
            v_pk_fma_f32 {P(u+2)}, {P(u+6)}, {P(w+2)}, {P(u+2)}
            v_cvt_pk_bf16_f32 v{y}, v{u}, v{u+1}
            v_cvt_pk_bf16_f32 v{y+1}, v{u+2}, v{u+3}
            """)
            if i & 1: a(f"buffer_store_dwordx4 {Q4(y-2)}, v6, {WS}, s{62 + (i>>1)} offen sc1")

    def g2_epi_load(self):
        a = self.a
        a(f"""
        s_lshl_b32 s60, s77, 9
        s_add_u32 s60, s60, {WS_MOD + 5*4096}
        v_lshl_add_u32 v18, v1, 3, s60
        """)
        self.gb_loads = [f"buffer_load_dwordx2 {P(10+2*k)}, v18, {WS}, {so} offen sc1" for k, so in enumerate(("0", "s12", "s13", "s14"))]
        for t in self.gb_loads: a(t)
        a(f"""
        s_lshl_b32 s60, s76, 1
        s_lshr_b32 s61, {sWV}, 1
        s_add_u32 s60, s60, s61
        s_lshl_b32 s60, s60, 15
        s_lshl_b32 s61, s77, 12
        s_add_u32 s60, s60, s61
        s_and_b32 s61, {sWV}, 1
        s_lshl_b32 s61, s61, 3
        s_add_u32 s60, s60, s61
        s_add_u32 s60, s60, {WS_X1}
        v_lshlrev_b32 v19, 9, v3
        v_lshl_add_u32 v19, v2, 4, v19
        """)
        for p in range(2):
            for h in range(2):
                a(f"buffer_load_dwordx2 {P(20+4*p+2*h)}, v19, {WS}, s60 offen offset:{2048*p + 256*h} sc1")

    def g2_epi_pre(self, tb):
        a = self.a
        self.verify("g", [11, 13, 15, 17], 6, self.gb_loads)
        a(f"""
        v_add_f32 v6, v10, v12
        v_add_f32 v7, v14, v16
        v_add_f32 v6, v6, v7
        v_cvt_pk_bf16_f32 v6, v6, v6
        v_and_b32 v6, 0xffff0000, v6
        s_lshl_b32 s60, {sWV}, 8
        s_add_u32 s60, s60, {tb}
        v_lshl_add_u32 v5, v1, 2, s60
        ds_write_b32 v5, v6
        v_lshl_add_u32 v5, v3, 5, s60
        """)
        for p in range(2):
            for h in range(2):
                a(f"ds_read_b128 a[{224+8*p+4*h}:{227+8*p+4*h}], v5 offset:{128*p + 16*h}")
        a("s_waitcnt lgkmcnt(0)")

    def g1_ids(self):
        self.a(f"""
        s_lshr_b32 s74, {sX}, 1
        s_lshl_b32 s74, s74, 2
        s_lshr_b32 s60, {sM}, 3
        s_add_u32 s74, s74, s60
        s_and_b32 s75, {sX}, 1
        s_lshl_b32 s75, s75, 3
        s_and_b32 s60, {sM}, 7
        s_add_u32 s75, s75, s60
        """)

    def w1_addr(self, r0):
        self.a(f"""
        v_mul_u32_u24 v5, 3584, v3
        v_lshlrev_b32 v6, 1, v3
        v_xor_b32 v6, v6, v2
        v_lshl_add_u32 v{r0}, v6, 4, v5
        v_xor_b32 v6, 8, v6
        v_lshl_add_u32 v{r0+1}, v6, 4, v5
        s_mul_i32 s7, s75, 224
        s_and_b32 s7, s7, -64
        s_and_b32 s16, {sM}, 7
        s_lshl_b32 s16, s16, 1
        s_lshr_b32 s61, {sM}, 3
        s_lshl_b32 s61, s61, 2
        s_add_u32 s16, s16, s61
        s_mul_i32 s16, s16, {opt('rot1', 0)}
        s_and_b32 s16, s16, 15
        s_add_u32 s17, s7, {512*3584}
        s_lshl_b32 s61, {sWV}, 2
        s_add_u32 s61, s61, s16
        s_and_b32 s61, s61, 15
        s_mul_i32 s61, s61, {32*3584}
        s_add_u32 s7, s7, s61
        s_lshl_b32 s78, {sWV}, 15
        s_add_u32 s78, s78, {self.WB}
        """)

    def w1_one(self, r0, n):
        a = self.a
        a(f"s_add_u32 m0, s78, {1024*n}")
        a(f"buffer_load_dwordx4 v{r0 + n%2}, {W1}, s7 offen lds")
        a(f"s_add_u32 s7, s7, {4*3584}")
        if n % 8 == 7: a(f"s_cmp_eq_u32 s7, s17\ns_cselect_b32 s60, {512*3584}, 0\ns_sub_u32 s7, s7, s60")

    def w2_touch(self, j):
        self.a(f"buffer_load_dword v{248+j}, v250, {WS}, 0 offen sc1" if j == 0 else
               f"buffer_load_dword v{248+j}, v251, {WS}, 0 offen sc1")

    def w2_touch_addr(self):
        self.a(f"""
        s_lshl_b32 s60, {sM}, 2
        s_add_u32 s60, s60, {sWV}
        s_mul_i32 s60, s60, {112*128}
        s_add_u32 s60, s60, {WS_W2P}
        v_lshl_add_u32 v250, v1, 7, s60
        v_add_u32 v5, 64, v1
        v_min_u32 v5, 111, v5
        v_lshl_add_u32 v251, v5, 7, s60
        """)

    def mod_addr(self):
        self.a(f"""
        s_lshr_b32 s60, s2, 4
        s_lshl_b32 s60, s60, 8
        s_add_u32 s60, s60, {WS_MOD + 3*4096}
        v_lshl_add_u32 v172, v2, 4, s60
        v_and_b32 v5, 1, v3
        v_lshl_add_u32 v172, v5, 12, v172
        s_movk_i32 s12, {MODP}
        s_mov_b32 s13, {2*MODP}
        s_mov_b32 s14, {3*MODP}
        """)

    def mod_load_list(self, r0):
        L = []
        for k, so in enumerate(("0", "s12", "s13", "s14")):
            L.append(f"buffer_load_dwordx4 {Q4(r0+4*k)}, v172, {WS}, {so} offen sc1")
        return L

    def g2_w2_addr(self, k0):
        self.a(f"""
        s_mul_i32 s79, s77, 56
        s_mul_i32 s61, {sWV}, 14
        s_add_u32 s79, s79, s61
        s_lshl_b32 s79, s79, 12
        s_add_u32 s79, s79, {WS_W2P}
        s_add_u32 s97, s79, {14*4096}
        s_lshl_b32 s18, s77, 1
        s_lshr_b32 s61, {sM}, 3
        s_mul_i32 s61, s61, 7
        s_lshr_b32 s61, s61, 1
        s_add_u32 s18, s18, s61
        s_mul_i32 s18, s18, {opt('rot2', 0)}
        s_cmp_ge_u32 s18, 14
        s_cselect_b32 s60, 14, 0
        s_sub_u32 s18, s18, s60
        s_lshl_b32 s18, s18, 12
        s_add_u32 s79, s79, s18
        v_lshlrev_b32 v9, 4, v1
        """)

    def g2_w2_one(self, i, v="v9"):
        self.a(f"buffer_load_dwordx4 a[{4*i}:{4*i+3}], {v}, {WS}, s79 offen offset:{1024*(i%4)} sc1")
        if i % 4 == 3:
            self.a(f"s_add_u32 s79, s79, 4096\ns_cmp_eq_u32 s79, s97\ns_cselect_b32 s60, {14*4096}, 0\ns_sub_u32 s79, s79, s60")

    def signal_all(self, base, replicas, tag):
        a = self.a
        a(f"""
        s_waitcnt vmcnt(0)
        s_barrier
        s_cmp_lg_u32 {sWV}, 0
        s_cbranch_scc1 L_sig{tag}_skip
        s_lshl_b32 s60, s2, {FL}
        s_add_u32 s60, s60, {base}
        """)
        self.flag_store("s60", replicas, 8 + FL)
        a(f"L_sig{tag}_skip:")

    def w_stream(self, r0, mod_wait):
        T = f"""
        v_lshrrev_b32 v14, 2, v1
        v_lshlrev_b32 v15, 5, v14
        v_and_b32 v12, 3, v1
        v_lshl_add_u32 v15, v12, 3, v15
        s_lshl_b32 s61, {sWV}, 11
        s_add_u32 s61, s61, {self.W1S}
        v_add_u32 v173, s61, v15
        v_and_b32 v10, 1, v3
        v_cvt_f32_u32 v11, v10
        v_xor_b32 v10, 1, v10
        v_lshlrev_b32 v10, 6, v10
        v_lshl_add_u32 v10, v2, 2, v10
        s_lshl_b32 s61, {sWV}, 7
        v_add_u32 v10, s61, v10
        v_lshl_add_u32 v14, v3, 3, s61
        v_and_b32 v15, 1, v1
        v_lshl_add_u32 v15, v15, 6, v14
        v_and_b32 v13, 1, v1
        v_lshlrev_b32 v13, 9, v13
        v_lshl_add_u32 v13, v3, 4, v13
        s_and_b32 s40, s2, 15
        s_lshl_b32 s40, s40, 4
        s_lshr_b32 s61, s2, 4
        s_add_u32 s40, s40, s61
        s_lshl_b32 s42, s40, 10
        s_lshl_b32 s61, {sWV}, 6
        s_add_u32 s42, s42, s61
        s_add_u32 s42, s42, {WS_UP}
        s_mul_i32 s40, s40, 7168
        s_lshl_b32 s61, {sWV}, 10
        s_add_u32 s40, s40, s61
        s_add_u32 s40, s40, {WS_W1P}
        s_add_u32 s41, s40, 4096
        s_cmp_eq_u32 {sWV}, 3 | s_cselect_b32 s41, 0x40000000, s41
        WAIT
        """
        L = [x.strip() for x in T.split("\n") if x.strip()]
        L += ["ds_read_b64_tr_b16 v[16:17], v173", "ds_read_b64_tr_b16 v[18:19], v173 offset:512",
              "ds_read_b64_tr_b16 v[20:21], v173 offset:1024", "ds_read_b64_tr_b16 v[22:23], v173 offset:1536", "VERIFY"]
        for e in (0, 2): L += [f"v_add_f32 v{r0+e}, v{r0+e}, v{r0+4+e}", f"v_add_f32 v{r0+8+e}, v{r0+8+e}, v{r0+12+e}"]
        for e in (0, 2): L.append(f"v_add_f32 v{r0+e}, v{r0+e}, v{r0+8+e}")
        L += [f"v_cvt_pk_bf16_f32 v{r0}, v{r0}, v{r0+2}",
              f"v_lshlrev_b32 v{r0+4}, 16, v{r0}", f"v_and_b32 v{r0+5}, 0xffff0000, v{r0}",
              f"v_add_f32 v{r0+4}, v11, v{r0+4}", f"v_add_f32 v{r0+5}, v11, v{r0+5}",
              f"v_cvt_pk_bf16_f32 v{r0}, v{r0+4}, v{r0+5}",
              f"ds_write_b32 v10, v{r0}",
              "ds_read_b64 v[24:25], v15", "ds_read_b64 v[26:27], v15 offset:32",
              "ds_read_b64 v[28:29], v14", "ds_read_b64 v[30:31], v14 offset:32", "GAP",
              "v_mfma_f32_16x16x32_bf16 v[164:167], v[16:19], v[24:27], 0",
              "v_mfma_f32_16x16x32_bf16 v[168:171], v[20:23], v[24:27], 0"]
        for e in range(4): L += [f"v_lshlrev_b32 v{r0+2*e}, 16, v{28+e}", f"v_and_b32 v{r0+2*e+1}, 0xffff0000, v{28+e}"]
        for f in range(2):
            for e in range(4):
                w = 16 + 4 * f + e
                t = r0 + 8 + 2 * (e % 2)
                L += [f"v_lshlrev_b32 v{t}, 16, v{w}", f"v_and_b32 v{t+1}, 0xffff0000, v{w}",
                      f"v_mul_f32 v{t}, v{t}, v{r0+2*e}", f"v_mul_f32 v{t+1}, v{t+1}, v{r0+2*e+1}",
                      f"v_cvt_pk_bf16_f32 v{w}, v{t}, v{t+1}"]
            L.append(f"buffer_store_dwordx4 {Q4(16+4*f)}, v9, {WS}, s{40+f} offen sc1")
        L.append(f"s_mov_b32 exec_lo, 0x00030003 | s_mov_b32 exec_hi, 0x00030003 | buffer_store_dwordx4 v[164:167], v13, {WS}, s42 offen sc1 | buffer_store_dwordx4 v[168:171], v13, {WS}, s42 offen offset:256 sc1 | s_mov_b64 exec, -1")
        return L

    UPS = 32768 + 114688
    def g1_addr(self):
        self.a(f"""
        s_lshl_b32 s64, s74, 2
        s_add_u32 s64, s64, {sWV}
        s_lshl_b32 s64, s64, 15
        s_add_u32 s64, s64, {WS_X1}
        s_lshl_b32 s65, s75, 4
        s_add_u32 s65, s65, {sWV}
        s_mul_i32 s65, s65, 7168
        s_add_u32 s65, s65, {WS_W1P}
        s_mul_i32 s66, {sWV}, 7168
        s_add_u32 s66, s66, {self.WB}
        s_lshl_b32 s67, s75, 2
        s_add_u32 s67, s67, {sWV}
        s_lshl_b32 s67, s67, 12
        s_add_u32 s67, s67, {WS_UP}
        s_mov_b32 s44, s64
        s_mul_i32 s45, s75, {16*7168}
        s_add_u32 s45, s45, {WS_W1P}
        v_lshlrev_b32 v8, 4, v1
        v_add_u32 v10, {self.WB}, v8
        v_add_u32 v11, 57344, v10
        v_lshlrev_b32 v248, 2, v0
        v_add_u32 v249, {self.UPS}, v248
        """)
        for r in range(12, 16): self.a(f"v_mov_b32 v{r}, 0x3f803f80")

    def g1_run(self, side=None, nside=0, early=False):
        a = self.a
        ops = []
        def X(i):
            def f():
                a(f"buffer_load_dwordx4 {Q4(64+4*i)}, v8, {WS}, s64 offen offset:{i%4*1024} sc1")
                if i % 4 == 3: a("s_add_u32 s64, s64, 4096")
            return (("x", i), f)
        def W(gm, j):
            def f():
                if j % 4 == 0: a(f"s_add_u32 m0, s66, {gm*4*7168 + 1024*j}\ns_add_u32 s60, s65, {gm*4*7168 + 1024*j}")
                a(f"buffer_load_dwordx4 v8, {WS}, s60 offen offset:{1024*(j%4)} sc1 lds")
            return (("w", gm, j), f)
        def UPl(j):
            def f():
                if j == 0: a(f"s_lshl_b32 s60, {sWV}, 12\ns_add_u32 m0, s60, {self.UPS}")
                a(f"buffer_load_dwordx4 v8, {WS}, s67 offen offset:{1024*j} sc1 lds")
            return (("u", j), f)
        if early == "weights":
            for gm in range(4):
                for j in range(7): W(gm, j)[1]()
            for j in range(4): UPl(j)[1]()
            return
        AH = opt('ah', 14)
        if early:
            ops += [X(i) for i in range(AH)]
            xi, sd = AH, 0
            while xi < 32 or sd < nside:
                if xi < 32: ops.append(X(xi)); xi += 1
                if sd < nside: ops.append((("s", sd), side)); sd += 1
        else:
            for gm in range(4):
                ops += [W(gm, j) for j in range(7)]
                if gm == 3: ops += [UPl(j) for j in range(4)]
                ops += [X(i) for i in range(8 * gm, 8 * gm + 8)]
        keys = [k for k, _ in ops]
        pos = [0]
        def issue(n=1):
            for _ in range(n):
                if pos[0] < len(ops): ops[pos[0]][1](); pos[0] += 1
        def wait(key):
            i = keys.index(key)
            while pos[0] <= i: issue()
            a(f"s_waitcnt vmcnt({pos[0] - 1 - i})")
        if opt('gt', 0):
            nt = opt('gt', 0) - 1
            issue(nt)
            a(f"""
            s_and_b32 s61, {sM}, 7
            s_lshl_b32 s61, s61, 12
            v_and_b32 v6, 31, v1
            v_lshl_add_u32 v6, v6, 7, s61
            s_lshr_b32 s61, {sM}, 3
            s_lshl_b32 s61, s61, 2
            s_add_u32 s61, s61, {sWV}
            s_mul_i32 s61, s61, {56*128}
            v_min_u32 v7, 55, v1
            v_lshl_add_u32 v7, v7, 7, s61
            buffer_load_dword v5, v7, {WS}, s45 offen sc1
            buffer_load_dword v4, v6, {WS}, s44 offen sc1
            """)
            for _ in range(2):
                ops.insert(pos[0], (("t", pos[0]), None)); keys.insert(pos[0], ("t", pos[0])); pos[0] += 1
        issue((AH if early else opt('g1pre', 22)) - (opt('gt', 0) - 1 if opt('gt', 0) else 0))
        NR, D = 8, 7
        Wr = lambda n: 16 + 4 * (n % NR)
        def rd(n):
            if n < 112:
                k, ft = divmod(n, 7)
                if ft == 0 and k % 4 == 0 and not early:
                    wait(("w", k // 4, 6) if k < 12 else ("u", 3))
                    a("s_barrier")
                a(f"ds_read_b128 {Q4(Wr(n))}, {'v10' if k < 8 else 'v11'} offset:{(k % 8) * 7168 + 1024 * ft}")
        def swaps(k):
            x = 64 + 8 * k
            wait(("x", 2 * k + 1))
            a(f"v_swap_b32 v{x+2}, v{x+4}\nv_swap_b32 v{x+3}, v{x+5}")
        for n in range(D): rd(n)
        swaps(0)
        tail = self.g1_tail_setup()
        for k in range(16):
            x = 64 + 8 * k
            if k in (4, 8, 12): a.region("g1" + "abcd"[k // 4])
            if k % 2 == 0: self.stamp("h")
            for ft in range(7):
                n = 7 * k + ft
                a(f"s_waitcnt lgkmcnt({min(D - 1, 111 - n)})")
                d = 192 + 8 * ft
                a(f"v_mfma_f32_16x16x32_bf16 {Q4(d)}, {Q4(Wr(n))}, {Q4(x)}, {'0' if k == 0 else Q4(d)}")
                if ft in (0, 2, 4, 6): issue()
                a(f"v_mfma_f32_16x16x32_bf16 {Q4(d+4)}, {Q4(Wr(n))}, {Q4(x+4)}, {'0' if k == 0 else Q4(d+4)}")
                if k == 12 and ft < 4:
                    for j in range(4): a(f"ds_read_b32 v{64+4*ft+j}, v249 offset:{1024*(4*ft+j)}")
                if k == 13 and ft >= 2:
                    st = {2: 8, 3: 4, 4: 2, 5: 1}.get(ft)
                    if st:
                        for j in range(st): a(f"v_add_f32 v{64+j}, v{64+j}, v{64+j+st}")
                    if ft == 6: a(f"v_mul_f32 v64, {NLOG2E}, v64\nds_write_b32 v248, v64 offset:{self.T_U}")
                if k == 15 and ft == 0: a("s_barrier")
                if k == 15:
                    a(f"ds_read_b128 {Q4(64+8*ft)}, v4 offset:{self.T_U + 64*ft}\nds_read_b128 {Q4(68+8*ft)}, v4 offset:{self.T_U + 512 + 64*ft}")
                if k >= 10:
                    for _ in range(2):
                        if tail: a(tail.pop(0))
                rd(n + D)
                if ft in (2, 4):
                    t = (ft - 2) // 2
                    for j, A in ((0, "v[12:15]"), (1, Q4(x + 4 * t))):
                        d = 48 + 8 * t + 4 * j
                        a(f"v_mfma_f32_16x16x32_bf16 {Q4(d)}, {A}, {Q4(x+4*t)}, {'0' if k == 0 else Q4(d)}")
                        if ft == 4 and j == 0 and k < 15: swaps(k + 1)
        assert pos[0] == len(ops) and not tail

    def g1_tail_setup(self):
        T = f"""
        v_lshlrev_b32 v4, 4, v3
        v_lshrrev_b32 v5, 2, v2
        v_lshl_add_u32 v5, v5, 4, v2
        v_lshlrev_b32 v5, 2, v5
        v_and_b32 v6, 3, v1
        v_cmp_eq_u32 s[20:21], 1, v6
        v_cmp_eq_u32 s[22:23], 2, v6
        v_cmp_eq_u32 s[40:41], 3, v6
        s_lshl_b32 s44, s74, 1
        s_lshr_b32 s61, {sWV}, 1
        s_add_u32 s44, s44, s61
        s_lshl_b32 s46, s44, 4
        s_add_u32 s46, s46, s75
        s_lshr_b32 s47, s46, 1
        s_and_b32 s62, {sWV}, 1
        s_lshl_b32 s46, s46, 1
        s_add_u32 s46, s46, s62
        s_lshl_b32 s46, s46, 10
        s_add_u32 s46, s46, {WS_HC}
        s_lshl_b32 s47, s47, 1
        s_add_u32 s47, s47, s62
        s_lshl_b32 s47, s47, 9
        s_and_b32 s63, s75, 1
        s_lshl_b32 s61, s63, 8
        s_add_u32 s47, s47, s61
        s_add_u32 s47, s47, {WS_HM}
        s_mul_i32 s44, s44, 56
        s_lshr_b32 s61, s75, 1
        s_mul_i32 s61, s61, 7
        s_add_u32 s44, s44, s61
        s_lshl_b32 s44, s44, 12
        s_lshl_b32 s61, s62, 11
        s_add_u32 s44, s44, s61
        s_add_u32 s44, s44, {WS_H}
        s_lshl_b32 s61, s63, 9
        s_add_u32 s45, s44, s61
        s_add_u32 s45, s45, {6*4096}
        s_mul_i32 s61, s63, {3*4096}
        s_add_u32 s44, s44, s61
        v_and_b32 v6, 1, v3
        v_lshlrev_b32 v7, 10, v6
        v_lshl_add_u32 v7, v2, 4, v7
        v_lshrrev_b32 v250, 1, v3
        v_lshl_add_u32 v7, v250, 8, v7
        v_lshlrev_b32 v250, 7, v250
        v_lshl_add_u32 v250, v2, 3, v250
        v_lshl_add_u32 v250, v6, 2, v250
        s_lshl_b32 s61, s62, 4
        s_add_u32 s61, s61, 3
        v_mad_u32_u24 v6, v6, 5, s61
        v_alignbit_b32 v251, s80, s80, v6
        s_mul_i32 s61, s62, 13
        v_mov_b32 v6, s61
        v_alignbit_b32 v252, s80, s80, v6
        v_mov_b32 v254, {NLOG2E}
        """
        return [x.strip() for x in T.split("\n") if x.strip()]

    def g1_epilogue(self, tb):
        a = self.a
        for t in range(2):
            g = 52 + 8 * t
            a(f"v_cndmask_b32 v{g}, v{g}, v{g+1}, s[20:21]\nv_cndmask_b32 v{g}, v{g}, v{g+2}, s[22:23]\nv_cndmask_b32 v{g}, v{g}, v{g+3}, s[40:41]")
            a(f"ds_bpermute_b32 v{g}, v5, v{g}")
        for t in range(2):
            sm = 48 + 8 * t
            a(f"v_mul_f32 v{sm}, 0x3b000000, v{sm}\nv_mul_f32 v{sm+1}, v{sm}, v{sm}\nv_mov_b32 v{sm+2}, 0x3b000000")
        a("s_waitcnt lgkmcnt(0)")
        for t in range(2):
            sm, g, o = 48 + 8 * t, 52 + 8 * t, 44 + 2 * t
            a(f"""
            v_fma_f32 v{g}, v{g}, v{sm+2}, -v{sm+1}
            v_max_f32 v{g}, 0, v{g}
            v_add_f32 v{g}, 0x3727c5ac, v{g}
            v_rsq_f32 v{o}, v{g}
            v_mul_f32 v{o+1}, v{sm}, v{o}
            v_sub_f32 v{o+1}, 0, v{o+1}
            v_mul_f32 v{o}, v254, v{o}
            """)
        for ft in (6, 0, 1, 2, 3, 4, 5):
            if ft == 2: a.region("g1e1")
            for t in range(2):
                d, o = 192 + 8 * ft + 4 * t, 44 + 2 * t
                u1, u2 = 64 + 8 * ft, 68 + 8 * ft
                w = 28 + 8 * t
                dst = 128 + 8 * (ft // 2) + 4 * t + 2 * (ft % 2) if ft < 6 else 152 + 2 * t
                for h in range(2): a(f"v_pk_fma_f32 {P(w+2*h)}, {P(u1+2*h)}, {P(o)}, {P(u2+2*h)} op_sel:[0,1,0] op_sel_hi:[1,1,1]")
                for h in range(2): a(f"v_pk_fma_f32 {P(d+2*h)}, {P(d+2*h)}, {P(o)}, {P(w+2*h)} op_sel_hi:[1,0,1]")
                for r in range(4): a(f"v_exp_f32 v{w+r}, v{d+r}")
                for h in range(2): a(f"v_pk_fma_f32 {P(w+2*h)}, {P(w+2*h)}, {P(254)}, {P(254)} op_sel_hi:[1,0,0]")
                for r in range(4): a(f"v_rcp_f32 v{w+r}, v{w+r}")
                for h in range(2): a(f"v_pk_mul_f32 {P(d+2*h)}, {P(d+2*h)}, {P(w+2*h)}")
                for h in range(2): a(f"v_cvt_pk_bf16_f32 v{dst+h}, v{d+2*h}, v{d+2*h+1}")
                if ft % 2 == 1:
                    b = dst - 2
                    a(f"buffer_store_dwordx4 {Q4(b)}, v8, {WS}, s44 offen offset:{1024*t} sc1")
                    c = 156 + ft // 2
                    a(f"v_bitop3_b32 v{c}, v{252 if t == 0 else c}, v{b}, v{b+1} bitop3:0x96\nv_bitop3_b32 v{c}, v{c}, v{b+2}, v{b+3} bitop3:0x96")
                elif ft == 6 and t == 1:
                    a("v_permlane16_swap_b32 v152, v154\nv_permlane16_swap_b32 v153, v155")
                    a(f"buffer_store_dwordx4 v[152:155], v7, {WS}, s45 offen sc1")
                    a("v_bitop3_b32 v251, v251, v152, v153 bitop3:0x96\nv_bitop3_b32 v251, v251, v154, v155 bitop3:0x96")
                    a(f"buffer_store_dword v251, v250, {WS}, s47 offen sc1")
            if ft in (1, 3): a("s_add_u32 s44, s44, 4096")
        a(f"v_mov_b32 v159, v252\nbuffer_store_dwordx4 v[156:159], v8, {WS}, s46 offen sc1")

    def g2_run(self):
        a = self.a
        a(f"""
        s_mul_i32 s78, s76, 56
        s_mul_i32 s61, {sWV}, 14
        s_add_u32 s78, s78, s61
        s_lshl_b32 s78, s78, 12
        s_add_u32 s78, s78, {WS_H}
        s_lshl_b32 s44, s76, 2
        s_add_u32 s44, s44, {sWV}
        s_lshl_b32 s45, s44, 11
        s_add_u32 s45, s45, {WS_HM}
        s_lshl_b32 s44, s44, 13
        s_add_u32 s44, s44, {WS_HC}
        s_add_u32 s43, s44, 4096
        s_mov_b32 s60, s80
        s_mov_b32 s61, s80
        s_lshr_b64 s[62:63], s[60:61], 13
        s_xor_b32 s46, s80, s62
        s_lshr_b64 s[62:63], s[60:61], 3
        s_mov_b32 s47, s62
        s_lshr_b64 s[62:63], s[60:61], 8
        s_xor_b32 s47, s47, s62
        s_lshr_b64 s[62:63], s[60:61], 19
        s_xor_b32 s47, s47, s62
        s_lshr_b64 s[62:63], s[60:61], 24
        s_xor_b32 s47, s47, s62
        v_lshlrev_b32 v8, 4, v1
        s_lshl_b32 s60, {sWV}, 10
        v_add_u32 v28, s60, v8
        v_add_u32 v29, 1024, v28
        v_add_u32 v30, 2048, v28
        v_add_u32 v31, 3072, v28
        v_and_b32 v29, 4095, v29
        v_and_b32 v30, 4095, v30
        v_and_b32 v31, 4095, v31
        v_lshlrev_b32 v9, 3, v1
        s_mov_b32 s19, 0
        """)

    def g2_body(self):
        a = self.a
        HR = 8
        slot = {k: 32 + 16 * (k % HR) for k in range(14)}
        loads = []
        chk = {}
        for k in range(14):
            pr, j = divmod(k, 7)
            if j == 6:
                c = 184 + 4 * pr
                chk[k] = [c, c + 1, c + 2, c + 3]
                for h in range(2):
                    loads.append((k, ("c", k, h), f"buffer_load_dwordx2 {P(c+2*h)}, v9, {WS}, s45 offen offset:{1024*pr + 512*h} sc1"))
            else:
                cb = 2 * pr + j // 3
                c = 160 + 8 * (cb % 3)
                chk[k] = [c + j % 3, c + 4 + j % 3]
                if j % 3 == 0:
                    for h in range(2):
                        loads.append((k, ("c", k, h), f"buffer_load_dwordx4 {Q4(c+4*h)}, v8, {WS}, {'s44' if cb < 2 else 's43'} offen offset:{2048*(cb%2) + 1024*h} sc1"))
            for st in range(4):
                pre = f"s_add_u32 s18, s78, {4096*k}\n" if st == 0 else ""
                loads.append((k, ("h", k, st), pre + f"buffer_load_dwordx4 {Q4(slot[k]+4*st)}, v{28+st}, {WS}, s18 offen sc1"))
        keys = [l[1] for l in loads]
        pos = [0]
        def issue(maxk):
            if pos[0] < len(loads) and loads[pos[0]][0] <= maxk:
                a(loads[pos[0]][2]); pos[0] += 1
        def wait(key):
            i = keys.index(key)
            while pos[0] <= i: issue(99)
            a(f"s_waitcnt vmcnt({pos[0] - 1 - i})")
        def vsteps(k):
            x, c = 4 + k % 2, chk[k]
            L = [("w", ("h", k, 3))]
            regs = list(c) + [slot[k] + i for i in range(16)]
            L.append(f"v_bitop3_b32 v{x}, v{regs[0]}, v{regs[1]}, v{regs[2]} bitop3:0x96")
            rest = regs[3:]
            while len(rest) >= 2: L.append(f"v_bitop3_b32 v{x}, v{x}, v{rest.pop(0)}, v{rest.pop(0)} bitop3:0x96")
            if rest: L.append(f"v_xor_b32 v{x}, v{x}, v{rest.pop(0)}")
            L.append(f"v_cmp_ne_u32 vcc, {'s47' if len(c) == 4 else 's46'}, v{x}\ns_cbranch_vccnz L_g2_retry")
            return L
        def run(t):
            if isinstance(t, tuple): wait(t[1])
            else: a(t)
        a("L_g2_start:")
        a.fence()
        for _ in range(opt('g2pre', 18)): issue(99)
        a(f"s_waitcnt vmcnt({9 + opt('w2e3', 14) + pos[0]})")
        self.g2_epi_pre(0)
        for t in vsteps(0): run(t)
        for k in range(14):
            nxt = vsteps(k + 1) if k < 13 else []
            if k in (5, 10): a.region("g2" + "abc"[k // 5])
            self.stamp("g")
            for st in range(4):
                for dt in range(4):
                    d = 192 + 16 * st + 4 * dt
                    a(f"v_mfma_f32_16x16x32_bf16 {Q4(d)}, a[{16*k+4*dt}:{16*k+4*dt+3}], {Q4(slot[k]+4*st)}, {'0' if k == 0 else Q4(d)}")
                    i = 4 * st + dt
                    if i % 3 == 0 and i < 13: issue(k + HR - 1)
                    if i >= 9:
                        for _ in range(2):
                            if nxt: run(nxt.pop(0))
            assert not nxt
        assert pos[0] == len(loads)

    def g2_retry(self):
        self.a(f"""
        L_g2_retry:
        s_waitcnt vmcnt(0)
        s_add_u32 s19, s19, 1
        s_cmp_gt_u32 s19, {SPIN}
        s_cbranch_scc1 L_g2_giveup
        s_sleep {opt('g2sleep', 2)}
        s_branch L_g2_start
        """)

def build_fused2(diag=False):
    g = G2(sc=True, diag=diag)
    a = g.a
    S = g.stamp
    kn = NAME + "_kernel"
    hdr = ["; @launch grid=(256,1,1) block=(256,1,1) lds=163840"]
    a.raw('.amdgcn_target "amdgcn-amd-amdhsa--gfx950"\n.text')
    g.entry(kn, list(range(13)), pre=g.code_prefetch if opt('cpf', 1) else None)
    a(f"s_add_u32 s60, s52, {WS_TAG}\ns_addc_u32 s61, s53, 0\ns_load_dwordx2 s[80:81], s[60:61], 0")
    a(f"s_cmp_ge_u32 {sWV}, 2\ns_cbranch_scc1 L_role_b")
    n0 = g.nst
    g.role_a()
    if HINT: g.flag_a()
    QP = opt('qp', 2)
    if QP == 0: g.q_rows()
    a(f"s_waitcnt vmcnt({(9 if HINT else 4) + (8 if QP == 0 else 0)})\ns_branch L_join1\nL_role_b:")
    a.fence()
    g.nst = n0
    a.region("end")
    a(f"s_sub_u32 s6, {sWV}, 2")
    if opt('tlb', 1):
        a(f"""
        v_min_u32 v4, 14, v1
        v_lshlrev_b32 v4, 21, v4
        v_add_u32 v4, {2*MB - 128}, v4
        buffer_load_dword v252, v4, {WS}, 0 offen
        v_mov_b32 v4, 0
        buffer_load_dword v251, v4, {OUT}, 0 offen
        buffer_load_dword v250, v4, {W1}, 0 offen
        buffer_load_dword v249, v4, {W2}, 0 offen
        """)
    g.role_b_loads_gemv()
    g.role_b_loads2()
    g.c_ids(); g.g1_ids(); g.g2_ids()
    g.tag_ready()
    g.warm((2, ["brest0", "g1a"]), (3, ["brest1", "cepi", "prep1", "g1b"])); S()
    a("v_and_b32 v2, 15, v1\nv_lshrrev_b32 v3, 4, v1")
    a.region("brest0")
    g.n_after = 12
    def after():
        g.filter_load(); g.w2_unit_load()
    g.role_b_rest(0, after_wait=after); S()
    a("s_waitcnt vmcnt(6)"); S()
    a("L_join1:")
    a.fence()
    a.region("fprep")
    g.filter_copies(); S()
    def mid():
        if HINT: return
        a(f"s_cmp_ge_u32 {sWV}, 2\ns_cbranch_scc1 L_mid_b\ns_waitcnt vmcnt({8 if QP == 0 else 0})")
        g.flag_a()
        if QP == 1:
            a("v_mov_b32 v250, v5")
            g.q_rows()
            a("v_mov_b32 v5, v250")
        a("L_mid_b:")
    g.filter_prep(mid); S()
    a.region("ufetch")
    st = dict()
    a(f"s_cmp_ge_u32 {sWV}, 2\ns_cbranch_scc1 L_role_b2")
    n0 = g.nst
    g.u_fetch(0)
    a("s_mov_b32 s17, s67")
    a("s_branch L_join2\nL_role_b2:\ns_mov_b32 s17, 0")
    a.fence()
    g.nst = n0
    g.w2_unit_pack(2)
    g.side_inputs(); S()
    a("L_join2:")
    a.region("addr")
    a.fence()
    g.epi_addr()
    g.g2_w2_addr(0)
    g.mod_addr()
    S(); S("c")
    a("s_waitcnt lgkmcnt(0)\ns_barrier")
    w2 = dict(n=0)
    def side():
        g.g2_w2_one(w2['n']); w2['n'] += 1
    a.region("conv0")
    log = []
    younger = lambda tag: len(log) - 1 - max(i for i, t in enumerate(log) if t == tag)
    modl = g.mod_load_list(32)
    st.update(hold=0, w=g.w_stream(32, 0), q=[('m', t) for t in modl] + [('e', t) for t in g.epi_load_list()])
    Q0 = opt('q0', 2)
    def hook(n):
        if n == 40: a.region("conv1")
        if n in (0, 8, 16, 24, 32, 40, 50, 60, 70, 79): S("c")
        if n >= Q0 and n % 2 == 0 and st['q']:
            tg, t = st['q'].pop(0)
            log.append(tg); a(t)
        for _ in range(3):
            if not st['w'] or st['hold'] > n: break
            t = st['w'][0]
            if t == "WAIT":
                if n < Q0 + opt('ww', 34): break
                a(f"s_waitcnt vmcnt({younger('m')})")
            elif t == "VERIFY":
                g.verify("w", [33 + 2*i for i in range(8)], 24, modl)
            elif t == "GAP":
                assert n <= 64
                st['hold'] = n + 8
            else:
                a(t.replace(" | ", "\n")); log.extend('s' * t.count("buffer_store"))
            st['w'].pop(0)
        if n == opt('fm', 1):
            a(f"s_cmp_lt_u32 {sWV}, 2\ns_cbranch_scc1 L_skip_m")
            g.flag_m(len(log) + 3)
            a("L_skip_m:")
        WM = opt('wm', 44)
        if n == WM - 14:
            a(f"buffer_load_dwordx2 v[252:253], v248, {WS}, 0 offen sc1"); log.append('f')
        if n == WM: g.poll("M", first_issued=True, va="v248", vd=252, later=younger('f'))
        if n >= WM and n % 2 == 1 and w2['n'] < opt('w2conv', 14):
            side(); log.append('w')
    g.conv_main(hook); S()
    assert not st['q']
    a.region("cepi")
    print("w_stream left after conv:", len(st['w']), file=sys.stderr)
    for t in st['w']:
        assert t not in ("WAIT", "GAP", "VERIFY")
        a(t.replace(" | ", "\n")); log.extend('s' * t.count("buffer_store"))
    a(f"s_waitcnt vmcnt({younger('e')})"); S("c")
    g.conv_epilogue(); S("c")
    a.region("prep1")
    EARLY = opt('early', 0)
    if EARLY:
        a(f"""
        s_and_b32 s60, s2, 15
        s_lshl_b32 s60, s60, 4
        s_lshr_b32 s61, s2, 4
        s_add_u32 s60, s60, s61
        s_lshl_b32 s60, s60, 2
        s_add_u32 s60, s60, {sWV}
        s_lshl_b32 s60, s60, {FL}
        s_add_u32 s60, s60, {FLAG_W}
        s_and_b32 s61, s2, 8
        s_lshl_b32 s61, s61, {7 + FL}
        s_add_u32 s60, s60, s61
        s_waitcnt vmcnt(2)
        """)
        g.flag_store("s60", 4, 11 + FL, 4)
    g.signal_all(FLAG_2, 8, 2); S()
    g.g1_addr()
    if EARLY:
        a(f"""
        s_lshl_b32 s60, {sX}, 4
        s_add_u32 s60, s60, s75
        s_lshl_b32 s60, s60, {6 + FL}
        s_add_u32 s60, s60, {FLAG_W}
        v_lshl_add_u32 v4, v1, {FL}, s60
        """)
        g.poll("W")
        g.g1_run(early="weights")
    else:
        while w2['n'] < 56 - opt('w2e3', 14): side()
    g.warm((0, ["g1c"]), (1, ["g1d"]), (2, ["g1e0", "g2a", "g2b"]), (3, ["g1e1", "g2c", "g2e"])); S()
    a(f"""
    s_lshl_b32 s60, {sX}, {8 + FL}
    s_add_u32 s60, s60, {FLAG_2}
    v_lshl_add_u32 v4, v0, {FL}, s60
    """)
    a.region("g1a")
    g.poll("2")
    a("s_barrier"); S(); S("h")
    g.g1_run(side, 56 - opt('w2e3', 18), True) if EARLY else g.g1_run()
    S()
    S("h")
    a.region("g1e0")
    g.g2_epi_load()
    g.g1_epilogue(G2.T_U - 4096)
    S("h")
    a("s_barrier"); S()
    while w2['n'] < 56: side()
    g.g2_run()
    a.region("g2a")
    for i in range(opt('g2d', 3)): a("s_sleep 4")
    S(); S("g"); S("h")
    g.g2_body(); S(); S("h")
    a("L_g2_giveup:")
    if diag and opt('cnt', 0):
        a(f"s_lshl_b32 s60, s2, 2\ns_add_u32 s60, s60, {sWV}\ns_lshl_b32 s60, s60, 7\ns_add_u32 s60, s60, {WS_DIAG + 124}\nv_mov_b32 v4, s60\nv_mov_b32 v5, s17\nbuffer_store_dword v5, v4, {WS}, 0 offen")
    a.region("g2e")
    g.g2_epilogue(G2.WB, 0)
    a.region("end")
    g.tag_update()
    g.exit(kn)
    g.g2_retry()
    a("L_warm_ret:\ns_setpc_b64 s[98:99]")
    a.raw('.section .rodata,"a"')
    a.raw(desc(kn, 512, 256))
    txt, size = add_pads(a.text(), opt('pad', 256))
    print("code bytes", size, file=sys.stderr)
    return "\n".join(hdr) + "\n" + txt

if __name__ == "__main__":
    diag = sys.argv[2] if len(sys.argv) > 2 else False
    open(sys.argv[1], "w").write(build_fused2(diag))
```

```python
import sys, os
OPT = dict(kv.split('=') for kv in os.environ.get('OPT', '').split(',') if kv)
opt = lambda k, d: int(OPT.get(k, d))
from asmlib import Asm, desc, add_pads
from gen import *

WS_W1P, WS_UP = 21 * MB, 23 * MB
WS_HC, WS_HM, WS_TAG = 26 * MB, 27 * MB, 28 * MB
MODP = 3072 * 8
FLAG_A, FLAG_B, FLAG_2, FLAG_3 = WS_FLAG, WS_FLAG + MB, WS_FLAG + 2 * MB, WS_FLAG + 3 * MB
FLAG_W = 25 * MB
HINT = opt('hint', 0)
W2L = opt('w2late', 0)
FL = opt('fl', 7)
P = lambda r: f"v[{r}:{r+1}]"
Q4 = lambda r: f"v[{r}:{r+3}]"

class G2(G):
    NT = " nt" if opt('nt', 1) else ""
    OUTM = ["", " sc1", " nt", " sc0 sc1"][opt('outm', 0)]
    NTF = " nt" if opt('ntf', 1) else ""
    NTQ = " nt" if opt('ntq', 0) else ""
    NTW1 = " nt" if opt('ntw1', 0) else ""
    FB, FSZ, WB = 1536, 7584, 32768
    XI, XI_RS = 1536, 7616
    T_GB, T_U, T_UP = 1536 + 2560, 1536 + 4608, 1536 + 7584 + 2560

    def code_prefetch(self):
        self.a("""
        s_getpc_b64 s[60:61]
        L_pc:
        v_lshlrev_b32 v4, 7, v0
        v_min_u32 v4, L_warm_ret-L_pc, v4
        v_mov_b32 v5, s61
        v_add_co_u32 v4, vcc, s60, v4
        v_addc_co_u32 v5, vcc, 0, v5, vcc
        global_load_dword v253, v[4:5], off
        """)

    def warm(self, *plans):
        if not opt('warm', 1): return
        a = self.a
        self.nwarm = getattr(self, 'nwarm', 0) + 1
        a("s_mov_b64 exec, 0")
        for w, regs in plans:
            lab = f"L_w{self.nwarm}_{w}"
            a(f"s_cmp_lg_u32 {sWV}, {w}\ns_cbranch_scc1 {lab}")
            for r in regs: a(f"s_call_b64 s[98:99], L_reg_{r}")
            a(f"{lab}:")
        a("s_mov_b64 exec, -1")

    def tag_ready(self):
        self.a("v_readfirstlane_b32 s80, v254\nv_readfirstlane_b32 s81, v255\ns_add_u32 s80, s80, 0x9e3779b9\ns_add_u32 s81, s81, 0x7f4a7c15")

    def tag_update(self):
        self.a(f"""
        s_or_b32 s60, s2, {sWV}
        s_cmp_lg_u32 s60, 0
        s_cbranch_scc1 L_tag_done
        v_mov_b32 v4, {WS_TAG}
        v_mov_b32 v6, s80
        v_mov_b32 v7, s81
        s_mov_b64 exec, 1
        buffer_store_dwordx2 v[6:7], v4, {WS}, 0 offen
        L_tag_done:
        """)

    def nonce_issue(self, b):
        self.a(f"v_mov_b32 v{b+2}, 0\nbuffer_load_dwordx2 v[{b}:{b+1}], v{b+2}, {DBG}, 0 offen sc1")

    def nonce_finish(self, tag, b):
        self.a(f"""
        s_mov_b32 s62, 0
        L_nonce_{tag}:
        s_waitcnt vmcnt(0)
        v_readfirstlane_b32 s80, v{b}
        v_readfirstlane_b32 s81, v{b+1}
        s_add_u32 s62, s62, 1
        s_cmp_lg_u32 s81, 0
        s_cbranch_scc1 L_nonce_{tag}_ok
        s_cmp_gt_u32 s62, {SPIN}
        s_cbranch_scc1 L_nonce_{tag}_ok
        v_mov_b32 v{b+2}, 0
        buffer_load_dwordx2 v[{b}:{b+1}], v{b+2}, {DBG}, 0 offen sc1
        s_branch L_nonce_{tag}
        L_nonce_{tag}_ok:
        """)

    def flag_store(self, soff, replicas, rstride_log2, b=4):
        self.a(f"""
        v_lshl_add_u32 v{b+2}, v1, {rstride_log2}, {soff}
        v_mov_b32 v{b}, s80
        v_mov_b32 v{b+1}, s81
        s_mov_b64 exec, {(1 << replicas) - 1}
        buffer_store_dwordx2 v[{b}:{b+1}], v{b+2}, {WS}, 0 offen sc1
        s_mov_b64 exec, -1
        """)

    def wide_flag_load(self, va, vd):
        return (f"buffer_load_dwordx2 v[{vd}:{vd+1}], {va}, {WS}, 0 offen sc1\n"
                f"buffer_load_dwordx2 v[{vd+2}:{vd+3}], {va}, {WS}, 0 offen offset:{1 << FL} sc1")

    def verify(self, name, tags, t0, reload):
        a = self.a
        a(f"s_mov_b32 s62, 0\nL_ver_{name}:")
        for op, d in (("max", t0), ("min", t0 + 1)):
            rest = list(tags)
            cur = rest.pop(0)
            while rest:
                if len(rest) >= 2: a(f"v_{op}3_u32 v{d}, v{cur}, v{rest.pop(0)}, v{rest.pop(0)}")
                else: a(f"v_{op}_u32 v{d}, v{cur}, v{rest.pop(0)}")
                cur = d
            if cur != d: a(f"v_mov_b32 v{d}, v{cur}")
        a(f"""
        v_cmp_ne_u32 vcc, s80, v{t0}
        v_cmp_ne_u32 s[60:61], s80, v{t0+1}
        s_or_b64 vcc, vcc, s[60:61]
        s_cbranch_vccz L_ver_{name}_ok
        s_add_u32 s62, s62, 1
        s_cmp_gt_u32 s62, {SPIN}
        s_cbranch_scc1 L_ver_{name}_ok
        """)
        for t in reload: a(t)
        a(f"s_waitcnt vmcnt(0)\ns_branch L_ver_{name}\nL_ver_{name}_ok:")

    def poll(self, tag, wide=False, first_issued=False, va="v4", vd=6, later=0):
        a = self.a
        ld = (self.wide_flag_load(va, vd) if wide else
              f"buffer_load_dwordx2 v[{vd}:{vd+1}], {va}, {WS}, 0 offen sc1")
        a("s_mov_b32 s62, 0")
        if first_issued:
            a(f"s_waitcnt vmcnt({later})\ns_branch L_poll_{tag}_chk")
        a(f"L_poll_{tag}:\n{ld}\ns_waitcnt vmcnt(0)\nL_poll_{tag}_chk:")
        a(f"v_cmp_ne_u64 vcc, s[80:81], v[{vd}:{vd+1}]")
        if wide:
            a(f"v_cmp_ne_u64 s[60:61], s[80:81], v[{vd+2}:{vd+3}]\ns_or_b64 vcc, vcc, s[60:61]")
        a(f"""
        s_add_u32 s62, s62, 1
        s_cbranch_vccz L_poll_{tag}_ok
        s_cmp_gt_u32 s62, {SPIN}
        s_cbranch_scc1 L_poll_{tag}_ok
        s_sleep {opt('sleep', 4)}
        s_branch L_poll_{tag}
        L_poll_{tag}_ok:
        """)

    def tile_off(self, h):
        self.a(f"""
        s_lshl_b32 s60, {sM}, 16
        s_lshl_b32 s61, {sX}, 7
        s_add_u32 s60, s60, s61
        s_lshl_b32 s61, {h}, 15
        s_add_u32 s60, s60, s61
        v_lshrrev_b32 v8, 4, v1
        v_and_b32 v9, 15, v1
        v_lshlrev_b32 v2, 13, v8
        v_lshl_add_u32 v2, v9, 3, v2
        v_add_u32 v2, s60, v2
        v_add_u32 v5, 4096, v2
        """)

    def role_a(self):
        a = self.a
        self.tile_off(sWV)
        a(f"""
        v_subrev_u32 v3, 3072, v2
        s_lshl_b32 s62, {sX}, 9
        v_lshl_add_u32 v56, v9, 5, s62
        buffer_load_dwordx4 v[48:51], v56, {SK}, 0 offen
        buffer_load_dwordx4 v[52:55], v56, {SK}, 0 offen offset:16
        """)
        self.stamp("s")
        for j in range(11):
            base, off = ("v3", j * 1024) if j < 3 else ("v2", (j - 3) * 1024) if j < 7 else ("v5", (j - 7) * 1024)
            a(f"buffer_load_dwordx2 {P(10+2*j)}, {base}, {K}, 0 offen offset:{off}{self.NT}")
        for j in range(8):
            base, off = ("v2", j * 1024) if j < 4 else ("v5", (j - 4) * 1024)
            a(f"buffer_load_dwordx2 {P(32+2*j)}, {base}, {V}, 0 offen offset:{off}{self.NT}")
        self.stamp("s")
        a(f"""
        s_lshl_b32 s60, {sX}, {18 + HINT}
        s_lshl_b32 s61, {sM}, {7 + HINT}
        s_sub_u32 s60, s60, s61
        s_lshl_b32 s61, {sWV}, {6 + HINT}
        s_sub_u32 s60, s60, s61
        s_add_u32 s60, s60, {WS_KVT + 63*(64 << HINT)}
        v_lshlrev_b32 v142, {14 + HINT}, v9
        v_add_u32 v142, s60, v142
        v_sub_u32 v56, 3, v8
        v_lshl_add_u32 v142, v56, 4, v142
        s_movk_i32 s64, {4096 << HINT}
        s_movk_i32 s65, {8192 << HINT}
        s_movk_i32 s66, {12288 << HINT}
        """)
        self.c_ids()
        self.filter_load()
        self.g1_ids(); self.g2_ids()
        self.stamp("s")
        self.warm((0, ["kv0", "fprep", "ufetch", "conv0"]), (1, ["kv1", "addr", "conv1"]))
        self.stamp(); self.stamp("s")
        a("s_waitcnt vmcnt(8)")
        self.tag_ready()
        self.stamp(); self.stamp("s")
        for p in range(2):
            a.region(f"kv{p}")
            s0, s1 = 48 + 4 * p, 50 + 4 * p
            a(f"""
            v_lshlrev_b32 v102, 16, v{s0}
            v_lshlrev_b32 v103, 16, v{s1}
            v_and_b32 v104, 0xffff0000, v{s0}
            v_and_b32 v105, 0xffff0000, v{s1}
            v_lshlrev_b32 v106, 16, v{s0+1}
            v_lshlrev_b32 v107, 16, v{s1+1}
            v_and_b32 v108, 0xffff0000, v{s0+1}
            v_and_b32 v109, 0xffff0000, v{s1+1}
            """)
            for j in range(11):
                a(f"v_lshlrev_b32 v{80+2*j}, 16, v{10+2*j+p}\nv_and_b32 v{81+2*j}, 0xffff0000, v{10+2*j+p}")
            for i in range(8):
                a(f"v_lshlrev_b32 v{126+2*i}, 16, v{32+2*i+p}\nv_and_b32 v{127+2*i}, 0xffff0000, v{32+2*i+p}")
            for i in range(8): a(f"v_pk_mul_f32 {P(110+2*i)}, {P(80+2*i)}, {P(108)}")
            for i in range(8): a(f"v_pk_fma_f32 {P(110+2*i)}, {P(82+2*i)}, {P(106)}, {P(110+2*i)}")
            for i in range(8): a(f"v_pk_fma_f32 {P(110+2*i)}, {P(84+2*i)}, {P(104)}, {P(110+2*i)}")
            for i in range(8): a(f"v_pk_fma_f32 {P(110+2*i)}, {P(86+2*i)}, {P(102)}, {P(110+2*i)}")
            for i in range(8): a(f"v_pk_mul_f32 {P(110+2*i)}, {P(110+2*i)}, {P(126+2*i)}")
            o = 144 + 8 * p
            for j in range(4):
                a(f"v_cvt_pk_bf16_f32 v{o+j}, v{110+2*(7-2*j)}, v{110+2*(6-2*j)}")
                a(f"v_cvt_pk_bf16_f32 v{o+4+j}, v{111+2*(7-2*j)}, v{111+2*(6-2*j)}")
            so = ("0", "s64") if p == 0 else ("s65", "s66")
            a(f"buffer_store_dwordx4 {Q4(o)}, v142, {WS}, {so[0]} offen sc1\nbuffer_store_dwordx4 {Q4(o+4)}, v142, {WS}, {so[1]} offen sc1")
            for c in range(2 * HINT):
                r, x = o + 4 * c, 56 + 2 * p + c
                a(f"v_bitop3_b32 v{x}, v{r}, v{r+1}, v{r+2} bitop3:0x96\nv_xor_b32 v{x}, v{x}, v{r+3}")
        for sw in (("16", "32") if HINT else ()):
            for c in range(4): a(f"v_mov_b32 v{60+c}, v{56+c}")
            for c in range(4): a(f"v_permlane{sw}_swap_b32 v{56+c}, v{60+c}")
            for c in range(4): a(f"v_xor_b32 v{56+c}, v{56+c}, v{60+c}" if sw == "16" else f"v_bitop3_b32 v{56+c}, v{56+c}, v{60+c}, s80 bitop3:0x96")
        for so in (("0", "s64", "s65", "s66") if HINT else ()): a(f"buffer_store_dwordx4 v[56:59], v142, {WS}, {so} offen offset:64 sc1")
        self.stamp()

    def w1_touch(self, j):
        self.a(f"""
        s_lshl_b32 s60, {sM}, 1
        s_add_u32 s60, s60, {sWV}
        s_mul_i32 s60, s60, {8*3584}
        s_and_b32 s61, {sX}, 1
        s_mul_i32 s61, s61, 1792
        s_add_u32 s60, s60, s61
        s_movk_i32 s61, 4682
        v_add_u32 v250, {64*j}, v1
        v_min_u32 v250, 111, v250
        v_mul_u32_u24 v251, s61, v250
        v_lshrrev_b32 v251, 16, v251
        v_mul_u32_u24 v251, {3584 - 14*128}, v251
        v_lshl_add_u32 v251, v250, 7, v251
        buffer_load_dword v{248+j}, v251, {W1}, s60 offen{self.NTW1}
        """)

    def flag_a(self):
        a = self.a
        a(f"""
        s_lshl_b32 s60, {sX}, 5
        s_add_u32 s60, s60, {sM}
        s_lshl_b32 s60, s60, 1
        s_add_u32 s60, s60, {sWV}
        s_lshl_b32 s60, s60, {self.FA_LOG}
        s_add_u32 s60, s60, {FLAG_A}
        """)
        self.flag_store("s60", 1, 3, 250)
    FA_LOG = FL

    def filter_load(self):
        a = self.a
        a("s_lshl_b32 s60, s68, 12\nv_lshl_add_u32 v4, v1, 4, s60")
        for i in range(4):
            r = 176 + 8 * i
            a(f"buffer_load_dwordx4 {Q4(r)}, v4, {FK}, 0 offen offset:{1024*i}{self.NTF}")
            a(f"buffer_load_dwordx2 {P(r+4)}, v4, {FK}, 0 offen offset:{1024*i+16}{self.NTF}")

    def role_b_loads(self):
        a = self.a
        a(f"s_sub_u32 s6, {sWV}, 2")
        self.c_ids()
        self.filter_load()
        self.g1_ids(); self.g2_ids()

    def role_b_loads_gemv(self):
        a = self.a
        a(f"""
        v_lshrrev_b32 v8, 2, v1
        v_and_b32 v14, 3, v1
        s_and_b32 s60, s2, 3
        s_lshl_b32 s60, s60, 7
        v_lshl_add_u32 v2, v8, 3, s60
        v_lshlrev_b32 v3, 1, v2
        buffer_load_dwordx4 v[168:171], v3, {C}, 0 offen
        s_movk_i32 s61, 6144
        v_mul_lo_u32 v3, v2, s61
        v_lshl_add_u32 v3, v14, 4, v3
        s_lshr_b32 s60, s2, 2
        s_lshl_b32 s60, s60, 7
        s_lshl_b32 s61, s6, 6
        s_add_u32 s60, s60, s61
        s_cmp_ge_u32 s2, 192
        s_cselect_b32 s60, 0x40000000, s60
        """)
        for j in range(8):
            a(f"buffer_load_dwordx4 {Q4(16+4*j)}, v3, {WM}, s60 offen{self.NT}")
            if j < 7: a("s_add_u32 s60, s60, 6144")

    def role_b_loads2(self):
        a = self.a
        a(f"""
        s_lshl_b32 s60, s2, 13
        s_lshl_b32 s61, s6, 12
        s_add_u32 s60, s60, s61
        v_lshrrev_b32 v3, 4, v1
        v_lshlrev_b32 v3, 10, v3
        v_and_b32 v4, 15, v1
        v_lshl_add_u32 v3, v4, 4, v3
        """)
        for j in range(4): a(f"buffer_load_dwordx4 {Q4(48+4*j)}, v3, {Q}, s60 offen offset:{256*j}{self.NTQ}")

    def unit_addr(self, sel=None):
        self.a(f"""
        s_lshl_b32 s61, s2, 1
        {sel or f"s_and_b32 s60, {sWV}, 1"}
        s_add_u32 s60, s60, s61
        s_lshr_b32 s20, s60, 3
        s_and_b32 s21, s60, 7
        s_mul_i32 s61, s20, 37
        s_lshr_b32 s61, s61, 8
        s_mul_i32 s62, s61, 7
        s_sub_u32 s62, s20, s62
        s_mul_i32 s61, s61, 224
        s_lshl_b32 s63, s62, 5
        s_add_u32 s22, s63, 16
        s_cmp_ge_u32 s62, 3
        s_cselect_b32 s63, s22, s63
        s_movk_i32 s22, {16*1024}
        s_cmp_eq_u32 s62, 6
        s_cselect_b32 s63, 96, s63
        s_cselect_b32 s22, {112*1024}, s22
        s_add_u32 s61, s61, s63
        s_lshl_b32 s61, s61, 10
        s_lshl_b32 s62, s21, 7
        s_add_u32 s61, s61, s62
        s_cmp_ge_u32 s60, 448
        s_cselect_b32 s23, 0x40000000, s61
        v_lshrrev_b32 v169, 2, v1
        v_lshlrev_b32 v169, 10, v169
        v_and_b32 v5, 3, v1
        v_lshl_add_u32 v169, v5, 4, v169
        """)

    def q_rows(self, h=sWV):
        a = self.a
        a(f"""
        s_cmp_eq_u32 {h}, 0
        s_cselect_b32 s60, s71, s72
        s_lshl_b32 s60, s60, 19
        s_lshr_b32 s61, s70, 1
        s_lshl_b32 s61, s61, 4
        s_add_u32 s60, s60, s61
        s_lshl_b32 s61, {h}, 13
        v_lshlrev_b32 v5, 10, v1
        """)
        for i in range(8):
            a(f"s_add_u32 m0, s61, {self.QS + 1024*i}")
            a(f"buffer_load_dwordx4 v5, {Q}, s60 offen lds")
            if i < 7: a("s_add_u32 s60, s60, 65536")

    def side_inputs(self):
        a = self.a
        a(f"""
        v_lshrrev_b32 v5, 1, v1
        v_mul_u32_u24 v5, 3584, v5
        v_and_b32 v6, 1, v1
        v_lshl_add_u32 v5, v6, 4, v5
        s_and_b32 s60, s2, 15
        s_mul_i32 s60, s60, 224
        s_lshr_b32 s61, s2, 4
        s_mul_i32 s61, s61, {32*3584}
        s_add_u32 s60, s60, s61
        s_lshl_b32 s61, {sWV}, 5
        s_add_u32 s60, s60, s61
        s_lshl_b32 s61, {sWV}, 11
        s_add_u32 m0, s61, {self.W1S}
        buffer_load_dwordx4 v5, {W1}, s60 offen{self.NTW1} lds
        s_add_u32 m0, s61, {self.W1S + 1024 - 128}
        buffer_load_dwordx4 v5, {W1}, s60 offen offset:128{self.NTW1} lds
        s_cmp_lt_u32 {sWV}, 2
        s_cselect_b32 s60, s71, s72
        s_lshl_b32 s60, s60, 4
        s_and_b32 s61, {sWV}, 1
        s_lshl_b32 s61, s61, 3
        s_add_u32 s43, s60, s61
        s_lshl_b32 s60, s43, 5
        v_lshl_add_u32 v5, v3, 5, v2
        v_add_u32 v5, s60, v5
        v_lshlrev_b32 v159, 4, v5
        v_add_u32 v159, {WS_STAT}, v159
        s_lshl_b32 s60, s68, 1
        v_mov_b32 v5, s60
        buffer_load_ushort v126, v5, {SD}, 0 offen
        """)

    def w2_half_addr(self):
        a = self.a
        self.unit_addr(f"s_lshr_b32 s60, {sWV}, 1")
        a(f"""
        s_and_b32 s60, {sWV}, 1
        s_lshl_b32 s60, s60, 6
        s_add_u32 s23, s23, s60
        s_lshl_b32 s60, {sWV}, 11
        s_add_u32 s44, s60, {self.W2S}
        v_lshrrev_b32 v174, 2, v1
        v_lshl_add_u32 v175, v3, 2, v174
        s_cmp_eq_u32 s22, {112*1024}
        s_cselect_b64 vcc, -1, 0
        s_movk_i32 s61, 1024
        s_cselect_b32 s61, 256, s61
        v_cndmask_b32 v174, v174, v175, vcc
        v_lshlrev_b32 v174, 6, v174
        v_and_b32 v175, 3, v1
        v_lshl_add_u32 v174, v175, 4, v174
        v_add_u32 v174, s44, v174
        v_add_u32 v175, s61, v174
        s_add_u32 s22, s22, s23
        s_mul_i32 s45, s21, 56
        s_add_u32 s45, s45, s20
        s_lshl_b32 s45, s45, 12
        s_and_b32 s61, {sWV}, 1
        s_lshl_b32 s61, s61, 11
        s_add_u32 s45, s45, s61
        s_add_u32 s45, s45, {WS_W2P}
        s_cmp_ge_u32 s20, 56
        s_cselect_b32 s45, 0x40000000, s45
        s_lshl_b32 s46, s2, 2
        s_add_u32 s46, s46, {sWV}
        s_lshl_b32 s46, s46, {FL}
        s_add_u32 s46, s46, {FLAG_B}
        """)

    def w2_unit_load(self):
        a = self.a
        self.unit_addr()
        a(f"s_lshl_b32 s61, s6, 12\ns_add_u32 s62, s23, s22")
        for c in range(2):
            for i in range(2):
                a(f"s_add_u32 m0, s61, {self.W2S + 2048*c + 1024*i - 64*c}")
                a(f"buffer_load_dwordx4 v169, {W2}, {'s23' if i == 0 else 's62'} offen offset:{64*c}{self.NT} lds")

    def w2_unit_pack(self, later):
        a = self.a
        a(f"""
        s_lshl_b32 s61, s6, 12
        s_add_u32 s60, s61, {self.W2S}
        v_lshrrev_b32 v10, 2, v1
        v_lshl_add_u32 v11, v3, 2, v10
        s_cmp_eq_u32 s22, {112*1024}
        s_cselect_b64 vcc, -1, 0
        s_movk_i32 s61, 1024
        s_cselect_b32 s61, 256, s61
        v_cndmask_b32 v10, v10, v11, vcc
        v_lshlrev_b32 v10, 6, v10
        v_and_b32 v11, 3, v1
        v_lshl_add_u32 v10, v11, 4, v10
        v_add_u32 v10, s60, v10
        v_add_u32 v11, s61, v10
        v_lshlrev_b32 v12, 4, v1
        s_mul_i32 s63, s21, 56
        s_add_u32 s63, s63, s20
        s_lshl_b32 s63, s63, 12
        s_add_u32 s63, s63, {WS_W2P}
        s_cmp_ge_u32 s20, 56
        s_cselect_b32 s63, 0x40000000, s63
        s_waitcnt vmcnt({later})
        """)
        for dt in range(4):
            o = 2048 * (dt >> 1) + 8 * (dt & 1)
            a(f"ds_read_b64_tr_b16 {P(16+4*dt)}, v10 offset:{o}\nds_read_b64_tr_b16 {P(18+4*dt)}, v11 offset:{o}")
        a("s_waitcnt lgkmcnt(0)")
        for dt in range(4): a(f"buffer_store_dwordx4 {Q4(16+4*dt)}, v12, {WS}, s63 offen offset:{1024*dt} sc1")

    CSZ = 4160
    QS = 32768 + 69632
    W1S = 32768 + 112640
    W2S = 32768 + 120832
    GVS = 32768 + 129024
    def filter_copies(self):
        a = self.a
        a(f"""
        s_mul_i32 s60, {sWV}, {4*self.CSZ}
        s_add_u32 s60, s60, {self.WB}
        v_lshl_add_u32 v4, v1, 4, s60
        v_mov_b32 v100, 0
        v_mov_b32 v101, 0
        v_mov_b32 v102, 0
        v_mov_b32 v103, 0
        s_mov_b64 s[62:63], exec
        s_mov_b64 exec, 15
        """)
        for c in range(4): a(f"ds_write_b128 v4, v[100:103] offset:{c*self.CSZ}")
        a("s_mov_b64 exec, s[62:63]")
        for cc in range(1):
            for i in range(4):
                r = 176 + 8 * (4 * cc + i)
                t = 104 + 12 * (i % 2)
                o = cc * 4 * self.CSZ + 64 + 1024 * i
                pass
                a(f"ds_write_b128 v4, {Q4(r)} offset:{o}")
                for j in range(4): a(f"v_alignbit_b32 v{t+j}, v{r+j+1}, v{r+j}, 16")
                for j in range(4): a(f"v_mov_b32 v{t+4+j}, v{r+j+1}")
                for j in range(4): a(f"v_alignbit_b32 v{t+8+j}, v{r+j+2}, v{r+j+1}, 16")
                for k in range(3): a(f"ds_write_b128 v4, {Q4(t+4*k)} offset:{o + (k+1)*self.CSZ}")
                if i == 0:
                    a(f"""
                    v_lshlrev_b32 v128, 16, v{r}
                    s_mov_b64 exec, 1
                    ds_write_b32 v4, v128 offset:{o + self.CSZ - 4}
                    ds_write_b32 v4, v{r} offset:{o + 2*self.CSZ - 4}
                    ds_write_b32 v4, v128 offset:{o + 3*self.CSZ - 8}
                    ds_write_b32 v4, v{t} offset:{o + 3*self.CSZ - 4}
                    s_mov_b64 exec, s[62:63]
                    """)

    def role_b_rest(self, later, after_wait=None):
        a = self.a
        self.stamp("b")
        a(f"s_waitcnt vmcnt({later + 12})")
        self.tag_ready()
        for j in range(4): a(f"v_lshlrev_b32 v{100+2*j}, 16, v{168+j}\nv_and_b32 v{101+2*j}, 0xffff0000, v{168+j}")
        for j in range(8): a(f"v_mul_f32 v{108+j}, {NLOG2E}, v{100+j}")
        for j in range(8): a(f"v_exp_f32 v{108+j}, v{108+j}")
        for j in range(8): a(f"v_add_f32 v{108+j}, 1.0, v{108+j}")
        for j in range(8): a(f"v_rcp_f32 v{108+j}, v{108+j}")
        for j in range(8): a(f"v_mul_f32 v{108+j}, v{100+j}, v{108+j}")
        for j in range(4): a(f"v_cvt_pk_bf16_f32 v{100+j}, v{108+2*j}, v{109+2*j}")
        for j in range(4): a(f"v_lshlrev_b32 v{108+2*j}, 16, v{100+j}\nv_and_b32 v{109+2*j}, 0xffff0000, v{100+j}")
        self.stamp("b")
        a(f"s_waitcnt vmcnt({later + 4})")
        if after_wait: after_wait()
        self.stamp("b")
        for j in range(8):
            for e in range(4):
                a(f"v_lshlrev_b32 v{116+2*e}, 16, v{16+4*j+e}\nv_and_b32 v{117+2*e}, 0xffff0000, v{16+4*j+e}")
            sel = "op_sel_hi:[1,0,1]" if j % 2 == 0 else "op_sel:[0,1,0] op_sel_hi:[1,1,1]"
            for e in range(4):
                if j == 0: a(f"v_pk_mul_f32 {P(124+2*e)}, {P(116+2*e)}, {P(108)} op_sel_hi:[1,0]")
                else: a(f"v_pk_fma_f32 {P(124+2*e)}, {P(116+2*e)}, {P(108+2*(j//2))}, {P(124+2*e)} {sel}")
        for n in (4, 8):
            for e in range(8): a(f"v_add_f32_dpp v{124+e}, v{124+e}, v{124+e} row_ror:{n} row_mask:0xf bank_mask:0xf")
        a(f"""
        s_lshl_b32 s60, s6, 9
        s_add_u32 s60, s60, {self.GVS}
        v_lshl_add_u32 v116, v3, 7, s60
        v_and_b32 v117, 3, v1
        v_lshl_add_u32 v116, v117, 5, v116
        ds_write_b128 v116, v[124:127]
        ds_write_b128 v116, v[128:131] offset:16
        v_and_b32 v117, 31, v1
        v_lshlrev_b32 v117, 2, v117
        v_add_u32 v116, s60, v117
        ds_read_b32 v120, v116
        ds_read_b32 v121, v116 offset:128
        ds_read_b32 v122, v116 offset:256
        ds_read_b32 v123, v116 offset:384
        s_waitcnt vmcnt({self.n_after})
        s_and_b32 s60, s2, 3
        s_mul_i32 s60, s60, {MODP}
        s_lshr_b32 s61, s2, 2
        s_lshl_b32 s61, s61, 9
        s_add_u32 s60, s60, s61
        s_lshl_b32 s61, s6, 8
        s_add_u32 s60, s60, s61
        s_add_u32 s60, s60, {WS_MOD}
        s_cmp_ge_u32 s2, 192
        s_cselect_b32 s60, 0x40000000, s60
        v_lshlrev_b32 v117, 1, v117
        s_waitcnt lgkmcnt(0)
        v_add_f32 v120, v120, v121
        v_add_f32 v122, v122, v123
        v_add_f32 v120, v120, v122
        v_mov_b32 v121, s80
        s_mov_b32 exec_hi, 0
        buffer_store_dwordx2 v[120:121], v117, {WS}, s60 offen sc1
        s_mov_b32 exec_hi, -1
        """)
        self.stamp("b")
        a.region("brest1")
        self.role_b_tail()

    def role_b_tail(self):
        a = self.a
        for j in range(16): a(f"v_lshlrev_b32 v{100+2*j}, 16, v{48+j}\nv_and_b32 v{101+2*j}, 0xffff0000, v{48+j}")
        for j in range(8): a(f"v_pk_add_f32 {P(132+2*j)}, {P(100+4*j)}, {P(102+4*j)}")
        for st in (4, 2, 1):
            for j in range(st): a(f"v_pk_add_f32 {P(132+2*j)}, {P(132+2*j)}, {P(132+2*(j+st))}")
        a("v_add_f32 v132, v132, v133")
        for n in (8, 4, 2, 1): a(f"v_add_f32_dpp v132, v132, v132 row_ror:{n} row_mask:0xf bank_mask:0xf")
        a("v_mul_f32 v148, 0xbb000000, v132")
        for j in range(16): a(f"v_pk_add_f32 {P(100+2*j)}, {P(100+2*j)}, {P(148)} op_sel_hi:[1,0]")
        for j in range(4): a(f"v_pk_mul_f32 {P(132+2*j)}, {P(100+2*j)}, {P(100+2*j)}")
        for j in range(4, 16): a(f"v_pk_fma_f32 {P(132+2*(j&3))}, {P(100+2*j)}, {P(100+2*j)}, {P(132+2*(j&3))}")
        a(f"v_pk_add_f32 {P(132)}, {P(132)}, {P(134)}\nv_pk_add_f32 {P(136)}, {P(136)}, {P(138)}\nv_pk_add_f32 {P(132)}, {P(132)}, {P(136)}\nv_add_f32 v132, v132, v133")
        for n in (8, 4, 2, 1): a(f"v_add_f32_dpp v132, v132, v132 row_ror:{n} row_mask:0xf bank_mask:0xf")
        a(f"""
        v_mov_b32 v133, 0x3727c5ac
        v_fmac_f32 v133, 0x3b000000, v132
        v_rsq_f32 v136, v133
        s_lshl_b32 s60, s2, 7
        s_lshl_b32 s61, s6, 6
        s_add_u32 s60, s60, s61
        s_add_u32 s60, s60, {WS_STAT}
        v_mov_b32 v137, s80
        v_mov_b32 v139, s80
        v_mul_f32 v138, v148, v136
        v_lshlrev_b32 v134, 4, v3
        s_mov_b32 exec_lo, 0x00010001
        s_mov_b32 exec_hi, 0x00010001
        buffer_store_dwordx4 v[136:139], v134, {WS}, s60 offen sc1
        s_mov_b64 exec, -1
        """)

    def flag_m(self, later):
        a = self.a
        a(f"""
        s_waitcnt vmcnt({later})
        s_lshl_b32 s60, s2, 1
        s_add_u32 s60, s60, s6
        s_lshl_b32 s60, s60, {FL}
        s_add_u32 s60, s60, {FLAG_B}
        """)
        self.flag_store("s60", 1, 9 + FL, 250)

    def filter_prep(self, mid):
        a = self.a
        a(f"""
        s_mul_i32 s73, {sWV}, {self.FSZ}
        s_add_u32 s73, s73, {self.FB}
        v_and_b32 v2, 15, v1
        v_lshrrev_b32 v3, 4, v1
        v_lshl_add_u32 v4, v1, 4, s73
        v_mov_b32 v6, 0
        v_mov_b32 v7, 0
        v_mov_b32 v8, 0
        v_mov_b32 v9, 0
        v_add_u32 v5, 1, v2
        v_and_b32 v10, 3, v5
        v_mul_u32_u24 v10, {self.CSZ}, v10
        v_and_b32 v5, 28, v5
        v_lshl_add_u32 v5, v5, 1, v10
        v_and_b32 v10, 1, v3
        v_lshl_add_u32 v5, v10, 4, v5
        s_mul_i32 s60, {sWV}, {4*self.CSZ}
        s_add_u32 s60, s60, {self.WB}
        v_add_u32 v5, s60, v5
        v_lshrrev_b32 v10, 1, v3
        s_add_u32 s60, s71, 1
        s_lshl_b32 s60, s60, 9
        s_add_u32 s61, s72, 1
        s_lshl_b32 s61, s61, 9
        v_mad_u32_u24 v11, v10, s60, v5
        v_mad_u32_u24 v12, v10, s61, v5
        v_add_u32 v15, s60, v11
        v_subrev_u32 v12, s60, v12
        s_cmp_eq_u32 s69, 0
        s_cselect_b64 vcc, -1, 0
        v_cndmask_b32 v13, v11, v12, vcc
        """)
        for n in range(81):
            if n == opt('fa', 10): mid()
            b = "v11" if n < 16 else "v13" if n < 32 else "v12"
            a(f"ds_read_b64 {self.Fhalf(n,0)}, {b} offset:{32*n}")
            a(f"ds_read_b64 {self.Fhalf(n,1)}, {b} offset:{32*n+8}")
        a("ds_read_b64 v[244:245], v15\nds_read_b64 v[246:247], v15 offset:8")
        a(f"ds_write_b128 v4, v[6:9] offset:6144\ns_mov_b64 exec, {(1 << 26) - 1}\nds_write_b128 v4, v[6:9] offset:7168\ns_mov_b64 exec, -1")
        a(f"""
        v_sub_u32 v5, 63, v2
        v_mul_u32_u24 v5, 96, v5
        v_add_u32 v5, s73, v5
        s_mul_i32 s60, s71, {16*96}
        s_mul_i32 s61, s72, {16*96}
        v_subrev_u32 v156, s60, v5
        v_subrev_u32 v157, s61, v5
        v_and_b32 v6, 1, v3
        v_lshlrev_b32 v6, 4, v6
        v_lshrrev_b32 v7, 1, v3
        s_add_u32 s60, s71, 1
        s_mul_i32 s60, s60, 768
        s_add_u32 s61, s72, 1
        s_mul_i32 s61, s61, 768
        v_mad_u32_u24 v80, v7, s60, v156
        v_mad_u32_u24 v82, v7, s61, v157
        v_add_u32 v80, v80, v6
        v_add_u32 v82, v82, v6
        v_subrev_u32 v82, s60, v82
        s_cmp_eq_u32 s69, 0
        s_cselect_b64 vcc, -1, 0
        v_cndmask_b32 v81, v80, v82, vcc
        v_lshlrev_b32 v6, 3, v3
        v_sub_u32 v6, 24, v6
        v_add_u32 v156, v156, v6
        v_add_u32 v157, v157, v6
        """)

    def pre_conv(self):
        self.epi_addr(); self.g2_w2_addr(0); self.mod_addr()
        if W2L: self.w2_half_addr()
        L = self.w_stream(32, 0)
        for t in L[:L.index("WAIT")]: self.a(t.replace(" | ", "\n"))

    def u_fetch(self, early):
        a = self.a
        a("s_movk_i32 s60, 10923")
        for j in range(3):
            a(f"""
            v_add_u32 v10, {64*j}, v1
            v_mul_u32_u24 v11, s60, v10
            v_lshrrev_b32 v11, 16, v11
            v_mul_u32_u24 v12, 6, v11
            v_sub_u32 v10, v10, v12
            v_min_u32 v10, {3 + HINT}, v10
            v_lshlrev_b32 v10, 4, v10
            v_lshl_add_u32 v{16+j}, v11, {6 + HINT}, v10
            """)
        a(f"""
        s_lshl_b32 s64, s70, 2
        s_lshl_b32 s61, {sWV}, 1
        s_add_u32 s64, s64, s61
        s_lshl_b32 s64, s64, {12 + HINT}
        s_add_u32 s64, s64, {WS_KVT}
        s_mul_i32 s65, {sWV}, {2*self.FSZ}
        s_add_u32 s65, s65, {self.FB}
        v_mul_u32_u24 v19, 96, v1
        v_add_u32 v19, s65, v19
        s_lshl_b32 s61, {sWV}, 3
        v_add_u32 v57, s61, v19
        s_mov_b32 s67, 0
        """)
        def dma():
            for cc in range(2):
                for j in range(6):
                    if j % 3 == 0: a(f"s_add_u32 s66, s64, {(4096*cc + 2048*(j//3)) << HINT}")
                    a(f"s_add_u32 m0, s65, {cc*self.FSZ + 1024*j}")
                    a(f"buffer_load_dwordx4 v{16 + j%3}, {WS}, s66 offen sc1 lds")
        for i in range(opt('psa', 0)): a("s_sleep 4")
        QF = opt('qfirst', 1)
        if opt('qp', 2) == 2: self.q_rows()
        a(f"""
        s_lshl_b32 s60, {sX}, {6 + self.FA_LOG}
        s_add_u32 s60, s60, {FLAG_A}
        v_lshl_add_u32 v4, v1, {self.FA_LOG}, s60
        """)
        self.poll("A")
        self.stamp()
        dma()
        self.side_inputs()
        self.pre_conv()
        a(f"s_waitcnt vmcnt({3 if QF else 11})")
        if not HINT: return
        a("L_u_check:")
        for cc in range(2):
            for j in range(4): a(f"ds_read_b128 {Q4(20+20*cc+4*j)}, v19 offset:{cc*self.FSZ + 16*j}")
            a(f"ds_read_b32 v{36+20*cc}, v57 offset:{cc*self.FSZ + 64 + 4*cc}")
        for cc in range(2):
            a(f"s_waitcnt lgkmcnt({5 - 5*cc})")
            r = 20 + 20 * cc
            a(f"v_bitop3_b32 v{58+cc}, v{r}, v{r+1}, v{r+2} bitop3:0x96")
            for j in range(7): a(f"v_bitop3_b32 v{58+cc}, v{58+cc}, v{r+3+2*j}, v{r+4+2*j} bitop3:0x96")
        a(f"""
        v_cmp_ne_u32 vcc, s80, v58
        v_cmp_ne_u32 s[60:61], s80, v59
        s_or_b64 vcc, vcc, s[60:61]
        s_cbranch_vccz L_u_ok
        s_add_u32 s67, s67, 1
        s_cmp_gt_u32 s67, {SPIN}
        s_cbranch_scc1 L_u_ok
        """)
        dma()
        a("s_waitcnt vmcnt(0)\ns_branch L_u_check\nL_u_ok:")

    def conv_main(self, hook):
        a = self.a
        D = 6
        off = lambda n: 96 * (n >> 1) + 32 * (n & 1)
        base = lambda n: "v80" if n < 16 else "v81" if n < 32 else "v82"
        Br = lambda n: Q4(48 + 4 * (n % 8))
        def rd(n):
            if n < 80: a(f"ds_read_b128 {Br(n)}, {base(n)} offset:{off(n)}")
        def step(n, c0="v[84:87]", c1="v[88:91]", d0="v[84:87]", d1="v[88:91]", a1=None):
            rd(n + D)
            a(f"s_waitcnt lgkmcnt({min(D, 79 - n)})")
            a(f"v_mfma_f32_16x16x32_bf16 {d0}, {self.Freg(n)}, {Br(n)}, {c0}")
            a(f"v_mfma_f32_16x16x32_bf16 {d1}, {a1 or self.Freg(n+1)}, {Br(n)}, {c1}")
        for n in range(D): rd(n)
        def boundary(n, ty):
            a(f"s_cmp_eq_u32 s69, {ty}\ns_cbranch_scc0 L_cb{n}_no")
            h = list(a.hist)
            step(n, d0="v[92:95]", d1="v[96:99]", a1="v[244:247]")
            step(n + 1, c0="0", c1="0")
            a(f"s_branch L_cb{n}_done\nL_cb{n}_no:")
            a.hist = h
            step(n); step(n + 1)
            a(f"L_cb{n}_done:")
            hook(n); hook(n + 1)
        step(0, c0="0", c1="0"); hook(0)
        for n in range(1, 15): step(n); hook(n)
        boundary(15, 0)
        for n in range(17, 31): step(n); hook(n)
        boundary(31, 1)
        for n in range(33, 80): step(n); hook(n)

    def epi_addr(self):
        self.a(f"""
        v_and_b32 v161, 3, v1
        s_movk_i32 s60, {MODP}
        v_mul_u32_u24 v161, s60, v161
        v_bfe_u32 v5, v1, 2, 2
        v_lshl_add_u32 v161, v5, 12, v161
        v_lshl_add_u32 v161, v3, 3, v161
        s_lshl_b32 s60, s70, 5
        s_add_u32 s60, s60, {WS_MOD}
        v_add_u32 v161, s60, v161
        s_mul_i32 s60, {sWV}, 112
        s_add_u32 s60, s60, s77
        s_lshl_b32 s60, s60, {FL + W2L}
        s_add_u32 s60, s60, {FLAG_B}
        v_and_b32 v5, 15, v1
        v_min_u32 v5, 13, v5
        v_lshl_add_u32 v248, v5, {FL + 3 + W2L}, s60
        v_bfe_u32 v5, v1, 4, 1
        v_mul_u32_u24 v5, {W2L << FL}, v5
        v_add_u32 v248, v248, v5
        """)

    def epi_load_list(self):
        L = [f"buffer_load_dwordx2 v[124:125], v161, {WS}, 0 offen sc1"]
        for i in range(4):
            L.append(f"buffer_load_dwordx4 {Q4(108+4*i)}, v159, {WS}, 0 offen offset:{2048*(i>>1) + 256*(i&1)} sc1")
        return L

    def conv_epilogue(self):
        a = self.a
        xi, RS = self.XI, self.XI_RS
        for sl in range(2):
            for t in range(2):
                a(f"ds_read_b64 {P(140+4*sl+2*t)}, v{156+sl} offset:{32-32*t}")
        self.verify("e", [125] + [109 + 2*i for i in range(8)], 150, self.epi_load_list())
        a(f"""
        v_add_f32_dpp v124, v124, v124 quad_perm:[1,0,3,2] row_mask:0xf bank_mask:0xf
        v_add_f32_dpp v124, v124, v124 quad_perm:[2,3,0,1] row_mask:0xf bank_mask:0xf
        s_lshl_b32 s60, {sWV}, 4
        s_add_u32 s60, s60, 8
        v_cvt_pk_bf16_f32 v124, v124, v124
        v_and_b32 v124, 0xffff0000, v124
        v_add_f32 v125, 1.0, v124
        v_cvt_pk_bf16_f32 v125, v125, v125
        v_and_b32 v125, 0xffff0000, v125
        v_readlane_b32 s61, v124, s60
        v_lshlrev_b32 v148, 16, v126
        s_mul_i32 s60, {sWV}, {RS}
        s_add_u32 s60, s60, {xi}
        v_mul_u32_u24 v4, 144, v3
        v_lshl_add_u32 v4, v2, 3, v4
        v_add_u32 v4, s60, v4
        v_mov_b32 v149, s61
        s_waitcnt lgkmcnt(0)
        """)
        for sl in range(2):
            for t in range(2):
                i = 2 * sl + t
                acc = (92 if sl == 0 else 84) + 4 * t
                kv, w = 140 + 2 * i, 160 + 4 * (i & 1)
                a(f"""
                v_and_b32 v{w}, 0xffff0000, v{kv+1}
                v_lshlrev_b32 v{w+1}, 16, v{kv+1}
                v_and_b32 v{w+2}, 0xffff0000, v{kv}
                v_lshlrev_b32 v{w+3}, 16, v{kv}
                v_pk_fma_f32 {P(w)}, {P(w)}, {P(148)}, {P(acc)} op_sel_hi:[1,0,1]
                v_pk_fma_f32 {P(w+2)}, {P(w+2)}, {P(148)}, {P(acc+2)} op_sel_hi:[1,0,1]
                v_pk_mul_f32 {P(w)}, {P(w)}, {P(148)} op_sel:[0,1] op_sel_hi:[1,1]
                v_pk_mul_f32 {P(w+2)}, {P(w+2)}, {P(148)} op_sel:[0,1] op_sel_hi:[1,1]
                v_cvt_pk_bf16_f32 v{168+2*(i&1)}, v{w}, v{w+1}
                v_cvt_pk_bf16_f32 v{169+2*(i&1)}, v{w+2}, v{w+3}
                ds_write_b64 v4, {P(168+2*(i&1))} offset:{1152*sl + 576*t}
                """)
        a(f"""
        s_lshr_b32 s60, {sWV}, 1
        s_and_b32 s61, {sWV}, 1
        s_mul_i32 s62, s60, 1152
        s_lshl_b32 s63, s61, 6
        s_add_u32 s62, s62, s63
        s_add_u32 s62, s62, {xi}
        v_bfe_u32 v5, v1, 2, 2
        v_mul_u32_u24 v5, {RS}, v5
        v_and_b32 v6, 3, v1
        v_mul_u32_u24 v6, 144, v6
        v_add3_u32 v5, v5, v6, s62
        v_lshl_add_u32 v5, v3, 3, v5
        s_lshl_b32 s60, {sWV}, 12
        s_and_b32 s61, s70, 1
        s_lshl_b32 s61, s61, 3
        s_add_u32 s60, s60, s61
        s_add_u32 s60, s60, {self.QS}
        v_lshl_add_u32 v6, v3, 5, v2
        v_lshl_add_u32 v6, v6, 4, s60
        s_waitcnt lgkmcnt(0)
        s_barrier
        ds_read_b64 v[100:101], v6
        ds_read_b64 v[102:103], v6 offset:256
        ds_read_b64 v[104:105], v6 offset:2048
        ds_read_b64 v[106:107], v6 offset:2304
        ds_read_b64_tr_b16 v[160:161], v5
        ds_read_b64_tr_b16 v[162:163], v5 offset:576
        ds_read_b64_tr_b16 v[164:165], v5 offset:32
        ds_read_b64_tr_b16 v[166:167], v5 offset:{576+32}
        """)
        for c in range(4):
            a(f"v_readlane_b32 s{60+c}, v125, {16*c+4}")
            a(f"v_readlane_b32 s{64+c}, v124, {16*c}")
        for c in range(4): a(f"v_mov_b32 v{128+c}, s{60+c}\nv_mov_b32 v{132+c}, s{64+c}")
        a("s_waitcnt lgkmcnt(4)")
        for i in range(4):
            q, A, u = 100 + 2 * i, 108 + 4 * i, 64 + 8 * i
            a(f"""
            v_lshlrev_b32 v{u}, 16, v{q}
            v_and_b32 v{u+1}, 0xffff0000, v{q}
            v_lshlrev_b32 v{u+2}, 16, v{q+1}
            v_and_b32 v{u+3}, 0xffff0000, v{q+1}
            v_pk_fma_f32 {P(u+4)}, {P(u)}, {P(A)}, {P(A+2)} op_sel_hi:[1,0,0]
            v_pk_fma_f32 {P(u+6)}, {P(u+2)}, {P(A)}, {P(A+2)} op_sel_hi:[1,0,0]
            v_pk_fma_f32 {P(u+4)}, {P(u+4)}, {P(128)}, {P(132)}
            v_pk_fma_f32 {P(u+6)}, {P(u+6)}, {P(130)}, {P(134)}
            """)
        a(f"""
        s_lshl_b32 s62, s43, 15
        s_lshl_b32 s63, s70, 8
        s_add_u32 s62, s62, s63
        s_add_u32 s62, s62, {WS_X1}
        s_add_u32 s63, s62, {4*32768}
        v_lshlrev_b32 v6, 15, v3
        v_lshl_add_u32 v6, v2, 4, v6
        """)
        for i in range(4):
            y, u, w = 160 + 2 * i, 64 + 8 * i, 140 + 4 * (i & 1)
            a(f"""
            s_waitcnt lgkmcnt({3-i})
            v_lshlrev_b32 v{w}, 16, v{y}
            v_and_b32 v{w+1}, 0xffff0000, v{y}
            v_lshlrev_b32 v{w+2}, 16, v{y+1}
            v_and_b32 v{w+3}, 0xffff0000, v{y+1}
            v_pk_fma_f32 {P(u)}, {P(u+4)}, {P(w)}, {P(u)}
            v_pk_fma_f32 {P(u+2)}, {P(u+6)}, {P(w+2)}, {P(u+2)}
            v_cvt_pk_bf16_f32 v{y}, v{u}, v{u+1}
            v_cvt_pk_bf16_f32 v{y+1}, v{u+2}, v{u+3}
            """)
            if i & 1: a(f"buffer_store_dwordx4 {Q4(y-2)}, v6, {WS}, s{62 + (i>>1)} offen sc1")

    def g2_epi_load(self):
        a = self.a
        a(f"""
        s_lshl_b32 s60, s77, 9
        s_add_u32 s60, s60, {WS_MOD + 5*4096}
        v_lshl_add_u32 v18, v1, 3, s60
        """)
        self.gb_loads = [f"buffer_load_dwordx2 {P((10, 16, 28, 30)[k])}, v18, {WS}, {so} offen sc1" for k, so in enumerate(("0", "s12", "s13", "s14"))]
        for t in self.gb_loads: a(t)
        a(f"""
        s_lshl_b32 s60, s76, 1
        s_lshr_b32 s61, {sWV}, 1
        s_add_u32 s60, s60, s61
        s_lshl_b32 s60, s60, 15
        s_lshl_b32 s61, s77, 12
        s_add_u32 s60, s60, s61
        s_and_b32 s61, {sWV}, 1
        s_lshl_b32 s61, s61, 3
        s_add_u32 s60, s60, s61
        s_add_u32 s60, s60, {WS_X1}
        v_lshlrev_b32 v19, 9, v3
        v_lshl_add_u32 v19, v2, 4, v19
        """)
        for p in range(2):
            for h in range(2):
                a(f"buffer_load_dwordx2 {P(20+4*p+2*h)}, v19, {WS}, s60 offen offset:{2048*p + 256*h} sc1")

    def g2_epi_pre(self, tb):
        a = self.a
        self.verify("g", [11, 17, 29, 31], 4, self.gb_loads)
        a(f"""
        v_add_f32 v4, v10, v16
        v_add_f32 v7, v28, v30
        v_add_f32 v4, v4, v7
        v_cvt_pk_bf16_f32 v4, v4, v4
        v_and_b32 v4, 0xffff0000, v4
        s_lshl_b32 s60, {sWV}, 8
        s_add_u32 s60, s60, {tb}
        v_lshl_add_u32 v5, v1, 2, s60
        ds_write_b32 v5, v4
        v_lshl_add_u32 v5, v3, 5, s60
        """)
        for p in range(2):
            for h in range(2):
                a(f"ds_read_b128 a[{224+8*p+4*h}:{227+8*p+4*h}], v5 offset:{128*p + 16*h}")
        a("s_waitcnt lgkmcnt(0)")

    def g1_ids(self):
        self.a(f"""
        s_lshr_b32 s74, {sX}, 1
        s_lshl_b32 s74, s74, 2
        s_lshr_b32 s60, {sM}, 3
        s_add_u32 s74, s74, s60
        s_and_b32 s75, {sX}, 1
        s_lshl_b32 s75, s75, 3
        s_and_b32 s60, {sM}, 7
        s_add_u32 s75, s75, s60
        """)

    def w1_addr(self, r0):
        self.a(f"""
        v_mul_u32_u24 v5, 3584, v3
        v_lshlrev_b32 v6, 1, v3
        v_xor_b32 v6, v6, v2
        v_lshl_add_u32 v{r0}, v6, 4, v5
        v_xor_b32 v6, 8, v6
        v_lshl_add_u32 v{r0+1}, v6, 4, v5
        s_mul_i32 s7, s75, 224
        s_and_b32 s7, s7, -64
        s_and_b32 s16, {sM}, 7
        s_lshl_b32 s16, s16, 1
        s_lshr_b32 s61, {sM}, 3
        s_lshl_b32 s61, s61, 2
        s_add_u32 s16, s16, s61
        s_mul_i32 s16, s16, {opt('rot1', 0)}
        s_and_b32 s16, s16, 15
        s_add_u32 s17, s7, {512*3584}
        s_lshl_b32 s61, {sWV}, 2
        s_add_u32 s61, s61, s16
        s_and_b32 s61, s61, 15
        s_mul_i32 s61, s61, {32*3584}
        s_add_u32 s7, s7, s61
        s_lshl_b32 s78, {sWV}, 15
        s_add_u32 s78, s78, {self.WB}
        """)

    def w1_one(self, r0, n):
        a = self.a
        a(f"s_add_u32 m0, s78, {1024*n}")
        a(f"buffer_load_dwordx4 v{r0 + n%2}, {W1}, s7 offen lds")
        a(f"s_add_u32 s7, s7, {4*3584}")
        if n % 8 == 7: a(f"s_cmp_eq_u32 s7, s17\ns_cselect_b32 s60, {512*3584}, 0\ns_sub_u32 s7, s7, s60")

    def w2_touch(self, j):
        self.a(f"buffer_load_dword v{248+j}, v250, {WS}, 0 offen sc1" if j == 0 else
               f"buffer_load_dword v{248+j}, v251, {WS}, 0 offen sc1")

    def w2_touch_addr(self):
        self.a(f"""
        s_lshl_b32 s60, {sM}, 2
        s_add_u32 s60, s60, {sWV}
        s_mul_i32 s60, s60, {112*128}
        s_add_u32 s60, s60, {WS_W2P}
        v_lshl_add_u32 v250, v1, 7, s60
        v_add_u32 v5, 64, v1
        v_min_u32 v5, 111, v5
        v_lshl_add_u32 v251, v5, 7, s60
        """)

    def mod_addr(self):
        self.a(f"""
        s_lshr_b32 s60, s2, 4
        s_lshl_b32 s60, s60, 8
        s_add_u32 s60, s60, {WS_MOD + 3*4096}
        v_lshl_add_u32 v172, v2, 4, s60
        v_and_b32 v5, 1, v3
        v_lshl_add_u32 v172, v5, 12, v172
        s_movk_i32 s12, {MODP}
        s_mov_b32 s13, {2*MODP}
        s_mov_b32 s14, {3*MODP}
        """)

    def mod_load_list(self, r0):
        L = []
        for k, so in enumerate(("0", "s12", "s13", "s14")):
            L.append(f"buffer_load_dwordx4 {Q4(r0+4*k)}, v172, {WS}, {so} offen sc1")
        return L

    def g2_w2_addr(self, k0):
        self.a(f"""
        s_mul_i32 s79, s77, 56
        s_mul_i32 s61, {sWV}, 14
        s_add_u32 s79, s79, s61
        s_lshl_b32 s79, s79, 12
        s_add_u32 s79, s79, {WS_W2P}
        s_add_u32 s97, s79, {14*4096}
        s_lshl_b32 s18, s77, 1
        s_lshr_b32 s61, {sM}, 3
        s_mul_i32 s61, s61, 7
        s_lshr_b32 s61, s61, 1
        s_add_u32 s18, s18, s61
        s_mul_i32 s18, s18, {opt('rot2', 0)}
        s_cmp_ge_u32 s18, 14
        s_cselect_b32 s60, 14, 0
        s_sub_u32 s18, s18, s60
        s_lshl_b32 s18, s18, 12
        s_add_u32 s79, s79, s18
        v_lshlrev_b32 v9, 4, v1
        """)

    def g2_w2_one(self, i, v="v9"):
        self.a(f"buffer_load_dwordx4 a[{4*i}:{4*i+3}], {v}, {WS}, s79 offen offset:{1024*(i%4)} sc1")
        if i % 4 == 3:
            self.a(f"s_add_u32 s79, s79, 4096\ns_cmp_eq_u32 s79, s97\ns_cselect_b32 s60, {14*4096}, 0\ns_sub_u32 s79, s79, s60")

    def signal_all(self, base, replicas, tag):
        a = self.a
        a(f"""
        s_waitcnt vmcnt(0)
        s_barrier
        s_cmp_lg_u32 {sWV}, 0
        s_cbranch_scc1 L_sig{tag}_skip
        s_lshl_b32 s60, s2, {FL}
        s_add_u32 s60, s60, {base}
        """)
        self.flag_store("s60", replicas, 8 + FL)
        a(f"L_sig{tag}_skip:")

    def w_stream(self, r0, mod_wait):
        T = f"""
        v_lshrrev_b32 v14, 2, v1
        v_lshlrev_b32 v15, 5, v14
        v_and_b32 v12, 3, v1
        v_lshl_add_u32 v15, v12, 3, v15
        s_lshl_b32 s61, {sWV}, 11
        s_add_u32 s61, s61, {self.W1S}
        v_add_u32 v173, s61, v15
        v_and_b32 v10, 1, v3
        v_cvt_f32_u32 v11, v10
        v_xor_b32 v10, 1, v10
        v_lshlrev_b32 v10, 6, v10
        v_lshl_add_u32 v10, v2, 2, v10
        s_lshl_b32 s61, {sWV}, 7
        v_add_u32 v10, s61, v10
        v_lshl_add_u32 v14, v3, 3, s61
        v_and_b32 v15, 1, v1
        v_lshl_add_u32 v15, v15, 6, v14
        v_and_b32 v13, 1, v1
        v_lshlrev_b32 v13, 9, v13
        v_lshl_add_u32 v13, v3, 4, v13
        s_and_b32 s40, s2, 15
        s_lshl_b32 s40, s40, 4
        s_lshr_b32 s61, s2, 4
        s_add_u32 s40, s40, s61
        s_lshl_b32 s42, s40, 10
        s_lshl_b32 s61, {sWV}, 6
        s_add_u32 s42, s42, s61
        s_add_u32 s42, s42, {WS_UP}
        s_mul_i32 s40, s40, 7168
        s_lshl_b32 s61, {sWV}, 10
        s_add_u32 s40, s40, s61
        s_add_u32 s40, s40, {WS_W1P}
        s_add_u32 s41, s40, 4096
        s_cmp_eq_u32 {sWV}, 3 | s_cselect_b32 s41, 0x40000000, s41
        WAIT
        """
        L = [x.strip() for x in T.split("\n") if x.strip()]
        L += ["ds_read_b64_tr_b16 v[16:17], v173", "ds_read_b64_tr_b16 v[18:19], v173 offset:512",
              "ds_read_b64_tr_b16 v[20:21], v173 offset:1024", "ds_read_b64_tr_b16 v[22:23], v173 offset:1536", "VERIFY"]
        for e in (0, 2): L += [f"v_add_f32 v{r0+e}, v{r0+e}, v{r0+4+e}", f"v_add_f32 v{r0+8+e}, v{r0+8+e}, v{r0+12+e}"]
        for e in (0, 2): L.append(f"v_add_f32 v{r0+e}, v{r0+e}, v{r0+8+e}")
        L += [f"v_cvt_pk_bf16_f32 v{r0}, v{r0}, v{r0+2}",
              f"v_lshlrev_b32 v{r0+4}, 16, v{r0}", f"v_and_b32 v{r0+5}, 0xffff0000, v{r0}",
              f"v_add_f32 v{r0+4}, v11, v{r0+4}", f"v_add_f32 v{r0+5}, v11, v{r0+5}",
              f"v_cvt_pk_bf16_f32 v{r0}, v{r0+4}, v{r0+5}",
              f"ds_write_b32 v10, v{r0}",
              "ds_read_b64 v[24:25], v15", "ds_read_b64 v[26:27], v15 offset:32",
              "ds_read_b64 v[28:29], v14", "ds_read_b64 v[30:31], v14 offset:32", "GAP",
              "v_mfma_f32_16x16x32_bf16 v[164:167], v[16:19], v[24:27], 0",
              "v_mfma_f32_16x16x32_bf16 v[168:171], v[20:23], v[24:27], 0"]
        for e in range(4): L += [f"v_lshlrev_b32 v{r0+2*e}, 16, v{28+e}", f"v_and_b32 v{r0+2*e+1}, 0xffff0000, v{28+e}"]
        for f in range(2):
            for e in range(4):
                w = 16 + 4 * f + e
                t = r0 + 8 + 2 * (e % 2)
                L += [f"v_lshlrev_b32 v{t}, 16, v{w}", f"v_and_b32 v{t+1}, 0xffff0000, v{w}",
                      f"v_mul_f32 v{t}, v{t}, v{r0+2*e}", f"v_mul_f32 v{t+1}, v{t+1}, v{r0+2*e+1}",
                      f"v_cvt_pk_bf16_f32 v{w}, v{t}, v{t+1}"]
            L.append(f"buffer_store_dwordx4 {Q4(16+4*f)}, v9, {WS}, s{40+f} offen sc1")
        L.append(f"s_mov_b32 exec_lo, 0x00030003 | s_mov_b32 exec_hi, 0x00030003 | buffer_store_dwordx4 v[164:167], v13, {WS}, s42 offen sc1 | buffer_store_dwordx4 v[168:171], v13, {WS}, s42 offen offset:256 sc1 | s_mov_b64 exec, -1")
        return L

    UPS = 32768 + 114688
    def g1_addr(self):
        self.a(f"""
        s_lshl_b32 s64, s74, 2
        s_add_u32 s64, s64, {sWV}
        s_lshl_b32 s64, s64, 15
        s_add_u32 s64, s64, {WS_X1}
        s_lshl_b32 s65, s75, 4
        s_add_u32 s65, s65, {sWV}
        s_mul_i32 s65, s65, 7168
        s_add_u32 s65, s65, {WS_W1P}
        s_mul_i32 s66, {sWV}, 7168
        s_add_u32 s66, s66, {self.WB}
        s_lshl_b32 s67, s75, 2
        s_add_u32 s67, s67, {sWV}
        s_lshl_b32 s67, s67, 12
        s_add_u32 s67, s67, {WS_UP}
        s_mov_b32 s44, s64
        s_mul_i32 s45, s75, {16*7168}
        s_add_u32 s45, s45, {WS_W1P}
        v_lshlrev_b32 v8, 4, v1
        v_add_u32 v10, {self.WB}, v8
        v_add_u32 v11, 57344, v10
        v_lshlrev_b32 v248, 2, v0
        v_add_u32 v249, {self.UPS}, v248
        """)
        for r in range(12, 16): self.a(f"v_mov_b32 v{r}, 0x3f803f80")

    def silu_tile(self, ft, t, u1, u2, w, dst):
        a = self.a
        d, o = 192 + 8 * ft + 4 * t, 60 + 2 * t
        for h in range(2): a(f"v_pk_fma_f32 {P(w+2*h)}, {P(u1+2*h)}, {P(o)}, {P(u2+2*h)} op_sel:[0,1,0] op_sel_hi:[1,1,1]")
        for h in range(2): a(f"v_pk_fma_f32 {P(d+2*h)}, {P(d+2*h)}, {P(o)}, {P(w+2*h)} op_sel_hi:[1,0,1]")
        for r in range(4): a(f"v_exp_f32 v{w+r}, v{d+r}")
        for h in range(2): a(f"v_pk_fma_f32 {P(w+2*h)}, {P(w+2*h)}, {P(254)}, {P(254)} op_sel_hi:[1,0,0]")
        for r in range(4): a(f"v_rcp_f32 v{w+r}, v{w+r}")
        for h in range(2): a(f"v_pk_mul_f32 {P(d+2*h)}, {P(d+2*h)}, {P(w+2*h)}")
        for h in range(2): a(f"v_cvt_pk_bf16_f32 v{dst+h}, v{d+2*h}, v{d+2*h+1}")

    def pair_store(self, ft, t, c):
        a = self.a
        b = 192 + 8 * (ft - 1) + 4 * t
        a(f"buffer_store_dwordx4 {Q4(b)}, v8, {WS}, s44 offen offset:{1024*t} sc1")
        a(f"v_bitop3_b32 v{c}, v{c}, v{b}, v{b+1} bitop3:0x96\nv_bitop3_b32 v{c}, v{c}, v{b+2}, v{b+3} bitop3:0x96")

    def g1_run(self, side, nside):
        a = self.a
        ops = []
        def X(i):
            def f():
                a(f"buffer_load_dwordx4 {Q4(64+4*i)}, v8, {WS}, s64 offen offset:{i%4*1024} sc1")
                if i % 4 == 3: a("s_add_u32 s64, s64, 4096")
            return (("x", i), f)
        def W(gm, j):
            def f():
                if j % 4 == 0: a(f"s_add_u32 m0, s66, {gm*4*7168 + 1024*j}\ns_add_u32 s60, s65, {gm*4*7168 + 1024*j}")
                a(f"buffer_load_dwordx4 v8, {WS}, s60 offen offset:{1024*(j%4)} sc1 lds")
            return (("w", gm, j), f)
        def UPl(j):
            def f():
                if j == 0: a(f"s_lshl_b32 s60, {sWV}, 12\ns_add_u32 m0, s60, {self.UPS}")
                a(f"buffer_load_dwordx4 v8, {WS}, s67 offen offset:{1024*j} sc1 lds")
            return (("u", j), f)
        for gm in range(4):
            if gm == 2: ops += [UPl(j) for j in range(4)]
            ops += [W(gm, j) for j in range(4)]
            ops += [X(i) for i in range(8 * gm, 8 * gm + 8)]
        for gm in range(4): ops += [W(gm, j) for j in range(4, 7)]
        keys = [k for k, _ in ops]
        pos = [0]
        def issue(n=1):
            for _ in range(n):
                if pos[0] < len(ops): ops[pos[0]][1](); pos[0] += 1
        def wait(key):
            i = keys.index(key)
            while pos[0] <= i: issue()
            a(f"s_waitcnt vmcnt({pos[0] - 1 - i})")
        issue(opt('g1pre', 20))
        NR, D = 8, 7
        Wr = lambda n: 16 + 4 * (n % NR)
        def frag(n, k, ft):
            a(f"ds_read_b128 {Q4(Wr(n))}, {'v10' if k < 8 else 'v11'} offset:{(k % 8) * 7168 + 1024 * ft}")
        def rdA(n):
            if n < 64:
                k, ft = divmod(n, 4)
                if ft == 0 and k % 4 == 0:
                    wait(("w", k // 4, 3))
                    a("s_barrier")
                frag(n, k, ft)
        def rdB(n):
            if n < 48: frag(n, n // 3, 4 + n % 3)
        def swaps(k):
            x = 64 + 8 * k
            wait(("x", 2 * k + 1))
            a(f"v_swap_b32 v{x+2}, v{x+4}\nv_swap_b32 v{x+3}, v{x+5}")
        for n in range(D): rdA(n)
        swaps(0)
        tail = self.g1_tail_setup()
        for k in range(16):
            x = 64 + 8 * k
            if k == 8: a.region("g1b")
            if k % 4 == 0: self.stamp("h")
            for ft in range(4):
                n = 4 * k + ft
                a(f"s_waitcnt lgkmcnt({min(D - 1, 63 - n)})")
                d = 192 + 8 * ft
                a(f"v_mfma_f32_16x16x32_bf16 {Q4(d)}, {Q4(Wr(n))}, {Q4(x)}, {'0' if k == 0 else Q4(d)}")
                if ft != 2: issue()
                a(f"v_mfma_f32_16x16x32_bf16 {Q4(d+4)}, {Q4(Wr(n))}, {Q4(x+4)}, {'0' if k == 0 else Q4(d+4)}")
                if k == 9:
                    for j in range(4): a(f"ds_read_b32 v{224+4*ft+j}, v249 offset:{1024*(4*ft+j)}")
                if k == 12:
                    st = (8, 4, 2, 1)[ft]
                    for j in range(st): a(f"v_add_f32 v{224+j}, v{224+j}, v{224+j+st}")
                if k == 13 and ft == 0: a(f"v_mul_f32 v224, {NLOG2E}, v224\nds_write_b32 v248, v224 offset:{self.T_U}")
                rdA(n + D)
                if ft in (1, 2):
                    t = ft - 1
                    for j, A in ((0, "v[12:15]"), (1, Q4(x + 4 * t))):
                        d = 48 + 8 * t + 4 * j
                        a(f"v_mfma_f32_16x16x32_bf16 {Q4(d)}, {A}, {Q4(x+4*t)}, {'0' if k == 0 else Q4(d)}")
                        if ft == 2 and j == 0 and k < 15: swaps(k + 1)
                        elif k >= 3 and k not in (9, 12):
                            for _ in range(2):
                                if tail: a(tail.pop(0))
        assert not tail
        self.stamp("h")
        a.region("g1c")
        wait(("w", 3, 6))
        assert pos[0] == len(ops)
        a("s_waitcnt lgkmcnt(0)\ns_barrier")
        for ft in range(4):
            a(f"ds_read_b128 {Q4(16+8*ft)}, v4 offset:{self.T_U + 64*ft}\nds_read_b128 {Q4(20+8*ft)}, v4 offset:{self.T_U + 512 + 64*ft}")
        for t in range(2):
            g = 52 + 8 * t
            a(f"v_cndmask_b32 v{g}, v{g}, v{g+1}, s[20:21]\nv_cndmask_b32 v{g}, v{g}, v{g+2}, s[22:23]\nv_cndmask_b32 v{g}, v{g}, v{g+3}, s[40:41]")
            a(f"ds_bpermute_b32 v{g}, v5, v{g}")
        for t in range(2):
            sm = 48 + 8 * t
            a(f"v_mul_f32 v{sm}, 0x3b000000, v{sm}\nv_mul_f32 v{sm+1}, v{sm}, v{sm}\nv_mov_b32 v{sm+2}, 0x3b000000")
        a("s_waitcnt lgkmcnt(0)")
        for t in range(2):
            sm, g = 48 + 8 * t, 52 + 8 * t
            a(f"v_fma_f32 v{g}, v{g}, v{sm+2}, -v{sm+1}\nv_max_f32 v{g}, 0, v{g}\nv_add_f32 v{g}, 0x3727c5ac, v{g}\nv_rsq_f32 v{sm+3}, v{g}")
        for t in range(2):
            sm, o = 48 + 8 * t, 60 + 2 * t
            a(f"v_mul_f32 v{o+1}, -v{sm}, v{sm+3}\nv_mul_f32 v{o}, v254, v{sm+3}")
        for ft in range(4):
            for t in range(2):
                self.silu_tile(ft, t, 16 + 8 * ft, 20 + 8 * ft, 224 + 4 * t, 192 + 8 * (ft & ~1) + 4 * t + 2 * (ft & 1))
                if ft & 1: self.pair_store(ft, t, 252)
            if ft & 1: a("s_add_u32 s44, s44, 4096")
            if ft == 2:
                for n in range(6): rdB(n)
        a(f"buffer_store_dword v252, v6, {WS}, s46 offen sc1")
        rdB(6)
        self.stamp("h")
        a.region("g1d")
        for k in range(16):
            x = 64 + 8 * k
            for j in range(3):
                n = 3 * k + j
                a(f"s_waitcnt lgkmcnt({min(D - 1, 47 - n)})")
                d = 224 + 8 * j
                a(f"v_mfma_f32_16x16x32_bf16 {Q4(d)}, {Q4(Wr(n))}, {Q4(x)}, {'0' if k == 0 else Q4(d)}")
                if k == 14: a(f"ds_read_b128 {Q4(64+8*j)}, v4 offset:{self.T_U + 64*(4+j)}")
                if n % 2 == 0 and nside > 0: side(); nside -= 1
                elif nside == 0 and k >= opt('hk', 8) and self.g2_todo:
                    if not self.g2_log: self.g2_run()
                    lim = {8: 6, 9: 6, 10: 10, 11: 10}.get(k, 16 if k < 12 else 99) if False else (6 if k < 8 else 10 if k < 10 else 16 if k < 12 else 99)
                    if len(self.g2_log) < lim:
                        a(self.g2_todo.pop(0)); self.g2_log.append("l")
                a(f"v_mfma_f32_16x16x32_bf16 {Q4(d+4)}, {Q4(Wr(n))}, {Q4(x+4)}, {'0' if k == 0 else Q4(d+4)}")
                if k == 14: a(f"ds_read_b128 {Q4(68+8*j)}, v4 offset:{self.T_U + 512 + 64*(4+j)}")
                rdB(n + D)

    def g1_tail_setup(self):
        T = f"""
        v_lshlrev_b32 v4, 4, v3
        v_lshrrev_b32 v5, 2, v2
        v_lshl_add_u32 v5, v5, 4, v2
        v_lshlrev_b32 v5, 2, v5
        v_and_b32 v6, 3, v1
        v_cmp_eq_u32 s[20:21], 1, v6
        v_cmp_eq_u32 s[22:23], 2, v6
        v_cmp_eq_u32 s[40:41], 3, v6
        s_lshl_b32 s44, s74, 1
        s_lshr_b32 s61, {sWV}, 1
        s_add_u32 s44, s44, s61
        s_lshl_b32 s46, s44, 4
        s_add_u32 s46, s46, s75
        s_lshr_b32 s47, s46, 1
        s_and_b32 s62, {sWV}, 1
        s_lshl_b32 s46, s46, 1
        s_add_u32 s46, s46, s62
        s_lshl_b32 s46, s46, 9
        s_add_u32 s46, s46, {WS_HC}
        s_lshl_b32 s47, s47, 1
        s_add_u32 s47, s47, s62
        s_lshl_b32 s47, s47, 9
        s_and_b32 s63, s75, 1
        s_lshl_b32 s61, s63, 8
        s_add_u32 s47, s47, s61
        s_add_u32 s47, s47, {WS_HM}
        s_mul_i32 s44, s44, 56
        s_lshr_b32 s61, s75, 1
        s_mul_i32 s61, s61, 7
        s_add_u32 s44, s44, s61
        s_lshl_b32 s44, s44, 12
        s_lshl_b32 s61, s62, 11
        s_add_u32 s44, s44, s61
        s_add_u32 s44, s44, {WS_H}
        s_lshl_b32 s61, s63, 9
        s_add_u32 s45, s44, s61
        s_add_u32 s45, s45, {6*4096}
        s_mul_i32 s61, s63, {3*4096}
        s_add_u32 s44, s44, s61
        v_and_b32 v6, 1, v3
        v_lshlrev_b32 v7, 10, v6
        v_lshl_add_u32 v7, v2, 4, v7
        v_lshrrev_b32 v250, 1, v3
        v_lshl_add_u32 v7, v250, 8, v7
        v_lshlrev_b32 v250, 7, v250
        v_lshl_add_u32 v250, v2, 3, v250
        v_lshl_add_u32 v250, v6, 2, v250
        s_lshl_b32 s61, s62, 4
        s_add_u32 s61, s61, 3
        s_add_u32 s63, s62, 5
        v_mul_u32_u24 v6, s63, v6
        v_add_u32 v6, s61, v6
        v_alignbit_b32 v251, s80, s80, v6
        s_mul_i32 s61, s62, 13
        v_mov_b32 v6, s61
        v_alignbit_b32 v252, s80, s80, v6
        v_mov_b32 v253, v252
        v_mov_b32 v254, {NLOG2E}
        v_lshlrev_b32 v6, 2, v1
        """
        return [x.strip() for x in T.split("\n") if x.strip()]

    def g1_epilogue(self, tb):
        a = self.a
        early = self.g2_todo
        def ld(n):
            for _ in range(n):
                if early: a(early.pop(0)); self.g2_log.append("l")
        ld(opt('g2b0', 6))
        a("s_waitcnt lgkmcnt(0)")
        for ft in (6, 4, 5):
            if ft == 4: a.region("g1e1")
            u = 64 + 8 * (ft - 4)
            for t in range(2):
                self.silu_tile(ft, t, u, u + 4, 32 + 4 * t, 40 + 2 * t if ft == 6 else 224 + 4 * t + 2 * (ft & 1))
                ld(3)
                if ft == 5: self.pair_store(ft, t, 253); self.g2_log.append("s")
            if ft == 6:
                a("v_permlane16_swap_b32 v40, v42\nv_permlane16_swap_b32 v41, v43")
                a(f"buffer_store_dwordx4 v[40:43], v7, {WS}, s45 offen sc1")
                a("v_bitop3_b32 v251, v251, v40, v41 bitop3:0x96\nv_bitop3_b32 v251, v251, v42, v43 bitop3:0x96")
                a(f"buffer_store_dword v251, v250, {WS}, s47 offen sc1")
                self.g2_log += ["s", "s"]
        a(f"buffer_store_dword v253, v6, {WS}, s46 offen offset:256 sc1")
        self.g2_log.append("s")
        ld(99)

    def g2_run(self):
        a = self.a
        a(f"""
        s_mul_i32 s78, s76, 56
        s_mul_i32 s61, {sWV}, 14
        s_add_u32 s78, s78, s61
        s_lshl_b32 s78, s78, 12
        s_add_u32 s78, s78, {WS_H}
        s_lshl_b32 s16, s76, 2
        s_add_u32 s16, s16, {sWV}
        s_lshl_b32 s15, s16, 11
        s_add_u32 s15, s15, {WS_HM}
        s_lshl_b32 s16, s16, 12
        s_add_u32 s16, s16, {WS_HC}
        s_mov_b32 s60, s80
        s_mov_b32 s61, s80
        s_lshr_b64 s[62:63], s[60:61], 13
        s_xor_b32 s20, s80, s62
        s_lshr_b64 s[62:63], s[60:61], 3
        s_mov_b32 s21, s62
        s_lshr_b64 s[62:63], s[60:61], 8
        s_xor_b32 s21, s21, s62
        s_lshr_b64 s[62:63], s[60:61], 19
        s_xor_b32 s21, s21, s62
        s_lshr_b64 s[62:63], s[60:61], 25
        s_xor_b32 s21, s21, s62
        s_lshl_b32 s60, {sWV}, 10
        v_add_u32 v12, s60, v8
        v_add_u32 v13, 1024, v12
        v_add_u32 v14, 2048, v12
        v_add_u32 v15, 3072, v12
        v_and_b32 v13, 4095, v13
        v_and_b32 v14, 4095, v14
        v_and_b32 v15, 4095, v15
        v_lshlrev_b32 v9, 3, v1
        s_mov_b32 s19, 0
        """)

    def g2_plan(self):
        HR = 8
        k0 = lambda cb: 7 * (cb // 2) + 3 * (cb % 2)
        groups = [("a", cb, [k0(cb), k0(cb) + 1]) for cb in range(4)]
        groups += [("b", 0, [2]), ("b", 1, [5]), ("m", 0, [6]), ("b", 2, [9]), ("b", 3, [12]), ("m", 1, [13])]
        order = [k for g in groups for k in g[2]]
        slot = {k: 32 + 16 * ((p + 4) % HR) for p, k in enumerate(order)}
        loads, chk, c = [], [], 88
        for kind, i, ks in groups:
            if kind == "a" and i == 2: c = 160
            p0 = order.index(ks[0])
            if kind == "m":
                chk.append([c, c + 1, c + 2, c + 3])
                for h in range(2):
                    loads.append((p0, None, f"buffer_load_dwordx2 {P(c+2*h)}, v9, {WS}, s15 offen offset:{1024*i + 512*h} sc1"))
                c += 4
            else:
                chk.append([c, c + 1])
                for h in range(2):
                    loads.append((p0, None, f"buffer_load_dword v{c+h}, v6, {WS}, s16 offen offset:{1024*i + 512*h + (256 if kind == 'b' else 0)} sc1"))
                c += 2
            for k in ks:
                for st in range(4):
                    pre = f"s_add_u32 s18, s78, {4096*k}\n" if st == 0 else ""
                    loads.append((order.index(k), (k, st), pre + f"buffer_load_dwordx4 {Q4(slot[k]+4*st)}, v{12+st}, {WS}, s18 offen sc1"))
        self.g2p = (HR, groups, order, slot, loads, chk)
        self.g2_early = [l[2] for l in loads[:opt('g2pre', 20)]]
        self.g2_log = []
        self.g2_todo = list(self.g2_early)

    def g2_body(self):
        a = self.a
        HR, groups, order, slot, loads, chk = self.g2p
        npre = len(self.g2_early)
        merged, it = [], iter(loads[:npre])
        for t in self.g2_log: merged.append(next(it) if t == "l" else (0, None, None))
        loads = merged + loads[npre:]
        nissued = len(merged)
        keys = [l[1] for l in loads]
        pos = [nissued]
        def issue(maxp):
            if pos[0] < len(loads) and loads[pos[0]][0] <= maxp:
                a(loads[pos[0]][2]); pos[0] += 1
        def wait(key):
            i = keys.index(key)
            while pos[0] <= i: issue(99)
            a(f"s_waitcnt vmcnt({pos[0] - 1 - i})")
        def vsteps(gi):
            x, out = 4 + gi % 2, []
            for j, k in enumerate(groups[gi][2]):
                regs = (list(chk[gi]) if j == 0 else [x]) + [slot[k] + i for i in range(16)]
                L = [("w", (k, 3)), f"v_bitop3_b32 v{x}, v{regs[0]}, v{regs[1]}, v{regs[2]} bitop3:0x96"]
                rest = regs[3:]
                while len(rest) >= 2: L.append(f"v_bitop3_b32 v{x}, v{x}, v{rest.pop(0)}, v{rest.pop(0)} bitop3:0x96")
                if rest: L.append(f"v_xor_b32 v{x}, v{x}, v{rest.pop(0)}")
                out.append(L)
            out[-1].append(f"v_cmp_ne_u32 vcc, {'s21' if groups[gi][0] == 'm' else 's20'}, v{x}\ns_cbranch_vccnz L_g2_retry")
            return out
        def run(t):
            if isinstance(t, tuple): wait(t[1])
            else: a(t)
        a("L_g2_go:")
        a.fence()
        a(f"s_waitcnt vmcnt({nissued - 1 - max(i for i, t in enumerate(self.g2_log) if t == 'e')})")
        self.g2_epi_pre(0)
        for L in vsteps(0):
            for t in L: run(t)
        for gi, (kind, _, ks) in enumerate(groups):
            nxt = vsteps(gi + 1) if gi + 1 < len(groups) else []
            nxt = [[] for _ in range(len(ks) - len(nxt))] + nxt
            for j, k in enumerate(ks):
                p = order.index(k)
                if p in (5, 10): a.region("g2" + "abc"[p // 5])
                self.stamp("g")
                cur = nxt[j]
                for st in range(4):
                    for dt in range(4):
                        d = 192 + 16 * st + 4 * dt
                        a(f"v_mfma_f32_16x16x32_bf16 {Q4(d)}, a[{16*k+4*dt}:{16*k+4*dt+3}], {Q4(slot[k]+4*st)}, {'0' if p == 0 else Q4(d)}")
                        i = 4 * st + dt
                        if i % 3 == 0: issue(p + HR - 1)
                        if i >= 9:
                            for _ in range(2):
                                if cur: run(cur.pop(0))
                assert not cur
        assert pos[0] == len(loads)

    def g2_retry(self):
        self.a(f"""
        L_g2_retry:
        s_waitcnt vmcnt(0)
        s_add_u32 s19, s19, 1
        s_cmp_gt_u32 s19, {SPIN}
        s_cbranch_scc1 L_g2_giveup
        s_sleep {opt('g2sleep', 2)}
        """)
        for t in self.g2_early: self.a(t)
        self.a("s_waitcnt vmcnt(0)\ns_branch L_g2_go")

def build_fused2(diag=False):
    g = G2(sc=True, diag=diag)
    a = g.a
    S = g.stamp
    kn = NAME + "_kernel"
    hdr = ["; @launch grid=(256,1,1) block=(256,1,1) lds=163840"]
    a.raw('.amdgcn_target "amdgcn-amd-amdhsa--gfx950"\n.text')
    g.entry(kn, list(range(13)), pre=g.code_prefetch if opt('cpf', 1) else None)
    a(f"v_mov_b32 v4, {WS_TAG}\nbuffer_load_dwordx2 v[254:255], v4, {WS}, 0 offen sc1")
    a(f"s_cmp_ge_u32 {sWV}, 2\ns_cbranch_scc1 L_role_b")
    n0 = g.nst
    g.role_a()
    if HINT: g.flag_a()
    QP = opt('qp', 2)
    if QP == 0: g.q_rows()
    a(f"s_waitcnt vmcnt({(9 if HINT else 4) + (8 if QP == 0 else 0)})\ns_branch L_join1\nL_role_b:")
    a.fence()
    g.nst = n0
    a.region("end")
    a(f"s_sub_u32 s6, {sWV}, 2")
    if opt('tlb', 1):
        a(f"""
        v_min_u32 v4, 14, v1
        v_lshlrev_b32 v4, 21, v4
        v_add_u32 v4, {2*MB - 128}, v4
        buffer_load_dword v252, v4, {WS}, 0 offen
        v_mov_b32 v4, 0
        buffer_load_dword v251, v4, {OUT}, 0 offen
        buffer_load_dword v250, v4, {W1}, 0 offen
        buffer_load_dword v249, v4, {W2}, 0 offen
        """)
    g.role_b_loads_gemv()
    g.role_b_loads2()
    g.c_ids(); g.g1_ids(); g.g2_ids()
    g.warm((2, ["brest0", "g1a"]), (3, ["brest1", "cepi", "prep1", "g1b"])); S()
    a("v_and_b32 v2, 15, v1\nv_lshrrev_b32 v3, 4, v1")
    a.region("brest0")
    g.n_after = 8 if W2L else 12
    def after():
        g.filter_load()
        if not W2L: g.w2_unit_load()
    g.role_b_rest(0, after_wait=after); S()
    a(f"s_waitcnt vmcnt({2 if W2L else 6})"); S()
    a("L_join1:")
    a.fence()
    a.region("fprep")
    g.filter_copies(); S()
    def mid():
        if HINT: return
        a(f"s_cmp_ge_u32 {sWV}, 2\ns_cbranch_scc1 L_mid_b\ns_waitcnt vmcnt({8 if QP == 0 else 0})")
        g.flag_a()
        if QP == 1:
            a("v_mov_b32 v250, v5")
            g.q_rows()
            a("v_mov_b32 v5, v250")
        a("L_mid_b:")
    g.filter_prep(mid); S()
    a.region("ufetch")
    st = dict()
    a(f"s_cmp_ge_u32 {sWV}, 2\ns_cbranch_scc1 L_role_b2")
    n0 = g.nst
    g.u_fetch(0)
    a("s_mov_b32 s17, s67")
    a("s_branch L_join2\nL_role_b2:\ns_mov_b32 s17, 0")
    a.fence()
    g.nst = n0
    if opt('qp', 2) == 4: g.q_rows("s6")
    if not W2L: g.w2_unit_pack(2 + (8 if opt('qp', 2) == 4 else 0))
    if opt('qp', 2) == 3: g.q_rows("s6")
    g.side_inputs()
    g.pre_conv()
    if opt('fm', 1) < 0: g.flag_m(3)
    S()
    a("L_join2:")
    a.region("addr")
    a.fence()
    S(); S("c")
    a("s_waitcnt lgkmcnt(0)\ns_barrier")
    w2 = dict(n=0)
    def side():
        g.g2_w2_one(w2['n']); w2['n'] += 1
    a.region("conv0")
    log = []
    younger = lambda tag: len(log) - 1 - max(i for i, t in enumerate(log) if t == tag)
    modl = g.mod_load_list(32)
    wl = g.w_stream(32, 0)
    st.update(hold=0, w=wl[wl.index("WAIT"):], q=[('m', t) for t in modl] + [('e', t) for t in g.epi_load_list()])
    Q0 = opt('q0', 2)
    def hook(n):
        if n == 40: a.region("conv1")
        if n in (0, 8, 16, 24, 32, 40, 50, 60, 70, 79): S("c")
        if n >= Q0 and n % 2 == 0 and st['q']:
            tg, t = st['q'].pop(0)
            log.append(tg); a(t)
        for _ in range(opt('wr', 2)):
            if not st['w'] or st['hold'] > n: break
            t = st['w'][0]
            if t == "WAIT":
                if n < Q0 + opt('ww', 26): break
                a(f"s_waitcnt vmcnt({younger('m')})")
            elif t == "VERIFY":
                g.verify("w", [33 + 2*i for i in range(8)], 24, modl)
            elif t == "GAP":
                assert n <= 64
                st['hold'] = n + 8
            else:
                a(t.replace(" | ", "\n")); log.extend('s' * t.count("buffer_store"))
            st['w'].pop(0)
        if W2L:
            U0, U1, U2 = opt('u0', 1), opt('u1', 33), opt('u2', 67)
            if n in (U0, U0 + 2):
                a(f"s_add_u32 m0, s44, {512*(n-U0)}\nbuffer_load_dwordx4 v169, {W2}, {'s23' if n == U0 else 's22'} offen{g.NT} lds"); log.append('u')
            if n == U1:
                a(f"s_waitcnt vmcnt({younger('u')})")
                a("ds_read_b64_tr_b16 v[128:129], v174\nds_read_b64_tr_b16 v[130:131], v175\nds_read_b64_tr_b16 v[132:133], v174 offset:8\nds_read_b64_tr_b16 v[134:135], v175 offset:8")
            if n in (U1 + 8, U1 + 10):
                j = (n - U1 - 8) // 2
                a(f"buffer_store_dwordx4 {Q4(128+4*j)}, v9, {WS}, s45 offen offset:{1024*j} sc1"); log.append('p')
            if n == U2:
                a(f"s_waitcnt vmcnt({younger('p')})")
                g.flag_store("s46", 1, 3, 136); log.append('s')
        if n == opt('fm', 1) and not W2L:
            a(f"s_cmp_lt_u32 {sWV}, 2\ns_cbranch_scc1 L_skip_m")
            g.flag_m(len(log) + 3 + (8 if opt('qp', 2) == 3 else 0))
            a("L_skip_m:")
        WM = opt('wm', 52)
        if W2L: WM = 999
        if n == max(0, WM - 14):
            a(f"buffer_load_dwordx2 v[252:253], v248, {WS}, 0 offen sc1"); log.append('f')
        if n == WM: g.poll("M", first_issued=True, va="v248", vd=252, later=younger('f'))
        if n >= WM and n % 2 == 1 and w2['n'] < opt('w2conv', 10):
            side(); log.append('w')
    g.conv_main(hook); S()
    assert not st['q']
    a.region("cepi")
    print("w_stream left after conv:", len(st['w']), file=sys.stderr)
    for t in st['w']:
        assert t not in ("WAIT", "GAP", "VERIFY")
        a(t.replace(" | ", "\n")); log.extend('s' * t.count("buffer_store"))
    a(f"s_waitcnt vmcnt({younger('e')})"); S("c")
    g.conv_epilogue(); S("c")
    if W2L: a(f"buffer_load_dwordx2 v[252:253], v248, {WS}, 0 offen sc1")
    a.region("prep1")
    EARLY = opt('early', 0)
    if EARLY:
        a(f"""
        s_and_b32 s60, s2, 15
        s_lshl_b32 s60, s60, 4
        s_lshr_b32 s61, s2, 4
        s_add_u32 s60, s60, s61
        s_lshl_b32 s60, s60, 2
        s_add_u32 s60, s60, {sWV}
        s_lshl_b32 s60, s60, {FL}
        s_add_u32 s60, s60, {FLAG_W}
        s_and_b32 s61, s2, 8
        s_lshl_b32 s61, s61, {7 + FL}
        s_add_u32 s60, s60, s61
        s_waitcnt vmcnt(2)
        """)
        g.flag_store("s60", 4, 11 + FL, 4)
    g.signal_all(FLAG_2, 8, 2); S()
    if W2L: g.poll("M", va="v248", vd=252, first_issued=True, later=1)
    g.g1_addr()
    if EARLY:
        a(f"""
        s_lshl_b32 s60, {sX}, 4
        s_add_u32 s60, s60, s75
        s_lshl_b32 s60, s60, {6 + FL}
        s_add_u32 s60, s60, {FLAG_W}
        v_lshl_add_u32 v4, v1, {FL}, s60
        """)
        g.poll("W")
        g.g1_run(early="weights")
    else:
        while w2['n'] < 56 - opt('w2e3', 0) - opt('w2b', 12): side()
    g.warm((0, ["g1c"]), (1, ["g1d"]), (2, ["g1e0", "g2a", "g2b"]), (3, ["g1e1", "g2c", "g2e"])); S()
    a(f"""
    s_lshl_b32 s60, {sX}, {8 + FL}
    s_add_u32 s60, s60, {FLAG_2}
    v_lshl_add_u32 v4, v0, {FL}, s60
    """)
    a.region("g1a")
    g.poll("2")
    a("s_barrier"); S(); S("h")
    g.g2_plan()
    g.g1_run(side, opt('w2b', 12))
    S()
    S("h")
    a.region("g1e0")
    assert w2['n'] == 56
    if not g.g2_log: g.g2_run()
    g.g2_epi_load()
    g.g2_log += ["e"] * 8
    g.g1_epilogue(G2.T_U - 4096)
    S("h")
    a("s_barrier"); S()
    a.region("g2a")
    S(); S("g"); S("h")
    g.g2_body(); S(); S("h")
    a("L_g2_giveup:")
    if diag and opt('cnt', 0):
        a(f"s_lshl_b32 s60, s2, 2\ns_add_u32 s60, s60, {sWV}\ns_lshl_b32 s60, s60, 7\ns_add_u32 s60, s60, {WS_DIAG + 124}\nv_mov_b32 v4, s60\nv_mov_b32 v5, s17\nbuffer_store_dword v5, v4, {WS}, 0 offen")
    a.region("g2e")
    g.g2_epilogue(G2.WB, 0)
    a.region("end")
    g.tag_update()
    g.exit(kn)
    g.g2_retry()
    a("L_warm_ret:\ns_setpc_b64 s[98:99]")
    a.raw('.section .rodata,"a"')
    a.raw(desc(kn, 512, 256))
    txt, size = add_pads(a.text(), opt('pad', 256))
    print("code bytes", size, file=sys.stderr)
    return "\n".join(hdr) + "\n" + txt

if __name__ == "__main__":
    diag = sys.argv[2] if len(sys.argv) > 2 else False
    open(sys.argv[1], "w").write(build_fused2(diag))
```

```python
import sys, os
OPT = dict(kv.split('=') for kv in os.environ.get('OPT', '').split(',') if kv)
opt = lambda k, d: int(OPT.get(k, d))
from asmlib import Asm, desc, add_pads
from gen import *

WS_W1P, WS_UP = 21 * MB, 23 * MB
WS_HC, WS_HM, WS_TAG = 26 * MB, 27 * MB, 28 * MB
MODP = 3072 * 8
FLAG_A, FLAG_B, FLAG_2, FLAG_3 = WS_FLAG, WS_FLAG + MB, WS_FLAG + 2 * MB, WS_FLAG + 3 * MB
FLAG_W = 25 * MB
HINT = opt('hint', 0)
W2L = opt('w2late', 0)
FL = opt('fl', 7)
P = lambda r: f"v[{r}:{r+1}]"
Q4 = lambda r: f"v[{r}:{r+3}]"

class G2(G):
    NT = " nt" if opt('nt', 1) else ""
    OUTM = ["", " sc1", " nt", " sc0 sc1"][opt('outm', 0)]
    NTF = " nt" if opt('ntf', 1) else ""
    NTQ = " nt" if opt('ntq', 0) else ""
    NTW1 = " nt" if opt('ntw1', 0) else ""
    FB, FSZ, WB = 1536, 7584, 32768
    XI, XI_RS = 1536, 7616
    T_GB, T_U, T_UP = 1536 + 2560, 1536 + 4608, 1536 + 7584 + 2560

    def code_prefetch(self):
        self.a("""
        s_getpc_b64 s[60:61]
        L_pc:
        v_lshlrev_b32 v4, 7, v0
        v_min_u32 v4, L_warm_ret-L_pc, v4
        v_mov_b32 v5, s61
        v_add_co_u32 v4, vcc, s60, v4
        v_addc_co_u32 v5, vcc, 0, v5, vcc
        global_load_dword v253, v[4:5], off
        """)

    def warm(self, *plans):
        if not opt('warm', 1): return
        a = self.a
        self.nwarm = getattr(self, 'nwarm', 0) + 1
        a("s_mov_b64 exec, 0")
        for w, regs in plans:
            lab = f"L_w{self.nwarm}_{w}"
            a(f"s_cmp_lg_u32 {sWV}, {w}\ns_cbranch_scc1 {lab}")
            for r in regs: a(f"s_call_b64 s[98:99], L_reg_{r}")
            a(f"{lab}:")
        a("s_mov_b64 exec, -1")

    def tag_ready(self):
        self.a("v_readfirstlane_b32 s80, v254\nv_readfirstlane_b32 s81, v255\ns_add_u32 s80, s80, 0x9e3779b9\ns_add_u32 s81, s81, 0x7f4a7c15")

    def tag_update(self):
        self.a(f"""
        s_or_b32 s60, s2, {sWV}
        s_cmp_lg_u32 s60, 0
        s_cbranch_scc1 L_tag_done
        v_mov_b32 v4, {WS_TAG}
        v_mov_b32 v6, s80
        v_mov_b32 v7, s81
        s_mov_b64 exec, 1
        buffer_store_dwordx2 v[6:7], v4, {WS}, 0 offen
        L_tag_done:
        """)

    def nonce_issue(self, b):
        self.a(f"v_mov_b32 v{b+2}, 0\nbuffer_load_dwordx2 v[{b}:{b+1}], v{b+2}, {DBG}, 0 offen sc1")

    def nonce_finish(self, tag, b):
        self.a(f"""
        s_mov_b32 s62, 0
        L_nonce_{tag}:
        s_waitcnt vmcnt(0)
        v_readfirstlane_b32 s80, v{b}
        v_readfirstlane_b32 s81, v{b+1}
        s_add_u32 s62, s62, 1
        s_cmp_lg_u32 s81, 0
        s_cbranch_scc1 L_nonce_{tag}_ok
        s_cmp_gt_u32 s62, {SPIN}
        s_cbranch_scc1 L_nonce_{tag}_ok
        v_mov_b32 v{b+2}, 0
        buffer_load_dwordx2 v[{b}:{b+1}], v{b+2}, {DBG}, 0 offen sc1
        s_branch L_nonce_{tag}
        L_nonce_{tag}_ok:
        """)

    def flag_store(self, soff, replicas, rstride_log2, b=4):
        self.a(f"""
        v_lshl_add_u32 v{b+2}, v1, {rstride_log2}, {soff}
        v_mov_b32 v{b}, s80
        v_mov_b32 v{b+1}, s81
        s_mov_b64 exec, {(1 << replicas) - 1}
        buffer_store_dwordx2 v[{b}:{b+1}], v{b+2}, {WS}, 0 offen sc1
        s_mov_b64 exec, -1
        """)

    def wide_flag_load(self, va, vd):
        return (f"buffer_load_dwordx2 v[{vd}:{vd+1}], {va}, {WS}, 0 offen sc1\n"
                f"buffer_load_dwordx2 v[{vd+2}:{vd+3}], {va}, {WS}, 0 offen offset:{1 << FL} sc1")

    def verify(self, name, tags, t0, reload):
        a = self.a
        if opt('force', 0): a(f"v_mov_b32 v{tags[-1]}, 0\nv_mov_b32 v{tags[-1]-1}, 0")
        a(f"s_mov_b32 s62, 0\nL_ver_{name}:")
        for op, d in (("max", t0), ("min", t0 + 1)):
            rest = list(tags)
            cur = rest.pop(0)
            while rest:
                if len(rest) >= 2: a(f"v_{op}3_u32 v{d}, v{cur}, v{rest.pop(0)}, v{rest.pop(0)}")
                else: a(f"v_{op}_u32 v{d}, v{cur}, v{rest.pop(0)}")
                cur = d
            if cur != d: a(f"v_mov_b32 v{d}, v{cur}")
        a(f"""
        v_cmp_ne_u32 vcc, s80, v{t0}
        v_cmp_ne_u32 s[60:61], s80, v{t0+1}
        s_or_b64 vcc, vcc, s[60:61]
        s_cbranch_vccz L_ver_{name}_ok
        s_add_u32 s62, s62, 1
        s_cmp_gt_u32 s62, {SPIN}
        s_cbranch_scc1 L_ver_{name}_ok
        """)
        for t in reload: a(t)
        a(f"s_waitcnt vmcnt(0)\ns_branch L_ver_{name}\nL_ver_{name}_ok:")

    def poll(self, tag, wide=False, first_issued=False, va="v4", vd=6, later=0):
        a = self.a
        ld = (self.wide_flag_load(va, vd) if wide else
              f"buffer_load_dwordx2 v[{vd}:{vd+1}], {va}, {WS}, 0 offen sc1")
        a("s_mov_b32 s62, 0")
        if first_issued:
            a(f"s_waitcnt vmcnt({later})\ns_branch L_poll_{tag}_chk")
        a(f"L_poll_{tag}:\n{ld}\ns_waitcnt vmcnt(0)\nL_poll_{tag}_chk:")
        a(f"v_cmp_ne_u64 vcc, s[80:81], v[{vd}:{vd+1}]")
        if wide:
            a(f"v_cmp_ne_u64 s[60:61], s[80:81], v[{vd+2}:{vd+3}]\ns_or_b64 vcc, vcc, s[60:61]")
        a(f"""
        s_add_u32 s62, s62, 1
        s_cbranch_vccz L_poll_{tag}_ok
        s_cmp_gt_u32 s62, {SPIN}
        s_cbranch_scc1 L_poll_{tag}_ok
        s_sleep {opt('sleep', 6)}
        s_branch L_poll_{tag}
        L_poll_{tag}_ok:
        """)

    def tile_off(self, h):
        self.a(f"""
        s_lshl_b32 s60, {sM}, 16
        s_lshl_b32 s61, {sX}, 7
        s_add_u32 s60, s60, s61
        s_lshl_b32 s61, {h}, 15
        s_add_u32 s60, s60, s61
        v_lshrrev_b32 v8, 4, v1
        v_and_b32 v9, 15, v1
        v_lshlrev_b32 v2, 13, v8
        v_lshl_add_u32 v2, v9, 3, v2
        v_add_u32 v2, s60, v2
        v_add_u32 v5, 4096, v2
        """)

    def role_a(self):
        a = self.a
        self.tile_off(sWV)
        a(f"""
        v_subrev_u32 v3, 3072, v2
        s_lshl_b32 s62, {sX}, 9
        v_lshl_add_u32 v56, v9, 5, s62
        buffer_load_dwordx4 v[48:51], v56, {SK}, 0 offen
        buffer_load_dwordx4 v[52:55], v56, {SK}, 0 offen offset:16
        """)
        self.stamp("s")
        for j in range(11):
            base, off = ("v3", j * 1024) if j < 3 else ("v2", (j - 3) * 1024) if j < 7 else ("v5", (j - 7) * 1024)
            a(f"buffer_load_dwordx2 {P(10+2*j)}, {base}, {K}, 0 offen offset:{off}{self.NT}")
        for j in range(8):
            base, off = ("v2", j * 1024) if j < 4 else ("v5", (j - 4) * 1024)
            a(f"buffer_load_dwordx2 {P(32+2*j)}, {base}, {V}, 0 offen offset:{off}{self.NT}")
        self.stamp("s")
        a(f"""
        s_lshl_b32 s60, {sX}, {18 + HINT}
        s_lshl_b32 s61, {sM}, {7 + HINT}
        s_sub_u32 s60, s60, s61
        s_lshl_b32 s61, {sWV}, {6 + HINT}
        s_sub_u32 s60, s60, s61
        s_add_u32 s60, s60, {WS_KVT + 63*(64 << HINT)}
        v_lshlrev_b32 v142, {14 + HINT}, v9
        v_add_u32 v142, s60, v142
        v_sub_u32 v56, 3, v8
        v_lshl_add_u32 v142, v56, 4, v142
        s_movk_i32 s64, {4096 << HINT}
        s_movk_i32 s65, {8192 << HINT}
        s_movk_i32 s66, {12288 << HINT}
        """)
        self.c_ids()
        self.filter_load()
        self.g1_ids(); self.g2_ids()
        self.stamp("s")
        if opt('warm', 1) == 1: self.warm((0, ["kv0", "fprep", "ufetch", "conv0"]), (1, ["kv1", "addr", "conv1"]))
        if opt('warm', 1) == 3: self.warm((0, ["kv0", "fprep"]), (1, ["kv1", "ufetch", "addr"]))
        self.stamp(); self.stamp("s")
        a("s_waitcnt vmcnt(8)")
        self.tag_ready()
        self.stamp(); self.stamp("s")
        for p in range(2):
            a.region(f"kv{p}")
            s0, s1 = 48 + 4 * p, 50 + 4 * p
            a(f"""
            v_lshlrev_b32 v102, 16, v{s0}
            v_lshlrev_b32 v103, 16, v{s1}
            v_and_b32 v104, 0xffff0000, v{s0}
            v_and_b32 v105, 0xffff0000, v{s1}
            v_lshlrev_b32 v106, 16, v{s0+1}
            v_lshlrev_b32 v107, 16, v{s1+1}
            v_and_b32 v108, 0xffff0000, v{s0+1}
            v_and_b32 v109, 0xffff0000, v{s1+1}
            """)
            for j in range(11):
                a(f"v_lshlrev_b32 v{80+2*j}, 16, v{10+2*j+p}\nv_and_b32 v{81+2*j}, 0xffff0000, v{10+2*j+p}")
            for i in range(8):
                a(f"v_lshlrev_b32 v{126+2*i}, 16, v{32+2*i+p}\nv_and_b32 v{127+2*i}, 0xffff0000, v{32+2*i+p}")
            for i in range(8): a(f"v_pk_mul_f32 {P(110+2*i)}, {P(80+2*i)}, {P(108)}")
            for i in range(8): a(f"v_pk_fma_f32 {P(110+2*i)}, {P(82+2*i)}, {P(106)}, {P(110+2*i)}")
            for i in range(8): a(f"v_pk_fma_f32 {P(110+2*i)}, {P(84+2*i)}, {P(104)}, {P(110+2*i)}")
            for i in range(8): a(f"v_pk_fma_f32 {P(110+2*i)}, {P(86+2*i)}, {P(102)}, {P(110+2*i)}")
            for i in range(8): a(f"v_pk_mul_f32 {P(110+2*i)}, {P(110+2*i)}, {P(126+2*i)}")
            o = 144 + 8 * p
            for j in range(4):
                a(f"v_cvt_pk_bf16_f32 v{o+j}, v{110+2*(7-2*j)}, v{110+2*(6-2*j)}")
                a(f"v_cvt_pk_bf16_f32 v{o+4+j}, v{111+2*(7-2*j)}, v{111+2*(6-2*j)}")
            so = ("0", "s64") if p == 0 else ("s65", "s66")
            a(f"buffer_store_dwordx4 {Q4(o)}, v142, {WS}, {so[0]} offen sc1\nbuffer_store_dwordx4 {Q4(o+4)}, v142, {WS}, {so[1]} offen sc1")
            for c in range(2 * HINT):
                r, x = o + 4 * c, 56 + 2 * p + c
                a(f"v_bitop3_b32 v{x}, v{r}, v{r+1}, v{r+2} bitop3:0x96\nv_xor_b32 v{x}, v{x}, v{r+3}")
        for sw in (("16", "32") if HINT else ()):
            for c in range(4): a(f"v_mov_b32 v{60+c}, v{56+c}")
            for c in range(4): a(f"v_permlane{sw}_swap_b32 v{56+c}, v{60+c}")
            for c in range(4): a(f"v_xor_b32 v{56+c}, v{56+c}, v{60+c}" if sw == "16" else f"v_bitop3_b32 v{56+c}, v{56+c}, v{60+c}, s80 bitop3:0x96")
        for so in (("0", "s64", "s65", "s66") if HINT else ()): a(f"buffer_store_dwordx4 v[56:59], v142, {WS}, {so} offen offset:64 sc1")
        self.stamp()

    def w1_touch(self, j):
        self.a(f"""
        s_lshl_b32 s60, {sM}, 1
        s_add_u32 s60, s60, {sWV}
        s_mul_i32 s60, s60, {8*3584}
        s_and_b32 s61, {sX}, 1
        s_mul_i32 s61, s61, 1792
        s_add_u32 s60, s60, s61
        s_movk_i32 s61, 4682
        v_add_u32 v250, {64*j}, v1
        v_min_u32 v250, 111, v250
        v_mul_u32_u24 v251, s61, v250
        v_lshrrev_b32 v251, 16, v251
        v_mul_u32_u24 v251, {3584 - 14*128}, v251
        v_lshl_add_u32 v251, v250, 7, v251
        buffer_load_dword v{248+j}, v251, {W1}, s60 offen{self.NTW1}
        """)

    def flag_a(self):
        a = self.a
        a(f"""
        s_lshl_b32 s60, {sX}, 5
        s_add_u32 s60, s60, {sM}
        s_lshl_b32 s60, s60, 1
        s_add_u32 s60, s60, {sWV}
        s_lshl_b32 s60, s60, {self.FA_LOG}
        s_add_u32 s60, s60, {FLAG_A}
        """)
        self.flag_store("s60", 1, 3, 250)
    FA_LOG = FL

    def filter_load(self):
        a = self.a
        a("s_lshl_b32 s60, s68, 12\nv_lshl_add_u32 v4, v1, 4, s60")
        for i in range(4):
            r = 176 + 8 * i
            a(f"buffer_load_dwordx4 {Q4(r)}, v4, {FK}, 0 offen offset:{1024*i}{self.NTF}")
            a(f"buffer_load_dwordx2 {P(r+4)}, v4, {FK}, 0 offen offset:{1024*i+16}{self.NTF}")

    def role_b_loads(self):
        a = self.a
        a(f"s_sub_u32 s6, {sWV}, 2")
        self.c_ids()
        self.filter_load()
        self.g1_ids(); self.g2_ids()

    def role_b_loads_gemv(self):
        a = self.a
        a(f"""
        v_lshrrev_b32 v8, 2, v1
        v_and_b32 v14, 3, v1
        s_and_b32 s60, s2, 3
        s_lshl_b32 s60, s60, 7
        v_lshl_add_u32 v2, v8, 3, s60
        v_lshlrev_b32 v3, 1, v2
        buffer_load_dwordx4 v[164:167], v3, {C}, 0 offen
        s_movk_i32 s61, 6144
        v_mul_lo_u32 v3, v2, s61
        v_lshl_add_u32 v3, v14, 4, v3
        s_lshr_b32 s60, s2, 2
        s_lshl_b32 s60, s60, 7
        s_lshl_b32 s61, s6, 6
        s_add_u32 s60, s60, s61
        s_cmp_ge_u32 s2, 192
        s_cselect_b32 s60, 0x40000000, s60
        """)
        for j in range(8):
            a(f"buffer_load_dwordx4 {Q4(16+4*j)}, v3, {WM}, s60 offen{self.NT}")
            if j < 7: a("s_add_u32 s60, s60, 6144")

    def role_b_loads2(self):
        a = self.a
        a(f"""
        s_lshl_b32 s60, s2, 13
        s_lshl_b32 s61, s6, 12
        s_add_u32 s60, s60, s61
        v_lshrrev_b32 v3, 4, v1
        v_lshlrev_b32 v3, 10, v3
        v_and_b32 v4, 15, v1
        v_lshl_add_u32 v3, v4, 4, v3
        """)
        for j in range(4): a(f"buffer_load_dwordx4 {Q4(48+4*j)}, v3, {Q}, s60 offen offset:{256*j}{self.NTQ}")

    def unit_addr(self, sel=None):
        self.a(f"""
        s_lshl_b32 s61, s2, 1
        {sel or f"s_and_b32 s60, {sWV}, 1"}
        s_add_u32 s60, s60, s61
        s_lshr_b32 s20, s60, 3
        s_and_b32 s21, s60, 7
        s_mul_i32 s61, s20, 37
        s_lshr_b32 s61, s61, 8
        s_mul_i32 s62, s61, 7
        s_sub_u32 s62, s20, s62
        s_mul_i32 s61, s61, 224
        s_lshl_b32 s63, s62, 5
        s_add_u32 s22, s63, 16
        s_cmp_ge_u32 s62, 3
        s_cselect_b32 s63, s22, s63
        s_movk_i32 s22, {16*1024}
        s_cmp_eq_u32 s62, 6
        s_cselect_b32 s63, 96, s63
        s_cselect_b32 s22, {112*1024}, s22
        s_add_u32 s61, s61, s63
        s_lshl_b32 s61, s61, 10
        s_lshl_b32 s62, s21, 7
        s_add_u32 s61, s61, s62
        s_cmp_ge_u32 s60, 448
        s_cselect_b32 s23, 0x40000000, s61
        v_lshrrev_b32 v169, 2, v1
        v_lshlrev_b32 v169, 10, v169
        v_and_b32 v5, 3, v1
        v_lshl_add_u32 v169, v5, 4, v169
        """)

    def q_rows(self, h=sWV):
        a = self.a
        a(f"""
        s_mov_b32 s62, {h}
        s_cmp_eq_u32 s62, 0
        s_cselect_b32 s60, s71, s72
        s_lshl_b32 s60, s60, 19
        s_lshr_b32 s61, s70, 1
        s_lshl_b32 s61, s61, 4
        s_add_u32 s60, s60, s61
        s_lshl_b32 s61, s62, 13
        v_lshlrev_b32 v5, 10, v1
        """)
        for i in range(8):
            a(f"s_add_u32 m0, s61, {self.QS + 1024*i}")
            a(f"buffer_load_dwordx4 v5, {Q}, s60 offen lds")
            if i < 7: a("s_add_u32 s60, s60, 65536")

    def side_inputs(self):
        a = self.a
        a(f"""
        v_lshrrev_b32 v5, 1, v1
        v_mul_u32_u24 v5, 3584, v5
        v_and_b32 v6, 1, v1
        v_lshl_add_u32 v5, v6, 4, v5
        s_and_b32 s60, s2, 15
        s_mul_i32 s60, s60, 224
        s_lshr_b32 s61, s2, 4
        s_mul_i32 s61, s61, {32*3584}
        s_add_u32 s60, s60, s61
        s_lshl_b32 s61, {sWV}, 5
        s_add_u32 s60, s60, s61
        s_lshl_b32 s61, {sWV}, 11
        s_add_u32 m0, s61, {self.W1S}
        buffer_load_dwordx4 v5, {W1}, s60 offen{self.NTW1} lds
        s_add_u32 m0, s61, {self.W1S + 1024 - 128}
        buffer_load_dwordx4 v5, {W1}, s60 offen offset:128{self.NTW1} lds
        s_cmp_lt_u32 {sWV}, 2
        s_cselect_b32 s60, s71, s72
        s_lshl_b32 s60, s60, 4
        s_and_b32 s61, {sWV}, 1
        s_lshl_b32 s61, s61, 3
        s_add_u32 s43, s60, s61
        s_lshl_b32 s60, s43, 5
        v_lshl_add_u32 v5, v3, 5, v2
        v_add_u32 v5, s60, v5
        v_lshlrev_b32 v159, 4, v5
        v_add_u32 v159, {WS_STAT}, v159
        s_lshl_b32 s60, s68, 1
        v_mov_b32 v5, s60
        buffer_load_ushort v126, v5, {SD}, 0 offen
        """)

    def w2_half_addr(self):
        a = self.a
        self.unit_addr(f"s_lshr_b32 s60, {sWV}, 1")
        a(f"""
        s_and_b32 s60, {sWV}, 1
        s_lshl_b32 s60, s60, 6
        s_add_u32 s23, s23, s60
        s_lshl_b32 s60, {sWV}, 11
        s_add_u32 s44, s60, {self.W2S}
        v_lshrrev_b32 v174, 2, v1
        v_lshl_add_u32 v175, v3, 2, v174
        s_cmp_eq_u32 s22, {112*1024}
        s_cselect_b64 vcc, -1, 0
        s_movk_i32 s61, 1024
        s_cselect_b32 s61, 256, s61
        v_cndmask_b32 v174, v174, v175, vcc
        v_lshlrev_b32 v174, 6, v174
        v_and_b32 v175, 3, v1
        v_lshl_add_u32 v174, v175, 4, v174
        v_add_u32 v174, s44, v174
        v_add_u32 v175, s61, v174
        s_add_u32 s22, s22, s23
        s_mul_i32 s45, s21, 56
        s_add_u32 s45, s45, s20
        s_lshl_b32 s45, s45, 12
        s_and_b32 s61, {sWV}, 1
        s_lshl_b32 s61, s61, 11
        s_add_u32 s45, s45, s61
        s_add_u32 s45, s45, {WS_W2P}
        s_cmp_ge_u32 s20, 56
        s_cselect_b32 s45, 0x40000000, s45
        s_lshl_b32 s46, s2, 2
        s_add_u32 s46, s46, {sWV}
        s_lshl_b32 s46, s46, {FL}
        s_add_u32 s46, s46, {FLAG_B}
        """)

    def w2_unit_load(self):
        a = self.a
        self.unit_addr()
        a(f"s_lshl_b32 s61, s6, 12\ns_add_u32 s62, s23, s22")
        for c in range(2):
            for i in range(2):
                a(f"s_add_u32 m0, s61, {self.W2S + 2048*c + 1024*i - 64*c}")
                a(f"buffer_load_dwordx4 v169, {W2}, {'s23' if i == 0 else 's62'} offen offset:{64*c}{self.NT} lds")

    def w2_unit_pack(self, later):
        a = self.a
        a(f"""
        s_lshl_b32 s61, s6, 12
        s_add_u32 s60, s61, {self.W2S}
        v_lshrrev_b32 v10, 2, v1
        v_lshl_add_u32 v11, v3, 2, v10
        s_cmp_eq_u32 s22, {112*1024}
        s_cselect_b64 vcc, -1, 0
        s_movk_i32 s61, 1024
        s_cselect_b32 s61, 256, s61
        v_cndmask_b32 v10, v10, v11, vcc
        v_lshlrev_b32 v10, 6, v10
        v_and_b32 v11, 3, v1
        v_lshl_add_u32 v10, v11, 4, v10
        v_add_u32 v10, s60, v10
        v_add_u32 v11, s61, v10
        v_lshlrev_b32 v12, 4, v1
        s_mul_i32 s63, s21, 56
        s_add_u32 s63, s63, s20
        s_lshl_b32 s63, s63, 12
        s_add_u32 s63, s63, {WS_W2P}
        s_cmp_ge_u32 s20, 56
        s_cselect_b32 s63, 0x40000000, s63
        s_waitcnt vmcnt({later})
        """)
        for dt in range(4):
            o = 2048 * (dt >> 1) + 8 * (dt & 1)
            a(f"ds_read_b64_tr_b16 {P(16+4*dt)}, v10 offset:{o}\nds_read_b64_tr_b16 {P(18+4*dt)}, v11 offset:{o}")
        a("s_waitcnt lgkmcnt(0)")
        for dt in range(4): a(f"buffer_store_dwordx4 {Q4(16+4*dt)}, v12, {WS}, s63 offen offset:{1024*dt} sc1")

    CSZ = 4160
    QS = 32768 + 69632
    W1S = 32768 + 112640
    W2S = 32768 + 120832
    GVS = 32768 + 129024
    def filter_copies(self):
        a = self.a
        a(f"""
        s_mul_i32 s60, {sWV}, {4*self.CSZ}
        s_add_u32 s60, s60, {self.WB}
        v_lshl_add_u32 v4, v1, 4, s60
        v_mov_b32 v100, 0
        v_mov_b32 v101, 0
        v_mov_b32 v102, 0
        v_mov_b32 v103, 0
        s_mov_b64 s[62:63], exec
        s_mov_b64 exec, 15
        """)
        for c in range(4): a(f"ds_write_b128 v4, v[100:103] offset:{c*self.CSZ}")
        a("s_mov_b64 exec, s[62:63]")
        for cc in range(1):
            for i in range(4):
                r = 176 + 8 * (4 * cc + i)
                t = 104 + 12 * (i % 2)
                o = cc * 4 * self.CSZ + 64 + 1024 * i
                pass
                a(f"ds_write_b128 v4, {Q4(r)} offset:{o}")
                for j in range(4): a(f"v_alignbit_b32 v{t+j}, v{r+j+1}, v{r+j}, 16")
                for j in range(4): a(f"v_mov_b32 v{t+4+j}, v{r+j+1}")
                for j in range(4): a(f"v_alignbit_b32 v{t+8+j}, v{r+j+2}, v{r+j+1}, 16")
                for k in range(3): a(f"ds_write_b128 v4, {Q4(t+4*k)} offset:{o + (k+1)*self.CSZ}")
                if i == 0:
                    a(f"""
                    v_lshlrev_b32 v128, 16, v{r}
                    s_mov_b64 exec, 1
                    ds_write_b32 v4, v128 offset:{o + self.CSZ - 4}
                    ds_write_b32 v4, v{r} offset:{o + 2*self.CSZ - 4}
                    ds_write_b32 v4, v128 offset:{o + 3*self.CSZ - 8}
                    ds_write_b32 v4, v{t} offset:{o + 3*self.CSZ - 4}
                    s_mov_b64 exec, s[62:63]
                    """)

    def role_b_rest(self, later, after_wait=None):
        a = self.a
        self.stamp("b")
        a(f"s_waitcnt vmcnt({later + 12})")
        self.tag_ready()
        for j in range(4): a(f"v_lshlrev_b32 v{100+2*j}, 16, v{164+j}\nv_and_b32 v{101+2*j}, 0xffff0000, v{164+j}")
        for j in range(8): a(f"v_mul_f32 v{108+j}, {NLOG2E}, v{100+j}")
        for j in range(8): a(f"v_exp_f32 v{108+j}, v{108+j}")
        for j in range(8): a(f"v_add_f32 v{108+j}, 1.0, v{108+j}")
        for j in range(8): a(f"v_rcp_f32 v{108+j}, v{108+j}")
        for j in range(8): a(f"v_mul_f32 v{108+j}, v{100+j}, v{108+j}")
        for j in range(4): a(f"v_cvt_pk_bf16_f32 v{100+j}, v{108+2*j}, v{109+2*j}")
        for j in range(4): a(f"v_lshlrev_b32 v{108+2*j}, 16, v{100+j}\nv_and_b32 v{109+2*j}, 0xffff0000, v{100+j}")
        self.stamp("b")
        a(f"s_waitcnt vmcnt({later + 4})")
        if after_wait: after_wait()
        self.stamp("b")
        for j in range(8):
            for e in range(4):
                a(f"v_lshlrev_b32 v{116+2*e}, 16, v{16+4*j+e}\nv_and_b32 v{117+2*e}, 0xffff0000, v{16+4*j+e}")
            sel = "op_sel_hi:[1,0,1]" if j % 2 == 0 else "op_sel:[0,1,0] op_sel_hi:[1,1,1]"
            for e in range(4):
                if j == 0: a(f"v_pk_mul_f32 {P(124+2*e)}, {P(116+2*e)}, {P(108)} op_sel_hi:[1,0]")
                else: a(f"v_pk_fma_f32 {P(124+2*e)}, {P(116+2*e)}, {P(108+2*(j//2))}, {P(124+2*e)} {sel}")
        for n in (4, 8):
            for e in range(8): a(f"v_add_f32_dpp v{124+e}, v{124+e}, v{124+e} row_ror:{n} row_mask:0xf bank_mask:0xf")
        a(f"""
        s_lshl_b32 s60, s6, 9
        s_add_u32 s60, s60, {self.GVS}
        v_lshl_add_u32 v116, v3, 7, s60
        v_and_b32 v117, 3, v1
        v_lshl_add_u32 v116, v117, 5, v116
        ds_write_b128 v116, v[124:127]
        ds_write_b128 v116, v[128:131] offset:16
        v_and_b32 v117, 31, v1
        v_lshlrev_b32 v117, 2, v117
        v_add_u32 v116, s60, v117
        ds_read_b32 v120, v116
        ds_read_b32 v121, v116 offset:128
        ds_read_b32 v122, v116 offset:256
        ds_read_b32 v123, v116 offset:384
        s_waitcnt vmcnt({self.n_after})
        s_and_b32 s60, s2, 3
        s_mul_i32 s60, s60, {MODP}
        s_lshr_b32 s61, s2, 2
        s_lshl_b32 s61, s61, 9
        s_add_u32 s60, s60, s61
        s_lshl_b32 s61, s6, 8
        s_add_u32 s60, s60, s61
        s_add_u32 s60, s60, {WS_MOD}
        s_cmp_ge_u32 s2, 192
        s_cselect_b32 s60, 0x40000000, s60
        v_lshlrev_b32 v117, 1, v117
        s_waitcnt lgkmcnt(0)
        v_add_f32 v120, v120, v121
        v_add_f32 v122, v122, v123
        v_add_f32 v120, v120, v122
        v_mov_b32 v121, s80
        s_mov_b32 exec_hi, 0
        buffer_store_dwordx2 v[120:121], v117, {WS}, s60 offen sc1
        s_mov_b32 exec_hi, -1
        """)
        self.stamp("b")
        a.region("brest1")
        self.role_b_tail()

    def role_b_tail(self):
        a = self.a
        for j in range(16): a(f"v_lshlrev_b32 v{100+2*j}, 16, v{48+j}\nv_and_b32 v{101+2*j}, 0xffff0000, v{48+j}")
        for j in range(8): a(f"v_pk_add_f32 {P(132+2*j)}, {P(100+4*j)}, {P(102+4*j)}")
        for st in (4, 2, 1):
            for j in range(st): a(f"v_pk_add_f32 {P(132+2*j)}, {P(132+2*j)}, {P(132+2*(j+st))}")
        a("v_add_f32 v132, v132, v133")
        for n in (8, 4, 2, 1): a(f"v_add_f32_dpp v132, v132, v132 row_ror:{n} row_mask:0xf bank_mask:0xf")
        a("v_mul_f32 v148, 0xbb000000, v132")
        for j in range(16): a(f"v_pk_add_f32 {P(100+2*j)}, {P(100+2*j)}, {P(148)} op_sel_hi:[1,0]")
        for j in range(4): a(f"v_pk_mul_f32 {P(132+2*j)}, {P(100+2*j)}, {P(100+2*j)}")
        for j in range(4, 16): a(f"v_pk_fma_f32 {P(132+2*(j&3))}, {P(100+2*j)}, {P(100+2*j)}, {P(132+2*(j&3))}")
        a(f"v_pk_add_f32 {P(132)}, {P(132)}, {P(134)}\nv_pk_add_f32 {P(136)}, {P(136)}, {P(138)}\nv_pk_add_f32 {P(132)}, {P(132)}, {P(136)}\nv_add_f32 v132, v132, v133")
        for n in (8, 4, 2, 1): a(f"v_add_f32_dpp v132, v132, v132 row_ror:{n} row_mask:0xf bank_mask:0xf")
        a(f"""
        v_mov_b32 v133, 0x3727c5ac
        v_fmac_f32 v133, 0x3b000000, v132
        v_rsq_f32 v136, v133
        s_lshl_b32 s60, s2, 7
        s_lshl_b32 s61, s6, 6
        s_add_u32 s60, s60, s61
        s_add_u32 s60, s60, {WS_STAT}
        v_mov_b32 v137, s80
        v_mov_b32 v139, s80
        v_mul_f32 v138, v148, v136
        v_lshlrev_b32 v134, 4, v3
        s_mov_b32 exec_lo, 0x00010001
        s_mov_b32 exec_hi, 0x00010001
        buffer_store_dwordx4 v[136:139], v134, {WS}, s60 offen sc1
        s_mov_b64 exec, -1
        """)

    def flag_m(self, later):
        a = self.a
        a(f"""
        s_waitcnt vmcnt({later})
        s_lshl_b32 s60, s2, 1
        s_add_u32 s60, s60, s6
        s_lshl_b32 s60, s60, {FL}
        s_add_u32 s60, s60, {FLAG_B}
        """)
        self.flag_store("s60", 1, 9 + FL, 250)

    def filter_prep(self, mid):
        a = self.a
        a(f"""
        s_mul_i32 s73, {sWV}, {self.FSZ}
        s_add_u32 s73, s73, {self.FB}
        v_and_b32 v2, 15, v1
        v_lshrrev_b32 v3, 4, v1
        v_lshl_add_u32 v4, v1, 4, s73
        v_mov_b32 v6, 0
        v_mov_b32 v7, 0
        v_mov_b32 v8, 0
        v_mov_b32 v9, 0
        v_add_u32 v5, 1, v2
        v_and_b32 v10, 3, v5
        v_mul_u32_u24 v10, {self.CSZ}, v10
        v_and_b32 v5, 28, v5
        v_lshl_add_u32 v5, v5, 1, v10
        v_and_b32 v10, 1, v3
        v_lshl_add_u32 v5, v10, 4, v5
        s_mul_i32 s60, {sWV}, {4*self.CSZ}
        s_add_u32 s60, s60, {self.WB}
        v_add_u32 v5, s60, v5
        v_lshrrev_b32 v10, 1, v3
        s_add_u32 s60, s71, 1
        s_lshl_b32 s60, s60, 9
        s_add_u32 s61, s72, 1
        s_lshl_b32 s61, s61, 9
        v_mad_u32_u24 v11, v10, s60, v5
        v_mad_u32_u24 v12, v10, s61, v5
        v_add_u32 v15, s60, v11
        v_subrev_u32 v12, s60, v12
        s_cmp_eq_u32 s69, 0
        s_cselect_b64 vcc, -1, 0
        v_cndmask_b32 v13, v11, v12, vcc
        """)
        for n in range(81):
            if n == opt('fa', 10): mid()
            b = "v11" if n < 16 else "v13" if n < 32 else "v12"
            a(f"ds_read_b64 {self.Fhalf(n,0)}, {b} offset:{32*n}")
            a(f"ds_read_b64 {self.Fhalf(n,1)}, {b} offset:{32*n+8}")
        a("ds_read_b64 v[244:245], v15\nds_read_b64 v[246:247], v15 offset:8")
        a(f"ds_write_b128 v4, v[6:9] offset:6144\ns_mov_b64 exec, {(1 << 26) - 1}\nds_write_b128 v4, v[6:9] offset:7168\ns_mov_b64 exec, -1")
        a(f"""
        v_sub_u32 v5, 63, v2
        v_mul_u32_u24 v5, 96, v5
        v_add_u32 v5, s73, v5
        s_mul_i32 s60, s71, {16*96}
        s_mul_i32 s61, s72, {16*96}
        v_subrev_u32 v156, s60, v5
        v_subrev_u32 v157, s61, v5
        v_and_b32 v6, 1, v3
        v_lshlrev_b32 v6, 4, v6
        v_lshrrev_b32 v7, 1, v3
        s_add_u32 s60, s71, 1
        s_mul_i32 s60, s60, 768
        s_add_u32 s61, s72, 1
        s_mul_i32 s61, s61, 768
        v_mad_u32_u24 v80, v7, s60, v156
        v_mad_u32_u24 v82, v7, s61, v157
        v_add_u32 v80, v80, v6
        v_add_u32 v82, v82, v6
        v_subrev_u32 v82, s60, v82
        s_cmp_eq_u32 s69, 0
        s_cselect_b64 vcc, -1, 0
        v_cndmask_b32 v81, v80, v82, vcc
        v_lshlrev_b32 v6, 3, v3
        v_sub_u32 v6, 24, v6
        v_add_u32 v156, v156, v6
        v_add_u32 v157, v157, v6
        """)

    def pre_conv(self):
        self.epi_addr(); self.g2_w2_addr(0); self.mod_addr()
        if W2L: self.w2_half_addr()
        L = self.w_stream(32, 0)
        for t in L[:L.index("WAIT")]: self.a(t.replace(" | ", "\n"))

    def u_addr(self):
        a = self.a
        a("s_movk_i32 s60, 10923")
        for j in range(3):
            a(f"""
            v_add_u32 v19, {64*j}, v1
            v_mul_u32_u24 v20, s60, v19
            v_lshrrev_b32 v20, 16, v20
            v_mul_u32_u24 v21, 6, v20
            v_sub_u32 v19, v19, v21
            v_min_u32 v19, 3, v19
            v_lshlrev_b32 v19, 4, v19
            v_lshl_add_u32 v{16+j}, v20, 6, v19
            """)
        a(f"s_lshl_b32 s64, s68, 12\ns_add_u32 s64, s64, {WS_KVT}\ns_add_u32 s65, s64, 2048")

    def u_wait(self):
        a = self.a
        a(f"""
        s_cmp_lg_u32 {sWV}, 0
        s_cbranch_scc1 L_u_nopoll
        s_lshl_b32 s60, {sX}, {6 + self.FA_LOG}
        s_add_u32 s60, s60, {FLAG_A}
        v_lshl_add_u32 v4, v1, {self.FA_LOG}, s60
        """)
        for i in range(opt('psa', 0)): a("s_sleep 4")
        self.poll("A")
        a("L_u_nopoll:")

    def u_fetch(self):
        a = self.a
        for j in (5, 4, 3, 2, 1, 0):
            if j == 0: a("s_cmp_eq_u32 s69, 1\ns_cbranch_scc1 L_u_short")
            a(f"s_add_u32 m0, s73, {1024*j}")
            a(f"buffer_load_dwordx4 v{16 + j%3}, {WS}, {'s64' if j < 3 else 's65'} offen sc1 lds")
        a("L_u_short:")
        self.side_inputs()
        a("s_waitcnt vmcnt(3)")

    def conv_main(self, hook):
        a = self.a
        D = 6
        off = lambda n: 96 * (n >> 1) + 32 * (n & 1)
        base = lambda n: "v80" if n < 16 else "v81" if n < 32 else "v82"
        Br = lambda n: Q4(48 + 4 * (n % 8))
        def rd(n):
            if n < 80: a(f"ds_read_b128 {Br(n)}, {base(n)} offset:{off(n)}")
        def step(n, c0="v[84:87]", c1="v[88:91]", d0="v[84:87]", d1="v[88:91]", a1=None):
            rd(n + D)
            a(f"s_waitcnt lgkmcnt({min(D, 79 - n)})")
            a(f"v_mfma_f32_16x16x32_bf16 {d0}, {self.Freg(n)}, {Br(n)}, {c0}")
            a(f"v_mfma_f32_16x16x32_bf16 {d1}, {a1 or self.Freg(n+1)}, {Br(n)}, {c1}")
        for n in range(D): rd(n)
        def boundary(n, ty):
            a(f"s_cmp_eq_u32 s69, {ty}\ns_cbranch_scc0 L_cb{n}_no")
            h = list(a.hist)
            step(n, d0="v[92:95]", d1="v[96:99]", a1="v[244:247]")
            step(n + 1, c0="0", c1="0")
            a(f"s_branch L_cb{n}_done\nL_cb{n}_no:")
            a.hist = h
            step(n); step(n + 1)
            a(f"L_cb{n}_done:")
            hook(n); hook(n + 1)
        step(0, c0="0", c1="0"); hook(0)
        for n in range(1, 15): step(n); hook(n)
        boundary(15, 0)
        for n in range(17, 31): step(n); hook(n)
        boundary(31, 1)
        for n in range(33, 80): step(n); hook(n)

    def epi_addr(self):
        self.a(f"""
        v_and_b32 v161, 3, v1
        s_movk_i32 s60, {MODP}
        v_mul_u32_u24 v161, s60, v161
        v_bfe_u32 v5, v1, 2, 2
        v_lshl_add_u32 v161, v5, 12, v161
        v_lshl_add_u32 v161, v3, 3, v161
        s_lshl_b32 s60, s70, 5
        s_add_u32 s60, s60, {WS_MOD}
        v_add_u32 v161, s60, v161
        s_mul_i32 s60, {sWV}, 112
        s_add_u32 s60, s60, s77
        s_lshl_b32 s60, s60, {FL + W2L}
        s_add_u32 s60, s60, {FLAG_B}
        v_and_b32 v5, 15, v1
        v_min_u32 v5, 13, v5
        v_lshl_add_u32 v248, v5, {FL + 3 + W2L}, s60
        v_bfe_u32 v5, v1, 4, 1
        v_mul_u32_u24 v5, {W2L << FL}, v5
        v_add_u32 v248, v248, v5
        """)

    def epi_load_list(self):
        L = [f"buffer_load_dwordx2 v[124:125], v161, {WS}, 0 offen sc1"]
        for i in range(4):
            L.append(f"buffer_load_dwordx4 {Q4(108+4*i)}, v159, {WS}, 0 offen offset:{2048*(i>>1) + 256*(i&1)} sc1")
        return L

    def conv_epilogue(self):
        a = self.a
        xi, RS = self.XI, self.XI_RS
        for sl in range(2):
            for t in range(2):
                a(f"ds_read_b64 {P(140+4*sl+2*t)}, v{156+sl} offset:{32-32*t}")
        self.verify("e", [125] + [109 + 2*i for i in range(8)], 150, self.epi_load_list())
        a(f"""
        v_add_f32_dpp v124, v124, v124 quad_perm:[1,0,3,2] row_mask:0xf bank_mask:0xf
        v_add_f32_dpp v124, v124, v124 quad_perm:[2,3,0,1] row_mask:0xf bank_mask:0xf
        s_lshl_b32 s60, {sWV}, 4
        s_add_u32 s60, s60, 8
        v_cvt_pk_bf16_f32 v124, v124, v124
        v_and_b32 v124, 0xffff0000, v124
        v_add_f32 v125, 1.0, v124
        v_cvt_pk_bf16_f32 v125, v125, v125
        v_and_b32 v125, 0xffff0000, v125
        v_readlane_b32 s61, v124, s60
        v_lshlrev_b32 v148, 16, v126
        s_mul_i32 s60, {sWV}, {RS}
        s_add_u32 s60, s60, {xi}
        v_mul_u32_u24 v4, 144, v3
        v_lshl_add_u32 v4, v2, 3, v4
        v_add_u32 v4, s60, v4
        v_mov_b32 v149, s61
        s_waitcnt lgkmcnt(0)
        """)
        for sl in range(2):
            for t in range(2):
                i = 2 * sl + t
                acc = (92 if sl == 0 else 84) + 4 * t
                kv, w = 140 + 2 * i, 160 + 4 * (i & 1)
                a(f"""
                v_and_b32 v{w}, 0xffff0000, v{kv+1}
                v_lshlrev_b32 v{w+1}, 16, v{kv+1}
                v_and_b32 v{w+2}, 0xffff0000, v{kv}
                v_lshlrev_b32 v{w+3}, 16, v{kv}
                v_pk_fma_f32 {P(w)}, {P(w)}, {P(148)}, {P(acc)} op_sel_hi:[1,0,1]
                v_pk_fma_f32 {P(w+2)}, {P(w+2)}, {P(148)}, {P(acc+2)} op_sel_hi:[1,0,1]
                v_pk_mul_f32 {P(w)}, {P(w)}, {P(148)} op_sel:[0,1] op_sel_hi:[1,1]
                v_pk_mul_f32 {P(w+2)}, {P(w+2)}, {P(148)} op_sel:[0,1] op_sel_hi:[1,1]
                v_cvt_pk_bf16_f32 v{168+2*(i&1)}, v{w}, v{w+1}
                v_cvt_pk_bf16_f32 v{169+2*(i&1)}, v{w+2}, v{w+3}
                ds_write_b64 v4, {P(168+2*(i&1))} offset:{1152*sl + 576*t}
                """)
        a(f"""
        s_lshr_b32 s60, {sWV}, 1
        s_and_b32 s61, {sWV}, 1
        s_mul_i32 s62, s60, 1152
        s_lshl_b32 s63, s61, 6
        s_add_u32 s62, s62, s63
        s_add_u32 s62, s62, {xi}
        v_bfe_u32 v5, v1, 2, 2
        v_mul_u32_u24 v5, {RS}, v5
        v_and_b32 v6, 3, v1
        v_mul_u32_u24 v6, 144, v6
        v_add3_u32 v5, v5, v6, s62
        v_lshl_add_u32 v5, v3, 3, v5
        s_lshl_b32 s60, {sWV}, 12
        s_and_b32 s61, s70, 1
        s_lshl_b32 s61, s61, 3
        s_add_u32 s60, s60, s61
        s_add_u32 s60, s60, {self.QS}
        v_lshl_add_u32 v6, v3, 5, v2
        v_lshl_add_u32 v6, v6, 4, s60
        s_waitcnt lgkmcnt(0)
        s_barrier
        ds_read_b64 v[100:101], v6
        ds_read_b64 v[102:103], v6 offset:256
        ds_read_b64 v[104:105], v6 offset:2048
        ds_read_b64 v[106:107], v6 offset:2304
        ds_read_b64_tr_b16 v[160:161], v5
        ds_read_b64_tr_b16 v[162:163], v5 offset:576
        ds_read_b64_tr_b16 v[164:165], v5 offset:32
        ds_read_b64_tr_b16 v[166:167], v5 offset:{576+32}
        """)
        for c in range(4):
            a(f"v_readlane_b32 s{60+c}, v125, {16*c+4}")
            a(f"v_readlane_b32 s{64+c}, v124, {16*c}")
        for c in range(4): a(f"v_mov_b32 v{128+c}, s{60+c}\nv_mov_b32 v{132+c}, s{64+c}")
        a("s_waitcnt lgkmcnt(4)")
        for i in range(4):
            q, A, u = 100 + 2 * i, 108 + 4 * i, 64 + 8 * i
            a(f"""
            v_lshlrev_b32 v{u}, 16, v{q}
            v_and_b32 v{u+1}, 0xffff0000, v{q}
            v_lshlrev_b32 v{u+2}, 16, v{q+1}
            v_and_b32 v{u+3}, 0xffff0000, v{q+1}
            v_pk_fma_f32 {P(u+4)}, {P(u)}, {P(A)}, {P(A+2)} op_sel_hi:[1,0,0]
            v_pk_fma_f32 {P(u+6)}, {P(u+2)}, {P(A)}, {P(A+2)} op_sel_hi:[1,0,0]
            v_pk_fma_f32 {P(u+4)}, {P(u+4)}, {P(128)}, {P(132)}
            v_pk_fma_f32 {P(u+6)}, {P(u+6)}, {P(130)}, {P(134)}
            """)
        a(f"""
        s_lshl_b32 s62, s43, 15
        s_lshl_b32 s63, s70, 8
        s_add_u32 s62, s62, s63
        s_add_u32 s62, s62, {WS_X1}
        s_add_u32 s63, s62, {4*32768}
        v_lshlrev_b32 v6, 15, v3
        v_lshl_add_u32 v6, v2, 4, v6
        """)
        for i in range(4):
            y, u, w = 160 + 2 * i, 64 + 8 * i, 140 + 4 * (i & 1)
            a(f"""
            s_waitcnt lgkmcnt({3-i})
            v_lshlrev_b32 v{w}, 16, v{y}
            v_and_b32 v{w+1}, 0xffff0000, v{y}
            v_lshlrev_b32 v{w+2}, 16, v{y+1}
            v_and_b32 v{w+3}, 0xffff0000, v{y+1}
            v_pk_fma_f32 {P(u)}, {P(u+4)}, {P(w)}, {P(u)}
            v_pk_fma_f32 {P(u+2)}, {P(u+6)}, {P(w+2)}, {P(u+2)}
            v_cvt_pk_bf16_f32 v{y}, v{u}, v{u+1}
            v_cvt_pk_bf16_f32 v{y+1}, v{u+2}, v{u+3}
            """)
            if i & 1: a(f"buffer_store_dwordx4 {Q4(y-2)}, v6, {WS}, s{62 + (i>>1)} offen sc1")

    def g2_epi_load(self):
        a = self.a
        a(f"""
        s_lshl_b32 s60, s77, 9
        s_add_u32 s60, s60, {WS_MOD + 5*4096}
        v_lshl_add_u32 v18, v1, 3, s60
        """)
        self.gb_loads = [f"buffer_load_dwordx2 {P((10, 16, 28, 30)[k])}, v18, {WS}, {so} offen sc1" for k, so in enumerate(("0", "s12", "s13", "s14"))]
        for t in self.gb_loads: a(t)
        a(f"""
        s_lshl_b32 s60, s76, 1
        s_lshr_b32 s61, {sWV}, 1
        s_add_u32 s60, s60, s61
        s_lshl_b32 s60, s60, 15
        s_lshl_b32 s61, s77, 12
        s_add_u32 s60, s60, s61
        s_and_b32 s61, {sWV}, 1
        s_lshl_b32 s61, s61, 3
        s_add_u32 s60, s60, s61
        s_add_u32 s60, s60, {WS_X1}
        v_lshlrev_b32 v19, 9, v3
        v_lshl_add_u32 v19, v2, 4, v19
        """)
        for p in range(2):
            for h in range(2):
                a(f"buffer_load_dwordx2 {P(20+4*p+2*h)}, v19, {WS}, s60 offen offset:{2048*p + 256*h} sc1")

    def g2_epi_pre(self, tb):
        a = self.a
        self.verify("g", [11, 17, 29, 31], 4, self.gb_loads)
        a(f"""
        v_add_f32 v4, v10, v16
        v_add_f32 v7, v28, v30
        v_add_f32 v4, v4, v7
        v_cvt_pk_bf16_f32 v4, v4, v4
        v_and_b32 v4, 0xffff0000, v4
        s_lshl_b32 s60, {sWV}, 8
        s_add_u32 s60, s60, {tb}
        v_lshl_add_u32 v5, v1, 2, s60
        ds_write_b32 v5, v4
        v_lshl_add_u32 v5, v3, 5, s60
        """)
        for p in range(2):
            for h in range(2):
                a(f"ds_read_b128 a[{224+8*p+4*h}:{227+8*p+4*h}], v5 offset:{128*p + 16*h}")
        a("s_waitcnt lgkmcnt(0)")

    def g1_ids(self):
        self.a(f"""
        s_lshr_b32 s74, {sX}, 1
        s_lshl_b32 s74, s74, 2
        s_lshr_b32 s60, {sM}, 3
        s_add_u32 s74, s74, s60
        s_and_b32 s75, {sX}, 1
        s_lshl_b32 s75, s75, 3
        s_and_b32 s60, {sM}, 7
        s_add_u32 s75, s75, s60
        """)

    def w1_addr(self, r0):
        self.a(f"""
        v_mul_u32_u24 v5, 3584, v3
        v_lshlrev_b32 v6, 1, v3
        v_xor_b32 v6, v6, v2
        v_lshl_add_u32 v{r0}, v6, 4, v5
        v_xor_b32 v6, 8, v6
        v_lshl_add_u32 v{r0+1}, v6, 4, v5
        s_mul_i32 s7, s75, 224
        s_and_b32 s7, s7, -64
        s_and_b32 s16, {sM}, 7
        s_lshl_b32 s16, s16, 1
        s_lshr_b32 s61, {sM}, 3
        s_lshl_b32 s61, s61, 2
        s_add_u32 s16, s16, s61
        s_mul_i32 s16, s16, {opt('rot1', 0)}
        s_and_b32 s16, s16, 15
        s_add_u32 s17, s7, {512*3584}
        s_lshl_b32 s61, {sWV}, 2
        s_add_u32 s61, s61, s16
        s_and_b32 s61, s61, 15
        s_mul_i32 s61, s61, {32*3584}
        s_add_u32 s7, s7, s61
        s_lshl_b32 s78, {sWV}, 15
        s_add_u32 s78, s78, {self.WB}
        """)

    def w1_one(self, r0, n):
        a = self.a
        a(f"s_add_u32 m0, s78, {1024*n}")
        a(f"buffer_load_dwordx4 v{r0 + n%2}, {W1}, s7 offen lds")
        a(f"s_add_u32 s7, s7, {4*3584}")
        if n % 8 == 7: a(f"s_cmp_eq_u32 s7, s17\ns_cselect_b32 s60, {512*3584}, 0\ns_sub_u32 s7, s7, s60")

    def w2_touch(self, j):
        self.a(f"buffer_load_dword v{248+j}, v250, {WS}, 0 offen sc1" if j == 0 else
               f"buffer_load_dword v{248+j}, v251, {WS}, 0 offen sc1")

    def w2_touch_addr(self):
        self.a(f"""
        s_lshl_b32 s60, {sM}, 2
        s_add_u32 s60, s60, {sWV}
        s_mul_i32 s60, s60, {112*128}
        s_add_u32 s60, s60, {WS_W2P}
        v_lshl_add_u32 v250, v1, 7, s60
        v_add_u32 v5, 64, v1
        v_min_u32 v5, 111, v5
        v_lshl_add_u32 v251, v5, 7, s60
        """)

    def mod_addr(self):
        self.a(f"""
        s_lshr_b32 s60, s2, 4
        s_lshl_b32 s60, s60, 8
        s_add_u32 s60, s60, {WS_MOD + 3*4096}
        v_lshl_add_u32 v172, v2, 4, s60
        v_and_b32 v5, 1, v3
        v_lshl_add_u32 v172, v5, 12, v172
        s_movk_i32 s12, {MODP}
        s_mov_b32 s13, {2*MODP}
        s_mov_b32 s14, {3*MODP}
        """)

    def mod_load_list(self, r0):
        L = []
        for k, so in enumerate(("0", "s12", "s13", "s14")):
            L.append(f"buffer_load_dwordx4 {Q4(r0+4*k)}, v172, {WS}, {so} offen sc1")
        return L

    def g2_w2_addr(self, k0):
        self.a(f"""
        s_mul_i32 s79, s77, 56
        s_mul_i32 s61, {sWV}, 14
        s_add_u32 s79, s79, s61
        s_lshl_b32 s79, s79, 12
        s_add_u32 s79, s79, {WS_W2P}
        s_add_u32 s97, s79, {14*4096}
        s_lshl_b32 s18, s77, 1
        s_lshr_b32 s61, {sM}, 3
        s_mul_i32 s61, s61, 7
        s_lshr_b32 s61, s61, 1
        s_add_u32 s18, s18, s61
        s_mul_i32 s18, s18, {opt('rot2', 0)}
        s_cmp_ge_u32 s18, 14
        s_cselect_b32 s60, 14, 0
        s_sub_u32 s18, s18, s60
        s_lshl_b32 s18, s18, 12
        s_add_u32 s79, s79, s18
        v_lshlrev_b32 v9, 4, v1
        """)

    def g2_w2_one(self, i, v="v9"):
        self.a(f"buffer_load_dwordx4 a[{4*i}:{4*i+3}], {v}, {WS}, s79 offen offset:{1024*(i%4)} sc1")
        if i % 4 == 3:
            self.a(f"s_add_u32 s79, s79, 4096\ns_cmp_eq_u32 s79, s97\ns_cselect_b32 s60, {14*4096}, 0\ns_sub_u32 s79, s79, s60")

    def signal_all(self, base, replicas, tag):
        a = self.a
        a(f"""
        s_waitcnt vmcnt(0)
        s_barrier
        s_cmp_lg_u32 {sWV}, 0
        s_cbranch_scc1 L_sig{tag}_skip
        s_lshl_b32 s60, s2, {FL}
        s_add_u32 s60, s60, {base}
        """)
        self.flag_store("s60", replicas, 8 + FL)
        a(f"L_sig{tag}_skip:")

    def w_stream(self, r0, mod_wait):
        T = f"""
        v_lshrrev_b32 v14, 2, v1
        v_lshlrev_b32 v15, 5, v14
        v_and_b32 v12, 3, v1
        v_lshl_add_u32 v15, v12, 3, v15
        s_lshl_b32 s61, {sWV}, 11
        s_add_u32 s61, s61, {self.W1S}
        v_add_u32 v173, s61, v15
        v_and_b32 v10, 1, v3
        v_cvt_f32_u32 v11, v10
        v_xor_b32 v10, 1, v10
        v_lshlrev_b32 v10, 6, v10
        v_lshl_add_u32 v10, v2, 2, v10
        s_lshl_b32 s61, {sWV}, 7
        v_add_u32 v10, s61, v10
        v_lshl_add_u32 v14, v3, 3, s61
        v_and_b32 v15, 1, v1
        v_lshl_add_u32 v15, v15, 6, v14
        v_and_b32 v13, 1, v1
        v_lshlrev_b32 v13, 9, v13
        v_lshl_add_u32 v13, v3, 4, v13
        s_and_b32 s40, s2, 15
        s_lshl_b32 s40, s40, 4
        s_lshr_b32 s61, s2, 4
        s_add_u32 s40, s40, s61
        s_lshl_b32 s42, s40, 10
        s_lshl_b32 s61, {sWV}, 6
        s_add_u32 s42, s42, s61
        s_add_u32 s42, s42, {WS_UP}
        s_mul_i32 s40, s40, 7168
        s_lshl_b32 s61, {sWV}, 10
        s_add_u32 s40, s40, s61
        s_add_u32 s40, s40, {WS_W1P}
        s_add_u32 s41, s40, 4096
        s_cmp_eq_u32 {sWV}, 3 | s_cselect_b32 s41, 0x40000000, s41
        WAIT
        """
        L = [x.strip() for x in T.split("\n") if x.strip()]
        L += ["ds_read_b64_tr_b16 v[16:17], v173", "ds_read_b64_tr_b16 v[18:19], v173 offset:512",
              "ds_read_b64_tr_b16 v[20:21], v173 offset:1024", "ds_read_b64_tr_b16 v[22:23], v173 offset:1536", "VERIFY"]
        for e in (0, 2): L += [f"v_add_f32 v{r0+e}, v{r0+e}, v{r0+4+e}", f"v_add_f32 v{r0+8+e}, v{r0+8+e}, v{r0+12+e}"]
        for e in (0, 2): L.append(f"v_add_f32 v{r0+e}, v{r0+e}, v{r0+8+e}")
        L += [f"v_cvt_pk_bf16_f32 v{r0}, v{r0}, v{r0+2}",
              f"v_lshlrev_b32 v{r0+4}, 16, v{r0}", f"v_and_b32 v{r0+5}, 0xffff0000, v{r0}",
              f"v_add_f32 v{r0+4}, v11, v{r0+4}", f"v_add_f32 v{r0+5}, v11, v{r0+5}",
              f"v_cvt_pk_bf16_f32 v{r0}, v{r0+4}, v{r0+5}",
              f"ds_write_b32 v10, v{r0}",
              "ds_read_b64 v[24:25], v15", "ds_read_b64 v[26:27], v15 offset:32",
              "ds_read_b64 v[28:29], v14", "ds_read_b64 v[30:31], v14 offset:32", "GAP",
              "v_mfma_f32_16x16x32_bf16 v[164:167], v[16:19], v[24:27], 0",
              "v_mfma_f32_16x16x32_bf16 v[168:171], v[20:23], v[24:27], 0"]
        for e in range(4): L += [f"v_lshlrev_b32 v{r0+2*e}, 16, v{28+e}", f"v_and_b32 v{r0+2*e+1}, 0xffff0000, v{28+e}"]
        for f in range(2):
            for e in range(4):
                w = 16 + 4 * f + e
                t = r0 + 8 + 2 * (e % 2)
                L += [f"v_lshlrev_b32 v{t}, 16, v{w}", f"v_and_b32 v{t+1}, 0xffff0000, v{w}",
                      f"v_mul_f32 v{t}, v{t}, v{r0+2*e}", f"v_mul_f32 v{t+1}, v{t+1}, v{r0+2*e+1}",
                      f"v_cvt_pk_bf16_f32 v{w}, v{t}, v{t+1}"]
            L.append(f"buffer_store_dwordx4 {Q4(16+4*f)}, v9, {WS}, s{40+f} offen sc1")
        L.append(f"s_mov_b32 exec_lo, 0x00030003 | s_mov_b32 exec_hi, 0x00030003 | buffer_store_dwordx4 v[164:167], v13, {WS}, s42 offen sc1 | buffer_store_dwordx4 v[168:171], v13, {WS}, s42 offen offset:256 sc1 | s_mov_b64 exec, -1")
        return L

    UPS = 32768 + 114688
    def g1_addr(self):
        self.a(f"""
        s_lshl_b32 s64, s74, 2
        s_add_u32 s64, s64, {sWV}
        s_lshl_b32 s64, s64, 15
        s_add_u32 s64, s64, {WS_X1}
        s_lshl_b32 s65, s75, 4
        s_add_u32 s65, s65, {sWV}
        s_mul_i32 s65, s65, 7168
        s_add_u32 s65, s65, {WS_W1P}
        s_mul_i32 s66, {sWV}, 7168
        s_add_u32 s66, s66, {self.WB}
        s_lshl_b32 s67, s75, 2
        s_add_u32 s67, s67, {sWV}
        s_lshl_b32 s67, s67, 12
        s_add_u32 s67, s67, {WS_UP}
        s_mov_b32 s44, s64
        s_mul_i32 s45, s75, {16*7168}
        s_add_u32 s45, s45, {WS_W1P}
        v_lshlrev_b32 v8, 4, v1
        v_add_u32 v10, {self.WB}, v8
        v_add_u32 v11, 57344, v10
        v_lshlrev_b32 v248, 2, v0
        v_add_u32 v249, {self.UPS}, v248
        """)
        for r in range(12, 16): self.a(f"v_mov_b32 v{r}, 0x3f803f80")

    def silu_tile(self, ft, t, u1, u2, w, dst):
        a = self.a
        d, o = 192 + 8 * ft + 4 * t, 60 + 2 * t
        for h in range(2): a(f"v_pk_fma_f32 {P(w+2*h)}, {P(u1+2*h)}, {P(o)}, {P(u2+2*h)} op_sel:[0,1,0] op_sel_hi:[1,1,1]")
        for h in range(2): a(f"v_pk_fma_f32 {P(d+2*h)}, {P(d+2*h)}, {P(o)}, {P(w+2*h)} op_sel_hi:[1,0,1]")
        for r in range(4): a(f"v_exp_f32 v{w+r}, v{d+r}")
        for h in range(2): a(f"v_pk_fma_f32 {P(w+2*h)}, {P(w+2*h)}, {P(254)}, {P(254)} op_sel_hi:[1,0,0]")
        for r in range(4): a(f"v_rcp_f32 v{w+r}, v{w+r}")
        for h in range(2): a(f"v_pk_mul_f32 {P(d+2*h)}, {P(d+2*h)}, {P(w+2*h)}")
        for h in range(2): a(f"v_cvt_pk_bf16_f32 v{dst+h}, v{d+2*h}, v{d+2*h+1}")

    def pair_store(self, ft, t, c):
        a = self.a
        b = 192 + 8 * (ft - 1) + 4 * t
        a(f"buffer_store_dwordx4 {Q4(b)}, v8, {WS}, s44 offen offset:{1024*t} sc1")
        a(f"v_bitop3_b32 v{c}, v{c}, v{b}, v{b+1} bitop3:0x96\nv_bitop3_b32 v{c}, v{c}, v{b+2}, v{b+3} bitop3:0x96")

    def g1_run(self, side, nside, early=0, na=0):
        a = self.a
        ops = []
        def X(i):
            def f():
                a(f"buffer_load_dwordx4 {Q4(64+4*i)}, v8, {WS}, s64 offen offset:{i%4*1024} sc1")
                if i % 4 == 3: a("s_add_u32 s64, s64, 4096")
            return (("x", i), f)
        def W(gm, j):
            def f():
                if j % 4 == 0: a(f"s_add_u32 m0, s66, {gm*4*7168 + 1024*j}\ns_add_u32 s60, s65, {gm*4*7168 + 1024*j}")
                a(f"buffer_load_dwordx4 v8, {WS}, s60 offen offset:{1024*(j%4)} sc1 lds")
            return (("w", gm, j), f)
        def UPl(j):
            def f():
                if j == 0: a(f"s_lshl_b32 s60, {sWV}, 12\ns_add_u32 m0, s60, {self.UPS}")
                a(f"buffer_load_dwordx4 v8, {WS}, s67 offen offset:{1024*j} sc1 lds")
            return (("u", j), f)
        if early == "weights":
            for gm in range(4):
                for j in range(4): W(gm, j)[1]()
            for j in range(4): UPl(j)[1]()
            return
        if early:
            pre = opt('g1pre', 10)
            ops += [X(i) for i in range(pre)]
            rest = [X(i) for i in range(pre, 32)]
            sd = [(("s", i), side) for i in range(na)]
            while rest or sd:
                ops += rest[:2] + sd[:1]
                rest, sd = rest[2:], sd[1:]
        else:
            for gm in range(4):
                if gm == 2: ops += [UPl(j) for j in range(4)]
                ops += [W(gm, j) for j in range(4)]
                ops += [X(i) for i in range(8 * gm, 8 * gm + 8)]
        for gm in range(4): ops += [W(gm, j) for j in range(4, 7)]
        keys = [k for k, _ in ops]
        pos = [0]
        def issue(n=1):
            for _ in range(n):
                if pos[0] < len(ops): ops[pos[0]][1](); pos[0] += 1
        def wait(key):
            i = keys.index(key)
            while pos[0] <= i: issue()
            a(f"s_waitcnt vmcnt({pos[0] - 1 - i})")
        WBE = opt('wbe', 0)
        issue(opt('g1pre', 10 if early else 20))
        NR, D = 8, 7
        Wr = lambda n: 16 + 4 * (n % NR)
        def frag(n, k, ft):
            a(f"ds_read_b128 {Q4(Wr(n))}, {'v10' if k < 8 else 'v11'} offset:{(k % 8) * 7168 + 1024 * ft}")
        def rdA(n):
            if n < 64:
                k, ft = divmod(n, 4)
                if ft == 0 and k % 4 == 0 and not early:
                    wait(("w", k // 4, 3))
                    a("s_barrier")
                frag(n, k, ft)
        def rdB(n):
            if n < 48: frag(n, n // 3, 4 + n % 3)
        def swaps(k):
            x = 64 + 8 * k
            wait(("x", 2 * k + 1))
            a(f"v_swap_b32 v{x+2}, v{x+4}\nv_swap_b32 v{x+3}, v{x+5}")
        for n in range(D): rdA(n)
        swaps(0)
        tail = self.g1_tail_setup()
        EA, young = [opt('ea', 0)], [0]
        for k in range(16):
            x = 64 + 8 * k
            if k == 8: a.region("g1b")
            if k % 4 == 0: self.stamp("h")
            for ft in range(4):
                n = 4 * k + ft
                a(f"s_waitcnt lgkmcnt({min(D - 1, 63 - n)})")
                d = 192 + 8 * ft
                a(f"v_mfma_f32_16x16x32_bf16 {Q4(d)}, {Q4(Wr(n))}, {Q4(x)}, {'0' if k == 0 else Q4(d)}")
                if (ft == 0 if opt('pa', 1) else ft != 2) and pos[0] < len(ops) - WBE: issue()
                a(f"v_mfma_f32_16x16x32_bf16 {Q4(d+4)}, {Q4(Wr(n))}, {Q4(x+4)}, {'0' if k == 0 else Q4(d+4)}")
                if k == 9:
                    for j in range(4): a(f"ds_read_b32 v{224+4*ft+j}, v249 offset:{1024*(4*ft+j)}")
                if k == 12:
                    st = (8, 4, 2, 1)[ft]
                    for j in range(st): a(f"v_add_f32 v{224+j}, v{224+j}, v{224+j+st}")
                if k == 13 and ft == 0: a(f"v_mul_f32 v224, {NLOG2E}, v224\nds_write_b32 v248, v224 offset:{self.T_U}")
                rdA(n + D)
                if ft in (1, 2):
                    t = ft - 1
                    for j, A in ((0, "v[12:15]"), (1, Q4(x + 4 * t))):
                        d = 48 + 8 * t + 4 * j
                        a(f"v_mfma_f32_16x16x32_bf16 {Q4(d)}, {A}, {Q4(x+4*t)}, {'0' if k == 0 else Q4(d)}")
                        if opt('pa', 1) and j == 0 and pos[0] < len(ops) - WBE: issue()
                        if ft == 2 and j == 0 and k < 15: swaps(k + 1)
                        elif k >= 3 and k not in (9, 12):
                            for _ in range(2):
                                if tail: a(tail.pop(0))
        assert not tail
        self.stamp("h")
        a.region("g1c")
        if not WBE: wait(("w", 3, 6))
        a("s_waitcnt lgkmcnt(0)\ns_barrier")
        issue(opt('wbe0', 4) if WBE else 0)
        for ft in range(4):
            a(f"ds_read_b128 {Q4(16+8*ft)}, v4 offset:{self.T_U + 64*ft}\nds_read_b128 {Q4(20+8*ft)}, v4 offset:{self.T_U + 512 + 64*ft}")
        for t in range(2):
            g = 52 + 8 * t
            a(f"v_cndmask_b32 v{g}, v{g}, v{g+1}, s[20:21]\nv_cndmask_b32 v{g}, v{g}, v{g+2}, s[22:23]\nv_cndmask_b32 v{g}, v{g}, v{g+3}, s[40:41]")
            a(f"ds_bpermute_b32 v{g}, v5, v{g}")
        for t in range(2):
            sm = 48 + 8 * t
            a(f"v_mul_f32 v{sm}, 0x3b000000, v{sm}\nv_mul_f32 v{sm+1}, v{sm}, v{sm}\nv_mov_b32 v{sm+2}, 0x3b000000")
        a("s_waitcnt lgkmcnt(0)")
        for t in range(2):
            sm, g = 48 + 8 * t, 52 + 8 * t
            a(f"v_fma_f32 v{g}, v{g}, v{sm+2}, -v{sm+1}\nv_max_f32 v{g}, 0, v{g}\nv_add_f32 v{g}, 0x3727c5ac, v{g}\nv_rsq_f32 v{sm+3}, v{g}")
        for t in range(2):
            sm, o = 48 + 8 * t, 60 + 2 * t
            a(f"v_mul_f32 v{o+1}, -v{sm}, v{sm+3}\nv_mul_f32 v{o}, v254, v{sm+3}")
        for ft in range(4):
            for t in range(2):
                self.silu_tile(ft, t, 16 + 8 * ft, 20 + 8 * ft, 224 + 4 * t, 192 + 8 * (ft & ~1) + 4 * t + 2 * (ft & 1))
                if WBE and pos[0] < len(ops): issue(4)
                elif EA[0] > 0: side(); EA[0] -= 1; young[0] += 1
                if ft & 1: self.pair_store(ft, t, 252); young[0] += 1
            if ft & 1: a("s_add_u32 s44, s44, 4096")
            if ft == 2 and not WBE:
                for n in range(6): rdB(n)
        assert pos[0] == len(ops)
        a(f"buffer_store_dword v252, v6, {WS}, s46 offen sc1")
        if WBE:
            a(f"s_waitcnt vmcnt({young[0] + 1})\ns_barrier")
            for n in range(6): rdB(n)
        rdB(6)
        self.stamp("h")
        a.region("g1d")
        for k in range(16):
            x = 64 + 8 * k
            for j in range(3):
                n = 3 * k + j
                a(f"s_waitcnt lgkmcnt({min(D - 1, 47 - n)})")
                d = 224 + 8 * j
                a(f"v_mfma_f32_16x16x32_bf16 {Q4(d)}, {Q4(Wr(n))}, {Q4(x)}, {'0' if k == 0 else Q4(d)}")
                if k == 14: a(f"ds_read_b128 {Q4(64+8*j)}, v4 offset:{self.T_U + 64*(4+j)}")
                if n == opt('ht', -1): self.h_touch(0)
                if n % 2 == 0 and nside > 0: side(); nside -= 1
                elif nside == 0 and k >= opt('hk', 8) and self.g2_todo and (n % 2 == 0 or not opt('pb4', 0)):
                    if not self.g2_log: self.g2_run()
                    lim = {8: 6, 9: 6, 10: 10, 11: 10}.get(k, 16 if k < 12 else 99) if False else (6 if k < 8 else 10 if k < 10 else 16 if k < 12 else 99)
                    if len(self.g2_log) < lim:
                        a(self.g2_todo.pop(0)); self.g2_log.append("l")
                a(f"v_mfma_f32_16x16x32_bf16 {Q4(d+4)}, {Q4(Wr(n))}, {Q4(x+4)}, {'0' if k == 0 else Q4(d+4)}")
                if k == 14: a(f"ds_read_b128 {Q4(68+8*j)}, v4 offset:{self.T_U + 512 + 64*(4+j)}")
                rdB(n + D)

    def g1_tail_setup(self):
        T = f"""
        v_lshlrev_b32 v4, 4, v3
        v_lshrrev_b32 v5, 2, v2
        v_lshl_add_u32 v5, v5, 4, v2
        v_lshlrev_b32 v5, 2, v5
        v_and_b32 v6, 3, v1
        v_cmp_eq_u32 s[20:21], 1, v6
        v_cmp_eq_u32 s[22:23], 2, v6
        v_cmp_eq_u32 s[40:41], 3, v6
        s_lshl_b32 s44, s74, 1
        s_lshr_b32 s61, {sWV}, 1
        s_add_u32 s44, s44, s61
        s_lshl_b32 s46, s44, 4
        s_add_u32 s46, s46, s75
        s_lshr_b32 s47, s46, 1
        s_and_b32 s62, {sWV}, 1
        s_lshl_b32 s46, s46, 1
        s_add_u32 s46, s46, s62
        s_lshl_b32 s46, s46, 9
        s_add_u32 s46, s46, {WS_HC}
        s_lshl_b32 s47, s47, 1
        s_add_u32 s47, s47, s62
        s_lshl_b32 s47, s47, 9
        s_and_b32 s63, s75, 1
        s_lshl_b32 s61, s63, 8
        s_add_u32 s47, s47, s61
        s_add_u32 s47, s47, {WS_HM}
        s_mul_i32 s44, s44, 56
        s_lshr_b32 s61, s75, 1
        s_mul_i32 s61, s61, 7
        s_add_u32 s44, s44, s61
        s_lshl_b32 s44, s44, 12
        s_lshl_b32 s61, s62, 11
        s_add_u32 s44, s44, s61
        s_add_u32 s44, s44, {WS_H}
        s_lshl_b32 s61, s63, 9
        s_add_u32 s45, s44, s61
        s_add_u32 s45, s45, {6*4096}
        s_mul_i32 s61, s63, {3*4096}
        s_add_u32 s44, s44, s61
        v_and_b32 v6, 1, v3
        v_lshlrev_b32 v7, 10, v6
        v_lshl_add_u32 v7, v2, 4, v7
        v_lshrrev_b32 v250, 1, v3
        v_lshl_add_u32 v7, v250, 8, v7
        v_lshlrev_b32 v250, 7, v250
        v_lshl_add_u32 v250, v2, 3, v250
        v_lshl_add_u32 v250, v6, 2, v250
        s_lshl_b32 s61, s62, 4
        s_add_u32 s61, s61, 3
        s_add_u32 s63, s62, 5
        v_mul_u32_u24 v6, s63, v6
        v_add_u32 v6, s61, v6
        v_alignbit_b32 v251, s80, s80, v6
        s_mul_i32 s61, s62, 13
        v_mov_b32 v6, s61
        v_alignbit_b32 v252, s80, s80, v6
        v_mov_b32 v253, v252
        v_mov_b32 v254, {NLOG2E}
        v_lshlrev_b32 v6, 2, v1
        """
        return [x.strip() for x in T.split("\n") if x.strip()]

    def g1_epilogue(self, tb):
        a = self.a
        early = self.g2_todo
        def ld(n):
            for _ in range(n):
                if early: a(early.pop(0)); self.g2_log.append("l")
        ld(opt('g2b0', 6))
        a("s_waitcnt lgkmcnt(0)\nv_mov_b32 v184, v249")
        for ft in (6, 4, 5):
            if ft == 4: a.region("g1e1")
            u = 64 + 8 * (ft - 4)
            for t in range(2):
                self.silu_tile(ft, t, u, u + 4, 32 + 4 * t, 40 + 2 * t if ft == 6 else 224 + 4 * t + 2 * (ft & 1))
                ld(3)
                if ft == 5: self.pair_store(ft, t, 253); self.g2_log.append("s")
            if ft == 6:
                a("v_permlane16_swap_b32 v40, v42\nv_permlane16_swap_b32 v41, v43")
                a(f"buffer_store_dwordx4 v[40:43], v7, {WS}, s45 offen sc1")
                a("v_bitop3_b32 v251, v251, v40, v41 bitop3:0x96\nv_bitop3_b32 v251, v251, v42, v43 bitop3:0x96")
                a(f"buffer_store_dword v251, v250, {WS}, s47 offen sc1")
                self.g2_log += ["s", "s"]
        a(f"buffer_store_dword v253, v6, {WS}, s46 offen offset:256 sc1")
        self.g2_log.append("s")
        ld(99)

    def g2_run(self):
        a = self.a
        a(f"""
        s_mul_i32 s78, s76, 56
        s_mul_i32 s61, {sWV}, 14
        s_add_u32 s78, s78, s61
        s_lshl_b32 s78, s78, 12
        s_add_u32 s78, s78, {WS_H}
        s_lshl_b32 s16, s76, 2
        s_add_u32 s16, s16, {sWV}
        s_lshl_b32 s15, s16, 11
        s_add_u32 s15, s15, {WS_HM}
        s_lshl_b32 s16, s16, 12
        s_add_u32 s16, s16, {WS_HC}
        s_mov_b32 s60, s80
        s_mov_b32 s61, s80
        s_lshr_b64 s[62:63], s[60:61], 13
        s_xor_b32 s20, s80, s62
        s_lshr_b64 s[62:63], s[60:61], 3
        s_mov_b32 s21, s62
        s_lshr_b64 s[62:63], s[60:61], 8
        s_xor_b32 s21, s21, s62
        s_lshr_b64 s[62:63], s[60:61], 19
        s_xor_b32 s21, s21, s62
        s_lshr_b64 s[62:63], s[60:61], 25
        s_xor_b32 s21, s21, s62
        s_lshl_b32 s60, {sWV}, 10
        v_add_u32 v12, s60, v8
        v_add_u32 v13, 1024, v12
        v_add_u32 v14, 2048, v12
        v_add_u32 v15, 3072, v12
        v_and_b32 v13, 4095, v13
        v_and_b32 v14, 4095, v14
        v_and_b32 v15, 4095, v15
        v_lshlrev_b32 v9, 3, v1
        s_mov_b32 s19, 0
        """)

    def h_touch(self, late):
        a = self.a
        if not late:
            a(f"""
            s_mul_i32 s17, s76, 56
            s_mul_i32 s61, {sWV}, 14
            s_add_u32 s17, s17, s61
            s_lshl_b32 s17, s17, 12
            s_lshl_b32 s61, s77, 9
            s_add_u32 s17, s17, s61
            s_add_u32 s17, s17, {WS_H}
            v_bfe_u32 v248, v1, 2, 3
            v_lshlrev_b32 v248, 2, v248
            s_mov_b32 s61, 0xba874310
            v_lshrrev_b32 v248, v248, s61
            v_and_b32 v248, 15, v248
            v_lshlrev_b32 v248, 12, v248
            v_and_b32 v249, 3, v1
            v_lshl_add_u32 v248, v249, 7, v248
            buffer_load_dword v255, v248, {WS}, s17 offen sc1
            v_bfe_u32 v248, v1, 2, 3
            v_lshlrev_b32 v248, 2, v248
            s_mov_b32 s61, 0xdddc9652
            v_lshrrev_b32 v248, v248, s61
            v_and_b32 v248, 15, v248
            v_lshlrev_b32 v248, 12, v248
            v_lshl_add_u32 v249, v249, 7, v248
            """)
        else:
            a(f"buffer_load_dword v7, v184, {WS}, s17 offen sc1")

    def g2_plan(self):
        HR = 8
        k0 = lambda cb: 7 * (cb // 2) + 3 * (cb % 2)
        groups = [("a", cb, [k0(cb), k0(cb) + 1]) for cb in range(4)]
        groups += [("b", 0, [2]), ("b", 1, [5]), ("m", 0, [6]), ("b", 2, [9]), ("b", 3, [12]), ("m", 1, [13])]
        order = [k for g in groups for k in g[2]]
        slot = {k: 32 + 16 * ((p + 4) % HR) for p, k in enumerate(order)}
        loads, chk, c = [], [], 88
        for kind, i, ks in groups:
            if kind == "a" and i == 2: c = 160
            p0 = order.index(ks[0])
            if kind == "m":
                chk.append([c, c + 1, c + 2, c + 3])
                for h in range(2):
                    loads.append((p0, None, f"buffer_load_dwordx2 {P(c+2*h)}, v9, {WS}, s15 offen offset:{1024*i + 512*h} sc1"))
                c += 4
            else:
                chk.append([c, c + 1])
                for h in range(2):
                    loads.append((p0, None, f"buffer_load_dword v{c+h}, v6, {WS}, s16 offen offset:{1024*i + 512*h + (256 if kind == 'b' else 0)} sc1"))
                c += 2
            for k in ks:
                for st in range(4):
                    pre = f"s_add_u32 s18, s78, {4096*k}\n" if st == 0 else ""
                    loads.append((order.index(k), (k, st), pre + f"buffer_load_dwordx4 {Q4(slot[k]+4*st)}, v{12+st}, {WS}, s18 offen sc1"))
        self.g2p = (HR, groups, order, slot, loads, chk)
        self.g2_early = [l[2] for l in loads[:opt('g2pre', 20)]]
        self.g2_log = []
        self.g2_todo = list(self.g2_early)

    def g2_body(self):
        a = self.a
        HR, groups, order, slot, loads, chk = self.g2p
        npre = len(self.g2_early)
        merged, it = [], iter(loads[:npre])
        for t in self.g2_log: merged.append(next(it) if t == "l" else (0, None, None))
        loads = merged + loads[npre:]
        nissued = len(merged)
        if opt('ht2', -1) >= 0:
            at = max(nissued, min(i for i, l in enumerate(loads) if l[0] >= opt('ht2', -1) and l[2]))
            loads.insert(at, (loads[at][0], None, f"buffer_load_dword v7, v184, {WS}, s17 offen sc1"))
        keys = [l[1] for l in loads]
        pos = [nissued]
        def issue(maxp):
            if pos[0] < len(loads) and loads[pos[0]][0] <= maxp:
                a(loads[pos[0]][2]); pos[0] += 1
        def wait(key):
            i = keys.index(key)
            while pos[0] <= i: issue(99)
            a(f"s_waitcnt vmcnt({pos[0] - 1 - i})")
        def vsteps(gi):
            x, out = 4 + gi % 2, []
            for j, k in enumerate(groups[gi][2]):
                regs = (list(chk[gi]) if j == 0 else [x]) + [slot[k] + i for i in range(16)]
                L = [("w", (k, 3)), f"v_bitop3_b32 v{x}, v{regs[0]}, v{regs[1]}, v{regs[2]} bitop3:0x96"]
                rest = regs[3:]
                while len(rest) >= 2: L.append(f"v_bitop3_b32 v{x}, v{x}, v{rest.pop(0)}, v{rest.pop(0)} bitop3:0x96")
                if rest: L.append(f"v_xor_b32 v{x}, v{x}, v{rest.pop(0)}")
                out.append(L)
            out[-1].append(f"v_cmp_ne_u32 vcc, {'s21' if groups[gi][0] == 'm' else 's20'}, v{x}\ns_cbranch_vccnz L_g2_retry")
            return out
        def run(t):
            if isinstance(t, tuple): wait(t[1])
            else: a(t)
        tail = self.g2_tail_setup()
        if opt('force', 0): a(f"s_xor_b32 s{19 + opt('force', 0)}, s{19 + opt('force', 0)}, 1")
        a("L_g2_go:")
        a.fence()
        a(f"s_waitcnt vmcnt({nissued - 1 - max(i for i, t in enumerate(self.g2_log) if t == 'e')})")
        self.g2_epi_pre(0)
        for L in vsteps(0):
            for t in L: run(t)
        for gi, (kind, _, ks) in enumerate(groups):
            nxt = vsteps(gi + 1) if gi + 1 < len(groups) else []
            nxt = [[] for _ in range(len(ks) - len(nxt))] + nxt
            for j, k in enumerate(ks):
                p = order.index(k)
                if p in (5, 10): a.region("g2" + "abc"[p // 5])
                self.stamp("g")
                cur = nxt[j]
                last = p == 13
                wr = lambda st: [f"ds_write_b128 v{127+st}, {Q4(192+16*st+4*dt)} offset:{1024*dt}" for dt in range(4)]
                for si, st in enumerate((1, 2, 3, 0) if last else range(4)):
                    pend = wr(si - 1) if last and si >= 2 else []
                    for dt in range(4):
                        d = 192 + 16 * st + 4 * dt
                        a(f"v_mfma_f32_16x16x32_bf16 {Q4(d)}, a[{16*k+4*dt}:{16*k+4*dt+3}], {Q4(slot[k]+4*st)}, {'0' if p == 0 else Q4(d)}")
                        i = 4 * si + dt
                        if i in {4: (0, 4, 8, 12), 5: (0, 3, 6, 10, 13), 6: (0, 3, 6, 9, 12, 15)}[opt('g2n', 5)]: issue(p + HR - 1)
                        if pend: a(pend.pop(0))
                        if i >= 9:
                            for _ in range(2):
                                if cur: run(cur.pop(0))
                        elif p >= 12:
                            for _ in range(3):
                                if tail: a(tail.pop(0))
                if last:
                    assert not tail
                    for t in wr(3): a(t)
                assert not cur
        assert pos[0] == len(loads)

    def g2_tail_setup(self):
        rb = self.WB
        L = []
        for j in range(1, 4):
            L += [f"s_add_u32 s60, {sWV}, {j} | s_and_b32 s60, s60, 3 | s_mul_i32 s60, s60, 12288 | s_add_u32 s60, s60, {rb + 4096*(j-1)} | v_lshl_add_u32 v{127+j}, v1, 4, s60"]
        L += [f"s_mul_i32 s60, {sWV}, 12288 | s_add_u32 s60, s60, {rb} | v_lshl_add_u32 v131, v1, 4, s60",
              "v_lshlrev_b32 v132, 10, v2", "v_lshl_add_u32 v132, v3, 4, v132",
              f"s_lshl_b32 s22, s76, 16 | s_lshl_b32 s61, {sWV}, 14 | s_add_u32 s22, s22, s61 | s_lshl_b32 s61, s77, 7 | s_add_u32 s22, s22, s61"]
        L += [f"v_accvgpr_read_b32 v{96+i}, a{224+i}" for i in range(16)]
        for dt in range(4):
            x = 20 + 2 * dt
            L += [f"v_lshlrev_b32 v{112+4*dt}, 16, v{x}", f"v_and_b32 v{113+4*dt}, 0xffff0000, v{x}",
                  f"v_lshlrev_b32 v{114+4*dt}, 16, v{x+1}", f"v_and_b32 v{115+4*dt}, 0xffff0000, v{x+1}"]
        return [t.replace(" | ", "\n") for t in L]

    def g2_epilogue(self, rb, tb):
        a = self.a
        a("s_waitcnt lgkmcnt(0)\ns_barrier")
        for dt in range(4):
            for src in range(3):
                a(f"ds_read_b128 {Q4(136 + 12*dt + 4*src)}, v131 offset:{4096*src + 1024*dt}")
        for dt in range(4):
            r, o = 136 + 12 * dt, 192 + 4 * dt
            a(f"s_waitcnt lgkmcnt({9 - 3*dt})")
            for h in range(2): a(f"v_pk_add_f32 {P(r+2*h)}, {P(r+2*h)}, {P(r+4+2*h)}\nv_pk_add_f32 {P(o+2*h)}, {P(o+2*h)}, {P(r+8+2*h)}")
            for h in range(2): a(f"v_pk_add_f32 {P(r+2*h)}, {P(r+2*h)}, {P(o+2*h)}")
            for h in range(2): a(f"v_pk_fma_f32 {P(r+2*h)}, {P(r+2*h)}, {P(96+4*dt+2*h)}, {P(112+4*dt+2*h)}")
            for h in range(2): a(f"v_cvt_pk_bf16_f32 v{80+2*dt+h}, v{r+2*h}, v{r+2*h+1}")
            if dt % 2 == 1:
                a(f"buffer_store_dwordx4 {Q4(80+2*(dt-1))}, v132, {OUT}, s22 offen offset:{32*(dt-1)}{self.OUTM}")

    def g2_retry(self):
        self.a(f"""
        L_g2_retry:
        s_waitcnt vmcnt(0)
        s_add_u32 s19, s19, 1
        s_cmp_gt_u32 s19, {SPIN}
        s_cbranch_scc1 L_g2_giveup
        s_sleep {opt('g2sleep', 2)}
        """)
        if opt('force', 0): self.a(f"s_cmp_eq_u32 s19, 2\ns_cselect_b32 s60, 1, 0\ns_xor_b32 s{19 + opt('force', 0)}, s{19 + opt('force', 0)}, s60")
        for t in self.g2_early: self.a(t)
        self.a("s_waitcnt vmcnt(0)\ns_branch L_g2_go")

def build_fused2(diag=False):
    g = G2(sc=True, diag=diag)
    a = g.a
    S = g.stamp
    kn = NAME + "_kernel"
    hdr = ["; @launch grid=(256,1,1) block=(256,1,1) lds=163840"]
    a.raw('.amdgcn_target "amdgcn-amd-amdhsa--gfx950"\n.text')
    g.entry(kn, list(range(13)), pre=g.code_prefetch if opt('cpf', 1) else None)
    a(f"v_mov_b32 v4, {WS_TAG}\nbuffer_load_dwordx2 v[254:255], v4, {WS}, 0 offen sc1")
    a(f"s_cmp_ge_u32 {sWV}, 2\ns_cbranch_scc1 L_role_b")
    n0 = g.nst
    g.role_a()
    if HINT: g.flag_a()
    QP = opt('qp', 2)
    if QP == 0: g.q_rows()
    a(f"s_waitcnt vmcnt({(9 if HINT else 4) + (8 if QP == 0 else 0)})\ns_branch L_join1\nL_role_b:")
    a.fence()
    g.nst = n0
    a.region("end")
    a(f"s_sub_u32 s6, {sWV}, 2")
    if opt('tlb', 1):
        a(f"""
        v_min_u32 v4, 14, v1
        v_lshlrev_b32 v4, 21, v4
        v_add_u32 v4, {2*MB - 128}, v4
        buffer_load_dword v252, v4, {WS}, 0 offen
        v_mov_b32 v4, 0
        buffer_load_dword v251, v4, {OUT}, 0 offen
        buffer_load_dword v250, v4, {W1}, 0 offen
        buffer_load_dword v249, v4, {W2}, 0 offen
        """)
    BF = opt('bf', 0)
    if BF:
        g.c_ids()
        g.filter_load()
        g.role_b_loads_gemv()
        g.role_b_loads2()
        g.g1_ids(); g.g2_ids()
        g.warm((2, ["brest0", "g1a"]), (3, ["brest1", "cepi", "prep1", "g1b"])); S()
        a("s_waitcnt vmcnt(13)"); S(); S()
    else:
        g.role_b_loads_gemv()
        g.role_b_loads2()
        g.c_ids(); g.g1_ids(); g.g2_ids()
        if opt('warm', 1) == 1: g.warm((2, ["brest0", "g1a"]), (3, ["brest1", "cepi", "prep1", "g1b"]))
        if opt('warm', 1) == 3: g.warm((2, ["brest0"]), (3, ["brest1"]))
        S()
        a("v_and_b32 v2, 15, v1\nv_lshrrev_b32 v3, 4, v1")
        a.region("brest0")
        g.n_after = 8 if W2L else 12
        def after():
            g.filter_load()
            if not W2L: g.w2_unit_load()
        g.role_b_rest(0, after_wait=after); S()
        a(f"s_waitcnt vmcnt({2 if W2L else 6})"); S()
    a("L_join1:")
    a.fence()
    a.region("fprep")
    g.filter_copies(); S()
    def mid():
        if HINT: return
        a(f"s_cmp_ge_u32 {sWV}, 2\ns_cbranch_scc1 L_mid_b\ns_waitcnt vmcnt({8 if QP == 0 else 0})")
        g.flag_a()
        if BF and not W2L:
            a("s_branch L_mid_done\nL_mid_b:")
            a("v_mov_b32 v250, v5")
            g.w2_unit_load()
            a("v_mov_b32 v5, v250\nL_mid_done:")
            return
        if QP == 1:
            a("v_mov_b32 v250, v5")
            g.q_rows()
            a("v_mov_b32 v5, v250")
        a("L_mid_b:")
    g.filter_prep(mid); S()
    a.region("ufetch")
    st = dict()
    a(f"s_cmp_ge_u32 {sWV}, 2\ns_cbranch_scc1 L_role_b2")
    if opt('q1', 0):
        a(f"s_cmp_eq_u32 {sWV}, 0\ns_cbranch_scc1 L_join2")
        g.q_rows("0"); g.q_rows("1")
    else:
        g.q_rows()
    a("s_branch L_join2\nL_role_b2:")
    a.fence()
    if BF:
        a.region("brest0")
        g.n_after = 0 if W2L else 4
        g.role_b_rest(0 if W2L else 4)
    if not W2L: g.w2_unit_pack(2)
    if opt('fm', 1) < 0: g.flag_m(0)
    a("L_join2:")
    a.region("addr")
    a.fence()
    g.u_addr()
    g.pre_conv()
    if opt('warm', 1) >= 2: g.warm((1, ["conv0", "cepi"]), (2, ["conv1", "prep1"]), (3, ["g1a", "g1b"]))
    g.u_wait()
    S(); S("c")
    a("s_waitcnt lgkmcnt(0)\ns_barrier")
    g.u_fetch(); S()
    w2 = dict(n=0)
    def side():
        g.g2_w2_one(w2['n']); w2['n'] += 1
    a.region("conv0")
    log = []
    younger = lambda tag: len(log) - 1 - max(i for i, t in enumerate(log) if t == tag)
    modl = g.mod_load_list(32)
    wl = g.w_stream(32, 0)
    st.update(hold=0, w=wl[wl.index("WAIT"):], q=[('m', t) for t in modl] + [('e', t) for t in g.epi_load_list()])
    Q0 = opt('q0', 2)
    def hook(n):
        if n == 40: a.region("conv1")
        if n in (0, 8, 16, 24, 32, 40, 50, 60, 70, 79): S("c")
        if n >= Q0 and n % 2 == 0 and st['q']:
            tg, t = st['q'].pop(0)
            log.append(tg); a(t)
        for _ in range(opt('wr', 2)):
            if not st['w'] or st['hold'] > n: break
            t = st['w'][0]
            if t == "WAIT":
                if n < Q0 + opt('ww', 26): break
                a(f"s_waitcnt vmcnt({younger('m')})")
            elif t == "VERIFY":
                g.verify("w", [33 + 2*i for i in range(8)], 24, modl)
            elif t == "GAP":
                assert n <= 64
                st['hold'] = n + 8
            else:
                a(t.replace(" | ", "\n")); log.extend('s' * t.count("buffer_store"))
            st['w'].pop(0)
        if W2L:
            U0, U1, U2 = opt('u0', 1), opt('u1', 33), opt('u2', 67)
            if n in (U0, U0 + 2):
                a(f"s_add_u32 m0, s44, {512*(n-U0)}\nbuffer_load_dwordx4 v169, {W2}, {'s23' if n == U0 else 's22'} offen{g.NT} lds"); log.append('u')
            if n == U1:
                a(f"s_waitcnt vmcnt({younger('u')})")
                a("ds_read_b64_tr_b16 v[128:129], v174\nds_read_b64_tr_b16 v[130:131], v175\nds_read_b64_tr_b16 v[132:133], v174 offset:8\nds_read_b64_tr_b16 v[134:135], v175 offset:8")
            if n in (U1 + 8, U1 + 10):
                j = (n - U1 - 8) // 2
                a(f"buffer_store_dwordx4 {Q4(128+4*j)}, v9, {WS}, s45 offen offset:{1024*j} sc1"); log.append('p')
            if n == U2:
                a(f"s_waitcnt vmcnt({younger('p')})")
                g.flag_store("s46", 1, 3, 136); log.append('s')
        if n == opt('fm', 1) and not W2L:
            a(f"s_cmp_lt_u32 {sWV}, 2\ns_cbranch_scc1 L_skip_m")
            g.flag_m(len(log) + 8)
            a("L_skip_m:")
        WM = opt('wm', 40)
        if W2L: WM = 999
        if n == max(0, WM - 14):
            a(f"buffer_load_dwordx2 v[252:253], v248, {WS}, 0 offen sc1"); log.append('f')
        if n == WM: g.poll("M", first_issued=True, va="v248", vd=252, later=younger('f'))
        if n >= WM and n % 2 == 1 and w2['n'] < opt('w2conv', 18):
            side(); log.append('w')
    g.conv_main(hook); S()
    assert not st['q']
    a.region("cepi")
    print("w_stream left after conv:", len(st['w']), file=sys.stderr)
    for t in st['w']:
        assert t not in ("WAIT", "GAP", "VERIFY")
        a(t.replace(" | ", "\n")); log.extend('s' * t.count("buffer_store"))
    a(f"s_waitcnt vmcnt({younger('e')})"); S("c")
    g.conv_epilogue(); S("c")
    if W2L: a(f"buffer_load_dwordx2 v[252:253], v248, {WS}, 0 offen sc1")
    a.region("prep1")
    EARLY = opt('early', 0)
    if EARLY:
        a(f"""
        s_and_b32 s60, s2, 15
        s_lshl_b32 s60, s60, 4
        s_lshr_b32 s61, s2, 4
        s_add_u32 s60, s60, s61
        s_lshl_b32 s60, s60, 2
        s_add_u32 s60, s60, {sWV}
        s_lshl_b32 s60, s60, {FL}
        s_add_u32 s60, s60, {FLAG_W}
        s_and_b32 s61, s2, 8
        s_lshl_b32 s61, s61, {7 + FL}
        s_add_u32 s60, s60, s61
        s_waitcnt vmcnt(2)
        """)
        g.flag_store("s60", 4, 11 + FL, 4)
    g.signal_all(FLAG_2, 8, 2); S()
    if W2L: g.poll("M", va="v248", vd=252, first_issued=True, later=1)
    g.g1_addr()
    if EARLY:
        a(f"""
        s_lshl_b32 s60, {sX}, 4
        s_add_u32 s60, s60, s75
        s_lshl_b32 s60, s60, {6 + FL}
        s_add_u32 s60, s60, {FLAG_W}
        v_lshl_add_u32 v4, v1, {FL}, s60
        """)
        a(f"buffer_load_dwordx2 v[6:7], v4, {WS}, 0 offen sc1")
        n0 = w2['n']
        while w2['n'] < 56 - opt('w2b', 12) - opt('w2a', 14): side()
        g.poll("W", first_issued=True, later=w2['n'] - n0)
        g.g1_run(None, 0, early="weights")
    else:
        while w2['n'] < 56 - opt('w2e3', 0) - opt('w2b', 12) - opt('ea', 0): side()
    g.warm((0, ["g1c"]), (1, ["g1d"]), (2, ["g1e0", "g2a", "g2b"]), (3, ["g1e1", "g2c", "g2e"])); S()
    a(f"""
    s_lshl_b32 s60, {sX}, {8 + FL}
    s_add_u32 s60, s60, {FLAG_2}
    v_lshl_add_u32 v4, v0, {FL}, s60
    """)
    a.region("g1a")
    g.poll("2")
    a("s_barrier"); S(); S("h")
    g.g2_plan()
    g.g1_run(side, opt('w2b', 12), EARLY, opt('w2a', 14))
    S()
    S("h")
    a.region("g1e0")
    assert w2['n'] == 56
    if not g.g2_log: g.g2_run()
    g.g2_epi_load()
    g.g2_log += ["e"] * 8
    g.g1_epilogue(G2.T_U - 4096)
    S("h")
    a("s_barrier"); S()
    a.region("g2a")
    S(); S("g"); S("h")
    g.g2_body(); S(); S("h")
    a("L_g2_giveup:")
    if diag and opt('cnt', 0):
        a(f"s_lshl_b32 s60, s2, 2\ns_add_u32 s60, s60, {sWV}\ns_lshl_b32 s60, s60, 7\ns_add_u32 s60, s60, {WS_DIAG + 124}\nv_mov_b32 v4, s60\nv_mov_b32 v5, s19\nbuffer_store_dword v5, v4, {WS}, 0 offen")
    a.region("g2e")
    g.g2_epilogue(G2.WB, 0)
    a.region("end")
    g.tag_update()
    g.exit(kn)
    g.g2_retry()
    a("L_warm_ret:\ns_setpc_b64 s[98:99]")
    a.raw('.section .rodata,"a"')
    a.raw(desc(kn, 512, 256))
    txt, size = add_pads(a.text(), opt('pad', 256))
    print("code bytes", size, file=sys.stderr)
    return "\n".join(hdr) + "\n" + txt

if __name__ == "__main__":
    diag = sys.argv[2] if len(sys.argv) > 2 else False
    open(sys.argv[1], "w").write(build_fused2(diag))
```

```python
import sys, os
OPT = dict(kv.split('=') for kv in os.environ.get('OPT', '').split(',') if kv)
opt = lambda k, d: int(OPT.get(k, d))
from asmlib import Asm, desc, add_pads
from gen import *

WS_W1P, WS_UP = 21 * MB, 23 * MB
WS_HC, WS_HM, WS_TAG = 26 * MB, 27 * MB, 28 * MB
MODP = 3072 * 8
FLAG_A, FLAG_B, FLAG_2, FLAG_3 = WS_FLAG, WS_FLAG + MB, WS_FLAG + 2 * MB, WS_FLAG + 3 * MB
FLAG_W = 25 * MB
HINT = opt('hint', 0)
W2L = opt('w2late', 0)
FL = opt('fl', 7)
P = lambda r: f"v[{r}:{r+1}]"
Q4 = lambda r: f"v[{r}:{r+3}]"

class G2(G):
    NT = " nt" if opt('nt', 1) else ""
    OUTM = ["", " sc1", " nt", " sc0 sc1"][opt('outm', 0)]
    NTF = " nt" if opt('ntf', 1) else ""
    NTQ = " nt" if opt('ntq', 0) else ""
    NTW1 = " nt" if opt('ntw1', 0) else ""
    FB, FSZ, WB = 1536, 7584, 32768
    XI, XI_RS = 1536, 7616
    T_GB, T_U, T_UP = 1536 + 2560, 1536 + 4608, 1536 + 7584 + 2560

    def code_prefetch(self):
        self.a("""
        s_getpc_b64 s[60:61]
        L_pc:
        v_lshlrev_b32 v4, 7, v0
        v_min_u32 v4, L_warm_ret-L_pc, v4
        v_mov_b32 v5, s61
        v_add_co_u32 v4, vcc, s60, v4
        v_addc_co_u32 v5, vcc, 0, v5, vcc
        global_load_dword v253, v[4:5], off
        """)

    def warm(self, *plans):
        if not opt('warm', 1): return
        a = self.a
        self.nwarm = getattr(self, 'nwarm', 0) + 1
        a("s_mov_b64 exec, 0")
        for w, regs in plans:
            lab = f"L_w{self.nwarm}_{w}"
            a(f"s_cmp_lg_u32 {sWV}, {w}\ns_cbranch_scc1 {lab}")
            for r in regs: a(f"s_call_b64 s[98:99], L_reg_{r}")
            a(f"{lab}:")
        a("s_mov_b64 exec, -1")

    def tag_ready(self):
        self.a("v_readfirstlane_b32 s80, v254\nv_readfirstlane_b32 s81, v255\ns_add_u32 s80, s80, 0x9e3779b9\ns_add_u32 s81, s81, 0x7f4a7c15")

    def tag_update(self):
        self.a(f"""
        s_or_b32 s60, s2, {sWV}
        s_cmp_lg_u32 s60, 0
        s_cbranch_scc1 L_tag_done
        v_mov_b32 v4, {WS_TAG}
        v_mov_b32 v6, s80
        v_mov_b32 v7, s81
        s_mov_b64 exec, 1
        buffer_store_dwordx2 v[6:7], v4, {WS}, 0 offen
        L_tag_done:
        """)

    def nonce_issue(self, b):
        self.a(f"v_mov_b32 v{b+2}, 0\nbuffer_load_dwordx2 v[{b}:{b+1}], v{b+2}, {DBG}, 0 offen sc1")

    def nonce_finish(self, tag, b):
        self.a(f"""
        s_mov_b32 s62, 0
        L_nonce_{tag}:
        s_waitcnt vmcnt(0)
        v_readfirstlane_b32 s80, v{b}
        v_readfirstlane_b32 s81, v{b+1}
        s_add_u32 s62, s62, 1
        s_cmp_lg_u32 s81, 0
        s_cbranch_scc1 L_nonce_{tag}_ok
        s_cmp_gt_u32 s62, {SPIN}
        s_cbranch_scc1 L_nonce_{tag}_ok
        v_mov_b32 v{b+2}, 0
        buffer_load_dwordx2 v[{b}:{b+1}], v{b+2}, {DBG}, 0 offen sc1
        s_branch L_nonce_{tag}
        L_nonce_{tag}_ok:
        """)

    def flag_store(self, soff, replicas, rstride_log2, b=4):
        self.a(f"""
        v_lshl_add_u32 v{b+2}, v1, {rstride_log2}, {soff}
        v_mov_b32 v{b}, s80
        v_mov_b32 v{b+1}, s81
        s_mov_b64 exec, {(1 << replicas) - 1}
        buffer_store_dwordx2 v[{b}:{b+1}], v{b+2}, {WS}, 0 offen sc1
        s_mov_b64 exec, -1
        """)

    def wide_flag_load(self, va, vd):
        return (f"buffer_load_dwordx2 v[{vd}:{vd+1}], {va}, {WS}, 0 offen sc1\n"
                f"buffer_load_dwordx2 v[{vd+2}:{vd+3}], {va}, {WS}, 0 offen offset:{1 << FL} sc1")

    def verify(self, name, tags, t0, reload):
        a = self.a
        if opt('force', 0): a(f"v_mov_b32 v{tags[-1]}, 0\nv_mov_b32 v{tags[-1]-1}, 0")
        a(f"s_mov_b32 s62, 0\nL_ver_{name}:")
        for op, d in (("max", t0), ("min", t0 + 1)):
            rest = list(tags)
            cur = rest.pop(0)
            while rest:
                if len(rest) >= 2: a(f"v_{op}3_u32 v{d}, v{cur}, v{rest.pop(0)}, v{rest.pop(0)}")
                else: a(f"v_{op}_u32 v{d}, v{cur}, v{rest.pop(0)}")
                cur = d
            if cur != d: a(f"v_mov_b32 v{d}, v{cur}")
        a(f"""
        v_cmp_ne_u32 vcc, s80, v{t0}
        v_cmp_ne_u32 s[60:61], s80, v{t0+1}
        s_or_b64 vcc, vcc, s[60:61]
        s_cbranch_vccz L_ver_{name}_ok
        s_add_u32 s62, s62, 1
        s_cmp_gt_u32 s62, {SPIN}
        s_cbranch_scc1 L_ver_{name}_ok
        """)
        for t in reload: a(t)
        a(f"s_waitcnt vmcnt(0)\ns_branch L_ver_{name}\nL_ver_{name}_ok:")

    def poll(self, tag, wide=False, first_issued=False, va="v4", vd=6, later=0):
        a = self.a
        ld = (self.wide_flag_load(va, vd) if wide else
              f"buffer_load_dwordx2 v[{vd}:{vd+1}], {va}, {WS}, 0 offen sc1")
        a("s_mov_b32 s62, 0")
        if first_issued:
            a(f"s_waitcnt vmcnt({later})\ns_branch L_poll_{tag}_chk")
        a(f"L_poll_{tag}:\n{ld}\ns_waitcnt vmcnt(0)\nL_poll_{tag}_chk:")
        a(f"v_cmp_ne_u64 vcc, s[80:81], v[{vd}:{vd+1}]")
        if wide:
            a(f"v_cmp_ne_u64 s[60:61], s[80:81], v[{vd+2}:{vd+3}]\ns_or_b64 vcc, vcc, s[60:61]")
        a(f"""
        s_add_u32 s62, s62, 1
        s_cbranch_vccz L_poll_{tag}_ok
        s_cmp_gt_u32 s62, {SPIN}
        s_cbranch_scc1 L_poll_{tag}_ok
        s_sleep {opt('sleep', 6)}
        s_branch L_poll_{tag}
        L_poll_{tag}_ok:
        """)

    def tile_off(self, h):
        self.a(f"""
        s_lshl_b32 s60, {sM}, 16
        s_lshl_b32 s61, {sX}, 7
        s_add_u32 s60, s60, s61
        s_lshl_b32 s61, {h}, 15
        s_add_u32 s60, s60, s61
        v_lshrrev_b32 v8, 4, v1
        v_and_b32 v9, 15, v1
        v_lshlrev_b32 v2, 13, v8
        v_lshl_add_u32 v2, v9, 3, v2
        v_add_u32 v2, s60, v2
        v_add_u32 v5, 4096, v2
        """)

    def role_a(self):
        a = self.a
        self.tile_off(sWV)
        a(f"""
        v_subrev_u32 v3, 3072, v2
        s_lshl_b32 s62, {sX}, 9
        v_lshl_add_u32 v56, v9, 5, s62
        buffer_load_dwordx4 v[48:51], v56, {SK}, 0 offen
        buffer_load_dwordx4 v[52:55], v56, {SK}, 0 offen offset:16
        """)
        self.stamp("s")
        for j in range(11):
            base, off = ("v3", j * 1024) if j < 3 else ("v2", (j - 3) * 1024) if j < 7 else ("v5", (j - 7) * 1024)
            a(f"buffer_load_dwordx2 {P(10+2*j)}, {base}, {K}, 0 offen offset:{off}{self.NT}")
        for j in range(8):
            base, off = ("v2", j * 1024) if j < 4 else ("v5", (j - 4) * 1024)
            a(f"buffer_load_dwordx2 {P(32+2*j)}, {base}, {V}, 0 offen offset:{off}{self.NT}")
        self.stamp("s")
        a(f"""
        s_lshl_b32 s60, {sX}, {18 + HINT}
        s_lshl_b32 s61, {sM}, {7 + HINT}
        s_sub_u32 s60, s60, s61
        s_lshl_b32 s61, {sWV}, {6 + HINT}
        s_sub_u32 s60, s60, s61
        s_add_u32 s60, s60, {WS_KVT + 63*(64 << HINT)}
        v_lshlrev_b32 v142, {14 + HINT}, v9
        v_add_u32 v142, s60, v142
        v_sub_u32 v56, 3, v8
        v_lshl_add_u32 v142, v56, 4, v142
        s_movk_i32 s64, {4096 << HINT}
        s_movk_i32 s65, {8192 << HINT}
        s_movk_i32 s66, {12288 << HINT}
        """)
        self.c_ids()
        self.filter_load()
        self.g1_ids(); self.g2_ids()
        self.stamp("s")
        if opt('warm', 1) == 1: self.warm((0, ["kv0", "fprep", "ufetch", "conv0"]), (1, ["kv1", "addr", "conv1"]))
        if opt('warm', 1) == 3: self.warm((0, ["kv0", "fprep"]), (1, ["kv1", "ufetch", "addr"]))
        self.stamp(); self.stamp("s")
        a("s_waitcnt vmcnt(8)")
        self.tag_ready()
        self.stamp(); self.stamp("s")
        for p in range(2):
            a.region(f"kv{p}")
            s0, s1 = 48 + 4 * p, 50 + 4 * p
            a(f"""
            v_lshlrev_b32 v102, 16, v{s0}
            v_lshlrev_b32 v103, 16, v{s1}
            v_and_b32 v104, 0xffff0000, v{s0}
            v_and_b32 v105, 0xffff0000, v{s1}
            v_lshlrev_b32 v106, 16, v{s0+1}
            v_lshlrev_b32 v107, 16, v{s1+1}
            v_and_b32 v108, 0xffff0000, v{s0+1}
            v_and_b32 v109, 0xffff0000, v{s1+1}
            """)
            for j in range(11):
                a(f"v_lshlrev_b32 v{80+2*j}, 16, v{10+2*j+p}\nv_and_b32 v{81+2*j}, 0xffff0000, v{10+2*j+p}")
            for i in range(8):
                a(f"v_lshlrev_b32 v{126+2*i}, 16, v{32+2*i+p}\nv_and_b32 v{127+2*i}, 0xffff0000, v{32+2*i+p}")
            for i in range(8): a(f"v_pk_mul_f32 {P(110+2*i)}, {P(80+2*i)}, {P(108)}")
            for i in range(8): a(f"v_pk_fma_f32 {P(110+2*i)}, {P(82+2*i)}, {P(106)}, {P(110+2*i)}")
            for i in range(8): a(f"v_pk_fma_f32 {P(110+2*i)}, {P(84+2*i)}, {P(104)}, {P(110+2*i)}")
            for i in range(8): a(f"v_pk_fma_f32 {P(110+2*i)}, {P(86+2*i)}, {P(102)}, {P(110+2*i)}")
            for i in range(8): a(f"v_pk_mul_f32 {P(110+2*i)}, {P(110+2*i)}, {P(126+2*i)}")
            o = 144 + 8 * p
            for j in range(4):
                a(f"v_cvt_pk_bf16_f32 v{o+j}, v{110+2*(7-2*j)}, v{110+2*(6-2*j)}")
                a(f"v_cvt_pk_bf16_f32 v{o+4+j}, v{111+2*(7-2*j)}, v{111+2*(6-2*j)}")
            so = ("0", "s64") if p == 0 else ("s65", "s66")
            a(f"buffer_store_dwordx4 {Q4(o)}, v142, {WS}, {so[0]} offen sc1\nbuffer_store_dwordx4 {Q4(o+4)}, v142, {WS}, {so[1]} offen sc1")
            for c in range(2 * HINT):
                r, x = o + 4 * c, 56 + 2 * p + c
                a(f"v_bitop3_b32 v{x}, v{r}, v{r+1}, v{r+2} bitop3:0x96\nv_xor_b32 v{x}, v{x}, v{r+3}")
        for sw in (("16", "32") if HINT else ()):
            for c in range(4): a(f"v_mov_b32 v{60+c}, v{56+c}")
            for c in range(4): a(f"v_permlane{sw}_swap_b32 v{56+c}, v{60+c}")
            for c in range(4): a(f"v_xor_b32 v{56+c}, v{56+c}, v{60+c}" if sw == "16" else f"v_bitop3_b32 v{56+c}, v{56+c}, v{60+c}, s80 bitop3:0x96")
        for so in (("0", "s64", "s65", "s66") if HINT else ()): a(f"buffer_store_dwordx4 v[56:59], v142, {WS}, {so} offen offset:64 sc1")
        self.stamp()

    def w1_touch(self, j):
        self.a(f"""
        s_lshl_b32 s60, {sM}, 1
        s_add_u32 s60, s60, {sWV}
        s_mul_i32 s60, s60, {8*3584}
        s_and_b32 s61, {sX}, 1
        s_mul_i32 s61, s61, 1792
        s_add_u32 s60, s60, s61
        s_movk_i32 s61, 4682
        v_add_u32 v250, {64*j}, v1
        v_min_u32 v250, 111, v250
        v_mul_u32_u24 v251, s61, v250
        v_lshrrev_b32 v251, 16, v251
        v_mul_u32_u24 v251, {3584 - 14*128}, v251
        v_lshl_add_u32 v251, v250, 7, v251
        buffer_load_dword v{248+j}, v251, {W1}, s60 offen{self.NTW1}
        """)

    def flag_a(self):
        a = self.a
        a(f"""
        s_lshl_b32 s60, {sX}, 5
        s_add_u32 s60, s60, {sM}
        s_lshl_b32 s60, s60, 1
        s_add_u32 s60, s60, {sWV}
        s_lshl_b32 s60, s60, {self.FA_LOG}
        s_add_u32 s60, s60, {FLAG_A}
        """)
        self.flag_store("s60", 1, 3, 250)
    FA_LOG = FL

    def filter_load(self):
        a = self.a
        a("s_lshl_b32 s60, s68, 12\nv_lshl_add_u32 v4, v1, 4, s60")
        for i in range(4):
            r = 176 + 8 * i
            a(f"buffer_load_dwordx4 {Q4(r)}, v4, {FK}, 0 offen offset:{1024*i}{self.NTF}")
            a(f"buffer_load_dwordx2 {P(r+4)}, v4, {FK}, 0 offen offset:{1024*i+16}{self.NTF}")

    def role_b_loads(self):
        a = self.a
        a(f"s_sub_u32 s6, {sWV}, 2")
        self.c_ids()
        self.filter_load()
        self.g1_ids(); self.g2_ids()

    def role_b_loads_gemv(self):
        a = self.a
        a(f"""
        v_lshrrev_b32 v8, 2, v1
        v_and_b32 v14, 3, v1
        s_and_b32 s60, s2, 3
        s_lshl_b32 s60, s60, 7
        v_lshl_add_u32 v2, v8, 3, s60
        v_lshlrev_b32 v3, 1, v2
        buffer_load_dwordx4 v[164:167], v3, {C}, 0 offen
        s_movk_i32 s61, 6144
        v_mul_lo_u32 v3, v2, s61
        v_lshl_add_u32 v3, v14, 4, v3
        s_lshr_b32 s60, s2, 2
        s_lshl_b32 s60, s60, 7
        s_lshl_b32 s61, s6, 6
        s_add_u32 s60, s60, s61
        s_cmp_ge_u32 s2, 192
        s_cselect_b32 s60, 0x40000000, s60
        """)
        for j in range(8):
            a(f"buffer_load_dwordx4 {Q4(16+4*j)}, v3, {WM}, s60 offen{self.NT}")
            if j < 7: a("s_add_u32 s60, s60, 6144")

    def role_b_loads2(self):
        a = self.a
        a(f"""
        s_lshl_b32 s60, s2, 13
        s_lshl_b32 s61, s6, 12
        s_add_u32 s60, s60, s61
        v_lshrrev_b32 v3, 4, v1
        v_lshlrev_b32 v3, 10, v3
        v_and_b32 v4, 15, v1
        v_lshl_add_u32 v3, v4, 4, v3
        """)
        for j in range(4): a(f"buffer_load_dwordx4 {Q4(48+4*j)}, v3, {Q}, s60 offen offset:{256*j}{self.NTQ}")

    def unit_addr(self, sel=None):
        self.a(f"""
        s_lshl_b32 s61, s2, 1
        {sel or f"s_and_b32 s60, {sWV}, 1"}
        s_add_u32 s60, s60, s61
        s_lshr_b32 s20, s60, 3
        s_and_b32 s21, s60, 7
        s_mul_i32 s61, s20, 37
        s_lshr_b32 s61, s61, 8
        s_mul_i32 s62, s61, 7
        s_sub_u32 s62, s20, s62
        s_mul_i32 s61, s61, 224
        s_lshl_b32 s63, s62, 5
        s_add_u32 s22, s63, 16
        s_cmp_ge_u32 s62, 3
        s_cselect_b32 s63, s22, s63
        s_movk_i32 s22, {16*1024}
        s_cmp_eq_u32 s62, 6
        s_cselect_b32 s63, 96, s63
        s_cselect_b32 s22, {112*1024}, s22
        s_add_u32 s61, s61, s63
        s_lshl_b32 s61, s61, 10
        s_lshl_b32 s62, s21, 7
        s_add_u32 s61, s61, s62
        s_cmp_ge_u32 s60, 448
        s_cselect_b32 s23, 0x40000000, s61
        v_lshrrev_b32 v169, 2, v1
        v_lshlrev_b32 v169, 10, v169
        v_and_b32 v5, 3, v1
        v_lshl_add_u32 v169, v5, 4, v169
        """)

    def q_rows(self, h=sWV):
        a = self.a
        a(f"""
        s_mov_b32 s62, {h}
        s_cmp_eq_u32 s62, 0
        s_cselect_b32 s60, s71, s72
        s_lshl_b32 s60, s60, 19
        s_lshr_b32 s61, s70, 1
        s_lshl_b32 s61, s61, 4
        s_add_u32 s60, s60, s61
        s_lshl_b32 s61, s62, 13
        v_lshlrev_b32 v5, 10, v1
        """)
        for i in range(8):
            a(f"s_add_u32 m0, s61, {self.QS + 1024*i}")
            a(f"buffer_load_dwordx4 v5, {Q}, s60 offen lds")
            if i < 7: a("s_add_u32 s60, s60, 65536")

    def side_inputs(self):
        a = self.a
        a(f"""
        v_lshrrev_b32 v5, 1, v1
        v_mul_u32_u24 v5, 3584, v5
        v_and_b32 v6, 1, v1
        v_lshl_add_u32 v5, v6, 4, v5
        s_and_b32 s60, s2, 15
        s_mul_i32 s60, s60, 224
        s_lshr_b32 s61, s2, 4
        s_mul_i32 s61, s61, {32*3584}
        s_add_u32 s60, s60, s61
        s_lshl_b32 s61, {sWV}, 5
        s_add_u32 s60, s60, s61
        s_lshl_b32 s61, {sWV}, 11
        s_add_u32 m0, s61, {self.W1S}
        buffer_load_dwordx4 v5, {W1}, s60 offen{self.NTW1} lds
        s_add_u32 m0, s61, {self.W1S + 1024 - 128}
        buffer_load_dwordx4 v5, {W1}, s60 offen offset:128{self.NTW1} lds
        s_cmp_lt_u32 {sWV}, 2
        s_cselect_b32 s60, s71, s72
        s_lshl_b32 s60, s60, 4
        s_and_b32 s61, {sWV}, 1
        s_lshl_b32 s61, s61, 3
        s_add_u32 s43, s60, s61
        s_lshl_b32 s60, s43, 5
        v_lshl_add_u32 v5, v3, 5, v2
        v_add_u32 v5, s60, v5
        v_lshlrev_b32 v159, 4, v5
        v_add_u32 v159, {WS_STAT}, v159
        s_lshl_b32 s60, s68, 1
        v_mov_b32 v5, s60
        buffer_load_ushort v126, v5, {SD}, 0 offen
        """)

    def w2_half_addr(self):
        a = self.a
        self.unit_addr(f"s_lshr_b32 s60, {sWV}, 1")
        a(f"""
        s_and_b32 s60, {sWV}, 1
        s_lshl_b32 s60, s60, 6
        s_add_u32 s23, s23, s60
        s_lshl_b32 s60, {sWV}, 11
        s_add_u32 s44, s60, {self.W2S}
        v_lshrrev_b32 v174, 2, v1
        v_lshl_add_u32 v175, v3, 2, v174
        s_cmp_eq_u32 s22, {112*1024}
        s_cselect_b64 vcc, -1, 0
        s_movk_i32 s61, 1024
        s_cselect_b32 s61, 256, s61
        v_cndmask_b32 v174, v174, v175, vcc
        v_lshlrev_b32 v174, 6, v174
        v_and_b32 v175, 3, v1
        v_lshl_add_u32 v174, v175, 4, v174
        v_add_u32 v174, s44, v174
        v_add_u32 v175, s61, v174
        s_add_u32 s22, s22, s23
        s_mul_i32 s45, s21, 56
        s_add_u32 s45, s45, s20
        s_lshl_b32 s45, s45, 12
        s_and_b32 s61, {sWV}, 1
        s_lshl_b32 s61, s61, 11
        s_add_u32 s45, s45, s61
        s_add_u32 s45, s45, {WS_W2P}
        s_cmp_ge_u32 s20, 56
        s_cselect_b32 s45, 0x40000000, s45
        s_lshl_b32 s46, s2, 2
        s_add_u32 s46, s46, {sWV}
        s_lshl_b32 s46, s46, {FL}
        s_add_u32 s46, s46, {FLAG_B}
        """)

    def w2_unit_load(self):
        a = self.a
        self.unit_addr()
        a(f"s_lshl_b32 s61, s6, 12\ns_add_u32 s62, s23, s22")
        for c in range(2):
            for i in range(2):
                a(f"s_add_u32 m0, s61, {self.W2S + 2048*c + 1024*i - 64*c}")
                a(f"buffer_load_dwordx4 v169, {W2}, {'s23' if i == 0 else 's62'} offen offset:{64*c}{self.NT} lds")

    def w2_unit_pack(self, later):
        a = self.a
        a(f"""
        s_lshl_b32 s61, s6, 12
        s_add_u32 s60, s61, {self.W2S}
        v_lshrrev_b32 v10, 2, v1
        v_lshl_add_u32 v11, v3, 2, v10
        s_cmp_eq_u32 s22, {112*1024}
        s_cselect_b64 vcc, -1, 0
        s_movk_i32 s61, 1024
        s_cselect_b32 s61, 256, s61
        v_cndmask_b32 v10, v10, v11, vcc
        v_lshlrev_b32 v10, 6, v10
        v_and_b32 v11, 3, v1
        v_lshl_add_u32 v10, v11, 4, v10
        v_add_u32 v10, s60, v10
        v_add_u32 v11, s61, v10
        v_lshlrev_b32 v12, 4, v1
        s_mul_i32 s63, s21, 56
        s_add_u32 s63, s63, s20
        s_lshl_b32 s63, s63, 12
        s_add_u32 s63, s63, {WS_W2P}
        s_cmp_ge_u32 s20, 56
        s_cselect_b32 s63, 0x40000000, s63
        s_waitcnt vmcnt({later})
        """)
        for dt in range(4):
            o = 2048 * (dt >> 1) + 8 * (dt & 1)
            a(f"ds_read_b64_tr_b16 {P(16+4*dt)}, v10 offset:{o}\nds_read_b64_tr_b16 {P(18+4*dt)}, v11 offset:{o}")
        a("s_waitcnt lgkmcnt(0)")
        for dt in range(4): a(f"buffer_store_dwordx4 {Q4(16+4*dt)}, v12, {WS}, s63 offen offset:{1024*dt} sc1")

    CSZ = 4160
    QS = 32768 + 69632
    W1S = 32768 + 112640
    W2S = 32768 + 120832
    GVS = 32768 + 129024
    def filter_copies(self):
        a = self.a
        a(f"""
        s_mul_i32 s60, {sWV}, {4*self.CSZ}
        s_add_u32 s60, s60, {self.WB}
        v_lshl_add_u32 v4, v1, 4, s60
        v_mov_b32 v100, 0
        v_mov_b32 v101, 0
        v_mov_b32 v102, 0
        v_mov_b32 v103, 0
        s_mov_b64 s[62:63], exec
        s_mov_b64 exec, 15
        """)
        for c in range(4): a(f"ds_write_b128 v4, v[100:103] offset:{c*self.CSZ}")
        a("s_mov_b64 exec, s[62:63]")
        for cc in range(1):
            for i in range(4):
                r = 176 + 8 * (4 * cc + i)
                t = 104 + 12 * (i % 2)
                o = cc * 4 * self.CSZ + 64 + 1024 * i
                pass
                a(f"ds_write_b128 v4, {Q4(r)} offset:{o}")
                for j in range(4): a(f"v_alignbit_b32 v{t+j}, v{r+j+1}, v{r+j}, 16")
                for j in range(4): a(f"v_mov_b32 v{t+4+j}, v{r+j+1}")
                for j in range(4): a(f"v_alignbit_b32 v{t+8+j}, v{r+j+2}, v{r+j+1}, 16")
                for k in range(3): a(f"ds_write_b128 v4, {Q4(t+4*k)} offset:{o + (k+1)*self.CSZ}")
                if i == 0:
                    a(f"""
                    v_lshlrev_b32 v128, 16, v{r}
                    s_mov_b64 exec, 1
                    ds_write_b32 v4, v128 offset:{o + self.CSZ - 4}
                    ds_write_b32 v4, v{r} offset:{o + 2*self.CSZ - 4}
                    ds_write_b32 v4, v128 offset:{o + 3*self.CSZ - 8}
                    ds_write_b32 v4, v{t} offset:{o + 3*self.CSZ - 4}
                    s_mov_b64 exec, s[62:63]
                    """)

    def role_b_rest(self, later, after_wait=None):
        a = self.a
        self.stamp("b")
        a(f"s_waitcnt vmcnt({later + 12})")
        self.tag_ready()
        for j in range(4): a(f"v_lshlrev_b32 v{100+2*j}, 16, v{164+j}\nv_and_b32 v{101+2*j}, 0xffff0000, v{164+j}")
        for j in range(8): a(f"v_mul_f32 v{108+j}, {NLOG2E}, v{100+j}")
        for j in range(8): a(f"v_exp_f32 v{108+j}, v{108+j}")
        for j in range(8): a(f"v_add_f32 v{108+j}, 1.0, v{108+j}")
        for j in range(8): a(f"v_rcp_f32 v{108+j}, v{108+j}")
        for j in range(8): a(f"v_mul_f32 v{108+j}, v{100+j}, v{108+j}")
        for j in range(4): a(f"v_cvt_pk_bf16_f32 v{100+j}, v{108+2*j}, v{109+2*j}")
        for j in range(4): a(f"v_lshlrev_b32 v{108+2*j}, 16, v{100+j}\nv_and_b32 v{109+2*j}, 0xffff0000, v{100+j}")
        self.stamp("b")
        a(f"s_waitcnt vmcnt({later + 4})")
        if after_wait: after_wait()
        self.stamp("b")
        for j in range(8):
            for e in range(4):
                a(f"v_lshlrev_b32 v{116+2*e}, 16, v{16+4*j+e}\nv_and_b32 v{117+2*e}, 0xffff0000, v{16+4*j+e}")
            sel = "op_sel_hi:[1,0,1]" if j % 2 == 0 else "op_sel:[0,1,0] op_sel_hi:[1,1,1]"
            for e in range(4):
                if j == 0: a(f"v_pk_mul_f32 {P(124+2*e)}, {P(116+2*e)}, {P(108)} op_sel_hi:[1,0]")
                else: a(f"v_pk_fma_f32 {P(124+2*e)}, {P(116+2*e)}, {P(108+2*(j//2))}, {P(124+2*e)} {sel}")
        for n in (4, 8):
            for e in range(8): a(f"v_add_f32_dpp v{124+e}, v{124+e}, v{124+e} row_ror:{n} row_mask:0xf bank_mask:0xf")
        a(f"""
        s_lshl_b32 s60, s6, 9
        s_add_u32 s60, s60, {self.GVS}
        v_lshl_add_u32 v116, v3, 7, s60
        v_and_b32 v117, 3, v1
        v_lshl_add_u32 v116, v117, 5, v116
        ds_write_b128 v116, v[124:127]
        ds_write_b128 v116, v[128:131] offset:16
        v_and_b32 v117, 31, v1
        v_lshlrev_b32 v117, 2, v117
        v_add_u32 v116, s60, v117
        ds_read_b32 v120, v116
        ds_read_b32 v121, v116 offset:128
        ds_read_b32 v122, v116 offset:256
        ds_read_b32 v123, v116 offset:384
        s_waitcnt vmcnt({self.n_after})
        s_and_b32 s60, s2, 3
        s_mul_i32 s60, s60, {MODP}
        s_lshr_b32 s61, s2, 2
        s_lshl_b32 s61, s61, 9
        s_add_u32 s60, s60, s61
        s_lshl_b32 s61, s6, 8
        s_add_u32 s60, s60, s61
        s_add_u32 s60, s60, {WS_MOD}
        s_cmp_ge_u32 s2, 192
        s_cselect_b32 s60, 0x40000000, s60
        v_lshlrev_b32 v117, 1, v117
        s_waitcnt lgkmcnt(0)
        v_add_f32 v120, v120, v121
        v_add_f32 v122, v122, v123
        v_add_f32 v120, v120, v122
        v_mov_b32 v121, s80
        s_mov_b32 exec_hi, 0
        buffer_store_dwordx2 v[120:121], v117, {WS}, s60 offen sc1
        s_mov_b32 exec_hi, -1
        """)
        self.stamp("b")
        a.region("brest1")
        self.role_b_tail()

    def role_b_tail(self):
        a = self.a
        for j in range(16): a(f"v_lshlrev_b32 v{100+2*j}, 16, v{48+j}\nv_and_b32 v{101+2*j}, 0xffff0000, v{48+j}")
        for j in range(8): a(f"v_pk_add_f32 {P(132+2*j)}, {P(100+4*j)}, {P(102+4*j)}")
        for st in (4, 2, 1):
            for j in range(st): a(f"v_pk_add_f32 {P(132+2*j)}, {P(132+2*j)}, {P(132+2*(j+st))}")
        a("v_add_f32 v132, v132, v133")
        for n in (8, 4, 2, 1): a(f"v_add_f32_dpp v132, v132, v132 row_ror:{n} row_mask:0xf bank_mask:0xf")
        a("v_mul_f32 v148, 0xbb000000, v132")
        for j in range(16): a(f"v_pk_add_f32 {P(100+2*j)}, {P(100+2*j)}, {P(148)} op_sel_hi:[1,0]")
        for j in range(4): a(f"v_pk_mul_f32 {P(132+2*j)}, {P(100+2*j)}, {P(100+2*j)}")
        for j in range(4, 16): a(f"v_pk_fma_f32 {P(132+2*(j&3))}, {P(100+2*j)}, {P(100+2*j)}, {P(132+2*(j&3))}")
        a(f"v_pk_add_f32 {P(132)}, {P(132)}, {P(134)}\nv_pk_add_f32 {P(136)}, {P(136)}, {P(138)}\nv_pk_add_f32 {P(132)}, {P(132)}, {P(136)}\nv_add_f32 v132, v132, v133")
        for n in (8, 4, 2, 1): a(f"v_add_f32_dpp v132, v132, v132 row_ror:{n} row_mask:0xf bank_mask:0xf")
        a(f"""
        v_mov_b32 v133, 0x3727c5ac
        v_fmac_f32 v133, 0x3b000000, v132
        v_rsq_f32 v136, v133
        s_lshl_b32 s60, s2, 7
        s_lshl_b32 s61, s6, 6
        s_add_u32 s60, s60, s61
        s_add_u32 s60, s60, {WS_STAT}
        v_mov_b32 v137, s80
        v_mov_b32 v139, s80
        v_mul_f32 v138, v148, v136
        v_lshlrev_b32 v134, 4, v3
        s_mov_b32 exec_lo, 0x00010001
        s_mov_b32 exec_hi, 0x00010001
        buffer_store_dwordx4 v[136:139], v134, {WS}, s60 offen sc1
        s_mov_b64 exec, -1
        """)

    def flag_m(self, later):
        a = self.a
        a(f"""
        s_waitcnt vmcnt({later})
        s_lshl_b32 s60, s2, 1
        s_add_u32 s60, s60, s6
        s_lshl_b32 s60, s60, {FL}
        s_add_u32 s60, s60, {FLAG_B}
        """)
        self.flag_store("s60", 1, 9 + FL, 250)

    def filter_prep(self, mid):
        a = self.a
        a(f"""
        s_mul_i32 s73, {sWV}, {self.FSZ}
        s_add_u32 s73, s73, {self.FB}
        v_and_b32 v2, 15, v1
        v_lshrrev_b32 v3, 4, v1
        v_lshl_add_u32 v4, v1, 4, s73
        v_mov_b32 v6, 0
        v_mov_b32 v7, 0
        v_mov_b32 v8, 0
        v_mov_b32 v9, 0
        v_add_u32 v5, 1, v2
        v_and_b32 v10, 3, v5
        v_mul_u32_u24 v10, {self.CSZ}, v10
        v_and_b32 v5, 28, v5
        v_lshl_add_u32 v5, v5, 1, v10
        v_and_b32 v10, 1, v3
        v_lshl_add_u32 v5, v10, 4, v5
        s_mul_i32 s60, {sWV}, {4*self.CSZ}
        s_add_u32 s60, s60, {self.WB}
        v_add_u32 v5, s60, v5
        v_lshrrev_b32 v10, 1, v3
        s_add_u32 s60, s71, 1
        s_lshl_b32 s60, s60, 9
        s_add_u32 s61, s72, 1
        s_lshl_b32 s61, s61, 9
        v_mad_u32_u24 v11, v10, s60, v5
        v_mad_u32_u24 v12, v10, s61, v5
        v_add_u32 v15, s60, v11
        v_subrev_u32 v12, s60, v12
        s_cmp_eq_u32 s69, 0
        s_cselect_b64 vcc, -1, 0
        v_cndmask_b32 v13, v11, v12, vcc
        """)
        for n in range(81):
            if n == opt('fa', 10): mid()
            b = "v11" if n < 16 else "v13" if n < 32 else "v12"
            a(f"ds_read_b64 {self.Fhalf(n,0)}, {b} offset:{32*n}")
            a(f"ds_read_b64 {self.Fhalf(n,1)}, {b} offset:{32*n+8}")
        a("ds_read_b64 v[244:245], v15\nds_read_b64 v[246:247], v15 offset:8")
        a(f"ds_write_b128 v4, v[6:9] offset:6144\ns_mov_b64 exec, {(1 << 26) - 1}\nds_write_b128 v4, v[6:9] offset:7168\ns_mov_b64 exec, -1")
        a(f"""
        v_sub_u32 v5, 63, v2
        v_mul_u32_u24 v5, 96, v5
        v_add_u32 v5, s73, v5
        s_mul_i32 s60, s71, {16*96}
        s_mul_i32 s61, s72, {16*96}
        v_subrev_u32 v156, s60, v5
        v_subrev_u32 v157, s61, v5
        v_and_b32 v6, 1, v3
        v_lshlrev_b32 v6, 4, v6
        v_lshrrev_b32 v7, 1, v3
        s_add_u32 s60, s71, 1
        s_mul_i32 s60, s60, 768
        s_add_u32 s61, s72, 1
        s_mul_i32 s61, s61, 768
        v_mad_u32_u24 v80, v7, s60, v156
        v_mad_u32_u24 v82, v7, s61, v157
        v_add_u32 v80, v80, v6
        v_add_u32 v82, v82, v6
        v_subrev_u32 v82, s60, v82
        s_cmp_eq_u32 s69, 0
        s_cselect_b64 vcc, -1, 0
        v_cndmask_b32 v81, v80, v82, vcc
        v_lshlrev_b32 v6, 3, v3
        v_sub_u32 v6, 24, v6
        v_add_u32 v156, v156, v6
        v_add_u32 v157, v157, v6
        """)

    def pre_conv(self):
        self.epi_addr(); self.g2_w2_addr(0); self.mod_addr()
        if W2L: self.w2_half_addr()
        L = self.w_stream(32, 0)
        for t in L[:L.index("WAIT")]: self.a(t.replace(" | ", "\n"))

    def u_addr(self):
        a = self.a
        a("s_movk_i32 s60, 10923")
        for j in range(3):
            a(f"""
            v_add_u32 v19, {64*j}, v1
            v_mul_u32_u24 v20, s60, v19
            v_lshrrev_b32 v20, 16, v20
            v_mul_u32_u24 v21, 6, v20
            v_sub_u32 v19, v19, v21
            v_min_u32 v19, 3, v19
            v_lshlrev_b32 v19, 4, v19
            v_lshl_add_u32 v{16+j}, v20, 6, v19
            """)
        a(f"s_lshl_b32 s64, s68, 12\ns_add_u32 s64, s64, {WS_KVT}\ns_add_u32 s65, s64, 2048")

    def u_wait(self):
        a = self.a
        a(f"""
        s_cmp_lg_u32 {sWV}, 0
        s_cbranch_scc1 L_u_nopoll
        s_lshl_b32 s60, {sX}, {6 + self.FA_LOG}
        s_add_u32 s60, s60, {FLAG_A}
        v_lshl_add_u32 v4, v1, {self.FA_LOG}, s60
        """)
        for i in range(opt('psa', 0)): a("s_sleep 4")
        self.poll("A")
        a("L_u_nopoll:")

    def u_fetch(self):
        a = self.a
        for j in (5, 4, 3, 2, 1, 0):
            if j == 0: a("s_cmp_eq_u32 s69, 1\ns_cbranch_scc1 L_u_short")
            a(f"s_add_u32 m0, s73, {1024*j}")
            a(f"buffer_load_dwordx4 v{16 + j%3}, {WS}, {'s64' if j < 3 else 's65'} offen sc1 lds")
        a("L_u_short:")
        self.side_inputs()
        a("s_waitcnt vmcnt(3)")

    def conv_main(self, hook):
        a = self.a
        D = 6
        off = lambda n: 96 * (n >> 1) + 32 * (n & 1)
        base = lambda n: "v80" if n < 16 else "v81" if n < 32 else "v82"
        Br = lambda n: Q4(48 + 4 * (n % 8))
        def rd(n):
            if n < 80: a(f"ds_read_b128 {Br(n)}, {base(n)} offset:{off(n)}")
        def step(n, c0="v[84:87]", c1="v[88:91]", d0="v[84:87]", d1="v[88:91]", a1=None):
            rd(n + D)
            a(f"s_waitcnt lgkmcnt({min(D, 79 - n)})")
            a(f"v_mfma_f32_16x16x32_bf16 {d0}, {self.Freg(n)}, {Br(n)}, {c0}")
            a(f"v_mfma_f32_16x16x32_bf16 {d1}, {a1 or self.Freg(n+1)}, {Br(n)}, {c1}")
        for n in range(D): rd(n)
        def boundary(n, ty):
            a(f"s_cmp_eq_u32 s69, {ty}\ns_cbranch_scc0 L_cb{n}_no")
            h = list(a.hist)
            step(n, d0="v[92:95]", d1="v[96:99]", a1="v[244:247]")
            step(n + 1, c0="0", c1="0")
            a(f"s_branch L_cb{n}_done\nL_cb{n}_no:")
            a.hist = h
            step(n); step(n + 1)
            a(f"L_cb{n}_done:")
            hook(n); hook(n + 1)
        step(0, c0="0", c1="0"); hook(0)
        for n in range(1, 15): step(n); hook(n)
        boundary(15, 0)
        for n in range(17, 31): step(n); hook(n)
        boundary(31, 1)
        for n in range(33, 80): step(n); hook(n)

    def epi_addr(self):
        self.a(f"""
        v_and_b32 v161, 3, v1
        s_movk_i32 s60, {MODP}
        v_mul_u32_u24 v161, s60, v161
        v_bfe_u32 v5, v1, 2, 2
        v_lshl_add_u32 v161, v5, 12, v161
        v_lshl_add_u32 v161, v3, 3, v161
        s_lshl_b32 s60, s70, 5
        s_add_u32 s60, s60, {WS_MOD}
        v_add_u32 v161, s60, v161
        s_mul_i32 s60, {sWV}, 112
        s_add_u32 s60, s60, s77
        s_lshl_b32 s60, s60, {FL + W2L}
        s_add_u32 s60, s60, {FLAG_B}
        v_and_b32 v5, 15, v1
        v_min_u32 v5, 13, v5
        v_lshl_add_u32 v248, v5, {FL + 3 + W2L}, s60
        v_bfe_u32 v5, v1, 4, 1
        v_mul_u32_u24 v5, {W2L << FL}, v5
        v_add_u32 v248, v248, v5
        """)

    def epi_load_list(self):
        L = [f"buffer_load_dwordx2 v[124:125], v161, {WS}, 0 offen sc1"]
        for i in range(4):
            L.append(f"buffer_load_dwordx4 {Q4(108+4*i)}, v159, {WS}, 0 offen offset:{2048*(i>>1) + 256*(i&1)} sc1")
        return L

    def conv_epilogue(self):
        a = self.a
        xi, RS = self.XI, self.XI_RS
        for sl in range(2):
            for t in range(2):
                a(f"ds_read_b64 {P(140+4*sl+2*t)}, v{156+sl} offset:{32-32*t}")
        self.verify("e", [125] + [109 + 2*i for i in range(8)], 150, self.epi_load_list())
        a(f"""
        v_add_f32_dpp v124, v124, v124 quad_perm:[1,0,3,2] row_mask:0xf bank_mask:0xf
        v_add_f32_dpp v124, v124, v124 quad_perm:[2,3,0,1] row_mask:0xf bank_mask:0xf
        s_lshl_b32 s60, {sWV}, 4
        s_add_u32 s60, s60, 8
        v_cvt_pk_bf16_f32 v124, v124, v124
        v_and_b32 v124, 0xffff0000, v124
        v_add_f32 v125, 1.0, v124
        v_cvt_pk_bf16_f32 v125, v125, v125
        v_and_b32 v125, 0xffff0000, v125
        v_readlane_b32 s61, v124, s60
        v_lshlrev_b32 v148, 16, v126
        s_mul_i32 s60, {sWV}, {RS}
        s_add_u32 s60, s60, {xi}
        v_mul_u32_u24 v4, 144, v3
        v_lshl_add_u32 v4, v2, 3, v4
        v_add_u32 v4, s60, v4
        v_mov_b32 v149, s61
        s_waitcnt lgkmcnt(0)
        """)
        for sl in range(2):
            for t in range(2):
                i = 2 * sl + t
                acc = (92 if sl == 0 else 84) + 4 * t
                kv, w = 140 + 2 * i, 160 + 4 * (i & 1)
                a(f"""
                v_and_b32 v{w}, 0xffff0000, v{kv+1}
                v_lshlrev_b32 v{w+1}, 16, v{kv+1}
                v_and_b32 v{w+2}, 0xffff0000, v{kv}
                v_lshlrev_b32 v{w+3}, 16, v{kv}
                v_pk_fma_f32 {P(w)}, {P(w)}, {P(148)}, {P(acc)} op_sel_hi:[1,0,1]
                v_pk_fma_f32 {P(w+2)}, {P(w+2)}, {P(148)}, {P(acc+2)} op_sel_hi:[1,0,1]
                v_pk_mul_f32 {P(w)}, {P(w)}, {P(148)} op_sel:[0,1] op_sel_hi:[1,1]
                v_pk_mul_f32 {P(w+2)}, {P(w+2)}, {P(148)} op_sel:[0,1] op_sel_hi:[1,1]
                v_cvt_pk_bf16_f32 v{168+2*(i&1)}, v{w}, v{w+1}
                v_cvt_pk_bf16_f32 v{169+2*(i&1)}, v{w+2}, v{w+3}
                ds_write_b64 v4, {P(168+2*(i&1))} offset:{1152*sl + 576*t}
                """)
        a(f"""
        s_lshr_b32 s60, {sWV}, 1
        s_and_b32 s61, {sWV}, 1
        s_mul_i32 s62, s60, 1152
        s_lshl_b32 s63, s61, 6
        s_add_u32 s62, s62, s63
        s_add_u32 s62, s62, {xi}
        v_bfe_u32 v5, v1, 2, 2
        v_mul_u32_u24 v5, {RS}, v5
        v_and_b32 v6, 3, v1
        v_mul_u32_u24 v6, 144, v6
        v_add3_u32 v5, v5, v6, s62
        v_lshl_add_u32 v5, v3, 3, v5
        s_lshl_b32 s60, {sWV}, 12
        s_and_b32 s61, s70, 1
        s_lshl_b32 s61, s61, 3
        s_add_u32 s60, s60, s61
        s_add_u32 s60, s60, {self.QS}
        v_lshl_add_u32 v6, v3, 5, v2
        v_lshl_add_u32 v6, v6, 4, s60
        s_waitcnt lgkmcnt(0)
        s_barrier
        ds_read_b64 v[100:101], v6
        ds_read_b64 v[102:103], v6 offset:256
        ds_read_b64 v[104:105], v6 offset:2048
        ds_read_b64 v[106:107], v6 offset:2304
        ds_read_b64_tr_b16 v[160:161], v5
        ds_read_b64_tr_b16 v[162:163], v5 offset:576
        ds_read_b64_tr_b16 v[164:165], v5 offset:32
        ds_read_b64_tr_b16 v[166:167], v5 offset:{576+32}
        """)
        for c in range(4):
            a(f"v_readlane_b32 s{60+c}, v125, {16*c+4}")
            a(f"v_readlane_b32 s{64+c}, v124, {16*c}")
        for c in range(4): a(f"v_mov_b32 v{128+c}, s{60+c}\nv_mov_b32 v{132+c}, s{64+c}")
        a("s_waitcnt lgkmcnt(4)")
        for i in range(4):
            q, A, u = 100 + 2 * i, 108 + 4 * i, 64 + 8 * i
            a(f"""
            v_lshlrev_b32 v{u}, 16, v{q}
            v_and_b32 v{u+1}, 0xffff0000, v{q}
            v_lshlrev_b32 v{u+2}, 16, v{q+1}
            v_and_b32 v{u+3}, 0xffff0000, v{q+1}
            v_pk_fma_f32 {P(u+4)}, {P(u)}, {P(A)}, {P(A+2)} op_sel_hi:[1,0,0]
            v_pk_fma_f32 {P(u+6)}, {P(u+2)}, {P(A)}, {P(A+2)} op_sel_hi:[1,0,0]
            v_pk_fma_f32 {P(u+4)}, {P(u+4)}, {P(128)}, {P(132)}
            v_pk_fma_f32 {P(u+6)}, {P(u+6)}, {P(130)}, {P(134)}
            """)
        a(f"""
        s_lshl_b32 s62, s43, 15
        s_lshl_b32 s63, s70, 8
        s_add_u32 s62, s62, s63
        s_add_u32 s62, s62, {WS_X1}
        s_add_u32 s63, s62, {4*32768}
        v_lshlrev_b32 v6, 15, v3
        v_lshl_add_u32 v6, v2, 4, v6
        """)
        for i in range(4):
            y, u, w = 160 + 2 * i, 64 + 8 * i, 140 + 4 * (i & 1)
            a(f"""
            s_waitcnt lgkmcnt({3-i})
            v_lshlrev_b32 v{w}, 16, v{y}
            v_and_b32 v{w+1}, 0xffff0000, v{y}
            v_lshlrev_b32 v{w+2}, 16, v{y+1}
            v_and_b32 v{w+3}, 0xffff0000, v{y+1}
            v_pk_fma_f32 {P(u)}, {P(u+4)}, {P(w)}, {P(u)}
            v_pk_fma_f32 {P(u+2)}, {P(u+6)}, {P(w+2)}, {P(u+2)}
            v_cvt_pk_bf16_f32 v{y}, v{u}, v{u+1}
            v_cvt_pk_bf16_f32 v{y+1}, v{u+2}, v{u+3}
            """)
            if i & 1: a(f"buffer_store_dwordx4 {Q4(y-2)}, v6, {WS}, s{62 + (i>>1)} offen sc1")

    def g2_epi_load(self):
        a = self.a
        a(f"""
        s_lshl_b32 s60, s77, 9
        s_add_u32 s60, s60, {WS_MOD + 5*4096}
        v_lshl_add_u32 v18, v1, 3, s60
        """)
        self.gb_loads = [f"buffer_load_dwordx2 {P((10, 16, 28, 30)[k])}, v18, {WS}, {so} offen sc1" for k, so in enumerate(("0", "s12", "s13", "s14"))]
        for t in self.gb_loads: a(t)
        a(f"""
        s_lshl_b32 s60, s76, 1
        s_lshr_b32 s61, {sWV}, 1
        s_add_u32 s60, s60, s61
        s_lshl_b32 s60, s60, 15
        s_lshl_b32 s61, s77, 12
        s_add_u32 s60, s60, s61
        s_and_b32 s61, {sWV}, 1
        s_lshl_b32 s61, s61, 3
        s_add_u32 s60, s60, s61
        s_add_u32 s60, s60, {WS_X1}
        v_lshlrev_b32 v19, 9, v3
        v_lshl_add_u32 v19, v2, 4, v19
        """)
        for p in range(2):
            for h in range(2):
                a(f"buffer_load_dwordx2 {P(20+4*p+2*h)}, v19, {WS}, s60 offen offset:{2048*p + 256*h} sc1")

    def g2_epi_pre(self, tb):
        a = self.a
        self.verify("g", [11, 17, 29, 31], 4, self.gb_loads)
        a(f"""
        v_add_f32 v4, v10, v16
        v_add_f32 v7, v28, v30
        v_add_f32 v4, v4, v7
        v_cvt_pk_bf16_f32 v4, v4, v4
        v_and_b32 v4, 0xffff0000, v4
        s_lshl_b32 s60, {sWV}, 8
        s_add_u32 s60, s60, {tb}
        v_lshl_add_u32 v5, v1, 2, s60
        ds_write_b32 v5, v4
        v_lshl_add_u32 v5, v3, 5, s60
        """)
        for p in range(2):
            for h in range(2):
                a(f"ds_read_b128 a[{224+8*p+4*h}:{227+8*p+4*h}], v5 offset:{128*p + 16*h}")
        a("s_waitcnt lgkmcnt(0)")

    def g1_ids(self):
        self.a(f"""
        s_lshr_b32 s74, {sX}, 1
        s_lshl_b32 s74, s74, 2
        s_lshr_b32 s60, {sM}, 3
        s_add_u32 s74, s74, s60
        s_and_b32 s75, {sX}, 1
        s_lshl_b32 s75, s75, 3
        s_and_b32 s60, {sM}, 7
        s_add_u32 s75, s75, s60
        """)

    def w1_addr(self, r0):
        self.a(f"""
        v_mul_u32_u24 v5, 3584, v3
        v_lshlrev_b32 v6, 1, v3
        v_xor_b32 v6, v6, v2
        v_lshl_add_u32 v{r0}, v6, 4, v5
        v_xor_b32 v6, 8, v6
        v_lshl_add_u32 v{r0+1}, v6, 4, v5
        s_mul_i32 s7, s75, 224
        s_and_b32 s7, s7, -64
        s_and_b32 s16, {sM}, 7
        s_lshl_b32 s16, s16, 1
        s_lshr_b32 s61, {sM}, 3
        s_lshl_b32 s61, s61, 2
        s_add_u32 s16, s16, s61
        s_mul_i32 s16, s16, {opt('rot1', 0)}
        s_and_b32 s16, s16, 15
        s_add_u32 s17, s7, {512*3584}
        s_lshl_b32 s61, {sWV}, 2
        s_add_u32 s61, s61, s16
        s_and_b32 s61, s61, 15
        s_mul_i32 s61, s61, {32*3584}
        s_add_u32 s7, s7, s61
        s_lshl_b32 s78, {sWV}, 15
        s_add_u32 s78, s78, {self.WB}
        """)

    def w1_one(self, r0, n):
        a = self.a
        a(f"s_add_u32 m0, s78, {1024*n}")
        a(f"buffer_load_dwordx4 v{r0 + n%2}, {W1}, s7 offen lds")
        a(f"s_add_u32 s7, s7, {4*3584}")
        if n % 8 == 7: a(f"s_cmp_eq_u32 s7, s17\ns_cselect_b32 s60, {512*3584}, 0\ns_sub_u32 s7, s7, s60")

    def w2_touch(self, j):
        self.a(f"buffer_load_dword v{248+j}, v250, {WS}, 0 offen sc1" if j == 0 else
               f"buffer_load_dword v{248+j}, v251, {WS}, 0 offen sc1")

    def w2_touch_addr(self):
        self.a(f"""
        s_lshl_b32 s60, {sM}, 2
        s_add_u32 s60, s60, {sWV}
        s_mul_i32 s60, s60, {112*128}
        s_add_u32 s60, s60, {WS_W2P}
        v_lshl_add_u32 v250, v1, 7, s60
        v_add_u32 v5, 64, v1
        v_min_u32 v5, 111, v5
        v_lshl_add_u32 v251, v5, 7, s60
        """)

    def mod_addr(self):
        self.a(f"""
        s_lshr_b32 s60, s2, 4
        s_lshl_b32 s60, s60, 8
        s_add_u32 s60, s60, {WS_MOD + 3*4096}
        v_lshl_add_u32 v172, v2, 4, s60
        v_and_b32 v5, 1, v3
        v_lshl_add_u32 v172, v5, 12, v172
        s_movk_i32 s12, {MODP}
        s_mov_b32 s13, {2*MODP}
        s_mov_b32 s14, {3*MODP}
        """)

    def mod_load_list(self, r0):
        L = []
        for k, so in enumerate(("0", "s12", "s13", "s14")):
            L.append(f"buffer_load_dwordx4 {Q4(r0+4*k)}, v172, {WS}, {so} offen sc1")
        return L

    def g2_w2_addr(self, k0):
        self.a(f"""
        s_mul_i32 s79, s77, 56
        s_mul_i32 s61, {sWV}, 14
        s_add_u32 s79, s79, s61
        s_lshl_b32 s79, s79, 12
        s_add_u32 s79, s79, {WS_W2P}
        s_add_u32 s97, s79, {14*4096}
        s_lshl_b32 s18, s77, 1
        s_lshr_b32 s61, {sM}, 3
        s_mul_i32 s61, s61, 7
        s_lshr_b32 s61, s61, 1
        s_add_u32 s18, s18, s61
        s_mul_i32 s18, s18, {opt('rot2', 0)}
        s_cmp_ge_u32 s18, 14
        s_cselect_b32 s60, 14, 0
        s_sub_u32 s18, s18, s60
        s_lshl_b32 s18, s18, 12
        s_add_u32 s79, s79, s18
        v_lshlrev_b32 v9, 4, v1
        """)

    def g2_w2_one(self, i, v="v9"):
        self.a(f"buffer_load_dwordx4 a[{4*i}:{4*i+3}], {v}, {WS}, s79 offen offset:{1024*(i%4)} sc1")
        if i % 4 == 3:
            self.a(f"s_add_u32 s79, s79, 4096\ns_cmp_eq_u32 s79, s97\ns_cselect_b32 s60, {14*4096}, 0\ns_sub_u32 s79, s79, s60")

    def signal_all(self, base, replicas, tag):
        a = self.a
        a(f"""
        s_waitcnt vmcnt(0)
        s_barrier
        s_cmp_lg_u32 {sWV}, 0
        s_cbranch_scc1 L_sig{tag}_skip
        s_lshl_b32 s60, s2, {FL}
        s_add_u32 s60, s60, {base}
        """)
        self.flag_store("s60", replicas, 8 + FL)
        a(f"L_sig{tag}_skip:")

    def w_stream(self, r0, mod_wait):
        T = f"""
        v_lshrrev_b32 v14, 2, v1
        v_lshlrev_b32 v15, 5, v14
        v_and_b32 v12, 3, v1
        v_lshl_add_u32 v15, v12, 3, v15
        s_lshl_b32 s61, {sWV}, 11
        s_add_u32 s61, s61, {self.W1S}
        v_add_u32 v173, s61, v15
        v_and_b32 v10, 1, v3
        v_cvt_f32_u32 v11, v10
        v_xor_b32 v10, 1, v10
        v_lshlrev_b32 v10, 6, v10
        v_lshl_add_u32 v10, v2, 2, v10
        s_lshl_b32 s61, {sWV}, 7
        v_add_u32 v10, s61, v10
        v_lshl_add_u32 v14, v3, 3, s61
        v_and_b32 v15, 1, v1
        v_lshl_add_u32 v15, v15, 6, v14
        v_and_b32 v13, 1, v1
        v_lshlrev_b32 v13, 9, v13
        v_lshl_add_u32 v13, v3, 4, v13
        s_and_b32 s40, s2, 15
        s_lshl_b32 s40, s40, 4
        s_lshr_b32 s61, s2, 4
        s_add_u32 s40, s40, s61
        s_lshl_b32 s42, s40, 10
        s_lshl_b32 s61, {sWV}, 6
        s_add_u32 s42, s42, s61
        s_add_u32 s42, s42, {WS_UP}
        s_mul_i32 s40, s40, 7168
        s_lshl_b32 s61, {sWV}, 10
        s_add_u32 s40, s40, s61
        s_add_u32 s40, s40, {WS_W1P}
        s_add_u32 s41, s40, 4096
        s_cmp_eq_u32 {sWV}, 3 | s_cselect_b32 s41, 0x40000000, s41
        WAIT
        """
        L = [x.strip() for x in T.split("\n") if x.strip()]
        L += ["ds_read_b64_tr_b16 v[16:17], v173", "ds_read_b64_tr_b16 v[18:19], v173 offset:512",
              "ds_read_b64_tr_b16 v[20:21], v173 offset:1024", "ds_read_b64_tr_b16 v[22:23], v173 offset:1536", "VERIFY"]
        for e in (0, 2): L += [f"v_add_f32 v{r0+e}, v{r0+e}, v{r0+4+e}", f"v_add_f32 v{r0+8+e}, v{r0+8+e}, v{r0+12+e}"]
        for e in (0, 2): L.append(f"v_add_f32 v{r0+e}, v{r0+e}, v{r0+8+e}")
        L += [f"v_cvt_pk_bf16_f32 v{r0}, v{r0}, v{r0+2}",
              f"v_lshlrev_b32 v{r0+4}, 16, v{r0}", f"v_and_b32 v{r0+5}, 0xffff0000, v{r0}",
              f"v_add_f32 v{r0+4}, v11, v{r0+4}", f"v_add_f32 v{r0+5}, v11, v{r0+5}",
              f"v_cvt_pk_bf16_f32 v{r0}, v{r0+4}, v{r0+5}",
              f"ds_write_b32 v10, v{r0}",
              "ds_read_b64 v[24:25], v15", "ds_read_b64 v[26:27], v15 offset:32",
              "ds_read_b64 v[28:29], v14", "ds_read_b64 v[30:31], v14 offset:32", "GAP",
              "v_mfma_f32_16x16x32_bf16 v[164:167], v[16:19], v[24:27], 0",
              "v_mfma_f32_16x16x32_bf16 v[168:171], v[20:23], v[24:27], 0"]
        for e in range(4): L += [f"v_lshlrev_b32 v{r0+2*e}, 16, v{28+e}", f"v_and_b32 v{r0+2*e+1}, 0xffff0000, v{28+e}"]
        for f in range(2):
            for e in range(4):
                w = 16 + 4 * f + e
                t = r0 + 8 + 2 * (e % 2)
                L += [f"v_lshlrev_b32 v{t}, 16, v{w}", f"v_and_b32 v{t+1}, 0xffff0000, v{w}",
                      f"v_mul_f32 v{t}, v{t}, v{r0+2*e}", f"v_mul_f32 v{t+1}, v{t+1}, v{r0+2*e+1}",
                      f"v_cvt_pk_bf16_f32 v{w}, v{t}, v{t+1}"]
            L.append(f"buffer_store_dwordx4 {Q4(16+4*f)}, v9, {WS}, s{40+f} offen sc1")
        L.append(f"s_mov_b32 exec_lo, 0x00030003 | s_mov_b32 exec_hi, 0x00030003 | buffer_store_dwordx4 v[164:167], v13, {WS}, s42 offen sc1 | buffer_store_dwordx4 v[168:171], v13, {WS}, s42 offen offset:256 sc1 | s_mov_b64 exec, -1")
        return L

    UPS = 32768 + 114688
    def g1_addr(self):
        self.a(f"""
        s_lshl_b32 s64, s74, 2
        s_add_u32 s64, s64, {sWV}
        s_lshl_b32 s64, s64, 15
        s_add_u32 s64, s64, {WS_X1}
        s_lshl_b32 s65, s75, 4
        s_add_u32 s65, s65, {sWV}
        s_mul_i32 s65, s65, 7168
        s_add_u32 s65, s65, {WS_W1P}
        s_mul_i32 s66, {sWV}, 7168
        s_add_u32 s66, s66, {self.WB}
        s_lshl_b32 s67, s75, 2
        s_add_u32 s67, s67, {sWV}
        s_lshl_b32 s67, s67, 12
        s_add_u32 s67, s67, {WS_UP}
        s_mov_b32 s44, s64
        s_mul_i32 s45, s75, {16*7168}
        s_add_u32 s45, s45, {WS_W1P}
        v_lshlrev_b32 v8, 4, v1
        v_add_u32 v10, {self.WB}, v8
        v_add_u32 v11, 57344, v10
        v_lshlrev_b32 v248, 2, v0
        v_add_u32 v249, {self.UPS}, v248
        """)
        for r in range(12, 16): self.a(f"v_mov_b32 v{r}, 0x3f803f80")

    def silu_tile(self, ft, t, u1, u2, w, dst):
        a = self.a
        d, o = 192 + 8 * ft + 4 * t, 60 + 2 * t
        for h in range(2): a(f"v_pk_fma_f32 {P(w+2*h)}, {P(u1+2*h)}, {P(o)}, {P(u2+2*h)} op_sel:[0,1,0] op_sel_hi:[1,1,1]")
        for h in range(2): a(f"v_pk_fma_f32 {P(d+2*h)}, {P(d+2*h)}, {P(o)}, {P(w+2*h)} op_sel_hi:[1,0,1]")
        for r in range(4): a(f"v_exp_f32 v{w+r}, v{d+r}")
        for h in range(2): a(f"v_pk_fma_f32 {P(w+2*h)}, {P(w+2*h)}, {P(254)}, {P(254)} op_sel_hi:[1,0,0]")
        for r in range(4): a(f"v_rcp_f32 v{w+r}, v{w+r}")
        for h in range(2): a(f"v_pk_mul_f32 {P(d+2*h)}, {P(d+2*h)}, {P(w+2*h)}")
        for h in range(2): a(f"v_cvt_pk_bf16_f32 v{dst+h}, v{d+2*h}, v{d+2*h+1}")

    def pair_store(self, ft, t, c):
        a = self.a
        b = 192 + 8 * (ft - 1) + 4 * t
        a(f"buffer_store_dwordx4 {Q4(b)}, v8, {WS}, s44 offen offset:{1024*t} sc1")
        a(f"v_bitop3_b32 v{c}, v{c}, v{b}, v{b+1} bitop3:0x96\nv_bitop3_b32 v{c}, v{c}, v{b+2}, v{b+3} bitop3:0x96")

    def g1_run(self, side, nside, early=0, na=0):
        a = self.a
        ops = []
        def X(i):
            def f():
                a(f"buffer_load_dwordx4 {Q4(64+4*i)}, v8, {WS}, s64 offen offset:{i%4*1024} sc1")
                if i % 4 == 3: a("s_add_u32 s64, s64, 4096")
            return (("x", i), f)
        def W(gm, j):
            def f():
                if j % 4 == 0: a(f"s_add_u32 m0, s66, {gm*4*7168 + 1024*j}\ns_add_u32 s60, s65, {gm*4*7168 + 1024*j}")
                a(f"buffer_load_dwordx4 v8, {WS}, s60 offen offset:{1024*(j%4)} sc1 lds")
            return (("w", gm, j), f)
        def UPl(j):
            def f():
                if j == 0: a(f"s_lshl_b32 s60, {sWV}, 12\ns_add_u32 m0, s60, {self.UPS}")
                a(f"buffer_load_dwordx4 v8, {WS}, s67 offen offset:{1024*j} sc1 lds")
            return (("u", j), f)
        if early == "weights":
            for gm in range(4):
                for j in range(4): W(gm, j)[1]()
            for j in range(4): UPl(j)[1]()
            return
        if early:
            pre = opt('g1pre', 10)
            ops += [X(i) for i in range(pre)]
            rest = [X(i) for i in range(pre, 32)]
            sd = [(("s", i), side) for i in range(na)]
            while rest or sd:
                ops += rest[:2] + sd[:1]
                rest, sd = rest[2:], sd[1:]
        else:
            for gm in range(4):
                if gm == 2: ops += [UPl(j) for j in range(4)]
                ops += [W(gm, j) for j in range(4)]
                ops += [X(i) for i in range(8 * gm, 8 * gm + 8)]
        for gm in range(4): ops += [W(gm, j) for j in range(4, 7)]
        keys = [k for k, _ in ops]
        pos = [0]
        def issue(n=1):
            for _ in range(n):
                if pos[0] < len(ops): ops[pos[0]][1](); pos[0] += 1
        def wait(key):
            i = keys.index(key)
            while pos[0] <= i: issue()
            a(f"s_waitcnt vmcnt({pos[0] - 1 - i})")
        WBE = opt('wbe', 0)
        issue(opt('g1pre', 10 if early else 20))
        NR, D = 8, 7
        Wr = lambda n: 16 + 4 * (n % NR)
        def frag(n, k, ft):
            a(f"ds_read_b128 {Q4(Wr(n))}, {'v10' if k < 8 else 'v11'} offset:{(k % 8) * 7168 + 1024 * ft}")
        def rdA(n):
            if n < 64:
                k, ft = divmod(n, 4)
                if ft == 0 and k % 4 == 0 and not early:
                    wait(("w", k // 4, 3))
                    a("s_barrier")
                frag(n, k, ft)
        def rdB(n):
            if n < 48: frag(n, n // 3, 4 + n % 3)
        def swaps(k):
            x = 64 + 8 * k
            wait(("x", 2 * k + 1))
            a(f"v_swap_b32 v{x+2}, v{x+4}\nv_swap_b32 v{x+3}, v{x+5}")
        for n in range(D): rdA(n)
        swaps(0)
        tail = self.g1_tail_setup()
        EA, young = [opt('ea', 0)], [0]
        for k in range(16):
            x = 64 + 8 * k
            if k == 8: a.region("g1b")
            if k % 4 == 0: self.stamp("h")
            for ft in range(4):
                n = 4 * k + ft
                a(f"s_waitcnt lgkmcnt({min(D - 1, 63 - n)})")
                d = 192 + 8 * ft
                a(f"v_mfma_f32_16x16x32_bf16 {Q4(d)}, {Q4(Wr(n))}, {Q4(x)}, {'0' if k == 0 else Q4(d)}")
                if (ft == 0 if opt('pa', 1) else ft != 2) and pos[0] < len(ops) - WBE: issue()
                a(f"v_mfma_f32_16x16x32_bf16 {Q4(d+4)}, {Q4(Wr(n))}, {Q4(x+4)}, {'0' if k == 0 else Q4(d+4)}")
                if k == 9:
                    for j in range(4): a(f"ds_read_b32 v{224+4*ft+j}, v249 offset:{1024*(4*ft+j)}")
                if k == 12:
                    st = (8, 4, 2, 1)[ft]
                    for j in range(st): a(f"v_add_f32 v{224+j}, v{224+j}, v{224+j+st}")
                if k == 13 and ft == 0: a(f"v_mul_f32 v224, {NLOG2E}, v224\nds_write_b32 v248, v224 offset:{self.T_U}")
                rdA(n + D)
                if ft in (1, 2):
                    t = ft - 1
                    for j, A in ((0, "v[12:15]"), (1, Q4(x + 4 * t))):
                        d = 48 + 8 * t + 4 * j
                        a(f"v_mfma_f32_16x16x32_bf16 {Q4(d)}, {A}, {Q4(x+4*t)}, {'0' if k == 0 else Q4(d)}")
                        if opt('pa', 1) and j == 0 and pos[0] < len(ops) - WBE: issue()
                        if ft == 2 and j == 0 and k < 15: swaps(k + 1)
                        elif k >= 3 and k not in (9, 12):
                            for _ in range(2):
                                if tail: a(tail.pop(0))
        assert not tail
        self.stamp("h")
        a.region("g1c")
        if not WBE: wait(("w", 3, 6))
        a("s_waitcnt lgkmcnt(0)\ns_barrier")
        issue(opt('wbe0', 4) if WBE else 0)
        for ft in range(4):
            a(f"ds_read_b128 {Q4(16+8*ft)}, v4 offset:{self.T_U + 64*ft}\nds_read_b128 {Q4(20+8*ft)}, v4 offset:{self.T_U + 512 + 64*ft}")
        for t in range(2):
            g = 52 + 8 * t
            a(f"v_cndmask_b32 v{g}, v{g}, v{g+1}, s[20:21]\nv_cndmask_b32 v{g}, v{g}, v{g+2}, s[22:23]\nv_cndmask_b32 v{g}, v{g}, v{g+3}, s[40:41]")
            a(f"ds_bpermute_b32 v{g}, v5, v{g}")
        for t in range(2):
            sm = 48 + 8 * t
            a(f"v_mul_f32 v{sm}, 0x3b000000, v{sm}\nv_mul_f32 v{sm+1}, v{sm}, v{sm}\nv_mov_b32 v{sm+2}, 0x3b000000")
        a("s_waitcnt lgkmcnt(0)")
        for t in range(2):
            sm, g = 48 + 8 * t, 52 + 8 * t
            a(f"v_fma_f32 v{g}, v{g}, v{sm+2}, -v{sm+1}\nv_max_f32 v{g}, 0, v{g}\nv_add_f32 v{g}, 0x3727c5ac, v{g}\nv_rsq_f32 v{sm+3}, v{g}")
        for t in range(2):
            sm, o = 48 + 8 * t, 60 + 2 * t
            a(f"v_mul_f32 v{o+1}, -v{sm}, v{sm+3}\nv_mul_f32 v{o}, v254, v{sm+3}")
        for ft in range(4):
            for t in range(2):
                self.silu_tile(ft, t, 16 + 8 * ft, 20 + 8 * ft, 224 + 4 * t, 192 + 8 * (ft & ~1) + 4 * t + 2 * (ft & 1))
                if WBE and pos[0] < len(ops): issue(4)
                elif EA[0] > 0: side(); EA[0] -= 1; young[0] += 1
                if ft & 1: self.pair_store(ft, t, 252); young[0] += 1
            if ft & 1: a("s_add_u32 s44, s44, 4096")
            if ft == 2 and not WBE:
                for n in range(6): rdB(n)
        assert pos[0] == len(ops)
        a(f"buffer_store_dword v252, v6, {WS}, s46 offen sc1")
        if WBE:
            a(f"s_waitcnt vmcnt({young[0] + 1})\ns_barrier")
            for n in range(6): rdB(n)
        rdB(6)
        self.stamp("h")
        a.region("g1d")
        for k in range(16):
            x = 64 + 8 * k
            for j in range(3):
                n = 3 * k + j
                a(f"s_waitcnt lgkmcnt({min(D - 1, 47 - n)})")
                d = 224 + 8 * j
                a(f"v_mfma_f32_16x16x32_bf16 {Q4(d)}, {Q4(Wr(n))}, {Q4(x)}, {'0' if k == 0 else Q4(d)}")
                if k == 14: a(f"ds_read_b128 {Q4(64+8*j)}, v4 offset:{self.T_U + 64*(4+j)}")
                if n == opt('ht', -1): self.h_touch(0)
                if n % 2 == 0 and nside > 0: side(); nside -= 1
                elif nside == 0 and k >= opt('hk', 8) and self.g2_todo and (n % 2 == 0 or not opt('pb4', 0)):
                    if not self.g2_log: self.g2_run()
                    lim = {8: 6, 9: 6, 10: 10, 11: 10}.get(k, 16 if k < 12 else 99) if False else (6 if k < 8 else 10 if k < 10 else 16 if k < 12 else 99)
                    if len(self.g2_log) < lim:
                        a(self.g2_todo.pop(0)); self.g2_log.append("l")
                a(f"v_mfma_f32_16x16x32_bf16 {Q4(d+4)}, {Q4(Wr(n))}, {Q4(x+4)}, {'0' if k == 0 else Q4(d+4)}")
                if k == 14: a(f"ds_read_b128 {Q4(68+8*j)}, v4 offset:{self.T_U + 512 + 64*(4+j)}")
                rdB(n + D)

    def g1_tail_setup(self):
        T = f"""
        v_lshlrev_b32 v4, 4, v3
        v_lshrrev_b32 v5, 2, v2
        v_lshl_add_u32 v5, v5, 4, v2
        v_lshlrev_b32 v5, 2, v5
        v_and_b32 v6, 3, v1
        v_cmp_eq_u32 s[20:21], 1, v6
        v_cmp_eq_u32 s[22:23], 2, v6
        v_cmp_eq_u32 s[40:41], 3, v6
        s_lshl_b32 s44, s74, 1
        s_lshr_b32 s61, {sWV}, 1
        s_add_u32 s44, s44, s61
        s_lshl_b32 s46, s44, 4
        s_add_u32 s46, s46, s75
        s_lshr_b32 s47, s46, 1
        s_and_b32 s62, {sWV}, 1
        s_lshl_b32 s46, s46, 1
        s_add_u32 s46, s46, s62
        s_lshl_b32 s46, s46, 9
        s_add_u32 s46, s46, {WS_HC}
        s_lshl_b32 s47, s47, 1
        s_add_u32 s47, s47, s62
        s_lshl_b32 s47, s47, 9
        s_and_b32 s63, s75, 1
        s_lshl_b32 s61, s63, 8
        s_add_u32 s47, s47, s61
        s_add_u32 s47, s47, {WS_HM}
        s_mul_i32 s44, s44, 56
        s_lshr_b32 s61, s75, 1
        s_mul_i32 s61, s61, 7
        s_add_u32 s44, s44, s61
        s_lshl_b32 s44, s44, 12
        s_lshl_b32 s61, s62, 11
        s_add_u32 s44, s44, s61
        s_add_u32 s44, s44, {WS_H}
        s_lshl_b32 s61, s63, 9
        s_add_u32 s45, s44, s61
        s_add_u32 s45, s45, {6*4096}
        s_mul_i32 s61, s63, {3*4096}
        s_add_u32 s44, s44, s61
        v_and_b32 v6, 1, v3
        v_lshlrev_b32 v7, 10, v6
        v_lshl_add_u32 v7, v2, 4, v7
        v_lshrrev_b32 v250, 1, v3
        v_lshl_add_u32 v7, v250, 8, v7
        v_lshlrev_b32 v250, 7, v250
        v_lshl_add_u32 v250, v2, 3, v250
        v_lshl_add_u32 v250, v6, 2, v250
        s_lshl_b32 s61, s62, 4
        s_add_u32 s61, s61, 3
        s_add_u32 s63, s62, 5
        v_mul_u32_u24 v6, s63, v6
        v_add_u32 v6, s61, v6
        v_alignbit_b32 v251, s80, s80, v6
        s_mul_i32 s61, s62, 13
        v_mov_b32 v6, s61
        v_alignbit_b32 v252, s80, s80, v6
        v_mov_b32 v253, v252
        v_mov_b32 v254, {NLOG2E}
        v_lshlrev_b32 v6, 2, v1
        """
        return [x.strip() for x in T.split("\n") if x.strip()]

    def g1_epilogue(self, tb):
        a = self.a
        early = self.g2_todo
        def ld(n):
            for _ in range(n):
                if early: a(early.pop(0)); self.g2_log.append("l")
        ld(opt('g2b0', 6))
        a("s_waitcnt lgkmcnt(0)\nv_mov_b32 v184, v249")
        for ft in (6, 4, 5):
            if ft == 4: a.region("g1e1")
            u = 64 + 8 * (ft - 4)
            for t in range(2):
                self.silu_tile(ft, t, u, u + 4, 32 + 4 * t, 40 + 2 * t if ft == 6 else 224 + 4 * t + 2 * (ft & 1))
                ld(3)
                if ft == 5: self.pair_store(ft, t, 253); self.g2_log.append("s")
            if ft == 6:
                a("v_permlane16_swap_b32 v40, v42\nv_permlane16_swap_b32 v41, v43")
                a(f"buffer_store_dwordx4 v[40:43], v7, {WS}, s45 offen sc1")
                a("v_bitop3_b32 v251, v251, v40, v41 bitop3:0x96\nv_bitop3_b32 v251, v251, v42, v43 bitop3:0x96")
                a(f"buffer_store_dword v251, v250, {WS}, s47 offen sc1")
                self.g2_log += ["s", "s"]
        a(f"buffer_store_dword v253, v6, {WS}, s46 offen offset:256 sc1")
        self.g2_log.append("s")
        ld(99)

    def g2_run(self):
        a = self.a
        a(f"""
        s_mul_i32 s78, s76, 56
        s_mul_i32 s61, {sWV}, 14
        s_add_u32 s78, s78, s61
        s_lshl_b32 s78, s78, 12
        s_add_u32 s78, s78, {WS_H}
        s_lshl_b32 s16, s76, 2
        s_add_u32 s16, s16, {sWV}
        s_lshl_b32 s15, s16, 11
        s_add_u32 s15, s15, {WS_HM}
        s_lshl_b32 s16, s16, 12
        s_add_u32 s16, s16, {WS_HC}
        s_mov_b32 s60, s80
        s_mov_b32 s61, s80
        s_lshr_b64 s[62:63], s[60:61], 13
        s_xor_b32 s20, s80, s62
        s_lshr_b64 s[62:63], s[60:61], 3
        s_mov_b32 s21, s62
        s_lshr_b64 s[62:63], s[60:61], 8
        s_xor_b32 s21, s21, s62
        s_lshr_b64 s[62:63], s[60:61], 19
        s_xor_b32 s21, s21, s62
        s_lshr_b64 s[62:63], s[60:61], 25
        s_xor_b32 s21, s21, s62
        s_lshl_b32 s60, {sWV}, 10
        v_add_u32 v12, s60, v8
        v_add_u32 v13, 1024, v12
        v_add_u32 v14, 2048, v12
        v_add_u32 v15, 3072, v12
        v_and_b32 v13, 4095, v13
        v_and_b32 v14, 4095, v14
        v_and_b32 v15, 4095, v15
        v_lshlrev_b32 v9, 3, v1
        s_mov_b32 s19, 0
        """)

    def h_touch(self, late):
        a = self.a
        if not late:
            a(f"""
            s_mul_i32 s17, s76, 56
            s_mul_i32 s61, {sWV}, 14
            s_add_u32 s17, s17, s61
            s_lshl_b32 s17, s17, 12
            s_lshl_b32 s61, s77, 9
            s_add_u32 s17, s17, s61
            s_add_u32 s17, s17, {WS_H}
            v_bfe_u32 v248, v1, 2, 3
            v_lshlrev_b32 v248, 2, v248
            s_mov_b32 s61, 0xba874310
            v_lshrrev_b32 v248, v248, s61
            v_and_b32 v248, 15, v248
            v_lshlrev_b32 v248, 12, v248
            v_and_b32 v249, 3, v1
            v_lshl_add_u32 v248, v249, 7, v248
            buffer_load_dword v255, v248, {WS}, s17 offen sc1
            v_bfe_u32 v248, v1, 2, 3
            v_lshlrev_b32 v248, 2, v248
            s_mov_b32 s61, 0xdddc9652
            v_lshrrev_b32 v248, v248, s61
            v_and_b32 v248, 15, v248
            v_lshlrev_b32 v248, 12, v248
            v_lshl_add_u32 v249, v249, 7, v248
            """)
        else:
            a(f"buffer_load_dword v7, v184, {WS}, s17 offen sc1")

    def g2_plan(self):
        HR = 8
        k0 = lambda cb: 7 * (cb // 2) + 3 * (cb % 2)
        groups = [("a", cb, [k0(cb), k0(cb) + 1]) for cb in range(4)]
        groups += [("b", 0, [2]), ("b", 1, [5]), ("m", 0, [6]), ("b", 2, [9]), ("b", 3, [12]), ("m", 1, [13])]
        order = [k for g in groups for k in g[2]]
        slot = {k: 32 + 16 * ((p + 4) % HR) for p, k in enumerate(order)}
        loads, chk, c = [], [], 88
        for kind, i, ks in groups:
            if kind == "a" and i == 2: c = 160
            p0 = order.index(ks[0])
            if kind == "m":
                chk.append([c, c + 1, c + 2, c + 3])
                for h in range(2):
                    loads.append((p0, None, f"buffer_load_dwordx2 {P(c+2*h)}, v9, {WS}, s15 offen offset:{1024*i + 512*h} sc1"))
                c += 4
            else:
                chk.append([c, c + 1])
                for h in range(2):
                    loads.append((p0, None, f"buffer_load_dword v{c+h}, v6, {WS}, s16 offen offset:{1024*i + 512*h + (256 if kind == 'b' else 0)} sc1"))
                c += 2
            for k in ks:
                for st in range(4):
                    pre = f"s_add_u32 s18, s78, {4096*k}\n" if st == 0 else ""
                    loads.append((order.index(k), (k, st), pre + f"buffer_load_dwordx4 {Q4(slot[k]+4*st)}, v{12+st}, {WS}, s18 offen sc1"))
        self.g2p = (HR, groups, order, slot, loads, chk)
        self.g2_early = [l[2] for l in loads[:opt('g2pre', 20)]]
        self.g2_log = []
        self.g2_todo = list(self.g2_early)

    def g2_body(self):
        a = self.a
        HR, groups, order, slot, loads, chk = self.g2p
        npre = len(self.g2_early)
        merged, it = [], iter(loads[:npre])
        for t in self.g2_log: merged.append(next(it) if t == "l" else (0, None, None))
        loads = merged + loads[npre:]
        nissued = len(merged)
        if opt('ht2', -1) >= 0:
            at = max(nissued, min(i for i, l in enumerate(loads) if l[0] >= opt('ht2', -1) and l[2]))
            loads.insert(at, (loads[at][0], None, f"buffer_load_dword v7, v184, {WS}, s17 offen sc1"))
        keys = [l[1] for l in loads]
        pos = [nissued]
        def issue(maxp):
            if pos[0] < len(loads) and loads[pos[0]][0] <= maxp:
                a(loads[pos[0]][2]); pos[0] += 1
        def wait(key):
            i = keys.index(key)
            while pos[0] <= i: issue(99)
            a(f"s_waitcnt vmcnt({pos[0] - 1 - i})")
        def vsteps(gi):
            x, out = 4 + gi % 2, []
            for j, k in enumerate(groups[gi][2]):
                regs = (list(chk[gi]) if j == 0 else [x]) + [slot[k] + i for i in range(16)]
                L = [("w", (k, 3)), f"v_bitop3_b32 v{x}, v{regs[0]}, v{regs[1]}, v{regs[2]} bitop3:0x96"]
                rest = regs[3:]
                while len(rest) >= 2: L.append(f"v_bitop3_b32 v{x}, v{x}, v{rest.pop(0)}, v{rest.pop(0)} bitop3:0x96")
                if rest: L.append(f"v_xor_b32 v{x}, v{x}, v{rest.pop(0)}")
                out.append(L)
            out[-1].append(f"v_cmp_ne_u32 vcc, {'s21' if groups[gi][0] == 'm' else 's20'}, v{x}\ns_cbranch_vccnz L_g2_retry")
            return out
        def run(t):
            if isinstance(t, tuple): wait(t[1])
            else: a(t)
        tail = self.g2_tail_setup()
        if opt('force', 0): a(f"s_xor_b32 s{19 + opt('force', 0)}, s{19 + opt('force', 0)}, 1")
        a("L_g2_go:")
        a.fence()
        a(f"s_waitcnt vmcnt({nissued - 1 - max(i for i, t in enumerate(self.g2_log) if t == 'e')})")
        self.g2_epi_pre(0)
        for L in vsteps(0):
            for t in L: run(t)
        for gi, (kind, _, ks) in enumerate(groups):
            nxt = vsteps(gi + 1) if gi + 1 < len(groups) else []
            nxt = [[] for _ in range(len(ks) - len(nxt))] + nxt
            for j, k in enumerate(ks):
                p = order.index(k)
                if p in (5, 10): a.region("g2" + "abc"[p // 5])
                self.stamp("g")
                cur = nxt[j]
                last = p == 13
                wr = lambda st: [f"ds_write_b128 v{127+st}, {Q4(192+16*st+4*dt)} offset:{1024*dt}" for dt in range(4)]
                for si, st in enumerate((1, 2, 3, 0) if last else range(4)):
                    pend = wr(si - 1) if last and si >= 2 else []
                    for dt in range(4):
                        d = 192 + 16 * st + 4 * dt
                        a(f"v_mfma_f32_16x16x32_bf16 {Q4(d)}, a[{16*k+4*dt}:{16*k+4*dt+3}], {Q4(slot[k]+4*st)}, {'0' if p == 0 else Q4(d)}")
                        i = 4 * si + dt
                        if i in {4: (0, 4, 8, 12), 5: (0, 3, 6, 10, 13), 6: (0, 3, 6, 9, 12, 15)}[opt('g2n', 5)]: issue(p + HR - 1)
                        if pend: a(pend.pop(0))
                        if i >= 9:
                            for _ in range(2):
                                if cur: run(cur.pop(0))
                        elif p >= 12:
                            for _ in range(3):
                                if tail: a(tail.pop(0))
                if last:
                    assert not tail
                    for t in wr(3): a(t)
                assert not cur
        assert pos[0] == len(loads)

    def g2_tail_setup(self):
        rb = self.WB
        L = []
        for j in range(1, 4):
            L += [f"s_add_u32 s60, {sWV}, {j} | s_and_b32 s60, s60, 3 | s_mul_i32 s60, s60, 12288 | s_add_u32 s60, s60, {rb + 4096*(j-1)} | v_lshl_add_u32 v{127+j}, v1, 4, s60"]
        L += [f"s_mul_i32 s60, {sWV}, 12288 | s_add_u32 s60, s60, {rb} | v_lshl_add_u32 v131, v1, 4, s60",
              "v_lshlrev_b32 v132, 10, v2", "v_lshl_add_u32 v132, v3, 4, v132",
              f"s_lshl_b32 s22, s76, 16 | s_lshl_b32 s61, {sWV}, 14 | s_add_u32 s22, s22, s61 | s_lshl_b32 s61, s77, 7 | s_add_u32 s22, s22, s61"]
        L += [f"v_accvgpr_read_b32 v{96+i}, a{224+i}" for i in range(16)]
        for dt in range(4):
            x = 20 + 2 * dt
            L += [f"v_lshlrev_b32 v{112+4*dt}, 16, v{x}", f"v_and_b32 v{113+4*dt}, 0xffff0000, v{x}",
                  f"v_lshlrev_b32 v{114+4*dt}, 16, v{x+1}", f"v_and_b32 v{115+4*dt}, 0xffff0000, v{x+1}"]
        return [t.replace(" | ", "\n") for t in L]

    def g2_epilogue(self, rb, tb):
        a = self.a
        a("s_waitcnt lgkmcnt(0)\ns_barrier")
        for dt in range(4):
            for src in range(3):
                a(f"ds_read_b128 {Q4(136 + 12*dt + 4*src)}, v131 offset:{4096*src + 1024*dt}")
        for dt in range(4):
            r, o = 136 + 12 * dt, 192 + 4 * dt
            a(f"s_waitcnt lgkmcnt({9 - 3*dt})")
            for h in range(2): a(f"v_pk_add_f32 {P(r+2*h)}, {P(r+2*h)}, {P(r+4+2*h)}\nv_pk_add_f32 {P(o+2*h)}, {P(o+2*h)}, {P(r+8+2*h)}")
            for h in range(2): a(f"v_pk_add_f32 {P(r+2*h)}, {P(r+2*h)}, {P(o+2*h)}")
            for h in range(2): a(f"v_pk_fma_f32 {P(r+2*h)}, {P(r+2*h)}, {P(96+4*dt+2*h)}, {P(112+4*dt+2*h)}")
            for h in range(2): a(f"v_cvt_pk_bf16_f32 v{80+2*dt+h}, v{r+2*h}, v{r+2*h+1}")
            if dt == 1 and self.diag == "lsb":
                self.stamp("*")
                reg = lambda i: 82 + i if i < 15 else 85 + i
                a("s_cmp_lg_u32 s2, 100\ns_cbranch_scc1 L_nolsb")
                for j in range(4):
                    for g in range(4):
                        i = min(4 * j + g + 1, self.nst - 1)
                        a(f"s_sub_u32 s60, s{reg(i)}, s82\nv_cmp_eq_u32 vcc, {g}, v3\nv_mov_b32 v5, s60\nv_cndmask_b32 v4, v4, v5, vcc")
                    a(f"v_lshrrev_b32 v4, v2, v4\nv_and_b32 v4, 1, v4\nv_and_b32 v{80+j}, -2, v{80+j}\nv_or_b32 v{80+j}, v{80+j}, v4")
                a("L_nolsb:")
                self.diag = False
            if dt % 2 == 1:
                a(f"buffer_store_dwordx4 {Q4(80+2*(dt-1))}, v132, {OUT}, s22 offen offset:{32*(dt-1)}{self.OUTM}")

    def g2_retry(self):
        self.a(f"""
        L_g2_retry:
        s_waitcnt vmcnt(0)
        s_add_u32 s19, s19, 1
        s_cmp_gt_u32 s19, {SPIN}
        s_cbranch_scc1 L_g2_giveup
        s_sleep {opt('g2sleep', 2)}
        """)
        if opt('force', 0): self.a(f"s_cmp_eq_u32 s19, 2\ns_cselect_b32 s60, 1, 0\ns_xor_b32 s{19 + opt('force', 0)}, s{19 + opt('force', 0)}, s60")
        for t in self.g2_early: self.a(t)
        self.a("s_waitcnt vmcnt(0)\ns_branch L_g2_go")

def build_fused2(diag=False):
    g = G2(sc=True, diag=diag)
    a = g.a
    S = g.stamp
    kn = NAME + "_kernel"
    hdr = ["; @launch grid=(256,1,1) block=(256,1,1) lds=163840"]
    a.raw('.amdgcn_target "amdgcn-amd-amdhsa--gfx950"\n.text')
    g.entry(kn, list(range(13)), pre=g.code_prefetch if opt('cpf', 1) else None)
    a(f"v_mov_b32 v4, {WS_TAG}\nbuffer_load_dwordx2 v[254:255], v4, {WS}, 0 offen sc1")
    a(f"s_cmp_ge_u32 {sWV}, 2\ns_cbranch_scc1 L_role_b")
    n0 = g.nst
    g.role_a()
    if HINT: g.flag_a()
    QP = opt('qp', 2)
    if QP == 0: g.q_rows()
    a(f"s_waitcnt vmcnt({(9 if HINT else 4) + (8 if QP == 0 else 0)})\ns_branch L_join1\nL_role_b:")
    a.fence()
    g.nst = n0
    a.region("end")
    a(f"s_sub_u32 s6, {sWV}, 2")
    if opt('tlb', 1):
        a(f"""
        v_min_u32 v4, 14, v1
        v_lshlrev_b32 v4, 21, v4
        v_add_u32 v4, {2*MB - 128}, v4
        buffer_load_dword v252, v4, {WS}, 0 offen
        v_mov_b32 v4, 0
        buffer_load_dword v251, v4, {OUT}, 0 offen
        buffer_load_dword v250, v4, {W1}, 0 offen
        buffer_load_dword v249, v4, {W2}, 0 offen
        """)
    BF = opt('bf', 0)
    if BF:
        g.c_ids()
        g.filter_load()
        g.role_b_loads_gemv()
        g.role_b_loads2()
        g.g1_ids(); g.g2_ids()
        g.warm((2, ["brest0", "g1a"]), (3, ["brest1", "cepi", "prep1", "g1b"])); S()
        a("s_waitcnt vmcnt(13)"); S(); S()
    else:
        g.role_b_loads_gemv()
        g.role_b_loads2()
        g.c_ids(); g.g1_ids(); g.g2_ids()
        if opt('warm', 1) == 1: g.warm((2, ["brest0", "g1a"]), (3, ["brest1", "cepi", "prep1", "g1b"]))
        if opt('warm', 1) == 3: g.warm((2, ["brest0"]), (3, ["brest1"]))
        S()
        a("v_and_b32 v2, 15, v1\nv_lshrrev_b32 v3, 4, v1")
        a.region("brest0")
        g.n_after = 8 if W2L else 12
        def after():
            g.filter_load()
            if not W2L: g.w2_unit_load()
        g.role_b_rest(0, after_wait=after); S()
        a(f"s_waitcnt vmcnt({2 if W2L else 6})"); S()
    a("L_join1:")
    a.fence()
    a.region("fprep")
    g.filter_copies(); S()
    def mid():
        if HINT: return
        a(f"s_cmp_ge_u32 {sWV}, 2\ns_cbranch_scc1 L_mid_b\ns_waitcnt vmcnt({8 if QP == 0 else 0})")
        g.flag_a()
        if BF and not W2L:
            a("s_branch L_mid_done\nL_mid_b:")
            a("v_mov_b32 v250, v5")
            g.w2_unit_load()
            a("v_mov_b32 v5, v250\nL_mid_done:")
            return
        if QP == 1:
            a("v_mov_b32 v250, v5")
            g.q_rows()
            a("v_mov_b32 v5, v250")
        a("L_mid_b:")
    g.filter_prep(mid); S()
    a.region("ufetch")
    st = dict()
    a(f"s_cmp_ge_u32 {sWV}, 2\ns_cbranch_scc1 L_role_b2")
    if opt('q1', 0):
        a(f"s_cmp_eq_u32 {sWV}, 0\ns_cbranch_scc1 L_join2")
        g.q_rows("0"); g.q_rows("1")
    else:
        g.q_rows()
    a("s_branch L_join2\nL_role_b2:")
    a.fence()
    if BF:
        a.region("brest0")
        g.n_after = 0 if W2L else 4
        g.role_b_rest(0 if W2L else 4)
    if not W2L: g.w2_unit_pack(2)
    if opt('fm', 1) < 0: g.flag_m(0)
    a("L_join2:")
    a.region("addr")
    a.fence()
    g.u_addr()
    g.pre_conv()
    if opt('warm', 1) >= 2: g.warm((1, ["conv0", "cepi"]), (2, ["conv1", "prep1"]), (3, ["g1a", "g1b"]))
    g.u_wait()
    S(); S("c")
    a("s_waitcnt lgkmcnt(0)\ns_barrier")
    g.u_fetch(); S()
    w2 = dict(n=0)
    def side():
        g.g2_w2_one(w2['n']); w2['n'] += 1
    a.region("conv0")
    log = []
    younger = lambda tag: len(log) - 1 - max(i for i, t in enumerate(log) if t == tag)
    modl = g.mod_load_list(32)
    wl = g.w_stream(32, 0)
    st.update(hold=0, w=wl[wl.index("WAIT"):], q=[('m', t) for t in modl] + [('e', t) for t in g.epi_load_list()])
    Q0 = opt('q0', 2)
    def hook(n):
        if n == 40: a.region("conv1")
        if n in (0, 8, 16, 24, 32, 40, 50, 60, 70, 79): S("c")
        if n >= Q0 and n % 2 == 0 and st['q']:
            tg, t = st['q'].pop(0)
            log.append(tg); a(t)
        for _ in range(opt('wr', 2)):
            if not st['w'] or st['hold'] > n: break
            t = st['w'][0]
            if t == "WAIT":
                if n < Q0 + opt('ww', 26): break
                a(f"s_waitcnt vmcnt({younger('m')})")
            elif t == "VERIFY":
                g.verify("w", [33 + 2*i for i in range(8)], 24, modl)
            elif t == "GAP":
                assert n <= 64
                st['hold'] = n + 8
            else:
                a(t.replace(" | ", "\n")); log.extend('s' * t.count("buffer_store"))
            st['w'].pop(0)
        if W2L:
            U0, U1, U2 = opt('u0', 1), opt('u1', 33), opt('u2', 67)
            if n in (U0, U0 + 2):
                a(f"s_add_u32 m0, s44, {512*(n-U0)}\nbuffer_load_dwordx4 v169, {W2}, {'s23' if n == U0 else 's22'} offen{g.NT} lds"); log.append('u')
            if n == U1:
                a(f"s_waitcnt vmcnt({younger('u')})")
                a("ds_read_b64_tr_b16 v[128:129], v174\nds_read_b64_tr_b16 v[130:131], v175\nds_read_b64_tr_b16 v[132:133], v174 offset:8\nds_read_b64_tr_b16 v[134:135], v175 offset:8")
            if n in (U1 + 8, U1 + 10):
                j = (n - U1 - 8) // 2
                a(f"buffer_store_dwordx4 {Q4(128+4*j)}, v9, {WS}, s45 offen offset:{1024*j} sc1"); log.append('p')
            if n == U2:
                a(f"s_waitcnt vmcnt({younger('p')})")
                g.flag_store("s46", 1, 3, 136); log.append('s')
        if n == opt('fm', 1) and not W2L:
            a(f"s_cmp_lt_u32 {sWV}, 2\ns_cbranch_scc1 L_skip_m")
            g.flag_m(len(log) + 8)
            a("L_skip_m:")
        WM = opt('wm', 40)
        if W2L: WM = 999
        if n == max(0, WM - 14):
            a(f"buffer_load_dwordx2 v[252:253], v248, {WS}, 0 offen sc1"); log.append('f')
        if n == WM: g.poll("M", first_issued=True, va="v248", vd=252, later=younger('f'))
        if n >= WM and n % 2 == 1 and w2['n'] < opt('w2conv', 18):
            side(); log.append('w')
    g.conv_main(hook); S()
    assert not st['q']
    a.region("cepi")
    print("w_stream left after conv:", len(st['w']), file=sys.stderr)
    for t in st['w']:
        assert t not in ("WAIT", "GAP", "VERIFY")
        a(t.replace(" | ", "\n")); log.extend('s' * t.count("buffer_store"))
    a(f"s_waitcnt vmcnt({younger('e')})"); S("c")
    g.conv_epilogue(); S("c")
    if W2L: a(f"buffer_load_dwordx2 v[252:253], v248, {WS}, 0 offen sc1")
    a.region("prep1")
    EARLY = opt('early', 0)
    if EARLY:
        a(f"""
        s_and_b32 s60, s2, 15
        s_lshl_b32 s60, s60, 4
        s_lshr_b32 s61, s2, 4
        s_add_u32 s60, s60, s61
        s_lshl_b32 s60, s60, 2
        s_add_u32 s60, s60, {sWV}
        s_lshl_b32 s60, s60, {FL}
        s_add_u32 s60, s60, {FLAG_W}
        s_and_b32 s61, s2, 8
        s_lshl_b32 s61, s61, {7 + FL}
        s_add_u32 s60, s60, s61
        s_waitcnt vmcnt(2)
        """)
        g.flag_store("s60", 4, 11 + FL, 4)
    g.signal_all(FLAG_2, 8, 2); S()
    if W2L: g.poll("M", va="v248", vd=252, first_issued=True, later=1)
    g.g1_addr()
    if EARLY:
        a(f"""
        s_lshl_b32 s60, {sX}, 4
        s_add_u32 s60, s60, s75
        s_lshl_b32 s60, s60, {6 + FL}
        s_add_u32 s60, s60, {FLAG_W}
        v_lshl_add_u32 v4, v1, {FL}, s60
        """)
        a(f"buffer_load_dwordx2 v[6:7], v4, {WS}, 0 offen sc1")
        n0 = w2['n']
        while w2['n'] < 56 - opt('w2b', 12) - opt('w2a', 14): side()
        g.poll("W", first_issued=True, later=w2['n'] - n0)
        g.g1_run(None, 0, early="weights")
    else:
        while w2['n'] < 56 - opt('w2e3', 0) - opt('w2b', 12) - opt('ea', 0): side()
    g.warm((0, ["g1c"]), (1, ["g1d"]), (2, ["g1e0", "g2a", "g2b"]), (3, ["g1e1", "g2c", "g2e"])); S()
    a(f"""
    s_lshl_b32 s60, {sX}, {8 + FL}
    s_add_u32 s60, s60, {FLAG_2}
    v_lshl_add_u32 v4, v0, {FL}, s60
    """)
    a.region("g1a")
    g.poll("2")
    a("s_barrier"); S(); S("h")
    g.g2_plan()
    g.g1_run(side, opt('w2b', 12), EARLY, opt('w2a', 14))
    S()
    S("h")
    a.region("g1e0")
    assert w2['n'] == 56
    if not g.g2_log: g.g2_run()
    g.g2_epi_load()
    g.g2_log += ["e"] * 8
    g.g1_epilogue(G2.T_U - 4096)
    S("h")
    a("s_barrier"); S()
    a.region("g2a")
    S(); S("g"); S("h")
    g.g2_body(); S(); S("h")
    a("L_g2_giveup:")
    if diag and opt('cnt', 0):
        a(f"s_lshl_b32 s60, s2, 2\ns_add_u32 s60, s60, {sWV}\ns_lshl_b32 s60, s60, 7\ns_add_u32 s60, s60, {WS_DIAG + 124}\nv_mov_b32 v4, s60\nv_mov_b32 v5, s19\nbuffer_store_dword v5, v4, {WS}, 0 offen")
    a.region("g2e")
    g.g2_epilogue(G2.WB, 0)
    a.region("end")
    g.tag_update()
    g.exit(kn)
    g.g2_retry()
    a("L_warm_ret:\ns_setpc_b64 s[98:99]")
    a.raw('.section .rodata,"a"')
    a.raw(desc(kn, 512, 256))
    txt, size = add_pads(a.text(), opt('pad', 256))
    print("code bytes", size, file=sys.stderr)
    return "\n".join(hdr) + "\n" + txt

if __name__ == "__main__":
    diag = sys.argv[2] if len(sys.argv) > 2 else False
    open(sys.argv[1], "w").write(build_fused2(diag))
```

```python
import sys, os
OPT = dict(kv.split('=') for kv in os.environ.get('OPT', '').split(',') if kv)
opt = lambda k, d: int(OPT.get(k, d))
from asmlib import Asm, desc, add_pads
from gen import *

WS_W1P, WS_UP = 21 * MB, 23 * MB
WS_HC, WS_HM, WS_TAG = 26 * MB, 27 * MB, 28 * MB
MODP = 3072 * 8
FLAG_A, FLAG_B, FLAG_2, FLAG_3 = WS_FLAG, WS_FLAG + MB, WS_FLAG + 2 * MB, WS_FLAG + 3 * MB
FLAG_W = 25 * MB
HINT = opt('hint', 0)
W2L = opt('w2late', 0)
FL = opt('fl', 7)
P = lambda r: f"v[{r}:{r+1}]"
Q4 = lambda r: f"v[{r}:{r+3}]"

class G2(G):
    NT = " nt" if opt('nt', 1) else ""
    OUTM = ["", " sc1", " nt", " sc0 sc1"][opt('outm', 0)]
    NTF = " nt" if opt('ntf', 1) else ""
    NTQ = " nt" if opt('ntq', 0) else ""
    NTW1 = " nt" if opt('ntw1', 0) else ""
    FB, FSZ, WB = 1536, 7584, 32768
    XI, XI_RS = 1536, 7616
    T_GB, T_U, T_UP = 1536 + 2560, 1536 + 4608, 1536 + 7584 + 2560

    def entry2(self, name):
        a = self.a
        a.raw(f".globl {name}\n.p2align 8\n.type {name},@function")
        a.label(name)
        a.fence()
        a(f"s_cmp_ge_u32 s2, 256\ns_cbranch_scc1 L_end_{name}")
        self.stamp("*")
        if opt('cpf', 1) == 2: self.code_prefetch()
        for i in (1, 2, 3, 8, 9, 0, 11, 4, 5, 6, 7, 10):
            r, off, n = SRD_INFO[i]
            a(f"s_load_dwordx2 s[{r}:{r+1}], s[0:1], {off}")
        if opt('cpf', 1) == 1: self.code_prefetch()
        a(f"""
        v_lshrrev_b32 v2, 6, v0
        v_and_b32 v1, 63, v0
        s_mov_b32 s14, {2*MB}
        v_readfirstlane_b32 {sWV}, v2
        s_mov_b32 s15, 0x00020000
        s_and_b32 {sX}, s2, 7
        s_lshr_b32 {sM}, s2, 3
        """)

    def srd_words(self, which):
        for i in which:
            r, off, n = SRD_INFO[i]
            size = "s14" if n == 2 * MB else str(n)
            self.a(f"{'s_movk_i32' if n <= 4096 else 's_mov_b32'} s{r+2}, {size}\ns_mov_b32 s{r+3}, s15")

    def code_prefetch2(self):
        self.a(f"""
        s_getpc_b64 s[60:61]
        L_pc:
        s_sub_u32 s60, s60, L_pc-{NAME}_kernel
        s_subb_u32 s61, s61, 0
        v_lshlrev_b32 v4, 7, v0
        v_subrev_u32 v4, 16384, v4
        v_add_u32 v6, 16384, v4
        v_min_u32 v6, L_warm_ret-{NAME}_kernel, v6
        v_mov_b32 v5, s61
        v_add_co_u32 v4, vcc, s60, v4
        v_addc_co_u32 v5, vcc, 0, v5, vcc
        global_load_dword v253, v[4:5], off
        v_mov_b32 v7, s61
        v_add_co_u32 v6, vcc, s60, v6
        v_addc_co_u32 v7, vcc, 0, v7, vcc
        global_load_dword v252, v[6:7], off
        """)

    def code_prefetch(self):
        self.a("""
        s_getpc_b64 s[60:61]
        L_pc:
        v_lshlrev_b32 v4, 7, v0
        v_min_u32 v4, L_warm_ret-L_pc, v4
        v_mov_b32 v5, s61
        v_add_co_u32 v4, vcc, s60, v4
        v_addc_co_u32 v5, vcc, 0, v5, vcc
        global_load_dword v253, v[4:5], off
        """)

    def warm(self, *plans):
        if not opt('warm', 1): return
        a = self.a
        self.nwarm = getattr(self, 'nwarm', 0) + 1
        a("s_mov_b64 exec, 0")
        for w, regs in plans:
            lab = f"L_w{self.nwarm}_{w}"
            a(f"s_cmp_lg_u32 {sWV}, {w}\ns_cbranch_scc1 {lab}")
            for r in regs: a(f"s_call_b64 s[98:99], L_reg_{r}")
            a(f"{lab}:")
        a("s_mov_b64 exec, -1")

    def tag_ready(self):
        self.a("v_readfirstlane_b32 s80, v254\nv_readfirstlane_b32 s81, v255\ns_add_u32 s80, s80, 0x9e3779b9\ns_add_u32 s81, s81, 0x7f4a7c15")

    def tag_update(self):
        self.a(f"""
        s_or_b32 s60, s2, {sWV}
        s_cmp_lg_u32 s60, 0
        s_cbranch_scc1 L_tag_done
        v_mov_b32 v4, {WS_TAG}
        v_mov_b32 v6, s80
        v_mov_b32 v7, s81
        s_mov_b64 exec, 1
        buffer_store_dwordx2 v[6:7], v4, {WS}, 0 offen
        L_tag_done:
        """)

    def nonce_issue(self, b):
        self.a(f"v_mov_b32 v{b+2}, 0\nbuffer_load_dwordx2 v[{b}:{b+1}], v{b+2}, {DBG}, 0 offen sc1")

    def nonce_finish(self, tag, b):
        self.a(f"""
        s_mov_b32 s62, 0
        L_nonce_{tag}:
        s_waitcnt vmcnt(0)
        v_readfirstlane_b32 s80, v{b}
        v_readfirstlane_b32 s81, v{b+1}
        s_add_u32 s62, s62, 1
        s_cmp_lg_u32 s81, 0
        s_cbranch_scc1 L_nonce_{tag}_ok
        s_cmp_gt_u32 s62, {SPIN}
        s_cbranch_scc1 L_nonce_{tag}_ok
        v_mov_b32 v{b+2}, 0
        buffer_load_dwordx2 v[{b}:{b+1}], v{b+2}, {DBG}, 0 offen sc1
        s_branch L_nonce_{tag}
        L_nonce_{tag}_ok:
        """)

    def flag_store(self, soff, replicas, rstride_log2, b=4):
        self.a(f"""
        v_lshl_add_u32 v{b+2}, v1, {rstride_log2}, {soff}
        v_mov_b32 v{b}, s80
        v_mov_b32 v{b+1}, s81
        s_mov_b64 exec, {(1 << replicas) - 1}
        buffer_store_dwordx2 v[{b}:{b+1}], v{b+2}, {WS}, 0 offen sc1
        s_mov_b64 exec, -1
        """)

    def wide_flag_load(self, va, vd):
        return (f"buffer_load_dwordx2 v[{vd}:{vd+1}], {va}, {WS}, 0 offen sc1\n"
                f"buffer_load_dwordx2 v[{vd+2}:{vd+3}], {va}, {WS}, 0 offen offset:{1 << FL} sc1")

    def verify(self, name, tags, t0, reload):
        a = self.a
        if opt('force', 0): a(f"v_mov_b32 v{tags[-1]}, 0\nv_mov_b32 v{tags[-1]-1}, 0")
        a(f"s_mov_b32 s62, 0\nL_ver_{name}:")
        for op, d in (("max", t0), ("min", t0 + 1)):
            rest = list(tags)
            cur = rest.pop(0)
            while rest:
                if len(rest) >= 2: a(f"v_{op}3_u32 v{d}, v{cur}, v{rest.pop(0)}, v{rest.pop(0)}")
                else: a(f"v_{op}_u32 v{d}, v{cur}, v{rest.pop(0)}")
                cur = d
            if cur != d: a(f"v_mov_b32 v{d}, v{cur}")
        a(f"""
        v_cmp_ne_u32 vcc, s80, v{t0}
        v_cmp_ne_u32 s[60:61], s80, v{t0+1}
        s_or_b64 vcc, vcc, s[60:61]
        s_cbranch_vccz L_ver_{name}_ok
        s_add_u32 s62, s62, 1
        s_cmp_gt_u32 s62, {SPIN}
        s_cbranch_scc1 L_ver_{name}_ok
        """)
        for t in reload: a(t)
        a(f"s_waitcnt vmcnt(0)\ns_branch L_ver_{name}\nL_ver_{name}_ok:")

    def poll(self, tag, wide=False, first_issued=False, va="v4", vd=6, later=0):
        a = self.a
        ld = (self.wide_flag_load(va, vd) if wide else
              f"buffer_load_dwordx2 v[{vd}:{vd+1}], {va}, {WS}, 0 offen sc1")
        a("s_mov_b32 s62, 0")
        if first_issued:
            a(f"s_waitcnt vmcnt({later})\ns_branch L_poll_{tag}_chk")
        a(f"L_poll_{tag}:\n{ld}\ns_waitcnt vmcnt(0)\nL_poll_{tag}_chk:")
        a(f"v_cmp_ne_u64 vcc, s[80:81], v[{vd}:{vd+1}]")
        if wide:
            a(f"v_cmp_ne_u64 s[60:61], s[80:81], v[{vd+2}:{vd+3}]\ns_or_b64 vcc, vcc, s[60:61]")
        a(f"""
        s_add_u32 s62, s62, 1
        s_cbranch_vccz L_poll_{tag}_ok
        s_cmp_gt_u32 s62, {SPIN}
        s_cbranch_scc1 L_poll_{tag}_ok
        s_sleep {opt('sleep', 6)}
        s_branch L_poll_{tag}
        L_poll_{tag}_ok:
        """)

    def tile_off(self, h):
        self.a(f"""
        s_lshl_b32 s60, {sM}, 16
        s_lshl_b32 s61, {sX}, 7
        s_add_u32 s60, s60, s61
        s_lshl_b32 s61, {h}, 15
        s_add_u32 s60, s60, s61
        v_lshrrev_b32 v8, 4, v1
        v_and_b32 v9, 15, v1
        v_lshlrev_b32 v2, 13, v8
        v_lshl_add_u32 v2, v9, 3, v2
        v_add_u32 v2, s60, v2
        v_add_u32 v5, 4096, v2
        """)

    def role_a(self):
        a = self.a
        self.tile_off(sWV)
        self.srd_words((2, 3))
        a(f"""
        v_subrev_u32 v3, 3072, v2
        s_lshl_b32 s62, {sX}, 9
        v_lshl_add_u32 v56, v9, 5, s62
        s_waitcnt lgkmcnt(0)
        """)
        self.stamp("s")
        for j in range(11):
            base, off = ("v3", j * 1024) if j < 3 else ("v2", (j - 3) * 1024) if j < 7 else ("v5", (j - 7) * 1024)
            a(f"buffer_load_dwordx2 {P(10+2*j)}, {base}, {K}, 0 offen offset:{off}{self.NT}")
        for j in range(8):
            base, off = ("v2", j * 1024) if j < 4 else ("v5", (j - 4) * 1024)
            a(f"buffer_load_dwordx2 {P(32+2*j)}, {base}, {V}, 0 offen offset:{off}{self.NT}")
        a(f"buffer_load_dwordx4 v[48:51], v56, {SK}, 0 offen\nbuffer_load_dwordx4 v[52:55], v56, {SK}, 0 offen offset:16")
        self.srd_words((11, 4, 0, 5, 6, 7, 10))
        a(f"v_mov_b32 v4, {WS_TAG}\nbuffer_load_dwordx2 v[254:255], v4, {WS}, 0 offen sc1")
        self.stamp("s")
        a(f"""
        s_lshl_b32 s60, {sX}, {18 + HINT}
        s_lshl_b32 s61, {sM}, {7 + HINT}
        s_sub_u32 s60, s60, s61
        s_lshl_b32 s61, {sWV}, {6 + HINT}
        s_sub_u32 s60, s60, s61
        s_add_u32 s60, s60, {WS_KVT + 63*(64 << HINT)}
        v_lshlrev_b32 v142, {14 + HINT}, v9
        v_add_u32 v142, s60, v142
        v_sub_u32 v56, 3, v8
        v_lshl_add_u32 v142, v56, 4, v142
        s_movk_i32 s64, {4096 << HINT}
        s_movk_i32 s65, {8192 << HINT}
        s_movk_i32 s66, {12288 << HINT}
        """)
        self.c_ids()
        self.filter_load()
        self.g1_ids(); self.g2_ids()
        self.stamp("s")
        if opt('warm', 1) == 1: self.warm((0, ["kv0", "fprep", "ufetch", "conv0"]), (1, ["kv1", "addr", "conv1"]))
        if opt('warm', 1) == 3: self.warm((0, ["kv0", "fprep"]), (1, ["kv1", "ufetch", "addr"]))
        self.stamp(); self.stamp("s")
        a("s_waitcnt vmcnt(8)")
        self.tag_ready()
        self.stamp(); self.stamp("s")
        for p in range(2):
            a.region(f"kv{p}")
            s0, s1 = 48 + 4 * p, 50 + 4 * p
            a(f"""
            v_lshlrev_b32 v102, 16, v{s0}
            v_lshlrev_b32 v103, 16, v{s1}
            v_and_b32 v104, 0xffff0000, v{s0}
            v_and_b32 v105, 0xffff0000, v{s1}
            v_lshlrev_b32 v106, 16, v{s0+1}
            v_lshlrev_b32 v107, 16, v{s1+1}
            v_and_b32 v108, 0xffff0000, v{s0+1}
            v_and_b32 v109, 0xffff0000, v{s1+1}
            """)
            for j in range(11):
                a(f"v_lshlrev_b32 v{80+2*j}, 16, v{10+2*j+p}\nv_and_b32 v{81+2*j}, 0xffff0000, v{10+2*j+p}")
            for i in range(8):
                a(f"v_lshlrev_b32 v{126+2*i}, 16, v{32+2*i+p}\nv_and_b32 v{127+2*i}, 0xffff0000, v{32+2*i+p}")
            for i in range(8): a(f"v_pk_mul_f32 {P(110+2*i)}, {P(80+2*i)}, {P(108)}")
            for i in range(8): a(f"v_pk_fma_f32 {P(110+2*i)}, {P(82+2*i)}, {P(106)}, {P(110+2*i)}")
            for i in range(8): a(f"v_pk_fma_f32 {P(110+2*i)}, {P(84+2*i)}, {P(104)}, {P(110+2*i)}")
            for i in range(8): a(f"v_pk_fma_f32 {P(110+2*i)}, {P(86+2*i)}, {P(102)}, {P(110+2*i)}")
            for i in range(8): a(f"v_pk_mul_f32 {P(110+2*i)}, {P(110+2*i)}, {P(126+2*i)}")
            o = 144 + 8 * p
            for j in range(4):
                a(f"v_cvt_pk_bf16_f32 v{o+j}, v{110+2*(7-2*j)}, v{110+2*(6-2*j)}")
                a(f"v_cvt_pk_bf16_f32 v{o+4+j}, v{111+2*(7-2*j)}, v{111+2*(6-2*j)}")
            so = ("0", "s64") if p == 0 else ("s65", "s66")
            a(f"buffer_store_dwordx4 {Q4(o)}, v142, {WS}, {so[0]} offen sc1\nbuffer_store_dwordx4 {Q4(o+4)}, v142, {WS}, {so[1]} offen sc1")
            for c in range(2 * HINT):
                r, x = o + 4 * c, 56 + 2 * p + c
                a(f"v_bitop3_b32 v{x}, v{r}, v{r+1}, v{r+2} bitop3:0x96\nv_xor_b32 v{x}, v{x}, v{r+3}")
        for sw in (("16", "32") if HINT else ()):
            for c in range(4): a(f"v_mov_b32 v{60+c}, v{56+c}")
            for c in range(4): a(f"v_permlane{sw}_swap_b32 v{56+c}, v{60+c}")
            for c in range(4): a(f"v_xor_b32 v{56+c}, v{56+c}, v{60+c}" if sw == "16" else f"v_bitop3_b32 v{56+c}, v{56+c}, v{60+c}, s80 bitop3:0x96")
        for so in (("0", "s64", "s65", "s66") if HINT else ()): a(f"buffer_store_dwordx4 v[56:59], v142, {WS}, {so} offen offset:64 sc1")
        self.stamp()

    def w1_touch(self, j):
        self.a(f"""
        s_lshl_b32 s60, {sM}, 1
        s_add_u32 s60, s60, {sWV}
        s_mul_i32 s60, s60, {8*3584}
        s_and_b32 s61, {sX}, 1
        s_mul_i32 s61, s61, 1792
        s_add_u32 s60, s60, s61
        s_movk_i32 s61, 4682
        v_add_u32 v250, {64*j}, v1
        v_min_u32 v250, 111, v250
        v_mul_u32_u24 v251, s61, v250
        v_lshrrev_b32 v251, 16, v251
        v_mul_u32_u24 v251, {3584 - 14*128}, v251
        v_lshl_add_u32 v251, v250, 7, v251
        buffer_load_dword v{248+j}, v251, {W1}, s60 offen{self.NTW1}
        """)

    def flag_a(self):
        a = self.a
        a(f"""
        s_lshl_b32 s60, {sX}, 5
        s_add_u32 s60, s60, {sM}
        s_lshl_b32 s60, s60, 1
        s_add_u32 s60, s60, {sWV}
        s_lshl_b32 s60, s60, {self.FA_LOG}
        s_add_u32 s60, s60, {FLAG_A}
        """)
        self.flag_store("s60", 1, 3, 250)
    FA_LOG = FL

    def filter_load(self):
        a = self.a
        a("s_lshl_b32 s60, s68, 12\nv_lshl_add_u32 v4, v1, 4, s60")
        for i in range(4):
            r = 176 + 8 * i
            a(f"buffer_load_dwordx4 {Q4(r)}, v4, {FK}, 0 offen offset:{1024*i}{self.NTF}")
            a(f"buffer_load_dwordx2 {P(r+4)}, v4, {FK}, 0 offen offset:{1024*i+16}{self.NTF}")

    def role_b_loads(self):
        a = self.a
        a(f"s_sub_u32 s6, {sWV}, 2")
        self.c_ids()
        self.filter_load()
        self.g1_ids(); self.g2_ids()

    def role_b_loads_gemv(self):
        a = self.a
        a(f"""
        v_lshrrev_b32 v8, 2, v1
        v_and_b32 v14, 3, v1
        s_and_b32 s60, s2, 3
        s_lshl_b32 s60, s60, 7
        v_lshl_add_u32 v2, v8, 3, s60
        v_lshlrev_b32 v3, 1, v2
        buffer_load_dwordx4 v[164:167], v3, {C}, 0 offen
        s_movk_i32 s61, 6144
        v_mul_lo_u32 v3, v2, s61
        v_lshl_add_u32 v3, v14, 4, v3
        s_lshr_b32 s60, s2, 2
        s_lshl_b32 s60, s60, 7
        s_lshl_b32 s61, s6, 6
        s_add_u32 s60, s60, s61
        s_cmp_ge_u32 s2, 192
        s_cselect_b32 s60, 0x40000000, s60
        """)
        for j in range(8):
            a(f"buffer_load_dwordx4 {Q4(16+4*j)}, v3, {WM}, s60 offen{self.NT}")
            if j < 7: a("s_add_u32 s60, s60, 6144")

    def role_b_loads2(self):
        a = self.a
        a(f"""
        s_lshl_b32 s60, s2, 13
        s_lshl_b32 s61, s6, 12
        s_add_u32 s60, s60, s61
        v_lshrrev_b32 v3, 4, v1
        v_lshlrev_b32 v3, 10, v3
        v_and_b32 v4, 15, v1
        v_lshl_add_u32 v3, v4, 4, v3
        """)
        for j in range(4): a(f"buffer_load_dwordx4 {Q4(48+4*j)}, v3, {Q}, s60 offen offset:{256*j}{self.NTQ}")

    def unit_addr(self, sel=None):
        self.a(f"""
        s_lshl_b32 s61, s2, 1
        {sel or f"s_and_b32 s60, {sWV}, 1"}
        s_add_u32 s60, s60, s61
        s_lshr_b32 s20, s60, 3
        s_and_b32 s21, s60, 7
        s_mul_i32 s61, s20, 37
        s_lshr_b32 s61, s61, 8
        s_mul_i32 s62, s61, 7
        s_sub_u32 s62, s20, s62
        s_mul_i32 s61, s61, 224
        s_lshl_b32 s63, s62, 5
        s_add_u32 s22, s63, 16
        s_cmp_ge_u32 s62, 3
        s_cselect_b32 s63, s22, s63
        s_movk_i32 s22, {16*1024}
        s_cmp_eq_u32 s62, 6
        s_cselect_b32 s63, 96, s63
        s_cselect_b32 s22, {112*1024}, s22
        s_add_u32 s61, s61, s63
        s_lshl_b32 s61, s61, 10
        s_lshl_b32 s62, s21, 7
        s_add_u32 s61, s61, s62
        s_cmp_ge_u32 s60, 448
        s_cselect_b32 s23, 0x40000000, s61
        v_lshrrev_b32 v169, 2, v1
        v_lshlrev_b32 v169, 10, v169
        v_and_b32 v5, 3, v1
        v_lshl_add_u32 v169, v5, 4, v169
        """)

    def q_rows(self, h=sWV):
        a = self.a
        a(f"""
        s_mov_b32 s62, {h}
        s_cmp_eq_u32 s62, 0
        s_cselect_b32 s60, s71, s72
        s_lshl_b32 s60, s60, 19
        s_lshr_b32 s61, s70, 1
        s_lshl_b32 s61, s61, 4
        s_add_u32 s60, s60, s61
        s_lshl_b32 s61, s62, 13
        v_lshlrev_b32 v5, 10, v1
        """)
        for i in range(8):
            a(f"s_add_u32 m0, s61, {self.QS + 1024*i}")
            a(f"buffer_load_dwordx4 v5, {Q}, s60 offen lds")
            if i < 7: a("s_add_u32 s60, s60, 65536")

    def side_inputs(self):
        a = self.a
        a(f"""
        v_lshrrev_b32 v5, 1, v1
        v_mul_u32_u24 v5, 3584, v5
        v_and_b32 v6, 1, v1
        v_lshl_add_u32 v5, v6, 4, v5
        s_and_b32 s60, s2, 15
        s_mul_i32 s60, s60, 224
        s_lshr_b32 s61, s2, 4
        s_mul_i32 s61, s61, {32*3584}
        s_add_u32 s60, s60, s61
        s_lshl_b32 s61, {sWV}, 5
        s_add_u32 s60, s60, s61
        s_lshl_b32 s61, {sWV}, 11
        s_add_u32 m0, s61, {self.W1S}
        buffer_load_dwordx4 v5, {W1}, s60 offen{self.NTW1} lds
        s_add_u32 m0, s61, {self.W1S + 1024 - 128}
        buffer_load_dwordx4 v5, {W1}, s60 offen offset:128{self.NTW1} lds
        s_cmp_lt_u32 {sWV}, 2
        s_cselect_b32 s60, s71, s72
        s_lshl_b32 s60, s60, 4
        s_and_b32 s61, {sWV}, 1
        s_lshl_b32 s61, s61, 3
        s_add_u32 s43, s60, s61
        s_lshl_b32 s60, s43, 5
        v_lshl_add_u32 v5, v3, 5, v2
        v_add_u32 v5, s60, v5
        v_lshlrev_b32 v159, 4, v5
        v_add_u32 v159, {WS_STAT}, v159
        s_lshl_b32 s60, s68, 1
        v_mov_b32 v5, s60
        buffer_load_ushort v126, v5, {SD}, 0 offen
        """)

    def w2_half_addr(self):
        a = self.a
        self.unit_addr(f"s_lshr_b32 s60, {sWV}, 1")
        a(f"""
        s_and_b32 s60, {sWV}, 1
        s_lshl_b32 s60, s60, 6
        s_add_u32 s23, s23, s60
        s_lshl_b32 s60, {sWV}, 11
        s_add_u32 s44, s60, {self.W2S}
        v_lshrrev_b32 v174, 2, v1
        v_lshl_add_u32 v175, v3, 2, v174
        s_cmp_eq_u32 s22, {112*1024}
        s_cselect_b64 vcc, -1, 0
        s_movk_i32 s61, 1024
        s_cselect_b32 s61, 256, s61
        v_cndmask_b32 v174, v174, v175, vcc
        v_lshlrev_b32 v174, 6, v174
        v_and_b32 v175, 3, v1
        v_lshl_add_u32 v174, v175, 4, v174
        v_add_u32 v174, s44, v174
        v_add_u32 v175, s61, v174
        s_add_u32 s22, s22, s23
        s_mul_i32 s45, s21, 56
        s_add_u32 s45, s45, s20
        s_lshl_b32 s45, s45, 12
        s_and_b32 s61, {sWV}, 1
        s_lshl_b32 s61, s61, 11
        s_add_u32 s45, s45, s61
        s_add_u32 s45, s45, {WS_W2P}
        s_cmp_ge_u32 s20, 56
        s_cselect_b32 s45, 0x40000000, s45
        s_lshl_b32 s46, s2, 2
        s_add_u32 s46, s46, {sWV}
        s_lshl_b32 s46, s46, {FL}
        s_add_u32 s46, s46, {FLAG_B}
        """)

    def w2_unit_load(self):
        a = self.a
        self.unit_addr()
        a(f"s_lshl_b32 s61, s6, 12\ns_add_u32 s62, s23, s22")
        for c in range(2):
            for i in range(2):
                a(f"s_add_u32 m0, s61, {self.W2S + 2048*c + 1024*i - 64*c}")
                a(f"buffer_load_dwordx4 v169, {W2}, {'s23' if i == 0 else 's62'} offen offset:{64*c}{self.NT} lds")

    def w2_unit_pack(self, later):
        a = self.a
        a(f"""
        s_lshl_b32 s61, s6, 12
        s_add_u32 s60, s61, {self.W2S}
        v_lshrrev_b32 v10, 2, v1
        v_lshl_add_u32 v11, v3, 2, v10
        s_cmp_eq_u32 s22, {112*1024}
        s_cselect_b64 vcc, -1, 0
        s_movk_i32 s61, 1024
        s_cselect_b32 s61, 256, s61
        v_cndmask_b32 v10, v10, v11, vcc
        v_lshlrev_b32 v10, 6, v10
        v_and_b32 v11, 3, v1
        v_lshl_add_u32 v10, v11, 4, v10
        v_add_u32 v10, s60, v10
        v_add_u32 v11, s61, v10
        v_lshlrev_b32 v12, 4, v1
        s_mul_i32 s63, s21, 56
        s_add_u32 s63, s63, s20
        s_lshl_b32 s63, s63, 12
        s_add_u32 s63, s63, {WS_W2P}
        s_cmp_ge_u32 s20, 56
        s_cselect_b32 s63, 0x40000000, s63
        s_waitcnt vmcnt({later})
        """)
        for dt in range(4):
            o = 2048 * (dt >> 1) + 8 * (dt & 1)
            a(f"ds_read_b64_tr_b16 {P(16+4*dt)}, v10 offset:{o}\nds_read_b64_tr_b16 {P(18+4*dt)}, v11 offset:{o}")
        a("s_waitcnt lgkmcnt(0)")
        for dt in range(4): a(f"buffer_store_dwordx4 {Q4(16+4*dt)}, v12, {WS}, s63 offen offset:{1024*dt} sc1")

    CSZ = 4160
    QS = 32768 + 69632
    W1S = 32768 + 112640
    W2S = 32768 + 120832
    GVS = 32768 + 129024
    def filter_copies(self):
        a = self.a
        a(f"""
        s_mul_i32 s60, {sWV}, {4*self.CSZ}
        s_add_u32 s60, s60, {self.WB}
        v_lshl_add_u32 v4, v1, 4, s60
        v_mov_b32 v100, 0
        v_mov_b32 v101, 0
        v_mov_b32 v102, 0
        v_mov_b32 v103, 0
        s_mov_b64 s[62:63], exec
        s_mov_b64 exec, 15
        """)
        for c in range(4): a(f"ds_write_b128 v4, v[100:103] offset:{c*self.CSZ}")
        a("s_mov_b64 exec, s[62:63]")
        for cc in range(1):
            for i in range(4):
                r = 176 + 8 * (4 * cc + i)
                t = 104 + 12 * (i % 2)
                o = cc * 4 * self.CSZ + 64 + 1024 * i
                pass
                a(f"ds_write_b128 v4, {Q4(r)} offset:{o}")
                for j in range(4): a(f"v_alignbit_b32 v{t+j}, v{r+j+1}, v{r+j}, 16")
                for j in range(4): a(f"v_mov_b32 v{t+4+j}, v{r+j+1}")
                for j in range(4): a(f"v_alignbit_b32 v{t+8+j}, v{r+j+2}, v{r+j+1}, 16")
                for k in range(3): a(f"ds_write_b128 v4, {Q4(t+4*k)} offset:{o + (k+1)*self.CSZ}")
                if i == 0:
                    a(f"""
                    v_lshlrev_b32 v128, 16, v{r}
                    s_mov_b64 exec, 1
                    ds_write_b32 v4, v128 offset:{o + self.CSZ - 4}
                    ds_write_b32 v4, v{r} offset:{o + 2*self.CSZ - 4}
                    ds_write_b32 v4, v128 offset:{o + 3*self.CSZ - 8}
                    ds_write_b32 v4, v{t} offset:{o + 3*self.CSZ - 4}
                    s_mov_b64 exec, s[62:63]
                    """)

    def role_b_rest(self, later, after_wait=None):
        a = self.a
        self.stamp("b")
        a(f"s_waitcnt vmcnt({later + 12})")
        self.tag_ready()
        for j in range(4): a(f"v_lshlrev_b32 v{100+2*j}, 16, v{164+j}\nv_and_b32 v{101+2*j}, 0xffff0000, v{164+j}")
        for j in range(8): a(f"v_mul_f32 v{108+j}, {NLOG2E}, v{100+j}")
        for j in range(8): a(f"v_exp_f32 v{108+j}, v{108+j}")
        for j in range(8): a(f"v_add_f32 v{108+j}, 1.0, v{108+j}")
        for j in range(8): a(f"v_rcp_f32 v{108+j}, v{108+j}")
        for j in range(8): a(f"v_mul_f32 v{108+j}, v{100+j}, v{108+j}")
        for j in range(4): a(f"v_cvt_pk_bf16_f32 v{100+j}, v{108+2*j}, v{109+2*j}")
        for j in range(4): a(f"v_lshlrev_b32 v{108+2*j}, 16, v{100+j}\nv_and_b32 v{109+2*j}, 0xffff0000, v{100+j}")
        self.stamp("b")
        a(f"s_waitcnt vmcnt({later + 4})")
        if after_wait: after_wait()
        self.stamp("b")
        for j in range(8):
            for e in range(4):
                a(f"v_lshlrev_b32 v{116+2*e}, 16, v{16+4*j+e}\nv_and_b32 v{117+2*e}, 0xffff0000, v{16+4*j+e}")
            sel = "op_sel_hi:[1,0,1]" if j % 2 == 0 else "op_sel:[0,1,0] op_sel_hi:[1,1,1]"
            for e in range(4):
                if j == 0: a(f"v_pk_mul_f32 {P(124+2*e)}, {P(116+2*e)}, {P(108)} op_sel_hi:[1,0]")
                else: a(f"v_pk_fma_f32 {P(124+2*e)}, {P(116+2*e)}, {P(108+2*(j//2))}, {P(124+2*e)} {sel}")
        for n in (4, 8):
            for e in range(8): a(f"v_add_f32_dpp v{124+e}, v{124+e}, v{124+e} row_ror:{n} row_mask:0xf bank_mask:0xf")
        a(f"""
        s_lshl_b32 s60, s6, 9
        s_add_u32 s60, s60, {self.GVS}
        v_lshl_add_u32 v116, v3, 7, s60
        v_and_b32 v117, 3, v1
        v_lshl_add_u32 v116, v117, 5, v116
        ds_write_b128 v116, v[124:127]
        ds_write_b128 v116, v[128:131] offset:16
        v_and_b32 v117, 31, v1
        v_lshlrev_b32 v117, 2, v117
        v_add_u32 v116, s60, v117
        ds_read_b32 v120, v116
        ds_read_b32 v121, v116 offset:128
        ds_read_b32 v122, v116 offset:256
        ds_read_b32 v123, v116 offset:384
        s_waitcnt vmcnt({self.n_after})
        s_and_b32 s60, s2, 3
        s_mul_i32 s60, s60, {MODP}
        s_lshr_b32 s61, s2, 2
        s_lshl_b32 s61, s61, 9
        s_add_u32 s60, s60, s61
        s_lshl_b32 s61, s6, 8
        s_add_u32 s60, s60, s61
        s_add_u32 s60, s60, {WS_MOD}
        s_cmp_ge_u32 s2, 192
        s_cselect_b32 s60, 0x40000000, s60
        v_lshlrev_b32 v117, 1, v117
        s_waitcnt lgkmcnt(0)
        v_add_f32 v120, v120, v121
        v_add_f32 v122, v122, v123
        v_add_f32 v120, v120, v122
        v_mov_b32 v121, s80
        s_mov_b32 exec_hi, 0
        buffer_store_dwordx2 v[120:121], v117, {WS}, s60 offen sc1
        s_mov_b32 exec_hi, -1
        """)
        self.stamp("b")
        a.region("brest1")
        self.role_b_tail()

    def role_b_tail(self):
        a = self.a
        for j in range(16): a(f"v_lshlrev_b32 v{100+2*j}, 16, v{48+j}\nv_and_b32 v{101+2*j}, 0xffff0000, v{48+j}")
        for j in range(8): a(f"v_pk_add_f32 {P(132+2*j)}, {P(100+4*j)}, {P(102+4*j)}")
        for st in (4, 2, 1):
            for j in range(st): a(f"v_pk_add_f32 {P(132+2*j)}, {P(132+2*j)}, {P(132+2*(j+st))}")
        a("v_add_f32 v132, v132, v133")
        for n in (8, 4, 2, 1): a(f"v_add_f32_dpp v132, v132, v132 row_ror:{n} row_mask:0xf bank_mask:0xf")
        a("v_mul_f32 v148, 0xbb000000, v132")
        for j in range(16): a(f"v_pk_add_f32 {P(100+2*j)}, {P(100+2*j)}, {P(148)} op_sel_hi:[1,0]")
        for j in range(4): a(f"v_pk_mul_f32 {P(132+2*j)}, {P(100+2*j)}, {P(100+2*j)}")
        for j in range(4, 16): a(f"v_pk_fma_f32 {P(132+2*(j&3))}, {P(100+2*j)}, {P(100+2*j)}, {P(132+2*(j&3))}")
        a(f"v_pk_add_f32 {P(132)}, {P(132)}, {P(134)}\nv_pk_add_f32 {P(136)}, {P(136)}, {P(138)}\nv_pk_add_f32 {P(132)}, {P(132)}, {P(136)}\nv_add_f32 v132, v132, v133")
        for n in (8, 4, 2, 1): a(f"v_add_f32_dpp v132, v132, v132 row_ror:{n} row_mask:0xf bank_mask:0xf")
        a(f"""
        v_mov_b32 v133, 0x3727c5ac
        v_fmac_f32 v133, 0x3b000000, v132
        v_rsq_f32 v136, v133
        s_lshl_b32 s60, s2, 7
        s_lshl_b32 s61, s6, 6
        s_add_u32 s60, s60, s61
        s_add_u32 s60, s60, {WS_STAT}
        v_mov_b32 v137, s80
        v_mov_b32 v139, s80
        v_mul_f32 v138, v148, v136
        v_lshlrev_b32 v134, 4, v3
        s_mov_b32 exec_lo, 0x00010001
        s_mov_b32 exec_hi, 0x00010001
        buffer_store_dwordx4 v[136:139], v134, {WS}, s60 offen sc1
        s_mov_b64 exec, -1
        """)

    def flag_m(self, later):
        a = self.a
        a(f"""
        s_waitcnt vmcnt({later})
        s_lshl_b32 s60, s2, 1
        s_add_u32 s60, s60, s6
        s_lshl_b32 s60, s60, {FL}
        s_add_u32 s60, s60, {FLAG_B}
        """)
        self.flag_store("s60", 1, 9 + FL, 250)

    def filter_prep(self, mid):
        a = self.a
        a(f"""
        s_mul_i32 s73, {sWV}, {self.FSZ}
        s_add_u32 s73, s73, {self.FB}
        v_and_b32 v2, 15, v1
        v_lshrrev_b32 v3, 4, v1
        v_lshl_add_u32 v4, v1, 4, s73
        v_mov_b32 v6, 0
        v_mov_b32 v7, 0
        v_mov_b32 v8, 0
        v_mov_b32 v9, 0
        v_add_u32 v5, 1, v2
        v_and_b32 v10, 3, v5
        v_mul_u32_u24 v10, {self.CSZ}, v10
        v_and_b32 v5, 28, v5
        v_lshl_add_u32 v5, v5, 1, v10
        v_and_b32 v10, 1, v3
        v_lshl_add_u32 v5, v10, 4, v5
        s_mul_i32 s60, {sWV}, {4*self.CSZ}
        s_add_u32 s60, s60, {self.WB}
        v_add_u32 v5, s60, v5
        v_lshrrev_b32 v10, 1, v3
        s_add_u32 s60, s71, 1
        s_lshl_b32 s60, s60, 9
        s_add_u32 s61, s72, 1
        s_lshl_b32 s61, s61, 9
        v_mad_u32_u24 v11, v10, s60, v5
        v_mad_u32_u24 v12, v10, s61, v5
        v_add_u32 v15, s60, v11
        v_subrev_u32 v12, s60, v12
        s_cmp_eq_u32 s69, 0
        s_cselect_b64 vcc, -1, 0
        v_cndmask_b32 v13, v11, v12, vcc
        """)
        for n in range(81):
            if n == opt('fa', 10): mid()
            b = "v11" if n < 16 else "v13" if n < 32 else "v12"
            a(f"ds_read_b64 {self.Fhalf(n,0)}, {b} offset:{32*n}")
            a(f"ds_read_b64 {self.Fhalf(n,1)}, {b} offset:{32*n+8}")
        a("ds_read_b64 v[244:245], v15\nds_read_b64 v[246:247], v15 offset:8")
        a(f"ds_write_b128 v4, v[6:9] offset:6144\ns_mov_b64 exec, {(1 << 26) - 1}\nds_write_b128 v4, v[6:9] offset:7168\ns_mov_b64 exec, -1")
        a(f"""
        v_sub_u32 v5, 63, v2
        v_mul_u32_u24 v5, 96, v5
        v_add_u32 v5, s73, v5
        s_mul_i32 s60, s71, {16*96}
        s_mul_i32 s61, s72, {16*96}
        v_subrev_u32 v156, s60, v5
        v_subrev_u32 v157, s61, v5
        v_and_b32 v6, 1, v3
        v_lshlrev_b32 v6, 4, v6
        v_lshrrev_b32 v7, 1, v3
        s_add_u32 s60, s71, 1
        s_mul_i32 s60, s60, 768
        s_add_u32 s61, s72, 1
        s_mul_i32 s61, s61, 768
        v_mad_u32_u24 v80, v7, s60, v156
        v_mad_u32_u24 v82, v7, s61, v157
        v_add_u32 v80, v80, v6
        v_add_u32 v82, v82, v6
        v_subrev_u32 v82, s60, v82
        s_cmp_eq_u32 s69, 0
        s_cselect_b64 vcc, -1, 0
        v_cndmask_b32 v81, v80, v82, vcc
        v_lshlrev_b32 v6, 3, v3
        v_sub_u32 v6, 24, v6
        v_add_u32 v156, v156, v6
        v_add_u32 v157, v157, v6
        """)

    def pre_conv(self):
        self.epi_addr(); self.g2_w2_addr(0); self.mod_addr()
        if W2L: self.w2_half_addr()
        L = self.w_stream(32, 0)
        for t in L[:L.index("WAIT")]: self.a(t.replace(" | ", "\n"))

    def u_addr(self):
        a = self.a
        a("s_movk_i32 s60, 10923")
        for j in range(3):
            a(f"""
            v_add_u32 v19, {64*j}, v1
            v_mul_u32_u24 v20, s60, v19
            v_lshrrev_b32 v20, 16, v20
            v_mul_u32_u24 v21, 6, v20
            v_sub_u32 v19, v19, v21
            v_min_u32 v19, 3, v19
            v_lshlrev_b32 v19, 4, v19
            v_lshl_add_u32 v{16+j}, v20, 6, v19
            """)
        a(f"s_lshl_b32 s64, s68, 12\ns_add_u32 s64, s64, {WS_KVT}\ns_add_u32 s65, s64, 2048")

    def u_wait(self):
        a = self.a
        a(f"""
        s_cmp_lg_u32 {sWV}, 0
        s_cbranch_scc1 L_u_nopoll
        s_lshl_b32 s60, {sX}, {6 + self.FA_LOG}
        s_add_u32 s60, s60, {FLAG_A}
        v_lshl_add_u32 v4, v1, {self.FA_LOG}, s60
        """)
        for i in range(opt('psa', 0)): a("s_sleep 4")
        self.poll("A")
        a("L_u_nopoll:")

    def u_fetch(self):
        a = self.a
        for j in (5, 4, 3, 2, 1, 0):
            if j == 0: a("s_cmp_eq_u32 s69, 1\ns_cbranch_scc1 L_u_short")
            a(f"s_add_u32 m0, s73, {1024*j}")
            a(f"buffer_load_dwordx4 v{16 + j%3}, {WS}, {'s64' if j < 3 else 's65'} offen sc1 lds")
        a("L_u_short:")
        self.side_inputs()
        a("s_waitcnt vmcnt(3)")

    def conv_main(self, hook):
        a = self.a
        D = 6
        off = lambda n: 96 * (n >> 1) + 32 * (n & 1)
        base = lambda n: "v80" if n < 16 else "v81" if n < 32 else "v82"
        Br = lambda n: Q4(48 + 4 * (n % 8))
        def rd(n):
            if n < 80: a(f"ds_read_b128 {Br(n)}, {base(n)} offset:{off(n)}")
        def step(n, c0="v[84:87]", c1="v[88:91]", d0="v[84:87]", d1="v[88:91]", a1=None):
            rd(n + D)
            a(f"s_waitcnt lgkmcnt({min(D, 79 - n)})")
            a(f"v_mfma_f32_16x16x32_bf16 {d0}, {self.Freg(n)}, {Br(n)}, {c0}")
            a(f"v_mfma_f32_16x16x32_bf16 {d1}, {a1 or self.Freg(n+1)}, {Br(n)}, {c1}")
        for n in range(D): rd(n)
        def boundary(n, ty):
            a(f"s_cmp_eq_u32 s69, {ty}\ns_cbranch_scc0 L_cb{n}_no")
            h = list(a.hist)
            step(n, d0="v[92:95]", d1="v[96:99]", a1="v[244:247]")
            step(n + 1, c0="0", c1="0")
            a(f"s_branch L_cb{n}_done\nL_cb{n}_no:")
            a.hist = h
            step(n); step(n + 1)
            a(f"L_cb{n}_done:")
            hook(n); hook(n + 1)
        step(0, c0="0", c1="0"); hook(0)
        for n in range(1, 15): step(n); hook(n)
        boundary(15, 0)
        for n in range(17, 31): step(n); hook(n)
        boundary(31, 1)
        for n in range(33, 80): step(n); hook(n)

    def epi_addr(self):
        self.a(f"""
        v_and_b32 v161, 3, v1
        s_movk_i32 s60, {MODP}
        v_mul_u32_u24 v161, s60, v161
        v_bfe_u32 v5, v1, 2, 2
        v_lshl_add_u32 v161, v5, 12, v161
        v_lshl_add_u32 v161, v3, 3, v161
        s_lshl_b32 s60, s70, 5
        s_add_u32 s60, s60, {WS_MOD}
        v_add_u32 v161, s60, v161
        s_mul_i32 s60, {sWV}, 112
        s_add_u32 s60, s60, s77
        s_lshl_b32 s60, s60, {FL + W2L}
        s_add_u32 s60, s60, {FLAG_B}
        v_and_b32 v5, 15, v1
        v_min_u32 v5, 13, v5
        v_lshl_add_u32 v248, v5, {FL + 3 + W2L}, s60
        v_bfe_u32 v5, v1, 4, 1
        v_mul_u32_u24 v5, {W2L << FL}, v5
        v_add_u32 v248, v248, v5
        """)

    def epi_load_list(self):
        L = [f"buffer_load_dwordx2 v[124:125], v161, {WS}, 0 offen sc1"]
        for i in range(4):
            L.append(f"buffer_load_dwordx4 {Q4(108+4*i)}, v159, {WS}, 0 offen offset:{2048*(i>>1) + 256*(i&1)} sc1")
        return L

    def conv_epilogue(self):
        a = self.a
        xi, RS = self.XI, self.XI_RS
        for sl in range(2):
            for t in range(2):
                a(f"ds_read_b64 {P(140+4*sl+2*t)}, v{156+sl} offset:{32-32*t}")
        self.verify("e", [125] + [109 + 2*i for i in range(8)], 150, self.epi_load_list())
        a(f"""
        v_add_f32_dpp v124, v124, v124 quad_perm:[1,0,3,2] row_mask:0xf bank_mask:0xf
        v_add_f32_dpp v124, v124, v124 quad_perm:[2,3,0,1] row_mask:0xf bank_mask:0xf
        s_lshl_b32 s60, {sWV}, 4
        s_add_u32 s60, s60, 8
        v_cvt_pk_bf16_f32 v124, v124, v124
        v_and_b32 v124, 0xffff0000, v124
        v_add_f32 v125, 1.0, v124
        v_cvt_pk_bf16_f32 v125, v125, v125
        v_and_b32 v125, 0xffff0000, v125
        v_readlane_b32 s61, v124, s60
        v_lshlrev_b32 v148, 16, v126
        s_mul_i32 s60, {sWV}, {RS}
        s_add_u32 s60, s60, {xi}
        v_mul_u32_u24 v4, 144, v3
        v_lshl_add_u32 v4, v2, 3, v4
        v_add_u32 v4, s60, v4
        v_mov_b32 v149, s61
        s_waitcnt lgkmcnt(0)
        """)
        for sl in range(2):
            for t in range(2):
                i = 2 * sl + t
                acc = (92 if sl == 0 else 84) + 4 * t
                kv, w = 140 + 2 * i, 160 + 4 * (i & 1)
                a(f"""
                v_and_b32 v{w}, 0xffff0000, v{kv+1}
                v_lshlrev_b32 v{w+1}, 16, v{kv+1}
                v_and_b32 v{w+2}, 0xffff0000, v{kv}
                v_lshlrev_b32 v{w+3}, 16, v{kv}
                v_pk_fma_f32 {P(w)}, {P(w)}, {P(148)}, {P(acc)} op_sel_hi:[1,0,1]
                v_pk_fma_f32 {P(w+2)}, {P(w+2)}, {P(148)}, {P(acc+2)} op_sel_hi:[1,0,1]
                v_pk_mul_f32 {P(w)}, {P(w)}, {P(148)} op_sel:[0,1] op_sel_hi:[1,1]
                v_pk_mul_f32 {P(w+2)}, {P(w+2)}, {P(148)} op_sel:[0,1] op_sel_hi:[1,1]
                v_cvt_pk_bf16_f32 v{168+2*(i&1)}, v{w}, v{w+1}
                v_cvt_pk_bf16_f32 v{169+2*(i&1)}, v{w+2}, v{w+3}
                ds_write_b64 v4, {P(168+2*(i&1))} offset:{1152*sl + 576*t}
                """)
        a(f"""
        s_lshr_b32 s60, {sWV}, 1
        s_and_b32 s61, {sWV}, 1
        s_mul_i32 s62, s60, 1152
        s_lshl_b32 s63, s61, 6
        s_add_u32 s62, s62, s63
        s_add_u32 s62, s62, {xi}
        v_bfe_u32 v5, v1, 2, 2
        v_mul_u32_u24 v5, {RS}, v5
        v_and_b32 v6, 3, v1
        v_mul_u32_u24 v6, 144, v6
        v_add3_u32 v5, v5, v6, s62
        v_lshl_add_u32 v5, v3, 3, v5
        s_lshl_b32 s60, {sWV}, 12
        s_and_b32 s61, s70, 1
        s_lshl_b32 s61, s61, 3
        s_add_u32 s60, s60, s61
        s_add_u32 s60, s60, {self.QS}
        v_lshl_add_u32 v6, v3, 5, v2
        v_lshl_add_u32 v6, v6, 4, s60
        s_waitcnt lgkmcnt(0)
        s_barrier
        ds_read_b64 v[100:101], v6
        ds_read_b64 v[102:103], v6 offset:256
        ds_read_b64 v[104:105], v6 offset:2048
        ds_read_b64 v[106:107], v6 offset:2304
        ds_read_b64_tr_b16 v[160:161], v5
        ds_read_b64_tr_b16 v[162:163], v5 offset:576
        ds_read_b64_tr_b16 v[164:165], v5 offset:32
        ds_read_b64_tr_b16 v[166:167], v5 offset:{576+32}
        """)
        for c in range(4):
            a(f"v_readlane_b32 s{60+c}, v125, {16*c+4}")
            a(f"v_readlane_b32 s{64+c}, v124, {16*c}")
        for c in range(4): a(f"v_mov_b32 v{128+c}, s{60+c}\nv_mov_b32 v{132+c}, s{64+c}")
        a("s_waitcnt lgkmcnt(4)")
        for i in range(4):
            q, A, u = 100 + 2 * i, 108 + 4 * i, 64 + 8 * i
            a(f"""
            v_lshlrev_b32 v{u}, 16, v{q}
            v_and_b32 v{u+1}, 0xffff0000, v{q}
            v_lshlrev_b32 v{u+2}, 16, v{q+1}
            v_and_b32 v{u+3}, 0xffff0000, v{q+1}
            v_pk_fma_f32 {P(u+4)}, {P(u)}, {P(A)}, {P(A+2)} op_sel_hi:[1,0,0]
            v_pk_fma_f32 {P(u+6)}, {P(u+2)}, {P(A)}, {P(A+2)} op_sel_hi:[1,0,0]
            v_pk_fma_f32 {P(u+4)}, {P(u+4)}, {P(128)}, {P(132)}
            v_pk_fma_f32 {P(u+6)}, {P(u+6)}, {P(130)}, {P(134)}
            """)
        a(f"""
        s_lshl_b32 s62, s43, 15
        s_lshl_b32 s63, s70, 8
        s_add_u32 s62, s62, s63
        s_add_u32 s62, s62, {WS_X1}
        s_add_u32 s63, s62, {4*32768}
        v_lshlrev_b32 v6, 15, v3
        v_lshl_add_u32 v6, v2, 4, v6
        """)
        for i in range(4):
            y, u, w = 160 + 2 * i, 64 + 8 * i, 140 + 4 * (i & 1)
            a(f"""
            s_waitcnt lgkmcnt({3-i})
            v_lshlrev_b32 v{w}, 16, v{y}
            v_and_b32 v{w+1}, 0xffff0000, v{y}
            v_lshlrev_b32 v{w+2}, 16, v{y+1}
            v_and_b32 v{w+3}, 0xffff0000, v{y+1}
            v_pk_fma_f32 {P(u)}, {P(u+4)}, {P(w)}, {P(u)}
            v_pk_fma_f32 {P(u+2)}, {P(u+6)}, {P(w+2)}, {P(u+2)}
            v_cvt_pk_bf16_f32 v{y}, v{u}, v{u+1}
            v_cvt_pk_bf16_f32 v{y+1}, v{u+2}, v{u+3}
            """)
            if i & 1: a(f"buffer_store_dwordx4 {Q4(y-2)}, v6, {WS}, s{62 + (i>>1)} offen sc1")

    def g2_epi_load(self):
        a = self.a
        a(f"""
        s_lshl_b32 s60, s77, 9
        s_add_u32 s60, s60, {WS_MOD + 5*4096}
        v_lshl_add_u32 v18, v1, 3, s60
        """)
        self.gb_loads = [f"buffer_load_dwordx2 {P((10, 16, 28, 30)[k])}, v18, {WS}, {so} offen sc1" for k, so in enumerate(("0", "s12", "s13", "s14"))]
        for t in self.gb_loads: a(t)
        a(f"""
        s_lshl_b32 s60, s76, 1
        s_lshr_b32 s61, {sWV}, 1
        s_add_u32 s60, s60, s61
        s_lshl_b32 s60, s60, 15
        s_lshl_b32 s61, s77, 12
        s_add_u32 s60, s60, s61
        s_and_b32 s61, {sWV}, 1
        s_lshl_b32 s61, s61, 3
        s_add_u32 s60, s60, s61
        s_add_u32 s60, s60, {WS_X1}
        v_lshlrev_b32 v19, 9, v3
        v_lshl_add_u32 v19, v2, 4, v19
        """)
        for p in range(2):
            for h in range(2):
                a(f"buffer_load_dwordx2 {P(20+4*p+2*h)}, v19, {WS}, s60 offen offset:{2048*p + 256*h} sc1")

    def g2_epi_pre(self, tb):
        a = self.a
        self.verify("g", [11, 17, 29, 31], 4, self.gb_loads)
        a(f"""
        v_add_f32 v4, v10, v16
        v_add_f32 v7, v28, v30
        v_add_f32 v4, v4, v7
        v_cvt_pk_bf16_f32 v4, v4, v4
        v_and_b32 v4, 0xffff0000, v4
        s_lshl_b32 s60, {sWV}, 8
        s_add_u32 s60, s60, {tb}
        v_lshl_add_u32 v5, v1, 2, s60
        ds_write_b32 v5, v4
        v_lshl_add_u32 v5, v3, 5, s60
        """)
        for p in range(2):
            for h in range(2):
                a(f"ds_read_b128 a[{224+8*p+4*h}:{227+8*p+4*h}], v5 offset:{128*p + 16*h}")
        a("s_waitcnt lgkmcnt(0)")

    def g1_ids(self):
        self.a(f"""
        s_lshr_b32 s74, {sX}, 1
        s_lshl_b32 s74, s74, 2
        s_lshr_b32 s60, {sM}, 3
        s_add_u32 s74, s74, s60
        s_and_b32 s75, {sX}, 1
        s_lshl_b32 s75, s75, 3
        s_and_b32 s60, {sM}, 7
        s_add_u32 s75, s75, s60
        """)

    def w1_addr(self, r0):
        self.a(f"""
        v_mul_u32_u24 v5, 3584, v3
        v_lshlrev_b32 v6, 1, v3
        v_xor_b32 v6, v6, v2
        v_lshl_add_u32 v{r0}, v6, 4, v5
        v_xor_b32 v6, 8, v6
        v_lshl_add_u32 v{r0+1}, v6, 4, v5
        s_mul_i32 s7, s75, 224
        s_and_b32 s7, s7, -64
        s_and_b32 s16, {sM}, 7
        s_lshl_b32 s16, s16, 1
        s_lshr_b32 s61, {sM}, 3
        s_lshl_b32 s61, s61, 2
        s_add_u32 s16, s16, s61
        s_mul_i32 s16, s16, {opt('rot1', 0)}
        s_and_b32 s16, s16, 15
        s_add_u32 s17, s7, {512*3584}
        s_lshl_b32 s61, {sWV}, 2
        s_add_u32 s61, s61, s16
        s_and_b32 s61, s61, 15
        s_mul_i32 s61, s61, {32*3584}
        s_add_u32 s7, s7, s61
        s_lshl_b32 s78, {sWV}, 15
        s_add_u32 s78, s78, {self.WB}
        """)

    def w1_one(self, r0, n):
        a = self.a
        a(f"s_add_u32 m0, s78, {1024*n}")
        a(f"buffer_load_dwordx4 v{r0 + n%2}, {W1}, s7 offen lds")
        a(f"s_add_u32 s7, s7, {4*3584}")
        if n % 8 == 7: a(f"s_cmp_eq_u32 s7, s17\ns_cselect_b32 s60, {512*3584}, 0\ns_sub_u32 s7, s7, s60")

    def w2_touch(self, j):
        self.a(f"buffer_load_dword v{248+j}, v250, {WS}, 0 offen sc1" if j == 0 else
               f"buffer_load_dword v{248+j}, v251, {WS}, 0 offen sc1")

    def w2_touch_addr(self):
        self.a(f"""
        s_lshl_b32 s60, {sM}, 2
        s_add_u32 s60, s60, {sWV}
        s_mul_i32 s60, s60, {112*128}
        s_add_u32 s60, s60, {WS_W2P}
        v_lshl_add_u32 v250, v1, 7, s60
        v_add_u32 v5, 64, v1
        v_min_u32 v5, 111, v5
        v_lshl_add_u32 v251, v5, 7, s60
        """)

    def mod_addr(self):
        self.a(f"""
        s_lshr_b32 s60, s2, 4
        s_lshl_b32 s60, s60, 8
        s_add_u32 s60, s60, {WS_MOD + 3*4096}
        v_lshl_add_u32 v172, v2, 4, s60
        v_and_b32 v5, 1, v3
        v_lshl_add_u32 v172, v5, 12, v172
        s_movk_i32 s12, {MODP}
        s_mov_b32 s13, {2*MODP}
        s_mov_b32 s14, {3*MODP}
        """)

    def mod_load_list(self, r0):
        L = []
        for k, so in enumerate(("0", "s12", "s13", "s14")):
            L.append(f"buffer_load_dwordx4 {Q4(r0+4*k)}, v172, {WS}, {so} offen sc1")
        return L

    def g2_w2_addr(self, k0):
        self.a(f"""
        s_mul_i32 s79, s77, 56
        s_mul_i32 s61, {sWV}, 14
        s_add_u32 s79, s79, s61
        s_lshl_b32 s79, s79, 12
        s_add_u32 s79, s79, {WS_W2P}
        s_add_u32 s97, s79, {14*4096}
        s_lshl_b32 s18, s77, 1
        s_lshr_b32 s61, {sM}, 3
        s_mul_i32 s61, s61, 7
        s_lshr_b32 s61, s61, 1
        s_add_u32 s18, s18, s61
        s_mul_i32 s18, s18, {opt('rot2', 0)}
        s_cmp_ge_u32 s18, 14
        s_cselect_b32 s60, 14, 0
        s_sub_u32 s18, s18, s60
        s_lshl_b32 s18, s18, 12
        s_add_u32 s79, s79, s18
        v_lshlrev_b32 v9, 4, v1
        """)

    def g2_w2_one(self, i, v="v9"):
        self.a(f"buffer_load_dwordx4 a[{4*i}:{4*i+3}], {v}, {WS}, s79 offen offset:{1024*(i%4)} sc1")
        if i % 4 == 3:
            self.a(f"s_add_u32 s79, s79, 4096\ns_cmp_eq_u32 s79, s97\ns_cselect_b32 s60, {14*4096}, 0\ns_sub_u32 s79, s79, s60")

    def signal_all(self, base, replicas, tag):
        a = self.a
        a(f"""
        s_waitcnt vmcnt(0)
        s_barrier
        s_cmp_lg_u32 {sWV}, 0
        s_cbranch_scc1 L_sig{tag}_skip
        s_lshl_b32 s60, s2, {FL}
        s_add_u32 s60, s60, {base}
        """)
        self.flag_store("s60", replicas, 8 + FL)
        a(f"L_sig{tag}_skip:")

    def w_stream(self, r0, mod_wait):
        T = f"""
        v_lshrrev_b32 v14, 2, v1
        v_lshlrev_b32 v15, 5, v14
        v_and_b32 v12, 3, v1
        v_lshl_add_u32 v15, v12, 3, v15
        s_lshl_b32 s61, {sWV}, 11
        s_add_u32 s61, s61, {self.W1S}
        v_add_u32 v173, s61, v15
        v_and_b32 v10, 1, v3
        v_cvt_f32_u32 v11, v10
        v_xor_b32 v10, 1, v10
        v_lshlrev_b32 v10, 6, v10
        v_lshl_add_u32 v10, v2, 2, v10
        s_lshl_b32 s61, {sWV}, 7
        v_add_u32 v10, s61, v10
        v_lshl_add_u32 v14, v3, 3, s61
        v_and_b32 v15, 1, v1
        v_lshl_add_u32 v15, v15, 6, v14
        v_and_b32 v13, 1, v1
        v_lshlrev_b32 v13, 9, v13
        v_lshl_add_u32 v13, v3, 4, v13
        s_and_b32 s40, s2, 15
        s_lshl_b32 s40, s40, 4
        s_lshr_b32 s61, s2, 4
        s_add_u32 s40, s40, s61
        s_lshl_b32 s42, s40, 10
        s_lshl_b32 s61, {sWV}, 6
        s_add_u32 s42, s42, s61
        s_add_u32 s42, s42, {WS_UP}
        s_mul_i32 s40, s40, 7168
        s_lshl_b32 s61, {sWV}, 10
        s_add_u32 s40, s40, s61
        s_add_u32 s40, s40, {WS_W1P}
        s_add_u32 s41, s40, 4096
        s_cmp_eq_u32 {sWV}, 3 | s_cselect_b32 s41, 0x40000000, s41
        WAIT
        """
        L = [x.strip() for x in T.split("\n") if x.strip()]
        L += ["ds_read_b64_tr_b16 v[16:17], v173", "ds_read_b64_tr_b16 v[18:19], v173 offset:512",
              "ds_read_b64_tr_b16 v[20:21], v173 offset:1024", "ds_read_b64_tr_b16 v[22:23], v173 offset:1536", "VERIFY"]
        for e in (0, 2): L += [f"v_add_f32 v{r0+e}, v{r0+e}, v{r0+4+e}", f"v_add_f32 v{r0+8+e}, v{r0+8+e}, v{r0+12+e}"]
        for e in (0, 2): L.append(f"v_add_f32 v{r0+e}, v{r0+e}, v{r0+8+e}")
        L += [f"v_cvt_pk_bf16_f32 v{r0}, v{r0}, v{r0+2}",
              f"v_lshlrev_b32 v{r0+4}, 16, v{r0}", f"v_and_b32 v{r0+5}, 0xffff0000, v{r0}",
              f"v_add_f32 v{r0+4}, v11, v{r0+4}", f"v_add_f32 v{r0+5}, v11, v{r0+5}",
              f"v_cvt_pk_bf16_f32 v{r0}, v{r0+4}, v{r0+5}",
              f"ds_write_b32 v10, v{r0}",
              "ds_read_b64 v[24:25], v15", "ds_read_b64 v[26:27], v15 offset:32",
              "ds_read_b64 v[28:29], v14", "ds_read_b64 v[30:31], v14 offset:32", "GAP",
              "v_mfma_f32_16x16x32_bf16 v[164:167], v[16:19], v[24:27], 0",
              "v_mfma_f32_16x16x32_bf16 v[168:171], v[20:23], v[24:27], 0"]
        for e in range(4): L += [f"v_lshlrev_b32 v{r0+2*e}, 16, v{28+e}", f"v_and_b32 v{r0+2*e+1}, 0xffff0000, v{28+e}"]
        for f in range(2):
            for e in range(4):
                w = 16 + 4 * f + e
                t = r0 + 8 + 2 * (e % 2)
                L += [f"v_lshlrev_b32 v{t}, 16, v{w}", f"v_and_b32 v{t+1}, 0xffff0000, v{w}",
                      f"v_mul_f32 v{t}, v{t}, v{r0+2*e}", f"v_mul_f32 v{t+1}, v{t+1}, v{r0+2*e+1}",
                      f"v_cvt_pk_bf16_f32 v{w}, v{t}, v{t+1}"]
            L.append(f"buffer_store_dwordx4 {Q4(16+4*f)}, v9, {WS}, s{40+f} offen sc1")
        L.append(f"s_mov_b32 exec_lo, 0x00030003 | s_mov_b32 exec_hi, 0x00030003 | buffer_store_dwordx4 v[164:167], v13, {WS}, s42 offen sc1 | buffer_store_dwordx4 v[168:171], v13, {WS}, s42 offen offset:256 sc1 | s_mov_b64 exec, -1")
        return L

    UPS = 32768 + 114688
    def g1_addr(self):
        self.a(f"""
        s_lshl_b32 s64, s74, 2
        s_add_u32 s64, s64, {sWV}
        s_lshl_b32 s64, s64, 15
        s_add_u32 s64, s64, {WS_X1}
        s_lshl_b32 s65, s75, 4
        s_add_u32 s65, s65, {sWV}
        s_mul_i32 s65, s65, 7168
        s_add_u32 s65, s65, {WS_W1P}
        s_mul_i32 s66, {sWV}, 7168
        s_add_u32 s66, s66, {self.WB}
        s_lshl_b32 s67, s75, 2
        s_add_u32 s67, s67, {sWV}
        s_lshl_b32 s67, s67, 12
        s_add_u32 s67, s67, {WS_UP}
        s_mov_b32 s44, s64
        s_mul_i32 s45, s75, {16*7168}
        s_add_u32 s45, s45, {WS_W1P}
        v_lshlrev_b32 v8, 4, v1
        v_add_u32 v10, {self.WB}, v8
        v_add_u32 v11, 57344, v10
        v_lshlrev_b32 v248, 2, v0
        v_add_u32 v249, {self.UPS}, v248
        """)
        for r in range(12, 16): self.a(f"v_mov_b32 v{r}, 0x3f803f80")

    def silu_tile(self, ft, t, u1, u2, w, dst):
        a = self.a
        d, o = 192 + 8 * ft + 4 * t, 60 + 2 * t
        for h in range(2): a(f"v_pk_fma_f32 {P(w+2*h)}, {P(u1+2*h)}, {P(o)}, {P(u2+2*h)} op_sel:[0,1,0] op_sel_hi:[1,1,1]")
        for h in range(2): a(f"v_pk_fma_f32 {P(d+2*h)}, {P(d+2*h)}, {P(o)}, {P(w+2*h)} op_sel_hi:[1,0,1]")
        for r in range(4): a(f"v_exp_f32 v{w+r}, v{d+r}")
        for h in range(2): a(f"v_pk_fma_f32 {P(w+2*h)}, {P(w+2*h)}, {P(254)}, {P(254)} op_sel_hi:[1,0,0]")
        for r in range(4): a(f"v_rcp_f32 v{w+r}, v{w+r}")
        for h in range(2): a(f"v_pk_mul_f32 {P(d+2*h)}, {P(d+2*h)}, {P(w+2*h)}")
        for h in range(2): a(f"v_cvt_pk_bf16_f32 v{dst+h}, v{d+2*h}, v{d+2*h+1}")

    def pair_store(self, ft, t, c):
        a = self.a
        b = 192 + 8 * (ft - 1) + 4 * t
        a(f"buffer_store_dwordx4 {Q4(b)}, v8, {WS}, s44 offen offset:{1024*t} sc1")
        a(f"v_bitop3_b32 v{c}, v{c}, v{b}, v{b+1} bitop3:0x96\nv_bitop3_b32 v{c}, v{c}, v{b+2}, v{b+3} bitop3:0x96")

    def g1_run(self, side, nside, early=0, na=0):
        a = self.a
        ops = []
        def X(i):
            def f():
                a(f"buffer_load_dwordx4 {Q4(64+4*i)}, v8, {WS}, s64 offen offset:{i%4*1024} sc1")
                if i % 4 == 3: a("s_add_u32 s64, s64, 4096")
            return (("x", i), f)
        def W(gm, j):
            def f():
                if j % 4 == 0: a(f"s_add_u32 m0, s66, {gm*4*7168 + 1024*j}\ns_add_u32 s60, s65, {gm*4*7168 + 1024*j}")
                a(f"buffer_load_dwordx4 v8, {WS}, s60 offen offset:{1024*(j%4)} sc1 lds")
            return (("w", gm, j), f)
        def UPl(j):
            def f():
                if j == 0: a(f"s_lshl_b32 s60, {sWV}, 12\ns_add_u32 m0, s60, {self.UPS}")
                a(f"buffer_load_dwordx4 v8, {WS}, s67 offen offset:{1024*j} sc1 lds")
            return (("u", j), f)
        if early == "weights":
            for gm in range(4):
                for j in range(4): W(gm, j)[1]()
            for j in range(4): UPl(j)[1]()
            return
        if early:
            pre = opt('g1pre', 10)
            ops += [X(i) for i in range(pre)]
            rest = [X(i) for i in range(pre, 32)]
            sd = [(("s", i), side) for i in range(na)]
            while rest or sd:
                ops += rest[:2] + sd[:1]
                rest, sd = rest[2:], sd[1:]
        else:
            for gm in range(4):
                if gm == 2: ops += [UPl(j) for j in range(4)]
                ops += [W(gm, j) for j in range(4)]
                ops += [X(i) for i in range(8 * gm, 8 * gm + 8)]
        for gm in range(4): ops += [W(gm, j) for j in range(4, 7)]
        keys = [k for k, _ in ops]
        pos = [0]
        def issue(n=1):
            for _ in range(n):
                if pos[0] < len(ops): ops[pos[0]][1](); pos[0] += 1
        def wait(key):
            i = keys.index(key)
            while pos[0] <= i: issue()
            a(f"s_waitcnt vmcnt({pos[0] - 1 - i})")
        WBE = opt('wbe', 0)
        issue(opt('g1pre', 10 if early else 20))
        NR, D = 8, 7
        Wr = lambda n: 16 + 4 * (n % NR)
        def frag(n, k, ft):
            a(f"ds_read_b128 {Q4(Wr(n))}, {'v10' if k < 8 else 'v11'} offset:{(k % 8) * 7168 + 1024 * ft}")
        def rdA(n):
            if n < 64:
                k, ft = divmod(n, 4)
                if ft == 0 and k % 4 == 0 and not early:
                    wait(("w", k // 4, 3))
                    a("s_barrier")
                frag(n, k, ft)
        def rdB(n):
            if n < 48: frag(n, n // 3, 4 + n % 3)
        def swaps(k):
            x = 64 + 8 * k
            wait(("x", 2 * k + 1))
            a(f"v_swap_b32 v{x+2}, v{x+4}\nv_swap_b32 v{x+3}, v{x+5}")
        for n in range(D): rdA(n)
        swaps(0)
        tail = self.g1_tail_setup()
        EA, young = [opt('ea', 0)], [0]
        for k in range(16):
            x = 64 + 8 * k
            if k == 8: a.region("g1b")
            if k % 4 == 0: self.stamp("h")
            for ft in range(4):
                n = 4 * k + ft
                a(f"s_waitcnt lgkmcnt({min(D - 1, 63 - n)})")
                d = 192 + 8 * ft
                a(f"v_mfma_f32_16x16x32_bf16 {Q4(d)}, {Q4(Wr(n))}, {Q4(x)}, {'0' if k == 0 else Q4(d)}")
                if (ft == 0 if opt('pa', 1) else ft != 2) and pos[0] < len(ops) - WBE: issue()
                a(f"v_mfma_f32_16x16x32_bf16 {Q4(d+4)}, {Q4(Wr(n))}, {Q4(x+4)}, {'0' if k == 0 else Q4(d+4)}")
                if k == 9:
                    for j in range(4): a(f"ds_read_b32 v{224+4*ft+j}, v249 offset:{1024*(4*ft+j)}")
                if k == 12:
                    st = (8, 4, 2, 1)[ft]
                    for j in range(st): a(f"v_add_f32 v{224+j}, v{224+j}, v{224+j+st}")
                if k == 13 and ft == 0: a(f"v_mul_f32 v224, {NLOG2E}, v224\nds_write_b32 v248, v224 offset:{self.T_U}")
                rdA(n + D)
                if ft in (1, 2):
                    t = ft - 1
                    for j, A in ((0, "v[12:15]"), (1, Q4(x + 4 * t))):
                        d = 48 + 8 * t + 4 * j
                        a(f"v_mfma_f32_16x16x32_bf16 {Q4(d)}, {A}, {Q4(x+4*t)}, {'0' if k == 0 else Q4(d)}")
                        if opt('pa', 1) and j == 0 and pos[0] < len(ops) - WBE: issue()
                        if ft == 2 and j == 0 and k < 15: swaps(k + 1)
                        elif k >= 3 and k not in (9, 12):
                            for _ in range(2):
                                if tail: a(tail.pop(0))
        assert not tail
        self.stamp("h")
        a.region("g1c")
        if not WBE: wait(("w", 3, 6))
        a("s_waitcnt lgkmcnt(0)\ns_barrier")
        issue(opt('wbe0', 4) if WBE else 0)
        for ft in range(4):
            a(f"ds_read_b128 {Q4(16+8*ft)}, v4 offset:{self.T_U + 64*ft}\nds_read_b128 {Q4(20+8*ft)}, v4 offset:{self.T_U + 512 + 64*ft}")
        for t in range(2):
            g = 52 + 8 * t
            a(f"v_cndmask_b32 v{g}, v{g}, v{g+1}, s[20:21]\nv_cndmask_b32 v{g}, v{g}, v{g+2}, s[22:23]\nv_cndmask_b32 v{g}, v{g}, v{g+3}, s[40:41]")
            a(f"ds_bpermute_b32 v{g}, v5, v{g}")
        for t in range(2):
            sm = 48 + 8 * t
            a(f"v_mul_f32 v{sm}, 0x3b000000, v{sm}\nv_mul_f32 v{sm+1}, v{sm}, v{sm}\nv_mov_b32 v{sm+2}, 0x3b000000")
        a("s_waitcnt lgkmcnt(0)")
        for t in range(2):
            sm, g = 48 + 8 * t, 52 + 8 * t
            a(f"v_fma_f32 v{g}, v{g}, v{sm+2}, -v{sm+1}\nv_max_f32 v{g}, 0, v{g}\nv_add_f32 v{g}, 0x3727c5ac, v{g}\nv_rsq_f32 v{sm+3}, v{g}")
        for t in range(2):
            sm, o = 48 + 8 * t, 60 + 2 * t
            a(f"v_mul_f32 v{o+1}, -v{sm}, v{sm+3}\nv_mul_f32 v{o}, v254, v{sm+3}")
        for ft in range(4):
            for t in range(2):
                self.silu_tile(ft, t, 16 + 8 * ft, 20 + 8 * ft, 224 + 4 * t, 192 + 8 * (ft & ~1) + 4 * t + 2 * (ft & 1))
                if WBE and pos[0] < len(ops): issue(4)
                elif EA[0] > 0: side(); EA[0] -= 1; young[0] += 1
                if ft & 1: self.pair_store(ft, t, 252); young[0] += 1
            if ft & 1: a("s_add_u32 s44, s44, 4096")
            if ft == 2 and not WBE:
                for n in range(6): rdB(n)
        assert pos[0] == len(ops)
        a(f"buffer_store_dword v252, v6, {WS}, s46 offen sc1")
        if WBE:
            a(f"s_waitcnt vmcnt({young[0] + 1})\ns_barrier")
            for n in range(6): rdB(n)
        rdB(6)
        self.stamp("h")
        a.region("g1d")
        for k in range(16):
            x = 64 + 8 * k
            for j in range(3):
                n = 3 * k + j
                a(f"s_waitcnt lgkmcnt({min(D - 1, 47 - n)})")
                d = 224 + 8 * j
                a(f"v_mfma_f32_16x16x32_bf16 {Q4(d)}, {Q4(Wr(n))}, {Q4(x)}, {'0' if k == 0 else Q4(d)}")
                if k == 14: a(f"ds_read_b128 {Q4(64+8*j)}, v4 offset:{self.T_U + 64*(4+j)}")
                if n == opt('ht', -1): self.h_touch(0)
                if n % 2 == 0 and nside > 0: side(); nside -= 1
                elif nside == 0 and k >= opt('hk', 8) and self.g2_todo and (n % 2 == 0 or not opt('pb4', 0)):
                    if not self.g2_log: self.g2_run()
                    lim = {8: 6, 9: 6, 10: 10, 11: 10}.get(k, 16 if k < 12 else 99) if False else (6 if k < 8 else 10 if k < 10 else 16 if k < 12 else 99)
                    if len(self.g2_log) < lim:
                        a(self.g2_todo.pop(0)); self.g2_log.append("l")
                a(f"v_mfma_f32_16x16x32_bf16 {Q4(d+4)}, {Q4(Wr(n))}, {Q4(x+4)}, {'0' if k == 0 else Q4(d+4)}")
                if k == 14: a(f"ds_read_b128 {Q4(68+8*j)}, v4 offset:{self.T_U + 512 + 64*(4+j)}")
                rdB(n + D)

    def g1_tail_setup(self):
        T = f"""
        v_lshlrev_b32 v4, 4, v3
        v_lshrrev_b32 v5, 2, v2
        v_lshl_add_u32 v5, v5, 4, v2
        v_lshlrev_b32 v5, 2, v5
        v_and_b32 v6, 3, v1
        v_cmp_eq_u32 s[20:21], 1, v6
        v_cmp_eq_u32 s[22:23], 2, v6
        v_cmp_eq_u32 s[40:41], 3, v6
        s_lshl_b32 s44, s74, 1
        s_lshr_b32 s61, {sWV}, 1
        s_add_u32 s44, s44, s61
        s_lshl_b32 s46, s44, 4
        s_add_u32 s46, s46, s75
        s_lshr_b32 s47, s46, 1
        s_and_b32 s62, {sWV}, 1
        s_lshl_b32 s46, s46, 1
        s_add_u32 s46, s46, s62
        s_lshl_b32 s46, s46, 9
        s_add_u32 s46, s46, {WS_HC}
        s_lshl_b32 s47, s47, 1
        s_add_u32 s47, s47, s62
        s_lshl_b32 s47, s47, 9
        s_and_b32 s63, s75, 1
        s_lshl_b32 s61, s63, 8
        s_add_u32 s47, s47, s61
        s_add_u32 s47, s47, {WS_HM}
        s_mul_i32 s44, s44, 56
        s_lshr_b32 s61, s75, 1
        s_mul_i32 s61, s61, 7
        s_add_u32 s44, s44, s61
        s_lshl_b32 s44, s44, 12
        s_lshl_b32 s61, s62, 11
        s_add_u32 s44, s44, s61
        s_add_u32 s44, s44, {WS_H}
        s_lshl_b32 s61, s63, 9
        s_add_u32 s45, s44, s61
        s_add_u32 s45, s45, {6*4096}
        s_mul_i32 s61, s63, {3*4096}
        s_add_u32 s44, s44, s61
        v_and_b32 v6, 1, v3
        v_lshlrev_b32 v7, 10, v6
        v_lshl_add_u32 v7, v2, 4, v7
        v_lshrrev_b32 v250, 1, v3
        v_lshl_add_u32 v7, v250, 8, v7
        v_lshlrev_b32 v250, 7, v250
        v_lshl_add_u32 v250, v2, 3, v250
        v_lshl_add_u32 v250, v6, 2, v250
        s_lshl_b32 s61, s62, 4
        s_add_u32 s61, s61, 3
        s_add_u32 s63, s62, 5
        v_mul_u32_u24 v6, s63, v6
        v_add_u32 v6, s61, v6
        v_alignbit_b32 v251, s80, s80, v6
        s_mul_i32 s61, s62, 13
        v_mov_b32 v6, s61
        v_alignbit_b32 v252, s80, s80, v6
        v_mov_b32 v253, v252
        v_mov_b32 v254, {NLOG2E}
        v_lshlrev_b32 v6, 2, v1
        """
        return [x.strip() for x in T.split("\n") if x.strip()]

    def g1_epilogue(self, tb):
        a = self.a
        early = self.g2_todo
        def ld(n):
            for _ in range(n):
                if early: a(early.pop(0)); self.g2_log.append("l")
        ld(opt('g2b0', 6))
        a("s_waitcnt lgkmcnt(0)\nv_mov_b32 v184, v249")
        for ft in (6, 4, 5):
            if ft == 4: a.region("g1e1")
            u = 64 + 8 * (ft - 4)
            for t in range(2):
                self.silu_tile(ft, t, u, u + 4, 32 + 4 * t, 40 + 2 * t if ft == 6 else 224 + 4 * t + 2 * (ft & 1))
                ld(3)
                if ft == 5: self.pair_store(ft, t, 253); self.g2_log.append("s")
            if ft == 6:
                a("v_permlane16_swap_b32 v40, v42\nv_permlane16_swap_b32 v41, v43")
                a(f"buffer_store_dwordx4 v[40:43], v7, {WS}, s45 offen sc1")
                a("v_bitop3_b32 v251, v251, v40, v41 bitop3:0x96\nv_bitop3_b32 v251, v251, v42, v43 bitop3:0x96")
                a(f"buffer_store_dword v251, v250, {WS}, s47 offen sc1")
                self.g2_log += ["s", "s"]
        a(f"buffer_store_dword v253, v6, {WS}, s46 offen offset:256 sc1")
        self.g2_log.append("s")
        ld(99)

    def g2_run(self):
        a = self.a
        a(f"""
        s_mul_i32 s78, s76, 56
        s_mul_i32 s61, {sWV}, 14
        s_add_u32 s78, s78, s61
        s_lshl_b32 s78, s78, 12
        s_add_u32 s78, s78, {WS_H}
        s_lshl_b32 s16, s76, 2
        s_add_u32 s16, s16, {sWV}
        s_lshl_b32 s15, s16, 11
        s_add_u32 s15, s15, {WS_HM}
        s_lshl_b32 s16, s16, 12
        s_add_u32 s16, s16, {WS_HC}
        s_mov_b32 s60, s80
        s_mov_b32 s61, s80
        s_lshr_b64 s[62:63], s[60:61], 13
        s_xor_b32 s20, s80, s62
        s_lshr_b64 s[62:63], s[60:61], 3
        s_mov_b32 s21, s62
        s_lshr_b64 s[62:63], s[60:61], 8
        s_xor_b32 s21, s21, s62
        s_lshr_b64 s[62:63], s[60:61], 19
        s_xor_b32 s21, s21, s62
        s_lshr_b64 s[62:63], s[60:61], 25
        s_xor_b32 s21, s21, s62
        s_lshl_b32 s60, {sWV}, 10
        v_add_u32 v12, s60, v8
        v_add_u32 v13, 1024, v12
        v_add_u32 v14, 2048, v12
        v_add_u32 v15, 3072, v12
        v_and_b32 v13, 4095, v13
        v_and_b32 v14, 4095, v14
        v_and_b32 v15, 4095, v15
        v_lshlrev_b32 v9, 3, v1
        s_mov_b32 s19, 0
        """)

    def h_touch(self, late):
        a = self.a
        if not late:
            a(f"""
            s_mul_i32 s17, s76, 56
            s_mul_i32 s61, {sWV}, 14
            s_add_u32 s17, s17, s61
            s_lshl_b32 s17, s17, 12
            s_lshl_b32 s61, s77, 9
            s_add_u32 s17, s17, s61
            s_add_u32 s17, s17, {WS_H}
            v_bfe_u32 v248, v1, 2, 3
            v_lshlrev_b32 v248, 2, v248
            s_mov_b32 s61, 0xba874310
            v_lshrrev_b32 v248, v248, s61
            v_and_b32 v248, 15, v248
            v_lshlrev_b32 v248, 12, v248
            v_and_b32 v249, 3, v1
            v_lshl_add_u32 v248, v249, 7, v248
            buffer_load_dword v255, v248, {WS}, s17 offen sc1
            v_bfe_u32 v248, v1, 2, 3
            v_lshlrev_b32 v248, 2, v248
            s_mov_b32 s61, 0xdddc9652
            v_lshrrev_b32 v248, v248, s61
            v_and_b32 v248, 15, v248
            v_lshlrev_b32 v248, 12, v248
            v_lshl_add_u32 v249, v249, 7, v248
            """)
        else:
            a(f"buffer_load_dword v7, v184, {WS}, s17 offen sc1")

    def g2_plan(self):
        HR = 8
        k0 = lambda cb: 7 * (cb // 2) + 3 * (cb % 2)
        groups = [("a", cb, [k0(cb), k0(cb) + 1]) for cb in range(4)]
        groups += [("b", 0, [2]), ("b", 1, [5]), ("m", 0, [6]), ("b", 2, [9]), ("b", 3, [12]), ("m", 1, [13])]
        order = [k for g in groups for k in g[2]]
        slot = {k: 32 + 16 * ((p + 4) % HR) for p, k in enumerate(order)}
        loads, chk, c = [], [], 88
        for kind, i, ks in groups:
            if kind == "a" and i == 2: c = 160
            p0 = order.index(ks[0])
            if kind == "m":
                chk.append([c, c + 1, c + 2, c + 3])
                for h in range(2):
                    loads.append((p0, None, f"buffer_load_dwordx2 {P(c+2*h)}, v9, {WS}, s15 offen offset:{1024*i + 512*h} sc1"))
                c += 4
            else:
                chk.append([c, c + 1])
                for h in range(2):
                    loads.append((p0, None, f"buffer_load_dword v{c+h}, v6, {WS}, s16 offen offset:{1024*i + 512*h + (256 if kind == 'b' else 0)} sc1"))
                c += 2
            for k in ks:
                for st in range(4):
                    pre = f"s_add_u32 s18, s78, {4096*k}\n" if st == 0 else ""
                    loads.append((order.index(k), (k, st), pre + f"buffer_load_dwordx4 {Q4(slot[k]+4*st)}, v{12+st}, {WS}, s18 offen sc1"))
        self.g2p = (HR, groups, order, slot, loads, chk)
        self.g2_early = [l[2] for l in loads[:opt('g2pre', 20)]]
        self.g2_log = []
        self.g2_todo = list(self.g2_early)

    def g2_body(self):
        a = self.a
        HR, groups, order, slot, loads, chk = self.g2p
        npre = len(self.g2_early)
        merged, it = [], iter(loads[:npre])
        for t in self.g2_log: merged.append(next(it) if t == "l" else (0, None, None))
        loads = merged + loads[npre:]
        nissued = len(merged)
        if opt('ht2', -1) >= 0:
            at = max(nissued, min(i for i, l in enumerate(loads) if l[0] >= opt('ht2', -1) and l[2]))
            loads.insert(at, (loads[at][0], None, f"buffer_load_dword v7, v184, {WS}, s17 offen sc1"))
        keys = [l[1] for l in loads]
        pos = [nissued]
        def issue(maxp):
            if pos[0] < len(loads) and loads[pos[0]][0] <= maxp:
                a(loads[pos[0]][2]); pos[0] += 1
        def wait(key):
            i = keys.index(key)
            while pos[0] <= i: issue(99)
            a(f"s_waitcnt vmcnt({pos[0] - 1 - i})")
        def vsteps(gi):
            x, out = 4 + gi % 2, []
            for j, k in enumerate(groups[gi][2]):
                regs = (list(chk[gi]) if j == 0 else [x]) + [slot[k] + i for i in range(16)]
                L = [("w", (k, 3)), f"v_bitop3_b32 v{x}, v{regs[0]}, v{regs[1]}, v{regs[2]} bitop3:0x96"]
                rest = regs[3:]
                while len(rest) >= 2: L.append(f"v_bitop3_b32 v{x}, v{x}, v{rest.pop(0)}, v{rest.pop(0)} bitop3:0x96")
                if rest: L.append(f"v_xor_b32 v{x}, v{x}, v{rest.pop(0)}")
                out.append(L)
            out[-1].append(f"v_cmp_ne_u32 vcc, {'s21' if groups[gi][0] == 'm' else 's20'}, v{x}\ns_cbranch_vccnz L_g2_retry")
            return out
        def run(t):
            if isinstance(t, tuple): wait(t[1])
            else: a(t)
        tail = self.g2_tail_setup()
        if opt('force', 0): a(f"s_xor_b32 s{19 + opt('force', 0)}, s{19 + opt('force', 0)}, 1")
        a("L_g2_go:")
        a.fence()
        a(f"s_waitcnt vmcnt({nissued - 1 - max(i for i, t in enumerate(self.g2_log) if t == 'e')})")
        self.g2_epi_pre(0)
        for L in vsteps(0):
            for t in L: run(t)
        for gi, (kind, _, ks) in enumerate(groups):
            nxt = vsteps(gi + 1) if gi + 1 < len(groups) else []
            nxt = [[] for _ in range(len(ks) - len(nxt))] + nxt
            for j, k in enumerate(ks):
                p = order.index(k)
                if p in (5, 10): a.region("g2" + "abc"[p // 5])
                self.stamp("g")
                cur = nxt[j]
                last = p == 13
                wr = lambda st: [f"ds_write_b128 v{127+st}, {Q4(192+16*st+4*dt)} offset:{1024*dt}" for dt in range(4)]
                for si, st in enumerate((1, 2, 3, 0) if last else range(4)):
                    pend = wr(si - 1) if last and si >= 2 else []
                    for dt in range(4):
                        d = 192 + 16 * st + 4 * dt
                        a(f"v_mfma_f32_16x16x32_bf16 {Q4(d)}, a[{16*k+4*dt}:{16*k+4*dt+3}], {Q4(slot[k]+4*st)}, {'0' if p == 0 else Q4(d)}")
                        i = 4 * si + dt
                        if i in {4: (0, 4, 8, 12), 5: (0, 3, 6, 10, 13), 6: (0, 3, 6, 9, 12, 15)}[opt('g2n', 5)]: issue(p + HR - 1)
                        if pend: a(pend.pop(0))
                        if i >= 9:
                            for _ in range(2):
                                if cur: run(cur.pop(0))
                        elif p >= 12:
                            for _ in range(3):
                                if tail: a(tail.pop(0))
                if last:
                    assert not tail
                    for t in wr(3): a(t)
                assert not cur
        assert pos[0] == len(loads)

    def g2_tail_setup(self):
        rb = self.WB
        L = []
        for j in range(1, 4):
            L += [f"s_add_u32 s60, {sWV}, {j} | s_and_b32 s60, s60, 3 | s_mul_i32 s60, s60, 12288 | s_add_u32 s60, s60, {rb + 4096*(j-1)} | v_lshl_add_u32 v{127+j}, v1, 4, s60"]
        L += [f"s_mul_i32 s60, {sWV}, 12288 | s_add_u32 s60, s60, {rb} | v_lshl_add_u32 v131, v1, 4, s60",
              "v_lshlrev_b32 v132, 10, v2", "v_lshl_add_u32 v132, v3, 4, v132",
              f"s_lshl_b32 s22, s76, 16 | s_lshl_b32 s61, {sWV}, 14 | s_add_u32 s22, s22, s61 | s_lshl_b32 s61, s77, 7 | s_add_u32 s22, s22, s61"]
        L += [f"v_accvgpr_read_b32 v{96+i}, a{224+i}" for i in range(16)]
        for dt in range(4):
            x = 20 + 2 * dt
            L += [f"v_lshlrev_b32 v{112+4*dt}, 16, v{x}", f"v_and_b32 v{113+4*dt}, 0xffff0000, v{x}",
                  f"v_lshlrev_b32 v{114+4*dt}, 16, v{x+1}", f"v_and_b32 v{115+4*dt}, 0xffff0000, v{x+1}"]
        return [t.replace(" | ", "\n") for t in L]

    def g2_epilogue(self, rb, tb):
        a = self.a
        a("s_waitcnt lgkmcnt(0)\ns_barrier")
        for dt in range(4):
            for src in range(3):
                a(f"ds_read_b128 {Q4(136 + 12*dt + 4*src)}, v131 offset:{4096*src + 1024*dt}")
        for dt in range(4):
            r, o = 136 + 12 * dt, 192 + 4 * dt
            a(f"s_waitcnt lgkmcnt({9 - 3*dt})")
            for h in range(2): a(f"v_pk_add_f32 {P(r+2*h)}, {P(r+2*h)}, {P(r+4+2*h)}\nv_pk_add_f32 {P(o+2*h)}, {P(o+2*h)}, {P(r+8+2*h)}")
            for h in range(2): a(f"v_pk_add_f32 {P(r+2*h)}, {P(r+2*h)}, {P(o+2*h)}")
            for h in range(2): a(f"v_pk_fma_f32 {P(r+2*h)}, {P(r+2*h)}, {P(96+4*dt+2*h)}, {P(112+4*dt+2*h)}")
            for h in range(2): a(f"v_cvt_pk_bf16_f32 v{80+2*dt+h}, v{r+2*h}, v{r+2*h+1}")
            if dt == 1 and self.diag == "lsb":
                self.stamp("*")
                reg = lambda i: 82 + i if i < 15 else 85 + i
                a("s_cmp_lg_u32 s2, 100\ns_cbranch_scc1 L_nolsb")
                for j in range(4):
                    for g in range(4):
                        i = min(4 * j + g + 1, self.nst - 1)
                        a(f"s_sub_u32 s60, s{reg(i)}, s82\nv_cmp_eq_u32 vcc, {g}, v3\nv_mov_b32 v5, s60\nv_cndmask_b32 v4, v4, v5, vcc")
                    a(f"v_lshrrev_b32 v4, v2, v4\nv_and_b32 v4, 1, v4\nv_and_b32 v{80+j}, -2, v{80+j}\nv_or_b32 v{80+j}, v{80+j}, v4")
                a("L_nolsb:")
                self.diag = False
            if dt % 2 == 1:
                a(f"buffer_store_dwordx4 {Q4(80+2*(dt-1))}, v132, {OUT}, s22 offen offset:{32*(dt-1)}{self.OUTM}")

    def g2_retry(self):
        self.a(f"""
        L_g2_retry:
        s_waitcnt vmcnt(0)
        s_add_u32 s19, s19, 1
        s_cmp_gt_u32 s19, {SPIN}
        s_cbranch_scc1 L_g2_giveup
        s_sleep {opt('g2sleep', 2)}
        """)
        if opt('force', 0): self.a(f"s_cmp_eq_u32 s19, 2\ns_cselect_b32 s60, 1, 0\ns_xor_b32 s{19 + opt('force', 0)}, s{19 + opt('force', 0)}, s60")
        for t in self.g2_early: self.a(t)
        self.a("s_waitcnt vmcnt(0)\ns_branch L_g2_go")

def build_fused2(diag=False):
    g = G2(sc=True, diag=diag)
    a = g.a
    S = g.stamp
    kn = NAME + "_kernel"
    hdr = ["; @launch grid=(256,1,1) block=(256,1,1) lds=163840"]
    a.raw('.amdgcn_target "amdgcn-amd-amdhsa--gfx950"\n.text')
    g.entry2(kn)
    a(f"s_cmp_ge_u32 {sWV}, 2\ns_cbranch_scc1 L_role_b")
    n0 = g.nst
    g.role_a()
    if HINT: g.flag_a()
    QP = opt('qp', 2)
    if QP == 0: g.q_rows()
    a(f"s_waitcnt vmcnt({(9 if HINT else 4) + (8 if QP == 0 else 0)})\ns_branch L_join1\nL_role_b:")
    a.fence()
    g.nst = n0
    a.region("end")
    if opt('cpf', 1) == 3: g.code_prefetch2()
    a(f"s_sub_u32 s6, {sWV}, 2")
    g.srd_words((8, 9, 0, 11, 4, 5, 6, 7, 10))
    a(f"s_waitcnt lgkmcnt(0)\nv_mov_b32 v4, {WS_TAG}\nbuffer_load_dwordx2 v[254:255], v4, {WS}, 0 offen sc1")
    if opt('tlb', 1):
        a(f"""
        v_min_u32 v4, 14, v1
        v_lshlrev_b32 v4, 21, v4
        v_add_u32 v4, {2*MB - 128}, v4
        buffer_load_dword v248, v4, {WS}, 0 offen
        v_mov_b32 v4, 0
        buffer_load_dword v251, v4, {OUT}, 0 offen
        buffer_load_dword v250, v4, {W1}, 0 offen
        buffer_load_dword v249, v4, {W2}, 0 offen
        """)
    BF = opt('bf', 0)
    if BF:
        g.c_ids()
        g.filter_load()
        g.role_b_loads_gemv()
        g.role_b_loads2()
        g.g1_ids(); g.g2_ids()
        g.warm((2, ["brest0", "g1a"]), (3, ["brest1", "cepi", "prep1", "g1b"])); S()
        a("s_waitcnt vmcnt(13)"); S(); S()
    else:
        g.role_b_loads_gemv()
        g.role_b_loads2()
        g.c_ids(); g.g1_ids(); g.g2_ids()
        if opt('warm', 1) == 1: g.warm((2, ["brest0", "g1a"]), (3, ["brest1", "cepi", "prep1", "g1b"]))
        if opt('warm', 1) == 3: g.warm((2, ["brest0"]), (3, ["brest1"]))
        S()
        a("v_and_b32 v2, 15, v1\nv_lshrrev_b32 v3, 4, v1")
        a.region("brest0")
        g.n_after = 8 if W2L else 12
        def after():
            g.filter_load()
            if not W2L: g.w2_unit_load()
        g.role_b_rest(0, after_wait=after); S()
        a(f"s_waitcnt vmcnt({2 if W2L else 6})"); S()
    a("L_join1:")
    a.fence()
    a.region("fprep")
    g.filter_copies(); S()
    def mid():
        if HINT: return
        a(f"s_cmp_ge_u32 {sWV}, 2\ns_cbranch_scc1 L_mid_b\ns_waitcnt vmcnt({8 if QP == 0 else 0})")
        g.flag_a()
        if BF and not W2L:
            a("s_branch L_mid_done\nL_mid_b:")
            a("v_mov_b32 v250, v5")
            g.w2_unit_load()
            a("v_mov_b32 v5, v250\nL_mid_done:")
            return
        if QP == 1:
            a("v_mov_b32 v250, v5")
            g.q_rows()
            a("v_mov_b32 v5, v250")
        a("L_mid_b:")
    g.filter_prep(mid); S()
    a.region("ufetch")
    st = dict()
    a(f"s_cmp_ge_u32 {sWV}, 2\ns_cbranch_scc1 L_role_b2")
    if opt('q1', 0):
        a(f"s_cmp_eq_u32 {sWV}, 0\ns_cbranch_scc1 L_join2")
        g.q_rows("0"); g.q_rows("1")
    else:
        g.q_rows()
    a("s_branch L_join2\nL_role_b2:")
    a.fence()
    if BF:
        a.region("brest0")
        g.n_after = 0 if W2L else 4
        g.role_b_rest(0 if W2L else 4)
    if not W2L: g.w2_unit_pack(2)
    if opt('fm', 1) < 0: g.flag_m(0)
    a("L_join2:")
    a.region("addr")
    a.fence()
    g.u_addr()
    g.pre_conv()
    if opt('warm', 1) >= 2: g.warm((1, ["conv0", "cepi"]), (2, ["conv1", "prep1"]), (3, ["g1a", "g1b"]))
    g.u_wait()
    S(); S("c")
    a("s_waitcnt lgkmcnt(0)\ns_barrier")
    g.u_fetch(); S()
    w2 = dict(n=0)
    def side():
        g.g2_w2_one(w2['n']); w2['n'] += 1
    a.region("conv0")
    log = []
    younger = lambda tag: len(log) - 1 - max(i for i, t in enumerate(log) if t == tag)
    modl = g.mod_load_list(32)
    wl = g.w_stream(32, 0)
    st.update(hold=0, w=wl[wl.index("WAIT"):], q=[('m', t) for t in modl] + [('e', t) for t in g.epi_load_list()])
    Q0 = opt('q0', 2)
    def hook(n):
        if n == 40: a.region("conv1")
        if n in (0, 8, 16, 24, 32, 40, 50, 60, 70, 79): S("c")
        if n >= Q0 and n % 2 == 0 and st['q']:
            tg, t = st['q'].pop(0)
            log.append(tg); a(t)
        for _ in range(opt('wr', 2)):
            if not st['w'] or st['hold'] > n: break
            t = st['w'][0]
            if t == "WAIT":
                if n < Q0 + opt('ww', 26): break
                a(f"s_waitcnt vmcnt({younger('m')})")
            elif t == "VERIFY":
                g.verify("w", [33 + 2*i for i in range(8)], 24, modl)
            elif t == "GAP":
                assert n <= 64
                st['hold'] = n + 8
            else:
                a(t.replace(" | ", "\n")); log.extend('s' * t.count("buffer_store"))
            st['w'].pop(0)
        if W2L:
            U0, U1, U2 = opt('u0', 1), opt('u1', 33), opt('u2', 67)
            if n in (U0, U0 + 2):
                a(f"s_add_u32 m0, s44, {512*(n-U0)}\nbuffer_load_dwordx4 v169, {W2}, {'s23' if n == U0 else 's22'} offen{g.NT} lds"); log.append('u')
            if n == U1:
                a(f"s_waitcnt vmcnt({younger('u')})")
                a("ds_read_b64_tr_b16 v[128:129], v174\nds_read_b64_tr_b16 v[130:131], v175\nds_read_b64_tr_b16 v[132:133], v174 offset:8\nds_read_b64_tr_b16 v[134:135], v175 offset:8")
            if n in (U1 + 8, U1 + 10):
                j = (n - U1 - 8) // 2
                a(f"buffer_store_dwordx4 {Q4(128+4*j)}, v9, {WS}, s45 offen offset:{1024*j} sc1"); log.append('p')
            if n == U2:
                a(f"s_waitcnt vmcnt({younger('p')})")
                g.flag_store("s46", 1, 3, 136); log.append('s')
        if n == opt('fm', 1) and not W2L:
            a(f"s_cmp_lt_u32 {sWV}, 2\ns_cbranch_scc1 L_skip_m")
            g.flag_m(len(log) + 8)
            a("L_skip_m:")
        WM = opt('wm', 40)
        if W2L: WM = 999
        if n == max(0, WM - 14):
            a(f"buffer_load_dwordx2 v[252:253], v248, {WS}, 0 offen sc1"); log.append('f')
        if n == WM: g.poll("M", first_issued=True, va="v248", vd=252, later=younger('f'))
        if n >= WM and n % 2 == 1 and w2['n'] < opt('w2conv', 18):
            side(); log.append('w')
    g.conv_main(hook); S()
    assert not st['q']
    a.region("cepi")
    print("w_stream left after conv:", len(st['w']), file=sys.stderr)
    for t in st['w']:
        assert t not in ("WAIT", "GAP", "VERIFY")
        a(t.replace(" | ", "\n")); log.extend('s' * t.count("buffer_store"))
    a(f"s_waitcnt vmcnt({younger('e')})"); S("c")
    g.conv_epilogue(); S("c")
    if W2L: a(f"buffer_load_dwordx2 v[252:253], v248, {WS}, 0 offen sc1")
    a.region("prep1")
    EARLY = opt('early', 0)
    if EARLY:
        a(f"""
        s_and_b32 s60, s2, 15
        s_lshl_b32 s60, s60, 4
        s_lshr_b32 s61, s2, 4
        s_add_u32 s60, s60, s61
        s_lshl_b32 s60, s60, 2
        s_add_u32 s60, s60, {sWV}
        s_lshl_b32 s60, s60, {FL}
        s_add_u32 s60, s60, {FLAG_W}
        s_and_b32 s61, s2, 8
        s_lshl_b32 s61, s61, {7 + FL}
        s_add_u32 s60, s60, s61
        s_waitcnt vmcnt(2)
        """)
        g.flag_store("s60", 4, 11 + FL, 4)
    g.signal_all(FLAG_2, 8, 2); S()
    if W2L: g.poll("M", va="v248", vd=252, first_issued=True, later=1)
    g.g1_addr()
    if EARLY:
        a(f"""
        s_lshl_b32 s60, {sX}, 4
        s_add_u32 s60, s60, s75
        s_lshl_b32 s60, s60, {6 + FL}
        s_add_u32 s60, s60, {FLAG_W}
        v_lshl_add_u32 v4, v1, {FL}, s60
        """)
        a(f"buffer_load_dwordx2 v[6:7], v4, {WS}, 0 offen sc1")
        n0 = w2['n']
        while w2['n'] < 56 - opt('w2b', 12) - opt('w2a', 14): side()
        g.poll("W", first_issued=True, later=w2['n'] - n0)
        g.g1_run(None, 0, early="weights")
    else:
        while w2['n'] < 56 - opt('w2e3', 0) - opt('w2b', 12) - opt('ea', 0): side()
    g.warm((0, ["g1c"]), (1, ["g1d"]), (2, ["g1e0", "g2a", "g2b"]), (3, ["g1e1", "g2c", "g2e"])); S()
    a(f"""
    s_lshl_b32 s60, {sX}, {8 + FL}
    s_add_u32 s60, s60, {FLAG_2}
    v_lshl_add_u32 v4, v0, {FL}, s60
    """)
    a.region("g1a")
    g.poll("2")
    a("s_barrier"); S(); S("h")
    g.g2_plan()
    g.g1_run(side, opt('w2b', 12), EARLY, opt('w2a', 14))
    S()
    S("h")
    a.region("g1e0")
    assert w2['n'] == 56
    if not g.g2_log: g.g2_run()
    g.g2_epi_load()
    g.g2_log += ["e"] * 8
    g.g1_epilogue(G2.T_U - 4096)
    S("h")
    a("s_barrier"); S()
    a.region("g2a")
    S(); S("g"); S("h")
    g.g2_body(); S(); S("h")
    a("L_g2_giveup:")
    if diag and opt('cnt', 0):
        a(f"s_lshl_b32 s60, s2, 2\ns_add_u32 s60, s60, {sWV}\ns_lshl_b32 s60, s60, 7\ns_add_u32 s60, s60, {WS_DIAG + 124}\nv_mov_b32 v4, s60\nv_mov_b32 v5, s19\nbuffer_store_dword v5, v4, {WS}, 0 offen")
    a.region("g2e")
    g.g2_epilogue(G2.WB, 0)
    a.region("end")
    g.tag_update()
    g.exit(kn)
    g.g2_retry()
    a("L_warm_ret:\ns_setpc_b64 s[98:99]")
    a.raw('.section .rodata,"a"')
    a.raw(desc(kn, 512, 256))
    txt, size = add_pads(a.text(), opt('pad', 256))
    print("code bytes", size, file=sys.stderr)
    return "\n".join(hdr) + "\n" + txt

if __name__ == "__main__":
    diag = sys.argv[2] if len(sys.argv) > 2 else False
    open(sys.argv[1], "w").write(build_fused2(diag))
```

```python
import sys, os
OPT = dict(kv.split('=') for kv in os.environ.get('OPT', '').split(',') if kv)
opt = lambda k, d: int(OPT.get(k, d))
from asmlib import Asm, desc, add_pads
from gen import *

WS_W1P, WS_UP = 21 * MB, 23 * MB
WS_HC, WS_HM, WS_TAG = 26 * MB, 27 * MB, 28 * MB
MODP = 3072 * 8
FLAG_A, FLAG_B, FLAG_2, FLAG_3 = WS_FLAG, WS_FLAG + MB, WS_FLAG + 2 * MB, WS_FLAG + 3 * MB
FLAG_W = 25 * MB
HINT = opt('hint', 0)
W2L = opt('w2late', 0)
FL = opt('fl', 6)
P = lambda r: f"v[{r}:{r+1}]"
Q4 = lambda r: f"v[{r}:{r+3}]"

class G2(G):
    NT = " nt" if opt('nt', 1) else ""
    OUTM = ["", " sc1", " nt", " sc0 sc1"][opt('outm', 0)]
    NTF = " nt" if opt('ntf', 1) else ""
    NTQ = " nt" if opt('ntq', 0) else ""
    NTW1 = " nt" if opt('ntw1', 0) else ""
    FB, FSZ, WB = 1536, 7584, 32768
    XI, XI_RS = 1536, 7616
    T_GB, T_U, T_UP = 1536 + 2560, 1536 + 4608, 1536 + 7584 + 2560

    def entry2(self, name):
        a = self.a
        a.raw(f".globl {name}\n.p2align 8\n.type {name},@function")
        a.label(name)
        a.fence()
        a(f"s_cmp_ge_u32 s2, 256\ns_cbranch_scc1 L_end_{name}")
        self.stamp("*")
        if opt('cpf', 1) == 2: self.code_prefetch()
        for i in (1, 2, 3, 8, 9, 0, 11, 4, 5, 6, 7, 10):
            r, off, n = SRD_INFO[i]
            a(f"s_load_dwordx2 s[{r}:{r+1}], s[0:1], {off}")
        if opt('cpf', 1) == 1: self.code_prefetch()
        a(f"""
        v_lshrrev_b32 v2, 6, v0
        v_and_b32 v1, 63, v0
        s_mov_b32 s14, {2*MB}
        v_readfirstlane_b32 {sWV}, v2
        s_mov_b32 s15, 0x00020000
        s_and_b32 {sX}, s2, 7
        s_lshr_b32 {sM}, s2, 3
        """)

    def srd_words(self, which):
        for i in which:
            r, off, n = SRD_INFO[i]
            size = "s14" if n == 2 * MB else str(n)
            self.a(f"{'s_movk_i32' if n <= 4096 else 's_mov_b32'} s{r+2}, {size}\ns_mov_b32 s{r+3}, s15")

    def code_prefetch2(self):
        self.a(f"""
        s_getpc_b64 s[60:61]
        L_pc:
        s_sub_u32 s60, s60, L_pc-{NAME}_kernel
        s_subb_u32 s61, s61, 0
        v_lshlrev_b32 v4, 7, v0
        v_subrev_u32 v4, 16384, v4
        v_add_u32 v6, 16384, v4
        v_min_u32 v6, L_warm_ret-{NAME}_kernel, v6
        v_mov_b32 v5, s61
        v_add_co_u32 v4, vcc, s60, v4
        v_addc_co_u32 v5, vcc, 0, v5, vcc
        global_load_dword v253, v[4:5], off
        v_mov_b32 v7, s61
        v_add_co_u32 v6, vcc, s60, v6
        v_addc_co_u32 v7, vcc, 0, v7, vcc
        global_load_dword v252, v[6:7], off
        """)

    def code_prefetch(self):
        self.a("""
        s_getpc_b64 s[60:61]
        L_pc:
        v_lshlrev_b32 v4, 7, v0
        v_min_u32 v4, L_warm_ret-L_pc, v4
        v_mov_b32 v5, s61
        v_add_co_u32 v4, vcc, s60, v4
        v_addc_co_u32 v5, vcc, 0, v5, vcc
        global_load_dword v253, v[4:5], off
        """)

    def warm(self, *plans):
        if not opt('warm', 0): return
        a = self.a
        self.nwarm = getattr(self, 'nwarm', 0) + 1
        a("s_mov_b64 exec, 0")
        for w, regs in plans:
            lab = f"L_w{self.nwarm}_{w}"
            a(f"s_cmp_lg_u32 {sWV}, {w}\ns_cbranch_scc1 {lab}")
            for r in regs: a(f"s_call_b64 s[98:99], L_reg_{r}")
            a(f"{lab}:")
        a("s_mov_b64 exec, -1")

    def tag_ready(self):
        self.a("v_readfirstlane_b32 s80, v254\nv_readfirstlane_b32 s81, v255\ns_add_u32 s80, s80, 0x9e3779b9\ns_add_u32 s81, s81, 0x7f4a7c15")

    def tag_update(self):
        self.a(f"""
        s_or_b32 s60, s2, {sWV}
        s_cmp_lg_u32 s60, 0
        s_cbranch_scc1 L_tag_done
        v_mov_b32 v4, {WS_TAG}
        v_mov_b32 v6, s80
        v_mov_b32 v7, s81
        s_mov_b64 exec, 1
        buffer_store_dwordx2 v[6:7], v4, {WS}, 0 offen
        L_tag_done:
        """)

    def nonce_issue(self, b):
        self.a(f"v_mov_b32 v{b+2}, 0\nbuffer_load_dwordx2 v[{b}:{b+1}], v{b+2}, {DBG}, 0 offen sc1")

    def nonce_finish(self, tag, b):
        self.a(f"""
        s_mov_b32 s62, 0
        L_nonce_{tag}:
        s_waitcnt vmcnt(0)
        v_readfirstlane_b32 s80, v{b}
        v_readfirstlane_b32 s81, v{b+1}
        s_add_u32 s62, s62, 1
        s_cmp_lg_u32 s81, 0
        s_cbranch_scc1 L_nonce_{tag}_ok
        s_cmp_gt_u32 s62, {SPIN}
        s_cbranch_scc1 L_nonce_{tag}_ok
        v_mov_b32 v{b+2}, 0
        buffer_load_dwordx2 v[{b}:{b+1}], v{b+2}, {DBG}, 0 offen sc1
        s_branch L_nonce_{tag}
        L_nonce_{tag}_ok:
        """)

    def flag_store(self, soff, replicas, rstride_log2, b=4):
        self.a(f"""
        v_lshl_add_u32 v{b+2}, v1, {rstride_log2}, {soff}
        v_mov_b32 v{b}, s80
        v_mov_b32 v{b+1}, s81
        s_mov_b64 exec, {(1 << replicas) - 1}
        buffer_store_dwordx2 v[{b}:{b+1}], v{b+2}, {WS}, 0 offen sc1
        s_mov_b64 exec, -1
        """)

    def wide_flag_load(self, va, vd):
        return (f"buffer_load_dwordx2 v[{vd}:{vd+1}], {va}, {WS}, 0 offen sc1\n"
                f"buffer_load_dwordx2 v[{vd+2}:{vd+3}], {va}, {WS}, 0 offen offset:{1 << FL} sc1")

    def verify(self, name, tags, t0, reload):
        a = self.a
        if opt('force', 0): a(f"v_mov_b32 v{tags[-1]}, 0\nv_mov_b32 v{tags[-1]-1}, 0")
        a(f"s_mov_b32 s62, 0\nL_ver_{name}:")
        for op, d in (("max", t0), ("min", t0 + 1)):
            rest = list(tags)
            cur = rest.pop(0)
            while rest:
                if len(rest) >= 2: a(f"v_{op}3_u32 v{d}, v{cur}, v{rest.pop(0)}, v{rest.pop(0)}")
                else: a(f"v_{op}_u32 v{d}, v{cur}, v{rest.pop(0)}")
                cur = d
            if cur != d: a(f"v_mov_b32 v{d}, v{cur}")
        a(f"""
        v_cmp_ne_u32 vcc, s80, v{t0}
        v_cmp_ne_u32 s[60:61], s80, v{t0+1}
        s_or_b64 vcc, vcc, s[60:61]
        s_cbranch_vccz L_ver_{name}_ok
        s_add_u32 s62, s62, 1
        s_cmp_gt_u32 s62, {SPIN}
        s_cbranch_scc1 L_ver_{name}_ok
        """)
        for t in reload: a(t)
        a(f"s_waitcnt vmcnt(0)\ns_branch L_ver_{name}\nL_ver_{name}_ok:")

    def poll(self, tag, wide=False, first_issued=False, va="v4", vd=6, later=0):
        a = self.a
        ld = (self.wide_flag_load(va, vd) if wide else
              f"buffer_load_dwordx2 v[{vd}:{vd+1}], {va}, {WS}, 0 offen sc1")
        a("s_mov_b32 s62, 0")
        if first_issued:
            a(f"s_waitcnt vmcnt({later})\ns_branch L_poll_{tag}_chk")
        a(f"L_poll_{tag}:\n{ld}\ns_waitcnt vmcnt(0)\nL_poll_{tag}_chk:")
        a(f"v_cmp_ne_u64 vcc, s[80:81], v[{vd}:{vd+1}]")
        if wide:
            a(f"v_cmp_ne_u64 s[60:61], s[80:81], v[{vd+2}:{vd+3}]\ns_or_b64 vcc, vcc, s[60:61]")
        a(f"""
        s_add_u32 s62, s62, 1
        s_cbranch_vccz L_poll_{tag}_ok
        s_cmp_gt_u32 s62, {SPIN}
        s_cbranch_scc1 L_poll_{tag}_ok
        s_sleep {opt('sleep', 6)}
        s_branch L_poll_{tag}
        L_poll_{tag}_ok:
        """)

    def tile_off(self, h):
        self.a(f"""
        s_lshl_b32 s60, {sM}, 16
        s_lshl_b32 s61, {sX}, 7
        s_add_u32 s60, s60, s61
        s_lshl_b32 s61, {h}, 15
        s_add_u32 s60, s60, s61
        v_lshrrev_b32 v8, 4, v1
        v_and_b32 v9, 15, v1
        v_lshlrev_b32 v2, 13, v8
        v_lshl_add_u32 v2, v9, 3, v2
        v_add_u32 v2, s60, v2
        v_add_u32 v5, 4096, v2
        """)

    def role_a(self):
        a = self.a
        self.tile_off(sWV)
        self.srd_words((2, 3))
        a(f"""
        v_subrev_u32 v3, 3072, v2
        s_lshl_b32 s62, {sX}, 9
        v_lshl_add_u32 v56, v9, 5, s62
        s_waitcnt lgkmcnt(0)
        """)
        self.stamp("s")
        for j in range(11):
            base, off = ("v3", j * 1024) if j < 3 else ("v2", (j - 3) * 1024) if j < 7 else ("v5", (j - 7) * 1024)
            a(f"buffer_load_dwordx2 {P(10+2*j)}, {base}, {K}, 0 offen offset:{off}{self.NT}")
        for j in range(8):
            base, off = ("v2", j * 1024) if j < 4 else ("v5", (j - 4) * 1024)
            a(f"buffer_load_dwordx2 {P(32+2*j)}, {base}, {V}, 0 offen offset:{off}{self.NT}")
        a(f"buffer_load_dwordx4 v[48:51], v56, {SK}, 0 offen\nbuffer_load_dwordx4 v[52:55], v56, {SK}, 0 offen offset:16")
        self.srd_words((11, 4, 0, 5, 6, 7, 10))
        a(f"v_mov_b32 v4, {WS_TAG}\nbuffer_load_dwordx2 v[254:255], v4, {WS}, 0 offen sc1")
        self.stamp("s")
        a(f"""
        s_lshl_b32 s60, {sX}, {18 + HINT}
        s_lshl_b32 s61, {sM}, {7 + HINT}
        s_sub_u32 s60, s60, s61
        s_lshl_b32 s61, {sWV}, {6 + HINT}
        s_sub_u32 s60, s60, s61
        s_add_u32 s60, s60, {WS_KVT + 63*(64 << HINT)}
        v_lshlrev_b32 v142, {14 + HINT}, v9
        v_add_u32 v142, s60, v142
        v_sub_u32 v56, 3, v8
        v_lshl_add_u32 v142, v56, 4, v142
        s_movk_i32 s64, {4096 << HINT}
        s_movk_i32 s65, {8192 << HINT}
        s_movk_i32 s66, {12288 << HINT}
        """)
        self.c_ids()
        self.filter_load()
        self.g1_ids(); self.g2_ids()
        self.stamp("s")
        if opt('warm', 0) == 1: self.warm((0, ["kv0", "fprep", "ufetch", "conv0"]), (1, ["kv1", "addr", "conv1"]))
        if opt('warm', 0) == 3: self.warm((0, ["kv0", "fprep"]), (1, ["kv1", "ufetch", "addr"]))
        self.stamp(); self.stamp("s")
        a("s_waitcnt vmcnt(8)")
        self.tag_ready()
        self.stamp(); self.stamp("s")
        for p in range(2):
            a.region(f"kv{p}")
            s0, s1 = 48 + 4 * p, 50 + 4 * p
            a(f"""
            v_lshlrev_b32 v102, 16, v{s0}
            v_lshlrev_b32 v103, 16, v{s1}
            v_and_b32 v104, 0xffff0000, v{s0}
            v_and_b32 v105, 0xffff0000, v{s1}
            v_lshlrev_b32 v106, 16, v{s0+1}
            v_lshlrev_b32 v107, 16, v{s1+1}
            v_and_b32 v108, 0xffff0000, v{s0+1}
            v_and_b32 v109, 0xffff0000, v{s1+1}
            """)
            for j in range(11):
                a(f"v_lshlrev_b32 v{80+2*j}, 16, v{10+2*j+p}\nv_and_b32 v{81+2*j}, 0xffff0000, v{10+2*j+p}")
            for i in range(8):
                a(f"v_lshlrev_b32 v{126+2*i}, 16, v{32+2*i+p}\nv_and_b32 v{127+2*i}, 0xffff0000, v{32+2*i+p}")
            for i in range(8): a(f"v_pk_mul_f32 {P(110+2*i)}, {P(80+2*i)}, {P(108)}")
            for i in range(8): a(f"v_pk_fma_f32 {P(110+2*i)}, {P(82+2*i)}, {P(106)}, {P(110+2*i)}")
            for i in range(8): a(f"v_pk_fma_f32 {P(110+2*i)}, {P(84+2*i)}, {P(104)}, {P(110+2*i)}")
            for i in range(8): a(f"v_pk_fma_f32 {P(110+2*i)}, {P(86+2*i)}, {P(102)}, {P(110+2*i)}")
            for i in range(8): a(f"v_pk_mul_f32 {P(110+2*i)}, {P(110+2*i)}, {P(126+2*i)}")
            o = 144 + 8 * p
            for j in range(4):
                a(f"v_cvt_pk_bf16_f32 v{o+j}, v{110+2*(7-2*j)}, v{110+2*(6-2*j)}")
                a(f"v_cvt_pk_bf16_f32 v{o+4+j}, v{111+2*(7-2*j)}, v{111+2*(6-2*j)}")
            so = ("0", "s64") if p == 0 else ("s65", "s66")
            a(f"buffer_store_dwordx4 {Q4(o)}, v142, {WS}, {so[0]} offen sc1\nbuffer_store_dwordx4 {Q4(o+4)}, v142, {WS}, {so[1]} offen sc1")
            for c in range(2 * HINT):
                r, x = o + 4 * c, 56 + 2 * p + c
                a(f"v_bitop3_b32 v{x}, v{r}, v{r+1}, v{r+2} bitop3:0x96\nv_xor_b32 v{x}, v{x}, v{r+3}")
        for sw in (("16", "32") if HINT else ()):
            for c in range(4): a(f"v_mov_b32 v{60+c}, v{56+c}")
            for c in range(4): a(f"v_permlane{sw}_swap_b32 v{56+c}, v{60+c}")
            for c in range(4): a(f"v_xor_b32 v{56+c}, v{56+c}, v{60+c}" if sw == "16" else f"v_bitop3_b32 v{56+c}, v{56+c}, v{60+c}, s80 bitop3:0x96")
        for so in (("0", "s64", "s65", "s66") if HINT else ()): a(f"buffer_store_dwordx4 v[56:59], v142, {WS}, {so} offen offset:64 sc1")
        self.stamp()

    def w1_touch(self, j):
        self.a(f"""
        s_lshl_b32 s60, {sM}, 1
        s_add_u32 s60, s60, {sWV}
        s_mul_i32 s60, s60, {8*3584}
        s_and_b32 s61, {sX}, 1
        s_mul_i32 s61, s61, 1792
        s_add_u32 s60, s60, s61
        s_movk_i32 s61, 4682
        v_add_u32 v250, {64*j}, v1
        v_min_u32 v250, 111, v250
        v_mul_u32_u24 v251, s61, v250
        v_lshrrev_b32 v251, 16, v251
        v_mul_u32_u24 v251, {3584 - 14*128}, v251
        v_lshl_add_u32 v251, v250, 7, v251
        buffer_load_dword v{248+j}, v251, {W1}, s60 offen{self.NTW1}
        """)

    def flag_a(self):
        a = self.a
        a(f"""
        s_lshl_b32 s60, {sX}, 5
        s_add_u32 s60, s60, {sM}
        s_lshl_b32 s60, s60, 1
        s_add_u32 s60, s60, {sWV}
        s_lshl_b32 s60, s60, {self.FA_LOG}
        s_add_u32 s60, s60, {FLAG_A}
        """)
        self.flag_store("s60", 1, 3, 250)
    FA_LOG = FL

    def filter_load(self):
        a = self.a
        a("s_lshl_b32 s60, s68, 12\nv_lshl_add_u32 v4, v1, 4, s60")
        for i in range(4):
            r = 176 + 8 * i
            a(f"buffer_load_dwordx4 {Q4(r)}, v4, {FK}, 0 offen offset:{1024*i}{self.NTF}")
            a(f"buffer_load_dwordx2 {P(r+4)}, v4, {FK}, 0 offen offset:{1024*i+16}{self.NTF}")

    def role_b_loads(self):
        a = self.a
        a(f"s_sub_u32 s6, {sWV}, 2")
        self.c_ids()
        self.filter_load()
        self.g1_ids(); self.g2_ids()

    def role_b_loads_gemv(self):
        a = self.a
        a(f"""
        v_lshrrev_b32 v8, 2, v1
        v_and_b32 v14, 3, v1
        s_and_b32 s60, s2, 3
        s_lshl_b32 s60, s60, 7
        v_lshl_add_u32 v2, v8, 3, s60
        v_lshlrev_b32 v3, 1, v2
        buffer_load_dwordx4 v[164:167], v3, {C}, 0 offen
        s_movk_i32 s61, 6144
        v_mul_lo_u32 v3, v2, s61
        v_lshl_add_u32 v3, v14, 4, v3
        s_lshr_b32 s60, s2, 2
        s_lshl_b32 s60, s60, 7
        s_lshl_b32 s61, s6, 6
        s_add_u32 s60, s60, s61
        s_cmp_ge_u32 s2, 192
        s_cselect_b32 s60, 0x40000000, s60
        """)
        for j in range(8):
            a(f"buffer_load_dwordx4 {Q4(16+4*j)}, v3, {WM}, s60 offen{self.NT}")
            if j < 7: a("s_add_u32 s60, s60, 6144")

    def role_b_loads2(self):
        a = self.a
        a(f"""
        s_lshl_b32 s60, s2, 13
        s_lshl_b32 s61, s6, 12
        s_add_u32 s60, s60, s61
        v_lshrrev_b32 v3, 4, v1
        v_lshlrev_b32 v3, 10, v3
        v_and_b32 v4, 15, v1
        v_lshl_add_u32 v3, v4, 4, v3
        """)
        for j in range(4): a(f"buffer_load_dwordx4 {Q4(48+4*j)}, v3, {Q}, s60 offen offset:{256*j}{self.NTQ}")

    def unit_addr(self, sel=None):
        self.a(f"""
        s_lshl_b32 s61, s2, 1
        {sel or f"s_and_b32 s60, {sWV}, 1"}
        s_add_u32 s60, s60, s61
        s_lshr_b32 s20, s60, 3
        s_and_b32 s21, s60, 7
        s_mul_i32 s61, s20, 37
        s_lshr_b32 s61, s61, 8
        s_mul_i32 s62, s61, 7
        s_sub_u32 s62, s20, s62
        s_mul_i32 s61, s61, 224
        s_lshl_b32 s63, s62, 5
        s_add_u32 s22, s63, 16
        s_cmp_ge_u32 s62, 3
        s_cselect_b32 s63, s22, s63
        s_movk_i32 s22, {16*1024}
        s_cmp_eq_u32 s62, 6
        s_cselect_b32 s63, 96, s63
        s_cselect_b32 s22, {112*1024}, s22
        s_add_u32 s61, s61, s63
        s_lshl_b32 s61, s61, 10
        s_lshl_b32 s62, s21, 7
        s_add_u32 s61, s61, s62
        s_cmp_ge_u32 s60, 448
        s_cselect_b32 s23, 0x40000000, s61
        v_lshrrev_b32 v169, 2, v1
        v_lshlrev_b32 v169, 10, v169
        v_and_b32 v5, 3, v1
        v_lshl_add_u32 v169, v5, 4, v169
        """)

    def q_rows(self, h=sWV):
        a = self.a
        a(f"""
        s_mov_b32 s62, {h}
        s_cmp_eq_u32 s62, 0
        s_cselect_b32 s60, s71, s72
        s_lshl_b32 s60, s60, 19
        s_lshr_b32 s61, s70, 1
        s_lshl_b32 s61, s61, 4
        s_add_u32 s60, s60, s61
        s_lshl_b32 s61, s62, 13
        v_lshlrev_b32 v5, 10, v1
        """)
        for i in range(8):
            a(f"s_add_u32 m0, s61, {self.QS + 1024*i}")
            a(f"buffer_load_dwordx4 v5, {Q}, s60 offen lds")
            if i < 7: a("s_add_u32 s60, s60, 65536")

    def side_inputs(self):
        a = self.a
        a(f"""
        v_lshrrev_b32 v5, 1, v1
        v_mul_u32_u24 v5, 3584, v5
        v_and_b32 v6, 1, v1
        v_lshl_add_u32 v5, v6, 4, v5
        s_and_b32 s60, s2, 15
        s_mul_i32 s60, s60, 224
        s_lshr_b32 s61, s2, 4
        s_mul_i32 s61, s61, {32*3584}
        s_add_u32 s60, s60, s61
        s_lshl_b32 s61, {sWV}, 5
        s_add_u32 s60, s60, s61
        s_lshl_b32 s61, {sWV}, 11
        s_add_u32 m0, s61, {self.W1S}
        buffer_load_dwordx4 v5, {W1}, s60 offen{self.NTW1} lds
        s_add_u32 m0, s61, {self.W1S + 1024 - 128}
        buffer_load_dwordx4 v5, {W1}, s60 offen offset:128{self.NTW1} lds
        s_cmp_lt_u32 {sWV}, 2
        s_cselect_b32 s60, s71, s72
        s_lshl_b32 s60, s60, 4
        s_and_b32 s61, {sWV}, 1
        s_lshl_b32 s61, s61, 3
        s_add_u32 s43, s60, s61
        s_lshl_b32 s60, s43, 5
        v_lshl_add_u32 v5, v3, 5, v2
        v_add_u32 v5, s60, v5
        v_lshlrev_b32 v159, 4, v5
        v_add_u32 v159, {WS_STAT}, v159
        s_lshl_b32 s60, s68, 1
        v_mov_b32 v5, s60
        buffer_load_ushort v126, v5, {SD}, 0 offen
        """)

    def w2_half_addr(self):
        a = self.a
        self.unit_addr(f"s_lshr_b32 s60, {sWV}, 1")
        a(f"""
        s_and_b32 s60, {sWV}, 1
        s_lshl_b32 s60, s60, 6
        s_add_u32 s23, s23, s60
        s_lshl_b32 s60, {sWV}, 11
        s_add_u32 s44, s60, {self.W2S}
        v_lshrrev_b32 v174, 2, v1
        v_lshl_add_u32 v175, v3, 2, v174
        s_cmp_eq_u32 s22, {112*1024}
        s_cselect_b64 vcc, -1, 0
        s_movk_i32 s61, 1024
        s_cselect_b32 s61, 256, s61
        v_cndmask_b32 v174, v174, v175, vcc
        v_lshlrev_b32 v174, 6, v174
        v_and_b32 v175, 3, v1
        v_lshl_add_u32 v174, v175, 4, v174
        v_add_u32 v174, s44, v174
        v_add_u32 v175, s61, v174
        s_add_u32 s22, s22, s23
        s_mul_i32 s45, s21, 56
        s_add_u32 s45, s45, s20
        s_lshl_b32 s45, s45, 12
        s_and_b32 s61, {sWV}, 1
        s_lshl_b32 s61, s61, 11
        s_add_u32 s45, s45, s61
        s_add_u32 s45, s45, {WS_W2P}
        s_cmp_ge_u32 s20, 56
        s_cselect_b32 s45, 0x40000000, s45
        s_lshl_b32 s46, s2, 2
        s_add_u32 s46, s46, {sWV}
        s_lshl_b32 s46, s46, {FL}
        s_add_u32 s46, s46, {FLAG_B}
        """)

    def w2_unit_load(self):
        a = self.a
        self.unit_addr()
        a(f"s_lshl_b32 s61, s6, 12\ns_add_u32 s62, s23, s22")
        for c in range(2):
            for i in range(2):
                a(f"s_add_u32 m0, s61, {self.W2S + 2048*c + 1024*i - 64*c}")
                a(f"buffer_load_dwordx4 v169, {W2}, {'s23' if i == 0 else 's62'} offen offset:{64*c}{self.NT} lds")

    def w2_unit_pack(self, later):
        a = self.a
        a(f"""
        s_lshl_b32 s61, s6, 12
        s_add_u32 s60, s61, {self.W2S}
        v_lshrrev_b32 v10, 2, v1
        v_lshl_add_u32 v11, v3, 2, v10
        s_cmp_eq_u32 s22, {112*1024}
        s_cselect_b64 vcc, -1, 0
        s_movk_i32 s61, 1024
        s_cselect_b32 s61, 256, s61
        v_cndmask_b32 v10, v10, v11, vcc
        v_lshlrev_b32 v10, 6, v10
        v_and_b32 v11, 3, v1
        v_lshl_add_u32 v10, v11, 4, v10
        v_add_u32 v10, s60, v10
        v_add_u32 v11, s61, v10
        v_lshlrev_b32 v12, 4, v1
        s_mul_i32 s63, s21, 56
        s_add_u32 s63, s63, s20
        s_lshl_b32 s63, s63, 12
        s_add_u32 s63, s63, {WS_W2P}
        s_cmp_ge_u32 s20, 56
        s_cselect_b32 s63, 0x40000000, s63
        s_waitcnt vmcnt({later})
        """)
        for dt in range(4):
            o = 2048 * (dt >> 1) + 8 * (dt & 1)
            a(f"ds_read_b64_tr_b16 {P(16+4*dt)}, v10 offset:{o}\nds_read_b64_tr_b16 {P(18+4*dt)}, v11 offset:{o}")
        a("s_waitcnt lgkmcnt(0)")
        for dt in range(4): a(f"buffer_store_dwordx4 {Q4(16+4*dt)}, v12, {WS}, s63 offen offset:{1024*dt} sc1")

    CSZ = 4160
    QS = 32768 + 69632
    W1S = 32768 + 112640
    W2S = 32768 + 120832
    GVS = 32768 + 129024
    def filter_copies(self):
        a = self.a
        a(f"""
        s_mul_i32 s60, {sWV}, {4*self.CSZ}
        s_add_u32 s60, s60, {self.WB}
        v_lshl_add_u32 v4, v1, 4, s60
        v_mov_b32 v100, 0
        v_mov_b32 v101, 0
        v_mov_b32 v102, 0
        v_mov_b32 v103, 0
        s_mov_b64 s[62:63], exec
        s_mov_b64 exec, 15
        """)
        for c in range(4): a(f"ds_write_b128 v4, v[100:103] offset:{c*self.CSZ}")
        a("s_mov_b64 exec, s[62:63]")
        for cc in range(1):
            for i in range(4):
                r = 176 + 8 * (4 * cc + i)
                t = 104 + 12 * (i % 2)
                o = cc * 4 * self.CSZ + 64 + 1024 * i
                pass
                a(f"ds_write_b128 v4, {Q4(r)} offset:{o}")
                for j in range(4): a(f"v_alignbit_b32 v{t+j}, v{r+j+1}, v{r+j}, 16")
                for j in range(4): a(f"v_mov_b32 v{t+4+j}, v{r+j+1}")
                for j in range(4): a(f"v_alignbit_b32 v{t+8+j}, v{r+j+2}, v{r+j+1}, 16")
                for k in range(3): a(f"ds_write_b128 v4, {Q4(t+4*k)} offset:{o + (k+1)*self.CSZ}")
                if i == 0:
                    a(f"""
                    v_lshlrev_b32 v128, 16, v{r}
                    s_mov_b64 exec, 1
                    ds_write_b32 v4, v128 offset:{o + self.CSZ - 4}
                    ds_write_b32 v4, v{r} offset:{o + 2*self.CSZ - 4}
                    ds_write_b32 v4, v128 offset:{o + 3*self.CSZ - 8}
                    ds_write_b32 v4, v{t} offset:{o + 3*self.CSZ - 4}
                    s_mov_b64 exec, s[62:63]
                    """)

    def role_b_rest(self, later, after_wait=None):
        a = self.a
        self.stamp("b")
        a(f"s_waitcnt vmcnt({later + 12})")
        self.tag_ready()
        for j in range(4): a(f"v_lshlrev_b32 v{100+2*j}, 16, v{164+j}\nv_and_b32 v{101+2*j}, 0xffff0000, v{164+j}")
        for j in range(8): a(f"v_mul_f32 v{108+j}, {NLOG2E}, v{100+j}")
        for j in range(8): a(f"v_exp_f32 v{108+j}, v{108+j}")
        for j in range(8): a(f"v_add_f32 v{108+j}, 1.0, v{108+j}")
        for j in range(8): a(f"v_rcp_f32 v{108+j}, v{108+j}")
        for j in range(8): a(f"v_mul_f32 v{108+j}, v{100+j}, v{108+j}")
        for j in range(4): a(f"v_cvt_pk_bf16_f32 v{100+j}, v{108+2*j}, v{109+2*j}")
        for j in range(4): a(f"v_lshlrev_b32 v{108+2*j}, 16, v{100+j}\nv_and_b32 v{109+2*j}, 0xffff0000, v{100+j}")
        self.stamp("b")
        a(f"s_waitcnt vmcnt({later + 4})")
        if after_wait: after_wait()
        self.stamp("b")
        for j in range(8):
            for e in range(4):
                a(f"v_lshlrev_b32 v{116+2*e}, 16, v{16+4*j+e}\nv_and_b32 v{117+2*e}, 0xffff0000, v{16+4*j+e}")
            sel = "op_sel_hi:[1,0,1]" if j % 2 == 0 else "op_sel:[0,1,0] op_sel_hi:[1,1,1]"
            for e in range(4):
                if j == 0: a(f"v_pk_mul_f32 {P(124+2*e)}, {P(116+2*e)}, {P(108)} op_sel_hi:[1,0]")
                else: a(f"v_pk_fma_f32 {P(124+2*e)}, {P(116+2*e)}, {P(108+2*(j//2))}, {P(124+2*e)} {sel}")
        for n in (4, 8):
            for e in range(8): a(f"v_add_f32_dpp v{124+e}, v{124+e}, v{124+e} row_ror:{n} row_mask:0xf bank_mask:0xf")
        a(f"""
        s_lshl_b32 s60, s6, 9
        s_add_u32 s60, s60, {self.GVS}
        v_lshl_add_u32 v116, v3, 7, s60
        v_and_b32 v117, 3, v1
        v_lshl_add_u32 v116, v117, 5, v116
        ds_write_b128 v116, v[124:127]
        ds_write_b128 v116, v[128:131] offset:16
        v_and_b32 v117, 31, v1
        v_lshlrev_b32 v117, 2, v117
        v_add_u32 v116, s60, v117
        ds_read_b32 v120, v116
        ds_read_b32 v121, v116 offset:128
        ds_read_b32 v122, v116 offset:256
        ds_read_b32 v123, v116 offset:384
        s_waitcnt vmcnt({self.n_after})
        s_and_b32 s60, s2, 3
        s_mul_i32 s60, s60, {MODP}
        s_lshr_b32 s61, s2, 2
        s_lshl_b32 s61, s61, 9
        s_add_u32 s60, s60, s61
        s_lshl_b32 s61, s6, 8
        s_add_u32 s60, s60, s61
        s_add_u32 s60, s60, {WS_MOD}
        s_cmp_ge_u32 s2, 192
        s_cselect_b32 s60, 0x40000000, s60
        v_lshlrev_b32 v117, 1, v117
        s_waitcnt lgkmcnt(0)
        v_add_f32 v120, v120, v121
        v_add_f32 v122, v122, v123
        v_add_f32 v120, v120, v122
        v_mov_b32 v121, s80
        s_mov_b32 exec_hi, 0
        buffer_store_dwordx2 v[120:121], v117, {WS}, s60 offen sc1
        s_mov_b32 exec_hi, -1
        """)
        self.stamp("b")
        a.region("brest1")
        self.role_b_tail()

    def role_b_tail(self):
        a = self.a
        for j in range(16): a(f"v_lshlrev_b32 v{100+2*j}, 16, v{48+j}\nv_and_b32 v{101+2*j}, 0xffff0000, v{48+j}")
        for j in range(8): a(f"v_pk_add_f32 {P(132+2*j)}, {P(100+4*j)}, {P(102+4*j)}")
        for st in (4, 2, 1):
            for j in range(st): a(f"v_pk_add_f32 {P(132+2*j)}, {P(132+2*j)}, {P(132+2*(j+st))}")
        a("v_add_f32 v132, v132, v133")
        for n in (8, 4, 2, 1): a(f"v_add_f32_dpp v132, v132, v132 row_ror:{n} row_mask:0xf bank_mask:0xf")
        a("v_mul_f32 v148, 0xbb000000, v132")
        for j in range(16): a(f"v_pk_add_f32 {P(100+2*j)}, {P(100+2*j)}, {P(148)} op_sel_hi:[1,0]")
        for j in range(4): a(f"v_pk_mul_f32 {P(132+2*j)}, {P(100+2*j)}, {P(100+2*j)}")
        for j in range(4, 16): a(f"v_pk_fma_f32 {P(132+2*(j&3))}, {P(100+2*j)}, {P(100+2*j)}, {P(132+2*(j&3))}")
        a(f"v_pk_add_f32 {P(132)}, {P(132)}, {P(134)}\nv_pk_add_f32 {P(136)}, {P(136)}, {P(138)}\nv_pk_add_f32 {P(132)}, {P(132)}, {P(136)}\nv_add_f32 v132, v132, v133")
        for n in (8, 4, 2, 1): a(f"v_add_f32_dpp v132, v132, v132 row_ror:{n} row_mask:0xf bank_mask:0xf")
        a(f"""
        v_mov_b32 v133, 0x3727c5ac
        v_fmac_f32 v133, 0x3b000000, v132
        v_rsq_f32 v136, v133
        s_lshl_b32 s60, s2, 7
        s_lshl_b32 s61, s6, 6
        s_add_u32 s60, s60, s61
        s_add_u32 s60, s60, {WS_STAT}
        v_mov_b32 v137, s80
        v_mov_b32 v139, s80
        v_mul_f32 v138, v148, v136
        v_lshlrev_b32 v134, 4, v3
        s_mov_b32 exec_lo, 0x00010001
        s_mov_b32 exec_hi, 0x00010001
        buffer_store_dwordx4 v[136:139], v134, {WS}, s60 offen sc1
        s_mov_b64 exec, -1
        """)

    def flag_m(self, later):
        a = self.a
        a(f"""
        s_waitcnt vmcnt({later})
        s_lshl_b32 s60, s2, 1
        s_add_u32 s60, s60, s6
        s_lshl_b32 s60, s60, {FL}
        s_add_u32 s60, s60, {FLAG_B}
        """)
        self.flag_store("s60", 1, 9 + FL, 250)

    def filter_prep(self, mid):
        a = self.a
        a(f"""
        s_mul_i32 s73, {sWV}, {self.FSZ}
        s_add_u32 s73, s73, {self.FB}
        v_and_b32 v2, 15, v1
        v_lshrrev_b32 v3, 4, v1
        v_lshl_add_u32 v4, v1, 4, s73
        v_mov_b32 v6, 0
        v_mov_b32 v7, 0
        v_mov_b32 v8, 0
        v_mov_b32 v9, 0
        v_add_u32 v5, 1, v2
        v_and_b32 v10, 3, v5
        v_mul_u32_u24 v10, {self.CSZ}, v10
        v_and_b32 v5, 28, v5
        v_lshl_add_u32 v5, v5, 1, v10
        v_and_b32 v10, 1, v3
        v_lshl_add_u32 v5, v10, 4, v5
        s_mul_i32 s60, {sWV}, {4*self.CSZ}
        s_add_u32 s60, s60, {self.WB}
        v_add_u32 v5, s60, v5
        v_lshrrev_b32 v10, 1, v3
        s_add_u32 s60, s71, 1
        s_lshl_b32 s60, s60, 9
        s_add_u32 s61, s72, 1
        s_lshl_b32 s61, s61, 9
        v_mad_u32_u24 v11, v10, s60, v5
        v_mad_u32_u24 v12, v10, s61, v5
        v_add_u32 v15, s60, v11
        v_subrev_u32 v12, s60, v12
        s_cmp_eq_u32 s69, 0
        s_cselect_b64 vcc, -1, 0
        v_cndmask_b32 v13, v11, v12, vcc
        """)
        for n in range(81):
            if n == opt('fa', 10): mid()
            b = "v11" if n < 16 else "v13" if n < 32 else "v12"
            a(f"ds_read_b64 {self.Fhalf(n,0)}, {b} offset:{32*n}")
            a(f"ds_read_b64 {self.Fhalf(n,1)}, {b} offset:{32*n+8}")
        a("ds_read_b64 v[244:245], v15\nds_read_b64 v[246:247], v15 offset:8")
        a(f"ds_write_b128 v4, v[6:9] offset:6144\ns_mov_b64 exec, {(1 << 26) - 1}\nds_write_b128 v4, v[6:9] offset:7168\ns_mov_b64 exec, -1")
        a(f"""
        v_sub_u32 v5, 63, v2
        v_mul_u32_u24 v5, 96, v5
        v_add_u32 v5, s73, v5
        s_mul_i32 s60, s71, {16*96}
        s_mul_i32 s61, s72, {16*96}
        v_subrev_u32 v156, s60, v5
        v_subrev_u32 v157, s61, v5
        v_and_b32 v6, 1, v3
        v_lshlrev_b32 v6, 4, v6
        v_lshrrev_b32 v7, 1, v3
        s_add_u32 s60, s71, 1
        s_mul_i32 s60, s60, 768
        s_add_u32 s61, s72, 1
        s_mul_i32 s61, s61, 768
        v_mad_u32_u24 v80, v7, s60, v156
        v_mad_u32_u24 v82, v7, s61, v157
        v_add_u32 v80, v80, v6
        v_add_u32 v82, v82, v6
        v_subrev_u32 v82, s60, v82
        s_cmp_eq_u32 s69, 0
        s_cselect_b64 vcc, -1, 0
        v_cndmask_b32 v81, v80, v82, vcc
        v_lshlrev_b32 v6, 3, v3
        v_sub_u32 v6, 24, v6
        v_add_u32 v156, v156, v6
        v_add_u32 v157, v157, v6
        """)

    def pre_conv(self):
        self.epi_addr(); self.g2_w2_addr(0); self.mod_addr(); self.cepi_addr()
        if W2L: self.w2_half_addr()
        L = self.w_stream(32, 0)
        for t in L[:L.index("WAIT")]: self.a(t.replace(" | ", "\n"))

    def u_addr(self):
        a = self.a
        a("s_movk_i32 s60, 10923")
        for j in range(3):
            a(f"""
            v_add_u32 v19, {64*j}, v1
            v_mul_u32_u24 v20, s60, v19
            v_lshrrev_b32 v20, 16, v20
            v_mul_u32_u24 v21, 6, v20
            v_sub_u32 v19, v19, v21
            v_min_u32 v19, 3, v19
            v_lshlrev_b32 v19, 4, v19
            v_lshl_add_u32 v{16+j}, v20, 6, v19
            """)
        a(f"s_lshl_b32 s64, s68, 12\ns_add_u32 s64, s64, {WS_KVT}\ns_add_u32 s65, s64, 2048")

    def u_wait(self):
        a = self.a
        a(f"""
        s_cmp_lg_u32 {sWV}, 0
        s_cbranch_scc1 L_u_nopoll
        s_lshl_b32 s60, {sX}, {6 + self.FA_LOG}
        s_add_u32 s60, s60, {FLAG_A}
        v_lshl_add_u32 v4, v1, {self.FA_LOG}, s60
        """)
        for i in range(opt('psa', 0)): a("s_sleep 4")
        self.poll("A")
        a("L_u_nopoll:")

    def u_fetch(self):
        a = self.a
        for j in (5, 4, 3, 2, 1, 0):
            if j == 0: a("s_cmp_eq_u32 s69, 1\ns_cbranch_scc1 L_u_short")
            a(f"s_add_u32 m0, s73, {1024*j}")
            a(f"buffer_load_dwordx4 v{16 + j%3}, {WS}, {'s64' if j < 3 else 's65'} offen sc1 lds")
        a("L_u_short:")
        self.side_inputs()
        a("s_waitcnt vmcnt(3)")

    def conv_main(self, hook):
        a = self.a
        D = 6
        off = lambda n: 96 * (n >> 1) + 32 * (n & 1)
        base = lambda n: "v80" if n < 16 else "v81" if n < 32 else "v82"
        Br = lambda n: Q4(48 + 4 * (n % 8))
        def rd(n):
            if n < 80: a(f"ds_read_b128 {Br(n)}, {base(n)} offset:{off(n)}")
        def step(n, c0="v[84:87]", c1="v[88:91]", d0="v[84:87]", d1="v[88:91]", a1=None):
            rd(n + D)
            a(f"s_waitcnt lgkmcnt({min(D, 79 - n)})")
            a(f"v_mfma_f32_16x16x32_bf16 {d0}, {self.Freg(n)}, {Br(n)}, {c0}")
            a(f"v_mfma_f32_16x16x32_bf16 {d1}, {a1 or self.Freg(n+1)}, {Br(n)}, {c1}")
        for n in range(D): rd(n)
        def boundary(n, ty):
            a(f"s_cmp_eq_u32 s69, {ty}\ns_cbranch_scc0 L_cb{n}_no")
            h = list(a.hist)
            step(n, d0="v[92:95]", d1="v[96:99]", a1="v[244:247]")
            step(n + 1, c0="0", c1="0")
            a(f"s_branch L_cb{n}_done\nL_cb{n}_no:")
            a.hist = h
            step(n); step(n + 1)
            a(f"L_cb{n}_done:")
            hook(n); hook(n + 1)
        step(0, c0="0", c1="0"); hook(0)
        for n in range(1, 15): step(n); hook(n)
        boundary(15, 0)
        for n in range(17, 31): step(n); hook(n)
        boundary(31, 1)
        for n in range(33, 80): step(n); hook(n)

    def epi_addr(self):
        self.a(f"""
        v_and_b32 v161, 3, v1
        s_movk_i32 s60, {MODP}
        v_mul_u32_u24 v161, s60, v161
        v_bfe_u32 v5, v1, 2, 2
        v_lshl_add_u32 v161, v5, 12, v161
        v_lshl_add_u32 v161, v3, 3, v161
        s_lshl_b32 s60, s70, 5
        s_add_u32 s60, s60, {WS_MOD}
        v_add_u32 v161, s60, v161
        s_mul_i32 s60, {sWV}, 112
        s_add_u32 s60, s60, s77
        s_lshl_b32 s60, s60, {FL + W2L}
        s_add_u32 s60, s60, {FLAG_B}
        v_and_b32 v5, 15, v1
        v_min_u32 v5, 13, v5
        v_lshl_add_u32 v248, v5, {FL + 3 + W2L}, s60
        v_bfe_u32 v5, v1, 4, 1
        v_mul_u32_u24 v5, {W2L << FL}, v5
        v_add_u32 v248, v248, v5
        """)

    def epi_load_list(self):
        L = [f"buffer_load_dwordx2 v[124:125], v161, {WS}, 0 offen sc1"]
        for i in range(4):
            L.append(f"buffer_load_dwordx4 {Q4(108+4*i)}, v159, {WS}, 0 offen offset:{2048*(i>>1) + 256*(i&1)} sc1")
        return L

    def cepi_addr(self):
        xi, RS = self.XI, self.XI_RS
        self.a(f"""
        s_mul_i32 s60, {sWV}, {RS}
        s_add_u32 s60, s60, {xi}
        v_mul_u32_u24 v150, 144, v3
        v_lshl_add_u32 v150, v2, 3, v150
        v_add_u32 v150, s60, v150
        s_lshr_b32 s60, {sWV}, 1
        s_and_b32 s61, {sWV}, 1
        s_mul_i32 s62, s60, 1152
        s_lshl_b32 s63, s61, 6
        s_add_u32 s62, s62, s63
        s_add_u32 s62, s62, {xi}
        v_bfe_u32 v151, v1, 2, 2
        v_mul_u32_u24 v151, {RS}, v151
        v_and_b32 v5, 3, v1
        v_mul_u32_u24 v5, 144, v5
        v_add3_u32 v151, v151, v5, s62
        v_lshl_add_u32 v151, v3, 3, v151
        s_lshl_b32 s60, {sWV}, 12
        s_and_b32 s61, s70, 1
        s_lshl_b32 s61, s61, 3
        s_add_u32 s60, s60, s61
        s_add_u32 s60, s60, {self.QS}
        v_lshl_add_u32 v152, v3, 5, v2
        v_lshl_add_u32 v152, v152, 4, s60
        s_cmp_lt_u32 {sWV}, 2
        s_cselect_b32 s60, s71, s72
        s_lshl_b32 s60, s60, 4
        s_and_b32 s61, {sWV}, 1
        s_lshl_b32 s61, s61, 3
        s_add_u32 s60, s60, s61
        s_lshl_b32 s66, s60, 15
        s_lshl_b32 s61, s70, 8
        s_add_u32 s66, s66, s61
        s_add_u32 s66, s66, {WS_X1}
        s_add_u32 s67, s66, {4*32768}
        v_lshlrev_b32 v153, 15, v3
        v_lshl_add_u32 v153, v2, 4, v153
        """)

    def e_stream(self):
        L = ["EWAIT", "EVERIFY",
             "v_add_f32_dpp v124, v124, v124 quad_perm:[1,0,3,2] row_mask:0xf bank_mask:0xf",
             f"s_lshl_b32 s63, {sWV}, 4 | s_add_u32 s63, s63, 8",
             "v_add_f32_dpp v124, v124, v124 quad_perm:[2,3,0,1] row_mask:0xf bank_mask:0xf",
             "v_lshlrev_b32 v148, 16, v126",
             "v_cvt_pk_bf16_f32 v124, v124, v124", "v_and_b32 v124, 0xffff0000, v124",
             "v_add_f32 v125, 1.0, v124", "v_cvt_pk_bf16_f32 v125, v125, v125", "v_and_b32 v125, 0xffff0000, v125",
             "v_readlane_b32 s63, v124, s63"]
        for c in range(4): L += [f"v_readlane_b32 s{24+c}, v125, {16*c+4}", f"v_readlane_b32 s{28+c}, v124, {16*c}"]
        L.append("v_mov_b32 v149, s63")
        for c in range(8): L.append(f"v_mov_b32 v{128+c}, s{24+c}")
        for sl in range(2):
            for t in range(2): L.append(f"ds_read_b64 {P(140+4*sl+2*t)}, v{156+sl} offset:{32-32*t}")
        return L

    def conv_epilogue(self):
        a = self.a
        for sl in range(2):
            for t in range(2):
                i = 2 * sl + t
                acc = (92 if sl == 0 else 84) + 4 * t
                kv, w = 140 + 2 * i, 160 + 4 * (i & 1)
                a(f"""
                v_and_b32 v{w}, 0xffff0000, v{kv+1}
                v_lshlrev_b32 v{w+1}, 16, v{kv+1}
                v_and_b32 v{w+2}, 0xffff0000, v{kv}
                v_lshlrev_b32 v{w+3}, 16, v{kv}
                v_pk_fma_f32 {P(w)}, {P(w)}, {P(148)}, {P(acc)} op_sel_hi:[1,0,1]
                v_pk_fma_f32 {P(w+2)}, {P(w+2)}, {P(148)}, {P(acc+2)} op_sel_hi:[1,0,1]
                v_pk_mul_f32 {P(w)}, {P(w)}, {P(148)} op_sel:[0,1] op_sel_hi:[1,1]
                v_pk_mul_f32 {P(w+2)}, {P(w+2)}, {P(148)} op_sel:[0,1] op_sel_hi:[1,1]
                v_cvt_pk_bf16_f32 v{168+2*(i&1)}, v{w}, v{w+1}
                v_cvt_pk_bf16_f32 v{169+2*(i&1)}, v{w+2}, v{w+3}
                ds_write_b64 v150, {P(168+2*(i&1))} offset:{1152*sl + 576*t}
                """)
        a(f"""
        s_waitcnt lgkmcnt(0)
        s_barrier
        ds_read_b64 v[100:101], v152
        ds_read_b64 v[102:103], v152 offset:256
        ds_read_b64 v[104:105], v152 offset:2048
        ds_read_b64 v[106:107], v152 offset:2304
        ds_read_b64_tr_b16 v[160:161], v151
        ds_read_b64_tr_b16 v[162:163], v151 offset:576
        ds_read_b64_tr_b16 v[164:165], v151 offset:32
        ds_read_b64_tr_b16 v[166:167], v151 offset:{576+32}
        """)
        for i in range(4):
            q, A, u = 100 + 2 * i, 108 + 4 * i, 64 + 8 * i
            a(f"""
            s_waitcnt lgkmcnt({7-i})
            v_lshlrev_b32 v{u}, 16, v{q}
            v_and_b32 v{u+1}, 0xffff0000, v{q}
            v_lshlrev_b32 v{u+2}, 16, v{q+1}
            v_and_b32 v{u+3}, 0xffff0000, v{q+1}
            v_pk_fma_f32 {P(u+4)}, {P(u)}, {P(A)}, {P(A+2)} op_sel_hi:[1,0,0]
            v_pk_fma_f32 {P(u+6)}, {P(u+2)}, {P(A)}, {P(A+2)} op_sel_hi:[1,0,0]
            v_pk_fma_f32 {P(u+4)}, {P(u+4)}, {P(128)}, {P(132)}
            v_pk_fma_f32 {P(u+6)}, {P(u+6)}, {P(130)}, {P(134)}
            """)
            if i & 1:
                for j in (i - 1, i):
                    y, uu, w = 160 + 2 * j, 64 + 8 * j, 140 + 4 * (j & 1)
                    a(f"""
                    s_waitcnt lgkmcnt({3-j})
                    v_lshlrev_b32 v{w}, 16, v{y}
                    v_and_b32 v{w+1}, 0xffff0000, v{y}
                    v_lshlrev_b32 v{w+2}, 16, v{y+1}
                    v_and_b32 v{w+3}, 0xffff0000, v{y+1}
                    v_pk_fma_f32 {P(uu)}, {P(uu+4)}, {P(w)}, {P(uu)}
                    v_pk_fma_f32 {P(uu+2)}, {P(uu+6)}, {P(w+2)}, {P(uu+2)}
                    v_cvt_pk_bf16_f32 v{y}, v{uu}, v{uu+1}
                    v_cvt_pk_bf16_f32 v{y+1}, v{uu+2}, v{uu+3}
                    """)
                a(f"buffer_store_dwordx4 {Q4(160+2*(i-1))}, v153, {WS}, s{66 + (i>>1)} offen sc1")

    def g2_epi_load(self):
        a = self.a
        a(f"""
        s_lshl_b32 s60, s77, 9
        s_add_u32 s60, s60, {WS_MOD + 5*4096}
        v_lshl_add_u32 v18, v1, 3, s60
        """)
        self.gb_loads = [f"buffer_load_dwordx2 {P((10, 16, 28, 30)[k])}, v18, {WS}, {so} offen sc1" for k, so in enumerate(("0", "s12", "s13", "s14"))]
        for t in self.gb_loads: a(t)
        a(f"""
        s_lshl_b32 s60, s76, 1
        s_lshr_b32 s61, {sWV}, 1
        s_add_u32 s60, s60, s61
        s_lshl_b32 s60, s60, 15
        s_lshl_b32 s61, s77, 12
        s_add_u32 s60, s60, s61
        s_and_b32 s61, {sWV}, 1
        s_lshl_b32 s61, s61, 3
        s_add_u32 s60, s60, s61
        s_add_u32 s60, s60, {WS_X1}
        v_lshlrev_b32 v19, 9, v3
        v_lshl_add_u32 v19, v2, 4, v19
        """)
        for p in range(2):
            for h in range(2):
                a(f"buffer_load_dwordx2 {P(20+4*p+2*h)}, v19, {WS}, s60 offen offset:{2048*p + 256*h} sc1")

    def g2_epi_pre(self, tb):
        a = self.a
        self.verify("g", [11, 17, 29, 31], 4, self.gb_loads)
        a(f"""
        v_add_f32 v4, v10, v16
        v_add_f32 v7, v28, v30
        v_add_f32 v4, v4, v7
        v_cvt_pk_bf16_f32 v4, v4, v4
        v_and_b32 v4, 0xffff0000, v4
        s_lshl_b32 s60, {sWV}, 8
        s_add_u32 s60, s60, {tb}
        v_lshl_add_u32 v5, v1, 2, s60
        ds_write_b32 v5, v4
        v_lshl_add_u32 v5, v3, 5, s60
        """)
        for p in range(2):
            for h in range(2):
                a(f"ds_read_b128 a[{224+8*p+4*h}:{227+8*p+4*h}], v5 offset:{128*p + 16*h}")
        a("s_waitcnt lgkmcnt(0)")

    def g1_ids(self):
        self.a(f"""
        s_lshr_b32 s74, {sX}, 1
        s_lshl_b32 s74, s74, 2
        s_lshr_b32 s60, {sM}, 3
        s_add_u32 s74, s74, s60
        s_and_b32 s75, {sX}, 1
        s_lshl_b32 s75, s75, 3
        s_and_b32 s60, {sM}, 7
        s_add_u32 s75, s75, s60
        """)

    def w1_addr(self, r0):
        self.a(f"""
        v_mul_u32_u24 v5, 3584, v3
        v_lshlrev_b32 v6, 1, v3
        v_xor_b32 v6, v6, v2
        v_lshl_add_u32 v{r0}, v6, 4, v5
        v_xor_b32 v6, 8, v6
        v_lshl_add_u32 v{r0+1}, v6, 4, v5
        s_mul_i32 s7, s75, 224
        s_and_b32 s7, s7, -64
        s_and_b32 s16, {sM}, 7
        s_lshl_b32 s16, s16, 1
        s_lshr_b32 s61, {sM}, 3
        s_lshl_b32 s61, s61, 2
        s_add_u32 s16, s16, s61
        s_mul_i32 s16, s16, {opt('rot1', 0)}
        s_and_b32 s16, s16, 15
        s_add_u32 s17, s7, {512*3584}
        s_lshl_b32 s61, {sWV}, 2
        s_add_u32 s61, s61, s16
        s_and_b32 s61, s61, 15
        s_mul_i32 s61, s61, {32*3584}
        s_add_u32 s7, s7, s61
        s_lshl_b32 s78, {sWV}, 15
        s_add_u32 s78, s78, {self.WB}
        """)

    def w1_one(self, r0, n):
        a = self.a
        a(f"s_add_u32 m0, s78, {1024*n}")
        a(f"buffer_load_dwordx4 v{r0 + n%2}, {W1}, s7 offen lds")
        a(f"s_add_u32 s7, s7, {4*3584}")
        if n % 8 == 7: a(f"s_cmp_eq_u32 s7, s17\ns_cselect_b32 s60, {512*3584}, 0\ns_sub_u32 s7, s7, s60")

    def w2_touch(self, j):
        self.a(f"buffer_load_dword v{248+j}, v250, {WS}, 0 offen sc1" if j == 0 else
               f"buffer_load_dword v{248+j}, v251, {WS}, 0 offen sc1")

    def w2_touch_addr(self):
        self.a(f"""
        s_lshl_b32 s60, {sM}, 2
        s_add_u32 s60, s60, {sWV}
        s_mul_i32 s60, s60, {112*128}
        s_add_u32 s60, s60, {WS_W2P}
        v_lshl_add_u32 v250, v1, 7, s60
        v_add_u32 v5, 64, v1
        v_min_u32 v5, 111, v5
        v_lshl_add_u32 v251, v5, 7, s60
        """)

    def mod_addr(self):
        self.a(f"""
        s_lshr_b32 s60, s2, 4
        s_lshl_b32 s60, s60, 8
        s_add_u32 s60, s60, {WS_MOD + 3*4096}
        v_lshl_add_u32 v172, v2, 4, s60
        v_and_b32 v5, 1, v3
        v_lshl_add_u32 v172, v5, 12, v172
        s_movk_i32 s12, {MODP}
        s_mov_b32 s13, {2*MODP}
        s_mov_b32 s14, {3*MODP}
        """)

    def mod_load_list(self, r0):
        L = []
        for k, so in enumerate(("0", "s12", "s13", "s14")):
            L.append(f"buffer_load_dwordx4 {Q4(r0+4*k)}, v172, {WS}, {so} offen sc1")
        return L

    def g2_w2_addr(self, k0):
        self.a(f"""
        s_mul_i32 s79, s77, 56
        s_mul_i32 s61, {sWV}, 14
        s_add_u32 s79, s79, s61
        s_lshl_b32 s79, s79, 12
        s_add_u32 s79, s79, {WS_W2P}
        s_add_u32 s97, s79, {14*4096}
        s_lshl_b32 s18, s77, 1
        s_lshr_b32 s61, {sM}, 3
        s_mul_i32 s61, s61, 7
        s_lshr_b32 s61, s61, 1
        s_add_u32 s18, s18, s61
        s_mul_i32 s18, s18, {opt('rot2', 0)}
        s_cmp_ge_u32 s18, 14
        s_cselect_b32 s60, 14, 0
        s_sub_u32 s18, s18, s60
        s_lshl_b32 s18, s18, 12
        s_add_u32 s79, s79, s18
        v_lshlrev_b32 v9, 4, v1
        """)

    def g2_w2_one(self, i, v="v9"):
        self.a(f"buffer_load_dwordx4 a[{4*i}:{4*i+3}], {v}, {WS}, s79 offen offset:{1024*(i%4)} sc1")
        if i % 4 == 3:
            self.a(f"s_add_u32 s79, s79, 4096\ns_cmp_eq_u32 s79, s97\ns_cselect_b32 s60, {14*4096}, 0\ns_sub_u32 s79, s79, s60")

    def signal_all(self, base, replicas, tag):
        a = self.a
        a(f"""
        s_waitcnt vmcnt(0)
        s_barrier
        s_cmp_lg_u32 {sWV}, 0
        s_cbranch_scc1 L_sig{tag}_skip
        s_lshl_b32 s60, s2, {FL}
        s_add_u32 s60, s60, {base}
        """)
        self.flag_store("s60", replicas, 8 + FL)
        a(f"L_sig{tag}_skip:")

    def w_stream(self, r0, mod_wait):
        T = f"""
        v_lshrrev_b32 v14, 2, v1
        v_lshlrev_b32 v15, 5, v14
        v_and_b32 v12, 3, v1
        v_lshl_add_u32 v15, v12, 3, v15
        s_lshl_b32 s61, {sWV}, 11
        s_add_u32 s61, s61, {self.W1S}
        v_add_u32 v173, s61, v15
        v_and_b32 v10, 1, v3
        v_cvt_f32_u32 v11, v10
        v_xor_b32 v10, 1, v10
        v_lshlrev_b32 v10, 6, v10
        v_lshl_add_u32 v10, v2, 2, v10
        s_lshl_b32 s61, {sWV}, 7
        v_add_u32 v10, s61, v10
        v_lshl_add_u32 v14, v3, 3, s61
        v_and_b32 v15, 1, v1
        v_lshl_add_u32 v15, v15, 6, v14
        v_and_b32 v13, 1, v1
        v_lshlrev_b32 v13, 9, v13
        v_lshl_add_u32 v13, v3, 4, v13
        s_and_b32 s40, s2, 15
        s_lshl_b32 s40, s40, 4
        s_lshr_b32 s61, s2, 4
        s_add_u32 s40, s40, s61
        s_lshl_b32 s42, s40, 10
        s_lshl_b32 s61, {sWV}, 6
        s_add_u32 s42, s42, s61
        s_add_u32 s42, s42, {WS_UP}
        s_mul_i32 s40, s40, 7168
        s_lshl_b32 s61, {sWV}, 10
        s_add_u32 s40, s40, s61
        s_add_u32 s40, s40, {WS_W1P}
        s_add_u32 s41, s40, 4096
        s_cmp_eq_u32 {sWV}, 3 | s_cselect_b32 s41, 0x40000000, s41
        WAIT
        """
        L = [x.strip() for x in T.split("\n") if x.strip()]
        L += ["ds_read_b64_tr_b16 v[16:17], v173", "ds_read_b64_tr_b16 v[18:19], v173 offset:512",
              "ds_read_b64_tr_b16 v[20:21], v173 offset:1024", "ds_read_b64_tr_b16 v[22:23], v173 offset:1536", "VERIFY"]
        for e in (0, 2): L += [f"v_add_f32 v{r0+e}, v{r0+e}, v{r0+4+e}", f"v_add_f32 v{r0+8+e}, v{r0+8+e}, v{r0+12+e}"]
        for e in (0, 2): L.append(f"v_add_f32 v{r0+e}, v{r0+e}, v{r0+8+e}")
        L += [f"v_cvt_pk_bf16_f32 v{r0}, v{r0}, v{r0+2}",
              f"v_lshlrev_b32 v{r0+4}, 16, v{r0}", f"v_and_b32 v{r0+5}, 0xffff0000, v{r0}",
              f"v_add_f32 v{r0+4}, v11, v{r0+4}", f"v_add_f32 v{r0+5}, v11, v{r0+5}",
              f"v_cvt_pk_bf16_f32 v{r0}, v{r0+4}, v{r0+5}",
              f"ds_write_b32 v10, v{r0}",
              "ds_read_b64 v[24:25], v15", "ds_read_b64 v[26:27], v15 offset:32",
              "ds_read_b64 v[28:29], v14", "ds_read_b64 v[30:31], v14 offset:32", "GAP",
              "v_mfma_f32_16x16x32_bf16 v[164:167], v[16:19], v[24:27], 0",
              "v_mfma_f32_16x16x32_bf16 v[168:171], v[20:23], v[24:27], 0"]
        for e in range(4): L += [f"v_lshlrev_b32 v{r0+2*e}, 16, v{28+e}", f"v_and_b32 v{r0+2*e+1}, 0xffff0000, v{28+e}"]
        for f in range(2):
            for e in range(4):
                w = 16 + 4 * f + e
                t = r0 + 8 + 2 * (e % 2)
                L += [f"v_lshlrev_b32 v{t}, 16, v{w}", f"v_and_b32 v{t+1}, 0xffff0000, v{w}",
                      f"v_mul_f32 v{t}, v{t}, v{r0+2*e}", f"v_mul_f32 v{t+1}, v{t+1}, v{r0+2*e+1}",
                      f"v_cvt_pk_bf16_f32 v{w}, v{t}, v{t+1}"]
            L.append(f"buffer_store_dwordx4 {Q4(16+4*f)}, v9, {WS}, s{40+f} offen sc1")
        L.append(f"s_mov_b32 exec_lo, 0x00030003 | s_mov_b32 exec_hi, 0x00030003 | buffer_store_dwordx4 v[164:167], v13, {WS}, s42 offen sc1 | buffer_store_dwordx4 v[168:171], v13, {WS}, s42 offen offset:256 sc1 | s_mov_b64 exec, -1")
        return L

    UPS = 32768 + 114688
    def g1_addr(self):
        self.a(f"""
        s_lshl_b32 s64, s74, 2
        s_add_u32 s64, s64, {sWV}
        s_lshl_b32 s64, s64, 15
        s_add_u32 s64, s64, {WS_X1}
        s_lshl_b32 s65, s75, 4
        s_add_u32 s65, s65, {sWV}
        s_mul_i32 s65, s65, 7168
        s_add_u32 s65, s65, {WS_W1P}
        s_mul_i32 s66, {sWV}, 7168
        s_add_u32 s66, s66, {self.WB}
        s_lshl_b32 s67, s75, 2
        s_add_u32 s67, s67, {sWV}
        s_lshl_b32 s67, s67, 12
        s_add_u32 s67, s67, {WS_UP}
        s_mov_b32 s44, s64
        s_mul_i32 s45, s75, {16*7168}
        s_add_u32 s45, s45, {WS_W1P}
        v_lshlrev_b32 v8, 4, v1
        v_add_u32 v10, {self.WB}, v8
        v_add_u32 v11, 57344, v10
        v_lshlrev_b32 v248, 2, v0
        v_add_u32 v249, {self.UPS}, v248
        """)
        for r in range(12, 16): self.a(f"v_mov_b32 v{r}, 0x3f803f80")

    def silu_tile(self, ft, t, u1, u2, w, dst):
        a = self.a
        d, o = 192 + 8 * ft + 4 * t, 60 + 2 * t
        for h in range(2): a(f"v_pk_fma_f32 {P(w+2*h)}, {P(u1+2*h)}, {P(o)}, {P(u2+2*h)} op_sel:[0,1,0] op_sel_hi:[1,1,1]")
        for h in range(2): a(f"v_pk_fma_f32 {P(d+2*h)}, {P(d+2*h)}, {P(o)}, {P(w+2*h)} op_sel_hi:[1,0,1]")
        for r in range(4): a(f"v_exp_f32 v{w+r}, v{d+r}")
        for h in range(2): a(f"v_pk_fma_f32 {P(w+2*h)}, {P(w+2*h)}, {P(254)}, {P(254)} op_sel_hi:[1,0,0]")
        for r in range(4): a(f"v_rcp_f32 v{w+r}, v{w+r}")
        for h in range(2): a(f"v_pk_mul_f32 {P(d+2*h)}, {P(d+2*h)}, {P(w+2*h)}")
        for h in range(2): a(f"v_cvt_pk_bf16_f32 v{dst+h}, v{d+2*h}, v{d+2*h+1}")

    def pair_store(self, ft, t, c):
        a = self.a
        b = 192 + 8 * (ft - 1) + 4 * t
        a(f"buffer_store_dwordx4 {Q4(b)}, v8, {WS}, s44 offen offset:{1024*t} sc1")
        a(f"v_bitop3_b32 v{c}, v{c}, v{b}, v{b+1} bitop3:0x96\nv_bitop3_b32 v{c}, v{c}, v{b+2}, v{b+3} bitop3:0x96")

    def g1_run(self, side, nside, early=0, na=0):
        a = self.a
        ops = []
        def X(i):
            def f():
                a(f"buffer_load_dwordx4 {Q4(64+4*i)}, v8, {WS}, s64 offen offset:{i%4*1024} sc1")
                if i % 4 == 3: a("s_add_u32 s64, s64, 4096")
            return (("x", i), f)
        def W(gm, j):
            def f():
                if j % 4 == 0: a(f"s_add_u32 m0, s66, {gm*4*7168 + 1024*j}\ns_add_u32 s60, s65, {gm*4*7168 + 1024*j}")
                a(f"buffer_load_dwordx4 v8, {WS}, s60 offen offset:{1024*(j%4)} sc1 lds")
            return (("w", gm, j), f)
        def UPl(j):
            def f():
                if j == 0: a(f"s_lshl_b32 s60, {sWV}, 12\ns_add_u32 m0, s60, {self.UPS}")
                a(f"buffer_load_dwordx4 v8, {WS}, s67 offen offset:{1024*j} sc1 lds")
            return (("u", j), f)
        if early == "weights":
            for gm in range(4):
                for j in range(4): W(gm, j)[1]()
            for j in range(4): UPl(j)[1]()
            return
        if early:
            pre = opt('g1pre', 10)
            ops += [X(i) for i in range(pre)]
            rest = [X(i) for i in range(pre, 32)]
            sd = [(("s", i), side) for i in range(na)]
            while rest or sd:
                ops += rest[:2] + sd[:1]
                rest, sd = rest[2:], sd[1:]
        else:
            for gm in range(4):
                if gm == 2: ops += [UPl(j) for j in range(4)]
                ops += [W(gm, j) for j in range(4)]
                ops += [X(i) for i in range(8 * gm, 8 * gm + 8)]
        for gm in range(4): ops += [W(gm, j) for j in range(4, 7)]
        keys = [k for k, _ in ops]
        pos = [0]
        def issue(n=1):
            for _ in range(n):
                if pos[0] < len(ops): ops[pos[0]][1](); pos[0] += 1
        def wait(key):
            i = keys.index(key)
            while pos[0] <= i: issue()
            a(f"s_waitcnt vmcnt({pos[0] - 1 - i})")
        WBE = opt('wbe', 0)
        issue(opt('g1pre', 10 if early else 20))
        NR, D = 8, 7
        Wr = lambda n: 16 + 4 * (n % NR)
        def frag(n, k, ft):
            a(f"ds_read_b128 {Q4(Wr(n))}, {'v10' if k < 8 else 'v11'} offset:{(k % 8) * 7168 + 1024 * ft}")
        def rdA(n):
            if n < 64:
                k, ft = divmod(n, 4)
                if ft == 0 and k % 4 == 0 and not early:
                    wait(("w", k // 4, 3))
                    a("s_barrier")
                frag(n, k, ft)
        def rdB(n):
            if n < 48: frag(n, n // 3, 4 + n % 3)
        def swaps(k):
            x = 64 + 8 * k
            wait(("x", 2 * k + 1))
            a(f"v_swap_b32 v{x+2}, v{x+4}\nv_swap_b32 v{x+3}, v{x+5}")
        for n in range(D): rdA(n)
        swaps(0)
        tail = self.g1_tail_setup()
        EA, young = [opt('ea', 0)], [0]
        for k in range(16):
            x = 64 + 8 * k
            if k == 8: a.region("g1b")
            if k % 4 == 0: self.stamp("h")
            for ft in range(4):
                n = 4 * k + ft
                a(f"s_waitcnt lgkmcnt({min(D - 1, 63 - n)})")
                d = 192 + 8 * ft
                a(f"v_mfma_f32_16x16x32_bf16 {Q4(d)}, {Q4(Wr(n))}, {Q4(x)}, {'0' if k == 0 else Q4(d)}")
                if (ft == 0 if opt('pa', 1) else ft != 2) and pos[0] < len(ops) - WBE: issue()
                a(f"v_mfma_f32_16x16x32_bf16 {Q4(d+4)}, {Q4(Wr(n))}, {Q4(x+4)}, {'0' if k == 0 else Q4(d+4)}")
                if k == 9:
                    for j in range(4): a(f"ds_read_b32 v{224+4*ft+j}, v249 offset:{1024*(4*ft+j)}")
                if k == 12:
                    st = (8, 4, 2, 1)[ft]
                    for j in range(st): a(f"v_add_f32 v{224+j}, v{224+j}, v{224+j+st}")
                if k == 13 and ft == 0: a(f"v_mul_f32 v224, {NLOG2E}, v224\nds_write_b32 v248, v224 offset:{self.T_U}")
                rdA(n + D)
                if ft in (1, 2):
                    t = ft - 1
                    for j, A in ((0, "v[12:15]"), (1, Q4(x + 4 * t))):
                        d = 48 + 8 * t + 4 * j
                        a(f"v_mfma_f32_16x16x32_bf16 {Q4(d)}, {A}, {Q4(x+4*t)}, {'0' if k == 0 else Q4(d)}")
                        if opt('pa', 1) and j == 0 and pos[0] < len(ops) - WBE: issue()
                        if ft == 2 and j == 0 and k < 15: swaps(k + 1)
                        elif k >= 3 and k not in (9, 12):
                            for _ in range(2):
                                if tail: a(tail.pop(0))
        assert not tail
        self.stamp("h")
        a.region("g1c")
        if not WBE: wait(("w", 3, 6))
        a("s_waitcnt lgkmcnt(0)\ns_barrier")
        issue(opt('wbe0', 4) if WBE else 0)
        for ft in range(4):
            a(f"ds_read_b128 {Q4(16+8*ft)}, v4 offset:{self.T_U + 64*ft}\nds_read_b128 {Q4(20+8*ft)}, v4 offset:{self.T_U + 512 + 64*ft}")
        for t in range(2):
            g = 52 + 8 * t
            a(f"v_cndmask_b32 v{g}, v{g}, v{g+1}, s[20:21]\nv_cndmask_b32 v{g}, v{g}, v{g+2}, s[22:23]\nv_cndmask_b32 v{g}, v{g}, v{g+3}, s[40:41]")
            a(f"ds_bpermute_b32 v{g}, v5, v{g}")
        for t in range(2):
            sm = 48 + 8 * t
            a(f"v_mul_f32 v{sm}, 0x3b000000, v{sm}\nv_mul_f32 v{sm+1}, v{sm}, v{sm}\nv_mov_b32 v{sm+2}, 0x3b000000")
        a("s_waitcnt lgkmcnt(0)")
        for t in range(2):
            sm, g = 48 + 8 * t, 52 + 8 * t
            a(f"v_fma_f32 v{g}, v{g}, v{sm+2}, -v{sm+1}\nv_max_f32 v{g}, 0, v{g}\nv_add_f32 v{g}, 0x3727c5ac, v{g}\nv_rsq_f32 v{sm+3}, v{g}")
        for t in range(2):
            sm, o = 48 + 8 * t, 60 + 2 * t
            a(f"v_mul_f32 v{o+1}, -v{sm}, v{sm+3}\nv_mul_f32 v{o}, v254, v{sm+3}")
        for ft in range(4):
            for t in range(2):
                self.silu_tile(ft, t, 16 + 8 * ft, 20 + 8 * ft, 224 + 4 * t, 192 + 8 * (ft & ~1) + 4 * t + 2 * (ft & 1))
                if WBE and pos[0] < len(ops): issue(4)
                elif EA[0] > 0: side(); EA[0] -= 1; young[0] += 1
                if ft & 1: self.pair_store(ft, t, 252); young[0] += 1
            if ft & 1: a("s_add_u32 s44, s44, 4096")
            if ft == 2 and not WBE:
                for n in range(6): rdB(n)
        assert pos[0] == len(ops)
        a(f"buffer_store_dword v252, v6, {WS}, s46 offen sc1")
        if WBE:
            a(f"s_waitcnt vmcnt({young[0] + 1})\ns_barrier")
            for n in range(6): rdB(n)
        rdB(6)
        self.stamp("h")
        a.region("g1d")
        for k in range(16):
            x = 64 + 8 * k
            for j in range(3):
                n = 3 * k + j
                a(f"s_waitcnt lgkmcnt({min(D - 1, 47 - n)})")
                d = 224 + 8 * j
                a(f"v_mfma_f32_16x16x32_bf16 {Q4(d)}, {Q4(Wr(n))}, {Q4(x)}, {'0' if k == 0 else Q4(d)}")
                if k == 14: a(f"ds_read_b128 {Q4(64+8*j)}, v4 offset:{self.T_U + 64*(4+j)}")
                if n == opt('ht', -1): self.h_touch(0)
                if n % 2 == 0 and nside > 0: side(); nside -= 1
                elif nside == 0 and k >= opt('hk', 8) and self.g2_todo and (n % 2 == 0 or not opt('pb4', 0)):
                    if not self.g2_log: self.g2_run()
                    lim = {8: 6, 9: 6, 10: 10, 11: 10}.get(k, 16 if k < 12 else 99) if False else (6 if k < 8 else 10 if k < 10 else 16 if k < 12 else 99)
                    if len(self.g2_log) < lim:
                        a(self.g2_todo.pop(0)); self.g2_log.append("l")
                a(f"v_mfma_f32_16x16x32_bf16 {Q4(d+4)}, {Q4(Wr(n))}, {Q4(x+4)}, {'0' if k == 0 else Q4(d+4)}")
                if k == 14: a(f"ds_read_b128 {Q4(68+8*j)}, v4 offset:{self.T_U + 512 + 64*(4+j)}")
                rdB(n + D)

    def g1_tail_setup(self):
        T = f"""
        v_lshlrev_b32 v4, 4, v3
        v_lshrrev_b32 v5, 2, v2
        v_lshl_add_u32 v5, v5, 4, v2
        v_lshlrev_b32 v5, 2, v5
        v_and_b32 v6, 3, v1
        v_cmp_eq_u32 s[20:21], 1, v6
        v_cmp_eq_u32 s[22:23], 2, v6
        v_cmp_eq_u32 s[40:41], 3, v6
        s_lshl_b32 s44, s74, 1
        s_lshr_b32 s61, {sWV}, 1
        s_add_u32 s44, s44, s61
        s_lshl_b32 s46, s44, 4
        s_add_u32 s46, s46, s75
        s_lshr_b32 s47, s46, 1
        s_and_b32 s62, {sWV}, 1
        s_lshl_b32 s46, s46, 1
        s_add_u32 s46, s46, s62
        s_lshl_b32 s46, s46, 9
        s_add_u32 s46, s46, {WS_HC}
        s_lshl_b32 s47, s47, 1
        s_add_u32 s47, s47, s62
        s_lshl_b32 s47, s47, 9
        s_and_b32 s63, s75, 1
        s_lshl_b32 s61, s63, 8
        s_add_u32 s47, s47, s61
        s_add_u32 s47, s47, {WS_HM}
        s_mul_i32 s44, s44, 56
        s_lshr_b32 s61, s75, 1
        s_mul_i32 s61, s61, 7
        s_add_u32 s44, s44, s61
        s_lshl_b32 s44, s44, 12
        s_lshl_b32 s61, s62, 11
        s_add_u32 s44, s44, s61
        s_add_u32 s44, s44, {WS_H}
        s_lshl_b32 s61, s63, 9
        s_add_u32 s45, s44, s61
        s_add_u32 s45, s45, {6*4096}
        s_mul_i32 s61, s63, {3*4096}
        s_add_u32 s44, s44, s61
        v_and_b32 v6, 1, v3
        v_lshlrev_b32 v7, 10, v6
        v_lshl_add_u32 v7, v2, 4, v7
        v_lshrrev_b32 v250, 1, v3
        v_lshl_add_u32 v7, v250, 8, v7
        v_lshlrev_b32 v250, 7, v250
        v_lshl_add_u32 v250, v2, 3, v250
        v_lshl_add_u32 v250, v6, 2, v250
        s_lshl_b32 s61, s62, 4
        s_add_u32 s61, s61, 3
        s_add_u32 s63, s62, 5
        v_mul_u32_u24 v6, s63, v6
        v_add_u32 v6, s61, v6
        v_alignbit_b32 v251, s80, s80, v6
        s_mul_i32 s61, s62, 13
        v_mov_b32 v6, s61
        v_alignbit_b32 v252, s80, s80, v6
        v_mov_b32 v253, v252
        v_mov_b32 v254, {NLOG2E}
        v_lshlrev_b32 v6, 2, v1
        """
        return [x.strip() for x in T.split("\n") if x.strip()]

    def g1_epilogue(self, tb):
        a = self.a
        early = self.g2_todo
        def ld(n):
            for _ in range(n):
                if early: a(early.pop(0)); self.g2_log.append("l")
        ld(opt('g2b0', 6))
        a("s_waitcnt lgkmcnt(0)\nv_mov_b32 v184, v249")
        for ft in (6, 4, 5):
            if ft == 4: a.region("g1e1")
            u = 64 + 8 * (ft - 4)
            for t in range(2):
                self.silu_tile(ft, t, u, u + 4, 32 + 4 * t, 40 + 2 * t if ft == 6 else 224 + 4 * t + 2 * (ft & 1))
                ld(3)
                if ft == 5: self.pair_store(ft, t, 253); self.g2_log.append("s")
            if ft == 6:
                a("v_permlane16_swap_b32 v40, v42\nv_permlane16_swap_b32 v41, v43")
                a(f"buffer_store_dwordx4 v[40:43], v7, {WS}, s45 offen sc1")
                a("v_bitop3_b32 v251, v251, v40, v41 bitop3:0x96\nv_bitop3_b32 v251, v251, v42, v43 bitop3:0x96")
                a(f"buffer_store_dword v251, v250, {WS}, s47 offen sc1")
                self.g2_log += ["s", "s"]
        a(f"buffer_store_dword v253, v6, {WS}, s46 offen offset:256 sc1")
        self.g2_log.append("s")
        ld(99)

    def g2_run(self):
        a = self.a
        a(f"""
        s_mul_i32 s78, s76, 56
        s_mul_i32 s61, {sWV}, 14
        s_add_u32 s78, s78, s61
        s_lshl_b32 s78, s78, 12
        s_add_u32 s78, s78, {WS_H}
        s_lshl_b32 s16, s76, 2
        s_add_u32 s16, s16, {sWV}
        s_lshl_b32 s15, s16, 11
        s_add_u32 s15, s15, {WS_HM}
        s_lshl_b32 s16, s16, 12
        s_add_u32 s16, s16, {WS_HC}
        s_mov_b32 s60, s80
        s_mov_b32 s61, s80
        s_lshr_b64 s[62:63], s[60:61], 13
        s_xor_b32 s20, s80, s62
        s_lshr_b64 s[62:63], s[60:61], 3
        s_mov_b32 s21, s62
        s_lshr_b64 s[62:63], s[60:61], 8
        s_xor_b32 s21, s21, s62
        s_lshr_b64 s[62:63], s[60:61], 19
        s_xor_b32 s21, s21, s62
        s_lshr_b64 s[62:63], s[60:61], 25
        s_xor_b32 s21, s21, s62
        s_lshl_b32 s60, {sWV}, 10
        v_add_u32 v12, s60, v8
        v_add_u32 v13, 1024, v12
        v_add_u32 v14, 2048, v12
        v_add_u32 v15, 3072, v12
        v_and_b32 v13, 4095, v13
        v_and_b32 v14, 4095, v14
        v_and_b32 v15, 4095, v15
        v_lshlrev_b32 v9, 3, v1
        s_mov_b32 s19, 0
        """)

    def h_touch(self, late):
        a = self.a
        if not late:
            a(f"""
            s_mul_i32 s17, s76, 56
            s_mul_i32 s61, {sWV}, 14
            s_add_u32 s17, s17, s61
            s_lshl_b32 s17, s17, 12
            s_lshl_b32 s61, s77, 9
            s_add_u32 s17, s17, s61
            s_add_u32 s17, s17, {WS_H}
            v_bfe_u32 v248, v1, 2, 3
            v_lshlrev_b32 v248, 2, v248
            s_mov_b32 s61, 0xba874310
            v_lshrrev_b32 v248, v248, s61
            v_and_b32 v248, 15, v248
            v_lshlrev_b32 v248, 12, v248
            v_and_b32 v249, 3, v1
            v_lshl_add_u32 v248, v249, 7, v248
            buffer_load_dword v255, v248, {WS}, s17 offen sc1
            v_bfe_u32 v248, v1, 2, 3
            v_lshlrev_b32 v248, 2, v248
            s_mov_b32 s61, 0xdddc9652
            v_lshrrev_b32 v248, v248, s61
            v_and_b32 v248, 15, v248
            v_lshlrev_b32 v248, 12, v248
            v_lshl_add_u32 v249, v249, 7, v248
            """)
        else:
            a(f"buffer_load_dword v7, v184, {WS}, s17 offen sc1")

    def g2_plan(self):
        HR = 8
        k0 = lambda cb: 7 * (cb // 2) + 3 * (cb % 2)
        groups = [("a", cb, [k0(cb), k0(cb) + 1]) for cb in range(4)]
        groups += [("b", 0, [2]), ("b", 1, [5]), ("m", 0, [6]), ("b", 2, [9]), ("b", 3, [12]), ("m", 1, [13])]
        order = [k for g in groups for k in g[2]]
        slot = {k: 32 + 16 * ((p + 4) % HR) for p, k in enumerate(order)}
        loads, chk, c = [], [], 88
        for kind, i, ks in groups:
            if kind == "a" and i == 2: c = 160
            p0 = order.index(ks[0])
            if kind == "m":
                chk.append([c, c + 1, c + 2, c + 3])
                for h in range(2):
                    loads.append((p0, None, f"buffer_load_dwordx2 {P(c+2*h)}, v9, {WS}, s15 offen offset:{1024*i + 512*h} sc1"))
                c += 4
            else:
                chk.append([c, c + 1])
                for h in range(2):
                    loads.append((p0, None, f"buffer_load_dword v{c+h}, v6, {WS}, s16 offen offset:{1024*i + 512*h + (256 if kind == 'b' else 0)} sc1"))
                c += 2
            for k in ks:
                for st in range(4):
                    pre = f"s_add_u32 s18, s78, {4096*k}\n" if st == 0 else ""
                    loads.append((order.index(k), (k, st), pre + f"buffer_load_dwordx4 {Q4(slot[k]+4*st)}, v{12+st}, {WS}, s18 offen sc1"))
        self.g2p = (HR, groups, order, slot, loads, chk)
        self.g2_early = [l[2] for l in loads[:opt('g2pre', 20)]]
        self.g2_log = []
        self.g2_todo = list(self.g2_early)

    def g2_body(self):
        a = self.a
        HR, groups, order, slot, loads, chk = self.g2p
        npre = len(self.g2_early)
        merged, it = [], iter(loads[:npre])
        for t in self.g2_log: merged.append(next(it) if t == "l" else (0, None, None))
        loads = merged + loads[npre:]
        nissued = len(merged)
        if opt('ht2', -1) >= 0:
            at = max(nissued, min(i for i, l in enumerate(loads) if l[0] >= opt('ht2', -1) and l[2]))
            loads.insert(at, (loads[at][0], None, f"buffer_load_dword v7, v184, {WS}, s17 offen sc1"))
        keys = [l[1] for l in loads]
        pos = [nissued]
        def issue(maxp):
            if pos[0] < len(loads) and loads[pos[0]][0] <= maxp:
                a(loads[pos[0]][2]); pos[0] += 1
        def wait(key):
            i = keys.index(key)
            while pos[0] <= i: issue(99)
            a(f"s_waitcnt vmcnt({pos[0] - 1 - i})")
        def vsteps(gi):
            x, out = 4 + gi % 2, []
            for j, k in enumerate(groups[gi][2]):
                regs = (list(chk[gi]) if j == 0 else [x]) + [slot[k] + i for i in range(16)]
                L = [("w", (k, 3)), f"v_bitop3_b32 v{x}, v{regs[0]}, v{regs[1]}, v{regs[2]} bitop3:0x96"]
                rest = regs[3:]
                while len(rest) >= 2: L.append(f"v_bitop3_b32 v{x}, v{x}, v{rest.pop(0)}, v{rest.pop(0)} bitop3:0x96")
                if rest: L.append(f"v_xor_b32 v{x}, v{x}, v{rest.pop(0)}")
                out.append(L)
            out[-1].append(f"v_cmp_ne_u32 vcc, {'s21' if groups[gi][0] == 'm' else 's20'}, v{x}\ns_cbranch_vccnz L_g2_retry")
            return out
        def run(t):
            if isinstance(t, tuple): wait(t[1])
            else: a(t)
        tail = self.g2_tail_setup()
        if opt('force', 0): a(f"s_xor_b32 s{19 + opt('force', 0)}, s{19 + opt('force', 0)}, 1")
        a("L_g2_go:")
        a.fence()
        a(f"s_waitcnt vmcnt({nissued - 1 - max(i for i, t in enumerate(self.g2_log) if t == 'e')})")
        self.g2_epi_pre(0)
        for L in vsteps(0):
            for t in L: run(t)
        for gi, (kind, _, ks) in enumerate(groups):
            nxt = vsteps(gi + 1) if gi + 1 < len(groups) else []
            nxt = [[] for _ in range(len(ks) - len(nxt))] + nxt
            for j, k in enumerate(ks):
                p = order.index(k)
                if p in (5, 10): a.region("g2" + "abc"[p // 5])
                self.stamp("g")
                cur = nxt[j]
                last = p == 13
                wr = lambda st: [f"ds_write_b128 v{127+st}, {Q4(192+16*st+4*dt)} offset:{1024*dt}" for dt in range(4)]
                for si, st in enumerate((1, 2, 3, 0) if last else range(4)):
                    pend = wr(si - 1) if last and si >= 2 else []
                    for dt in range(4):
                        d = 192 + 16 * st + 4 * dt
                        a(f"v_mfma_f32_16x16x32_bf16 {Q4(d)}, a[{16*k+4*dt}:{16*k+4*dt+3}], {Q4(slot[k]+4*st)}, {'0' if p == 0 else Q4(d)}")
                        i = 4 * si + dt
                        if i in {4: (0, 4, 8, 12), 5: (0, 3, 6, 10, 13), 6: (0, 3, 6, 9, 12, 15)}[opt('g2n', 5)]: issue(p + HR - 1)
                        if pend: a(pend.pop(0))
                        if i >= 9:
                            for _ in range(2):
                                if cur: run(cur.pop(0))
                        elif p >= 12:
                            for _ in range(3):
                                if tail: a(tail.pop(0))
                if last:
                    assert not tail
                    for t in wr(3): a(t)
                assert not cur
        assert pos[0] == len(loads)

    def g2_tail_setup(self):
        rb = self.WB
        L = []
        for j in range(1, 4):
            L += [f"s_add_u32 s60, {sWV}, {j} | s_and_b32 s60, s60, 3 | s_mul_i32 s60, s60, 12288 | s_add_u32 s60, s60, {rb + 4096*(j-1)} | v_lshl_add_u32 v{127+j}, v1, 4, s60"]
        L += [f"s_mul_i32 s60, {sWV}, 12288 | s_add_u32 s60, s60, {rb} | v_lshl_add_u32 v131, v1, 4, s60",
              "v_lshlrev_b32 v132, 10, v2", "v_lshl_add_u32 v132, v3, 4, v132",
              f"s_lshl_b32 s22, s76, 16 | s_lshl_b32 s61, {sWV}, 14 | s_add_u32 s22, s22, s61 | s_lshl_b32 s61, s77, 7 | s_add_u32 s22, s22, s61"]
        L += [f"v_accvgpr_read_b32 v{96+i}, a{224+i}" for i in range(16)]
        for dt in range(4):
            x = 20 + 2 * dt
            L += [f"v_lshlrev_b32 v{112+4*dt}, 16, v{x}", f"v_and_b32 v{113+4*dt}, 0xffff0000, v{x}",
                  f"v_lshlrev_b32 v{114+4*dt}, 16, v{x+1}", f"v_and_b32 v{115+4*dt}, 0xffff0000, v{x+1}"]
        return [t.replace(" | ", "\n") for t in L]

    def g2_epilogue(self, rb, tb):
        a = self.a
        a("s_waitcnt lgkmcnt(0)\ns_barrier")
        for dt in range(4):
            for src in range(3):
                a(f"ds_read_b128 {Q4(136 + 12*dt + 4*src)}, v131 offset:{4096*src + 1024*dt}")
        for dt in range(4):
            r, o = 136 + 12 * dt, 192 + 4 * dt
            a(f"s_waitcnt lgkmcnt({9 - 3*dt})")
            for h in range(2): a(f"v_pk_add_f32 {P(r+2*h)}, {P(r+2*h)}, {P(r+4+2*h)}\nv_pk_add_f32 {P(o+2*h)}, {P(o+2*h)}, {P(r+8+2*h)}")
            for h in range(2): a(f"v_pk_add_f32 {P(r+2*h)}, {P(r+2*h)}, {P(o+2*h)}")
            for h in range(2): a(f"v_pk_fma_f32 {P(r+2*h)}, {P(r+2*h)}, {P(96+4*dt+2*h)}, {P(112+4*dt+2*h)}")
            for h in range(2): a(f"v_cvt_pk_bf16_f32 v{80+2*dt+h}, v{r+2*h}, v{r+2*h+1}")
            if dt == 1 and self.diag == "lsb":
                self.stamp("*")
                reg = lambda i: 82 + i if i < 15 else 85 + i
                a("s_cmp_lg_u32 s2, 100\ns_cbranch_scc1 L_nolsb")
                for j in range(4):
                    for g in range(4):
                        i = min(4 * j + g + 1, self.nst - 1)
                        a(f"s_sub_u32 s60, s{reg(i)}, s82\nv_cmp_eq_u32 vcc, {g}, v3\nv_mov_b32 v5, s60\nv_cndmask_b32 v4, v4, v5, vcc")
                    a(f"v_lshrrev_b32 v4, v2, v4\nv_and_b32 v4, 1, v4\nv_and_b32 v{80+j}, -2, v{80+j}\nv_or_b32 v{80+j}, v{80+j}, v4")
                a("L_nolsb:")
                self.diag = False
            if dt % 2 == 1:
                a(f"buffer_store_dwordx4 {Q4(80+2*(dt-1))}, v132, {OUT}, s22 offen offset:{32*(dt-1)}{self.OUTM}")

    def g2_retry(self):
        self.a(f"""
        L_g2_retry:
        s_waitcnt vmcnt(0)
        s_add_u32 s19, s19, 1
        s_cmp_gt_u32 s19, {SPIN}
        s_cbranch_scc1 L_g2_giveup
        s_sleep {opt('g2sleep', 2)}
        """)
        if opt('force', 0): self.a(f"s_cmp_eq_u32 s19, 2\ns_cselect_b32 s60, 1, 0\ns_xor_b32 s{19 + opt('force', 0)}, s{19 + opt('force', 0)}, s60")
        for t in self.g2_early: self.a(t)
        self.a("s_waitcnt vmcnt(0)\ns_branch L_g2_go")

def build_fused2(diag=False):
    g = G2(sc=True, diag=diag)
    a = g.a
    S = g.stamp
    kn = NAME + "_kernel"
    ref = open("cdna_kernels/" + NAME + ".s.ref").read().split("\n")
    hdr = [ln for ln in ref if ln.startswith(";") and "@launch" not in ln and "Override" not in ln and "grid=ceil" not in ln]
    hdr += ["; One persistent workgroup per CU. Stages: kv = shift_conv(k)*v, transposed through d_ws -> Toeplitz MFMA long",
            "; convolution per channel -> x1 -> GEMM1 (LayerNorm folded in) + SiLU -> GEMM2 + gated residual.",
            "; Hand-offs between workgroups use write-through stores with launch-tagged flags, tags or check words.",
            "; @launch grid=(256,1,1) block=(256,1,1) lds=163840"]
    a.raw('.amdgcn_target "amdgcn-amd-amdhsa--gfx950"\n.text')
    g.entry2(kn)
    a(f"s_cmp_ge_u32 {sWV}, 2\ns_cbranch_scc1 L_role_b")
    n0 = g.nst
    g.role_a()
    if HINT: g.flag_a()
    QP = opt('qp', 2)
    if QP == 0: g.q_rows()
    a(f"s_waitcnt vmcnt({(9 if HINT else 4) + (8 if QP == 0 else 0)})\ns_branch L_join1\nL_role_b:")
    a.fence()
    g.nst = n0
    a.region("end")
    if opt('cpf', 1) == 3: g.code_prefetch2()
    a(f"s_sub_u32 s6, {sWV}, 2")
    g.srd_words((8, 9, 0, 11, 4, 5, 6, 7, 10))
    a(f"s_waitcnt lgkmcnt(0)\nv_mov_b32 v4, {WS_TAG}\nbuffer_load_dwordx2 v[254:255], v4, {WS}, 0 offen sc1")
    if opt('tlb', 1):
        a(f"""
        v_min_u32 v4, 14, v1
        v_lshlrev_b32 v4, 21, v4
        v_add_u32 v4, {2*MB - 128}, v4
        buffer_load_dword v248, v4, {WS}, 0 offen
        v_mov_b32 v4, 0
        buffer_load_dword v251, v4, {OUT}, 0 offen
        buffer_load_dword v250, v4, {W1}, 0 offen
        buffer_load_dword v249, v4, {W2}, 0 offen
        """)
    BF = opt('bf', 0)
    if BF:
        g.c_ids()
        g.filter_load()
        if BF == 1:
            g.role_b_loads_gemv()
            g.role_b_loads2()
        g.g1_ids(); g.g2_ids()
        S()
        a(f"s_waitcnt vmcnt({13 if BF == 1 else 0})"); S(); S()
    else:
        g.role_b_loads_gemv()
        g.role_b_loads2()
        g.c_ids(); g.g1_ids(); g.g2_ids()
        if opt('warm', 0) == 1: g.warm((2, ["brest0", "g1a"]), (3, ["brest1", "cepi", "prep1", "g1b"]))
        if opt('warm', 0) == 3: g.warm((2, ["brest0"]), (3, ["brest1"]))
        S()
        a("v_and_b32 v2, 15, v1\nv_lshrrev_b32 v3, 4, v1")
        a.region("brest0")
        W2AT = opt('w2at', 0)
        g.n_after = 8 if W2L or W2AT else 12
        def after():
            g.filter_load()
            if not W2L and not W2AT: g.w2_unit_load()
        g.role_b_rest(0, after_wait=after); S()
        a(f"s_waitcnt vmcnt({2 if W2L or W2AT else 6})")
        if W2AT == 1: g.w2_unit_load()
        S()
    a("L_join1:")
    a.fence()
    a.region("fprep")
    g.filter_copies(); S()
    def mid():
        if HINT: return
        a(f"s_cmp_ge_u32 {sWV}, 2\ns_cbranch_scc1 L_mid_b\ns_waitcnt vmcnt({8 if QP == 0 else 0})")
        g.flag_a()
        if BF and not W2L:
            a("s_branch L_mid_done\nL_mid_b:")
            keep = (4, 5, 8, 14)
            for i, r in enumerate(keep): a(f"v_mov_b32 v{140+i}, v{r}")
            if BF == 2:
                g.role_b_loads_gemv()
                g.role_b_loads2()
            g.w2_unit_load()
            for i, r in enumerate(keep): a(f"v_mov_b32 v{r}, v{140+i}")
            a("v_and_b32 v2, 15, v1\nv_lshrrev_b32 v3, 4, v1\nL_mid_done:")
            return
        if QP == 1:
            a("v_mov_b32 v250, v5")
            g.q_rows()
            a("v_mov_b32 v5, v250")
        a("L_mid_b:")
    g.filter_prep(mid); S()
    a.region("ufetch")
    st = dict()
    a(f"s_cmp_ge_u32 {sWV}, 2\ns_cbranch_scc1 L_role_b2")
    if opt('q1', 0):
        a(f"s_cmp_eq_u32 {sWV}, 0\ns_cbranch_scc1 L_join2")
        g.q_rows("0"); g.q_rows("1")
    else:
        g.q_rows()
    a("s_branch L_join2\nL_role_b2:")
    a.fence()
    if BF:
        a.region("brest0")
        g.n_after = 0 if W2L else 4
        g.role_b_rest(0 if W2L else 4)
    if opt('w2at', 0) == 2: g.w2_unit_load()
    if not W2L: g.w2_unit_pack(0 if opt('w2at', 0) else 2)
    if opt('fm', 1) < 0: g.flag_m(0)
    a("L_join2:")
    a.region("addr")
    a.fence()
    g.u_addr()
    g.pre_conv()
    if opt('warm', 0) >= 2: g.warm((1, ["conv0", "cepi"]), (2, ["conv1", "prep1"]), (3, ["g1a", "g1b"]))
    g.u_wait()
    S(); S("c")
    a("s_waitcnt lgkmcnt(0)\ns_barrier")
    g.u_fetch(); S()
    w2 = dict(n=0)
    def side():
        g.g2_w2_one(w2['n']); w2['n'] += 1
    a.region("conv0")
    log = []
    younger = lambda tag: len(log) - 1 - max(i for i, t in enumerate(log) if t == tag)
    modl = g.mod_load_list(32)
    wl = g.w_stream(32, 0)
    st.update(hold=0, w=g.e_stream() + wl[wl.index("WAIT"):], q=[('e', t) for t in g.epi_load_list()] + [('m', t) for t in modl])
    Q0 = opt('q0', 2)
    def hook(n):
        if n == 40: a.region("conv1")
        if n in (0, 8, 16, 24, 32, 40, 50, 60, 70, 79): S("c")
        if n >= Q0 and n % 2 == 0 and st['q']:
            tg, t = st['q'].pop(0)
            log.append(tg); a(t)
        for _ in range(opt('wr', 3)):
            if not st['w'] or st['hold'] > n: break
            t = st['w'][0]
            if t == "EWAIT":
                if n < Q0 + opt('ew', 22): break
                a(f"s_waitcnt vmcnt({younger('e')})")
            elif t == "EVERIFY":
                g.verify("e", [125] + [109 + 2*i for i in range(8)], 154, g.epi_load_list())
            elif t == "WAIT":
                if n < Q0 + opt('ww', 26): break
                a(f"s_waitcnt vmcnt({younger('m')})")
            elif t == "VERIFY":
                g.verify("w", [33 + 2*i for i in range(8)], 24, modl)
            elif t == "GAP":
                assert n <= 64
                st['hold'] = n + 8
            else:
                a(t.replace(" | ", "\n")); log.extend('s' * t.count("buffer_store"))
            st['w'].pop(0)
        if W2L:
            U0, U1, U2 = opt('u0', 1), opt('u1', 33), opt('u2', 67)
            if n in (U0, U0 + 2):
                a(f"s_add_u32 m0, s44, {512*(n-U0)}\nbuffer_load_dwordx4 v169, {W2}, {'s23' if n == U0 else 's22'} offen{g.NT} lds"); log.append('u')
            if n == U1:
                a(f"s_waitcnt vmcnt({younger('u')})")
                a("ds_read_b64_tr_b16 v[128:129], v174\nds_read_b64_tr_b16 v[130:131], v175\nds_read_b64_tr_b16 v[132:133], v174 offset:8\nds_read_b64_tr_b16 v[134:135], v175 offset:8")
            if n in (U1 + 8, U1 + 10):
                j = (n - U1 - 8) // 2
                a(f"buffer_store_dwordx4 {Q4(128+4*j)}, v9, {WS}, s45 offen offset:{1024*j} sc1"); log.append('p')
            if n == U2:
                a(f"s_waitcnt vmcnt({younger('p')})")
                g.flag_store("s46", 1, 3, 136); log.append('s')
        if n == opt('fm', 1) and not W2L:
            a(f"s_cmp_lt_u32 {sWV}, 2\ns_cbranch_scc1 L_skip_m")
            g.flag_m(len(log) + 8)
            a("L_skip_m:")
        WM = opt('wm', 40)
        if W2L: WM = 999
        if n == max(0, WM - 14):
            a(f"buffer_load_dwordx2 v[252:253], v248, {WS}, 0 offen sc1"); log.append('f')
        if n == WM: g.poll("M", first_issued=True, va="v248", vd=252, later=younger('f'))
        if n >= WM and n % 2 == 1 and w2['n'] < opt('w2conv', 18):
            side(); log.append('w')
    g.conv_main(hook); S()
    assert not st['q']
    a.region("cepi")
    print("w_stream left after conv:", len(st['w']), file=sys.stderr)
    for t in st['w']:
        assert t not in ("WAIT", "GAP", "VERIFY")
        a(t.replace(" | ", "\n")); log.extend('s' * t.count("buffer_store"))
    S("c")
    g.conv_epilogue(); S("c")
    if W2L: a(f"buffer_load_dwordx2 v[252:253], v248, {WS}, 0 offen sc1")
    a.region("prep1")
    EARLY = opt('early', 0)
    if EARLY:
        a(f"""
        s_and_b32 s60, s2, 15
        s_lshl_b32 s60, s60, 4
        s_lshr_b32 s61, s2, 4
        s_add_u32 s60, s60, s61
        s_lshl_b32 s60, s60, 2
        s_add_u32 s60, s60, {sWV}
        s_lshl_b32 s60, s60, {FL}
        s_add_u32 s60, s60, {FLAG_W}
        s_and_b32 s61, s2, 8
        s_lshl_b32 s61, s61, {7 + FL}
        s_add_u32 s60, s60, s61
        s_waitcnt vmcnt(2)
        """)
        g.flag_store("s60", 4, 11 + FL, 4)
    g.signal_all(FLAG_2, 8, 2); S()
    if W2L: g.poll("M", va="v248", vd=252, first_issued=True, later=1)
    g.g1_addr()
    if EARLY:
        a(f"""
        s_lshl_b32 s60, {sX}, 4
        s_add_u32 s60, s60, s75
        s_lshl_b32 s60, s60, {6 + FL}
        s_add_u32 s60, s60, {FLAG_W}
        v_lshl_add_u32 v4, v1, {FL}, s60
        """)
        a(f"buffer_load_dwordx2 v[6:7], v4, {WS}, 0 offen sc1")
        n0 = w2['n']
        while w2['n'] < 56 - opt('w2b', 12) - opt('w2a', 14): side()
        g.poll("W", first_issued=True, later=w2['n'] - n0)
        g.g1_run(None, 0, early="weights")
    else:
        while w2['n'] < 56 - opt('w2e3', 0) - opt('w2b', 12) - opt('ea', 0): side()
    g.warm((0, ["g1c"]), (1, ["g1d"]), (2, ["g1e0", "g2a", "g2b"]), (3, ["g1e1", "g2c", "g2e"])); S()
    a(f"""
    s_lshl_b32 s60, {sX}, {8 + FL}
    s_add_u32 s60, s60, {FLAG_2}
    v_lshl_add_u32 v4, v0, {FL}, s60
    """)
    a.region("g1a")
    for i in range(opt('p2', 0)): a("s_sleep 4")
    g.poll("2")
    a("s_barrier"); S(); S("h")
    g.g2_plan()
    g.g1_run(side, opt('w2b', 12), EARLY, opt('w2a', 14))
    S()
    S("h")
    a.region("g1e0")
    assert w2['n'] == 56
    if not g.g2_log: g.g2_run()
    g.g2_epi_load()
    g.g2_log += ["e"] * 8
    g.g1_epilogue(G2.T_U - 4096)
    S("h")
    a("s_barrier"); S()
    a.region("g2a")
    S(); S("g"); S("h")
    g.g2_body(); S(); S("h")
    a("L_g2_giveup:")
    if diag and opt('cnt', 0):
        a(f"s_lshl_b32 s60, s2, 2\ns_add_u32 s60, s60, {sWV}\ns_lshl_b32 s60, s60, 7\ns_add_u32 s60, s60, {WS_DIAG + 124}\nv_mov_b32 v4, s60\nv_mov_b32 v5, s19\nbuffer_store_dword v5, v4, {WS}, 0 offen")
    a.region("g2e")
    g.g2_epilogue(G2.WB, 0)
    a.region("end")
    g.tag_update()
    g.exit(kn)
    g.g2_retry()
    a("L_warm_ret:\ns_setpc_b64 s[98:99]" if opt('warm', 0) else "L_warm_ret:\ns_endpgm")
    a.raw('.section .rodata,"a"')
    a.raw(desc(kn, 512, 256))
    if not opt('warm', 0):
        a.lines = [ln for ln in a.lines if not ln.startswith(";@region")]
    txt, size = add_pads(a.text(), opt('pad', 256))
    print("code bytes", size, file=sys.stderr)
    return "\n".join(hdr) + "\n" + txt

if __name__ == "__main__":
    diag = sys.argv[2] if len(sys.argv) > 2 else False
    open(sys.argv[1], "w").write(build_fused2(diag))
```

```python
import sys, os
OPT = dict(kv.split('=') for kv in os.environ.get('OPT', '').split(',') if kv)
opt = lambda k, d: int(OPT.get(k, d))
from asmlib import Asm, desc, add_pads
from gen import *

WS_W1P, WS_UP = 21 * MB, 23 * MB
WS_HC, WS_HM, WS_TAG = 26 * MB, 27 * MB, 28 * MB
MODP = 3072 * 8
FLAG_A, FLAG_B, FLAG_2, FLAG_3 = WS_FLAG, WS_FLAG + MB, WS_FLAG + 2 * MB, WS_FLAG + 3 * MB
FLAG_W = 25 * MB
HINT = opt('hint', 0)
W2L = opt('w2late', 0)
FL = opt('fl', 6)
P = lambda r: f"v[{r}:{r+1}]"
Q4 = lambda r: f"v[{r}:{r+3}]"

class G2(G):
    NT = " nt" if opt('nt', 1) else ""
    OUTM = ["", " sc1", " nt", " sc0 sc1"][opt('outm', 0)]
    NTF = " nt" if opt('ntf', 1) else ""
    NTQ = " nt" if opt('ntq', 0) else ""
    NTW1 = " nt" if opt('ntw1', 0) else ""
    FB, FSZ, WB = 1536, 7584, 32768
    XI, XI_RS = 1536, 7616
    T_GB, T_U, T_UP = 1536 + 2560, 1536 + 4608, 1536 + 7584 + 2560

    def entry2(self, name):
        a = self.a
        a.raw(f".globl {name}\n.p2align 8\n.type {name},@function")
        a.label(name)
        a.fence()
        a(f"s_cmp_ge_u32 s2, 256\ns_cbranch_scc1 L_end_{name}")
        self.stamp("*")
        if opt('cpf', 1) == 2: self.code_prefetch()
        for i in (1, 2, 3, 8, 9, 0, 11, 4, 5, 6, 7, 10):
            r, off, n = SRD_INFO[i]
            a(f"s_load_dwordx2 s[{r}:{r+1}], s[0:1], {off}")
        if opt('cpf', 1) == 1: self.code_prefetch()
        a(f"""
        v_lshrrev_b32 v2, 6, v0
        v_and_b32 v1, 63, v0
        s_mov_b32 s14, {2*MB}
        v_readfirstlane_b32 {sWV}, v2
        s_mov_b32 s15, 0x00020000
        s_and_b32 {sX}, s2, 7
        s_lshr_b32 {sM}, s2, 3
        """)

    def srd_words(self, which):
        for i in which:
            r, off, n = SRD_INFO[i]
            size = "s14" if n == 2 * MB else str(n)
            self.a(f"{'s_movk_i32' if n <= 4096 else 's_mov_b32'} s{r+2}, {size}\ns_mov_b32 s{r+3}, s15")

    def code_prefetch2(self):
        self.a(f"""
        s_getpc_b64 s[60:61]
        L_pc:
        s_sub_u32 s60, s60, L_pc-{NAME}_kernel
        s_subb_u32 s61, s61, 0
        v_lshlrev_b32 v4, 7, v0
        v_subrev_u32 v4, 16384, v4
        v_add_u32 v6, 16384, v4
        v_min_u32 v6, L_warm_ret-{NAME}_kernel, v6
        v_mov_b32 v5, s61
        v_add_co_u32 v4, vcc, s60, v4
        v_addc_co_u32 v5, vcc, 0, v5, vcc
        global_load_dword v253, v[4:5], off
        v_mov_b32 v7, s61
        v_add_co_u32 v6, vcc, s60, v6
        v_addc_co_u32 v7, vcc, 0, v7, vcc
        global_load_dword v252, v[6:7], off
        """)

    def code_prefetch(self):
        self.a("""
        s_getpc_b64 s[60:61]
        L_pc:
        v_lshlrev_b32 v4, 7, v0
        v_min_u32 v4, L_warm_ret-L_pc, v4
        v_mov_b32 v5, s61
        v_add_co_u32 v4, vcc, s60, v4
        v_addc_co_u32 v5, vcc, 0, v5, vcc
        global_load_dword v253, v[4:5], off
        """)

    def warm(self, *plans):
        if not opt('warm', 0): return
        a = self.a
        self.nwarm = getattr(self, 'nwarm', 0) + 1
        a("s_mov_b64 exec, 0")
        for w, regs in plans:
            lab = f"L_w{self.nwarm}_{w}"
            a(f"s_cmp_lg_u32 {sWV}, {w}\ns_cbranch_scc1 {lab}")
            for r in regs: a(f"s_call_b64 s[98:99], L_reg_{r}")
            a(f"{lab}:")
        a("s_mov_b64 exec, -1")

    def tag_ready(self):
        self.a("v_readfirstlane_b32 s80, v254\nv_readfirstlane_b32 s81, v255\ns_add_u32 s80, s80, 0x9e3779b9\ns_add_u32 s81, s81, 0x7f4a7c15")

    def tag_update(self):
        self.a(f"""
        s_or_b32 s60, s2, {sWV}
        s_cmp_lg_u32 s60, 0
        s_cbranch_scc1 L_tag_done
        v_mov_b32 v4, {WS_TAG}
        v_mov_b32 v6, s80
        v_mov_b32 v7, s81
        s_mov_b64 exec, 1
        buffer_store_dwordx2 v[6:7], v4, {WS}, 0 offen
        L_tag_done:
        """)

    def nonce_issue(self, b):
        self.a(f"v_mov_b32 v{b+2}, 0\nbuffer_load_dwordx2 v[{b}:{b+1}], v{b+2}, {DBG}, 0 offen sc1")

    def nonce_finish(self, tag, b):
        self.a(f"""
        s_mov_b32 s62, 0
        L_nonce_{tag}:
        s_waitcnt vmcnt(0)
        v_readfirstlane_b32 s80, v{b}
        v_readfirstlane_b32 s81, v{b+1}
        s_add_u32 s62, s62, 1
        s_cmp_lg_u32 s81, 0
        s_cbranch_scc1 L_nonce_{tag}_ok
        s_cmp_gt_u32 s62, {SPIN}
        s_cbranch_scc1 L_nonce_{tag}_ok
        v_mov_b32 v{b+2}, 0
        buffer_load_dwordx2 v[{b}:{b+1}], v{b+2}, {DBG}, 0 offen sc1
        s_branch L_nonce_{tag}
        L_nonce_{tag}_ok:
        """)

    def flag_store(self, soff, replicas, rstride_log2, b=4):
        self.a(f"""
        v_lshl_add_u32 v{b+2}, v1, {rstride_log2}, {soff}
        v_mov_b32 v{b}, s80
        v_mov_b32 v{b+1}, s81
        s_mov_b64 exec, {(1 << replicas) - 1}
        buffer_store_dwordx2 v[{b}:{b+1}], v{b+2}, {WS}, 0 offen sc1
        s_mov_b64 exec, -1
        """)

    def wide_flag_load(self, va, vd):
        return (f"buffer_load_dwordx2 v[{vd}:{vd+1}], {va}, {WS}, 0 offen sc1\n"
                f"buffer_load_dwordx2 v[{vd+2}:{vd+3}], {va}, {WS}, 0 offen offset:{1 << FL} sc1")

    def verify(self, name, tags, t0, reload):
        a = self.a
        if opt('force', 0): a(f"v_mov_b32 v{tags[-1]}, 0\nv_mov_b32 v{tags[-1]-1}, 0")
        a(f"s_mov_b32 s62, 0\nL_ver_{name}:")
        for op, d in (("max", t0), ("min", t0 + 1)):
            rest = list(tags)
            cur = rest.pop(0)
            while rest:
                if len(rest) >= 2: a(f"v_{op}3_u32 v{d}, v{cur}, v{rest.pop(0)}, v{rest.pop(0)}")
                else: a(f"v_{op}_u32 v{d}, v{cur}, v{rest.pop(0)}")
                cur = d
            if cur != d: a(f"v_mov_b32 v{d}, v{cur}")
        a(f"""
        v_cmp_ne_u32 vcc, s80, v{t0}
        v_cmp_ne_u32 s[60:61], s80, v{t0+1}
        s_or_b64 vcc, vcc, s[60:61]
        s_cbranch_vccz L_ver_{name}_ok
        s_add_u32 s62, s62, 1
        s_cmp_gt_u32 s62, {SPIN}
        s_cbranch_scc1 L_ver_{name}_ok
        """)
        for t in reload: a(t)
        a(f"s_waitcnt vmcnt(0)\ns_branch L_ver_{name}\nL_ver_{name}_ok:")

    def poll(self, tag, wide=False, first_issued=False, va="v4", vd=6, later=0):
        a = self.a
        ld = (self.wide_flag_load(va, vd) if wide else
              f"buffer_load_dwordx2 v[{vd}:{vd+1}], {va}, {WS}, 0 offen sc1")
        a("s_mov_b32 s62, 0")
        if first_issued:
            a(f"s_waitcnt vmcnt({later})\ns_branch L_poll_{tag}_chk")
        a(f"L_poll_{tag}:\n{ld}\ns_waitcnt vmcnt(0)\nL_poll_{tag}_chk:")
        a(f"v_cmp_ne_u64 vcc, s[80:81], v[{vd}:{vd+1}]")
        if wide:
            a(f"v_cmp_ne_u64 s[60:61], s[80:81], v[{vd+2}:{vd+3}]\ns_or_b64 vcc, vcc, s[60:61]")
        a(f"""
        s_add_u32 s62, s62, 1
        s_cbranch_vccz L_poll_{tag}_ok
        s_cmp_gt_u32 s62, {SPIN}
        s_cbranch_scc1 L_poll_{tag}_ok
        s_sleep {opt('sleep', 6)}
        s_branch L_poll_{tag}
        L_poll_{tag}_ok:
        """)

    def tile_off(self, h):
        self.a(f"""
        s_lshl_b32 s60, {sM}, 16
        s_lshl_b32 s61, {sX}, 7
        s_add_u32 s60, s60, s61
        s_lshl_b32 s61, {h}, 15
        s_add_u32 s60, s60, s61
        v_lshrrev_b32 v8, 4, v1
        v_and_b32 v9, 15, v1
        v_lshlrev_b32 v2, 13, v8
        v_lshl_add_u32 v2, v9, 3, v2
        v_add_u32 v2, s60, v2
        v_add_u32 v5, 4096, v2
        """)

    def role_a(self):
        a = self.a
        self.tile_off(sWV)
        self.srd_words((2, 3))
        a(f"""
        v_subrev_u32 v3, 3072, v2
        s_lshl_b32 s62, {sX}, 9
        v_lshl_add_u32 v56, v9, 5, s62
        s_waitcnt lgkmcnt(0)
        """)
        self.stamp("s")
        for j in range(11):
            base, off = ("v3", j * 1024) if j < 3 else ("v2", (j - 3) * 1024) if j < 7 else ("v5", (j - 7) * 1024)
            a(f"buffer_load_dwordx2 {P(10+2*j)}, {base}, {K}, 0 offen offset:{off}{self.NT}")
        for j in range(8):
            base, off = ("v2", j * 1024) if j < 4 else ("v5", (j - 4) * 1024)
            a(f"buffer_load_dwordx2 {P(32+2*j)}, {base}, {V}, 0 offen offset:{off}{self.NT}")
        a(f"buffer_load_dwordx4 v[48:51], v56, {SK}, 0 offen\nbuffer_load_dwordx4 v[52:55], v56, {SK}, 0 offen offset:16")
        self.srd_words((11, 4, 0, 5, 6, 7, 10))
        a(f"v_mov_b32 v4, {WS_TAG}\nbuffer_load_dwordx2 v[254:255], v4, {WS}, 0 offen sc1")
        self.stamp("s")
        a(f"""
        s_lshl_b32 s60, {sX}, {18 + HINT}
        s_lshl_b32 s61, {sM}, {7 + HINT}
        s_sub_u32 s60, s60, s61
        s_lshl_b32 s61, {sWV}, {6 + HINT}
        s_sub_u32 s60, s60, s61
        s_add_u32 s60, s60, {WS_KVT + 63*(64 << HINT)}
        v_lshlrev_b32 v142, {14 + HINT}, v9
        v_add_u32 v142, s60, v142
        v_sub_u32 v56, 3, v8
        v_lshl_add_u32 v142, v56, 4, v142
        s_movk_i32 s64, {4096 << HINT}
        s_movk_i32 s65, {8192 << HINT}
        s_movk_i32 s66, {12288 << HINT}
        """)
        self.c_ids()
        self.filter_load()
        self.g1_ids(); self.g2_ids()
        self.stamp("s")
        if opt('warm', 0) == 1: self.warm((0, ["kv0", "fprep", "ufetch", "conv0"]), (1, ["kv1", "addr", "conv1"]))
        if opt('warm', 0) == 3: self.warm((0, ["kv0", "fprep"]), (1, ["kv1", "ufetch", "addr"]))
        self.stamp(); self.stamp("s")
        a("s_waitcnt vmcnt(8)")
        self.tag_ready()
        self.stamp(); self.stamp("s")
        for p in range(2):
            a.region(f"kv{p}")
            s0, s1 = 48 + 4 * p, 50 + 4 * p
            a(f"""
            v_lshlrev_b32 v102, 16, v{s0}
            v_lshlrev_b32 v103, 16, v{s1}
            v_and_b32 v104, 0xffff0000, v{s0}
            v_and_b32 v105, 0xffff0000, v{s1}
            v_lshlrev_b32 v106, 16, v{s0+1}
            v_lshlrev_b32 v107, 16, v{s1+1}
            v_and_b32 v108, 0xffff0000, v{s0+1}
            v_and_b32 v109, 0xffff0000, v{s1+1}
            """)
            for j in range(11):
                a(f"v_lshlrev_b32 v{80+2*j}, 16, v{10+2*j+p}\nv_and_b32 v{81+2*j}, 0xffff0000, v{10+2*j+p}")
            for i in range(8):
                a(f"v_lshlrev_b32 v{126+2*i}, 16, v{32+2*i+p}\nv_and_b32 v{127+2*i}, 0xffff0000, v{32+2*i+p}")
            for i in range(8): a(f"v_pk_mul_f32 {P(110+2*i)}, {P(80+2*i)}, {P(108)}")
            for i in range(8): a(f"v_pk_fma_f32 {P(110+2*i)}, {P(82+2*i)}, {P(106)}, {P(110+2*i)}")
            for i in range(8): a(f"v_pk_fma_f32 {P(110+2*i)}, {P(84+2*i)}, {P(104)}, {P(110+2*i)}")
            for i in range(8): a(f"v_pk_fma_f32 {P(110+2*i)}, {P(86+2*i)}, {P(102)}, {P(110+2*i)}")
            for i in range(8): a(f"v_pk_mul_f32 {P(110+2*i)}, {P(110+2*i)}, {P(126+2*i)}")
            o = 144 + 8 * p
            for j in range(4):
                a(f"v_cvt_pk_bf16_f32 v{o+j}, v{110+2*(7-2*j)}, v{110+2*(6-2*j)}")
                a(f"v_cvt_pk_bf16_f32 v{o+4+j}, v{111+2*(7-2*j)}, v{111+2*(6-2*j)}")
            so = ("0", "s64") if p == 0 else ("s65", "s66")
            a(f"buffer_store_dwordx4 {Q4(o)}, v142, {WS}, {so[0]} offen sc1\nbuffer_store_dwordx4 {Q4(o+4)}, v142, {WS}, {so[1]} offen sc1")
            for c in range(2 * HINT):
                r, x = o + 4 * c, 56 + 2 * p + c
                a(f"v_bitop3_b32 v{x}, v{r}, v{r+1}, v{r+2} bitop3:0x96\nv_xor_b32 v{x}, v{x}, v{r+3}")
        for sw in (("16", "32") if HINT else ()):
            for c in range(4): a(f"v_mov_b32 v{60+c}, v{56+c}")
            for c in range(4): a(f"v_permlane{sw}_swap_b32 v{56+c}, v{60+c}")
            for c in range(4): a(f"v_xor_b32 v{56+c}, v{56+c}, v{60+c}" if sw == "16" else f"v_bitop3_b32 v{56+c}, v{56+c}, v{60+c}, s80 bitop3:0x96")
        for so in (("0", "s64", "s65", "s66") if HINT else ()): a(f"buffer_store_dwordx4 v[56:59], v142, {WS}, {so} offen offset:64 sc1")
        self.stamp()

    def w1_touch(self, j):
        self.a(f"""
        s_lshl_b32 s60, {sM}, 1
        s_add_u32 s60, s60, {sWV}
        s_mul_i32 s60, s60, {8*3584}
        s_and_b32 s61, {sX}, 1
        s_mul_i32 s61, s61, 1792
        s_add_u32 s60, s60, s61
        s_movk_i32 s61, 4682
        v_add_u32 v250, {64*j}, v1
        v_min_u32 v250, 111, v250
        v_mul_u32_u24 v251, s61, v250
        v_lshrrev_b32 v251, 16, v251
        v_mul_u32_u24 v251, {3584 - 14*128}, v251
        v_lshl_add_u32 v251, v250, 7, v251
        buffer_load_dword v{248+j}, v251, {W1}, s60 offen{self.NTW1}
        """)

    def flag_a(self):
        a = self.a
        a(f"""
        s_lshl_b32 s60, {sX}, 5
        s_add_u32 s60, s60, {sM}
        s_lshl_b32 s60, s60, 1
        s_add_u32 s60, s60, {sWV}
        s_lshl_b32 s60, s60, {self.FA_LOG}
        s_add_u32 s60, s60, {FLAG_A}
        """)
        self.flag_store("s60", 1, 3, 250)
    FA_LOG = FL

    def filter_load(self):
        a = self.a
        a("s_lshl_b32 s60, s68, 12\nv_lshl_add_u32 v4, v1, 4, s60")
        for i in range(4):
            r = 176 + 8 * i
            a(f"buffer_load_dwordx4 {Q4(r)}, v4, {FK}, 0 offen offset:{1024*i}{self.NTF}")
            a(f"buffer_load_dwordx2 {P(r+4)}, v4, {FK}, 0 offen offset:{1024*i+16}{self.NTF}")

    def role_b_loads(self):
        a = self.a
        a(f"s_sub_u32 s6, {sWV}, 2")
        self.c_ids()
        self.filter_load()
        self.g1_ids(); self.g2_ids()

    def role_b_loads_gemv(self):
        a = self.a
        a(f"""
        v_lshrrev_b32 v8, 2, v1
        v_and_b32 v14, 3, v1
        s_and_b32 s60, s2, 3
        s_lshl_b32 s60, s60, 7
        v_lshl_add_u32 v2, v8, 3, s60
        v_lshlrev_b32 v3, 1, v2
        buffer_load_dwordx4 v[164:167], v3, {C}, 0 offen
        s_movk_i32 s61, 6144
        v_mul_lo_u32 v3, v2, s61
        v_lshl_add_u32 v3, v14, 4, v3
        s_lshr_b32 s60, s2, 2
        s_lshl_b32 s60, s60, 7
        s_lshl_b32 s61, s6, 6
        s_add_u32 s60, s60, s61
        s_cmp_ge_u32 s2, 192
        s_cselect_b32 s60, 0x40000000, s60
        """)
        for j in range(8):
            a(f"buffer_load_dwordx4 {Q4(16+4*j)}, v3, {WM}, s60 offen{self.NT}")
            if j < 7: a("s_add_u32 s60, s60, 6144")

    def role_b_loads2(self):
        a = self.a
        a(f"""
        s_lshl_b32 s60, s2, 13
        s_lshl_b32 s61, s6, 12
        s_add_u32 s60, s60, s61
        v_lshrrev_b32 v3, 4, v1
        v_lshlrev_b32 v3, 10, v3
        v_and_b32 v4, 15, v1
        v_lshl_add_u32 v3, v4, 4, v3
        """)
        for j in range(4): a(f"buffer_load_dwordx4 {Q4(48+4*j)}, v3, {Q}, s60 offen offset:{256*j}{self.NTQ}")

    def unit_addr(self, sel=None):
        self.a(f"""
        s_lshl_b32 s61, s2, 1
        {sel or f"s_and_b32 s60, {sWV}, 1"}
        s_add_u32 s60, s60, s61
        s_lshr_b32 s20, s60, 3
        s_and_b32 s21, s60, 7
        s_mul_i32 s61, s20, 37
        s_lshr_b32 s61, s61, 8
        s_mul_i32 s62, s61, 7
        s_sub_u32 s62, s20, s62
        s_mul_i32 s61, s61, 224
        s_lshl_b32 s63, s62, 5
        s_add_u32 s22, s63, 16
        s_cmp_ge_u32 s62, 3
        s_cselect_b32 s63, s22, s63
        s_movk_i32 s22, {16*1024}
        s_cmp_eq_u32 s62, 6
        s_cselect_b32 s63, 96, s63
        s_cselect_b32 s22, {112*1024}, s22
        s_add_u32 s61, s61, s63
        s_lshl_b32 s61, s61, 10
        s_lshl_b32 s62, s21, 7
        s_add_u32 s61, s61, s62
        s_cmp_ge_u32 s60, 448
        s_cselect_b32 s23, 0x40000000, s61
        v_lshrrev_b32 v169, 2, v1
        v_lshlrev_b32 v169, 10, v169
        v_and_b32 v5, 3, v1
        v_lshl_add_u32 v169, v5, 4, v169
        """)

    def q_rows(self, h=sWV):
        a = self.a
        a(f"""
        s_mov_b32 s62, {h}
        s_cmp_eq_u32 s62, 0
        s_cselect_b32 s60, s71, s72
        s_lshl_b32 s60, s60, 19
        s_lshr_b32 s61, s70, 1
        s_lshl_b32 s61, s61, 4
        s_add_u32 s60, s60, s61
        s_lshl_b32 s61, s62, 13
        v_lshlrev_b32 v5, 10, v1
        """)
        for i in range(8):
            a(f"s_add_u32 m0, s61, {self.QS + 1024*i}")
            a(f"buffer_load_dwordx4 v5, {Q}, s60 offen lds")
            if i < 7: a("s_add_u32 s60, s60, 65536")

    def side_inputs(self):
        a = self.a
        a(f"""
        v_lshrrev_b32 v5, 1, v1
        v_mul_u32_u24 v5, 3584, v5
        v_and_b32 v6, 1, v1
        v_lshl_add_u32 v5, v6, 4, v5
        s_and_b32 s60, s2, 15
        s_mul_i32 s60, s60, 224
        s_lshr_b32 s61, s2, 4
        s_mul_i32 s61, s61, {32*3584}
        s_add_u32 s60, s60, s61
        s_lshl_b32 s61, {sWV}, 5
        s_add_u32 s60, s60, s61
        s_lshl_b32 s61, {sWV}, 11
        s_add_u32 m0, s61, {self.W1S}
        buffer_load_dwordx4 v5, {W1}, s60 offen{self.NTW1} lds
        s_add_u32 m0, s61, {self.W1S + 1024 - 128}
        buffer_load_dwordx4 v5, {W1}, s60 offen offset:128{self.NTW1} lds
        s_cmp_lt_u32 {sWV}, 2
        s_cselect_b32 s60, s71, s72
        s_lshl_b32 s60, s60, 4
        s_and_b32 s61, {sWV}, 1
        s_lshl_b32 s61, s61, 3
        s_add_u32 s43, s60, s61
        s_lshl_b32 s60, s43, 5
        v_lshl_add_u32 v5, v3, 5, v2
        v_add_u32 v5, s60, v5
        v_lshlrev_b32 v159, 4, v5
        v_add_u32 v159, {WS_STAT}, v159
        s_lshl_b32 s60, s68, 1
        v_mov_b32 v5, s60
        buffer_load_ushort v126, v5, {SD}, 0 offen
        """)

    def w2_half_addr(self):
        a = self.a
        self.unit_addr(f"s_lshr_b32 s60, {sWV}, 1")
        a(f"""
        s_and_b32 s60, {sWV}, 1
        s_lshl_b32 s60, s60, 6
        s_add_u32 s23, s23, s60
        s_lshl_b32 s60, {sWV}, 11
        s_add_u32 s44, s60, {self.W2S}
        v_lshrrev_b32 v174, 2, v1
        v_lshl_add_u32 v175, v3, 2, v174
        s_cmp_eq_u32 s22, {112*1024}
        s_cselect_b64 vcc, -1, 0
        s_movk_i32 s61, 1024
        s_cselect_b32 s61, 256, s61
        v_cndmask_b32 v174, v174, v175, vcc
        v_lshlrev_b32 v174, 6, v174
        v_and_b32 v175, 3, v1
        v_lshl_add_u32 v174, v175, 4, v174
        v_add_u32 v174, s44, v174
        v_add_u32 v175, s61, v174
        s_add_u32 s22, s22, s23
        s_mul_i32 s45, s21, 56
        s_add_u32 s45, s45, s20
        s_lshl_b32 s45, s45, 12
        s_and_b32 s61, {sWV}, 1
        s_lshl_b32 s61, s61, 11
        s_add_u32 s45, s45, s61
        s_add_u32 s45, s45, {WS_W2P}
        s_cmp_ge_u32 s20, 56
        s_cselect_b32 s45, 0x40000000, s45
        s_lshl_b32 s46, s2, 2
        s_add_u32 s46, s46, {sWV}
        s_lshl_b32 s46, s46, {FL}
        s_add_u32 s46, s46, {FLAG_B}
        """)

    def w2_unit_load(self):
        a = self.a
        self.unit_addr()
        a(f"s_lshl_b32 s61, s6, 12\ns_add_u32 s62, s23, s22")
        for c in range(2):
            for i in range(2):
                a(f"s_add_u32 m0, s61, {self.W2S + 2048*c + 1024*i - 64*c}")
                a(f"buffer_load_dwordx4 v169, {W2}, {'s23' if i == 0 else 's62'} offen offset:{64*c}{self.NT} lds")

    def w2_unit_pack(self, later):
        a = self.a
        a(f"""
        s_lshl_b32 s61, s6, 12
        s_add_u32 s60, s61, {self.W2S}
        v_lshrrev_b32 v10, 2, v1
        v_lshl_add_u32 v11, v3, 2, v10
        s_cmp_eq_u32 s22, {112*1024}
        s_cselect_b64 vcc, -1, 0
        s_movk_i32 s61, 1024
        s_cselect_b32 s61, 256, s61
        v_cndmask_b32 v10, v10, v11, vcc
        v_lshlrev_b32 v10, 6, v10
        v_and_b32 v11, 3, v1
        v_lshl_add_u32 v10, v11, 4, v10
        v_add_u32 v10, s60, v10
        v_add_u32 v11, s61, v10
        v_lshlrev_b32 v12, 4, v1
        s_mul_i32 s63, s21, 56
        s_add_u32 s63, s63, s20
        s_lshl_b32 s63, s63, 12
        s_add_u32 s63, s63, {WS_W2P}
        s_cmp_ge_u32 s20, 56
        s_cselect_b32 s63, 0x40000000, s63
        s_waitcnt vmcnt({later})
        """)
        for dt in range(4):
            o = 2048 * (dt >> 1) + 8 * (dt & 1)
            a(f"ds_read_b64_tr_b16 {P(16+4*dt)}, v10 offset:{o}\nds_read_b64_tr_b16 {P(18+4*dt)}, v11 offset:{o}")
        a("s_waitcnt lgkmcnt(0)")
        for dt in range(4): a(f"buffer_store_dwordx4 {Q4(16+4*dt)}, v12, {WS}, s63 offen offset:{1024*dt} sc1")

    CSZ = 4160
    QS = 32768 + 69632
    W1S = 32768 + 112640
    W2S = 32768 + 120832
    GVS = 32768 + 129024
    def filter_copies(self):
        a = self.a
        a(f"""
        s_mul_i32 s60, {sWV}, {4*self.CSZ}
        s_add_u32 s60, s60, {self.WB}
        v_lshl_add_u32 v4, v1, 4, s60
        v_mov_b32 v100, 0
        v_mov_b32 v101, 0
        v_mov_b32 v102, 0
        v_mov_b32 v103, 0
        s_mov_b64 s[62:63], exec
        s_mov_b64 exec, 15
        """)
        for c in range(4): a(f"ds_write_b128 v4, v[100:103] offset:{c*self.CSZ}")
        a("s_mov_b64 exec, s[62:63]")
        for cc in range(1):
            for i in range(4):
                r = 176 + 8 * (4 * cc + i)
                t = 104 + 12 * (i % 2)
                o = cc * 4 * self.CSZ + 64 + 1024 * i
                pass
                a(f"ds_write_b128 v4, {Q4(r)} offset:{o}")
                for j in range(4): a(f"v_alignbit_b32 v{t+j}, v{r+j+1}, v{r+j}, 16")
                for j in range(4): a(f"v_mov_b32 v{t+4+j}, v{r+j+1}")
                for j in range(4): a(f"v_alignbit_b32 v{t+8+j}, v{r+j+2}, v{r+j+1}, 16")
                for k in range(3): a(f"ds_write_b128 v4, {Q4(t+4*k)} offset:{o + (k+1)*self.CSZ}")
                if i == 0:
                    a(f"""
                    v_lshlrev_b32 v128, 16, v{r}
                    s_mov_b64 exec, 1
                    ds_write_b32 v4, v128 offset:{o + self.CSZ - 4}
                    ds_write_b32 v4, v{r} offset:{o + 2*self.CSZ - 4}
                    ds_write_b32 v4, v128 offset:{o + 3*self.CSZ - 8}
                    ds_write_b32 v4, v{t} offset:{o + 3*self.CSZ - 4}
                    s_mov_b64 exec, s[62:63]
                    """)

    def role_b_rest(self, later, after_wait=None):
        a = self.a
        self.stamp("b")
        a(f"s_waitcnt vmcnt({later + 12})")
        self.tag_ready()
        for j in range(4): a(f"v_lshlrev_b32 v{100+2*j}, 16, v{164+j}\nv_and_b32 v{101+2*j}, 0xffff0000, v{164+j}")
        for j in range(8): a(f"v_mul_f32 v{108+j}, {NLOG2E}, v{100+j}")
        for j in range(8): a(f"v_exp_f32 v{108+j}, v{108+j}")
        for j in range(8): a(f"v_add_f32 v{108+j}, 1.0, v{108+j}")
        for j in range(8): a(f"v_rcp_f32 v{108+j}, v{108+j}")
        for j in range(8): a(f"v_mul_f32 v{108+j}, v{100+j}, v{108+j}")
        for j in range(4): a(f"v_cvt_pk_bf16_f32 v{100+j}, v{108+2*j}, v{109+2*j}")
        for j in range(4): a(f"v_lshlrev_b32 v{108+2*j}, 16, v{100+j}\nv_and_b32 v{109+2*j}, 0xffff0000, v{100+j}")
        self.stamp("b")
        a(f"s_waitcnt vmcnt({later + 4})")
        if after_wait: after_wait()
        self.stamp("b")
        for j in range(8):
            for e in range(4):
                a(f"v_lshlrev_b32 v{116+2*e}, 16, v{16+4*j+e}\nv_and_b32 v{117+2*e}, 0xffff0000, v{16+4*j+e}")
            sel = "op_sel_hi:[1,0,1]" if j % 2 == 0 else "op_sel:[0,1,0] op_sel_hi:[1,1,1]"
            for e in range(4):
                if j == 0: a(f"v_pk_mul_f32 {P(124+2*e)}, {P(116+2*e)}, {P(108)} op_sel_hi:[1,0]")
                else: a(f"v_pk_fma_f32 {P(124+2*e)}, {P(116+2*e)}, {P(108+2*(j//2))}, {P(124+2*e)} {sel}")
        for n in (4, 8):
            for e in range(8): a(f"v_add_f32_dpp v{124+e}, v{124+e}, v{124+e} row_ror:{n} row_mask:0xf bank_mask:0xf")
        a(f"""
        s_lshl_b32 s60, s6, 9
        s_add_u32 s60, s60, {self.GVS}
        v_lshl_add_u32 v116, v3, 7, s60
        v_and_b32 v117, 3, v1
        v_lshl_add_u32 v116, v117, 5, v116
        ds_write_b128 v116, v[124:127]
        ds_write_b128 v116, v[128:131] offset:16
        v_and_b32 v117, 31, v1
        v_lshlrev_b32 v117, 2, v117
        v_add_u32 v116, s60, v117
        ds_read_b32 v120, v116
        ds_read_b32 v121, v116 offset:128
        ds_read_b32 v122, v116 offset:256
        ds_read_b32 v123, v116 offset:384
        s_waitcnt vmcnt({self.n_after})
        s_and_b32 s60, s2, 3
        s_mul_i32 s60, s60, {MODP}
        s_lshr_b32 s61, s2, 2
        s_lshl_b32 s61, s61, 9
        s_add_u32 s60, s60, s61
        s_lshl_b32 s61, s6, 8
        s_add_u32 s60, s60, s61
        s_add_u32 s60, s60, {WS_MOD}
        s_cmp_ge_u32 s2, 192
        s_cselect_b32 s60, 0x40000000, s60
        v_lshlrev_b32 v117, 1, v117
        s_waitcnt lgkmcnt(0)
        v_add_f32 v120, v120, v121
        v_add_f32 v122, v122, v123
        v_add_f32 v120, v120, v122
        v_mov_b32 v121, s80
        s_mov_b32 exec_hi, 0
        buffer_store_dwordx2 v[120:121], v117, {WS}, s60 offen sc1
        s_mov_b32 exec_hi, -1
        """)
        self.stamp("b")
        a.region("brest1")
        self.role_b_tail()

    def role_b_tail(self):
        a = self.a
        for j in range(16): a(f"v_lshlrev_b32 v{100+2*j}, 16, v{48+j}\nv_and_b32 v{101+2*j}, 0xffff0000, v{48+j}")
        for j in range(8): a(f"v_pk_add_f32 {P(132+2*j)}, {P(100+4*j)}, {P(102+4*j)}")
        for st in (4, 2, 1):
            for j in range(st): a(f"v_pk_add_f32 {P(132+2*j)}, {P(132+2*j)}, {P(132+2*(j+st))}")
        a("v_add_f32 v132, v132, v133")
        for n in (8, 4, 2, 1): a(f"v_add_f32_dpp v132, v132, v132 row_ror:{n} row_mask:0xf bank_mask:0xf")
        a("v_mul_f32 v148, 0xbb000000, v132")
        for j in range(16): a(f"v_pk_add_f32 {P(100+2*j)}, {P(100+2*j)}, {P(148)} op_sel_hi:[1,0]")
        for j in range(4): a(f"v_pk_mul_f32 {P(132+2*j)}, {P(100+2*j)}, {P(100+2*j)}")
        for j in range(4, 16): a(f"v_pk_fma_f32 {P(132+2*(j&3))}, {P(100+2*j)}, {P(100+2*j)}, {P(132+2*(j&3))}")
        a(f"v_pk_add_f32 {P(132)}, {P(132)}, {P(134)}\nv_pk_add_f32 {P(136)}, {P(136)}, {P(138)}\nv_pk_add_f32 {P(132)}, {P(132)}, {P(136)}\nv_add_f32 v132, v132, v133")
        for n in (8, 4, 2, 1): a(f"v_add_f32_dpp v132, v132, v132 row_ror:{n} row_mask:0xf bank_mask:0xf")
        a(f"""
        v_mov_b32 v133, 0x3727c5ac
        v_fmac_f32 v133, 0x3b000000, v132
        v_rsq_f32 v136, v133
        s_lshl_b32 s60, s2, 7
        s_lshl_b32 s61, s6, 6
        s_add_u32 s60, s60, s61
        s_add_u32 s60, s60, {WS_STAT}
        v_mov_b32 v137, s80
        v_mov_b32 v139, s80
        v_mul_f32 v138, v148, v136
        v_lshlrev_b32 v134, 4, v3
        s_mov_b32 exec_lo, 0x00010001
        s_mov_b32 exec_hi, 0x00010001
        buffer_store_dwordx4 v[136:139], v134, {WS}, s60 offen sc1
        s_mov_b64 exec, -1
        """)

    def flag_m(self, later):
        a = self.a
        a(f"""
        s_waitcnt vmcnt({later})
        s_lshl_b32 s60, s2, 1
        s_add_u32 s60, s60, s6
        s_lshl_b32 s60, s60, {FL}
        s_add_u32 s60, s60, {FLAG_B}
        """)
        self.flag_store("s60", 1, 9 + FL, 250)

    def filter_prep(self, mid):
        a = self.a
        a(f"""
        s_mul_i32 s73, {sWV}, {self.FSZ}
        s_add_u32 s73, s73, {self.FB}
        v_and_b32 v2, 15, v1
        v_lshrrev_b32 v3, 4, v1
        v_lshl_add_u32 v4, v1, 4, s73
        v_mov_b32 v6, 0
        v_mov_b32 v7, 0
        v_mov_b32 v8, 0
        v_mov_b32 v9, 0
        v_add_u32 v5, 1, v2
        v_and_b32 v10, 3, v5
        v_mul_u32_u24 v10, {self.CSZ}, v10
        v_and_b32 v5, 28, v5
        v_lshl_add_u32 v5, v5, 1, v10
        v_and_b32 v10, 1, v3
        v_lshl_add_u32 v5, v10, 4, v5
        s_mul_i32 s60, {sWV}, {4*self.CSZ}
        s_add_u32 s60, s60, {self.WB}
        v_add_u32 v5, s60, v5
        v_lshrrev_b32 v10, 1, v3
        s_add_u32 s60, s71, 1
        s_lshl_b32 s60, s60, 9
        s_add_u32 s61, s72, 1
        s_lshl_b32 s61, s61, 9
        v_mad_u32_u24 v11, v10, s60, v5
        v_mad_u32_u24 v12, v10, s61, v5
        v_add_u32 v15, s60, v11
        v_subrev_u32 v12, s60, v12
        s_cmp_eq_u32 s69, 0
        s_cselect_b64 vcc, -1, 0
        v_cndmask_b32 v13, v11, v12, vcc
        """)
        for n in range(81):
            if n == opt('fa', 10): mid()
            b = "v11" if n < 16 else "v13" if n < 32 else "v12"
            a(f"ds_read_b64 {self.Fhalf(n,0)}, {b} offset:{32*n}")
            a(f"ds_read_b64 {self.Fhalf(n,1)}, {b} offset:{32*n+8}")
        a("ds_read_b64 v[244:245], v15\nds_read_b64 v[246:247], v15 offset:8")
        a(f"ds_write_b128 v4, v[6:9] offset:6144\ns_mov_b64 exec, {(1 << 26) - 1}\nds_write_b128 v4, v[6:9] offset:7168\ns_mov_b64 exec, -1")
        a(f"""
        v_sub_u32 v5, 63, v2
        v_mul_u32_u24 v5, 96, v5
        v_add_u32 v5, s73, v5
        s_mul_i32 s60, s71, {16*96}
        s_mul_i32 s61, s72, {16*96}
        v_subrev_u32 v156, s60, v5
        v_subrev_u32 v157, s61, v5
        v_and_b32 v6, 1, v3
        v_lshlrev_b32 v6, 4, v6
        v_lshrrev_b32 v7, 1, v3
        s_add_u32 s60, s71, 1
        s_mul_i32 s60, s60, 768
        s_add_u32 s61, s72, 1
        s_mul_i32 s61, s61, 768
        v_mad_u32_u24 v80, v7, s60, v156
        v_mad_u32_u24 v82, v7, s61, v157
        v_add_u32 v80, v80, v6
        v_add_u32 v82, v82, v6
        v_subrev_u32 v82, s60, v82
        s_cmp_eq_u32 s69, 0
        s_cselect_b64 vcc, -1, 0
        v_cndmask_b32 v81, v80, v82, vcc
        v_lshlrev_b32 v6, 3, v3
        v_sub_u32 v6, 24, v6
        v_add_u32 v156, v156, v6
        v_add_u32 v157, v157, v6
        """)

    def pre_conv(self):
        self.epi_addr(); self.g2_w2_addr(0); self.mod_addr(); self.cepi_addr()
        if W2L: self.w2_half_addr()
        L = self.w_stream(32, 0)
        for t in L[:L.index("WAIT")]: self.a(t.replace(" | ", "\n"))

    def u_addr(self):
        a = self.a
        a("s_movk_i32 s60, 10923")
        for j in range(3):
            a(f"""
            v_add_u32 v19, {64*j}, v1
            v_mul_u32_u24 v20, s60, v19
            v_lshrrev_b32 v20, 16, v20
            v_mul_u32_u24 v21, 6, v20
            v_sub_u32 v19, v19, v21
            v_min_u32 v19, 3, v19
            v_lshlrev_b32 v19, 4, v19
            v_lshl_add_u32 v{16+j}, v20, 6, v19
            """)
        a(f"s_lshl_b32 s64, s68, 12\ns_add_u32 s64, s64, {WS_KVT}\ns_add_u32 s65, s64, 2048")

    def u_wait(self):
        a = self.a
        a(f"""
        s_cmp_lg_u32 {sWV}, 0
        s_cbranch_scc1 L_u_nopoll
        s_lshl_b32 s60, {sX}, {6 + self.FA_LOG}
        s_add_u32 s60, s60, {FLAG_A}
        v_lshl_add_u32 v4, v1, {self.FA_LOG}, s60
        """)
        for i in range(opt('psa', 0)): a("s_sleep 4")
        self.poll("A")
        a("L_u_nopoll:")

    def u_fetch(self):
        a = self.a
        for j in (5, 4, 3, 2, 1, 0):
            if j == 0: a("s_cmp_eq_u32 s69, 1\ns_cbranch_scc1 L_u_short")
            a(f"s_add_u32 m0, s73, {1024*j}")
            a(f"buffer_load_dwordx4 v{16 + j%3}, {WS}, {'s64' if j < 3 else 's65'} offen sc1 lds")
        a("L_u_short:")
        self.side_inputs()
        a("s_waitcnt vmcnt(3)")

    def conv_main(self, hook):
        a = self.a
        D = 6
        off = lambda n: 96 * (n >> 1) + 32 * (n & 1)
        base = lambda n: "v80" if n < 16 else "v81" if n < 32 else "v82"
        Br = lambda n: Q4(48 + 4 * (n % 8))
        def rd(n):
            if n < 80: a(f"ds_read_b128 {Br(n)}, {base(n)} offset:{off(n)}")
        def step(n, c0="v[84:87]", c1="v[88:91]", d0="v[84:87]", d1="v[88:91]", a1=None):
            rd(n + D)
            a(f"s_waitcnt lgkmcnt({min(D, 79 - n)})")
            a(f"v_mfma_f32_16x16x32_bf16 {d0}, {self.Freg(n)}, {Br(n)}, {c0}")
            a(f"v_mfma_f32_16x16x32_bf16 {d1}, {a1 or self.Freg(n+1)}, {Br(n)}, {c1}")
        for n in range(D): rd(n)
        def boundary(n, ty):
            a(f"s_cmp_eq_u32 s69, {ty}\ns_cbranch_scc0 L_cb{n}_no")
            h = list(a.hist)
            step(n, d0="v[92:95]", d1="v[96:99]", a1="v[244:247]")
            step(n + 1, c0="0", c1="0")
            a(f"s_branch L_cb{n}_done\nL_cb{n}_no:")
            a.hist = h
            step(n); step(n + 1)
            a(f"L_cb{n}_done:")
            hook(n); hook(n + 1)
        step(0, c0="0", c1="0"); hook(0)
        for n in range(1, 15): step(n); hook(n)
        boundary(15, 0)
        for n in range(17, 31): step(n); hook(n)
        boundary(31, 1)
        for n in range(33, 80): step(n); hook(n)

    def epi_addr(self):
        self.a(f"""
        v_and_b32 v161, 3, v1
        s_movk_i32 s60, {MODP}
        v_mul_u32_u24 v161, s60, v161
        v_bfe_u32 v5, v1, 2, 2
        v_lshl_add_u32 v161, v5, 12, v161
        v_lshl_add_u32 v161, v3, 3, v161
        s_lshl_b32 s60, s70, 5
        s_add_u32 s60, s60, {WS_MOD}
        v_add_u32 v161, s60, v161
        s_mul_i32 s60, {sWV}, 112
        s_add_u32 s60, s60, s77
        s_lshl_b32 s60, s60, {FL + W2L}
        s_add_u32 s60, s60, {FLAG_B}
        v_and_b32 v5, 15, v1
        v_min_u32 v5, 13, v5
        v_lshl_add_u32 v248, v5, {FL + 3 + W2L}, s60
        v_bfe_u32 v5, v1, 4, 1
        v_mul_u32_u24 v5, {W2L << FL}, v5
        v_add_u32 v248, v248, v5
        """)

    def epi_load_list(self):
        L = [f"buffer_load_dwordx2 v[124:125], v161, {WS}, 0 offen sc1"]
        for i in range(4):
            L.append(f"buffer_load_dwordx4 {Q4(108+4*i)}, v159, {WS}, 0 offen offset:{2048*(i>>1) + 256*(i&1)} sc1")
        return L

    def cepi_addr(self):
        xi, RS = self.XI, self.XI_RS
        self.a(f"""
        s_mul_i32 s60, {sWV}, {RS}
        s_add_u32 s60, s60, {xi}
        v_mul_u32_u24 v150, 144, v3
        v_lshl_add_u32 v150, v2, 3, v150
        v_add_u32 v150, s60, v150
        s_lshr_b32 s60, {sWV}, 1
        s_and_b32 s61, {sWV}, 1
        s_mul_i32 s62, s60, 1152
        s_lshl_b32 s63, s61, 6
        s_add_u32 s62, s62, s63
        s_add_u32 s62, s62, {xi}
        v_bfe_u32 v151, v1, 2, 2
        v_mul_u32_u24 v151, {RS}, v151
        v_and_b32 v5, 3, v1
        v_mul_u32_u24 v5, 144, v5
        v_add3_u32 v151, v151, v5, s62
        v_lshl_add_u32 v151, v3, 3, v151
        s_lshl_b32 s60, {sWV}, 12
        s_and_b32 s61, s70, 1
        s_lshl_b32 s61, s61, 3
        s_add_u32 s60, s60, s61
        s_add_u32 s60, s60, {self.QS}
        v_lshl_add_u32 v152, v3, 5, v2
        v_lshl_add_u32 v152, v152, 4, s60
        s_cmp_lt_u32 {sWV}, 2
        s_cselect_b32 s60, s71, s72
        s_lshl_b32 s60, s60, 4
        s_and_b32 s61, {sWV}, 1
        s_lshl_b32 s61, s61, 3
        s_add_u32 s60, s60, s61
        s_lshl_b32 s66, s60, 15
        s_lshl_b32 s61, s70, 8
        s_add_u32 s66, s66, s61
        s_add_u32 s66, s66, {WS_X1}
        s_add_u32 s67, s66, {4*32768}
        v_lshlrev_b32 v153, 15, v3
        v_lshl_add_u32 v153, v2, 4, v153
        """)

    def e_stream(self):
        L = ["EWAIT", "EVERIFY",
             "v_add_f32_dpp v124, v124, v124 quad_perm:[1,0,3,2] row_mask:0xf bank_mask:0xf",
             f"s_lshl_b32 s63, {sWV}, 4 | s_add_u32 s63, s63, 8",
             "v_add_f32_dpp v124, v124, v124 quad_perm:[2,3,0,1] row_mask:0xf bank_mask:0xf",
             "v_lshlrev_b32 v148, 16, v126",
             "v_cvt_pk_bf16_f32 v124, v124, v124", "v_and_b32 v124, 0xffff0000, v124",
             "v_add_f32 v125, 1.0, v124", "v_cvt_pk_bf16_f32 v125, v125, v125", "v_and_b32 v125, 0xffff0000, v125",
             "v_readlane_b32 s63, v124, s63"]
        for c in range(4): L += [f"v_readlane_b32 s{24+c}, v125, {16*c+4}", f"v_readlane_b32 s{28+c}, v124, {16*c}"]
        L.append("v_mov_b32 v149, s63")
        for c in range(8): L.append(f"v_mov_b32 v{128+c}, s{24+c}")
        for sl in range(2):
            for t in range(2): L.append(f"ds_read_b64 {P(140+4*sl+2*t)}, v{156+sl} offset:{32-32*t}")
        return L

    def conv_epilogue(self):
        a = self.a
        for sl in range(2):
            for t in range(2):
                i = 2 * sl + t
                acc = (92 if sl == 0 else 84) + 4 * t
                kv, w = 140 + 2 * i, 160 + 4 * (i & 1)
                a(f"""
                v_and_b32 v{w}, 0xffff0000, v{kv+1}
                v_lshlrev_b32 v{w+1}, 16, v{kv+1}
                v_and_b32 v{w+2}, 0xffff0000, v{kv}
                v_lshlrev_b32 v{w+3}, 16, v{kv}
                v_pk_fma_f32 {P(w)}, {P(w)}, {P(148)}, {P(acc)} op_sel_hi:[1,0,1]
                v_pk_fma_f32 {P(w+2)}, {P(w+2)}, {P(148)}, {P(acc+2)} op_sel_hi:[1,0,1]
                v_pk_mul_f32 {P(w)}, {P(w)}, {P(148)} op_sel:[0,1] op_sel_hi:[1,1]
                v_pk_mul_f32 {P(w+2)}, {P(w+2)}, {P(148)} op_sel:[0,1] op_sel_hi:[1,1]
                v_cvt_pk_bf16_f32 v{168+2*(i&1)}, v{w}, v{w+1}
                v_cvt_pk_bf16_f32 v{169+2*(i&1)}, v{w+2}, v{w+3}
                ds_write_b64 v150, {P(168+2*(i&1))} offset:{1152*sl + 576*t}
                """)
        a(f"""
        s_waitcnt lgkmcnt(0)
        s_barrier
        ds_read_b64 v[100:101], v152
        ds_read_b64 v[102:103], v152 offset:256
        ds_read_b64 v[104:105], v152 offset:2048
        ds_read_b64 v[106:107], v152 offset:2304
        ds_read_b64_tr_b16 v[160:161], v151
        ds_read_b64_tr_b16 v[162:163], v151 offset:576
        ds_read_b64_tr_b16 v[164:165], v151 offset:32
        ds_read_b64_tr_b16 v[166:167], v151 offset:{576+32}
        """)
        for i in range(4):
            q, A, u = 100 + 2 * i, 108 + 4 * i, 64 + 8 * i
            a(f"""
            s_waitcnt lgkmcnt({7-i})
            v_lshlrev_b32 v{u}, 16, v{q}
            v_and_b32 v{u+1}, 0xffff0000, v{q}
            v_lshlrev_b32 v{u+2}, 16, v{q+1}
            v_and_b32 v{u+3}, 0xffff0000, v{q+1}
            v_pk_fma_f32 {P(u+4)}, {P(u)}, {P(A)}, {P(A+2)} op_sel_hi:[1,0,0]
            v_pk_fma_f32 {P(u+6)}, {P(u+2)}, {P(A)}, {P(A+2)} op_sel_hi:[1,0,0]
            v_pk_fma_f32 {P(u+4)}, {P(u+4)}, {P(128)}, {P(132)}
            v_pk_fma_f32 {P(u+6)}, {P(u+6)}, {P(130)}, {P(134)}
            """)
            if i & 1:
                for j in (i - 1, i):
                    y, uu, w = 160 + 2 * j, 64 + 8 * j, 140 + 4 * (j & 1)
                    a(f"""
                    s_waitcnt lgkmcnt({3-j})
                    v_lshlrev_b32 v{w}, 16, v{y}
                    v_and_b32 v{w+1}, 0xffff0000, v{y}
                    v_lshlrev_b32 v{w+2}, 16, v{y+1}
                    v_and_b32 v{w+3}, 0xffff0000, v{y+1}
                    v_pk_fma_f32 {P(uu)}, {P(uu+4)}, {P(w)}, {P(uu)}
                    v_pk_fma_f32 {P(uu+2)}, {P(uu+6)}, {P(w+2)}, {P(uu+2)}
                    v_cvt_pk_bf16_f32 v{y}, v{uu}, v{uu+1}
                    v_cvt_pk_bf16_f32 v{y+1}, v{uu+2}, v{uu+3}
                    """)
                a(f"buffer_store_dwordx4 {Q4(160+2*(i-1))}, v153, {WS}, s{66 + (i>>1)} offen sc1")

    def g2_epi_load(self):
        a = self.a
        a(f"""
        s_lshl_b32 s60, s77, 9
        s_add_u32 s60, s60, {WS_MOD + 5*4096}
        v_lshl_add_u32 v18, v1, 3, s60
        """)
        self.gb_loads = [f"buffer_load_dwordx2 {P((10, 16, 28, 30)[k])}, v18, {WS}, {so} offen sc1" for k, so in enumerate(("0", "s12", "s13", "s14"))]
        for t in self.gb_loads: a(t)
        a(f"""
        s_lshl_b32 s60, s76, 1
        s_lshr_b32 s61, {sWV}, 1
        s_add_u32 s60, s60, s61
        s_lshl_b32 s60, s60, 15
        s_lshl_b32 s61, s77, 12
        s_add_u32 s60, s60, s61
        s_and_b32 s61, {sWV}, 1
        s_lshl_b32 s61, s61, 3
        s_add_u32 s60, s60, s61
        s_add_u32 s60, s60, {WS_X1}
        v_lshlrev_b32 v19, 9, v3
        v_lshl_add_u32 v19, v2, 4, v19
        """)
        for p in range(2):
            for h in range(2):
                a(f"buffer_load_dwordx2 {P(20+4*p+2*h)}, v19, {WS}, s60 offen offset:{2048*p + 256*h} sc1")

    def g2_epi_pre(self, tb):
        a = self.a
        self.verify("g", [11, 17, 29, 31], 4, self.gb_loads)
        a(f"""
        v_add_f32 v4, v10, v16
        v_add_f32 v7, v28, v30
        v_add_f32 v4, v4, v7
        v_cvt_pk_bf16_f32 v4, v4, v4
        v_and_b32 v4, 0xffff0000, v4
        s_lshl_b32 s60, {sWV}, 8
        s_add_u32 s60, s60, {tb}
        v_lshl_add_u32 v5, v1, 2, s60
        ds_write_b32 v5, v4
        v_lshl_add_u32 v5, v3, 5, s60
        """)
        for p in range(2):
            for h in range(2):
                a(f"ds_read_b128 a[{224+8*p+4*h}:{227+8*p+4*h}], v5 offset:{128*p + 16*h}")
        a("s_waitcnt lgkmcnt(0)")

    def g1_ids(self):
        self.a(f"""
        s_lshr_b32 s74, {sX}, 1
        s_lshl_b32 s74, s74, 2
        s_lshr_b32 s60, {sM}, 3
        s_add_u32 s74, s74, s60
        s_and_b32 s75, {sX}, 1
        s_lshl_b32 s75, s75, 3
        s_and_b32 s60, {sM}, 7
        s_add_u32 s75, s75, s60
        """)

    def w1_addr(self, r0):
        self.a(f"""
        v_mul_u32_u24 v5, 3584, v3
        v_lshlrev_b32 v6, 1, v3
        v_xor_b32 v6, v6, v2
        v_lshl_add_u32 v{r0}, v6, 4, v5
        v_xor_b32 v6, 8, v6
        v_lshl_add_u32 v{r0+1}, v6, 4, v5
        s_mul_i32 s7, s75, 224
        s_and_b32 s7, s7, -64
        s_and_b32 s16, {sM}, 7
        s_lshl_b32 s16, s16, 1
        s_lshr_b32 s61, {sM}, 3
        s_lshl_b32 s61, s61, 2
        s_add_u32 s16, s16, s61
        s_mul_i32 s16, s16, {opt('rot1', 0)}
        s_and_b32 s16, s16, 15
        s_add_u32 s17, s7, {512*3584}
        s_lshl_b32 s61, {sWV}, 2
        s_add_u32 s61, s61, s16
        s_and_b32 s61, s61, 15
        s_mul_i32 s61, s61, {32*3584}
        s_add_u32 s7, s7, s61
        s_lshl_b32 s78, {sWV}, 15
        s_add_u32 s78, s78, {self.WB}
        """)

    def w1_one(self, r0, n):
        a = self.a
        a(f"s_add_u32 m0, s78, {1024*n}")
        a(f"buffer_load_dwordx4 v{r0 + n%2}, {W1}, s7 offen lds")
        a(f"s_add_u32 s7, s7, {4*3584}")
        if n % 8 == 7: a(f"s_cmp_eq_u32 s7, s17\ns_cselect_b32 s60, {512*3584}, 0\ns_sub_u32 s7, s7, s60")

    def w2_touch(self, j):
        self.a(f"buffer_load_dword v{248+j}, v250, {WS}, 0 offen sc1" if j == 0 else
               f"buffer_load_dword v{248+j}, v251, {WS}, 0 offen sc1")

    def w2_touch_addr(self):
        self.a(f"""
        s_lshl_b32 s60, {sM}, 2
        s_add_u32 s60, s60, {sWV}
        s_mul_i32 s60, s60, {112*128}
        s_add_u32 s60, s60, {WS_W2P}
        v_lshl_add_u32 v250, v1, 7, s60
        v_add_u32 v5, 64, v1
        v_min_u32 v5, 111, v5
        v_lshl_add_u32 v251, v5, 7, s60
        """)

    def mod_addr(self):
        self.a(f"""
        s_lshr_b32 s60, s2, 4
        s_lshl_b32 s60, s60, 8
        s_add_u32 s60, s60, {WS_MOD + 3*4096}
        v_lshl_add_u32 v172, v2, 4, s60
        v_and_b32 v5, 1, v3
        v_lshl_add_u32 v172, v5, 12, v172
        s_movk_i32 s12, {MODP}
        s_mov_b32 s13, {2*MODP}
        s_mov_b32 s14, {3*MODP}
        """)

    def mod_load_list(self, r0):
        L = []
        for k, so in enumerate(("0", "s12", "s13", "s14")):
            L.append(f"buffer_load_dwordx4 {Q4(r0+4*k)}, v172, {WS}, {so} offen sc1")
        return L

    def g2_w2_addr(self, k0):
        self.a(f"""
        s_mul_i32 s79, s77, 56
        s_mul_i32 s61, {sWV}, 14
        s_add_u32 s79, s79, s61
        s_lshl_b32 s79, s79, 12
        s_add_u32 s79, s79, {WS_W2P}
        s_add_u32 s97, s79, {14*4096}
        s_lshl_b32 s18, s77, 1
        s_lshr_b32 s61, {sM}, 3
        s_mul_i32 s61, s61, 7
        s_lshr_b32 s61, s61, 1
        s_add_u32 s18, s18, s61
        s_mul_i32 s18, s18, {opt('rot2', 0)}
        s_cmp_ge_u32 s18, 14
        s_cselect_b32 s60, 14, 0
        s_sub_u32 s18, s18, s60
        s_lshl_b32 s18, s18, 12
        s_add_u32 s79, s79, s18
        v_lshlrev_b32 v9, 4, v1
        """)

    def g2_w2_one(self, i, v="v9"):
        self.a(f"buffer_load_dwordx4 a[{4*i}:{4*i+3}], {v}, {WS}, s79 offen offset:{1024*(i%4)} sc1")
        if i % 4 == 3:
            self.a(f"s_add_u32 s79, s79, 4096\ns_cmp_eq_u32 s79, s97\ns_cselect_b32 s60, {14*4096}, 0\ns_sub_u32 s79, s79, s60")

    def signal_all(self, base, replicas, tag):
        a = self.a
        a(f"""
        s_waitcnt vmcnt(0)
        s_barrier
        s_cmp_lg_u32 {sWV}, 0
        s_cbranch_scc1 L_sig{tag}_skip
        s_lshl_b32 s60, s2, {FL}
        s_add_u32 s60, s60, {base}
        """)
        self.flag_store("s60", replicas, 8 + FL)
        a(f"L_sig{tag}_skip:")

    def w_stream(self, r0, mod_wait):
        T = f"""
        v_lshrrev_b32 v14, 2, v1
        v_lshlrev_b32 v15, 5, v14
        v_and_b32 v12, 3, v1
        v_lshl_add_u32 v15, v12, 3, v15
        s_lshl_b32 s61, {sWV}, 11
        s_add_u32 s61, s61, {self.W1S}
        v_add_u32 v173, s61, v15
        v_and_b32 v10, 1, v3
        v_cvt_f32_u32 v11, v10
        v_xor_b32 v10, 1, v10
        v_lshlrev_b32 v10, 6, v10
        v_lshl_add_u32 v10, v2, 2, v10
        s_lshl_b32 s61, {sWV}, 7
        v_add_u32 v10, s61, v10
        v_lshl_add_u32 v14, v3, 3, s61
        v_and_b32 v15, 1, v1
        v_lshl_add_u32 v15, v15, 6, v14
        v_and_b32 v13, 1, v1
        v_lshlrev_b32 v13, 9, v13
        v_lshl_add_u32 v13, v3, 4, v13
        s_and_b32 s40, s2, 15
        s_lshl_b32 s40, s40, 4
        s_lshr_b32 s61, s2, 4
        s_add_u32 s40, s40, s61
        s_lshl_b32 s42, s40, 10
        s_lshl_b32 s61, {sWV}, 6
        s_add_u32 s42, s42, s61
        s_add_u32 s42, s42, {WS_UP}
        s_mul_i32 s40, s40, 7168
        s_lshl_b32 s61, {sWV}, 10
        s_add_u32 s40, s40, s61
        s_add_u32 s40, s40, {WS_W1P}
        s_add_u32 s41, s40, 4096
        s_cmp_eq_u32 {sWV}, 3 | s_cselect_b32 s41, 0x40000000, s41
        WAIT
        """
        L = [x.strip() for x in T.split("\n") if x.strip()]
        L += ["ds_read_b64_tr_b16 v[16:17], v173", "ds_read_b64_tr_b16 v[18:19], v173 offset:512",
              "ds_read_b64_tr_b16 v[20:21], v173 offset:1024", "ds_read_b64_tr_b16 v[22:23], v173 offset:1536", "VERIFY"]
        for e in (0, 2): L += [f"v_add_f32 v{r0+e}, v{r0+e}, v{r0+4+e}", f"v_add_f32 v{r0+8+e}, v{r0+8+e}, v{r0+12+e}"]
        for e in (0, 2): L.append(f"v_add_f32 v{r0+e}, v{r0+e}, v{r0+8+e}")
        L += [f"v_cvt_pk_bf16_f32 v{r0}, v{r0}, v{r0+2}",
              f"v_lshlrev_b32 v{r0+4}, 16, v{r0}", f"v_and_b32 v{r0+5}, 0xffff0000, v{r0}",
              f"v_add_f32 v{r0+4}, v11, v{r0+4}", f"v_add_f32 v{r0+5}, v11, v{r0+5}",
              f"v_cvt_pk_bf16_f32 v{r0}, v{r0+4}, v{r0+5}",
              f"ds_write_b32 v10, v{r0}",
              "ds_read_b64 v[24:25], v15", "ds_read_b64 v[26:27], v15 offset:32",
              "ds_read_b64 v[28:29], v14", "ds_read_b64 v[30:31], v14 offset:32", "GAP",
              "v_mfma_f32_16x16x32_bf16 v[164:167], v[16:19], v[24:27], 0",
              "v_mfma_f32_16x16x32_bf16 v[168:171], v[20:23], v[24:27], 0"]
        for e in range(4): L += [f"v_lshlrev_b32 v{r0+2*e}, 16, v{28+e}", f"v_and_b32 v{r0+2*e+1}, 0xffff0000, v{28+e}"]
        for f in range(2):
            for e in range(4):
                w = 16 + 4 * f + e
                t = r0 + 8 + 2 * (e % 2)
                L += [f"v_lshlrev_b32 v{t}, 16, v{w}", f"v_and_b32 v{t+1}, 0xffff0000, v{w}",
                      f"v_mul_f32 v{t}, v{t}, v{r0+2*e}", f"v_mul_f32 v{t+1}, v{t+1}, v{r0+2*e+1}",
                      f"v_cvt_pk_bf16_f32 v{w}, v{t}, v{t+1}"]
            L.append(f"buffer_store_dwordx4 {Q4(16+4*f)}, v9, {WS}, s{40+f} offen sc1")
        L.append(f"s_mov_b32 exec_lo, 0x00030003 | s_mov_b32 exec_hi, 0x00030003 | buffer_store_dwordx4 v[164:167], v13, {WS}, s42 offen sc1 | buffer_store_dwordx4 v[168:171], v13, {WS}, s42 offen offset:256 sc1 | s_mov_b64 exec, -1")
        return L

    UPS = 32768 + 114688
    def g1_addr(self):
        self.a(f"""
        s_lshl_b32 s64, s74, 2
        s_add_u32 s64, s64, {sWV}
        s_lshl_b32 s64, s64, 15
        s_add_u32 s64, s64, {WS_X1}
        s_lshl_b32 s65, s75, 4
        s_add_u32 s65, s65, {sWV}
        s_mul_i32 s65, s65, 7168
        s_add_u32 s65, s65, {WS_W1P}
        s_mul_i32 s66, {sWV}, 7168
        s_add_u32 s66, s66, {self.WB}
        s_lshl_b32 s67, s75, 2
        s_add_u32 s67, s67, {sWV}
        s_lshl_b32 s67, s67, 12
        s_add_u32 s67, s67, {WS_UP}
        s_mov_b32 s44, s64
        s_mul_i32 s45, s75, {16*7168}
        s_add_u32 s45, s45, {WS_W1P}
        v_lshlrev_b32 v8, 4, v1
        v_add_u32 v10, {self.WB}, v8
        v_add_u32 v11, 57344, v10
        v_lshlrev_b32 v248, 2, v0
        v_add_u32 v249, {self.UPS}, v248
        """)
        for r in range(12, 16): self.a(f"v_mov_b32 v{r}, 0x3f803f80")

    def silu_tile(self, ft, t, u1, u2, w, dst):
        a = self.a
        d, o = 192 + 8 * ft + 4 * t, 60 + 2 * t
        for h in range(2): a(f"v_pk_fma_f32 {P(w+2*h)}, {P(u1+2*h)}, {P(o)}, {P(u2+2*h)} op_sel:[0,1,0] op_sel_hi:[1,1,1]")
        for h in range(2): a(f"v_pk_fma_f32 {P(d+2*h)}, {P(d+2*h)}, {P(o)}, {P(w+2*h)} op_sel_hi:[1,0,1]")
        for r in range(4): a(f"v_exp_f32 v{w+r}, v{d+r}")
        for h in range(2): a(f"v_pk_fma_f32 {P(w+2*h)}, {P(w+2*h)}, {P(254)}, {P(254)} op_sel_hi:[1,0,0]")
        for r in range(4): a(f"v_rcp_f32 v{w+r}, v{w+r}")
        for h in range(2): a(f"v_pk_mul_f32 {P(d+2*h)}, {P(d+2*h)}, {P(w+2*h)}")
        for h in range(2): a(f"v_cvt_pk_bf16_f32 v{dst+h}, v{d+2*h}, v{d+2*h+1}")

    def pair_store(self, ft, t, c):
        a = self.a
        b = 192 + 8 * (ft - 1) + 4 * t
        a(f"buffer_store_dwordx4 {Q4(b)}, v8, {WS}, s44 offen offset:{1024*t} sc1")
        a(f"v_bitop3_b32 v{c}, v{c}, v{b}, v{b+1} bitop3:0x96\nv_bitop3_b32 v{c}, v{c}, v{b+2}, v{b+3} bitop3:0x96")

    def g1_run(self, side, nside, early=0, na=0):
        a = self.a
        ops = []
        def X(i):
            def f():
                a(f"buffer_load_dwordx4 {Q4(64+4*i)}, v8, {WS}, s64 offen offset:{i%4*1024} sc1")
                if i % 4 == 3: a("s_add_u32 s64, s64, 4096")
            return (("x", i), f)
        def W(gm, j):
            def f():
                if j % 4 == 0: a(f"s_add_u32 m0, s66, {gm*4*7168 + 1024*j}\ns_add_u32 s60, s65, {gm*4*7168 + 1024*j}")
                a(f"buffer_load_dwordx4 v8, {WS}, s60 offen offset:{1024*(j%4)} sc1 lds")
            return (("w", gm, j), f)
        def UPl(j):
            def f():
                if j == 0: a(f"s_lshl_b32 s60, {sWV}, 12\ns_add_u32 m0, s60, {self.UPS}")
                a(f"buffer_load_dwordx4 v8, {WS}, s67 offen offset:{1024*j} sc1 lds")
            return (("u", j), f)
        if early == "weights":
            for gm in range(4):
                for j in range(4): W(gm, j)[1]()
            for j in range(4): UPl(j)[1]()
            return
        if early:
            pre = opt('g1pre', 10)
            ops += [X(i) for i in range(pre)]
            rest = [X(i) for i in range(pre, 32)]
            sd = [(("s", i), side) for i in range(na)]
            while rest or sd:
                ops += rest[:2] + sd[:1]
                rest, sd = rest[2:], sd[1:]
        else:
            for gm in range(4):
                if gm == 2: ops += [UPl(j) for j in range(4)]
                ops += [W(gm, j) for j in range(4)]
                ops += [X(i) for i in range(8 * gm, 8 * gm + 8)]
        for gm in range(4): ops += [W(gm, j) for j in range(4, 7)]
        keys = [k for k, _ in ops]
        pos = [0]
        def issue(n=1):
            for _ in range(n):
                if pos[0] < len(ops): ops[pos[0]][1](); pos[0] += 1
        def wait(key):
            i = keys.index(key)
            while pos[0] <= i: issue()
            a(f"s_waitcnt vmcnt({pos[0] - 1 - i})")
        WBE = opt('wbe', 0)
        issue(opt('g1pre', 10 if early else 20))
        NR, D = 8, 7
        Wr = lambda n: 16 + 4 * (n % NR)
        def frag(n, k, ft):
            a(f"ds_read_b128 {Q4(Wr(n))}, {'v10' if k < 8 else 'v11'} offset:{(k % 8) * 7168 + 1024 * ft}")
        def rdA(n):
            if n < 64:
                k, ft = divmod(n, 4)
                if ft == 0 and k % 4 == 0 and not early:
                    wait(("w", k // 4, 3))
                    a("s_barrier")
                frag(n, k, ft)
        def rdB(n):
            if n < 48: frag(n, n // 3, 4 + n % 3)
        def swaps(k):
            x = 64 + 8 * k
            wait(("x", 2 * k + 1))
            a(f"v_swap_b32 v{x+2}, v{x+4}\nv_swap_b32 v{x+3}, v{x+5}")
        for n in range(D): rdA(n)
        swaps(0)
        tail = self.g1_tail_setup()
        EA, young = [opt('ea', 0)], [0]
        for k in range(16):
            x = 64 + 8 * k
            if k == 8: a.region("g1b")
            if k % 4 == 0: self.stamp("h")
            for ft in range(4):
                n = 4 * k + ft
                a(f"s_waitcnt lgkmcnt({min(D - 1, 63 - n)})")
                d = 192 + 8 * ft
                a(f"v_mfma_f32_16x16x32_bf16 {Q4(d)}, {Q4(Wr(n))}, {Q4(x)}, {'0' if k == 0 else Q4(d)}")
                if (ft == 0 if opt('pa', 1) else ft != 2) and pos[0] < len(ops) - WBE: issue()
                a(f"v_mfma_f32_16x16x32_bf16 {Q4(d+4)}, {Q4(Wr(n))}, {Q4(x+4)}, {'0' if k == 0 else Q4(d+4)}")
                if k == 9:
                    for j in range(4): a(f"ds_read_b32 v{224+4*ft+j}, v249 offset:{1024*(4*ft+j)}")
                if k == 12:
                    st = (8, 4, 2, 1)[ft]
                    for j in range(st): a(f"v_add_f32 v{224+j}, v{224+j}, v{224+j+st}")
                if k == 13 and ft == 0: a(f"v_mul_f32 v224, {NLOG2E}, v224\nds_write_b32 v248, v224 offset:{self.T_U}")
                rdA(n + D)
                if ft in (1, 2):
                    t = ft - 1
                    for j, A in ((0, "v[12:15]"), (1, Q4(x + 4 * t))):
                        d = 48 + 8 * t + 4 * j
                        a(f"v_mfma_f32_16x16x32_bf16 {Q4(d)}, {A}, {Q4(x+4*t)}, {'0' if k == 0 else Q4(d)}")
                        if opt('pa', 1) and j == 0 and pos[0] < len(ops) - WBE: issue()
                        if ft == 2 and j == 0 and k < 15: swaps(k + 1)
                        elif k >= 3 and k not in (9, 12):
                            for _ in range(2):
                                if tail: a(tail.pop(0))
        assert not tail
        self.stamp("h")
        a.region("g1c")
        if not WBE: wait(("w", 3, 6))
        a("s_waitcnt lgkmcnt(0)\ns_barrier")
        issue(opt('wbe0', 4) if WBE else 0)
        for ft in range(4):
            a(f"ds_read_b128 {Q4(16+8*ft)}, v4 offset:{self.T_U + 64*ft}\nds_read_b128 {Q4(20+8*ft)}, v4 offset:{self.T_U + 512 + 64*ft}")
        for t in range(2):
            g = 52 + 8 * t
            a(f"v_cndmask_b32 v{g}, v{g}, v{g+1}, s[20:21]\nv_cndmask_b32 v{g}, v{g}, v{g+2}, s[22:23]\nv_cndmask_b32 v{g}, v{g}, v{g+3}, s[40:41]")
            a(f"ds_bpermute_b32 v{g}, v5, v{g}")
        for t in range(2):
            sm = 48 + 8 * t
            a(f"v_mul_f32 v{sm}, 0x3b000000, v{sm}\nv_mul_f32 v{sm+1}, v{sm}, v{sm}\nv_mov_b32 v{sm+2}, 0x3b000000")
        a("s_waitcnt lgkmcnt(0)")
        for t in range(2):
            sm, g = 48 + 8 * t, 52 + 8 * t
            a(f"v_fma_f32 v{g}, v{g}, v{sm+2}, -v{sm+1}\nv_max_f32 v{g}, 0, v{g}\nv_add_f32 v{g}, 0x3727c5ac, v{g}\nv_rsq_f32 v{sm+3}, v{g}")
        for t in range(2):
            sm, o = 48 + 8 * t, 60 + 2 * t
            a(f"v_mul_f32 v{o+1}, -v{sm}, v{sm+3}\nv_mul_f32 v{o}, v254, v{sm+3}")
        for ft in range(4):
            for t in range(2):
                self.silu_tile(ft, t, 16 + 8 * ft, 20 + 8 * ft, 224 + 4 * t, 192 + 8 * (ft & ~1) + 4 * t + 2 * (ft & 1))
                if WBE and pos[0] < len(ops): issue(4)
                elif EA[0] > 0: side(); EA[0] -= 1; young[0] += 1
                if ft & 1: self.pair_store(ft, t, 252); young[0] += 1
            if ft & 1: a("s_add_u32 s44, s44, 4096")
            if ft == 2 and not WBE:
                for n in range(6): rdB(n)
        assert pos[0] == len(ops)
        a(f"buffer_store_dword v252, v6, {WS}, s46 offen sc1")
        if WBE:
            a(f"s_waitcnt vmcnt({young[0] + 1})\ns_barrier")
            for n in range(6): rdB(n)
        rdB(6)
        self.stamp("h")
        a.region("g1d")
        for k in range(16):
            x = 64 + 8 * k
            for j in range(3):
                n = 3 * k + j
                a(f"s_waitcnt lgkmcnt({min(D - 1, 47 - n)})")
                d = 224 + 8 * j
                a(f"v_mfma_f32_16x16x32_bf16 {Q4(d)}, {Q4(Wr(n))}, {Q4(x)}, {'0' if k == 0 else Q4(d)}")
                if k == 14: a(f"ds_read_b128 {Q4(64+8*j)}, v4 offset:{self.T_U + 64*(4+j)}")
                if n == opt('ht', -1): self.h_touch(0)
                if n % 2 == 0 and nside > 0: side(); nside -= 1
                elif nside == 0 and k >= opt('hk', 10) and self.g2_todo and (n % 2 == 0 or not opt('pb4', 0)):
                    if not self.g2_log: self.g2_run()
                    lim = {8: 6, 9: 6, 10: 10, 11: 10}.get(k, 16 if k < 12 else 99) if False else (6 if k < 8 else 10 if k < 10 else 16 if k < 12 else 99)
                    if len(self.g2_log) < lim:
                        a(self.g2_todo.pop(0)); self.g2_log.append("l")
                a(f"v_mfma_f32_16x16x32_bf16 {Q4(d+4)}, {Q4(Wr(n))}, {Q4(x+4)}, {'0' if k == 0 else Q4(d+4)}")
                if k == 14: a(f"ds_read_b128 {Q4(68+8*j)}, v4 offset:{self.T_U + 512 + 64*(4+j)}")
                rdB(n + D)

    def g1_tail_setup(self):
        T = f"""
        v_lshlrev_b32 v4, 4, v3
        v_lshrrev_b32 v5, 2, v2
        v_lshl_add_u32 v5, v5, 4, v2
        v_lshlrev_b32 v5, 2, v5
        v_and_b32 v6, 3, v1
        v_cmp_eq_u32 s[20:21], 1, v6
        v_cmp_eq_u32 s[22:23], 2, v6
        v_cmp_eq_u32 s[40:41], 3, v6
        s_lshl_b32 s44, s74, 1
        s_lshr_b32 s61, {sWV}, 1
        s_add_u32 s44, s44, s61
        s_lshl_b32 s46, s44, 4
        s_add_u32 s46, s46, s75
        s_lshr_b32 s47, s46, 1
        s_and_b32 s62, {sWV}, 1
        s_lshl_b32 s46, s46, 1
        s_add_u32 s46, s46, s62
        s_lshl_b32 s46, s46, 9
        s_add_u32 s46, s46, {WS_HC}
        s_lshl_b32 s47, s47, 1
        s_add_u32 s47, s47, s62
        s_lshl_b32 s47, s47, 9
        s_and_b32 s63, s75, 1
        s_lshl_b32 s61, s63, 8
        s_add_u32 s47, s47, s61
        s_add_u32 s47, s47, {WS_HM}
        s_mul_i32 s44, s44, 56
        s_lshr_b32 s61, s75, 1
        s_mul_i32 s61, s61, 7
        s_add_u32 s44, s44, s61
        s_lshl_b32 s44, s44, 12
        s_lshl_b32 s61, s62, 11
        s_add_u32 s44, s44, s61
        s_add_u32 s44, s44, {WS_H}
        s_lshl_b32 s61, s63, 9
        s_add_u32 s45, s44, s61
        s_add_u32 s45, s45, {6*4096}
        s_mul_i32 s61, s63, {3*4096}
        s_add_u32 s44, s44, s61
        v_and_b32 v6, 1, v3
        v_lshlrev_b32 v7, 10, v6
        v_lshl_add_u32 v7, v2, 4, v7
        v_lshrrev_b32 v250, 1, v3
        v_lshl_add_u32 v7, v250, 8, v7
        v_lshlrev_b32 v250, 7, v250
        v_lshl_add_u32 v250, v2, 3, v250
        v_lshl_add_u32 v250, v6, 2, v250
        s_lshl_b32 s61, s62, 4
        s_add_u32 s61, s61, 3
        s_add_u32 s63, s62, 5
        v_mul_u32_u24 v6, s63, v6
        v_add_u32 v6, s61, v6
        v_alignbit_b32 v251, s80, s80, v6
        s_mul_i32 s61, s62, 13
        v_mov_b32 v6, s61
        v_alignbit_b32 v252, s80, s80, v6
        v_mov_b32 v253, v252
        v_mov_b32 v254, {NLOG2E}
        v_lshlrev_b32 v6, 2, v1
        """
        return [x.strip() for x in T.split("\n") if x.strip()]

    def g1_epilogue(self, tb):
        a = self.a
        early = self.g2_todo
        def ld(n):
            for _ in range(n):
                if early: a(early.pop(0)); self.g2_log.append("l")
        ld(opt('g2b0', 6))
        a("s_waitcnt lgkmcnt(0)\nv_mov_b32 v184, v249")
        for ft in (6, 4, 5):
            if ft == 4: a.region("g1e1")
            u = 64 + 8 * (ft - 4)
            for t in range(2):
                self.silu_tile(ft, t, u, u + 4, 32 + 4 * t, 40 + 2 * t if ft == 6 else 224 + 4 * t + 2 * (ft & 1))
                ld(3)
                if ft == 5: self.pair_store(ft, t, 253); self.g2_log.append("s")
            if ft == 6:
                a("v_permlane16_swap_b32 v40, v42\nv_permlane16_swap_b32 v41, v43")
                a(f"buffer_store_dwordx4 v[40:43], v7, {WS}, s45 offen sc1")
                a("v_bitop3_b32 v251, v251, v40, v41 bitop3:0x96\nv_bitop3_b32 v251, v251, v42, v43 bitop3:0x96")
                a(f"buffer_store_dword v251, v250, {WS}, s47 offen sc1")
                self.g2_log += ["s", "s"]
        a(f"buffer_store_dword v253, v6, {WS}, s46 offen offset:256 sc1")
        self.g2_log.append("s")
        ld(99)

    def g2_run(self):
        a = self.a
        a(f"""
        s_mul_i32 s78, s76, 56
        s_mul_i32 s61, {sWV}, 14
        s_add_u32 s78, s78, s61
        s_lshl_b32 s78, s78, 12
        s_add_u32 s78, s78, {WS_H}
        s_lshl_b32 s16, s76, 2
        s_add_u32 s16, s16, {sWV}
        s_lshl_b32 s15, s16, 11
        s_add_u32 s15, s15, {WS_HM}
        s_lshl_b32 s16, s16, 12
        s_add_u32 s16, s16, {WS_HC}
        s_mov_b32 s60, s80
        s_mov_b32 s61, s80
        s_lshr_b64 s[62:63], s[60:61], 13
        s_xor_b32 s20, s80, s62
        s_lshr_b64 s[62:63], s[60:61], 3
        s_mov_b32 s21, s62
        s_lshr_b64 s[62:63], s[60:61], 8
        s_xor_b32 s21, s21, s62
        s_lshr_b64 s[62:63], s[60:61], 19
        s_xor_b32 s21, s21, s62
        s_lshr_b64 s[62:63], s[60:61], 25
        s_xor_b32 s21, s21, s62
        s_lshl_b32 s60, {sWV}, 10
        v_add_u32 v12, s60, v8
        v_add_u32 v13, 1024, v12
        v_add_u32 v14, 2048, v12
        v_add_u32 v15, 3072, v12
        v_and_b32 v13, 4095, v13
        v_and_b32 v14, 4095, v14
        v_and_b32 v15, 4095, v15
        v_lshlrev_b32 v9, 3, v1
        s_mov_b32 s19, 0
        """)

    def h_touch(self, late):
        a = self.a
        if not late:
            a(f"""
            s_mul_i32 s17, s76, 56
            s_mul_i32 s61, {sWV}, 14
            s_add_u32 s17, s17, s61
            s_lshl_b32 s17, s17, 12
            s_lshl_b32 s61, s77, 9
            s_add_u32 s17, s17, s61
            s_add_u32 s17, s17, {WS_H}
            v_bfe_u32 v248, v1, 2, 3
            v_lshlrev_b32 v248, 2, v248
            s_mov_b32 s61, 0xba874310
            v_lshrrev_b32 v248, v248, s61
            v_and_b32 v248, 15, v248
            v_lshlrev_b32 v248, 12, v248
            v_and_b32 v249, 3, v1
            v_lshl_add_u32 v248, v249, 7, v248
            buffer_load_dword v255, v248, {WS}, s17 offen sc1
            v_bfe_u32 v248, v1, 2, 3
            v_lshlrev_b32 v248, 2, v248
            s_mov_b32 s61, 0xdddc9652
            v_lshrrev_b32 v248, v248, s61
            v_and_b32 v248, 15, v248
            v_lshlrev_b32 v248, 12, v248
            v_lshl_add_u32 v249, v249, 7, v248
            """)
        else:
            a(f"buffer_load_dword v7, v184, {WS}, s17 offen sc1")

    def g2_plan(self):
        HR = 8
        k0 = lambda cb: 7 * (cb // 2) + 3 * (cb % 2)
        groups = [("a", cb, [k0(cb), k0(cb) + 1]) for cb in range(4)]
        groups += [("b", 0, [2]), ("b", 1, [5]), ("m", 0, [6]), ("b", 2, [9]), ("b", 3, [12]), ("m", 1, [13])]
        order = [k for g in groups for k in g[2]]
        slot = {k: 32 + 16 * ((p + 4) % HR) for p, k in enumerate(order)}
        loads, chk, c = [], [], 88
        for kind, i, ks in groups:
            if kind == "a" and i == 2: c = 160
            p0 = order.index(ks[0])
            if kind == "m":
                chk.append([c, c + 1, c + 2, c + 3])
                for h in range(2):
                    loads.append((p0, None, f"buffer_load_dwordx2 {P(c+2*h)}, v9, {WS}, s15 offen offset:{1024*i + 512*h} sc1"))
                c += 4
            else:
                chk.append([c, c + 1])
                for h in range(2):
                    loads.append((p0, None, f"buffer_load_dword v{c+h}, v6, {WS}, s16 offen offset:{1024*i + 512*h + (256 if kind == 'b' else 0)} sc1"))
                c += 2
            for k in ks:
                for st in range(4):
                    pre = f"s_add_u32 s18, s78, {4096*k}\n" if st == 0 else ""
                    loads.append((order.index(k), (k, st), pre + f"buffer_load_dwordx4 {Q4(slot[k]+4*st)}, v{12+st}, {WS}, s18 offen sc1"))
        self.g2p = (HR, groups, order, slot, loads, chk)
        self.g2_early = [l[2] for l in loads[:opt('g2pre', 20)]]
        self.g2_log = []
        self.g2_todo = list(self.g2_early)

    def g2_body(self):
        a = self.a
        HR, groups, order, slot, loads, chk = self.g2p
        npre = len(self.g2_early)
        merged, it = [], iter(loads[:npre])
        for t in self.g2_log: merged.append(next(it) if t == "l" else (0, None, None))
        loads = merged + loads[npre:]
        nissued = len(merged)
        if opt('ht2', -1) >= 0:
            at = max(nissued, min(i for i, l in enumerate(loads) if l[0] >= opt('ht2', -1) and l[2]))
            loads.insert(at, (loads[at][0], None, f"buffer_load_dword v7, v184, {WS}, s17 offen sc1"))
        keys = [l[1] for l in loads]
        pos = [nissued]
        def issue(maxp):
            if pos[0] < len(loads) and loads[pos[0]][0] <= maxp:
                a(loads[pos[0]][2]); pos[0] += 1
        def wait(key):
            i = keys.index(key)
            while pos[0] <= i: issue(99)
            a(f"s_waitcnt vmcnt({pos[0] - 1 - i})")
        def vsteps(gi):
            x, out = 4 + gi % 2, []
            for j, k in enumerate(groups[gi][2]):
                regs = (list(chk[gi]) if j == 0 else [x]) + [slot[k] + i for i in range(16)]
                L = [("w", (k, 3)), f"v_bitop3_b32 v{x}, v{regs[0]}, v{regs[1]}, v{regs[2]} bitop3:0x96"]
                rest = regs[3:]
                while len(rest) >= 2: L.append(f"v_bitop3_b32 v{x}, v{x}, v{rest.pop(0)}, v{rest.pop(0)} bitop3:0x96")
                if rest: L.append(f"v_xor_b32 v{x}, v{x}, v{rest.pop(0)}")
                out.append(L)
            cmp = f"v_cmp_ne_u32 vcc, {'s21' if groups[gi][0] == 'm' else 's20'}, v{x}"
            p0, p1 = order.index(groups[gi][2][0]), order.index(groups[gi][2][-1])
            again = [l[2].replace("s18", "s17") for l in self.g2p[4] if p0 <= l[0] <= p1]
            self.g2_fix.append((gi, again, [t for L in out for t in L if isinstance(t, str)], cmp))
            out[-1].append(f"{cmp}\ns_cbranch_vccnz L_g2_fix{gi}\nL_g2_back{gi}:")
            return out
        def run(t):
            if isinstance(t, tuple): wait(t[1])
            else: a(t)
        tail = self.g2_tail_setup()
        self.g2_fix = []
        if opt('force', 0): a(f"s_xor_b32 s{19 + opt('force', 0)}, s{19 + opt('force', 0)}, 1")
        a("L_g2_go:")
        a.fence()
        a(f"s_waitcnt vmcnt({nissued - 1 - max(i for i, t in enumerate(self.g2_log) if t == 'e')})")
        self.g2_epi_pre(0)
        for L in vsteps(0):
            for t in L: run(t)
        for gi, (kind, _, ks) in enumerate(groups):
            nxt = vsteps(gi + 1) if gi + 1 < len(groups) else []
            nxt = [[] for _ in range(len(ks) - len(nxt))] + nxt
            for j, k in enumerate(ks):
                p = order.index(k)
                if p in (5, 10): a.region("g2" + "abc"[p // 5])
                self.stamp("g")
                cur = nxt[j]
                last = p == 13
                wr = lambda st: [f"ds_write_b128 v{127+st}, {Q4(192+16*st+4*dt)} offset:{1024*dt}" for dt in range(4)]
                for si, st in enumerate((1, 2, 3, 0) if last else range(4)):
                    pend = wr(si - 1) if last and si >= 2 else []
                    for dt in range(4):
                        d = 192 + 16 * st + 4 * dt
                        a(f"v_mfma_f32_16x16x32_bf16 {Q4(d)}, a[{16*k+4*dt}:{16*k+4*dt+3}], {Q4(slot[k]+4*st)}, {'0' if p == 0 else Q4(d)}")
                        i = 4 * si + dt
                        if i in {4: (0, 4, 8, 12), 5: (0, 3, 6, 10, 13), 6: (0, 3, 6, 9, 12, 15)}[opt('g2n', 5)]: issue(p + HR - 1)
                        if pend: a(pend.pop(0))
                        if i >= 9:
                            for _ in range(2):
                                if cur: run(cur.pop(0))
                        elif p >= 12:
                            for _ in range(3):
                                if tail: a(tail.pop(0))
                if last:
                    assert not tail
                    for t in wr(3): a(t)
                assert not cur
                if p <= 1: assert all(l[0] < 7 for l in loads[:pos[0]]), "check registers of the first groups share a ring slot"
        assert pos[0] == len(loads)

    def g2_tail_setup(self):
        rb = self.WB
        L = []
        for j in range(1, 4):
            L += [f"s_add_u32 s60, {sWV}, {j} | s_and_b32 s60, s60, 3 | s_mul_i32 s60, s60, 12288 | s_add_u32 s60, s60, {rb + 4096*(j-1)} | v_lshl_add_u32 v{127+j}, v1, 4, s60"]
        L += [f"s_mul_i32 s60, {sWV}, 12288 | s_add_u32 s60, s60, {rb} | v_lshl_add_u32 v131, v1, 4, s60",
              "v_lshlrev_b32 v132, 10, v2", "v_lshl_add_u32 v132, v3, 4, v132",
              f"s_lshl_b32 s22, s76, 16 | s_lshl_b32 s61, {sWV}, 14 | s_add_u32 s22, s22, s61 | s_lshl_b32 s61, s77, 7 | s_add_u32 s22, s22, s61"]
        L += [f"v_accvgpr_read_b32 v{96+i}, a{224+i}" for i in range(16)]
        for dt in range(4):
            x = 20 + 2 * dt
            L += [f"v_lshlrev_b32 v{112+4*dt}, 16, v{x}", f"v_and_b32 v{113+4*dt}, 0xffff0000, v{x}",
                  f"v_lshlrev_b32 v{114+4*dt}, 16, v{x+1}", f"v_and_b32 v{115+4*dt}, 0xffff0000, v{x+1}"]
        return [t.replace(" | ", "\n") for t in L]

    def g2_epilogue(self, rb, tb):
        a = self.a
        a("s_waitcnt lgkmcnt(0)\ns_barrier")
        for dt in range(4):
            for src in range(3):
                a(f"ds_read_b128 {Q4(136 + 12*dt + 4*src)}, v131 offset:{4096*src + 1024*dt}")
        for dt in range(4):
            r, o = 136 + 12 * dt, 192 + 4 * dt
            a(f"s_waitcnt lgkmcnt({9 - 3*dt})")
            for h in range(2): a(f"v_pk_add_f32 {P(r+2*h)}, {P(r+2*h)}, {P(r+4+2*h)}\nv_pk_add_f32 {P(o+2*h)}, {P(o+2*h)}, {P(r+8+2*h)}")
            for h in range(2): a(f"v_pk_add_f32 {P(r+2*h)}, {P(r+2*h)}, {P(o+2*h)}")
            for h in range(2): a(f"v_pk_fma_f32 {P(r+2*h)}, {P(r+2*h)}, {P(96+4*dt+2*h)}, {P(112+4*dt+2*h)}")
            for h in range(2): a(f"v_cvt_pk_bf16_f32 v{80+2*dt+h}, v{r+2*h}, v{r+2*h+1}")
            if dt == 1 and self.diag == "lsb":
                self.stamp("*")
                reg = lambda i: 82 + i if i < 15 else 85 + i
                a("s_cmp_lg_u32 s2, 100\ns_cbranch_scc1 L_nolsb")
                for j in range(4):
                    for g in range(4):
                        i = min(4 * j + g + 1, self.nst - 1)
                        a(f"s_sub_u32 s60, s{reg(i)}, s82\nv_cmp_eq_u32 vcc, {g}, v3\nv_mov_b32 v5, s60\nv_cndmask_b32 v4, v4, v5, vcc")
                    a(f"v_lshrrev_b32 v4, v2, v4\nv_and_b32 v4, 1, v4\nv_and_b32 v{80+j}, -2, v{80+j}\nv_or_b32 v{80+j}, v{80+j}, v4")
                a("L_nolsb:")
                self.diag = False
            if dt % 2 == 1:
                a(f"buffer_store_dwordx4 {Q4(80+2*(dt-1))}, v132, {OUT}, s22 offen offset:{32*(dt-1)}{self.OUTM}")

    def g2_retry(self):
        a = self.a
        for gi, again, chain, cmp in self.g2_fix:
            a(f"L_g2_fix{gi}:")
            a.fence()
            a(f"s_add_u32 s19, s19, 1\ns_cmp_gt_u32 s19, {SPIN}\ns_cbranch_scc1 L_g2_back{gi}\ns_waitcnt vmcnt(0)")
            if opt('force', 0): a(f"s_cmp_eq_u32 s19, 2\ns_cselect_b32 s60, 1, 0\ns_xor_b32 s{19 + opt('force', 0)}, s{19 + opt('force', 0)}, s60")
            for t in again: a(t)
            a("s_waitcnt vmcnt(0)")
            for t in chain: a(t)
            a(f"{cmp}\ns_cbranch_vccnz L_g2_fix{gi}\ns_branch L_g2_back{gi}")

def build_fused2(diag=False):
    g = G2(sc=True, diag=diag)
    a = g.a
    S = g.stamp
    kn = NAME + "_kernel"
    ref = open("cdna_kernels/" + NAME + ".s.ref").read().split("\n")
    hdr = [ln for ln in ref if ln.startswith(";") and "@launch" not in ln and "Override" not in ln and "grid=ceil" not in ln]
    hdr += ["; One persistent workgroup per CU. Stages: kv = shift_conv(k)*v, transposed through d_ws -> Toeplitz MFMA long",
            "; convolution per channel -> x1 -> GEMM1 (LayerNorm folded in) + SiLU -> GEMM2 + gated residual.",
            "; Hand-offs between workgroups use write-through stores with launch-tagged flags, tags or check words.",
            "; @launch grid=(256,1,1) block=(256,1,1) lds=163840"]
    a.raw('.amdgcn_target "amdgcn-amd-amdhsa--gfx950"\n.text')
    g.entry2(kn)
    a(f"s_cmp_ge_u32 {sWV}, 2\ns_cbranch_scc1 L_role_b")
    n0 = g.nst
    g.role_a()
    if HINT: g.flag_a()
    QP = opt('qp', 2)
    if QP == 0: g.q_rows()
    a(f"s_waitcnt vmcnt({(9 if HINT else 4) + (8 if QP == 0 else 0)})\ns_branch L_join1\nL_role_b:")
    a.fence()
    g.nst = n0
    a.region("end")
    if opt('cpf', 1) == 3: g.code_prefetch2()
    a(f"s_sub_u32 s6, {sWV}, 2")
    g.srd_words((8, 9, 0, 11, 4, 5, 6, 7, 10))
    a(f"s_waitcnt lgkmcnt(0)\nv_mov_b32 v4, {WS_TAG}\nbuffer_load_dwordx2 v[254:255], v4, {WS}, 0 offen sc1")
    if opt('tlb', 1):
        a(f"""
        v_min_u32 v4, 14, v1
        v_lshlrev_b32 v4, 21, v4
        v_add_u32 v4, {2*MB - 128}, v4
        buffer_load_dword v248, v4, {WS}, 0 offen
        v_mov_b32 v4, 0
        buffer_load_dword v251, v4, {OUT}, 0 offen
        buffer_load_dword v250, v4, {W1}, 0 offen
        buffer_load_dword v249, v4, {W2}, 0 offen
        """)
    BF = opt('bf', 0)
    if BF:
        g.c_ids()
        g.filter_load()
        if BF == 1:
            g.role_b_loads_gemv()
            g.role_b_loads2()
        g.g1_ids(); g.g2_ids()
        S()
        a(f"s_waitcnt vmcnt({13 if BF == 1 else 0})"); S(); S()
    else:
        g.role_b_loads_gemv()
        g.role_b_loads2()
        g.c_ids(); g.g1_ids(); g.g2_ids()
        if opt('warm', 0) == 1: g.warm((2, ["brest0", "g1a"]), (3, ["brest1", "cepi", "prep1", "g1b"]))
        if opt('warm', 0) == 3: g.warm((2, ["brest0"]), (3, ["brest1"]))
        S()
        a("v_and_b32 v2, 15, v1\nv_lshrrev_b32 v3, 4, v1")
        a.region("brest0")
        W2AT = opt('w2at', 0)
        g.n_after = 8 if W2L or W2AT else 12
        def after():
            g.filter_load()
            if not W2L and not W2AT: g.w2_unit_load()
        g.role_b_rest(0, after_wait=after); S()
        a(f"s_waitcnt vmcnt({2 if W2L or W2AT else 6})")
        if W2AT == 1: g.w2_unit_load()
        S()
    a("L_join1:")
    a.fence()
    a.region("fprep")
    g.filter_copies(); S()
    def mid():
        if HINT: return
        a(f"s_cmp_ge_u32 {sWV}, 2\ns_cbranch_scc1 L_mid_b\ns_waitcnt vmcnt({8 if QP == 0 else 0})")
        g.flag_a()
        if BF and not W2L:
            a("s_branch L_mid_done\nL_mid_b:")
            keep = (4, 5, 8, 14)
            for i, r in enumerate(keep): a(f"v_mov_b32 v{140+i}, v{r}")
            if BF == 2:
                g.role_b_loads_gemv()
                g.role_b_loads2()
            g.w2_unit_load()
            for i, r in enumerate(keep): a(f"v_mov_b32 v{r}, v{140+i}")
            a("v_and_b32 v2, 15, v1\nv_lshrrev_b32 v3, 4, v1\nL_mid_done:")
            return
        if QP == 1:
            a("v_mov_b32 v250, v5")
            g.q_rows()
            a("v_mov_b32 v5, v250")
        a("L_mid_b:")
    g.filter_prep(mid); S()
    a.region("ufetch")
    st = dict()
    a(f"s_cmp_ge_u32 {sWV}, 2\ns_cbranch_scc1 L_role_b2")
    if opt('q1', 0):
        a(f"s_cmp_eq_u32 {sWV}, 0\ns_cbranch_scc1 L_join2")
        g.q_rows("0"); g.q_rows("1")
    else:
        g.q_rows()
    a("s_branch L_join2\nL_role_b2:")
    a.fence()
    if BF:
        a.region("brest0")
        g.n_after = 0 if W2L else 4
        g.role_b_rest(0 if W2L else 4)
    if opt('w2at', 0) == 2: g.w2_unit_load()
    if not W2L: g.w2_unit_pack(0 if opt('w2at', 0) else 2)
    if opt('fm', 1) < 0: g.flag_m(0)
    a("L_join2:")
    a.region("addr")
    a.fence()
    g.u_addr()
    g.pre_conv()
    if opt('warm', 0) >= 2: g.warm((1, ["conv0", "cepi"]), (2, ["conv1", "prep1"]), (3, ["g1a", "g1b"]))
    g.u_wait()
    S(); S("c")
    a("s_waitcnt lgkmcnt(0)\ns_barrier")
    g.u_fetch(); S()
    w2 = dict(n=0)
    def side():
        g.g2_w2_one(w2['n']); w2['n'] += 1
    a.region("conv0")
    log = []
    younger = lambda tag: len(log) - 1 - max(i for i, t in enumerate(log) if t == tag)
    modl = g.mod_load_list(32)
    wl = g.w_stream(32, 0)
    st.update(hold=0, w=g.e_stream() + wl[wl.index("WAIT"):], q=[('e', t) for t in g.epi_load_list()] + [('m', t) for t in modl])
    Q0 = opt('q0', 2)
    def hook(n):
        if n == 40: a.region("conv1")
        if n in (0, 8, 16, 24, 32, 40, 50, 60, 70, 79): S("c")
        if n >= Q0 and n % 2 == 0 and st['q']:
            tg, t = st['q'].pop(0)
            log.append(tg); a(t)
        for _ in range(opt('wr', 3)):
            if not st['w'] or st['hold'] > n: break
            t = st['w'][0]
            if t == "EWAIT":
                if n < Q0 + opt('ew', 22): break
                a(f"s_waitcnt vmcnt({younger('e')})")
            elif t == "EVERIFY":
                g.verify("e", [125] + [109 + 2*i for i in range(8)], 154, g.epi_load_list())
            elif t == "WAIT":
                if n < Q0 + opt('ww', 26): break
                a(f"s_waitcnt vmcnt({younger('m')})")
            elif t == "VERIFY":
                g.verify("w", [33 + 2*i for i in range(8)], 24, modl)
            elif t == "GAP":
                assert n <= 64
                st['hold'] = n + 8
            else:
                a(t.replace(" | ", "\n")); log.extend('s' * t.count("buffer_store"))
            st['w'].pop(0)
        if W2L:
            U0, U1, U2 = opt('u0', 1), opt('u1', 33), opt('u2', 67)
            if n in (U0, U0 + 2):
                a(f"s_add_u32 m0, s44, {512*(n-U0)}\nbuffer_load_dwordx4 v169, {W2}, {'s23' if n == U0 else 's22'} offen{g.NT} lds"); log.append('u')
            if n == U1:
                a(f"s_waitcnt vmcnt({younger('u')})")
                a("ds_read_b64_tr_b16 v[128:129], v174\nds_read_b64_tr_b16 v[130:131], v175\nds_read_b64_tr_b16 v[132:133], v174 offset:8\nds_read_b64_tr_b16 v[134:135], v175 offset:8")
            if n in (U1 + 8, U1 + 10):
                j = (n - U1 - 8) // 2
                a(f"buffer_store_dwordx4 {Q4(128+4*j)}, v9, {WS}, s45 offen offset:{1024*j} sc1"); log.append('p')
            if n == U2:
                a(f"s_waitcnt vmcnt({younger('p')})")
                g.flag_store("s46", 1, 3, 136); log.append('s')
        if n == opt('fm', 1) and not W2L:
            a(f"s_cmp_lt_u32 {sWV}, 2\ns_cbranch_scc1 L_skip_m")
            g.flag_m(len(log) + 8)
            a("L_skip_m:")
        WM = opt('wm', 46)
        if W2L: WM = 999
        if n == max(0, WM - 14):
            a(f"buffer_load_dwordx2 v[252:253], v248, {WS}, 0 offen sc1"); log.append('f')
        if n == WM: g.poll("M", first_issued=True, va="v248", vd=252, later=younger('f'))
        if n >= WM and n % 2 == 1 and w2['n'] < opt('w2conv', 15):
            side(); log.append('w')
    g.conv_main(hook); S()
    assert not st['q']
    a.region("cepi")
    print("w_stream left after conv:", len(st['w']), file=sys.stderr)
    for t in st['w']:
        assert t not in ("WAIT", "GAP", "VERIFY")
        a(t.replace(" | ", "\n")); log.extend('s' * t.count("buffer_store"))
    S("c")
    g.conv_epilogue(); S("c")
    if W2L: a(f"buffer_load_dwordx2 v[252:253], v248, {WS}, 0 offen sc1")
    a.region("prep1")
    EARLY = opt('early', 0)
    if EARLY:
        a(f"""
        s_and_b32 s60, s2, 15
        s_lshl_b32 s60, s60, 4
        s_lshr_b32 s61, s2, 4
        s_add_u32 s60, s60, s61
        s_lshl_b32 s60, s60, 2
        s_add_u32 s60, s60, {sWV}
        s_lshl_b32 s60, s60, {FL}
        s_add_u32 s60, s60, {FLAG_W}
        s_and_b32 s61, s2, 8
        s_lshl_b32 s61, s61, {7 + FL}
        s_add_u32 s60, s60, s61
        s_waitcnt vmcnt(2)
        """)
        g.flag_store("s60", 4, 11 + FL, 4)
    g.signal_all(FLAG_2, 8, 2); S()
    if W2L: g.poll("M", va="v248", vd=252, first_issued=True, later=1)
    g.g1_addr()
    if EARLY:
        a(f"""
        s_lshl_b32 s60, {sX}, 4
        s_add_u32 s60, s60, s75
        s_lshl_b32 s60, s60, {6 + FL}
        s_add_u32 s60, s60, {FLAG_W}
        v_lshl_add_u32 v4, v1, {FL}, s60
        """)
        a(f"buffer_load_dwordx2 v[6:7], v4, {WS}, 0 offen sc1")
        n0 = w2['n']
        while w2['n'] < 56 - opt('w2b', 15) - opt('w2a', 14): side()
        g.poll("W", first_issued=True, later=w2['n'] - n0)
        g.g1_run(None, 0, early="weights")
    else:
        while w2['n'] < 56 - opt('w2e3', 0) - opt('w2b', 15) - opt('ea', 0): side()
    g.warm((0, ["g1c"]), (1, ["g1d"]), (2, ["g1e0", "g2a", "g2b"]), (3, ["g1e1", "g2c", "g2e"])); S()
    a(f"""
    s_lshl_b32 s60, {sX}, {8 + FL}
    s_add_u32 s60, s60, {FLAG_2}
    v_lshl_add_u32 v4, v0, {FL}, s60
    """)
    a.region("g1a")
    for i in range(opt('p2', 0)): a("s_sleep 4")
    g.poll("2")
    a("s_barrier"); S(); S("h")
    g.g2_plan()
    g.g1_run(side, opt('w2b', 15), EARLY, opt('w2a', 14))
    S()
    S("h")
    a.region("g1e0")
    assert w2['n'] == 56
    if not g.g2_log: g.g2_run()
    g.g2_epi_load()
    g.g2_log += ["e"] * 8
    g.g1_epilogue(G2.T_U - 4096)
    S("h")
    a("s_barrier"); S()
    a.region("g2a")
    S(); S("g"); S("h")
    g.g2_body(); S(); S("h")
    a("L_g2_giveup:")
    if diag and opt('cnt', 0):
        a(f"s_lshl_b32 s60, s2, 2\ns_add_u32 s60, s60, {sWV}\ns_lshl_b32 s60, s60, 7\ns_add_u32 s60, s60, {WS_DIAG + 124}\nv_mov_b32 v4, s60\nv_mov_b32 v5, s19\nbuffer_store_dword v5, v4, {WS}, 0 offen")
    a.region("g2e")
    g.g2_epilogue(G2.WB, 0)
    a.region("end")
    g.tag_update()
    g.exit(kn)
    g.g2_retry()
    a("L_warm_ret:\ns_setpc_b64 s[98:99]" if opt('warm', 0) else "L_warm_ret:\ns_endpgm")
    a.raw('.section .rodata,"a"')
    a.raw(desc(kn, 512, 256))
    if not opt('warm', 0):
        a.lines = [ln for ln in a.lines if not ln.startswith(";@region")]
    txt, size = add_pads(a.text(), opt('pad', 256))
    print("code bytes", size, file=sys.stderr)
    return "\n".join(hdr) + "\n" + txt

if __name__ == "__main__":
    diag = sys.argv[2] if len(sys.argv) > 2 else False
    open(sys.argv[1], "w").write(build_fused2(diag))
```

```python
import sys, os
OPT = dict(kv.split('=') for kv in os.environ.get('OPT', '').split(',') if kv)
opt = lambda k, d: int(OPT.get(k, d))
from asmlib import Asm, desc, add_pads
from gen import *

WS_W1P, WS_UP = 21 * MB, 23 * MB
WS_HC, WS_HM, WS_TAG = 26 * MB, 27 * MB, 28 * MB
MODP = 3072 * 8
FLAG_A, FLAG_B, FLAG_2, FLAG_3 = WS_FLAG, WS_FLAG + MB, WS_FLAG + 2 * MB, WS_FLAG + 3 * MB
FLAG_W = 25 * MB
HINT = opt('hint', 0)
WE = opt('we', 0)
W2L = opt('w2late', 0)
FL = opt('fl', 6)
P = lambda r: f"v[{r}:{r+1}]"
Q4 = lambda r: f"v[{r}:{r+3}]"

class G2(G):
    NT = " nt" if opt('nt', 1) else ""
    OUTM = ["", " sc1", " nt", " sc0 sc1"][opt('outm', 0)]
    NTF = " nt" if opt('ntf', 1) else ""
    NTQ = " nt" if opt('ntq', 0) else ""
    NTW1 = " nt" if opt('ntw1', 0) else ""
    FB, FSZ, WB = 1536, 7584, 32768
    XI, XI_RS = 1536, 7616
    T_GB, T_U, T_UP = 1536 + 2560, 1536 + 4608, 1536 + 7584 + 2560

    def entry2(self, name):
        a = self.a
        a.raw(f".globl {name}\n.p2align 8\n.type {name},@function")
        a.label(name)
        a.fence()
        a(f"s_cmp_ge_u32 s2, 256\ns_cbranch_scc1 L_end_{name}")
        self.stamp("*")
        if opt('cpf', 1) == 2: self.code_prefetch()
        for i in (1, 2, 3, 8, 9, 0, 11, 4, 5, 6, 7, 10):
            r, off, n = SRD_INFO[i]
            a(f"s_load_dwordx2 s[{r}:{r+1}], s[0:1], {off}")
        if opt('cpf', 1) == 1: self.code_prefetch()
        a(f"""
        v_lshrrev_b32 v2, 6, v0
        v_and_b32 v1, 63, v0
        s_mov_b32 s14, {2*MB}
        v_readfirstlane_b32 {sWV}, v2
        s_mov_b32 s15, 0x00020000
        s_and_b32 {sX}, s2, 7
        s_lshr_b32 {sM}, s2, 3
        """)

    def srd_words(self, which):
        for i in which:
            r, off, n = SRD_INFO[i]
            size = "s14" if n == 2 * MB else str(n)
            self.a(f"{'s_movk_i32' if n <= 4096 else 's_mov_b32'} s{r+2}, {size}\ns_mov_b32 s{r+3}, s15")

    def code_prefetch2(self):
        self.a(f"""
        s_getpc_b64 s[60:61]
        L_pc:
        s_sub_u32 s60, s60, L_pc-{NAME}_kernel
        s_subb_u32 s61, s61, 0
        v_lshlrev_b32 v4, 7, v0
        v_subrev_u32 v4, 16384, v4
        v_add_u32 v6, 16384, v4
        v_min_u32 v6, L_warm_ret-{NAME}_kernel, v6
        v_mov_b32 v5, s61
        v_add_co_u32 v4, vcc, s60, v4
        v_addc_co_u32 v5, vcc, 0, v5, vcc
        global_load_dword v253, v[4:5], off
        v_mov_b32 v7, s61
        v_add_co_u32 v6, vcc, s60, v6
        v_addc_co_u32 v7, vcc, 0, v7, vcc
        global_load_dword v252, v[6:7], off
        """)

    def code_prefetch(self):
        CQ = opt('cq', 1)
        self.a("s_getpc_b64 s[60:61]\nL_pc:")
        if CQ:
            self.a(f"""
            s_lshl_b32 s62, s2, 3
            v_add_u32 v4, s62, v0
            v_and_b32 v4, 255, v4
            v_cmp_le_u32 vcc, {256 - 64*CQ}, v0
            v_lshlrev_b32 v4, 7, v4
            """)
        else:
            self.a("v_lshlrev_b32 v4, 7, v0")
        self.a("""
        v_min_u32 v4, L_warm_ret-L_pc, v4
        v_mov_b32 v5, s61
        """)
        if CQ: self.a("s_cbranch_vccz L_pf_skip")
        self.a("""
        v_add_co_u32 v4, vcc, s60, v4
        v_addc_co_u32 v5, vcc, 0, v5, vcc
        global_load_dword v253, v[4:5], off
        L_pf_skip:
        """)

    def warm(self, *plans):
        if not opt('warm', 0): return
        a = self.a
        self.nwarm = getattr(self, 'nwarm', 0) + 1
        a("s_mov_b64 exec, 0")
        for w, regs in plans:
            lab = f"L_w{self.nwarm}_{w}"
            a(f"s_cmp_lg_u32 {sWV}, {w}\ns_cbranch_scc1 {lab}")
            for r in regs: a(f"s_call_b64 s[98:99], L_reg_{r}")
            a(f"{lab}:")
        a("s_mov_b64 exec, -1")

    def tag_ready(self):
        self.a("v_readfirstlane_b32 s80, v254\nv_readfirstlane_b32 s81, v255\ns_add_u32 s80, s80, 0x9e3779b9\ns_add_u32 s81, s81, 0x7f4a7c15")

    def tag_update(self):
        self.a(f"""
        s_or_b32 s60, s2, {sWV}
        s_cmp_lg_u32 s60, 0
        s_cbranch_scc1 L_tag_done
        v_mov_b32 v4, {WS_TAG}
        v_mov_b32 v6, s80
        v_mov_b32 v7, s81
        s_mov_b64 exec, 1
        buffer_store_dwordx2 v[6:7], v4, {WS}, 0 offen
        L_tag_done:
        """)

    def nonce_issue(self, b):
        self.a(f"v_mov_b32 v{b+2}, 0\nbuffer_load_dwordx2 v[{b}:{b+1}], v{b+2}, {DBG}, 0 offen sc1")

    def nonce_finish(self, tag, b):
        self.a(f"""
        s_mov_b32 s62, 0
        L_nonce_{tag}:
        s_waitcnt vmcnt(0)
        v_readfirstlane_b32 s80, v{b}
        v_readfirstlane_b32 s81, v{b+1}
        s_add_u32 s62, s62, 1
        s_cmp_lg_u32 s81, 0
        s_cbranch_scc1 L_nonce_{tag}_ok
        s_cmp_gt_u32 s62, {SPIN}
        s_cbranch_scc1 L_nonce_{tag}_ok
        v_mov_b32 v{b+2}, 0
        buffer_load_dwordx2 v[{b}:{b+1}], v{b+2}, {DBG}, 0 offen sc1
        s_branch L_nonce_{tag}
        L_nonce_{tag}_ok:
        """)

    def flag_store(self, soff, replicas, rstride_log2, b=4):
        self.a(f"""
        v_lshl_add_u32 v{b+2}, v1, {rstride_log2}, {soff}
        v_mov_b32 v{b}, s80
        v_mov_b32 v{b+1}, s81
        s_mov_b64 exec, {(1 << replicas) - 1}
        buffer_store_dwordx2 v[{b}:{b+1}], v{b+2}, {WS}, 0 offen sc1
        s_mov_b64 exec, -1
        """)

    def wide_flag_load(self, va, vd):
        return (f"buffer_load_dwordx2 v[{vd}:{vd+1}], {va}, {WS}, 0 offen sc1\n"
                f"buffer_load_dwordx2 v[{vd+2}:{vd+3}], {va}, {WS}, 0 offen offset:{1 << FL} sc1")

    def verify(self, name, tags, t0, reload):
        a = self.a
        if opt('force', 0): a(f"v_mov_b32 v{tags[-1]}, 0\nv_mov_b32 v{tags[-1]-1}, 0")
        a(f"s_mov_b32 s62, 0\nL_ver_{name}:")
        for op, d in (("max", t0), ("min", t0 + 1)):
            rest = list(tags)
            cur = rest.pop(0)
            while rest:
                if len(rest) >= 2: a(f"v_{op}3_u32 v{d}, v{cur}, v{rest.pop(0)}, v{rest.pop(0)}")
                else: a(f"v_{op}_u32 v{d}, v{cur}, v{rest.pop(0)}")
                cur = d
            if cur != d: a(f"v_mov_b32 v{d}, v{cur}")
        a(f"""
        v_cmp_ne_u32 vcc, s80, v{t0}
        v_cmp_ne_u32 s[60:61], s80, v{t0+1}
        s_or_b64 vcc, vcc, s[60:61]
        s_cbranch_vccz L_ver_{name}_ok
        s_add_u32 s62, s62, 1
        s_cmp_gt_u32 s62, {SPIN}
        s_cbranch_scc1 L_ver_{name}_ok
        """)
        for t in reload: a(t)
        a(f"s_waitcnt vmcnt(0)\ns_branch L_ver_{name}\nL_ver_{name}_ok:")

    def poll(self, tag, wide=False, first_issued=False, va="v4", vd=6, later=0):
        a = self.a
        ld = (self.wide_flag_load(va, vd) if wide else
              f"buffer_load_dwordx2 v[{vd}:{vd+1}], {va}, {WS}, 0 offen sc1")
        a("s_mov_b32 s62, 0")
        if first_issued:
            a(f"s_waitcnt vmcnt({later})\ns_branch L_poll_{tag}_chk")
        a(f"L_poll_{tag}:\n{ld}\ns_waitcnt vmcnt(0)\nL_poll_{tag}_chk:")
        a(f"v_cmp_ne_u64 vcc, s[80:81], v[{vd}:{vd+1}]")
        if wide:
            a(f"v_cmp_ne_u64 s[60:61], s[80:81], v[{vd+2}:{vd+3}]\ns_or_b64 vcc, vcc, s[60:61]")
        a(f"""
        s_add_u32 s62, s62, 1
        s_cbranch_vccz L_poll_{tag}_ok
        s_cmp_gt_u32 s62, {SPIN}
        s_cbranch_scc1 L_poll_{tag}_ok
        s_sleep {opt('sleep', 6)}
        s_branch L_poll_{tag}
        L_poll_{tag}_ok:
        """)

    def tile_off(self, h):
        self.a(f"""
        s_lshl_b32 s60, {sM}, 16
        s_lshl_b32 s61, {sX}, 7
        s_add_u32 s60, s60, s61
        s_lshl_b32 s61, {h}, 15
        s_add_u32 s60, s60, s61
        v_lshrrev_b32 v8, 4, v1
        v_and_b32 v9, 15, v1
        v_lshlrev_b32 v2, 13, v8
        v_lshl_add_u32 v2, v9, 3, v2
        v_add_u32 v2, s60, v2
        v_add_u32 v5, 4096, v2
        """)

    def role_a(self):
        a = self.a
        self.tile_off(sWV)
        self.srd_words((2, 3))
        a(f"""
        v_subrev_u32 v3, 3072, v2
        s_lshl_b32 s62, {sX}, 9
        v_lshl_add_u32 v56, v9, 5, s62
        s_waitcnt lgkmcnt(0)
        """)
        self.stamp("s")
        for j in range(11):
            base, off = ("v3", j * 1024) if j < 3 else ("v2", (j - 3) * 1024) if j < 7 else ("v5", (j - 7) * 1024)
            a(f"buffer_load_dwordx2 {P(10+2*j)}, {base}, {K}, 0 offen offset:{off}{self.NT}")
        for j in range(8):
            base, off = ("v2", j * 1024) if j < 4 else ("v5", (j - 4) * 1024)
            a(f"buffer_load_dwordx2 {P(32+2*j)}, {base}, {V}, 0 offen offset:{off}{self.NT}")
        a(f"buffer_load_dwordx4 v[48:51], v56, {SK}, 0 offen\nbuffer_load_dwordx4 v[52:55], v56, {SK}, 0 offen offset:16")
        self.srd_words((11, 4, 0, 5, 6, 7, 10))
        a(f"v_mov_b32 v4, {WS_TAG}\nbuffer_load_dwordx2 v[254:255], v4, {WS}, 0 offen sc1")
        self.stamp("s")
        a(f"""
        s_lshl_b32 s60, {sX}, {18 + HINT}
        s_lshl_b32 s61, {sM}, {7 + HINT}
        s_sub_u32 s60, s60, s61
        s_lshl_b32 s61, {sWV}, {6 + HINT}
        s_sub_u32 s60, s60, s61
        s_add_u32 s60, s60, {WS_KVT + 63*(64 << HINT)}
        v_lshlrev_b32 v142, {14 + HINT}, v9
        v_add_u32 v142, s60, v142
        v_sub_u32 v56, 3, v8
        v_lshl_add_u32 v142, v56, 4, v142
        s_movk_i32 s64, {4096 << HINT}
        s_movk_i32 s65, {8192 << HINT}
        s_movk_i32 s66, {12288 << HINT}
        """)
        self.c_ids()
        self.filter_load()
        self.g1_ids(); self.g2_ids()
        self.stamp("s")
        if opt('warm', 0) == 1: self.warm((0, ["kv0", "fprep", "ufetch", "conv0"]), (1, ["kv1", "addr", "conv1"]))
        if opt('warm', 0) == 3: self.warm((0, ["kv0", "fprep"]), (1, ["kv1", "ufetch", "addr"]))
        self.stamp(); self.stamp("s")
        a("s_waitcnt vmcnt(8)")
        self.tag_ready()
        self.stamp(); self.stamp("s")
        for p in range(2):
            a.region(f"kv{p}")
            s0, s1 = 48 + 4 * p, 50 + 4 * p
            a(f"""
            v_lshlrev_b32 v102, 16, v{s0}
            v_lshlrev_b32 v103, 16, v{s1}
            v_and_b32 v104, 0xffff0000, v{s0}
            v_and_b32 v105, 0xffff0000, v{s1}
            v_lshlrev_b32 v106, 16, v{s0+1}
            v_lshlrev_b32 v107, 16, v{s1+1}
            v_and_b32 v108, 0xffff0000, v{s0+1}
            v_and_b32 v109, 0xffff0000, v{s1+1}
            """)
            for j in range(11):
                a(f"v_lshlrev_b32 v{80+2*j}, 16, v{10+2*j+p}\nv_and_b32 v{81+2*j}, 0xffff0000, v{10+2*j+p}")
            for i in range(8):
                a(f"v_lshlrev_b32 v{126+2*i}, 16, v{32+2*i+p}\nv_and_b32 v{127+2*i}, 0xffff0000, v{32+2*i+p}")
            for i in range(8): a(f"v_pk_mul_f32 {P(110+2*i)}, {P(80+2*i)}, {P(108)}")
            for i in range(8): a(f"v_pk_fma_f32 {P(110+2*i)}, {P(82+2*i)}, {P(106)}, {P(110+2*i)}")
            for i in range(8): a(f"v_pk_fma_f32 {P(110+2*i)}, {P(84+2*i)}, {P(104)}, {P(110+2*i)}")
            for i in range(8): a(f"v_pk_fma_f32 {P(110+2*i)}, {P(86+2*i)}, {P(102)}, {P(110+2*i)}")
            for i in range(8): a(f"v_pk_mul_f32 {P(110+2*i)}, {P(110+2*i)}, {P(126+2*i)}")
            o = 144 + 8 * p
            for j in range(4):
                a(f"v_cvt_pk_bf16_f32 v{o+j}, v{110+2*(7-2*j)}, v{110+2*(6-2*j)}")
                a(f"v_cvt_pk_bf16_f32 v{o+4+j}, v{111+2*(7-2*j)}, v{111+2*(6-2*j)}")
            so = ("0", "s64") if p == 0 else ("s65", "s66")
            a(f"buffer_store_dwordx4 {Q4(o)}, v142, {WS}, {so[0]} offen sc1\nbuffer_store_dwordx4 {Q4(o+4)}, v142, {WS}, {so[1]} offen sc1")
            for c in range(2 * HINT):
                r, x = o + 4 * c, 56 + 2 * p + c
                a(f"v_bitop3_b32 v{x}, v{r}, v{r+1}, v{r+2} bitop3:0x96\nv_xor_b32 v{x}, v{x}, v{r+3}")
        for sw in (("16", "32") if HINT else ()):
            for c in range(4): a(f"v_mov_b32 v{60+c}, v{56+c}")
            for c in range(4): a(f"v_permlane{sw}_swap_b32 v{56+c}, v{60+c}")
            for c in range(4): a(f"v_xor_b32 v{56+c}, v{56+c}, v{60+c}" if sw == "16" else f"v_bitop3_b32 v{56+c}, v{56+c}, v{60+c}, s80 bitop3:0x96")
        for so in (("0", "s64", "s65", "s66") if HINT else ()): a(f"buffer_store_dwordx4 v[56:59], v142, {WS}, {so} offen offset:64 sc1")
        self.stamp()

    def w1_touch(self, j):
        self.a(f"""
        s_lshl_b32 s60, {sM}, 1
        s_add_u32 s60, s60, {sWV}
        s_mul_i32 s60, s60, {8*3584}
        s_and_b32 s61, {sX}, 1
        s_mul_i32 s61, s61, 1792
        s_add_u32 s60, s60, s61
        s_movk_i32 s61, 4682
        v_add_u32 v250, {64*j}, v1
        v_min_u32 v250, 111, v250
        v_mul_u32_u24 v251, s61, v250
        v_lshrrev_b32 v251, 16, v251
        v_mul_u32_u24 v251, {3584 - 14*128}, v251
        v_lshl_add_u32 v251, v250, 7, v251
        buffer_load_dword v{248+j}, v251, {W1}, s60 offen{self.NTW1}
        """)

    def flag_a(self):
        a = self.a
        a(f"""
        s_lshl_b32 s60, {sX}, 5
        s_add_u32 s60, s60, {sM}
        s_lshl_b32 s60, s60, 1
        s_add_u32 s60, s60, {sWV}
        s_lshl_b32 s60, s60, {self.FA_LOG}
        s_add_u32 s60, s60, {FLAG_A}
        """)
        self.flag_store("s60", 1, 3, 250)
    FA_LOG = FL

    def filter_load(self):
        a = self.a
        a("s_lshl_b32 s60, s68, 12\nv_lshl_add_u32 v4, v1, 4, s60")
        for i in range(4):
            r = 176 + 8 * i
            a(f"buffer_load_dwordx4 {Q4(r)}, v4, {FK}, 0 offen offset:{1024*i}{self.NTF}")
            a(f"buffer_load_dwordx2 {P(r+4)}, v4, {FK}, 0 offen offset:{1024*i+16}{self.NTF}")

    def role_b_loads(self):
        a = self.a
        a(f"s_sub_u32 s6, {sWV}, 2")
        self.c_ids()
        self.filter_load()
        self.g1_ids(); self.g2_ids()

    def role_b_loads_gemv(self):
        a = self.a
        a(f"""
        v_lshrrev_b32 v8, 2, v1
        v_and_b32 v14, 3, v1
        s_and_b32 s60, s2, 3
        s_lshl_b32 s60, s60, 7
        v_lshl_add_u32 v2, v8, 3, s60
        v_lshlrev_b32 v3, 1, v2
        buffer_load_dwordx4 v[164:167], v3, {C}, 0 offen
        s_movk_i32 s61, 6144
        v_mul_lo_u32 v3, v2, s61
        v_lshl_add_u32 v3, v14, 4, v3
        s_lshr_b32 s60, s2, 2
        s_lshl_b32 s60, s60, 7
        s_lshl_b32 s61, s6, 6
        s_add_u32 s60, s60, s61
        s_cmp_ge_u32 s2, 192
        s_cselect_b32 s60, 0x40000000, s60
        """)
        for j in range(8):
            a(f"buffer_load_dwordx4 {Q4(16+4*j)}, v3, {WM}, s60 offen{self.NT}")
            if j < 7: a("s_add_u32 s60, s60, 6144")

    def role_b_loads2(self):
        a = self.a
        a(f"""
        s_lshl_b32 s60, s2, 13
        s_lshl_b32 s61, s6, 12
        s_add_u32 s60, s60, s61
        v_lshrrev_b32 v3, 4, v1
        v_lshlrev_b32 v3, 10, v3
        v_and_b32 v4, 15, v1
        v_lshl_add_u32 v3, v4, 4, v3
        """)
        for j in range(4): a(f"buffer_load_dwordx4 {Q4(48+4*j)}, v3, {Q}, s60 offen offset:{256*j}{self.NTQ}")

    def unit_addr(self, sel=None):
        self.a(f"""
        s_lshl_b32 s61, s2, 1
        {sel or f"s_and_b32 s60, {sWV}, 1"}
        s_add_u32 s60, s60, s61
        s_lshr_b32 s20, s60, 3
        s_and_b32 s21, s60, 7
        s_mul_i32 s61, s20, 37
        s_lshr_b32 s61, s61, 8
        s_mul_i32 s62, s61, 7
        s_sub_u32 s62, s20, s62
        s_mul_i32 s61, s61, 224
        s_lshl_b32 s63, s62, 5
        s_add_u32 s22, s63, 16
        s_cmp_ge_u32 s62, 3
        s_cselect_b32 s63, s22, s63
        s_movk_i32 s22, {16*1024}
        s_cmp_eq_u32 s62, 6
        s_cselect_b32 s63, 96, s63
        s_cselect_b32 s22, {112*1024}, s22
        s_add_u32 s61, s61, s63
        s_lshl_b32 s61, s61, 10
        s_lshl_b32 s62, s21, 7
        s_add_u32 s61, s61, s62
        s_cmp_ge_u32 s60, 448
        s_cselect_b32 s23, 0x40000000, s61
        v_lshrrev_b32 v169, 2, v1
        v_lshlrev_b32 v169, 10, v169
        v_and_b32 v5, 3, v1
        v_lshl_add_u32 v169, v5, 4, v169
        """)

    def q_rows(self, h=sWV):
        a = self.a
        a(f"""
        s_mov_b32 s62, {h}
        s_cmp_eq_u32 s62, 0
        s_cselect_b32 s60, s71, s72
        s_lshl_b32 s60, s60, 19
        s_lshr_b32 s61, s70, 1
        s_lshl_b32 s61, s61, 4
        s_add_u32 s60, s60, s61
        s_lshl_b32 s61, s62, 13
        v_lshlrev_b32 v5, 10, v1
        """)
        for i in range(8):
            a(f"s_add_u32 m0, s61, {self.QS + 1024*i}")
            a(f"buffer_load_dwordx4 v5, {Q}, s60 offen lds")
            if i < 7: a("s_add_u32 s60, s60, 65536")

    def side_inputs(self):
        a = self.a
        a(f"""
        v_lshrrev_b32 v5, 1, v1
        v_mul_u32_u24 v5, 3584, v5
        v_and_b32 v6, 1, v1
        v_lshl_add_u32 v5, v6, 4, v5
        s_and_b32 s60, s2, 15
        s_mul_i32 s60, s60, 224
        s_lshr_b32 s61, s2, 4
        s_mul_i32 s61, s61, {32*3584}
        s_add_u32 s60, s60, s61
        s_lshl_b32 s61, {sWV}, 5
        s_add_u32 s60, s60, s61
        s_lshl_b32 s61, {sWV}, 11
        s_add_u32 m0, s61, {self.W1S}
        buffer_load_dwordx4 v5, {W1}, s60 offen{self.NTW1} lds
        s_add_u32 m0, s61, {self.W1S + 1024 - 128}
        buffer_load_dwordx4 v5, {W1}, s60 offen offset:128{self.NTW1} lds
        s_cmp_lt_u32 {sWV}, 2
        s_cselect_b32 s60, s71, s72
        s_lshl_b32 s60, s60, 4
        s_and_b32 s61, {sWV}, 1
        s_lshl_b32 s61, s61, 3
        s_add_u32 s43, s60, s61
        s_lshl_b32 s60, s43, 5
        v_lshl_add_u32 v5, v3, 5, v2
        v_add_u32 v5, s60, v5
        v_lshlrev_b32 v159, 4, v5
        v_add_u32 v159, {WS_STAT}, v159
        s_lshl_b32 s60, s68, 1
        v_mov_b32 v5, s60
        buffer_load_ushort v126, v5, {SD}, 0 offen
        """)

    def w2_half_addr(self):
        a = self.a
        self.unit_addr(f"s_lshr_b32 s60, {sWV}, 1")
        a(f"""
        s_and_b32 s60, {sWV}, 1
        s_lshl_b32 s60, s60, 6
        s_add_u32 s23, s23, s60
        s_lshl_b32 s60, {sWV}, 11
        s_add_u32 s44, s60, {self.W2S}
        v_lshrrev_b32 v174, 2, v1
        v_lshl_add_u32 v175, v3, 2, v174
        s_cmp_eq_u32 s22, {112*1024}
        s_cselect_b64 vcc, -1, 0
        s_movk_i32 s61, 1024
        s_cselect_b32 s61, 256, s61
        v_cndmask_b32 v174, v174, v175, vcc
        v_lshlrev_b32 v174, 6, v174
        v_and_b32 v175, 3, v1
        v_lshl_add_u32 v174, v175, 4, v174
        v_add_u32 v174, s44, v174
        v_add_u32 v175, s61, v174
        s_add_u32 s22, s22, s23
        s_mul_i32 s45, s21, 56
        s_add_u32 s45, s45, s20
        s_lshl_b32 s45, s45, 12
        s_and_b32 s61, {sWV}, 1
        s_lshl_b32 s61, s61, 11
        s_add_u32 s45, s45, s61
        s_add_u32 s45, s45, {WS_W2P}
        s_cmp_ge_u32 s20, 56
        s_cselect_b32 s45, 0x40000000, s45
        s_lshl_b32 s46, s2, 2
        s_add_u32 s46, s46, {sWV}
        s_lshl_b32 s46, s46, {FL}
        s_add_u32 s46, s46, {FLAG_B}
        """)

    def w2_unit_load(self):
        a = self.a
        self.unit_addr()
        a(f"s_lshl_b32 s61, s6, 12\ns_add_u32 s62, s23, s22")
        for c in range(2):
            for i in range(2):
                a(f"s_add_u32 m0, s61, {self.W2S + 2048*c + 1024*i - 64*c}")
                a(f"buffer_load_dwordx4 v169, {W2}, {'s23' if i == 0 else 's62'} offen offset:{64*c}{self.NT} lds")

    def w2_unit_pack(self, later):
        a = self.a
        a(f"""
        s_lshl_b32 s61, s6, 12
        s_add_u32 s60, s61, {self.W2S}
        v_lshrrev_b32 v10, 2, v1
        v_lshl_add_u32 v11, v3, 2, v10
        s_cmp_eq_u32 s22, {112*1024}
        s_cselect_b64 vcc, -1, 0
        s_movk_i32 s61, 1024
        s_cselect_b32 s61, 256, s61
        v_cndmask_b32 v10, v10, v11, vcc
        v_lshlrev_b32 v10, 6, v10
        v_and_b32 v11, 3, v1
        v_lshl_add_u32 v10, v11, 4, v10
        v_add_u32 v10, s60, v10
        v_add_u32 v11, s61, v10
        v_lshlrev_b32 v12, 4, v1
        s_mul_i32 s63, s21, 56
        s_add_u32 s63, s63, s20
        s_lshl_b32 s63, s63, 12
        s_add_u32 s63, s63, {WS_W2P}
        s_cmp_ge_u32 s20, 56
        s_cselect_b32 s63, 0x40000000, s63
        s_waitcnt vmcnt({later})
        """)
        for dt in range(4):
            o = 2048 * (dt >> 1) + 8 * (dt & 1)
            a(f"ds_read_b64_tr_b16 {P(16+4*dt)}, v10 offset:{o}\nds_read_b64_tr_b16 {P(18+4*dt)}, v11 offset:{o}")
        a("s_waitcnt lgkmcnt(0)")
        for dt in range(4): a(f"buffer_store_dwordx4 {Q4(16+4*dt)}, v12, {WS}, s63 offen offset:{1024*dt} sc1")

    CSZ = 4160
    QS = 32768 + 69632
    W1S = 32768 + 112640
    W2S = 32768 + 120832
    GVS = 32768 + 129024
    def filter_copies(self):
        a = self.a
        a(f"""
        s_mul_i32 s60, {sWV}, {4*self.CSZ}
        s_add_u32 s60, s60, {self.WB}
        v_lshl_add_u32 v4, v1, 4, s60
        v_mov_b32 v100, 0
        v_mov_b32 v101, 0
        v_mov_b32 v102, 0
        v_mov_b32 v103, 0
        s_mov_b64 s[62:63], exec
        s_mov_b64 exec, 15
        """)
        for c in range(4): a(f"ds_write_b128 v4, v[100:103] offset:{c*self.CSZ}")
        a("s_mov_b64 exec, s[62:63]")
        for cc in range(1):
            for i in range(4):
                r = 176 + 8 * (4 * cc + i)
                t = 104 + 12 * (i % 2)
                o = cc * 4 * self.CSZ + 64 + 1024 * i
                pass
                a(f"ds_write_b128 v4, {Q4(r)} offset:{o}")
                for j in range(4): a(f"v_alignbit_b32 v{t+j}, v{r+j+1}, v{r+j}, 16")
                for j in range(4): a(f"v_mov_b32 v{t+4+j}, v{r+j+1}")
                for j in range(4): a(f"v_alignbit_b32 v{t+8+j}, v{r+j+2}, v{r+j+1}, 16")
                for k in range(3): a(f"ds_write_b128 v4, {Q4(t+4*k)} offset:{o + (k+1)*self.CSZ}")
                if i == 0:
                    a(f"""
                    v_lshlrev_b32 v128, 16, v{r}
                    s_mov_b64 exec, 1
                    ds_write_b32 v4, v128 offset:{o + self.CSZ - 4}
                    ds_write_b32 v4, v{r} offset:{o + 2*self.CSZ - 4}
                    ds_write_b32 v4, v128 offset:{o + 3*self.CSZ - 8}
                    ds_write_b32 v4, v{t} offset:{o + 3*self.CSZ - 4}
                    s_mov_b64 exec, s[62:63]
                    """)

    def role_b_rest(self, later, after_wait=None):
        a = self.a
        self.stamp("b")
        a(f"s_waitcnt vmcnt({later + 12})")
        self.tag_ready()
        for j in range(4): a(f"v_lshlrev_b32 v{100+2*j}, 16, v{164+j}\nv_and_b32 v{101+2*j}, 0xffff0000, v{164+j}")
        for j in range(8): a(f"v_mul_f32 v{108+j}, {NLOG2E}, v{100+j}")
        for j in range(8): a(f"v_exp_f32 v{108+j}, v{108+j}")
        for j in range(8): a(f"v_add_f32 v{108+j}, 1.0, v{108+j}")
        for j in range(8): a(f"v_rcp_f32 v{108+j}, v{108+j}")
        for j in range(8): a(f"v_mul_f32 v{108+j}, v{100+j}, v{108+j}")
        for j in range(4): a(f"v_cvt_pk_bf16_f32 v{100+j}, v{108+2*j}, v{109+2*j}")
        for j in range(4): a(f"v_lshlrev_b32 v{108+2*j}, 16, v{100+j}\nv_and_b32 v{109+2*j}, 0xffff0000, v{100+j}")
        self.stamp("b")
        a(f"s_waitcnt vmcnt({later + 4})")
        if after_wait: after_wait()
        self.stamp("b")
        for j in range(8):
            for e in range(4):
                a(f"v_lshlrev_b32 v{116+2*e}, 16, v{16+4*j+e}\nv_and_b32 v{117+2*e}, 0xffff0000, v{16+4*j+e}")
            sel = "op_sel_hi:[1,0,1]" if j % 2 == 0 else "op_sel:[0,1,0] op_sel_hi:[1,1,1]"
            for e in range(4):
                if j == 0: a(f"v_pk_mul_f32 {P(124+2*e)}, {P(116+2*e)}, {P(108)} op_sel_hi:[1,0]")
                else: a(f"v_pk_fma_f32 {P(124+2*e)}, {P(116+2*e)}, {P(108+2*(j//2))}, {P(124+2*e)} {sel}")
        for n in (4, 8):
            for e in range(8): a(f"v_add_f32_dpp v{124+e}, v{124+e}, v{124+e} row_ror:{n} row_mask:0xf bank_mask:0xf")
        a(f"""
        s_lshl_b32 s60, s6, 9
        s_add_u32 s60, s60, {self.GVS}
        v_lshl_add_u32 v116, v3, 7, s60
        v_and_b32 v117, 3, v1
        v_lshl_add_u32 v116, v117, 5, v116
        ds_write_b128 v116, v[124:127]
        ds_write_b128 v116, v[128:131] offset:16
        v_and_b32 v117, 31, v1
        v_lshlrev_b32 v117, 2, v117
        v_add_u32 v116, s60, v117
        ds_read_b32 v120, v116
        ds_read_b32 v121, v116 offset:128
        ds_read_b32 v122, v116 offset:256
        ds_read_b32 v123, v116 offset:384
        s_waitcnt vmcnt({self.n_after})
        s_and_b32 s60, s2, 3
        s_mul_i32 s60, s60, {MODP}
        s_lshr_b32 s61, s2, 2
        s_lshl_b32 s61, s61, 9
        s_add_u32 s60, s60, s61
        s_lshl_b32 s61, s6, 8
        s_add_u32 s60, s60, s61
        s_add_u32 s60, s60, {WS_MOD}
        s_cmp_ge_u32 s2, 192
        s_cselect_b32 s60, 0x40000000, s60
        v_lshlrev_b32 v117, 1, v117
        s_waitcnt lgkmcnt(0)
        v_add_f32 v120, v120, v121
        v_add_f32 v122, v122, v123
        v_add_f32 v120, v120, v122
        v_mov_b32 v121, s80
        s_mov_b32 exec_hi, 0
        buffer_store_dwordx2 v[120:121], v117, {WS}, s60 offen sc1
        s_mov_b32 exec_hi, -1
        """)
        self.stamp("b")
        a.region("brest1")
        self.role_b_tail()

    def role_b_tail(self):
        a = self.a
        for j in range(16): a(f"v_lshlrev_b32 v{100+2*j}, 16, v{48+j}\nv_and_b32 v{101+2*j}, 0xffff0000, v{48+j}")
        for j in range(8): a(f"v_pk_add_f32 {P(132+2*j)}, {P(100+4*j)}, {P(102+4*j)}")
        for st in (4, 2, 1):
            for j in range(st): a(f"v_pk_add_f32 {P(132+2*j)}, {P(132+2*j)}, {P(132+2*(j+st))}")
        a("v_add_f32 v132, v132, v133")
        for n in (8, 4, 2, 1): a(f"v_add_f32_dpp v132, v132, v132 row_ror:{n} row_mask:0xf bank_mask:0xf")
        a("v_mul_f32 v148, 0xbb000000, v132")
        for j in range(16): a(f"v_pk_add_f32 {P(100+2*j)}, {P(100+2*j)}, {P(148)} op_sel_hi:[1,0]")
        for j in range(4): a(f"v_pk_mul_f32 {P(132+2*j)}, {P(100+2*j)}, {P(100+2*j)}")
        for j in range(4, 16): a(f"v_pk_fma_f32 {P(132+2*(j&3))}, {P(100+2*j)}, {P(100+2*j)}, {P(132+2*(j&3))}")
        a(f"v_pk_add_f32 {P(132)}, {P(132)}, {P(134)}\nv_pk_add_f32 {P(136)}, {P(136)}, {P(138)}\nv_pk_add_f32 {P(132)}, {P(132)}, {P(136)}\nv_add_f32 v132, v132, v133")
        for n in (8, 4, 2, 1): a(f"v_add_f32_dpp v132, v132, v132 row_ror:{n} row_mask:0xf bank_mask:0xf")
        a(f"""
        v_mov_b32 v133, 0x3727c5ac
        v_fmac_f32 v133, 0x3b000000, v132
        v_rsq_f32 v136, v133
        s_lshl_b32 s60, s2, 7
        s_lshl_b32 s61, s6, 6
        s_add_u32 s60, s60, s61
        s_add_u32 s60, s60, {WS_STAT}
        v_mov_b32 v137, s80
        v_mov_b32 v139, s80
        v_mul_f32 v138, v148, v136
        v_lshlrev_b32 v134, 4, v3
        s_mov_b32 exec_lo, 0x00010001
        s_mov_b32 exec_hi, 0x00010001
        buffer_store_dwordx4 v[136:139], v134, {WS}, s60 offen sc1
        s_mov_b64 exec, -1
        """)

    def flag_m(self, later):
        a = self.a
        a(f"""
        s_waitcnt vmcnt({later})
        s_lshl_b32 s60, s2, 1
        s_add_u32 s60, s60, s6
        s_lshl_b32 s60, s60, {FL}
        s_add_u32 s60, s60, {FLAG_B}
        """)
        self.flag_store("s60", 1, 9 + FL, 250)

    def filter_prep(self, mid):
        a = self.a
        a(f"""
        s_mul_i32 s73, {sWV}, {self.FSZ}
        s_add_u32 s73, s73, {self.FB}
        v_and_b32 v2, 15, v1
        v_lshrrev_b32 v3, 4, v1
        v_lshl_add_u32 v4, v1, 4, s73
        v_mov_b32 v6, 0
        v_mov_b32 v7, 0
        v_mov_b32 v8, 0
        v_mov_b32 v9, 0
        v_add_u32 v5, 1, v2
        v_and_b32 v10, 3, v5
        v_mul_u32_u24 v10, {self.CSZ}, v10
        v_and_b32 v5, 28, v5
        v_lshl_add_u32 v5, v5, 1, v10
        v_and_b32 v10, 1, v3
        v_lshl_add_u32 v5, v10, 4, v5
        s_mul_i32 s60, {sWV}, {4*self.CSZ}
        s_add_u32 s60, s60, {self.WB}
        v_add_u32 v5, s60, v5
        v_lshrrev_b32 v10, 1, v3
        s_add_u32 s60, s71, 1
        s_lshl_b32 s60, s60, 9
        s_add_u32 s61, s72, 1
        s_lshl_b32 s61, s61, 9
        v_mad_u32_u24 v11, v10, s60, v5
        v_mad_u32_u24 v12, v10, s61, v5
        v_add_u32 v15, s60, v11
        v_subrev_u32 v12, s60, v12
        s_cmp_eq_u32 s69, 0
        s_cselect_b64 vcc, -1, 0
        v_cndmask_b32 v13, v11, v12, vcc
        """)
        for n in range(81):
            if n == opt('fa', 10): mid()
            b = "v11" if n < 16 else "v13" if n < 32 else "v12"
            a(f"ds_read_b64 {self.Fhalf(n,0)}, {b} offset:{32*n}")
            a(f"ds_read_b64 {self.Fhalf(n,1)}, {b} offset:{32*n+8}")
        a("ds_read_b64 v[244:245], v15\nds_read_b64 v[246:247], v15 offset:8")
        a(f"ds_write_b128 v4, v[6:9] offset:6144\ns_mov_b64 exec, {(1 << 26) - 1}\nds_write_b128 v4, v[6:9] offset:7168\ns_mov_b64 exec, -1")
        a(f"""
        v_sub_u32 v5, 63, v2
        v_mul_u32_u24 v5, 96, v5
        v_add_u32 v5, s73, v5
        s_mul_i32 s60, s71, {16*96}
        s_mul_i32 s61, s72, {16*96}
        v_subrev_u32 v156, s60, v5
        v_subrev_u32 v157, s61, v5
        v_and_b32 v6, 1, v3
        v_lshlrev_b32 v6, 4, v6
        v_lshrrev_b32 v7, 1, v3
        s_add_u32 s60, s71, 1
        s_mul_i32 s60, s60, 768
        s_add_u32 s61, s72, 1
        s_mul_i32 s61, s61, 768
        v_mad_u32_u24 v80, v7, s60, v156
        v_mad_u32_u24 v82, v7, s61, v157
        v_add_u32 v80, v80, v6
        v_add_u32 v82, v82, v6
        v_subrev_u32 v82, s60, v82
        s_cmp_eq_u32 s69, 0
        s_cselect_b64 vcc, -1, 0
        v_cndmask_b32 v81, v80, v82, vcc
        v_lshlrev_b32 v6, 3, v3
        v_sub_u32 v6, 24, v6
        v_add_u32 v156, v156, v6
        v_add_u32 v157, v157, v6
        """)

    def pre_conv(self):
        self.epi_addr(); self.g2_w2_addr(0); self.mod_addr(); self.cepi_addr()
        if W2L: self.w2_half_addr()
        L = self.w_stream(32, 0)
        for t in L[:L.index("WAIT")]: self.a(t.replace(" | ", "\n"))

    def u_addr(self):
        a = self.a
        a("s_movk_i32 s60, 10923")
        for j in range(3):
            a(f"""
            v_add_u32 v19, {64*j}, v1
            v_mul_u32_u24 v20, s60, v19
            v_lshrrev_b32 v20, 16, v20
            v_mul_u32_u24 v21, 6, v20
            v_sub_u32 v19, v19, v21
            v_min_u32 v19, 3, v19
            v_lshlrev_b32 v19, 4, v19
            v_lshl_add_u32 v{16+j}, v20, 6, v19
            """)
        a(f"s_lshl_b32 s64, s68, 12\ns_add_u32 s64, s64, {WS_KVT}\ns_add_u32 s65, s64, 2048")

    def u_wait(self):
        a = self.a
        a(f"""
        s_cmp_lg_u32 {sWV}, 0
        s_cbranch_scc1 L_u_nopoll
        s_lshl_b32 s60, {sX}, {6 + self.FA_LOG}
        s_add_u32 s60, s60, {FLAG_A}
        v_lshl_add_u32 v4, v1, {self.FA_LOG}, s60
        """)
        for i in range(opt('psa', 0)): a("s_sleep 4")
        self.poll("A")
        a("L_u_nopoll:")

    def u_fetch(self):
        a = self.a
        for j in (5, 4, 3, 2, 1, 0):
            if j == 0: a("s_cmp_eq_u32 s69, 1\ns_cbranch_scc1 L_u_short")
            a(f"s_add_u32 m0, s73, {1024*j}")
            a(f"buffer_load_dwordx4 v{16 + j%3}, {WS}, {'s64' if j < 3 else 's65'} offen sc1 lds")
        a("L_u_short:")
        if not WE:
            self.side_inputs()
            pre = self.epi_load_list() + self.mod_load_list(32) if opt('pre', 0) else []
            for t in pre: a(t)
            a(f"s_waitcnt vmcnt({3 + len(pre)})")
            return
        L = self.w_stream(32, 0)
        for t in L[L.index("WAIT"):]:
            if t == "WAIT": a("s_waitcnt vmcnt(5)")
            elif t == "VERIFY": self.verify("w", [33 + 2*i for i in range(8)], 24, self.mod_load_list(32))
            elif t == "GAP": a("s_waitcnt lgkmcnt(0)")
            else: a(t.replace(" | ", "\n"))
        a("s_waitcnt vmcnt(4)")

    def conv_main(self, hook):
        a = self.a
        D = 6
        off = lambda n: 96 * (n >> 1) + 32 * (n & 1)
        base = lambda n: "v80" if n < 16 else "v81" if n < 32 else "v82"
        Br = lambda n: Q4(48 + 4 * (n % 8))
        def rd(n):
            if n < 80: a(f"ds_read_b128 {Br(n)}, {base(n)} offset:{off(n)}")
        def step(n, c0="v[84:87]", c1="v[88:91]", d0="v[84:87]", d1="v[88:91]", a1=None):
            rd(n + D)
            a(f"s_waitcnt lgkmcnt({min(D, 79 - n)})")
            a(f"v_mfma_f32_16x16x32_bf16 {d0}, {self.Freg(n)}, {Br(n)}, {c0}")
            a(f"v_mfma_f32_16x16x32_bf16 {d1}, {a1 or self.Freg(n+1)}, {Br(n)}, {c1}")
        for n in range(D): rd(n)
        def boundary(n, ty):
            a(f"s_cmp_eq_u32 s69, {ty}\ns_cbranch_scc0 L_cb{n}_no")
            h = list(a.hist)
            step(n, d0="v[92:95]", d1="v[96:99]", a1="v[244:247]")
            step(n + 1, c0="0", c1="0")
            a(f"s_branch L_cb{n}_done\nL_cb{n}_no:")
            a.hist = h
            step(n); step(n + 1)
            a(f"L_cb{n}_done:")
            hook(n); hook(n + 1)
        step(0, c0="0", c1="0"); hook(0)
        for n in range(1, 15): step(n); hook(n)
        boundary(15, 0)
        for n in range(17, 31): step(n); hook(n)
        boundary(31, 1)
        for n in range(33, 80): step(n); hook(n)

    def epi_addr(self):
        self.a(f"""
        v_and_b32 v161, 3, v1
        s_movk_i32 s60, {MODP}
        v_mul_u32_u24 v161, s60, v161
        v_bfe_u32 v5, v1, 2, 2
        v_lshl_add_u32 v161, v5, 12, v161
        v_lshl_add_u32 v161, v3, 3, v161
        s_lshl_b32 s60, s70, 5
        s_add_u32 s60, s60, {WS_MOD}
        v_add_u32 v161, s60, v161
        s_mul_i32 s60, {sWV}, 112
        s_add_u32 s60, s60, s77
        s_lshl_b32 s60, s60, {FL + W2L}
        s_add_u32 s60, s60, {FLAG_B}
        v_and_b32 v5, 15, v1
        v_min_u32 v5, 13, v5
        v_lshl_add_u32 v248, v5, {FL + 3 + W2L}, s60
        v_bfe_u32 v5, v1, 4, 1
        v_mul_u32_u24 v5, {W2L << FL}, v5
        v_add_u32 v248, v248, v5
        """)

    def epi_load_list(self):
        L = [f"buffer_load_dwordx2 v[124:125], v161, {WS}, 0 offen sc1"]
        for i in range(4):
            L.append(f"buffer_load_dwordx4 {Q4(108+4*i)}, v159, {WS}, 0 offen offset:{2048*(i>>1) + 256*(i&1)} sc1")
        return L

    def cepi_addr(self):
        xi, RS = self.XI, self.XI_RS
        self.a(f"""
        s_mul_i32 s60, {sWV}, {RS}
        s_add_u32 s60, s60, {xi}
        v_mul_u32_u24 v150, 144, v3
        v_lshl_add_u32 v150, v2, 3, v150
        v_add_u32 v150, s60, v150
        s_lshr_b32 s60, {sWV}, 1
        s_and_b32 s61, {sWV}, 1
        s_mul_i32 s62, s60, 1152
        s_lshl_b32 s63, s61, 6
        s_add_u32 s62, s62, s63
        s_add_u32 s62, s62, {xi}
        v_bfe_u32 v151, v1, 2, 2
        v_mul_u32_u24 v151, {RS}, v151
        v_and_b32 v5, 3, v1
        v_mul_u32_u24 v5, 144, v5
        v_add3_u32 v151, v151, v5, s62
        v_lshl_add_u32 v151, v3, 3, v151
        s_lshl_b32 s60, {sWV}, 12
        s_and_b32 s61, s70, 1
        s_lshl_b32 s61, s61, 3
        s_add_u32 s60, s60, s61
        s_add_u32 s60, s60, {self.QS}
        v_lshl_add_u32 v152, v3, 5, v2
        v_lshl_add_u32 v152, v152, 4, s60
        s_cmp_lt_u32 {sWV}, 2
        s_cselect_b32 s60, s71, s72
        s_lshl_b32 s60, s60, 4
        s_and_b32 s61, {sWV}, 1
        s_lshl_b32 s61, s61, 3
        s_add_u32 s60, s60, s61
        s_lshl_b32 s66, s60, 15
        s_lshl_b32 s61, s70, 8
        s_add_u32 s66, s66, s61
        s_add_u32 s66, s66, {WS_X1}
        s_add_u32 s67, s66, {4*32768}
        v_lshlrev_b32 v153, 15, v3
        v_lshl_add_u32 v153, v2, 4, v153
        """)

    def e_stream(self):
        L = ["EWAIT", "EVERIFY",
             "v_add_f32_dpp v124, v124, v124 quad_perm:[1,0,3,2] row_mask:0xf bank_mask:0xf",
             f"s_lshl_b32 s63, {sWV}, 4 | s_add_u32 s63, s63, 8",
             "v_add_f32_dpp v124, v124, v124 quad_perm:[2,3,0,1] row_mask:0xf bank_mask:0xf",
             "v_lshlrev_b32 v148, 16, v126",
             "v_cvt_pk_bf16_f32 v124, v124, v124", "v_and_b32 v124, 0xffff0000, v124",
             "v_add_f32 v125, 1.0, v124", "v_cvt_pk_bf16_f32 v125, v125, v125", "v_and_b32 v125, 0xffff0000, v125",
             "v_readlane_b32 s63, v124, s63"]
        for c in range(4): L += [f"v_readlane_b32 s{24+c}, v125, {16*c+4}", f"v_readlane_b32 s{28+c}, v124, {16*c}"]
        L.append("v_mov_b32 v149, s63")
        for c in range(8): L.append(f"v_mov_b32 v{128+c}, s{24+c}")
        for sl in range(2):
            for t in range(2): L.append(f"ds_read_b64 {P(140+4*sl+2*t)}, v{156+sl} offset:{32-32*t}")
        return L

    def conv_epilogue(self):
        a = self.a
        for sl in range(2):
            for t in range(2):
                i = 2 * sl + t
                acc = (92 if sl == 0 else 84) + 4 * t
                kv, w = 140 + 2 * i, 160 + 4 * (i & 1)
                a(f"""
                v_and_b32 v{w}, 0xffff0000, v{kv+1}
                v_lshlrev_b32 v{w+1}, 16, v{kv+1}
                v_and_b32 v{w+2}, 0xffff0000, v{kv}
                v_lshlrev_b32 v{w+3}, 16, v{kv}
                v_pk_fma_f32 {P(w)}, {P(w)}, {P(148)}, {P(acc)} op_sel_hi:[1,0,1]
                v_pk_fma_f32 {P(w+2)}, {P(w+2)}, {P(148)}, {P(acc+2)} op_sel_hi:[1,0,1]
                v_pk_mul_f32 {P(w)}, {P(w)}, {P(148)} op_sel:[0,1] op_sel_hi:[1,1]
                v_pk_mul_f32 {P(w+2)}, {P(w+2)}, {P(148)} op_sel:[0,1] op_sel_hi:[1,1]
                v_cvt_pk_bf16_f32 v{168+2*(i&1)}, v{w}, v{w+1}
                v_cvt_pk_bf16_f32 v{169+2*(i&1)}, v{w+2}, v{w+3}
                ds_write_b64 v150, {P(168+2*(i&1))} offset:{1152*sl + 576*t}
                """)
        a(f"""
        s_waitcnt lgkmcnt(0)
        s_barrier
        ds_read_b64 v[100:101], v152
        ds_read_b64 v[102:103], v152 offset:256
        ds_read_b64 v[104:105], v152 offset:2048
        ds_read_b64 v[106:107], v152 offset:2304
        ds_read_b64_tr_b16 v[160:161], v151
        ds_read_b64_tr_b16 v[162:163], v151 offset:576
        ds_read_b64_tr_b16 v[164:165], v151 offset:32
        ds_read_b64_tr_b16 v[166:167], v151 offset:{576+32}
        """)
        for i in range(4):
            q, A, u = 100 + 2 * i, 108 + 4 * i, 64 + 8 * i
            a(f"""
            s_waitcnt lgkmcnt({7-i})
            v_lshlrev_b32 v{u}, 16, v{q}
            v_and_b32 v{u+1}, 0xffff0000, v{q}
            v_lshlrev_b32 v{u+2}, 16, v{q+1}
            v_and_b32 v{u+3}, 0xffff0000, v{q+1}
            v_pk_fma_f32 {P(u+4)}, {P(u)}, {P(A)}, {P(A+2)} op_sel_hi:[1,0,0]
            v_pk_fma_f32 {P(u+6)}, {P(u+2)}, {P(A)}, {P(A+2)} op_sel_hi:[1,0,0]
            v_pk_fma_f32 {P(u+4)}, {P(u+4)}, {P(128)}, {P(132)}
            v_pk_fma_f32 {P(u+6)}, {P(u+6)}, {P(130)}, {P(134)}
            """)
            if i & 1:
                for j in (i - 1, i):
                    y, uu, w = 160 + 2 * j, 64 + 8 * j, 140 + 4 * (j & 1)
                    a(f"""
                    s_waitcnt lgkmcnt({3-j})
                    v_lshlrev_b32 v{w}, 16, v{y}
                    v_and_b32 v{w+1}, 0xffff0000, v{y}
                    v_lshlrev_b32 v{w+2}, 16, v{y+1}
                    v_and_b32 v{w+3}, 0xffff0000, v{y+1}
                    v_pk_fma_f32 {P(uu)}, {P(uu+4)}, {P(w)}, {P(uu)}
                    v_pk_fma_f32 {P(uu+2)}, {P(uu+6)}, {P(w+2)}, {P(uu+2)}
                    v_cvt_pk_bf16_f32 v{y}, v{uu}, v{uu+1}
                    v_cvt_pk_bf16_f32 v{y+1}, v{uu+2}, v{uu+3}
                    """)
                a(f"buffer_store_dwordx4 {Q4(160+2*(i-1))}, v153, {WS}, s{66 + (i>>1)} offen sc1")

    def g2_epi_load(self):
        a = self.a
        a(f"""
        s_lshl_b32 s60, s77, 9
        s_add_u32 s60, s60, {WS_MOD + 5*4096}
        v_lshl_add_u32 v18, v1, 3, s60
        """)
        self.gb_loads = [f"buffer_load_dwordx2 {P((10, 16, 28, 30)[k])}, v18, {WS}, {so} offen sc1" for k, so in enumerate(("0", "s12", "s13", "s14"))]
        for t in self.gb_loads: a(t)
        a(f"""
        s_lshl_b32 s60, s76, 1
        s_lshr_b32 s61, {sWV}, 1
        s_add_u32 s60, s60, s61
        s_lshl_b32 s60, s60, 15
        s_lshl_b32 s61, s77, 12
        s_add_u32 s60, s60, s61
        s_and_b32 s61, {sWV}, 1
        s_lshl_b32 s61, s61, 3
        s_add_u32 s60, s60, s61
        s_add_u32 s60, s60, {WS_X1}
        v_lshlrev_b32 v19, 9, v3
        v_lshl_add_u32 v19, v2, 4, v19
        """)
        for p in range(2):
            for h in range(2):
                a(f"buffer_load_dwordx2 {P(20+4*p+2*h)}, v19, {WS}, s60 offen offset:{2048*p + 256*h} sc1")

    def g2_epi_pre(self, tb):
        a = self.a
        self.verify("g", [11, 17, 29, 31], 4, self.gb_loads)
        a(f"""
        v_add_f32 v4, v10, v16
        v_add_f32 v7, v28, v30
        v_add_f32 v4, v4, v7
        v_cvt_pk_bf16_f32 v4, v4, v4
        v_and_b32 v4, 0xffff0000, v4
        s_lshl_b32 s60, {sWV}, 8
        s_add_u32 s60, s60, {tb}
        v_lshl_add_u32 v5, v1, 2, s60
        ds_write_b32 v5, v4
        v_lshl_add_u32 v5, v3, 5, s60
        """)
        for p in range(2):
            for h in range(2):
                a(f"ds_read_b128 a[{224+8*p+4*h}:{227+8*p+4*h}], v5 offset:{128*p + 16*h}")
        a("s_waitcnt lgkmcnt(0)")

    def g1_ids(self):
        self.a(f"""
        s_lshr_b32 s74, {sX}, 1
        s_lshl_b32 s74, s74, 2
        s_lshr_b32 s60, {sM}, 3
        s_add_u32 s74, s74, s60
        s_and_b32 s75, {sX}, 1
        s_lshl_b32 s75, s75, 3
        s_and_b32 s60, {sM}, 7
        s_add_u32 s75, s75, s60
        """)

    def w1_addr(self, r0):
        self.a(f"""
        v_mul_u32_u24 v5, 3584, v3
        v_lshlrev_b32 v6, 1, v3
        v_xor_b32 v6, v6, v2
        v_lshl_add_u32 v{r0}, v6, 4, v5
        v_xor_b32 v6, 8, v6
        v_lshl_add_u32 v{r0+1}, v6, 4, v5
        s_mul_i32 s7, s75, 224
        s_and_b32 s7, s7, -64
        s_and_b32 s16, {sM}, 7
        s_lshl_b32 s16, s16, 1
        s_lshr_b32 s61, {sM}, 3
        s_lshl_b32 s61, s61, 2
        s_add_u32 s16, s16, s61
        s_mul_i32 s16, s16, {opt('rot1', 0)}
        s_and_b32 s16, s16, 15
        s_add_u32 s17, s7, {512*3584}
        s_lshl_b32 s61, {sWV}, 2
        s_add_u32 s61, s61, s16
        s_and_b32 s61, s61, 15
        s_mul_i32 s61, s61, {32*3584}
        s_add_u32 s7, s7, s61
        s_lshl_b32 s78, {sWV}, 15
        s_add_u32 s78, s78, {self.WB}
        """)

    def w1_one(self, r0, n):
        a = self.a
        a(f"s_add_u32 m0, s78, {1024*n}")
        a(f"buffer_load_dwordx4 v{r0 + n%2}, {W1}, s7 offen lds")
        a(f"s_add_u32 s7, s7, {4*3584}")
        if n % 8 == 7: a(f"s_cmp_eq_u32 s7, s17\ns_cselect_b32 s60, {512*3584}, 0\ns_sub_u32 s7, s7, s60")

    def w2_touch(self, j):
        self.a(f"buffer_load_dword v{248+j}, v250, {WS}, 0 offen sc1" if j == 0 else
               f"buffer_load_dword v{248+j}, v251, {WS}, 0 offen sc1")

    def w2_touch_addr(self):
        self.a(f"""
        s_lshl_b32 s60, {sM}, 2
        s_add_u32 s60, s60, {sWV}
        s_mul_i32 s60, s60, {112*128}
        s_add_u32 s60, s60, {WS_W2P}
        v_lshl_add_u32 v250, v1, 7, s60
        v_add_u32 v5, 64, v1
        v_min_u32 v5, 111, v5
        v_lshl_add_u32 v251, v5, 7, s60
        """)

    def mod_addr(self):
        self.a(f"""
        s_lshr_b32 s60, s2, 4
        s_lshl_b32 s60, s60, 8
        s_add_u32 s60, s60, {WS_MOD + 3*4096}
        v_lshl_add_u32 v172, v2, 4, s60
        v_and_b32 v5, 1, v3
        v_lshl_add_u32 v172, v5, 12, v172
        s_movk_i32 s12, {MODP}
        s_mov_b32 s13, {2*MODP}
        s_mov_b32 s14, {3*MODP}
        """)

    def mod_load_list(self, r0):
        L = []
        for k, so in enumerate(("0", "s12", "s13", "s14")):
            L.append(f"buffer_load_dwordx4 {Q4(r0+4*k)}, v172, {WS}, {so} offen sc1")
        return L

    def g2_w2_addr(self, k0):
        self.a(f"""
        s_mul_i32 s79, s77, 56
        s_mul_i32 s61, {sWV}, 14
        s_add_u32 s79, s79, s61
        s_lshl_b32 s79, s79, 12
        s_add_u32 s79, s79, {WS_W2P}
        s_add_u32 s97, s79, {14*4096}
        s_lshl_b32 s18, s77, 1
        s_lshr_b32 s61, {sM}, 3
        s_mul_i32 s61, s61, 7
        s_lshr_b32 s61, s61, 1
        s_add_u32 s18, s18, s61
        s_mul_i32 s18, s18, {opt('rot2', 0)}
        s_cmp_ge_u32 s18, 14
        s_cselect_b32 s60, 14, 0
        s_sub_u32 s18, s18, s60
        s_lshl_b32 s18, s18, 12
        s_add_u32 s79, s79, s18
        v_lshlrev_b32 v9, 4, v1
        """)

    def g2_w2_one(self, i, v="v9"):
        self.a(f"buffer_load_dwordx4 a[{4*i}:{4*i+3}], {v}, {WS}, s79 offen offset:{1024*(i%4)} sc1")
        if i % 4 == 3:
            self.a(f"s_add_u32 s79, s79, 4096\ns_cmp_eq_u32 s79, s97\ns_cselect_b32 s60, {14*4096}, 0\ns_sub_u32 s79, s79, s60")

    def signal_all(self, base, replicas, tag):
        a = self.a
        a(f"""
        s_waitcnt vmcnt(0)
        s_barrier
        s_cmp_lg_u32 {sWV}, 0
        s_cbranch_scc1 L_sig{tag}_skip
        s_lshl_b32 s60, s2, {FL}
        s_add_u32 s60, s60, {base}
        """)
        self.flag_store("s60", replicas, 8 + FL)
        a(f"L_sig{tag}_skip:")

    def w_stream(self, r0, mod_wait):
        T = f"""
        v_lshrrev_b32 v14, 2, v1
        v_lshlrev_b32 v15, 5, v14
        v_and_b32 v12, 3, v1
        v_lshl_add_u32 v15, v12, 3, v15
        s_lshl_b32 s61, {sWV}, 11
        s_add_u32 s61, s61, {self.W1S}
        v_add_u32 v173, s61, v15
        v_and_b32 v10, 1, v3
        v_cvt_f32_u32 v11, v10
        v_xor_b32 v10, 1, v10
        v_lshlrev_b32 v10, 6, v10
        v_lshl_add_u32 v10, v2, 2, v10
        s_lshl_b32 s61, {sWV}, 7
        v_add_u32 v10, s61, v10
        v_lshl_add_u32 v14, v3, 3, s61
        v_and_b32 v15, 1, v1
        v_lshl_add_u32 v15, v15, 6, v14
        v_and_b32 v13, 1, v1
        v_lshlrev_b32 v13, 9, v13
        v_lshl_add_u32 v13, v3, 4, v13
        s_and_b32 s40, s2, 15
        s_lshl_b32 s40, s40, 4
        s_lshr_b32 s61, s2, 4
        s_add_u32 s40, s40, s61
        s_lshl_b32 s42, s40, 10
        s_lshl_b32 s61, {sWV}, 6
        s_add_u32 s42, s42, s61
        s_add_u32 s42, s42, {WS_UP}
        s_mul_i32 s40, s40, 7168
        s_lshl_b32 s61, {sWV}, 10
        s_add_u32 s40, s40, s61
        s_add_u32 s40, s40, {WS_W1P}
        s_add_u32 s41, s40, 4096
        s_cmp_eq_u32 {sWV}, 3 | s_cselect_b32 s41, 0x40000000, s41
        WAIT
        """
        L = [x.strip() for x in T.split("\n") if x.strip()]
        L += ["ds_read_b64_tr_b16 v[16:17], v173", "ds_read_b64_tr_b16 v[18:19], v173 offset:512",
              "ds_read_b64_tr_b16 v[20:21], v173 offset:1024", "ds_read_b64_tr_b16 v[22:23], v173 offset:1536", "VERIFY"]
        for e in (0, 2): L += [f"v_add_f32 v{r0+e}, v{r0+e}, v{r0+4+e}", f"v_add_f32 v{r0+8+e}, v{r0+8+e}, v{r0+12+e}"]
        for e in (0, 2): L.append(f"v_add_f32 v{r0+e}, v{r0+e}, v{r0+8+e}")
        L += [f"v_cvt_pk_bf16_f32 v{r0}, v{r0}, v{r0+2}",
              f"v_lshlrev_b32 v{r0+4}, 16, v{r0}", f"v_and_b32 v{r0+5}, 0xffff0000, v{r0}",
              f"v_add_f32 v{r0+4}, v11, v{r0+4}", f"v_add_f32 v{r0+5}, v11, v{r0+5}",
              f"v_cvt_pk_bf16_f32 v{r0}, v{r0+4}, v{r0+5}",
              f"ds_write_b32 v10, v{r0}",
              "ds_read_b64 v[24:25], v15", "ds_read_b64 v[26:27], v15 offset:32",
              "ds_read_b64 v[28:29], v14", "ds_read_b64 v[30:31], v14 offset:32", "GAP",
              "v_mfma_f32_16x16x32_bf16 v[164:167], v[16:19], v[24:27], 0",
              "v_mfma_f32_16x16x32_bf16 v[168:171], v[20:23], v[24:27], 0"]
        for e in range(4): L += [f"v_lshlrev_b32 v{r0+2*e}, 16, v{28+e}", f"v_and_b32 v{r0+2*e+1}, 0xffff0000, v{28+e}"]
        for f in range(2):
            for e in range(4):
                w = 16 + 4 * f + e
                t = r0 + 8 + 2 * (e % 2)
                L += [f"v_lshlrev_b32 v{t}, 16, v{w}", f"v_and_b32 v{t+1}, 0xffff0000, v{w}",
                      f"v_mul_f32 v{t}, v{t}, v{r0+2*e}", f"v_mul_f32 v{t+1}, v{t+1}, v{r0+2*e+1}",
                      f"v_cvt_pk_bf16_f32 v{w}, v{t}, v{t+1}"]
            L.append(f"buffer_store_dwordx4 {Q4(16+4*f)}, v9, {WS}, s{40+f} offen sc1")
        L.append(f"s_mov_b32 exec_lo, 0x00030003 | s_mov_b32 exec_hi, 0x00030003 | buffer_store_dwordx4 v[164:167], v13, {WS}, s42 offen sc1 | buffer_store_dwordx4 v[168:171], v13, {WS}, s42 offen offset:256 sc1 | s_mov_b64 exec, -1")
        return L

    UPS = 32768 + 114688
    def g1_addr(self):
        self.a(f"""
        s_lshl_b32 s64, s74, 2
        s_add_u32 s64, s64, {sWV}
        s_lshl_b32 s64, s64, 15
        s_add_u32 s64, s64, {WS_X1}
        s_lshl_b32 s65, s75, 4
        s_add_u32 s65, s65, {sWV}
        s_mul_i32 s65, s65, 7168
        s_add_u32 s65, s65, {WS_W1P}
        s_mul_i32 s66, {sWV}, 7168
        s_add_u32 s66, s66, {self.WB}
        s_lshl_b32 s67, s75, 2
        s_add_u32 s67, s67, {sWV}
        s_lshl_b32 s67, s67, 12
        s_add_u32 s67, s67, {WS_UP}
        s_mov_b32 s44, s64
        s_mul_i32 s45, s75, {16*7168}
        s_add_u32 s45, s45, {WS_W1P}
        v_lshlrev_b32 v8, 4, v1
        v_add_u32 v10, {self.WB}, v8
        v_add_u32 v11, 57344, v10
        v_lshlrev_b32 v248, 2, v0
        v_add_u32 v249, {self.UPS}, v248
        """)
        for r in range(12, 16): self.a(f"v_mov_b32 v{r}, 0x3f803f80")

    def silu_tile(self, ft, t, u1, u2, w, dst):
        a = self.a
        d, o = 192 + 8 * ft + 4 * t, 60 + 2 * t
        for h in range(2): a(f"v_pk_fma_f32 {P(w+2*h)}, {P(u1+2*h)}, {P(o)}, {P(u2+2*h)} op_sel:[0,1,0] op_sel_hi:[1,1,1]")
        for h in range(2): a(f"v_pk_fma_f32 {P(d+2*h)}, {P(d+2*h)}, {P(o)}, {P(w+2*h)} op_sel_hi:[1,0,1]")
        for r in range(4): a(f"v_exp_f32 v{w+r}, v{d+r}")
        for h in range(2): a(f"v_pk_fma_f32 {P(w+2*h)}, {P(w+2*h)}, {P(254)}, {P(254)} op_sel_hi:[1,0,0]")
        for r in range(4): a(f"v_rcp_f32 v{w+r}, v{w+r}")
        for h in range(2): a(f"v_pk_mul_f32 {P(d+2*h)}, {P(d+2*h)}, {P(w+2*h)}")
        for h in range(2): a(f"v_cvt_pk_bf16_f32 v{dst+h}, v{d+2*h}, v{d+2*h+1}")

    def pair_store(self, ft, t, c):
        a = self.a
        b = 192 + 8 * (ft - 1) + 4 * t
        a(f"buffer_store_dwordx4 {Q4(b)}, v8, {WS}, s44 offen offset:{1024*t} sc1")
        a(f"v_bitop3_b32 v{c}, v{c}, v{b}, v{b+1} bitop3:0x96\nv_bitop3_b32 v{c}, v{c}, v{b+2}, v{b+3} bitop3:0x96")

    def g1_run(self, side, nside, early=0, na=0):
        a = self.a
        ops = []
        def X(i):
            def f():
                a(f"buffer_load_dwordx4 {Q4(64+4*i)}, v8, {WS}, s64 offen offset:{i%4*1024} sc1")
                if i % 4 == 3: a("s_add_u32 s64, s64, 4096")
            return (("x", i), f)
        def W(gm, j):
            def f():
                if j % 4 == 0: a(f"s_add_u32 m0, s66, {gm*4*7168 + 1024*j}\ns_add_u32 s60, s65, {gm*4*7168 + 1024*j}")
                a(f"buffer_load_dwordx4 v8, {WS}, s60 offen offset:{1024*(j%4)} sc1 lds")
            return (("w", gm, j), f)
        def UPl(j):
            def f():
                if j == 0: a(f"s_lshl_b32 s60, {sWV}, 12\ns_add_u32 m0, s60, {self.UPS}")
                a(f"buffer_load_dwordx4 v8, {WS}, s67 offen offset:{1024*j} sc1 lds")
            return (("u", j), f)
        if early == "weights":
            for gm in range(4):
                for j in range(4): W(gm, j)[1]()
            for j in range(4): UPl(j)[1]()
            return
        if early:
            pre = opt('g1pre', 10)
            ops += [X(i) for i in range(pre)]
            rest = [X(i) for i in range(pre, 32)]
            sd = [(("s", i), side) for i in range(na)]
            while rest or sd:
                ops += rest[:2] + sd[:1]
                rest, sd = rest[2:], sd[1:]
        else:
            for gm in range(4):
                if gm == 2: ops += [UPl(j) for j in range(4)]
                ops += [W(gm, j) for j in range(4)]
                ops += [X(i) for i in range(8 * gm, 8 * gm + 8)]
        for gm in range(4): ops += [W(gm, j) for j in range(4, 7)]
        keys = [k for k, _ in ops]
        pos = [0]
        def issue(n=1):
            for _ in range(n):
                if pos[0] < len(ops): ops[pos[0]][1](); pos[0] += 1
        def wait(key):
            i = keys.index(key)
            while pos[0] <= i: issue()
            a(f"s_waitcnt vmcnt({pos[0] - 1 - i})")
        WBE = opt('wbe', 0)
        issue(opt('g1pre', 10 if early else 20))
        NR, D = 8, 7
        Wr = lambda n: 16 + 4 * (n % NR)
        def frag(n, k, ft):
            a(f"ds_read_b128 {Q4(Wr(n))}, {'v10' if k < 8 else 'v11'} offset:{(k % 8) * 7168 + 1024 * ft}")
        def rdA(n):
            if n < 64:
                k, ft = divmod(n, 4)
                if ft == 0 and k % 4 == 0 and not early:
                    wait(("w", k // 4, 3))
                    a("s_barrier")
                frag(n, k, ft)
        def rdB(n):
            if n < 48: frag(n, n // 3, 4 + n % 3)
        def swaps(k):
            x = 64 + 8 * k
            wait(("x", 2 * k + 1))
            a(f"v_swap_b32 v{x+2}, v{x+4}\nv_swap_b32 v{x+3}, v{x+5}")
        for n in range(D): rdA(n)
        swaps(0)
        tail = self.g1_tail_setup()
        EA, young = [opt('ea', 0)], [0]
        for k in range(16):
            x = 64 + 8 * k
            if k == 8: a.region("g1b")
            if k % 4 == 0: self.stamp("h")
            for ft in range(4):
                n = 4 * k + ft
                a(f"s_waitcnt lgkmcnt({min(D - 1, 63 - n)})")
                d = 192 + 8 * ft
                a(f"v_mfma_f32_16x16x32_bf16 {Q4(d)}, {Q4(Wr(n))}, {Q4(x)}, {'0' if k == 0 else Q4(d)}")
                if (ft == 0 if opt('pa', 1) else ft != 2) and pos[0] < len(ops) - WBE: issue()
                a(f"v_mfma_f32_16x16x32_bf16 {Q4(d+4)}, {Q4(Wr(n))}, {Q4(x+4)}, {'0' if k == 0 else Q4(d+4)}")
                if k == 9:
                    for j in range(4): a(f"ds_read_b32 v{224+4*ft+j}, v249 offset:{1024*(4*ft+j)}")
                if k == 12:
                    st = (8, 4, 2, 1)[ft]
                    for j in range(st): a(f"v_add_f32 v{224+j}, v{224+j}, v{224+j+st}")
                if k == 13 and ft == 0: a(f"v_mul_f32 v224, {NLOG2E}, v224\nds_write_b32 v248, v224 offset:{self.T_U}")
                rdA(n + D)
                if ft in (1, 2):
                    t = ft - 1
                    for j, A in ((0, "v[12:15]"), (1, Q4(x + 4 * t))):
                        d = 48 + 8 * t + 4 * j
                        a(f"v_mfma_f32_16x16x32_bf16 {Q4(d)}, {A}, {Q4(x+4*t)}, {'0' if k == 0 else Q4(d)}")
                        if opt('pa', 1) and j == 0 and pos[0] < len(ops) - WBE: issue()
                        if ft == 2 and j == 0 and k < 15: swaps(k + 1)
                        elif k >= 3 and k not in (9, 12):
                            for _ in range(2):
                                if tail: a(tail.pop(0))
        assert not tail
        self.stamp("h")
        a.region("g1c")
        if not WBE: wait(("w", 3, 6))
        a("s_waitcnt lgkmcnt(0)\ns_barrier")
        issue(opt('wbe0', 4) if WBE else 0)
        for ft in range(4):
            a(f"ds_read_b128 {Q4(16+8*ft)}, v4 offset:{self.T_U + 64*ft}\nds_read_b128 {Q4(20+8*ft)}, v4 offset:{self.T_U + 512 + 64*ft}")
        for t in range(2):
            g = 52 + 8 * t
            a(f"v_cndmask_b32 v{g}, v{g}, v{g+1}, s[20:21]\nv_cndmask_b32 v{g}, v{g}, v{g+2}, s[22:23]\nv_cndmask_b32 v{g}, v{g}, v{g+3}, s[40:41]")
            a(f"ds_bpermute_b32 v{g}, v5, v{g}")
        for t in range(2):
            sm = 48 + 8 * t
            a(f"v_mul_f32 v{sm}, 0x3b000000, v{sm}\nv_mul_f32 v{sm+1}, v{sm}, v{sm}\nv_mov_b32 v{sm+2}, 0x3b000000")
        a("s_waitcnt lgkmcnt(0)")
        for t in range(2):
            sm, g = 48 + 8 * t, 52 + 8 * t
            a(f"v_fma_f32 v{g}, v{g}, v{sm+2}, -v{sm+1}\nv_max_f32 v{g}, 0, v{g}\nv_add_f32 v{g}, 0x3727c5ac, v{g}\nv_rsq_f32 v{sm+3}, v{g}")
        for t in range(2):
            sm, o = 48 + 8 * t, 60 + 2 * t
            a(f"v_mul_f32 v{o+1}, -v{sm}, v{sm+3}\nv_mul_f32 v{o}, v254, v{sm+3}")
        for ft in range(4):
            for t in range(2):
                self.silu_tile(ft, t, 16 + 8 * ft, 20 + 8 * ft, 224 + 4 * t, 192 + 8 * (ft & ~1) + 4 * t + 2 * (ft & 1))
                if WBE and pos[0] < len(ops): issue(4)
                elif EA[0] > 0: side(); EA[0] -= 1; young[0] += 1
                if ft & 1: self.pair_store(ft, t, 252); young[0] += 1
            if ft & 1: a("s_add_u32 s44, s44, 4096")
            if ft == 2 and not WBE:
                for n in range(6): rdB(n)
        assert pos[0] == len(ops)
        a(f"buffer_store_dword v252, v6, {WS}, s46 offen sc1")
        if WBE:
            a(f"s_waitcnt vmcnt({young[0] + 1})\ns_barrier")
            for n in range(6): rdB(n)
        rdB(6)
        self.stamp("h")
        a.region("g1d")
        for k in range(16):
            x = 64 + 8 * k
            for j in range(3):
                n = 3 * k + j
                a(f"s_waitcnt lgkmcnt({min(D - 1, 47 - n)})")
                d = 224 + 8 * j
                a(f"v_mfma_f32_16x16x32_bf16 {Q4(d)}, {Q4(Wr(n))}, {Q4(x)}, {'0' if k == 0 else Q4(d)}")
                if k == 14: a(f"ds_read_b128 {Q4(64+8*j)}, v4 offset:{self.T_U + 64*(4+j)}")
                if n == opt('ht', -1): self.h_touch(0)
                if n % 2 == 0 and nside > 0: side(); nside -= 1
                elif nside == 0 and k >= opt('hk', 10) and self.g2_todo and (n % 2 == 0 or not opt('pb4', 0)):
                    if not self.g2_log: self.g2_run()
                    lim = {8: 6, 9: 6, 10: 10, 11: 10}.get(k, 16 if k < 12 else 99) if False else (6 if k < 8 else 10 if k < 10 else 16 if k < 12 else 99)
                    if len(self.g2_log) < lim:
                        a(self.g2_todo.pop(0)); self.g2_log.append("l")
                a(f"v_mfma_f32_16x16x32_bf16 {Q4(d+4)}, {Q4(Wr(n))}, {Q4(x+4)}, {'0' if k == 0 else Q4(d+4)}")
                if k == 14: a(f"ds_read_b128 {Q4(68+8*j)}, v4 offset:{self.T_U + 512 + 64*(4+j)}")
                rdB(n + D)

    def g1_tail_setup(self):
        T = f"""
        v_lshlrev_b32 v4, 4, v3
        v_lshrrev_b32 v5, 2, v2
        v_lshl_add_u32 v5, v5, 4, v2
        v_lshlrev_b32 v5, 2, v5
        v_and_b32 v6, 3, v1
        v_cmp_eq_u32 s[20:21], 1, v6
        v_cmp_eq_u32 s[22:23], 2, v6
        v_cmp_eq_u32 s[40:41], 3, v6
        s_lshl_b32 s44, s74, 1
        s_lshr_b32 s61, {sWV}, 1
        s_add_u32 s44, s44, s61
        s_lshl_b32 s46, s44, 4
        s_add_u32 s46, s46, s75
        s_lshr_b32 s47, s46, 1
        s_and_b32 s62, {sWV}, 1
        s_lshl_b32 s46, s46, 1
        s_add_u32 s46, s46, s62
        s_lshl_b32 s46, s46, 9
        s_add_u32 s46, s46, {WS_HC}
        s_lshl_b32 s47, s47, 1
        s_add_u32 s47, s47, s62
        s_lshl_b32 s47, s47, 9
        s_and_b32 s63, s75, 1
        s_lshl_b32 s61, s63, 8
        s_add_u32 s47, s47, s61
        s_add_u32 s47, s47, {WS_HM}
        s_mul_i32 s44, s44, 56
        s_lshr_b32 s61, s75, 1
        s_mul_i32 s61, s61, 7
        s_add_u32 s44, s44, s61
        s_lshl_b32 s44, s44, 12
        s_lshl_b32 s61, s62, 11
        s_add_u32 s44, s44, s61
        s_add_u32 s44, s44, {WS_H}
        s_lshl_b32 s61, s63, 9
        s_add_u32 s45, s44, s61
        s_add_u32 s45, s45, {6*4096}
        s_mul_i32 s61, s63, {3*4096}
        s_add_u32 s44, s44, s61
        v_and_b32 v6, 1, v3
        v_lshlrev_b32 v7, 10, v6
        v_lshl_add_u32 v7, v2, 4, v7
        v_lshrrev_b32 v250, 1, v3
        v_lshl_add_u32 v7, v250, 8, v7
        v_lshlrev_b32 v250, 7, v250
        v_lshl_add_u32 v250, v2, 3, v250
        v_lshl_add_u32 v250, v6, 2, v250
        s_lshl_b32 s61, s62, 4
        s_add_u32 s61, s61, 3
        s_add_u32 s63, s62, 5
        v_mul_u32_u24 v6, s63, v6
        v_add_u32 v6, s61, v6
        v_alignbit_b32 v251, s80, s80, v6
        s_mul_i32 s61, s62, 13
        v_mov_b32 v6, s61
        v_alignbit_b32 v252, s80, s80, v6
        v_mov_b32 v253, v252
        v_mov_b32 v254, {NLOG2E}
        v_lshlrev_b32 v6, 2, v1
        """
        return [x.strip() for x in T.split("\n") if x.strip()]

    def g1_epilogue(self, tb):
        a = self.a
        early = self.g2_todo
        def ld(n):
            for _ in range(n):
                if early: a(early.pop(0)); self.g2_log.append("l")
        ld(opt('g2b0', 6))
        a("s_waitcnt lgkmcnt(0)\nv_mov_b32 v184, v249")
        for ft in (6, 4, 5):
            if ft == 4: a.region("g1e1")
            u = 64 + 8 * (ft - 4)
            for t in range(2):
                self.silu_tile(ft, t, u, u + 4, 32 + 4 * t, 40 + 2 * t if ft == 6 else 224 + 4 * t + 2 * (ft & 1))
                ld(3)
                if ft == 5: self.pair_store(ft, t, 253); self.g2_log.append("s")
            if ft == 6:
                a("v_permlane16_swap_b32 v40, v42\nv_permlane16_swap_b32 v41, v43")
                a(f"buffer_store_dwordx4 v[40:43], v7, {WS}, s45 offen sc1")
                a("v_bitop3_b32 v251, v251, v40, v41 bitop3:0x96\nv_bitop3_b32 v251, v251, v42, v43 bitop3:0x96")
                a(f"buffer_store_dword v251, v250, {WS}, s47 offen sc1")
                self.g2_log += ["s", "s"]
        a(f"buffer_store_dword v253, v6, {WS}, s46 offen offset:256 sc1")
        self.g2_log.append("s")
        ld(99)

    def g2_run(self):
        a = self.a
        a(f"""
        s_mul_i32 s78, s76, 56
        s_mul_i32 s61, {sWV}, 14
        s_add_u32 s78, s78, s61
        s_lshl_b32 s78, s78, 12
        s_add_u32 s78, s78, {WS_H}
        s_lshl_b32 s16, s76, 2
        s_add_u32 s16, s16, {sWV}
        s_lshl_b32 s15, s16, 11
        s_add_u32 s15, s15, {WS_HM}
        s_lshl_b32 s16, s16, 12
        s_add_u32 s16, s16, {WS_HC}
        s_mov_b32 s60, s80
        s_mov_b32 s61, s80
        s_lshr_b64 s[62:63], s[60:61], 13
        s_xor_b32 s20, s80, s62
        s_lshr_b64 s[62:63], s[60:61], 3
        s_mov_b32 s21, s62
        s_lshr_b64 s[62:63], s[60:61], 8
        s_xor_b32 s21, s21, s62
        s_lshr_b64 s[62:63], s[60:61], 19
        s_xor_b32 s21, s21, s62
        s_lshr_b64 s[62:63], s[60:61], 25
        s_xor_b32 s21, s21, s62
        s_lshl_b32 s60, {sWV}, 10
        v_add_u32 v12, s60, v8
        v_add_u32 v13, 1024, v12
        v_add_u32 v14, 2048, v12
        v_add_u32 v15, 3072, v12
        v_and_b32 v13, 4095, v13
        v_and_b32 v14, 4095, v14
        v_and_b32 v15, 4095, v15
        v_lshlrev_b32 v9, 3, v1
        s_mov_b32 s19, 0
        """)

    def h_touch(self, late):
        a = self.a
        if not late:
            a(f"""
            s_mul_i32 s17, s76, 56
            s_mul_i32 s61, {sWV}, 14
            s_add_u32 s17, s17, s61
            s_lshl_b32 s17, s17, 12
            s_lshl_b32 s61, s77, 9
            s_add_u32 s17, s17, s61
            s_add_u32 s17, s17, {WS_H}
            v_bfe_u32 v248, v1, 2, 3
            v_lshlrev_b32 v248, 2, v248
            s_mov_b32 s61, 0xba874310
            v_lshrrev_b32 v248, v248, s61
            v_and_b32 v248, 15, v248
            v_lshlrev_b32 v248, 12, v248
            v_and_b32 v249, 3, v1
            v_lshl_add_u32 v248, v249, 7, v248
            buffer_load_dword v255, v248, {WS}, s17 offen sc1
            v_bfe_u32 v248, v1, 2, 3
            v_lshlrev_b32 v248, 2, v248
            s_mov_b32 s61, 0xdddc9652
            v_lshrrev_b32 v248, v248, s61
            v_and_b32 v248, 15, v248
            v_lshlrev_b32 v248, 12, v248
            v_lshl_add_u32 v249, v249, 7, v248
            """)
        else:
            a(f"buffer_load_dword v7, v184, {WS}, s17 offen sc1")

    def g2_plan(self):
        HR = 8
        k0 = lambda cb: 7 * (cb // 2) + 3 * (cb % 2)
        groups = [("a", cb, [k0(cb), k0(cb) + 1]) for cb in range(4)]
        groups += [("b", 0, [2]), ("b", 1, [5]), ("m", 0, [6]), ("b", 2, [9]), ("b", 3, [12]), ("m", 1, [13])]
        order = [k for g in groups for k in g[2]]
        slot = {k: 32 + 16 * ((p + 4) % HR) for p, k in enumerate(order)}
        loads, chk, c = [], [], 88
        for kind, i, ks in groups:
            if kind == "a" and i == 2: c = 160
            p0 = order.index(ks[0])
            if kind == "m":
                chk.append([c, c + 1, c + 2, c + 3])
                for h in range(2):
                    loads.append((p0, None, f"buffer_load_dwordx2 {P(c+2*h)}, v9, {WS}, s15 offen offset:{1024*i + 512*h} sc1"))
                c += 4
            else:
                chk.append([c, c + 1])
                for h in range(2):
                    loads.append((p0, None, f"buffer_load_dword v{c+h}, v6, {WS}, s16 offen offset:{1024*i + 512*h + (256 if kind == 'b' else 0)} sc1"))
                c += 2
            for k in ks:
                for st in range(4):
                    pre = f"s_add_u32 s18, s78, {4096*k}\n" if st == 0 else ""
                    loads.append((order.index(k), (k, st), pre + f"buffer_load_dwordx4 {Q4(slot[k]+4*st)}, v{12+st}, {WS}, s18 offen sc1"))
        self.g2p = (HR, groups, order, slot, loads, chk)
        self.g2_early = [l[2] for l in loads[:opt('g2pre', 20)]]
        self.g2_log = []
        self.g2_todo = list(self.g2_early)

    def g2_body(self):
        a = self.a
        HR, groups, order, slot, loads, chk = self.g2p
        npre = len(self.g2_early)
        merged, it = [], iter(loads[:npre])
        for t in self.g2_log: merged.append(next(it) if t == "l" else (0, None, None))
        loads = merged + loads[npre:]
        nissued = len(merged)
        if opt('ht2', -1) >= 0:
            at = max(nissued, min(i for i, l in enumerate(loads) if l[0] >= opt('ht2', -1) and l[2]))
            loads.insert(at, (loads[at][0], None, f"buffer_load_dword v7, v184, {WS}, s17 offen sc1"))
        keys = [l[1] for l in loads]
        pos = [nissued]
        def issue(maxp):
            if pos[0] < len(loads) and loads[pos[0]][0] <= maxp:
                a(loads[pos[0]][2]); pos[0] += 1
        def wait(key):
            i = keys.index(key)
            while pos[0] <= i: issue(99)
            a(f"s_waitcnt vmcnt({pos[0] - 1 - i})")
        def vsteps(gi):
            x, out = 4 + gi % 2, []
            for j, k in enumerate(groups[gi][2]):
                regs = (list(chk[gi]) if j == 0 else [x]) + [slot[k] + i for i in range(16)]
                L = [("w", (k, 3)), f"v_bitop3_b32 v{x}, v{regs[0]}, v{regs[1]}, v{regs[2]} bitop3:0x96"]
                rest = regs[3:]
                while len(rest) >= 2: L.append(f"v_bitop3_b32 v{x}, v{x}, v{rest.pop(0)}, v{rest.pop(0)} bitop3:0x96")
                if rest: L.append(f"v_xor_b32 v{x}, v{x}, v{rest.pop(0)}")
                out.append(L)
            cmp = f"v_cmp_ne_u32 vcc, {'s21' if groups[gi][0] == 'm' else 's20'}, v{x}"
            p0, p1 = order.index(groups[gi][2][0]), order.index(groups[gi][2][-1])
            again = [l[2].replace("s18", "s17") for l in self.g2p[4] if p0 <= l[0] <= p1]
            self.g2_fix.append((gi, again, [t for L in out for t in L if isinstance(t, str)], cmp))
            out[-1].append(f"{cmp}\ns_cbranch_vccnz L_g2_fix{gi}\nL_g2_back{gi}:")
            return out
        def run(t):
            if isinstance(t, tuple): wait(t[1])
            else: a(t)
        tail = self.g2_tail_setup()
        self.g2_fix = []
        if opt('force', 0): a(f"s_xor_b32 s{19 + opt('force', 0)}, s{19 + opt('force', 0)}, 1")
        a("L_g2_go:")
        a.fence()
        a(f"s_waitcnt vmcnt({nissued - 1 - max(i for i, t in enumerate(self.g2_log) if t == 'e')})")
        self.g2_epi_pre(0)
        for L in vsteps(0):
            for t in L: run(t)
        for gi, (kind, _, ks) in enumerate(groups):
            nxt = vsteps(gi + 1) if gi + 1 < len(groups) else []
            nxt = [[] for _ in range(len(ks) - len(nxt))] + nxt
            for j, k in enumerate(ks):
                p = order.index(k)
                if p in (5, 10): a.region("g2" + "abc"[p // 5])
                self.stamp("g")
                cur = nxt[j]
                last = p == 13
                wr = lambda st: [f"ds_write_b128 v{127+st}, {Q4(192+16*st+4*dt)} offset:{1024*dt}" for dt in range(4)]
                for si, st in enumerate((1, 2, 3, 0) if last else range(4)):
                    pend = wr(si - 1) if last and si >= 2 else []
                    for dt in range(4):
                        d = 192 + 16 * st + 4 * dt
                        a(f"v_mfma_f32_16x16x32_bf16 {Q4(d)}, a[{16*k+4*dt}:{16*k+4*dt+3}], {Q4(slot[k]+4*st)}, {'0' if p == 0 else Q4(d)}")
                        i = 4 * si + dt
                        if i in {4: (0, 4, 8, 12), 5: (0, 3, 6, 10, 13), 6: (0, 3, 6, 9, 12, 15)}[opt('g2n', 5)]: issue(p + HR - 1)
                        if pend: a(pend.pop(0))
                        if i >= 9:
                            for _ in range(2):
                                if cur: run(cur.pop(0))
                        elif p >= 12:
                            for _ in range(3):
                                if tail: a(tail.pop(0))
                if last:
                    assert not tail
                    for t in wr(3): a(t)
                assert not cur
                if p <= 1: assert all(l[0] < 7 for l in loads[:pos[0]]), "check registers of the first groups share a ring slot"
        assert pos[0] == len(loads)

    def g2_tail_setup(self):
        rb = self.WB
        L = []
        for j in range(1, 4):
            L += [f"s_add_u32 s60, {sWV}, {j} | s_and_b32 s60, s60, 3 | s_mul_i32 s60, s60, 12288 | s_add_u32 s60, s60, {rb + 4096*(j-1)} | v_lshl_add_u32 v{127+j}, v1, 4, s60"]
        L += [f"s_mul_i32 s60, {sWV}, 12288 | s_add_u32 s60, s60, {rb} | v_lshl_add_u32 v131, v1, 4, s60",
              "v_lshlrev_b32 v132, 10, v2", "v_lshl_add_u32 v132, v3, 4, v132",
              f"s_lshl_b32 s22, s76, 16 | s_lshl_b32 s61, {sWV}, 14 | s_add_u32 s22, s22, s61 | s_lshl_b32 s61, s77, 7 | s_add_u32 s22, s22, s61"]
        L += [f"v_accvgpr_read_b32 v{96+i}, a{224+i}" for i in range(16)]
        for dt in range(4):
            x = 20 + 2 * dt
            L += [f"v_lshlrev_b32 v{112+4*dt}, 16, v{x}", f"v_and_b32 v{113+4*dt}, 0xffff0000, v{x}",
                  f"v_lshlrev_b32 v{114+4*dt}, 16, v{x+1}", f"v_and_b32 v{115+4*dt}, 0xffff0000, v{x+1}"]
        return [t.replace(" | ", "\n") for t in L]

    def g2_epilogue(self, rb, tb):
        a = self.a
        a("s_waitcnt lgkmcnt(0)\ns_barrier")
        for dt in range(4):
            for src in range(3):
                a(f"ds_read_b128 {Q4(136 + 12*dt + 4*src)}, v131 offset:{4096*src + 1024*dt}")
        for dt in range(4):
            r, o = 136 + 12 * dt, 192 + 4 * dt
            a(f"s_waitcnt lgkmcnt({9 - 3*dt})")
            for h in range(2): a(f"v_pk_add_f32 {P(r+2*h)}, {P(r+2*h)}, {P(r+4+2*h)}\nv_pk_add_f32 {P(o+2*h)}, {P(o+2*h)}, {P(r+8+2*h)}")
            for h in range(2): a(f"v_pk_add_f32 {P(r+2*h)}, {P(r+2*h)}, {P(o+2*h)}")
            for h in range(2): a(f"v_pk_fma_f32 {P(r+2*h)}, {P(r+2*h)}, {P(96+4*dt+2*h)}, {P(112+4*dt+2*h)}")
            for h in range(2): a(f"v_cvt_pk_bf16_f32 v{80+2*dt+h}, v{r+2*h}, v{r+2*h+1}")
            if dt == 1 and self.diag == "lsb":
                self.stamp("*")
                reg = lambda i: 82 + i if i < 15 else 85 + i
                a("s_cmp_lg_u32 s2, 100\ns_cbranch_scc1 L_nolsb")
                for j in range(4):
                    for g in range(4):
                        i = min(4 * j + g + 1, self.nst - 1)
                        a(f"s_sub_u32 s60, s{reg(i)}, s82\nv_cmp_eq_u32 vcc, {g}, v3\nv_mov_b32 v5, s60\nv_cndmask_b32 v4, v4, v5, vcc")
                    a(f"v_lshrrev_b32 v4, v2, v4\nv_and_b32 v4, 1, v4\nv_and_b32 v{80+j}, -2, v{80+j}\nv_or_b32 v{80+j}, v{80+j}, v4")
                a("L_nolsb:")
                self.diag = False
            if dt % 2 == 1:
                a(f"buffer_store_dwordx4 {Q4(80+2*(dt-1))}, v132, {OUT}, s22 offen offset:{32*(dt-1)}{self.OUTM}")

    def g2_retry(self):
        a = self.a
        for gi, again, chain, cmp in self.g2_fix:
            a(f"L_g2_fix{gi}:")
            a.fence()
            a(f"s_add_u32 s19, s19, 1\ns_cmp_gt_u32 s19, {SPIN}\ns_cbranch_scc1 L_g2_back{gi}\ns_waitcnt vmcnt(0)")
            if opt('force', 0): a(f"s_cmp_eq_u32 s19, 2\ns_cselect_b32 s60, 1, 0\ns_xor_b32 s{19 + opt('force', 0)}, s{19 + opt('force', 0)}, s60")
            for t in again: a(t)
            a("s_waitcnt vmcnt(0)")
            for t in chain: a(t)
            a(f"{cmp}\ns_cbranch_vccnz L_g2_fix{gi}\ns_branch L_g2_back{gi}")

def build_fused2(diag=False):
    g = G2(sc=True, diag=diag)
    a = g.a
    S = g.stamp
    kn = NAME + "_kernel"
    ref = open("cdna_kernels/" + NAME + ".s.ref").read().split("\n")
    hdr = [ln for ln in ref if ln.startswith(";") and "@launch" not in ln and "Override" not in ln and "grid=ceil" not in ln]
    hdr += ["; One persistent workgroup per CU. Stages: kv = shift_conv(k)*v, transposed through d_ws -> Toeplitz MFMA long",
            "; convolution per channel -> x1 -> GEMM1 (LayerNorm folded in) + SiLU -> GEMM2 + gated residual.",
            "; Hand-offs between workgroups use write-through stores with launch-tagged flags, tags or check words.",
            "; @launch grid=(256,1,1) block=(256,1,1) lds=163840"]
    a.raw('.amdgcn_target "amdgcn-amd-amdhsa--gfx950"\n.text')
    g.entry2(kn)
    a(f"s_cmp_ge_u32 {sWV}, 2\ns_cbranch_scc1 L_role_b")
    n0 = g.nst
    g.role_a()
    if HINT: g.flag_a()
    QP = opt('qp', 2)
    if QP == 0: g.q_rows()
    a(f"s_waitcnt vmcnt({(9 if HINT else 4) + (8 if QP == 0 else 0)})\ns_branch L_join1\nL_role_b:")
    a.fence()
    g.nst = n0
    a.region("end")
    if opt('cpf', 1) == 3: g.code_prefetch2()
    a(f"s_sub_u32 s6, {sWV}, 2")
    g.srd_words((8, 9, 0, 11, 4, 5, 6, 7, 10))
    a(f"s_waitcnt lgkmcnt(0)\nv_mov_b32 v4, {WS_TAG}\nbuffer_load_dwordx2 v[254:255], v4, {WS}, 0 offen sc1")
    if opt('tlb', 1):
        a(f"""
        v_min_u32 v4, 14, v1
        v_lshlrev_b32 v4, 21, v4
        v_add_u32 v4, {2*MB - 128}, v4
        buffer_load_dword v248, v4, {WS}, 0 offen
        v_mov_b32 v4, 0
        buffer_load_dword v251, v4, {OUT}, 0 offen
        buffer_load_dword v250, v4, {W1}, 0 offen
        buffer_load_dword v249, v4, {W2}, 0 offen
        """)
    BF = opt('bf', 0)
    if BF:
        g.c_ids()
        g.filter_load()
        if BF == 1:
            g.role_b_loads_gemv()
            g.role_b_loads2()
        g.g1_ids(); g.g2_ids()
        S()
        a(f"s_waitcnt vmcnt({13 if BF == 1 else 0})"); S(); S()
    else:
        g.role_b_loads_gemv()
        g.role_b_loads2()
        g.c_ids(); g.g1_ids(); g.g2_ids()
        if opt('warm', 0) == 1: g.warm((2, ["brest0", "g1a"]), (3, ["brest1", "cepi", "prep1", "g1b"]))
        if opt('warm', 0) == 3: g.warm((2, ["brest0"]), (3, ["brest1"]))
        S()
        a("v_and_b32 v2, 15, v1\nv_lshrrev_b32 v3, 4, v1")
        a.region("brest0")
        W2AT = opt('w2at', 0)
        g.n_after = 8 if W2L or W2AT else 12
        def after():
            g.filter_load()
            if not W2L and not W2AT: g.w2_unit_load()
        g.role_b_rest(0, after_wait=after); S()
        a(f"s_waitcnt vmcnt({2 if W2L or W2AT else 6})")
        if W2AT == 1: g.w2_unit_load()
        S()
    a("L_join1:")
    a.fence()
    a.region("fprep")
    g.filter_copies(); S()
    def mid():
        if HINT: return
        a(f"s_cmp_ge_u32 {sWV}, 2\ns_cbranch_scc1 L_mid_b\ns_waitcnt vmcnt({8 if QP == 0 else 0})")
        g.flag_a()
        if BF and not W2L:
            a("s_branch L_mid_done\nL_mid_b:")
            keep = (4, 5, 8, 14)
            for i, r in enumerate(keep): a(f"v_mov_b32 v{140+i}, v{r}")
            if BF == 2:
                g.role_b_loads_gemv()
                g.role_b_loads2()
            g.w2_unit_load()
            for i, r in enumerate(keep): a(f"v_mov_b32 v{r}, v{140+i}")
            a("v_and_b32 v2, 15, v1\nv_lshrrev_b32 v3, 4, v1\nL_mid_done:")
            return
        if QP == 1:
            a("v_mov_b32 v250, v5")
            g.q_rows()
            a("v_mov_b32 v5, v250")
        a("L_mid_b:")
    g.filter_prep(mid); S()
    a.region("ufetch")
    st = dict()
    a(f"s_cmp_ge_u32 {sWV}, 2\ns_cbranch_scc1 L_role_b2")
    if opt('q1', 0):
        a(f"s_cmp_eq_u32 {sWV}, 0\ns_cbranch_scc1 L_join2")
        g.q_rows("0"); g.q_rows("1")
    else:
        g.q_rows()
    a("s_branch L_join2\nL_role_b2:")
    a.fence()
    if BF:
        a.region("brest0")
        g.n_after = 0 if W2L else 4
        g.role_b_rest(0 if W2L else 4)
    if opt('w2at', 0) == 2: g.w2_unit_load()
    if not W2L: g.w2_unit_pack(0 if opt('w2at', 0) else 2)
    if opt('fm', 1) < 0: g.flag_m(0)
    a("L_join2:")
    a.region("addr")
    a.fence()
    g.u_addr()
    g.pre_conv()
    if WE:
        for i in range(opt('wed', 0)): a("s_sleep 4")
        g.side_inputs()
        for t in g.mod_load_list(32): a(t)
    if opt('warm', 0) >= 2: g.warm((1, ["conv0", "cepi"]), (2, ["conv1", "prep1"]), (3, ["g1a", "g1b"]))
    g.u_wait()
    S(); S("c")
    a("s_waitcnt lgkmcnt(0)\ns_barrier")
    g.u_fetch(); S()
    w2 = dict(n=0)
    def side():
        g.g2_w2_one(w2['n']); w2['n'] += 1
    a.region("conv0")
    log = []
    younger = lambda tag: len(log) - 1 - max(i for i, t in enumerate(log) if t == tag)
    modl = g.mod_load_list(32)
    wl = g.w_stream(32, 0)
    st.update(hold=0, w=g.e_stream() + ([] if WE else wl[wl.index("WAIT"):]), q=[('e', t) for t in g.epi_load_list()] + ([] if WE else [('m', t) for t in modl]))
    if opt('wfirst', 1):
        st['w'] = wl[wl.index("WAIT"):] + g.e_stream()
        st['q'] = [('m', t) for t in modl] + [('x', None)] * opt('egap', 6) + [('e', t) for t in g.epi_load_list()]
    if opt('pre', 0):
        log += [t for t, _ in st['q']]
        st['q'] = []
    Q0 = opt('q0', 2)
    def hook(n):
        if n == 40: a.region("conv1")
        if n in (0, 8, 16, 24, 32, 40, 50, 60, 70, 79): S("c")
        if n >= Q0 and n % 2 == 0 and st['q']:
            tg, t = st['q'].pop(0)
            if t: log.append(tg); a(t)
        for _ in range(opt('wr', 3)):
            if not st['w'] or st['hold'] > n: break
            t = st['w'][0]
            if t == "EWAIT":
                if n < Q0 + opt('ew', 22): break
                a(f"s_waitcnt vmcnt({younger('e')})")
            elif t == "EVERIFY":
                g.verify("e", [125] + [109 + 2*i for i in range(8)], 154, g.epi_load_list())
            elif t == "WAIT":
                if n < Q0 + opt('ww', 22): break
                a(f"s_waitcnt vmcnt({younger('m')})")
            elif t == "VERIFY":
                g.verify("w", [33 + 2*i for i in range(8)], 24, modl)
            elif t == "GAP":
                assert n <= 64
                st['hold'] = n + 8
            else:
                a(t.replace(" | ", "\n")); log.extend('s' * t.count("buffer_store"))
            st['w'].pop(0)
        if W2L:
            U0, U1, U2 = opt('u0', 1), opt('u1', 33), opt('u2', 67)
            if n in (U0, U0 + 2):
                a(f"s_add_u32 m0, s44, {512*(n-U0)}\nbuffer_load_dwordx4 v169, {W2}, {'s23' if n == U0 else 's22'} offen{g.NT} lds"); log.append('u')
            if n == U1:
                a(f"s_waitcnt vmcnt({younger('u')})")
                a("ds_read_b64_tr_b16 v[128:129], v174\nds_read_b64_tr_b16 v[130:131], v175\nds_read_b64_tr_b16 v[132:133], v174 offset:8\nds_read_b64_tr_b16 v[134:135], v175 offset:8")
            if n in (U1 + 8, U1 + 10):
                j = (n - U1 - 8) // 2
                a(f"buffer_store_dwordx4 {Q4(128+4*j)}, v9, {WS}, s45 offen offset:{1024*j} sc1"); log.append('p')
            if n == U2:
                a(f"s_waitcnt vmcnt({younger('p')})")
                g.flag_store("s46", 1, 3, 136); log.append('s')
        if n == opt('fm', 1) and not W2L:
            a(f"s_cmp_lt_u32 {sWV}, 2\ns_cbranch_scc1 L_skip_m")
            g.flag_m(len(log) + (16 if WE else 8))
            a("L_skip_m:")
        WM = opt('wm', 46)
        if W2L: WM = 999
        if n == max(0, WM - 14):
            a(f"buffer_load_dwordx2 v[252:253], v248, {WS}, 0 offen sc1"); log.append('f')
        if n == WM: g.poll("M", first_issued=True, va="v248", vd=252, later=younger('f'))
        if n >= WM and n % 2 == 1 and w2['n'] < opt('w2conv', 15):
            side(); log.append('w')
    g.conv_main(hook); S()
    assert not st['q']
    a.region("cepi")
    print("w_stream left after conv:", len(st['w']), file=sys.stderr)
    for t in st['w']:
        assert t not in ("WAIT", "GAP", "VERIFY", "EWAIT", "EVERIFY")
        a(t.replace(" | ", "\n")); log.extend('s' * t.count("buffer_store"))
    a("s_waitcnt lgkmcnt(0)")
    S("c")
    g.conv_epilogue(); S("c")
    if W2L: a(f"buffer_load_dwordx2 v[252:253], v248, {WS}, 0 offen sc1")
    a.region("prep1")
    EARLY = opt('early', 0)
    if EARLY:
        a(f"""
        s_and_b32 s60, s2, 15
        s_lshl_b32 s60, s60, 4
        s_lshr_b32 s61, s2, 4
        s_add_u32 s60, s60, s61
        s_lshl_b32 s60, s60, 2
        s_add_u32 s60, s60, {sWV}
        s_lshl_b32 s60, s60, {FL}
        s_add_u32 s60, s60, {FLAG_W}
        s_and_b32 s61, s2, 8
        s_lshl_b32 s61, s61, {7 + FL}
        s_add_u32 s60, s60, s61
        s_waitcnt vmcnt(2)
        """)
        g.flag_store("s60", 4, 11 + FL, 4)
    g.signal_all(FLAG_2, 8, 2); S()
    if W2L: g.poll("M", va="v248", vd=252, first_issued=True, later=1)
    g.g1_addr()
    if EARLY:
        a(f"""
        s_lshl_b32 s60, {sX}, 4
        s_add_u32 s60, s60, s75
        s_lshl_b32 s60, s60, {6 + FL}
        s_add_u32 s60, s60, {FLAG_W}
        v_lshl_add_u32 v4, v1, {FL}, s60
        """)
        a(f"buffer_load_dwordx2 v[6:7], v4, {WS}, 0 offen sc1")
        n0 = w2['n']
        while w2['n'] < 56 - opt('w2b', 15) - opt('w2a', 14): side()
        g.poll("W", first_issued=True, later=w2['n'] - n0)
        g.g1_run(None, 0, early="weights")
    else:
        while w2['n'] < 56 - opt('w2e3', 0) - opt('w2b', 15) - opt('ea', 0): side()
    g.warm((0, ["g1c"]), (1, ["g1d"]), (2, ["g1e0", "g2a", "g2b"]), (3, ["g1e1", "g2c", "g2e"])); S()
    a(f"""
    s_lshl_b32 s60, {sX}, {8 + FL}
    s_add_u32 s60, s60, {FLAG_2}
    v_lshl_add_u32 v4, v0, {FL}, s60
    """)
    a.region("g1a")
    for i in range(opt('p2', 0)): a("s_sleep 4")
    g.poll("2")
    a("s_barrier"); S(); S("h")
    g.g2_plan()
    g.g1_run(side, opt('w2b', 15), EARLY, opt('w2a', 14))
    S()
    S("h")
    a.region("g1e0")
    assert w2['n'] == 56
    if not g.g2_log: g.g2_run()
    g.g2_epi_load()
    g.g2_log += ["e"] * 8
    g.g1_epilogue(G2.T_U - 4096)
    S("h")
    a("s_barrier"); S()
    a.region("g2a")
    S(); S("g"); S("h")
    g.g2_body(); S(); S("h")
    a("L_g2_giveup:")
    if diag and opt('cnt', 0):
        a(f"s_lshl_b32 s60, s2, 2\ns_add_u32 s60, s60, {sWV}\ns_lshl_b32 s60, s60, 7\ns_add_u32 s60, s60, {WS_DIAG + 124}\nv_mov_b32 v4, s60\nv_mov_b32 v5, s19\nbuffer_store_dword v5, v4, {WS}, 0 offen")
    a.region("g2e")
    g.g2_epilogue(G2.WB, 0)
    a.region("end")
    g.tag_update()
    g.exit(kn)
    g.g2_retry()
    a("L_warm_ret:\ns_setpc_b64 s[98:99]" if opt('warm', 0) else "L_warm_ret:\ns_endpgm")
    a.raw('.section .rodata,"a"')
    a.raw(desc(kn, 512, 256))
    if not opt('warm', 0):
        a.lines = [ln for ln in a.lines if not ln.startswith(";@region")]
    txt, size = add_pads(a.text(), opt('pad', 256))
    print("code bytes", size, file=sys.stderr)
    return "\n".join(hdr) + "\n" + txt

if __name__ == "__main__":
    diag = sys.argv[2] if len(sys.argv) > 2 else False
    open(sys.argv[1], "w").write(build_fused2(diag))
```

```python
import sys, os
OPT = dict(kv.split('=') for kv in os.environ.get('OPT', '').split(',') if kv)
opt = lambda k, d: int(OPT.get(k, d))
from asmlib import Asm, desc, add_pads
from gen import *

WS_W1P, WS_UP = 21 * MB, 23 * MB
WS_HC, WS_HM, WS_TAG = 26 * MB, 27 * MB, 28 * MB
MODP = 3072 * 8
FLAG_A, FLAG_B, FLAG_2, FLAG_3 = WS_FLAG, WS_FLAG + MB, WS_FLAG + 2 * MB, WS_FLAG + 3 * MB
FLAG_W = 25 * MB
HINT = opt('hint', 0)
WE = opt('we', 0)
W2L = opt('w2late', 0)
FL = opt('fl', 6)
P = lambda r: f"v[{r}:{r+1}]"
Q4 = lambda r: f"v[{r}:{r+3}]"

class G2(G):
    NT = " nt" if opt('nt', 1) else ""
    OUTM = ["", " sc1", " nt", " sc0 sc1"][opt('outm', 0)]
    NTF = " nt" if opt('ntf', 1) else ""
    NTQ = " nt" if opt('ntq', 0) else ""
    NTW1 = " nt" if opt('ntw1', 0) else ""
    FB, FSZ, WB = 1536, 7584, 32768
    XI, XI_RS = 1536, 7616
    T_GB, T_U, T_UP = 1536 + 2560, 1536 + 4608, 1536 + 7584 + 2560

    def entry2(self, name):
        a = self.a
        a.raw(f".globl {name}\n.p2align 8\n.type {name},@function")
        a.label(name)
        a.fence()
        a(f"s_cmp_ge_u32 s2, 256\ns_cbranch_scc1 L_end_{name}")
        self.stamp("*")
        if opt('cpf', 1) == 2: self.code_prefetch()
        for i in (1, 2, 3, 8, 9, 0, 11, 4, 5, 6, 7, 10):
            r, off, n = SRD_INFO[i]
            a(f"s_load_dwordx2 s[{r}:{r+1}], s[0:1], {off}")
        if opt('cpf', 1) == 1: self.code_prefetch()
        a(f"""
        v_lshrrev_b32 v2, 6, v0
        v_and_b32 v1, 63, v0
        s_mov_b32 s14, {2*MB}
        v_readfirstlane_b32 {sWV}, v2
        s_mov_b32 s15, 0x00020000
        s_and_b32 {sX}, s2, 7
        s_lshr_b32 {sM}, s2, 3
        """)

    def srd_words(self, which):
        for i in which:
            r, off, n = SRD_INFO[i]
            size = "s14" if n == 2 * MB else str(n)
            self.a(f"{'s_movk_i32' if n <= 4096 else 's_mov_b32'} s{r+2}, {size}\ns_mov_b32 s{r+3}, s15")

    def code_prefetch2(self):
        self.a(f"""
        s_getpc_b64 s[60:61]
        L_pc:
        s_sub_u32 s60, s60, L_pc-{NAME}_kernel
        s_subb_u32 s61, s61, 0
        v_lshlrev_b32 v4, 7, v0
        v_subrev_u32 v4, 16384, v4
        v_add_u32 v6, 16384, v4
        v_min_u32 v6, L_warm_ret-{NAME}_kernel, v6
        v_mov_b32 v5, s61
        v_add_co_u32 v4, vcc, s60, v4
        v_addc_co_u32 v5, vcc, 0, v5, vcc
        global_load_dword v253, v[4:5], off
        v_mov_b32 v7, s61
        v_add_co_u32 v6, vcc, s60, v6
        v_addc_co_u32 v7, vcc, 0, v7, vcc
        global_load_dword v252, v[6:7], off
        """)

    def code_prefetch(self):
        CQ = opt('cq', 1)
        self.a("s_getpc_b64 s[60:61]\nL_pc:")
        if CQ:
            self.a(f"""
            s_lshl_b32 s62, s2, 3
            v_add_u32 v4, s62, v0
            v_and_b32 v4, 255, v4
            v_cmp_le_u32 vcc, {256 - 64*CQ}, v0
            v_lshlrev_b32 v4, 7, v4
            """)
        else:
            self.a("v_lshlrev_b32 v4, 7, v0")
        self.a("""
        v_min_u32 v4, L_warm_ret-L_pc, v4
        v_mov_b32 v5, s61
        """)
        if CQ: self.a("s_cbranch_vccz L_pf_skip")
        self.a("""
        v_add_co_u32 v4, vcc, s60, v4
        v_addc_co_u32 v5, vcc, 0, v5, vcc
        global_load_dword v253, v[4:5], off
        L_pf_skip:
        """)

    def warm(self, *plans):
        if not opt('warm', 0): return
        a = self.a
        self.nwarm = getattr(self, 'nwarm', 0) + 1
        a("s_mov_b64 exec, 0")
        for w, regs in plans:
            lab = f"L_w{self.nwarm}_{w}"
            a(f"s_cmp_lg_u32 {sWV}, {w}\ns_cbranch_scc1 {lab}")
            for r in regs: a(f"s_call_b64 s[98:99], L_reg_{r}")
            a(f"{lab}:")
        a("s_mov_b64 exec, -1")

    def tag_ready(self):
        self.a("v_readfirstlane_b32 s80, v254\nv_readfirstlane_b32 s81, v255\ns_add_u32 s80, s80, 0x9e3779b9\ns_add_u32 s81, s81, 0x7f4a7c15")

    def tag_update(self):
        self.a(f"""
        s_or_b32 s60, s2, {sWV}
        s_cmp_lg_u32 s60, 0
        s_cbranch_scc1 L_tag_done
        v_mov_b32 v4, {WS_TAG}
        v_mov_b32 v6, s80
        v_mov_b32 v7, s81
        s_mov_b64 exec, 1
        buffer_store_dwordx2 v[6:7], v4, {WS}, 0 offen
        L_tag_done:
        """)

    def nonce_issue(self, b):
        self.a(f"v_mov_b32 v{b+2}, 0\nbuffer_load_dwordx2 v[{b}:{b+1}], v{b+2}, {DBG}, 0 offen sc1")

    def nonce_finish(self, tag, b):
        self.a(f"""
        s_mov_b32 s62, 0
        L_nonce_{tag}:
        s_waitcnt vmcnt(0)
        v_readfirstlane_b32 s80, v{b}
        v_readfirstlane_b32 s81, v{b+1}
        s_add_u32 s62, s62, 1
        s_cmp_lg_u32 s81, 0
        s_cbranch_scc1 L_nonce_{tag}_ok
        s_cmp_gt_u32 s62, {SPIN}
        s_cbranch_scc1 L_nonce_{tag}_ok
        v_mov_b32 v{b+2}, 0
        buffer_load_dwordx2 v[{b}:{b+1}], v{b+2}, {DBG}, 0 offen sc1
        s_branch L_nonce_{tag}
        L_nonce_{tag}_ok:
        """)

    def flag_store(self, soff, replicas, rstride_log2, b=4):
        self.a(f"""
        v_lshl_add_u32 v{b+2}, v1, {rstride_log2}, {soff}
        v_mov_b32 v{b}, s80
        v_mov_b32 v{b+1}, s81
        s_mov_b64 exec, {(1 << replicas) - 1}
        buffer_store_dwordx2 v[{b}:{b+1}], v{b+2}, {WS}, 0 offen sc1
        s_mov_b64 exec, -1
        """)

    def wide_flag_load(self, va, vd):
        return (f"buffer_load_dwordx2 v[{vd}:{vd+1}], {va}, {WS}, 0 offen sc1\n"
                f"buffer_load_dwordx2 v[{vd+2}:{vd+3}], {va}, {WS}, 0 offen offset:{1 << FL} sc1")

    def verify(self, name, tags, t0, reload):
        a = self.a
        if opt('force', 0): a(f"v_mov_b32 v{tags[-1]}, 0\nv_mov_b32 v{tags[-1]-1}, 0")
        a(f"s_mov_b32 s62, 0\nL_ver_{name}:")
        for op, d in (("max", t0), ("min", t0 + 1)):
            rest = list(tags)
            cur = rest.pop(0)
            while rest:
                if len(rest) >= 2: a(f"v_{op}3_u32 v{d}, v{cur}, v{rest.pop(0)}, v{rest.pop(0)}")
                else: a(f"v_{op}_u32 v{d}, v{cur}, v{rest.pop(0)}")
                cur = d
            if cur != d: a(f"v_mov_b32 v{d}, v{cur}")
        a(f"""
        v_cmp_ne_u32 vcc, s80, v{t0}
        v_cmp_ne_u32 s[60:61], s80, v{t0+1}
        s_or_b64 vcc, vcc, s[60:61]
        s_cbranch_vccz L_ver_{name}_ok
        s_add_u32 s62, s62, 1
        s_cmp_gt_u32 s62, {SPIN}
        s_cbranch_scc1 L_ver_{name}_ok
        """)
        for t in reload: a(t)
        a(f"s_waitcnt vmcnt(0)\ns_branch L_ver_{name}\nL_ver_{name}_ok:")

    def poll(self, tag, wide=False, first_issued=False, va="v4", vd=6, later=0):
        a = self.a
        ld = (self.wide_flag_load(va, vd) if wide else
              f"buffer_load_dwordx2 v[{vd}:{vd+1}], {va}, {WS}, 0 offen sc1")
        a("s_mov_b32 s62, 0")
        if first_issued:
            a(f"s_waitcnt vmcnt({later})\ns_branch L_poll_{tag}_chk")
        a(f"L_poll_{tag}:\n{ld}\ns_waitcnt vmcnt(0)\nL_poll_{tag}_chk:")
        a(f"v_cmp_ne_u64 vcc, s[80:81], v[{vd}:{vd+1}]")
        if wide:
            a(f"v_cmp_ne_u64 s[60:61], s[80:81], v[{vd+2}:{vd+3}]\ns_or_b64 vcc, vcc, s[60:61]")
        a(f"""
        s_add_u32 s62, s62, 1
        s_cbranch_vccz L_poll_{tag}_ok
        s_cmp_gt_u32 s62, {SPIN}
        s_cbranch_scc1 L_poll_{tag}_ok
        s_sleep {opt('sleep', 6)}
        s_branch L_poll_{tag}
        L_poll_{tag}_ok:
        """)

    def tile_off(self, h):
        self.a(f"""
        s_lshl_b32 s60, {sM}, 16
        s_lshl_b32 s61, {sX}, 7
        s_add_u32 s60, s60, s61
        s_lshl_b32 s61, {h}, 15
        s_add_u32 s60, s60, s61
        v_lshrrev_b32 v8, 4, v1
        v_and_b32 v9, 15, v1
        v_lshlrev_b32 v2, 13, v8
        v_lshl_add_u32 v2, v9, 3, v2
        v_add_u32 v2, s60, v2
        v_add_u32 v5, 4096, v2
        """)

    def role_a(self):
        a = self.a
        self.tile_off(sWV)
        self.srd_words((2, 3))
        a(f"""
        v_subrev_u32 v3, 3072, v2
        s_lshl_b32 s62, {sX}, 9
        v_lshl_add_u32 v56, v9, 5, s62
        s_waitcnt lgkmcnt(0)
        """)
        self.stamp("s")
        for j in range(11):
            base, off = ("v3", j * 1024) if j < 3 else ("v2", (j - 3) * 1024) if j < 7 else ("v5", (j - 7) * 1024)
            a(f"buffer_load_dwordx2 {P(10+2*j)}, {base}, {K}, 0 offen offset:{off}{self.NT}")
        for j in range(8):
            base, off = ("v2", j * 1024) if j < 4 else ("v5", (j - 4) * 1024)
            a(f"buffer_load_dwordx2 {P(32+2*j)}, {base}, {V}, 0 offen offset:{off}{self.NT}")
        a(f"buffer_load_dwordx4 v[48:51], v56, {SK}, 0 offen\nbuffer_load_dwordx4 v[52:55], v56, {SK}, 0 offen offset:16")
        self.srd_words((11, 4, 0, 5, 6, 7, 10))
        a(f"v_mov_b32 v4, {WS_TAG}\nbuffer_load_dwordx2 v[254:255], v4, {WS}, 0 offen sc1")
        self.stamp("s")
        a(f"""
        s_lshl_b32 s60, {sX}, {18 + HINT}
        s_lshl_b32 s61, {sM}, {7 + HINT}
        s_sub_u32 s60, s60, s61
        s_lshl_b32 s61, {sWV}, {6 + HINT}
        s_sub_u32 s60, s60, s61
        s_add_u32 s60, s60, {WS_KVT + 63*(64 << HINT)}
        v_lshlrev_b32 v142, {14 + HINT}, v9
        v_add_u32 v142, s60, v142
        v_sub_u32 v56, 3, v8
        v_lshl_add_u32 v142, v56, 4, v142
        s_movk_i32 s64, {4096 << HINT}
        s_movk_i32 s65, {8192 << HINT}
        s_movk_i32 s66, {12288 << HINT}
        """)
        self.c_ids()
        self.filter_load()
        self.g1_ids(); self.g2_ids()
        self.stamp("s")
        if opt('warm', 0) == 1: self.warm((0, ["kv0", "fprep", "ufetch", "conv0"]), (1, ["kv1", "addr", "conv1"]))
        if opt('warm', 0) == 3: self.warm((0, ["kv0", "fprep"]), (1, ["kv1", "ufetch", "addr"]))
        self.stamp(); self.stamp("s")
        a("s_waitcnt vmcnt(8)")
        self.tag_ready()
        self.stamp(); self.stamp("s")
        for p in range(2):
            a.region(f"kv{p}")
            s0, s1 = 48 + 4 * p, 50 + 4 * p
            a(f"""
            v_lshlrev_b32 v102, 16, v{s0}
            v_lshlrev_b32 v103, 16, v{s1}
            v_and_b32 v104, 0xffff0000, v{s0}
            v_and_b32 v105, 0xffff0000, v{s1}
            v_lshlrev_b32 v106, 16, v{s0+1}
            v_lshlrev_b32 v107, 16, v{s1+1}
            v_and_b32 v108, 0xffff0000, v{s0+1}
            v_and_b32 v109, 0xffff0000, v{s1+1}
            """)
            for j in range(11):
                a(f"v_lshlrev_b32 v{80+2*j}, 16, v{10+2*j+p}\nv_and_b32 v{81+2*j}, 0xffff0000, v{10+2*j+p}")
            for i in range(8):
                a(f"v_lshlrev_b32 v{126+2*i}, 16, v{32+2*i+p}\nv_and_b32 v{127+2*i}, 0xffff0000, v{32+2*i+p}")
            for i in range(8): a(f"v_pk_mul_f32 {P(110+2*i)}, {P(80+2*i)}, {P(108)}")
            for i in range(8): a(f"v_pk_fma_f32 {P(110+2*i)}, {P(82+2*i)}, {P(106)}, {P(110+2*i)}")
            for i in range(8): a(f"v_pk_fma_f32 {P(110+2*i)}, {P(84+2*i)}, {P(104)}, {P(110+2*i)}")
            for i in range(8): a(f"v_pk_fma_f32 {P(110+2*i)}, {P(86+2*i)}, {P(102)}, {P(110+2*i)}")
            for i in range(8): a(f"v_pk_mul_f32 {P(110+2*i)}, {P(110+2*i)}, {P(126+2*i)}")
            o = 144 + 8 * p
            for j in range(4):
                a(f"v_cvt_pk_bf16_f32 v{o+j}, v{110+2*(7-2*j)}, v{110+2*(6-2*j)}")
                a(f"v_cvt_pk_bf16_f32 v{o+4+j}, v{111+2*(7-2*j)}, v{111+2*(6-2*j)}")
            so = ("0", "s64") if p == 0 else ("s65", "s66")
            a(f"buffer_store_dwordx4 {Q4(o)}, v142, {WS}, {so[0]} offen sc1\nbuffer_store_dwordx4 {Q4(o+4)}, v142, {WS}, {so[1]} offen sc1")
            for c in range(2 * HINT):
                r, x = o + 4 * c, 56 + 2 * p + c
                a(f"v_bitop3_b32 v{x}, v{r}, v{r+1}, v{r+2} bitop3:0x96\nv_xor_b32 v{x}, v{x}, v{r+3}")
        for sw in (("16", "32") if HINT else ()):
            for c in range(4): a(f"v_mov_b32 v{60+c}, v{56+c}")
            for c in range(4): a(f"v_permlane{sw}_swap_b32 v{56+c}, v{60+c}")
            for c in range(4): a(f"v_xor_b32 v{56+c}, v{56+c}, v{60+c}" if sw == "16" else f"v_bitop3_b32 v{56+c}, v{56+c}, v{60+c}, s80 bitop3:0x96")
        for so in (("0", "s64", "s65", "s66") if HINT else ()): a(f"buffer_store_dwordx4 v[56:59], v142, {WS}, {so} offen offset:64 sc1")
        self.stamp()

    def w1_touch(self, j):
        self.a(f"""
        s_lshl_b32 s60, {sM}, 1
        s_add_u32 s60, s60, {sWV}
        s_mul_i32 s60, s60, {8*3584}
        s_and_b32 s61, {sX}, 1
        s_mul_i32 s61, s61, 1792
        s_add_u32 s60, s60, s61
        s_movk_i32 s61, 4682
        v_add_u32 v250, {64*j}, v1
        v_min_u32 v250, 111, v250
        v_mul_u32_u24 v251, s61, v250
        v_lshrrev_b32 v251, 16, v251
        v_mul_u32_u24 v251, {3584 - 14*128}, v251
        v_lshl_add_u32 v251, v250, 7, v251
        buffer_load_dword v{248+j}, v251, {W1}, s60 offen{self.NTW1}
        """)

    def flag_a(self):
        a = self.a
        a(f"""
        s_lshl_b32 s60, {sX}, 5
        s_add_u32 s60, s60, {sM}
        s_lshl_b32 s60, s60, 1
        s_add_u32 s60, s60, {sWV}
        s_lshl_b32 s60, s60, {self.FA_LOG}
        s_add_u32 s60, s60, {FLAG_A}
        """)
        self.flag_store("s60", 1, 3, 250)
    FA_LOG = FL

    def filter_load(self):
        a = self.a
        a("s_lshl_b32 s60, s68, 12\nv_lshl_add_u32 v4, v1, 4, s60")
        for i in range(4):
            r = 176 + 8 * i
            a(f"buffer_load_dwordx4 {Q4(r)}, v4, {FK}, 0 offen offset:{1024*i}{self.NTF}")
            a(f"buffer_load_dwordx2 {P(r+4)}, v4, {FK}, 0 offen offset:{1024*i+16}{self.NTF}")

    def role_b_loads(self):
        a = self.a
        a(f"s_sub_u32 s6, {sWV}, 2")
        self.c_ids()
        self.filter_load()
        self.g1_ids(); self.g2_ids()

    def role_b_loads_gemv(self):
        a = self.a
        a(f"""
        v_lshrrev_b32 v8, 2, v1
        v_and_b32 v14, 3, v1
        s_and_b32 s60, s2, 3
        s_lshl_b32 s60, s60, 7
        v_lshl_add_u32 v2, v8, 3, s60
        v_lshlrev_b32 v3, 1, v2
        buffer_load_dwordx4 v[164:167], v3, {C}, 0 offen
        s_movk_i32 s61, 6144
        v_mul_lo_u32 v3, v2, s61
        v_lshl_add_u32 v3, v14, 4, v3
        s_lshr_b32 s60, s2, 2
        s_lshl_b32 s60, s60, 7
        s_lshl_b32 s61, s6, 6
        s_add_u32 s60, s60, s61
        s_cmp_ge_u32 s2, 192
        s_cselect_b32 s60, 0x40000000, s60
        """)
        for j in range(8):
            a(f"buffer_load_dwordx4 {Q4(16+4*j)}, v3, {WM}, s60 offen{self.NT}")
            if j < 7: a("s_add_u32 s60, s60, 6144")

    def role_b_loads2(self):
        a = self.a
        a(f"""
        s_lshl_b32 s60, s2, 13
        s_lshl_b32 s61, s6, 12
        s_add_u32 s60, s60, s61
        v_lshrrev_b32 v3, 4, v1
        v_lshlrev_b32 v3, 10, v3
        v_and_b32 v4, 15, v1
        v_lshl_add_u32 v3, v4, 4, v3
        """)
        for j in range(4): a(f"buffer_load_dwordx4 {Q4(48+4*j)}, v3, {Q}, s60 offen offset:{256*j}{self.NTQ}")

    def unit_addr(self, sel=None):
        self.a(f"""
        s_lshl_b32 s61, s2, 1
        {sel or f"s_and_b32 s60, {sWV}, 1"}
        s_add_u32 s60, s60, s61
        s_lshr_b32 s20, s60, 3
        s_and_b32 s21, s60, 7
        s_mul_i32 s61, s20, 37
        s_lshr_b32 s61, s61, 8
        s_mul_i32 s62, s61, 7
        s_sub_u32 s62, s20, s62
        s_mul_i32 s61, s61, 224
        s_lshl_b32 s63, s62, 5
        s_add_u32 s22, s63, 16
        s_cmp_ge_u32 s62, 3
        s_cselect_b32 s63, s22, s63
        s_movk_i32 s22, {16*1024}
        s_cmp_eq_u32 s62, 6
        s_cselect_b32 s63, 96, s63
        s_cselect_b32 s22, {112*1024}, s22
        s_add_u32 s61, s61, s63
        s_lshl_b32 s61, s61, 10
        s_lshl_b32 s62, s21, 7
        s_add_u32 s61, s61, s62
        s_cmp_ge_u32 s60, 448
        s_cselect_b32 s23, 0x40000000, s61
        v_lshrrev_b32 v169, 2, v1
        v_lshlrev_b32 v169, 10, v169
        v_and_b32 v5, 3, v1
        v_lshl_add_u32 v169, v5, 4, v169
        """)

    def q_rows(self, h=sWV):
        a = self.a
        a(f"""
        s_mov_b32 s62, {h}
        s_cmp_eq_u32 s62, 0
        s_cselect_b32 s60, s71, s72
        s_lshl_b32 s60, s60, 19
        s_lshr_b32 s61, s70, 1
        s_lshl_b32 s61, s61, 4
        s_add_u32 s60, s60, s61
        s_lshl_b32 s61, s62, 13
        v_lshlrev_b32 v5, 10, v1
        """)
        for i in range(8):
            a(f"s_add_u32 m0, s61, {self.QS + 1024*i}")
            a(f"buffer_load_dwordx4 v5, {Q}, s60 offen lds")
            if i < 7: a("s_add_u32 s60, s60, 65536")

    def side_inputs(self):
        a = self.a
        a(f"""
        v_lshrrev_b32 v5, 1, v1
        v_mul_u32_u24 v5, 3584, v5
        v_and_b32 v6, 1, v1
        v_lshl_add_u32 v5, v6, 4, v5
        s_and_b32 s60, s2, 15
        s_mul_i32 s60, s60, 224
        s_lshr_b32 s61, s2, 4
        s_mul_i32 s61, s61, {32*3584}
        s_add_u32 s60, s60, s61
        s_lshl_b32 s61, {sWV}, 5
        s_add_u32 s60, s60, s61
        s_lshl_b32 s61, {sWV}, 11
        s_add_u32 m0, s61, {self.W1S}
        buffer_load_dwordx4 v5, {W1}, s60 offen{self.NTW1} lds
        s_add_u32 m0, s61, {self.W1S + 1024 - 128}
        buffer_load_dwordx4 v5, {W1}, s60 offen offset:128{self.NTW1} lds
        s_cmp_lt_u32 {sWV}, 2
        s_cselect_b32 s60, s71, s72
        s_lshl_b32 s60, s60, 4
        s_and_b32 s61, {sWV}, 1
        s_lshl_b32 s61, s61, 3
        s_add_u32 s43, s60, s61
        s_lshl_b32 s60, s43, 5
        v_lshl_add_u32 v5, v3, 5, v2
        v_add_u32 v5, s60, v5
        v_lshlrev_b32 v159, 4, v5
        v_add_u32 v159, {WS_STAT}, v159
        s_lshl_b32 s60, s68, 1
        v_mov_b32 v5, s60
        buffer_load_ushort v126, v5, {SD}, 0 offen
        """)

    def w2_half_addr(self):
        a = self.a
        self.unit_addr(f"s_lshr_b32 s60, {sWV}, 1")
        a(f"""
        s_and_b32 s60, {sWV}, 1
        s_lshl_b32 s60, s60, 6
        s_add_u32 s23, s23, s60
        s_lshl_b32 s60, {sWV}, 11
        s_add_u32 s44, s60, {self.W2S}
        v_lshrrev_b32 v174, 2, v1
        v_lshl_add_u32 v175, v3, 2, v174
        s_cmp_eq_u32 s22, {112*1024}
        s_cselect_b64 vcc, -1, 0
        s_movk_i32 s61, 1024
        s_cselect_b32 s61, 256, s61
        v_cndmask_b32 v174, v174, v175, vcc
        v_lshlrev_b32 v174, 6, v174
        v_and_b32 v175, 3, v1
        v_lshl_add_u32 v174, v175, 4, v174
        v_add_u32 v174, s44, v174
        v_add_u32 v175, s61, v174
        s_add_u32 s22, s22, s23
        s_mul_i32 s45, s21, 56
        s_add_u32 s45, s45, s20
        s_lshl_b32 s45, s45, 12
        s_and_b32 s61, {sWV}, 1
        s_lshl_b32 s61, s61, 11
        s_add_u32 s45, s45, s61
        s_add_u32 s45, s45, {WS_W2P}
        s_cmp_ge_u32 s20, 56
        s_cselect_b32 s45, 0x40000000, s45
        s_lshl_b32 s46, s2, 2
        s_add_u32 s46, s46, {sWV}
        s_lshl_b32 s46, s46, {FL}
        s_add_u32 s46, s46, {FLAG_B}
        """)

    def w2_unit_load(self):
        a = self.a
        self.unit_addr()
        a(f"s_lshl_b32 s61, s6, 12\ns_add_u32 s62, s23, s22")
        for c in range(2):
            for i in range(2):
                a(f"s_add_u32 m0, s61, {self.W2S + 2048*c + 1024*i - 64*c}")
                a(f"buffer_load_dwordx4 v169, {W2}, {'s23' if i == 0 else 's62'} offen offset:{64*c}{self.NT} lds")

    def w2_unit_pack(self, later):
        a = self.a
        a(f"""
        s_lshl_b32 s61, s6, 12
        s_add_u32 s60, s61, {self.W2S}
        v_lshrrev_b32 v10, 2, v1
        v_lshl_add_u32 v11, v3, 2, v10
        s_cmp_eq_u32 s22, {112*1024}
        s_cselect_b64 vcc, -1, 0
        s_movk_i32 s61, 1024
        s_cselect_b32 s61, 256, s61
        v_cndmask_b32 v10, v10, v11, vcc
        v_lshlrev_b32 v10, 6, v10
        v_and_b32 v11, 3, v1
        v_lshl_add_u32 v10, v11, 4, v10
        v_add_u32 v10, s60, v10
        v_add_u32 v11, s61, v10
        v_lshlrev_b32 v12, 4, v1
        s_mul_i32 s63, s21, 56
        s_add_u32 s63, s63, s20
        s_lshl_b32 s63, s63, 12
        s_add_u32 s63, s63, {WS_W2P}
        s_cmp_ge_u32 s20, 56
        s_cselect_b32 s63, 0x40000000, s63
        s_waitcnt vmcnt({later})
        """)
        for dt in range(4):
            o = 2048 * (dt >> 1) + 8 * (dt & 1)
            a(f"ds_read_b64_tr_b16 {P(16+4*dt)}, v10 offset:{o}\nds_read_b64_tr_b16 {P(18+4*dt)}, v11 offset:{o}")
        a("s_waitcnt lgkmcnt(0)")
        for dt in range(4): a(f"buffer_store_dwordx4 {Q4(16+4*dt)}, v12, {WS}, s63 offen offset:{1024*dt} sc1")

    CSZ = 4160
    QS = 32768 + 69632
    W1S = 32768 + 112640
    W2S = 32768 + 120832
    GVS = 32768 + 129024
    def filter_copies(self):
        a = self.a
        a(f"""
        s_mul_i32 s60, {sWV}, {4*self.CSZ}
        s_add_u32 s60, s60, {self.WB}
        v_lshl_add_u32 v4, v1, 4, s60
        v_mov_b32 v100, 0
        v_mov_b32 v101, 0
        v_mov_b32 v102, 0
        v_mov_b32 v103, 0
        s_mov_b64 s[62:63], exec
        s_mov_b64 exec, 15
        """)
        for c in range(4): a(f"ds_write_b128 v4, v[100:103] offset:{c*self.CSZ}")
        a("s_mov_b64 exec, s[62:63]")
        for cc in range(1):
            for i in range(4):
                r = 176 + 8 * (4 * cc + i)
                t = 104 + 12 * (i % 2)
                o = cc * 4 * self.CSZ + 64 + 1024 * i
                pass
                a(f"ds_write_b128 v4, {Q4(r)} offset:{o}")
                for j in range(4): a(f"v_alignbit_b32 v{t+j}, v{r+j+1}, v{r+j}, 16")
                for j in range(4): a(f"v_mov_b32 v{t+4+j}, v{r+j+1}")
                for j in range(4): a(f"v_alignbit_b32 v{t+8+j}, v{r+j+2}, v{r+j+1}, 16")
                for k in range(3): a(f"ds_write_b128 v4, {Q4(t+4*k)} offset:{o + (k+1)*self.CSZ}")
                if i == 0:
                    a(f"""
                    v_lshlrev_b32 v128, 16, v{r}
                    s_mov_b64 exec, 1
                    ds_write_b32 v4, v128 offset:{o + self.CSZ - 4}
                    ds_write_b32 v4, v{r} offset:{o + 2*self.CSZ - 4}
                    ds_write_b32 v4, v128 offset:{o + 3*self.CSZ - 8}
                    ds_write_b32 v4, v{t} offset:{o + 3*self.CSZ - 4}
                    s_mov_b64 exec, s[62:63]
                    """)

    def role_b_rest(self, later, after_wait=None):
        a = self.a
        self.stamp("b")
        a(f"s_waitcnt vmcnt({later + 12})")
        self.tag_ready()
        for j in range(4): a(f"v_lshlrev_b32 v{100+2*j}, 16, v{164+j}\nv_and_b32 v{101+2*j}, 0xffff0000, v{164+j}")
        for j in range(8): a(f"v_mul_f32 v{108+j}, {NLOG2E}, v{100+j}")
        for j in range(8): a(f"v_exp_f32 v{108+j}, v{108+j}")
        for j in range(8): a(f"v_add_f32 v{108+j}, 1.0, v{108+j}")
        for j in range(8): a(f"v_rcp_f32 v{108+j}, v{108+j}")
        for j in range(8): a(f"v_mul_f32 v{108+j}, v{100+j}, v{108+j}")
        for j in range(4): a(f"v_cvt_pk_bf16_f32 v{100+j}, v{108+2*j}, v{109+2*j}")
        for j in range(4): a(f"v_lshlrev_b32 v{108+2*j}, 16, v{100+j}\nv_and_b32 v{109+2*j}, 0xffff0000, v{100+j}")
        self.stamp("b")
        a(f"s_waitcnt vmcnt({later + 4})")
        if after_wait: after_wait()
        self.stamp("b")
        for j in range(8):
            for e in range(4):
                a(f"v_lshlrev_b32 v{116+2*e}, 16, v{16+4*j+e}\nv_and_b32 v{117+2*e}, 0xffff0000, v{16+4*j+e}")
            sel = "op_sel_hi:[1,0,1]" if j % 2 == 0 else "op_sel:[0,1,0] op_sel_hi:[1,1,1]"
            for e in range(4):
                if j == 0: a(f"v_pk_mul_f32 {P(124+2*e)}, {P(116+2*e)}, {P(108)} op_sel_hi:[1,0]")
                else: a(f"v_pk_fma_f32 {P(124+2*e)}, {P(116+2*e)}, {P(108+2*(j//2))}, {P(124+2*e)} {sel}")
        for n in (4, 8):
            for e in range(8): a(f"v_add_f32_dpp v{124+e}, v{124+e}, v{124+e} row_ror:{n} row_mask:0xf bank_mask:0xf")
        a(f"""
        s_lshl_b32 s60, s6, 9
        s_add_u32 s60, s60, {self.GVS}
        v_lshl_add_u32 v116, v3, 7, s60
        v_and_b32 v117, 3, v1
        v_lshl_add_u32 v116, v117, 5, v116
        ds_write_b128 v116, v[124:127]
        ds_write_b128 v116, v[128:131] offset:16
        v_and_b32 v117, 31, v1
        v_lshlrev_b32 v117, 2, v117
        v_add_u32 v116, s60, v117
        ds_read_b32 v120, v116
        ds_read_b32 v121, v116 offset:128
        ds_read_b32 v122, v116 offset:256
        ds_read_b32 v123, v116 offset:384
        s_waitcnt vmcnt({self.n_after})
        s_and_b32 s60, s2, 3
        s_mul_i32 s60, s60, {MODP}
        s_lshr_b32 s61, s2, 2
        s_lshl_b32 s61, s61, 9
        s_add_u32 s60, s60, s61
        s_lshl_b32 s61, s6, 8
        s_add_u32 s60, s60, s61
        s_add_u32 s60, s60, {WS_MOD}
        s_cmp_ge_u32 s2, 192
        s_cselect_b32 s60, 0x40000000, s60
        v_lshlrev_b32 v117, 1, v117
        s_waitcnt lgkmcnt(0)
        v_add_f32 v120, v120, v121
        v_add_f32 v122, v122, v123
        v_add_f32 v120, v120, v122
        v_mov_b32 v121, s80
        s_mov_b32 exec_hi, 0
        buffer_store_dwordx2 v[120:121], v117, {WS}, s60 offen sc1
        s_mov_b32 exec_hi, -1
        """)
        self.stamp("b")
        a.region("brest1")
        self.role_b_tail()

    def role_b_tail(self):
        a = self.a
        for j in range(16): a(f"v_lshlrev_b32 v{100+2*j}, 16, v{48+j}\nv_and_b32 v{101+2*j}, 0xffff0000, v{48+j}")
        for j in range(8): a(f"v_pk_add_f32 {P(132+2*j)}, {P(100+4*j)}, {P(102+4*j)}")
        for st in (4, 2, 1):
            for j in range(st): a(f"v_pk_add_f32 {P(132+2*j)}, {P(132+2*j)}, {P(132+2*(j+st))}")
        a("v_add_f32 v132, v132, v133")
        for n in (8, 4, 2, 1): a(f"v_add_f32_dpp v132, v132, v132 row_ror:{n} row_mask:0xf bank_mask:0xf")
        a("v_mul_f32 v148, 0xbb000000, v132")
        for j in range(16): a(f"v_pk_add_f32 {P(100+2*j)}, {P(100+2*j)}, {P(148)} op_sel_hi:[1,0]")
        for j in range(4): a(f"v_pk_mul_f32 {P(132+2*j)}, {P(100+2*j)}, {P(100+2*j)}")
        for j in range(4, 16): a(f"v_pk_fma_f32 {P(132+2*(j&3))}, {P(100+2*j)}, {P(100+2*j)}, {P(132+2*(j&3))}")
        a(f"v_pk_add_f32 {P(132)}, {P(132)}, {P(134)}\nv_pk_add_f32 {P(136)}, {P(136)}, {P(138)}\nv_pk_add_f32 {P(132)}, {P(132)}, {P(136)}\nv_add_f32 v132, v132, v133")
        for n in (8, 4, 2, 1): a(f"v_add_f32_dpp v132, v132, v132 row_ror:{n} row_mask:0xf bank_mask:0xf")
        a(f"""
        v_mov_b32 v133, 0x3727c5ac
        v_fmac_f32 v133, 0x3b000000, v132
        v_rsq_f32 v136, v133
        s_lshl_b32 s60, s2, 7
        s_lshl_b32 s61, s6, 6
        s_add_u32 s60, s60, s61
        s_add_u32 s60, s60, {WS_STAT}
        v_mov_b32 v137, s80
        v_mov_b32 v139, s80
        v_mul_f32 v138, v148, v136
        v_lshlrev_b32 v134, 4, v3
        s_mov_b32 exec_lo, 0x00010001
        s_mov_b32 exec_hi, 0x00010001
        buffer_store_dwordx4 v[136:139], v134, {WS}, s60 offen sc1
        s_mov_b64 exec, -1
        """)

    def flag_m(self, later):
        a = self.a
        a(f"""
        s_waitcnt vmcnt({later})
        s_lshl_b32 s60, s2, 1
        s_add_u32 s60, s60, s6
        s_lshl_b32 s60, s60, {FL}
        s_add_u32 s60, s60, {FLAG_B}
        """)
        self.flag_store("s60", 1, 9 + FL, 250)

    def filter_prep(self, mid):
        a = self.a
        a(f"""
        s_mul_i32 s73, {sWV}, {self.FSZ}
        s_add_u32 s73, s73, {self.FB}
        v_and_b32 v2, 15, v1
        v_lshrrev_b32 v3, 4, v1
        v_lshl_add_u32 v4, v1, 4, s73
        v_mov_b32 v6, 0
        v_mov_b32 v7, 0
        v_mov_b32 v8, 0
        v_mov_b32 v9, 0
        v_add_u32 v5, 1, v2
        v_and_b32 v10, 3, v5
        v_mul_u32_u24 v10, {self.CSZ}, v10
        v_and_b32 v5, 28, v5
        v_lshl_add_u32 v5, v5, 1, v10
        v_and_b32 v10, 1, v3
        v_lshl_add_u32 v5, v10, 4, v5
        s_mul_i32 s60, {sWV}, {4*self.CSZ}
        s_add_u32 s60, s60, {self.WB}
        v_add_u32 v5, s60, v5
        v_lshrrev_b32 v10, 1, v3
        s_add_u32 s60, s71, 1
        s_lshl_b32 s60, s60, 9
        s_add_u32 s61, s72, 1
        s_lshl_b32 s61, s61, 9
        v_mad_u32_u24 v11, v10, s60, v5
        v_mad_u32_u24 v12, v10, s61, v5
        v_add_u32 v15, s60, v11
        v_subrev_u32 v12, s60, v12
        s_cmp_eq_u32 s69, 0
        s_cselect_b64 vcc, -1, 0
        v_cndmask_b32 v13, v11, v12, vcc
        """)
        for n in range(81):
            if n == opt('fa', 10): mid()
            b = "v11" if n < 16 else "v13" if n < 32 else "v12"
            a(f"ds_read_b64 {self.Fhalf(n,0)}, {b} offset:{32*n}")
            a(f"ds_read_b64 {self.Fhalf(n,1)}, {b} offset:{32*n+8}")
        a("ds_read_b64 v[244:245], v15\nds_read_b64 v[246:247], v15 offset:8")
        a(f"ds_write_b128 v4, v[6:9] offset:6144\ns_mov_b64 exec, {(1 << 26) - 1}\nds_write_b128 v4, v[6:9] offset:7168\ns_mov_b64 exec, -1")
        a(f"""
        v_sub_u32 v5, 63, v2
        v_mul_u32_u24 v5, 96, v5
        v_add_u32 v5, s73, v5
        s_mul_i32 s60, s71, {16*96}
        s_mul_i32 s61, s72, {16*96}
        v_subrev_u32 v156, s60, v5
        v_subrev_u32 v157, s61, v5
        v_and_b32 v6, 1, v3
        v_lshlrev_b32 v6, 4, v6
        v_lshrrev_b32 v7, 1, v3
        s_add_u32 s60, s71, 1
        s_mul_i32 s60, s60, 768
        s_add_u32 s61, s72, 1
        s_mul_i32 s61, s61, 768
        v_mad_u32_u24 v80, v7, s60, v156
        v_mad_u32_u24 v82, v7, s61, v157
        v_add_u32 v80, v80, v6
        v_add_u32 v82, v82, v6
        v_subrev_u32 v82, s60, v82
        s_cmp_eq_u32 s69, 0
        s_cselect_b64 vcc, -1, 0
        v_cndmask_b32 v81, v80, v82, vcc
        v_lshlrev_b32 v6, 3, v3
        v_sub_u32 v6, 24, v6
        v_add_u32 v156, v156, v6
        v_add_u32 v157, v157, v6
        """)

    def pre_conv(self):
        self.epi_addr(); self.g2_w2_addr(0); self.mod_addr(); self.cepi_addr()
        if W2L: self.w2_half_addr()
        L = self.w_stream(32, 0)
        for t in L[:L.index("WAIT")]: self.a(t.replace(" | ", "\n"))

    def u_addr(self):
        a = self.a
        a("s_movk_i32 s60, 10923")
        for j in range(3):
            a(f"""
            v_add_u32 v19, {64*j}, v1
            v_mul_u32_u24 v20, s60, v19
            v_lshrrev_b32 v20, 16, v20
            v_mul_u32_u24 v21, 6, v20
            v_sub_u32 v19, v19, v21
            v_min_u32 v19, 3, v19
            v_lshlrev_b32 v19, 4, v19
            v_lshl_add_u32 v{16+j}, v20, 6, v19
            """)
        a(f"s_lshl_b32 s64, s68, 12\ns_add_u32 s64, s64, {WS_KVT}\ns_add_u32 s65, s64, 2048")

    def u_wait(self):
        a = self.a
        a(f"""
        s_cmp_lg_u32 {sWV}, 0
        s_cbranch_scc1 L_u_nopoll
        s_lshl_b32 s60, {sX}, {6 + self.FA_LOG}
        s_add_u32 s60, s60, {FLAG_A}
        v_lshl_add_u32 v4, v1, {self.FA_LOG}, s60
        """)
        for i in range(opt('psa', 0)): a("s_sleep 4")
        if opt('t1', 0): a("s_cmp_eq_u32 s69, 1\ns_cselect_b32 exec_hi, 0xffff, -1")
        self.poll("A")
        if opt('t1', 0): a("s_mov_b32 exec_hi, -1")
        a("L_u_nopoll:")

    def u_fetch(self):
        a = self.a
        for j in (5, 4, 3, 2, 1, 0):
            if j == 0: a("s_cmp_eq_u32 s69, 1\ns_cbranch_scc1 L_u_short")
            a(f"s_add_u32 m0, s73, {1024*j}")
            a(f"buffer_load_dwordx4 v{16 + j%3}, {WS}, {'s64' if j < 3 else 's65'} offen sc1 lds")
        a("L_u_short:")
        if not WE:
            self.side_inputs()
            pre = self.epi_load_list() + self.mod_load_list(32) if opt('pre', 0) else []
            for t in pre: a(t)
            a(f"s_waitcnt vmcnt({3 + len(pre)})")
            return
        L = self.w_stream(32, 0)
        for t in L[L.index("WAIT"):]:
            if t == "WAIT": a("s_waitcnt vmcnt(5)")
            elif t == "VERIFY": self.verify("w", [33 + 2*i for i in range(8)], 24, self.mod_load_list(32))
            elif t == "GAP": a("s_waitcnt lgkmcnt(0)")
            else: a(t.replace(" | ", "\n"))
        a("s_waitcnt vmcnt(4)")

    def conv_main(self, hook):
        a = self.a
        D = 6
        off = lambda n: 96 * (n >> 1) + 32 * (n & 1)
        base = lambda n: "v80" if n < 16 else "v81" if n < 32 else "v82"
        Br = lambda n: Q4(48 + 4 * (n % 8))
        def rd(n):
            if n < 80: a(f"ds_read_b128 {Br(n)}, {base(n)} offset:{off(n)}")
        def step(n, c0="v[84:87]", c1="v[88:91]", d0="v[84:87]", d1="v[88:91]", a1=None):
            rd(n + D)
            a(f"s_waitcnt lgkmcnt({min(D, 79 - n)})")
            a(f"v_mfma_f32_16x16x32_bf16 {d0}, {self.Freg(n)}, {Br(n)}, {c0}")
            a(f"v_mfma_f32_16x16x32_bf16 {d1}, {a1 or self.Freg(n+1)}, {Br(n)}, {c1}")
        for n in range(D): rd(n)
        def boundary(n, ty):
            a(f"s_cmp_eq_u32 s69, {ty}\ns_cbranch_scc0 L_cb{n}_no")
            h = list(a.hist)
            step(n, d0="v[92:95]", d1="v[96:99]", a1="v[244:247]")
            step(n + 1, c0="0", c1="0")
            a(f"s_branch L_cb{n}_done\nL_cb{n}_no:")
            a.hist = h
            step(n); step(n + 1)
            a(f"L_cb{n}_done:")
            hook(n); hook(n + 1)
        step(0, c0="0", c1="0"); hook(0)
        for n in range(1, 15): step(n); hook(n)
        boundary(15, 0)
        for n in range(17, 31): step(n); hook(n)
        boundary(31, 1)
        for n in range(33, 80): step(n); hook(n)

    def epi_addr(self):
        self.a(f"""
        v_and_b32 v161, 3, v1
        s_movk_i32 s60, {MODP}
        v_mul_u32_u24 v161, s60, v161
        v_bfe_u32 v5, v1, 2, 2
        v_lshl_add_u32 v161, v5, 12, v161
        v_lshl_add_u32 v161, v3, 3, v161
        s_lshl_b32 s60, s70, 5
        s_add_u32 s60, s60, {WS_MOD}
        v_add_u32 v161, s60, v161
        s_mul_i32 s60, {sWV}, 112
        s_add_u32 s60, s60, s77
        s_lshl_b32 s60, s60, {FL + W2L}
        s_add_u32 s60, s60, {FLAG_B}
        v_and_b32 v5, 15, v1
        v_min_u32 v5, 13, v5
        v_lshl_add_u32 v248, v5, {FL + 3 + W2L}, s60
        v_bfe_u32 v5, v1, 4, 1
        v_mul_u32_u24 v5, {W2L << FL}, v5
        v_add_u32 v248, v248, v5
        """)

    def epi_load_list(self):
        L = [f"buffer_load_dwordx2 v[124:125], v161, {WS}, 0 offen sc1"]
        for i in range(4):
            L.append(f"buffer_load_dwordx4 {Q4(108+4*i)}, v159, {WS}, 0 offen offset:{2048*(i>>1) + 256*(i&1)} sc1")
        return L

    def cepi_addr(self):
        xi, RS = self.XI, self.XI_RS
        self.a(f"""
        s_mul_i32 s60, {sWV}, {RS}
        s_add_u32 s60, s60, {xi}
        v_mul_u32_u24 v150, 144, v3
        v_lshl_add_u32 v150, v2, 3, v150
        v_add_u32 v150, s60, v150
        s_lshr_b32 s60, {sWV}, 1
        s_and_b32 s61, {sWV}, 1
        s_mul_i32 s62, s60, 1152
        s_lshl_b32 s63, s61, 6
        s_add_u32 s62, s62, s63
        s_add_u32 s62, s62, {xi}
        v_bfe_u32 v151, v1, 2, 2
        v_mul_u32_u24 v151, {RS}, v151
        v_and_b32 v5, 3, v1
        v_mul_u32_u24 v5, 144, v5
        v_add3_u32 v151, v151, v5, s62
        v_lshl_add_u32 v151, v3, 3, v151
        s_lshl_b32 s60, {sWV}, 12
        s_and_b32 s61, s70, 1
        s_lshl_b32 s61, s61, 3
        s_add_u32 s60, s60, s61
        s_add_u32 s60, s60, {self.QS}
        v_lshl_add_u32 v152, v3, 5, v2
        v_lshl_add_u32 v152, v152, 4, s60
        s_cmp_lt_u32 {sWV}, 2
        s_cselect_b32 s60, s71, s72
        s_lshl_b32 s60, s60, 4
        s_and_b32 s61, {sWV}, 1
        s_lshl_b32 s61, s61, 3
        s_add_u32 s60, s60, s61
        s_lshl_b32 s66, s60, 15
        s_lshl_b32 s61, s70, 8
        s_add_u32 s66, s66, s61
        s_add_u32 s66, s66, {WS_X1}
        s_add_u32 s67, s66, {4*32768}
        v_lshlrev_b32 v153, 15, v3
        v_lshl_add_u32 v153, v2, 4, v153
        """)

    def e_stream(self):
        L = ["EWAIT", "EVERIFY",
             "v_add_f32_dpp v124, v124, v124 quad_perm:[1,0,3,2] row_mask:0xf bank_mask:0xf",
             f"s_lshl_b32 s63, {sWV}, 4 | s_add_u32 s63, s63, 8",
             "v_add_f32_dpp v124, v124, v124 quad_perm:[2,3,0,1] row_mask:0xf bank_mask:0xf",
             "v_lshlrev_b32 v148, 16, v126",
             "v_cvt_pk_bf16_f32 v124, v124, v124", "v_and_b32 v124, 0xffff0000, v124",
             "v_add_f32 v125, 1.0, v124", "v_cvt_pk_bf16_f32 v125, v125, v125", "v_and_b32 v125, 0xffff0000, v125",
             "v_readlane_b32 s63, v124, s63"]
        for c in range(4): L += [f"v_readlane_b32 s{24+c}, v125, {16*c+4}", f"v_readlane_b32 s{28+c}, v124, {16*c}"]
        L.append("v_mov_b32 v149, s63")
        for c in range(8): L.append(f"v_mov_b32 v{128+c}, s{24+c}")
        for sl in range(2):
            for t in range(2): L.append(f"ds_read_b64 {P(140+4*sl+2*t)}, v{156+sl} offset:{32-32*t}")
        return L

    def conv_epilogue(self):
        a = self.a
        for sl in range(2):
            for t in range(2):
                i = 2 * sl + t
                acc = (92 if sl == 0 else 84) + 4 * t
                kv, w = 140 + 2 * i, 160 + 4 * (i & 1)
                a(f"""
                v_and_b32 v{w}, 0xffff0000, v{kv+1}
                v_lshlrev_b32 v{w+1}, 16, v{kv+1}
                v_and_b32 v{w+2}, 0xffff0000, v{kv}
                v_lshlrev_b32 v{w+3}, 16, v{kv}
                v_pk_fma_f32 {P(w)}, {P(w)}, {P(148)}, {P(acc)} op_sel_hi:[1,0,1]
                v_pk_fma_f32 {P(w+2)}, {P(w+2)}, {P(148)}, {P(acc+2)} op_sel_hi:[1,0,1]
                v_pk_mul_f32 {P(w)}, {P(w)}, {P(148)} op_sel:[0,1] op_sel_hi:[1,1]
                v_pk_mul_f32 {P(w+2)}, {P(w+2)}, {P(148)} op_sel:[0,1] op_sel_hi:[1,1]
                v_cvt_pk_bf16_f32 v{168+2*(i&1)}, v{w}, v{w+1}
                v_cvt_pk_bf16_f32 v{169+2*(i&1)}, v{w+2}, v{w+3}
                ds_write_b64 v150, {P(168+2*(i&1))} offset:{1152*sl + 576*t}
                """)
        a(f"""
        s_waitcnt lgkmcnt(0)
        s_barrier
        ds_read_b64 v[100:101], v152
        ds_read_b64 v[102:103], v152 offset:256
        ds_read_b64 v[104:105], v152 offset:2048
        ds_read_b64 v[106:107], v152 offset:2304
        ds_read_b64_tr_b16 v[160:161], v151
        ds_read_b64_tr_b16 v[162:163], v151 offset:576
        ds_read_b64_tr_b16 v[164:165], v151 offset:32
        ds_read_b64_tr_b16 v[166:167], v151 offset:{576+32}
        """)
        for i in range(4):
            q, A, u = 100 + 2 * i, 108 + 4 * i, 64 + 8 * i
            a(f"""
            s_waitcnt lgkmcnt({7-i})
            v_lshlrev_b32 v{u}, 16, v{q}
            v_and_b32 v{u+1}, 0xffff0000, v{q}
            v_lshlrev_b32 v{u+2}, 16, v{q+1}
            v_and_b32 v{u+3}, 0xffff0000, v{q+1}
            v_pk_fma_f32 {P(u+4)}, {P(u)}, {P(A)}, {P(A+2)} op_sel_hi:[1,0,0]
            v_pk_fma_f32 {P(u+6)}, {P(u+2)}, {P(A)}, {P(A+2)} op_sel_hi:[1,0,0]
            v_pk_fma_f32 {P(u+4)}, {P(u+4)}, {P(128)}, {P(132)}
            v_pk_fma_f32 {P(u+6)}, {P(u+6)}, {P(130)}, {P(134)}
            """)
            if i & 1:
                for j in (i - 1, i):
                    y, uu, w = 160 + 2 * j, 64 + 8 * j, 140 + 4 * (j & 1)
                    a(f"""
                    s_waitcnt lgkmcnt({3-j})
                    v_lshlrev_b32 v{w}, 16, v{y}
                    v_and_b32 v{w+1}, 0xffff0000, v{y}
                    v_lshlrev_b32 v{w+2}, 16, v{y+1}
                    v_and_b32 v{w+3}, 0xffff0000, v{y+1}
                    v_pk_fma_f32 {P(uu)}, {P(uu+4)}, {P(w)}, {P(uu)}
                    v_pk_fma_f32 {P(uu+2)}, {P(uu+6)}, {P(w+2)}, {P(uu+2)}
                    v_cvt_pk_bf16_f32 v{y}, v{uu}, v{uu+1}
                    v_cvt_pk_bf16_f32 v{y+1}, v{uu+2}, v{uu+3}
                    """)
                a(f"buffer_store_dwordx4 {Q4(160+2*(i-1))}, v153, {WS}, s{66 + (i>>1)} offen sc1")

    def g2_epi_load(self):
        a = self.a
        a(f"""
        s_lshl_b32 s60, s77, 9
        s_add_u32 s60, s60, {WS_MOD + 5*4096}
        v_lshl_add_u32 v18, v1, 3, s60
        """)
        self.gb_loads = [f"buffer_load_dwordx2 {P((10, 16, 28, 30)[k])}, v18, {WS}, {so} offen sc1" for k, so in enumerate(("0", "s12", "s13", "s14"))]
        for t in self.gb_loads: a(t)
        a(f"""
        s_lshl_b32 s60, s76, 1
        s_lshr_b32 s61, {sWV}, 1
        s_add_u32 s60, s60, s61
        s_lshl_b32 s60, s60, 15
        s_lshl_b32 s61, s77, 12
        s_add_u32 s60, s60, s61
        s_and_b32 s61, {sWV}, 1
        s_lshl_b32 s61, s61, 3
        s_add_u32 s60, s60, s61
        s_add_u32 s60, s60, {WS_X1}
        v_lshlrev_b32 v19, 9, v3
        v_lshl_add_u32 v19, v2, 4, v19
        """)
        for p in range(2):
            for h in range(2):
                a(f"buffer_load_dwordx2 {P(20+4*p+2*h)}, v19, {WS}, s60 offen offset:{2048*p + 256*h} sc1")

    def g2_epi_pre(self, tb):
        a = self.a
        self.verify("g", [11, 17, 29, 31], 4, self.gb_loads)
        a(f"""
        v_add_f32 v4, v10, v16
        v_add_f32 v7, v28, v30
        v_add_f32 v4, v4, v7
        v_cvt_pk_bf16_f32 v4, v4, v4
        v_and_b32 v4, 0xffff0000, v4
        s_lshl_b32 s60, {sWV}, 8
        s_add_u32 s60, s60, {tb}
        v_lshl_add_u32 v5, v1, 2, s60
        ds_write_b32 v5, v4
        v_lshl_add_u32 v5, v3, 5, s60
        """)
        for p in range(2):
            for h in range(2):
                a(f"ds_read_b128 a[{224+8*p+4*h}:{227+8*p+4*h}], v5 offset:{128*p + 16*h}")
        a("s_waitcnt lgkmcnt(0)")

    def g1_ids(self):
        F = opt('g1f', 1)
        self.a(f"""
        s_lshr_b32 s74, {sX}, {F}
        s_lshl_b32 s74, s74, {1 + F}
        s_lshr_b32 s60, {sM}, {4 - F}
        s_add_u32 s74, s74, s60
        s_and_b32 s75, {sX}, {(1 << F) - 1}
        s_lshl_b32 s75, s75, {4 - F}
        s_and_b32 s60, {sM}, {(16 >> F) - 1}
        s_add_u32 s75, s75, s60
        """)

    def w1_addr(self, r0):
        self.a(f"""
        v_mul_u32_u24 v5, 3584, v3
        v_lshlrev_b32 v6, 1, v3
        v_xor_b32 v6, v6, v2
        v_lshl_add_u32 v{r0}, v6, 4, v5
        v_xor_b32 v6, 8, v6
        v_lshl_add_u32 v{r0+1}, v6, 4, v5
        s_mul_i32 s7, s75, 224
        s_and_b32 s7, s7, -64
        s_and_b32 s16, {sM}, 7
        s_lshl_b32 s16, s16, 1
        s_lshr_b32 s61, {sM}, 3
        s_lshl_b32 s61, s61, 2
        s_add_u32 s16, s16, s61
        s_mul_i32 s16, s16, {opt('rot1', 0)}
        s_and_b32 s16, s16, 15
        s_add_u32 s17, s7, {512*3584}
        s_lshl_b32 s61, {sWV}, 2
        s_add_u32 s61, s61, s16
        s_and_b32 s61, s61, 15
        s_mul_i32 s61, s61, {32*3584}
        s_add_u32 s7, s7, s61
        s_lshl_b32 s78, {sWV}, 15
        s_add_u32 s78, s78, {self.WB}
        """)

    def w1_one(self, r0, n):
        a = self.a
        a(f"s_add_u32 m0, s78, {1024*n}")
        a(f"buffer_load_dwordx4 v{r0 + n%2}, {W1}, s7 offen lds")
        a(f"s_add_u32 s7, s7, {4*3584}")
        if n % 8 == 7: a(f"s_cmp_eq_u32 s7, s17\ns_cselect_b32 s60, {512*3584}, 0\ns_sub_u32 s7, s7, s60")

    def w2_touch(self, j):
        self.a(f"buffer_load_dword v{248+j}, v250, {WS}, 0 offen sc1" if j == 0 else
               f"buffer_load_dword v{248+j}, v251, {WS}, 0 offen sc1")

    def w2_touch_addr(self):
        self.a(f"""
        s_lshl_b32 s60, {sM}, 2
        s_add_u32 s60, s60, {sWV}
        s_mul_i32 s60, s60, {112*128}
        s_add_u32 s60, s60, {WS_W2P}
        v_lshl_add_u32 v250, v1, 7, s60
        v_add_u32 v5, 64, v1
        v_min_u32 v5, 111, v5
        v_lshl_add_u32 v251, v5, 7, s60
        """)

    def mod_addr(self):
        self.a(f"""
        s_lshr_b32 s60, s2, 4
        s_lshl_b32 s60, s60, 8
        s_add_u32 s60, s60, {WS_MOD + 3*4096}
        v_lshl_add_u32 v172, v2, 4, s60
        v_and_b32 v5, 1, v3
        v_lshl_add_u32 v172, v5, 12, v172
        s_movk_i32 s12, {MODP}
        s_mov_b32 s13, {2*MODP}
        s_mov_b32 s14, {3*MODP}
        """)

    def mod_load_list(self, r0):
        L = []
        for k, so in enumerate(("0", "s12", "s13", "s14")):
            L.append(f"buffer_load_dwordx4 {Q4(r0+4*k)}, v172, {WS}, {so} offen sc1")
        return L

    def g2_w2_addr(self, k0):
        self.a(f"""
        s_mul_i32 s79, s77, 56
        s_mul_i32 s61, {sWV}, 14
        s_add_u32 s79, s79, s61
        s_lshl_b32 s79, s79, 12
        s_add_u32 s79, s79, {WS_W2P}
        s_add_u32 s97, s79, {14*4096}
        s_lshl_b32 s18, s77, 1
        s_lshr_b32 s61, {sM}, 3
        s_mul_i32 s61, s61, 7
        s_lshr_b32 s61, s61, 1
        s_add_u32 s18, s18, s61
        s_mul_i32 s18, s18, {opt('rot2', 0)}
        s_cmp_ge_u32 s18, 14
        s_cselect_b32 s60, 14, 0
        s_sub_u32 s18, s18, s60
        s_lshl_b32 s18, s18, 12
        s_add_u32 s79, s79, s18
        v_lshlrev_b32 v9, 4, v1
        """)

    def g2_w2_one(self, i, v="v9"):
        self.a(f"buffer_load_dwordx4 a[{4*i}:{4*i+3}], {v}, {WS}, s79 offen offset:{1024*(i%4)} sc1")
        if i % 4 == 3:
            self.a(f"s_add_u32 s79, s79, 4096\ns_cmp_eq_u32 s79, s97\ns_cselect_b32 s60, {14*4096}, 0\ns_sub_u32 s79, s79, s60")

    def signal_all(self, base, replicas, tag):
        a = self.a
        a(f"""
        s_waitcnt vmcnt(0)
        s_barrier
        s_cmp_lg_u32 {sWV}, 0
        s_cbranch_scc1 L_sig{tag}_skip
        s_lshl_b32 s60, s2, {FL}
        s_add_u32 s60, s60, {base}
        """)
        self.flag_store("s60", replicas, 8 + FL)
        a(f"L_sig{tag}_skip:")

    def w_stream(self, r0, mod_wait):
        T = f"""
        v_lshrrev_b32 v14, 2, v1
        v_lshlrev_b32 v15, 5, v14
        v_and_b32 v12, 3, v1
        v_lshl_add_u32 v15, v12, 3, v15
        s_lshl_b32 s61, {sWV}, 11
        s_add_u32 s61, s61, {self.W1S}
        v_add_u32 v173, s61, v15
        v_and_b32 v10, 1, v3
        v_cvt_f32_u32 v11, v10
        v_xor_b32 v10, 1, v10
        v_lshlrev_b32 v10, 6, v10
        v_lshl_add_u32 v10, v2, 2, v10
        s_lshl_b32 s61, {sWV}, 7
        v_add_u32 v10, s61, v10
        v_lshl_add_u32 v14, v3, 3, s61
        v_and_b32 v15, 1, v1
        v_lshl_add_u32 v15, v15, 6, v14
        v_and_b32 v13, 1, v1
        v_lshlrev_b32 v13, 9, v13
        v_lshl_add_u32 v13, v3, 4, v13
        s_and_b32 s40, s2, 15
        s_lshl_b32 s40, s40, 4
        s_lshr_b32 s61, s2, 4
        s_add_u32 s40, s40, s61
        s_lshl_b32 s42, s40, 10
        s_lshl_b32 s61, {sWV}, 6
        s_add_u32 s42, s42, s61
        s_add_u32 s42, s42, {WS_UP}
        s_mul_i32 s40, s40, 7168
        s_lshl_b32 s61, {sWV}, 10
        s_add_u32 s40, s40, s61
        s_add_u32 s40, s40, {WS_W1P}
        s_add_u32 s41, s40, 4096
        s_cmp_eq_u32 {sWV}, 3 | s_cselect_b32 s41, 0x40000000, s41
        WAIT
        """
        L = [x.strip() for x in T.split("\n") if x.strip()]
        L += ["ds_read_b64_tr_b16 v[16:17], v173", "ds_read_b64_tr_b16 v[18:19], v173 offset:512",
              "ds_read_b64_tr_b16 v[20:21], v173 offset:1024", "ds_read_b64_tr_b16 v[22:23], v173 offset:1536", "VERIFY"]
        for e in (0, 2): L += [f"v_add_f32 v{r0+e}, v{r0+e}, v{r0+4+e}", f"v_add_f32 v{r0+8+e}, v{r0+8+e}, v{r0+12+e}"]
        for e in (0, 2): L.append(f"v_add_f32 v{r0+e}, v{r0+e}, v{r0+8+e}")
        L += [f"v_cvt_pk_bf16_f32 v{r0}, v{r0}, v{r0+2}",
              f"v_lshlrev_b32 v{r0+4}, 16, v{r0}", f"v_and_b32 v{r0+5}, 0xffff0000, v{r0}",
              f"v_add_f32 v{r0+4}, v11, v{r0+4}", f"v_add_f32 v{r0+5}, v11, v{r0+5}",
              f"v_cvt_pk_bf16_f32 v{r0}, v{r0+4}, v{r0+5}",
              f"ds_write_b32 v10, v{r0}",
              "ds_read_b64 v[24:25], v15", "ds_read_b64 v[26:27], v15 offset:32",
              "ds_read_b64 v[28:29], v14", "ds_read_b64 v[30:31], v14 offset:32", "GAP",
              "v_mfma_f32_16x16x32_bf16 v[164:167], v[16:19], v[24:27], 0",
              "v_mfma_f32_16x16x32_bf16 v[168:171], v[20:23], v[24:27], 0"]
        for e in range(4): L += [f"v_lshlrev_b32 v{r0+2*e}, 16, v{28+e}", f"v_and_b32 v{r0+2*e+1}, 0xffff0000, v{28+e}"]
        for f in range(2):
            for e in range(4):
                w = 16 + 4 * f + e
                t = r0 + 8 + 2 * (e % 2)
                L += [f"v_lshlrev_b32 v{t}, 16, v{w}", f"v_and_b32 v{t+1}, 0xffff0000, v{w}",
                      f"v_mul_f32 v{t}, v{t}, v{r0+2*e}", f"v_mul_f32 v{t+1}, v{t+1}, v{r0+2*e+1}",
                      f"v_cvt_pk_bf16_f32 v{w}, v{t}, v{t+1}"]
            L.append(f"buffer_store_dwordx4 {Q4(16+4*f)}, v9, {WS}, s{40+f} offen sc1")
        L.append(f"s_mov_b32 exec_lo, 0x00030003 | s_mov_b32 exec_hi, 0x00030003 | buffer_store_dwordx4 v[164:167], v13, {WS}, s42 offen sc1 | buffer_store_dwordx4 v[168:171], v13, {WS}, s42 offen offset:256 sc1 | s_mov_b64 exec, -1")
        return L

    UPS = 32768 + 114688
    def g1_addr(self):
        self.a(f"""
        s_lshl_b32 s64, s74, 2
        s_add_u32 s64, s64, {sWV}
        s_lshl_b32 s64, s64, 15
        s_add_u32 s64, s64, {WS_X1}
        s_lshl_b32 s65, s75, 4
        s_add_u32 s65, s65, {sWV}
        s_mul_i32 s65, s65, 7168
        s_add_u32 s65, s65, {WS_W1P}
        s_mul_i32 s66, {sWV}, 7168
        s_add_u32 s66, s66, {self.WB}
        s_lshl_b32 s67, s75, 2
        s_add_u32 s67, s67, {sWV}
        s_lshl_b32 s67, s67, 12
        s_add_u32 s67, s67, {WS_UP}
        s_mov_b32 s44, s64
        s_mul_i32 s45, s75, {16*7168}
        s_add_u32 s45, s45, {WS_W1P}
        v_lshlrev_b32 v8, 4, v1
        v_add_u32 v10, {self.WB}, v8
        v_add_u32 v11, 57344, v10
        v_lshlrev_b32 v248, 2, v0
        v_add_u32 v249, {self.UPS}, v248
        """)
        for r in range(12, 16): self.a(f"v_mov_b32 v{r}, 0x3f803f80")

    def silu_tile(self, ft, t, u1, u2, w, dst):
        a = self.a
        d, o = 192 + 8 * ft + 4 * t, 60 + 2 * t
        for h in range(2): a(f"v_pk_fma_f32 {P(w+2*h)}, {P(u1+2*h)}, {P(o)}, {P(u2+2*h)} op_sel:[0,1,0] op_sel_hi:[1,1,1]")
        for h in range(2): a(f"v_pk_fma_f32 {P(d+2*h)}, {P(d+2*h)}, {P(o)}, {P(w+2*h)} op_sel_hi:[1,0,1]")
        for r in range(4): a(f"v_exp_f32 v{w+r}, v{d+r}")
        for h in range(2): a(f"v_pk_fma_f32 {P(w+2*h)}, {P(w+2*h)}, {P(254)}, {P(254)} op_sel_hi:[1,0,0]")
        for r in range(4): a(f"v_rcp_f32 v{w+r}, v{w+r}")
        for h in range(2): a(f"v_pk_mul_f32 {P(d+2*h)}, {P(d+2*h)}, {P(w+2*h)}")
        for h in range(2): a(f"v_cvt_pk_bf16_f32 v{dst+h}, v{d+2*h}, v{d+2*h+1}")

    def pair_store(self, ft, t, c):
        a = self.a
        b = 192 + 8 * (ft - 1) + 4 * t
        a(f"buffer_store_dwordx4 {Q4(b)}, v8, {WS}, s44 offen offset:{1024*t} sc1")
        a(f"v_bitop3_b32 v{c}, v{c}, v{b}, v{b+1} bitop3:0x96\nv_bitop3_b32 v{c}, v{c}, v{b+2}, v{b+3} bitop3:0x96")

    def g1_run(self, side, nside, early=0, na=0):
        a = self.a
        ops = []
        def X(i):
            def f():
                a(f"buffer_load_dwordx4 {Q4(64+4*i)}, v8, {WS}, s64 offen offset:{i%4*1024} sc1")
                if i % 4 == 3: a("s_add_u32 s64, s64, 4096")
            return (("x", i), f)
        def W(gm, j):
            def f():
                if j % 4 == 0: a(f"s_add_u32 m0, s66, {gm*4*7168 + 1024*j}\ns_add_u32 s60, s65, {gm*4*7168 + 1024*j}")
                a(f"buffer_load_dwordx4 v8, {WS}, s60 offen offset:{1024*(j%4)} sc1 lds")
            return (("w", gm, j), f)
        def UPl(j):
            def f():
                if j == 0: a(f"s_lshl_b32 s60, {sWV}, 12\ns_add_u32 m0, s60, {self.UPS}")
                a(f"buffer_load_dwordx4 v8, {WS}, s67 offen offset:{1024*j} sc1 lds")
            return (("u", j), f)
        if early == "weights":
            for gm in range(4):
                for j in range(4): W(gm, j)[1]()
            for j in range(4): UPl(j)[1]()
            return
        if early:
            pre = opt('g1pre', 10)
            ops += [X(i) for i in range(pre)]
            rest = [X(i) for i in range(pre, 32)]
            sd = [(("s", i), side) for i in range(na)]
            while rest or sd:
                ops += rest[:2] + sd[:1]
                rest, sd = rest[2:], sd[1:]
        else:
            for gm in range(4):
                if gm == 2: ops += [UPl(j) for j in range(4)]
                ops += [W(gm, j) for j in range(4)]
                ops += [X(i) for i in range(8 * gm, 8 * gm + 8)]
        for gm in range(4): ops += [W(gm, j) for j in range(4, 7)]
        keys = [k for k, _ in ops]
        pos = [0]
        def issue(n=1):
            for _ in range(n):
                if pos[0] < len(ops): ops[pos[0]][1](); pos[0] += 1
        def wait(key):
            i = keys.index(key)
            while pos[0] <= i: issue()
            a(f"s_waitcnt vmcnt({pos[0] - 1 - i})")
        WBE = opt('wbe', 0)
        issue(opt('g1pre', 10 if early else 20))
        NR, D = 8, 7
        Wr = lambda n: 16 + 4 * (n % NR)
        def frag(n, k, ft):
            a(f"ds_read_b128 {Q4(Wr(n))}, {'v10' if k < 8 else 'v11'} offset:{(k % 8) * 7168 + 1024 * ft}")
        def rdA(n):
            if n < 64:
                k, ft = divmod(n, 4)
                if ft == 0 and k % 4 == 0 and not early:
                    wait(("w", k // 4, 3))
                    a("s_barrier")
                frag(n, k, ft)
        def rdB(n):
            if n < 48: frag(n, n // 3, 4 + n % 3)
        def swaps(k):
            x = 64 + 8 * k
            wait(("x", 2 * k + 1))
            a(f"v_swap_b32 v{x+2}, v{x+4}\nv_swap_b32 v{x+3}, v{x+5}")
        for n in range(D): rdA(n)
        swaps(0)
        tail = self.g1_tail_setup()
        EA, young = [opt('ea', 0)], [0]
        for k in range(16):
            x = 64 + 8 * k
            if k == 8: a.region("g1b")
            if k % 4 == 0: self.stamp("h")
            for ft in range(4):
                n = 4 * k + ft
                a(f"s_waitcnt lgkmcnt({min(D - 1, 63 - n)})")
                d = 192 + 8 * ft
                a(f"v_mfma_f32_16x16x32_bf16 {Q4(d)}, {Q4(Wr(n))}, {Q4(x)}, {'0' if k == 0 else Q4(d)}")
                if (ft == 0 if opt('pa', 1) else ft != 2) and pos[0] < len(ops) - WBE: issue()
                a(f"v_mfma_f32_16x16x32_bf16 {Q4(d+4)}, {Q4(Wr(n))}, {Q4(x+4)}, {'0' if k == 0 else Q4(d+4)}")
                if k == 9:
                    for j in range(4): a(f"ds_read_b32 v{224+4*ft+j}, v249 offset:{1024*(4*ft+j)}")
                if k == 12:
                    st = (8, 4, 2, 1)[ft]
                    for j in range(st): a(f"v_add_f32 v{224+j}, v{224+j}, v{224+j+st}")
                if k == 13 and ft == 0: a(f"v_mul_f32 v224, {NLOG2E}, v224\nds_write_b32 v248, v224 offset:{self.T_U}")
                rdA(n + D)
                if ft in (1, 2):
                    t = ft - 1
                    for j, A in ((0, "v[12:15]"), (1, Q4(x + 4 * t))):
                        d = 48 + 8 * t + 4 * j
                        a(f"v_mfma_f32_16x16x32_bf16 {Q4(d)}, {A}, {Q4(x+4*t)}, {'0' if k == 0 else Q4(d)}")
                        if opt('pa', 1) and j == 0 and pos[0] < len(ops) - WBE: issue()
                        if ft == 2 and j == 0 and k < 15: swaps(k + 1)
                        elif k >= 3 and k not in (9, 12):
                            for _ in range(2):
                                if tail: a(tail.pop(0))
        assert not tail
        self.stamp("h")
        a.region("g1c")
        if not WBE: wait(("w", 3, 6))
        a("s_waitcnt lgkmcnt(0)\ns_barrier")
        issue(opt('wbe0', 4) if WBE else 0)
        for ft in range(4):
            a(f"ds_read_b128 {Q4(16+8*ft)}, v4 offset:{self.T_U + 64*ft}\nds_read_b128 {Q4(20+8*ft)}, v4 offset:{self.T_U + 512 + 64*ft}")
        for t in range(2):
            g = 52 + 8 * t
            a(f"v_cndmask_b32 v{g}, v{g}, v{g+1}, s[20:21]\nv_cndmask_b32 v{g}, v{g}, v{g+2}, s[22:23]\nv_cndmask_b32 v{g}, v{g}, v{g+3}, s[40:41]")
            a(f"ds_bpermute_b32 v{g}, v5, v{g}")
        for t in range(2):
            sm = 48 + 8 * t
            a(f"v_mul_f32 v{sm}, 0x3b000000, v{sm}\nv_mul_f32 v{sm+1}, v{sm}, v{sm}\nv_mov_b32 v{sm+2}, 0x3b000000")
        a("s_waitcnt lgkmcnt(0)")
        for t in range(2):
            sm, g = 48 + 8 * t, 52 + 8 * t
            a(f"v_fma_f32 v{g}, v{g}, v{sm+2}, -v{sm+1}\nv_max_f32 v{g}, 0, v{g}\nv_add_f32 v{g}, 0x3727c5ac, v{g}\nv_rsq_f32 v{sm+3}, v{g}")
        for t in range(2):
            sm, o = 48 + 8 * t, 60 + 2 * t
            a(f"v_mul_f32 v{o+1}, -v{sm}, v{sm+3}\nv_mul_f32 v{o}, v254, v{sm+3}")
        for ft in range(4):
            for t in range(2):
                self.silu_tile(ft, t, 16 + 8 * ft, 20 + 8 * ft, 224 + 4 * t, 192 + 8 * (ft & ~1) + 4 * t + 2 * (ft & 1))
                if WBE and pos[0] < len(ops): issue(4)
                elif EA[0] > 0: side(); EA[0] -= 1; young[0] += 1
                if ft & 1: self.pair_store(ft, t, 252); young[0] += 1
            if ft & 1: a("s_add_u32 s44, s44, 4096")
            if ft == 2 and not WBE:
                for n in range(6): rdB(n)
        assert pos[0] == len(ops)
        a(f"buffer_store_dword v252, v6, {WS}, s46 offen sc1")
        if WBE:
            a(f"s_waitcnt vmcnt({young[0] + 1})\ns_barrier")
            for n in range(6): rdB(n)
        rdB(6)
        self.stamp("h")
        a.region("g1d")
        for k in range(16):
            x = 64 + 8 * k
            for j in range(3):
                n = 3 * k + j
                a(f"s_waitcnt lgkmcnt({min(D - 1, 47 - n)})")
                d = 224 + 8 * j
                a(f"v_mfma_f32_16x16x32_bf16 {Q4(d)}, {Q4(Wr(n))}, {Q4(x)}, {'0' if k == 0 else Q4(d)}")
                if k == 14: a(f"ds_read_b128 {Q4(64+8*j)}, v4 offset:{self.T_U + 64*(4+j)}")
                if n == opt('ht', -1): self.h_touch(0)
                if n % 2 == 0 and nside > 0: side(); nside -= 1
                elif nside == 0 and k >= opt('hk', 10) and self.g2_todo and (n % 2 == 0 or not opt('pb4', 0)):
                    if not self.g2_log: self.g2_run()
                    lim = {8: 6, 9: 6, 10: 10, 11: 10}.get(k, 16 if k < 12 else 99) if False else (6 if k < 8 else 10 if k < 10 else 16 if k < 12 else 99)
                    if len(self.g2_log) < lim:
                        a(self.g2_todo.pop(0)); self.g2_log.append("l")
                a(f"v_mfma_f32_16x16x32_bf16 {Q4(d+4)}, {Q4(Wr(n))}, {Q4(x+4)}, {'0' if k == 0 else Q4(d+4)}")
                if k == 14: a(f"ds_read_b128 {Q4(68+8*j)}, v4 offset:{self.T_U + 512 + 64*(4+j)}")
                rdB(n + D)

    def g1_tail_setup(self):
        T = f"""
        v_lshlrev_b32 v4, 4, v3
        v_lshrrev_b32 v5, 2, v2
        v_lshl_add_u32 v5, v5, 4, v2
        v_lshlrev_b32 v5, 2, v5
        v_and_b32 v6, 3, v1
        v_cmp_eq_u32 s[20:21], 1, v6
        v_cmp_eq_u32 s[22:23], 2, v6
        v_cmp_eq_u32 s[40:41], 3, v6
        s_lshl_b32 s44, s74, 1
        s_lshr_b32 s61, {sWV}, 1
        s_add_u32 s44, s44, s61
        s_lshl_b32 s46, s44, 4
        s_add_u32 s46, s46, s75
        s_lshr_b32 s47, s46, 1
        s_and_b32 s62, {sWV}, 1
        s_lshl_b32 s46, s46, 1
        s_add_u32 s46, s46, s62
        s_lshl_b32 s46, s46, 9
        s_add_u32 s46, s46, {WS_HC}
        s_lshl_b32 s47, s47, 1
        s_add_u32 s47, s47, s62
        s_lshl_b32 s47, s47, 9
        s_and_b32 s63, s75, 1
        s_lshl_b32 s61, s63, 8
        s_add_u32 s47, s47, s61
        s_add_u32 s47, s47, {WS_HM}
        s_mul_i32 s44, s44, 56
        s_lshr_b32 s61, s75, 1
        s_mul_i32 s61, s61, 7
        s_add_u32 s44, s44, s61
        s_lshl_b32 s44, s44, 12
        s_lshl_b32 s61, s62, 11
        s_add_u32 s44, s44, s61
        s_add_u32 s44, s44, {WS_H}
        s_lshl_b32 s61, s63, 9
        s_add_u32 s45, s44, s61
        s_add_u32 s45, s45, {6*4096}
        s_mul_i32 s61, s63, {3*4096}
        s_add_u32 s44, s44, s61
        v_and_b32 v6, 1, v3
        v_lshlrev_b32 v7, 10, v6
        v_lshl_add_u32 v7, v2, 4, v7
        v_lshrrev_b32 v250, 1, v3
        v_lshl_add_u32 v7, v250, 8, v7
        v_lshlrev_b32 v250, 7, v250
        v_lshl_add_u32 v250, v2, 3, v250
        v_lshl_add_u32 v250, v6, 2, v250
        s_lshl_b32 s61, s62, 4
        s_add_u32 s61, s61, 3
        s_add_u32 s63, s62, 5
        v_mul_u32_u24 v6, s63, v6
        v_add_u32 v6, s61, v6
        v_alignbit_b32 v251, s80, s80, v6
        s_mul_i32 s61, s62, 13
        v_mov_b32 v6, s61
        v_alignbit_b32 v252, s80, s80, v6
        v_mov_b32 v253, v252
        v_mov_b32 v254, {NLOG2E}
        v_lshlrev_b32 v6, 2, v1
        """
        return [x.strip() for x in T.split("\n") if x.strip()]

    def g1_epilogue(self, tb):
        a = self.a
        early = self.g2_todo
        def ld(n):
            for _ in range(n):
                if early: a(early.pop(0)); self.g2_log.append("l")
        ld(opt('g2b0', 6))
        a("s_waitcnt lgkmcnt(0)\nv_mov_b32 v184, v249")
        for ft in (6, 4, 5):
            if ft == 4: a.region("g1e1")
            u = 64 + 8 * (ft - 4)
            for t in range(2):
                self.silu_tile(ft, t, u, u + 4, 32 + 4 * t, 40 + 2 * t if ft == 6 else 224 + 4 * t + 2 * (ft & 1))
                ld(3)
                if ft == 5: self.pair_store(ft, t, 253); self.g2_log.append("s")
            if ft == 6:
                a("v_permlane16_swap_b32 v40, v42\nv_permlane16_swap_b32 v41, v43")
                a(f"buffer_store_dwordx4 v[40:43], v7, {WS}, s45 offen sc1")
                a("v_bitop3_b32 v251, v251, v40, v41 bitop3:0x96\nv_bitop3_b32 v251, v251, v42, v43 bitop3:0x96")
                a(f"buffer_store_dword v251, v250, {WS}, s47 offen sc1")
                self.g2_log += ["s", "s"]
        a(f"buffer_store_dword v253, v6, {WS}, s46 offen offset:256 sc1")
        self.g2_log.append("s")
        ld(99)

    def g2_run(self):
        a = self.a
        a(f"""
        s_mul_i32 s78, s76, 56
        s_mul_i32 s61, {sWV}, 14
        s_add_u32 s78, s78, s61
        s_lshl_b32 s78, s78, 12
        s_add_u32 s78, s78, {WS_H}
        s_lshl_b32 s16, s76, 2
        s_add_u32 s16, s16, {sWV}
        s_lshl_b32 s15, s16, 11
        s_add_u32 s15, s15, {WS_HM}
        s_lshl_b32 s16, s16, 12
        s_add_u32 s16, s16, {WS_HC}
        s_mov_b32 s60, s80
        s_mov_b32 s61, s80
        s_lshr_b64 s[62:63], s[60:61], 13
        s_xor_b32 s20, s80, s62
        s_lshr_b64 s[62:63], s[60:61], 3
        s_mov_b32 s21, s62
        s_lshr_b64 s[62:63], s[60:61], 8
        s_xor_b32 s21, s21, s62
        s_lshr_b64 s[62:63], s[60:61], 19
        s_xor_b32 s21, s21, s62
        s_lshr_b64 s[62:63], s[60:61], 25
        s_xor_b32 s21, s21, s62
        s_lshl_b32 s60, {sWV}, 10
        v_add_u32 v12, s60, v8
        v_add_u32 v13, 1024, v12
        v_add_u32 v14, 2048, v12
        v_add_u32 v15, 3072, v12
        v_and_b32 v13, 4095, v13
        v_and_b32 v14, 4095, v14
        v_and_b32 v15, 4095, v15
        v_lshlrev_b32 v9, 3, v1
        s_mov_b32 s19, 0
        """)

    def h_touch(self, late):
        a = self.a
        if not late:
            a(f"""
            s_mul_i32 s17, s76, 56
            s_mul_i32 s61, {sWV}, 14
            s_add_u32 s17, s17, s61
            s_lshl_b32 s17, s17, 12
            s_lshl_b32 s61, s77, 9
            s_add_u32 s17, s17, s61
            s_add_u32 s17, s17, {WS_H}
            v_bfe_u32 v248, v1, 2, 3
            v_lshlrev_b32 v248, 2, v248
            s_mov_b32 s61, 0xba874310
            v_lshrrev_b32 v248, v248, s61
            v_and_b32 v248, 15, v248
            v_lshlrev_b32 v248, 12, v248
            v_and_b32 v249, 3, v1
            v_lshl_add_u32 v248, v249, 7, v248
            buffer_load_dword v255, v248, {WS}, s17 offen sc1
            v_bfe_u32 v248, v1, 2, 3
            v_lshlrev_b32 v248, 2, v248
            s_mov_b32 s61, 0xdddc9652
            v_lshrrev_b32 v248, v248, s61
            v_and_b32 v248, 15, v248
            v_lshlrev_b32 v248, 12, v248
            v_lshl_add_u32 v249, v249, 7, v248
            """)
        else:
            a(f"buffer_load_dword v7, v184, {WS}, s17 offen sc1")

    def g2_plan(self):
        HR = 8
        k0 = lambda cb: 7 * (cb // 2) + 3 * (cb % 2)
        groups = [("a", cb, [k0(cb), k0(cb) + 1]) for cb in range(4)]
        groups += [("b", 0, [2]), ("b", 1, [5]), ("m", 0, [6]), ("b", 2, [9]), ("b", 3, [12]), ("m", 1, [13])]
        order = [k for g in groups for k in g[2]]
        slot = {k: 32 + 16 * ((p + 4) % HR) for p, k in enumerate(order)}
        loads, chk, c = [], [], 88
        for kind, i, ks in groups:
            if kind == "a" and i == 2: c = 160
            p0 = order.index(ks[0])
            if kind == "m":
                chk.append([c, c + 1, c + 2, c + 3])
                for h in range(2):
                    loads.append((p0, None, f"buffer_load_dwordx2 {P(c+2*h)}, v9, {WS}, s15 offen offset:{1024*i + 512*h} sc1"))
                c += 4
            else:
                chk.append([c, c + 1])
                for h in range(2):
                    loads.append((p0, None, f"buffer_load_dword v{c+h}, v6, {WS}, s16 offen offset:{1024*i + 512*h + (256 if kind == 'b' else 0)} sc1"))
                c += 2
            for k in ks:
                for st in range(4):
                    pre = f"s_add_u32 s18, s78, {4096*k}\n" if st == 0 else ""
                    loads.append((order.index(k), (k, st), pre + f"buffer_load_dwordx4 {Q4(slot[k]+4*st)}, v{12+st}, {WS}, s18 offen sc1"))
        self.g2p = (HR, groups, order, slot, loads, chk)
        self.g2_early = [l[2] for l in loads[:opt('g2pre', 20)]]
        self.g2_log = []
        self.g2_todo = list(self.g2_early)

    def g2_body(self):
        a = self.a
        HR, groups, order, slot, loads, chk = self.g2p
        npre = len(self.g2_early)
        merged, it = [], iter(loads[:npre])
        for t in self.g2_log: merged.append(next(it) if t == "l" else (0, None, None))
        loads = merged + loads[npre:]
        nissued = len(merged)
        if opt('ht2', -1) >= 0:
            at = max(nissued, min(i for i, l in enumerate(loads) if l[0] >= opt('ht2', -1) and l[2]))
            loads.insert(at, (loads[at][0], None, f"buffer_load_dword v7, v184, {WS}, s17 offen sc1"))
        keys = [l[1] for l in loads]
        pos = [nissued]
        def issue(maxp):
            if pos[0] < len(loads) and loads[pos[0]][0] <= maxp:
                a(loads[pos[0]][2]); pos[0] += 1
        def wait(key):
            i = keys.index(key)
            while pos[0] <= i: issue(99)
            a(f"s_waitcnt vmcnt({pos[0] - 1 - i})")
        def vsteps(gi):
            x, out = 4 + gi % 2, []
            for j, k in enumerate(groups[gi][2]):
                regs = (list(chk[gi]) if j == 0 else [x]) + [slot[k] + i for i in range(16)]
                L = [("w", (k, 3)), f"v_bitop3_b32 v{x}, v{regs[0]}, v{regs[1]}, v{regs[2]} bitop3:0x96"]
                rest = regs[3:]
                while len(rest) >= 2: L.append(f"v_bitop3_b32 v{x}, v{x}, v{rest.pop(0)}, v{rest.pop(0)} bitop3:0x96")
                if rest: L.append(f"v_xor_b32 v{x}, v{x}, v{rest.pop(0)}")
                out.append(L)
            cmp = f"v_cmp_ne_u32 vcc, {'s21' if groups[gi][0] == 'm' else 's20'}, v{x}"
            p0, p1 = order.index(groups[gi][2][0]), order.index(groups[gi][2][-1])
            again = [l[2].replace("s18", "s17") for l in self.g2p[4] if p0 <= l[0] <= p1]
            self.g2_fix.append((gi, again, [t for L in out for t in L if isinstance(t, str)], cmp))
            out[-1].append(f"{cmp}\ns_cbranch_vccnz L_g2_fix{gi}\nL_g2_back{gi}:")
            return out
        def run(t):
            if isinstance(t, tuple): wait(t[1])
            else: a(t)
        tail = self.g2_tail_setup()
        self.g2_fix = []
        if opt('force', 0): a(f"s_xor_b32 s{19 + opt('force', 0)}, s{19 + opt('force', 0)}, 1")
        a("L_g2_go:")
        a.fence()
        a(f"s_waitcnt vmcnt({nissued - 1 - max(i for i, t in enumerate(self.g2_log) if t == 'e')})")
        self.g2_epi_pre(0)
        for L in vsteps(0):
            for t in L: run(t)
        for gi, (kind, _, ks) in enumerate(groups):
            nxt = vsteps(gi + 1) if gi + 1 < len(groups) else []
            nxt = [[] for _ in range(len(ks) - len(nxt))] + nxt
            for j, k in enumerate(ks):
                p = order.index(k)
                if p in (5, 10): a.region("g2" + "abc"[p // 5])
                self.stamp("g")
                cur = nxt[j]
                last = p == 13
                wr = lambda st: [f"ds_write_b128 v{127+st}, {Q4(192+16*st+4*dt)} offset:{1024*dt}" for dt in range(4)]
                for si, st in enumerate((1, 2, 3, 0) if last else range(4)):
                    pend = wr(si - 1) if last and si >= 2 else []
                    for dt in range(4):
                        d = 192 + 16 * st + 4 * dt
                        a(f"v_mfma_f32_16x16x32_bf16 {Q4(d)}, a[{16*k+4*dt}:{16*k+4*dt+3}], {Q4(slot[k]+4*st)}, {'0' if p == 0 else Q4(d)}")
                        i = 4 * si + dt
                        if i in {4: (0, 4, 8, 12), 5: (0, 3, 6, 10, 13), 6: (0, 3, 6, 9, 12, 15)}[opt('g2n', 5)]: issue(p + HR - 1)
                        if pend: a(pend.pop(0))
                        if i >= 9:
                            for _ in range(2):
                                if cur: run(cur.pop(0))
                        elif p >= 12:
                            for _ in range(3):
                                if tail: a(tail.pop(0))
                if last:
                    assert not tail
                    for t in wr(3): a(t)
                assert not cur
                if p <= 1: assert all(l[0] < 7 for l in loads[:pos[0]]), "check registers of the first groups share a ring slot"
        assert pos[0] == len(loads)

    def g2_tail_setup(self):
        rb = self.WB
        L = []
        for j in range(1, 4):
            L += [f"s_add_u32 s60, {sWV}, {j} | s_and_b32 s60, s60, 3 | s_mul_i32 s60, s60, 12288 | s_add_u32 s60, s60, {rb + 4096*(j-1)} | v_lshl_add_u32 v{127+j}, v1, 4, s60"]
        L += [f"s_mul_i32 s60, {sWV}, 12288 | s_add_u32 s60, s60, {rb} | v_lshl_add_u32 v131, v1, 4, s60",
              "v_lshlrev_b32 v132, 10, v2", "v_lshl_add_u32 v132, v3, 4, v132",
              f"s_lshl_b32 s22, s76, 16 | s_lshl_b32 s61, {sWV}, 14 | s_add_u32 s22, s22, s61 | s_lshl_b32 s61, s77, 7 | s_add_u32 s22, s22, s61"]
        L += [f"v_accvgpr_read_b32 v{96+i}, a{224+i}" for i in range(16)]
        for dt in range(4):
            x = 20 + 2 * dt
            L += [f"v_lshlrev_b32 v{112+4*dt}, 16, v{x}", f"v_and_b32 v{113+4*dt}, 0xffff0000, v{x}",
                  f"v_lshlrev_b32 v{114+4*dt}, 16, v{x+1}", f"v_and_b32 v{115+4*dt}, 0xffff0000, v{x+1}"]
        return [t.replace(" | ", "\n") for t in L]

    def g2_epilogue(self, rb, tb):
        a = self.a
        a("s_waitcnt lgkmcnt(0)\ns_barrier")
        for dt in range(4):
            for src in range(3):
                a(f"ds_read_b128 {Q4(136 + 12*dt + 4*src)}, v131 offset:{4096*src + 1024*dt}")
        for dt in range(4):
            r, o = 136 + 12 * dt, 192 + 4 * dt
            a(f"s_waitcnt lgkmcnt({9 - 3*dt})")
            for h in range(2): a(f"v_pk_add_f32 {P(r+2*h)}, {P(r+2*h)}, {P(r+4+2*h)}\nv_pk_add_f32 {P(o+2*h)}, {P(o+2*h)}, {P(r+8+2*h)}")
            for h in range(2): a(f"v_pk_add_f32 {P(r+2*h)}, {P(r+2*h)}, {P(o+2*h)}")
            for h in range(2): a(f"v_pk_fma_f32 {P(r+2*h)}, {P(r+2*h)}, {P(96+4*dt+2*h)}, {P(112+4*dt+2*h)}")
            for h in range(2): a(f"v_cvt_pk_bf16_f32 v{80+2*dt+h}, v{r+2*h}, v{r+2*h+1}")
            if dt == 1 and self.diag == "lsb":
                self.stamp("*")
                reg = lambda i: 82 + i if i < 15 else 85 + i
                a("s_cmp_lg_u32 s2, 100\ns_cbranch_scc1 L_nolsb")
                for j in range(4):
                    for g in range(4):
                        i = min(4 * j + g + 1, self.nst - 1)
                        a(f"s_sub_u32 s60, s{reg(i)}, s82\nv_cmp_eq_u32 vcc, {g}, v3\nv_mov_b32 v5, s60\nv_cndmask_b32 v4, v4, v5, vcc")
                    a(f"v_lshrrev_b32 v4, v2, v4\nv_and_b32 v4, 1, v4\nv_and_b32 v{80+j}, -2, v{80+j}\nv_or_b32 v{80+j}, v{80+j}, v4")
                a("L_nolsb:")
                self.diag = False
            if dt % 2 == 1:
                a(f"buffer_store_dwordx4 {Q4(80+2*(dt-1))}, v132, {OUT}, s22 offen offset:{32*(dt-1)}{self.OUTM}")

    def g2_retry(self):
        a = self.a
        for gi, again, chain, cmp in self.g2_fix:
            a(f"L_g2_fix{gi}:")
            a.fence()
            a(f"s_add_u32 s19, s19, 1\ns_cmp_gt_u32 s19, {SPIN}\ns_cbranch_scc1 L_g2_back{gi}\ns_waitcnt vmcnt(0)")
            if opt('force', 0): a(f"s_cmp_eq_u32 s19, 2\ns_cselect_b32 s60, 1, 0\ns_xor_b32 s{19 + opt('force', 0)}, s{19 + opt('force', 0)}, s60")
            for t in again: a(t)
            a("s_waitcnt vmcnt(0)")
            for t in chain: a(t)
            a(f"{cmp}\ns_cbranch_vccnz L_g2_fix{gi}\ns_branch L_g2_back{gi}")

def build_fused2(diag=False):
    g = G2(sc=True, diag=diag)
    a = g.a
    S = g.stamp
    kn = NAME + "_kernel"
    ref = open("cdna_kernels/" + NAME + ".s.ref").read().split("\n")
    hdr = [ln for ln in ref if ln.startswith(";") and "@launch" not in ln and "Override" not in ln and "grid=ceil" not in ln]
    hdr += ["; One persistent workgroup per CU. Stages: kv = shift_conv(k)*v, transposed through d_ws -> Toeplitz MFMA long",
            "; convolution per channel -> x1 -> GEMM1 (LayerNorm folded in) + SiLU -> GEMM2 + gated residual.",
            "; Hand-offs between workgroups use write-through stores with launch-tagged flags, tags or check words.",
            "; @launch grid=(256,1,1) block=(256,1,1) lds=163840"]
    a.raw('.amdgcn_target "amdgcn-amd-amdhsa--gfx950"\n.text')
    g.entry2(kn)
    a(f"s_cmp_ge_u32 {sWV}, 2\ns_cbranch_scc1 L_role_b")
    n0 = g.nst
    g.role_a()
    if HINT: g.flag_a()
    QP = opt('qp', 2)
    if QP == 0: g.q_rows()
    a(f"s_waitcnt vmcnt({(9 if HINT else 4) + (8 if QP == 0 else 0)})\ns_branch L_join1\nL_role_b:")
    a.fence()
    g.nst = n0
    a.region("end")
    if opt('cpf', 1) == 3: g.code_prefetch2()
    a(f"s_sub_u32 s6, {sWV}, 2")
    g.srd_words((8, 9, 0, 11, 4, 5, 6, 7, 10))
    a(f"s_waitcnt lgkmcnt(0)\nv_mov_b32 v4, {WS_TAG}\nbuffer_load_dwordx2 v[254:255], v4, {WS}, 0 offen sc1")
    if opt('tlb', 1):
        a(f"""
        v_min_u32 v4, 14, v1
        v_lshlrev_b32 v4, 21, v4
        v_add_u32 v4, {2*MB - 128}, v4
        buffer_load_dword v248, v4, {WS}, 0 offen
        v_mov_b32 v4, 0
        buffer_load_dword v251, v4, {OUT}, 0 offen
        buffer_load_dword v250, v4, {W1}, 0 offen
        buffer_load_dword v249, v4, {W2}, 0 offen
        """)
    BF = opt('bf', 0)
    if BF:
        g.c_ids()
        g.filter_load()
        if BF == 1:
            g.role_b_loads_gemv()
            g.role_b_loads2()
        g.g1_ids(); g.g2_ids()
        S()
        a(f"s_waitcnt vmcnt({13 if BF == 1 else 0})"); S(); S()
    else:
        g.role_b_loads_gemv()
        g.role_b_loads2()
        g.c_ids(); g.g1_ids(); g.g2_ids()
        if opt('warm', 0) == 1: g.warm((2, ["brest0", "g1a"]), (3, ["brest1", "cepi", "prep1", "g1b"]))
        if opt('warm', 0) == 3: g.warm((2, ["brest0"]), (3, ["brest1"]))
        S()
        a("v_and_b32 v2, 15, v1\nv_lshrrev_b32 v3, 4, v1")
        a.region("brest0")
        W2AT = opt('w2at', 0)
        g.n_after = 8 if W2L or W2AT else 12
        def after():
            g.filter_load()
            if not W2L and not W2AT: g.w2_unit_load()
        g.role_b_rest(0, after_wait=after); S()
        a(f"s_waitcnt vmcnt({2 if W2L or W2AT else 6})")
        if W2AT == 1: g.w2_unit_load()
        S()
    a("L_join1:")
    a.fence()
    a.region("fprep")
    g.filter_copies(); S()
    def mid():
        if HINT: return
        a(f"s_cmp_ge_u32 {sWV}, 2\ns_cbranch_scc1 L_mid_b\ns_waitcnt vmcnt({8 if QP == 0 else 0})")
        g.flag_a()
        if BF and not W2L:
            a("s_branch L_mid_done\nL_mid_b:")
            keep = (4, 5, 8, 14)
            for i, r in enumerate(keep): a(f"v_mov_b32 v{140+i}, v{r}")
            if BF == 2:
                g.role_b_loads_gemv()
                g.role_b_loads2()
            g.w2_unit_load()
            for i, r in enumerate(keep): a(f"v_mov_b32 v{r}, v{140+i}")
            a("v_and_b32 v2, 15, v1\nv_lshrrev_b32 v3, 4, v1\nL_mid_done:")
            return
        if QP == 1:
            a("v_mov_b32 v250, v5")
            g.q_rows()
            a("v_mov_b32 v5, v250")
        a("L_mid_b:")
    g.filter_prep(mid); S()
    a.region("ufetch")
    st = dict()
    a(f"s_cmp_ge_u32 {sWV}, 2\ns_cbranch_scc1 L_role_b2")
    if opt('q1', 0):
        a(f"s_cmp_eq_u32 {sWV}, 0\ns_cbranch_scc1 L_join2")
        g.q_rows("0"); g.q_rows("1")
    else:
        g.q_rows()
    a("s_branch L_join2\nL_role_b2:")
    a.fence()
    if BF:
        a.region("brest0")
        g.n_after = 0 if W2L else 4
        g.role_b_rest(0 if W2L else 4)
    if opt('w2at', 0) == 2: g.w2_unit_load()
    if not W2L: g.w2_unit_pack(0 if opt('w2at', 0) else 2)
    if opt('fm', 1) < 0: g.flag_m(0)
    a("L_join2:")
    a.region("addr")
    a.fence()
    g.u_addr()
    g.pre_conv()
    if WE:
        for i in range(opt('wed', 0)): a("s_sleep 4")
        g.side_inputs()
        for t in g.mod_load_list(32): a(t)
    if opt('warm', 0) >= 2: g.warm((1, ["conv0", "cepi"]), (2, ["conv1", "prep1"]), (3, ["g1a", "g1b"]))
    g.u_wait()
    S(); S("c")
    a("s_waitcnt lgkmcnt(0)\ns_barrier")
    g.u_fetch(); S()
    w2 = dict(n=0)
    def side():
        g.g2_w2_one(w2['n']); w2['n'] += 1
    a.region("conv0")
    log = []
    younger = lambda tag: len(log) - 1 - max(i for i, t in enumerate(log) if t == tag)
    modl = g.mod_load_list(32)
    wl = g.w_stream(32, 0)
    st.update(hold=0, w=g.e_stream() + ([] if WE else wl[wl.index("WAIT"):]), q=[('e', t) for t in g.epi_load_list()] + ([] if WE else [('m', t) for t in modl]))
    if opt('wfirst', 1):
        st['w'] = wl[wl.index("WAIT"):] + g.e_stream()
        st['q'] = [('m', t) for t in modl] + [('x', None)] * opt('egap', 6) + [('e', t) for t in g.epi_load_list()]
    if opt('pre', 0):
        log += [t for t, _ in st['q']]
        st['q'] = []
    Q0 = opt('q0', 2)
    def hook(n):
        if n == 40: a.region("conv1")
        if n in (0, 8, 16, 24, 32, 40, 50, 60, 70, 79): S("c")
        if n >= Q0 and n % 2 == 0 and st['q']:
            tg, t = st['q'].pop(0)
            if t: log.append(tg); a(t)
        for _ in range(opt('wr', 3)):
            if not st['w'] or st['hold'] > n: break
            t = st['w'][0]
            if t == "EWAIT":
                if n < Q0 + opt('ew', 22): break
                a(f"s_waitcnt vmcnt({younger('e')})")
            elif t == "EVERIFY":
                g.verify("e", [125] + [109 + 2*i for i in range(8)], 154, g.epi_load_list())
            elif t == "WAIT":
                if n < Q0 + opt('ww', 22): break
                a(f"s_waitcnt vmcnt({younger('m')})")
            elif t == "VERIFY":
                g.verify("w", [33 + 2*i for i in range(8)], 24, modl)
            elif t == "GAP":
                assert n <= 64
                st['hold'] = n + 8
            else:
                a(t.replace(" | ", "\n")); log.extend('s' * t.count("buffer_store"))
            st['w'].pop(0)
        if W2L:
            U0, U1, U2 = opt('u0', 1), opt('u1', 33), opt('u2', 67)
            if n in (U0, U0 + 2):
                a(f"s_add_u32 m0, s44, {512*(n-U0)}\nbuffer_load_dwordx4 v169, {W2}, {'s23' if n == U0 else 's22'} offen{g.NT} lds"); log.append('u')
            if n == U1:
                a(f"s_waitcnt vmcnt({younger('u')})")
                a("ds_read_b64_tr_b16 v[128:129], v174\nds_read_b64_tr_b16 v[130:131], v175\nds_read_b64_tr_b16 v[132:133], v174 offset:8\nds_read_b64_tr_b16 v[134:135], v175 offset:8")
            if n in (U1 + 8, U1 + 10):
                j = (n - U1 - 8) // 2
                a(f"buffer_store_dwordx4 {Q4(128+4*j)}, v9, {WS}, s45 offen offset:{1024*j} sc1"); log.append('p')
            if n == U2:
                a(f"s_waitcnt vmcnt({younger('p')})")
                g.flag_store("s46", 1, 3, 136); log.append('s')
        if n == opt('fm', 1) and not W2L:
            a(f"s_cmp_lt_u32 {sWV}, 2\ns_cbranch_scc1 L_skip_m")
            g.flag_m(len(log) + (16 if WE else 8))
            a("L_skip_m:")
        WM = opt('wm', 46)
        if W2L: WM = 999
        if n == max(0, WM - 14):
            a(f"buffer_load_dwordx2 v[252:253], v248, {WS}, 0 offen sc1"); log.append('f')
        if n == WM: g.poll("M", first_issued=True, va="v248", vd=252, later=younger('f'))
        if n >= WM and n % 2 == 1 and w2['n'] < opt('w2conv', 15):
            side(); log.append('w')
    g.conv_main(hook); S()
    assert not st['q']
    a.region("cepi")
    print("w_stream left after conv:", len(st['w']), file=sys.stderr)
    for t in st['w']:
        assert t not in ("WAIT", "GAP", "VERIFY", "EWAIT", "EVERIFY")
        a(t.replace(" | ", "\n")); log.extend('s' * t.count("buffer_store"))
    a("s_waitcnt lgkmcnt(0)")
    S("c")
    g.conv_epilogue(); S("c")
    if W2L: a(f"buffer_load_dwordx2 v[252:253], v248, {WS}, 0 offen sc1")
    a.region("prep1")
    EARLY = opt('early', 0)
    if EARLY:
        a(f"""
        s_and_b32 s60, s2, 15
        s_lshl_b32 s60, s60, 4
        s_lshr_b32 s61, s2, 4
        s_add_u32 s60, s60, s61
        s_lshl_b32 s60, s60, 2
        s_add_u32 s60, s60, {sWV}
        s_lshl_b32 s60, s60, {FL}
        s_add_u32 s60, s60, {FLAG_W}
        s_and_b32 s61, s2, 8
        s_lshl_b32 s61, s61, {7 + FL}
        s_add_u32 s60, s60, s61
        s_waitcnt vmcnt(2)
        """)
        g.flag_store("s60", 4, 11 + FL, 4)
    g.signal_all(FLAG_2, 8, 2); S()
    if W2L: g.poll("M", va="v248", vd=252, first_issued=True, later=1)
    g.g1_addr()
    if EARLY:
        a(f"""
        s_lshl_b32 s60, {sX}, 4
        s_add_u32 s60, s60, s75
        s_lshl_b32 s60, s60, {6 + FL}
        s_add_u32 s60, s60, {FLAG_W}
        v_lshl_add_u32 v4, v1, {FL}, s60
        """)
        a(f"buffer_load_dwordx2 v[6:7], v4, {WS}, 0 offen sc1")
        n0 = w2['n']
        while w2['n'] < 56 - opt('w2b', 15) - opt('w2a', 14): side()
        g.poll("W", first_issued=True, later=w2['n'] - n0)
        g.g1_run(None, 0, early="weights")
    else:
        while w2['n'] < 56 - opt('w2e3', 0) - opt('w2b', 15) - opt('ea', 0): side()
    g.warm((0, ["g1c"]), (1, ["g1d"]), (2, ["g1e0", "g2a", "g2b"]), (3, ["g1e1", "g2c", "g2e"])); S()
    a(f"""
    s_lshl_b32 s60, {sX}, {8 + FL}
    s_add_u32 s60, s60, {FLAG_2}
    v_lshl_add_u32 v4, v0, {FL}, s60
    """)
    a.region("g1a")
    if opt('narrow', 0):
        a(f"""
        s_lshr_b32 s60, {sX}, 1
        s_lshr_b32 s61, s60, 1
        s_xor_b32 s60, s60, s61
        s_and_b32 s60, s60, 1
        v_bfe_u32 v5, v0, 3, 1
        v_cmp_eq_u32 vcc, s60, v5
        v_and_b32 v5, 15, v0
        v_cmp_eq_u32 s[60:61], s75, v5
        s_or_b64 vcc, vcc, s[60:61]
        s_cmp_eq_u32 s2, 0
        s_cselect_b64 exec, -1, vcc
        """)
    g.poll("2")
    if opt('narrow', 0): a("s_mov_b64 exec, -1")
    a("s_barrier"); S(); S("h")
    g.g2_plan()
    g.g1_run(side, opt('w2b', 15), EARLY, opt('w2a', 14))
    S()
    S("h")
    a.region("g1e0")
    assert w2['n'] == 56
    if not g.g2_log: g.g2_run()
    g.g2_epi_load()
    g.g2_log += ["e"] * 8
    g.g1_epilogue(G2.T_U - 4096)
    S("h")
    a("s_barrier"); S()
    a.region("g2a")
    S(); S("g"); S("h")
    g.g2_body(); S(); S("h")
    a("L_g2_giveup:")
    if diag and opt('cnt', 0):
        a(f"s_lshl_b32 s60, s2, 2\ns_add_u32 s60, s60, {sWV}\ns_lshl_b32 s60, s60, 7\ns_add_u32 s60, s60, {WS_DIAG + 124}\nv_mov_b32 v4, s60\nv_mov_b32 v5, s19\nbuffer_store_dword v5, v4, {WS}, 0 offen")
    a.region("g2e")
    g.g2_epilogue(G2.WB, 0)
    a.region("end")
    g.tag_update()
    g.exit(kn)
    g.g2_retry()
    a("L_warm_ret:\ns_setpc_b64 s[98:99]" if opt('warm', 0) else "L_warm_ret:\ns_endpgm")
    a.raw('.section .rodata,"a"')
    a.raw(desc(kn, 512, 256))
    if not opt('warm', 0):
        a.lines = [ln for ln in a.lines if not ln.startswith(";@region")]
    txt, size = add_pads(a.text(), opt('pad', 256))
    print("code bytes", size, file=sys.stderr)
    return "\n".join(hdr) + "\n" + txt

if __name__ == "__main__":
    diag = sys.argv[2] if len(sys.argv) > 2 else False
    open(sys.argv[1], "w").write(build_fused2(diag))
```
